```python
import torch

def _softmax(x, axis=-1):
    return torch.softmax(x, dim=axis)
def _gelu(x):
    return torch.nn.functional.gelu(x, approximate="tanh")
def _silu(x):
    return torch.nn.functional.silu(x)
def _sigmoid(x):
    return torch.sigmoid(x)
def _layernorm(x, axis=-1, eps=1e-5):
    m = x.mean(dim=axis, keepdim=True)
    v = x.var(dim=axis, keepdim=True, unbiased=False)
    return (x - m) / torch.sqrt(v + eps)
def _scatter_add(tgt, idx, src, axis=0):
    return tgt.clone().index_add_(axis, idx, src)
def _segment_sum(src, seg, n):
    out = torch.zeros((n,) + src.shape[1:], dtype=src.dtype)
    return out.index_add_(0, seg, src)
def _pad(x, pw):
    flat = tuple(v for pair in reversed(pw) for v in pair)
    return torch.nn.functional.pad(x, flat)

kernel_name = 'standalone__gqa_block_cached__near_ridge'

def setup_inputs():

    _w = (lambda a: (lambda t: t.to(torch.bfloat16) if t.is_floating_point() else t)(torch.as_tensor(a)))
    B, Sq, D = 8, 64, 576
    Hq, Hkv, Sk, Dh = 32, 16, 1024, 128
    assert Hq % Hkv == 0, (Hq, Hkv)
    return {
        "x": _w((lambda *s: torch.randn(*s, dtype=torch.bfloat16) * 0.8)(B, Sq, D)),
        "k_cache": _w((lambda *s: torch.randn(*s, dtype=torch.bfloat16) * 0.8)(B, Hkv, Sk, Dh)),
        "v_cache": _w((lambda *s: torch.randn(*s, dtype=torch.bfloat16) * 0.05)(B, Hkv, Sk, Dh)),
        "wq": _w((lambda *s: torch.randn(*s, dtype=torch.bfloat16) * 0.8)(D, Hq * Dh) * (D ** -0.5)),
        "wo": _w((lambda *s: torch.randn(*s, dtype=torch.bfloat16) * 0.05)(Hq * Dh, D) * ((Hq * Dh) ** -0.5)),
    }

def reference(x, k_cache, v_cache, wq, wo):
    B, Sq, D = x.shape
    Hq, Dh = 32, 128
    Hkv = k_cache.shape[1]
    rep = Hq // Hkv
    q = (lambda x, *d: x.permute(*d))((x @ wq).reshape(B, Sq, Hq, Dh), 0, 2, 1, 3)
    k = (lambda x, n, axis: torch.repeat_interleave(x, n, dim=axis))(k_cache, rep, axis=1)
    v = (lambda x, n, axis: torch.repeat_interleave(x, n, dim=axis))(v_cache, rep, axis=1)
    scores = torch.einsum("bhqd,bhkd->bhqk", q, k) * (Dh ** -0.5)
    p = _softmax(scores, axis=-1)
    o = torch.einsum("bhqk,bhkd->bhqd", p, v)
    return (lambda x, *d: x.permute(*d))(o, 0, 2, 1, 3).reshape(B, Sq, Hq * Dh) @ wo
```

```python
import re

REG_RE = re.compile(r'^(-?\|?)(abs\()?([vsa])(\d+|\[(\d+):(\d+)\])\)?\|?$')

def regs_of(tok):
    tok = tok.strip()
    if tok in ('vcc',):
        return [('vcc', 0), ('vcc', 1)]
    if tok == 'vcc_lo': return [('vcc', 0)]
    if tok == 'vcc_hi': return [('vcc', 1)]
    if tok == 'exec': return [('exec', 0), ('exec', 1)]
    if tok == 'exec_lo': return [('exec', 0)]
    if tok == 'exec_hi': return [('exec', 1)]
    if tok == 'm0': return [('m0', 0)]
    m = REG_RE.match(tok)
    if not m:
        return []
    cls = m.group(3)
    if m.group(5) is not None:
        lo, hi = int(m.group(5)), int(m.group(6))
    else:
        lo = hi = int(m.group(4))
    return [(cls, i) for i in range(lo, hi + 1)]

TRANS = ('v_exp_f32', 'v_log_f32', 'v_rcp_f32', 'v_rsq_f32', 'v_sqrt_f32', 'v_sin_f32', 'v_cos_f32', 'v_rcp_iflag_f32')

class Ins:
    __slots__ = ('text', 'op', 'ops', 'dst', 'src', 'kind', 'passes', 'target', 'is_label', 'label',
                 'trans', 'dpp', 'perm', 'rdlane', 'wide_store', 'lds_dma', 'mfma_c', 'mfma_ab', 'cnt', 'comment', 'store_data')
    def __init__(self, text):
        self.text = text
        self.is_label = False
        self.label = None
        self.dst = []; self.src = []
        self.kind = None; self.passes = 0; self.target = None
        self.trans = False; self.dpp = False; self.perm = False; self.rdlane = False
        self.wide_store = False; self.lds_dma = False
        self.mfma_c = []; self.mfma_ab = []; self.cnt = None; self.store_data = []
        t = text.split(';')[0].strip()
        if t.endswith(':'):
            self.is_label = True; self.label = t[:-1]; self.kind = 'label'; self.op = ''; self.ops = []
            return
        parts = t.split(None, 1)
        self.op = op = parts[0]
        rest = parts[1] if len(parts) > 1 else ''
        toks = [x.strip() for x in re.split(r',(?![^(]*\))', rest)] if rest else []
        ops = []
        mods = []
        for i, tk in enumerate(toks):
            ws = tk.split()
            if not ws: continue
            ops.append(ws[0]); mods += ws[1:]
        self.ops = ops
        R = [regs_of(o) for o in ops]
        base = re.sub(r'_(e32|e64|dpp|sdwa)$', '', op)
        if op.startswith('v_mfma'):
            self.kind = 'mfma'
            self.passes = 8 if '32x32' in op else 4
            self.dst = R[0]; self.mfma_ab = R[1] + R[2]; self.mfma_c = R[3]
            self.src = R[1] + R[2] + R[3]
        elif op.startswith('v_'):
            self.kind = 'valu'
            self.trans = base in TRANS
            self.dpp = ('_dpp' in op) or any(m.startswith(('row_', 'quad_perm', 'wave_')) for m in mods)
            if base.startswith('v_cmp'):
                self.dst = R[0]; self.src = sum(R[1:], [])
            elif base.startswith('v_permlane') and 'swap' in base:
                self.perm = True
                self.dst = R[0] + R[1]; self.src = R[0] + R[1]
            elif base in ('v_readfirstlane_b32', 'v_readlane_b32'):
                self.rdlane = True
                self.dst = R[0]; self.src = sum(R[1:], [])
            elif base in ('v_add_co_u32', 'v_sub_co_u32', 'v_addc_co_u32', 'v_subb_co_u32', 'v_subrev_co_u32'):
                self.dst = R[0] + R[1]; self.src = sum(R[2:], [])
            elif base in ('v_fmac_f32', 'v_mac_f32', 'v_pk_fmac_f16', 'v_dot2c_f32_bf16', 'v_writelane_b32'):
                self.dst = R[0]; self.src = sum(R, [])
            elif base == 'v_nop':
                pass
            else:
                self.dst = R[0]; self.src = sum(R[1:], [])
                if self.dpp: self.src += R[0]
        elif op.startswith('ds_'):
            self.kind = 'ds'
            if op.startswith(('ds_read', 'ds_bpermute', 'ds_permute', 'ds_swizzle')):
                self.dst = R[0]; self.src = sum(R[1:], []); self.cnt = 'lgkm'
            else:
                self.src = sum(R, []); self.cnt = 'lgkm'
        elif op.startswith(('buffer_', 'global_')):
            self.kind = 'vmem'; self.cnt = 'vm'
            is_lds = ('lds' in mods) or ('_lds_' in op)
            self.lds_dma = is_lds
            if op in ('buffer_wbl2', 'buffer_inv'):
                pass
            elif is_lds:
                self.src = sum(R, []) + [('m0', 0)]
            elif 'atomic' in op:
                ret = 'sc0' in mods
                if op.startswith('global_') and ret:
                    self.dst = R[0]; self.src = sum(R[1:], [])
                elif op.startswith('buffer_') and ret:
                    self.dst = R[0]; self.src = sum(R, [])
                else:
                    self.src = sum(R, [])
            elif '_load' in op:
                self.dst = R[0]; self.src = sum(R[1:], [])
            else:
                self.src = sum(R, [])
                data = R[0] if op.startswith('buffer_') else R[1]
                self.store_data = data
                self.wide_store = ('x3' in op or 'x4' in op)
        elif op.startswith('s_'):
            self.kind = 'salu'
            if op.startswith(('s_load', 's_buffer_load', 's_memtime', 's_memrealtime')):
                self.kind = 'smem'; self.cnt = 'smem'
                self.dst = R[0]; self.src = sum(R[1:], [])
            elif op.startswith(('s_cbranch', 's_branch')):
                self.kind = 'branch'; self.target = ops[0]
                if 'vcc' in op: self.src = [('vcc', 0), ('vcc', 1)]
                if 'exec' in op: self.src = [('exec', 0), ('exec', 1)]
            elif op.startswith('s_cmp') or op.startswith('s_bitcmp'):
                self.src = sum(R, [])
            elif op in ('s_waitcnt', 's_nop', 's_barrier', 's_endpgm', 's_setprio', 's_sleep'):
                self.kind = 'ctl'
            elif op.startswith('s_setreg'):
                self.src = sum(R, [])
            elif 'saveexec' in op:
                self.dst = R[0] + [('exec', 0), ('exec', 1)]; self.src = sum(R[1:], []) + [('exec', 0), ('exec', 1)]
            else:
                self.dst = R[0] if R else []; self.src = sum(R[1:], [])
                if op.startswith(('s_addk', 's_mulk', 's_cmov')): self.src += R[0]
        else:
            raise ValueError('unknown instr: ' + text)

    def states(self):
        if self.is_label: return 0
        if self.op == 's_nop': return int(self.ops[0], 0) + 1
        return 1

def is_vreg(r): return r[0] in ('v', 'a')
def is_sreg(r): return r[0] in ('s', 'vcc')

def required(p, c):
    need = 0
    pd = set(p.dst)
    if p.kind == 'valu':
        vd = {r for r in pd if is_vreg(r)}
        sd = {r for r in pd if is_sreg(r)}
        if vd:
            if c.kind == 'mfma' and vd & set(c.src): need = max(need, 2)
            if c.kind == 'valu':
                if c.perm and vd & set(c.src): need = max(need, 2)
                if c.dpp and vd & set(c.src): need = max(need, 2)
                if c.rdlane and vd & set(c.src): need = max(need, 1)
                if p.trans and not c.trans and vd & set(c.src): need = max(need, 1)
            if p.trans and c.kind in ('ds', 'vmem') and vd & set(c.src): need = max(need, 1)
        if sd:
            if c.kind == 'valu' and sd & set(c.src):
                need = max(need, 4 if (c.rdlane and False) else 2)
            if c.kind == 'vmem' and sd & set(c.src): need = max(need, 5)
            if c.kind == 'mfma' and sd & set(c.src): need = max(need, 2)
    if p.kind == 'mfma':
        ps = p.passes
        t_raw = {2: 5, 4: 8, 8: 12, 16: 20}[ps]
        t_ovl = {2: 4, 4: 6, 8: 10, 16: 18}[ps]
        t_war = {2: 1, 4: 3, 8: 7, 16: 15}[ps]
        if c.kind == 'mfma':
            if pd & set(c.mfma_ab): need = max(need, t_raw)
            if pd & set(c.mfma_c):
                if not (list(p.dst) == list(c.mfma_c) and p.passes == c.passes): need = max(need, t_ovl)
            elif pd & set(c.dst):
                need = max(need, t_ovl)
        elif c.kind in ('valu', 'ds', 'vmem'):
            if pd & (set(c.src) | set(c.dst)): need = max(need, t_raw)
            if c.kind == 'valu' and set(p.mfma_c) & set(c.dst): need = max(need, t_war)
    if p.kind == 'salu' and ('m0', 0) in pd:
        if c.kind == 'vmem' and c.lds_dma: need = max(need, 1)
    if p.kind == 'vmem' and p.wide_store:
        if c.kind == 'valu' and set(p.store_data) & set(c.dst): need = max(need, 2)
        elif c.kind in ('ds', 'vmem', 'mfma') and set(p.store_data) & set(c.dst): need = max(need, 1)
    if p.kind == 'ds' and p.op in ('ds_write_b128', 'ds_write_b96'):
        pass
    return need

MAXD = 21

class Prog:
    def __init__(self):
        self.ins = []
    def __call__(self, text):
        for ln in text.split('\n'):
            ln = ln.strip()
            if not ln or ln.startswith(';'):
                continue
            self.ins.append(Ins(ln))
    def label(self, name):
        self.ins.append(Ins(name + ':'))
    def succ(self, i, lab):
        x = self.ins[i]
        if x.op == 's_endpgm': return []
        if x.kind == 'branch':
            t = lab[x.target]
            if x.op == 's_branch': return [t]
            return [i + 1, t]
        return [i + 1] if i + 1 < len(self.ins) else []
    def fix_hazards(self, verbose=False):
        total = 0
        for it in range(200):
            lab = {x.label: i for i, x in enumerate(self.ins) if x.is_label}
            fixes = {}
            for i, p in enumerate(self.ins):
                if p.kind not in ('valu', 'mfma', 'salu', 'vmem'): continue
                if p.kind == 'salu' and ('m0', 0) not in p.dst: continue
                if p.kind == 'vmem' and not p.wide_store: continue
                stack = [(j, 0) for j in self.succ(i, lab)]
                seen = {}
                while stack:
                    j, d = stack.pop()
                    if d >= MAXD: continue
                    if j in seen and seen[j] <= d: continue
                    seen[j] = d
                    c = self.ins[j]
                    if not c.is_label:
                        need = required(p, c)
                        if need > d:
                            fixes[j] = max(fixes.get(j, 0), need - d)
                            d2 = need + c.states()
                        else:
                            d2 = d + c.states()
                    else:
                        d2 = d
                    for k in self.succ(j, lab):
                        stack.append((k, d2))
            if not fixes: break
            for j in sorted(fixes, reverse=True):
                n = fixes[j]
                new = []
                while n > 0:
                    k = min(n, 16)
                    new.append(Ins('s_nop %d' % (k - 1)))
                    n -= k
                total += fixes[j]
                if verbose: print('hazard: insert %d before: %s' % (fixes[j], self.ins[j].text))
                self.ins[j:j] = new
        return total
    def lint_waits(self):
        lab = {x.label: i for i, x in enumerate(self.ins) if x.is_label}
        errs = []
        seen = set()
        stack = [(0, (), ())]
        steps = 0
        while stack:
            i, lg, vm = stack.pop()
            while True:
                steps += 1
                if steps > 3000000:
                    errs.append('lint: too many steps'); return errs
                key = (i, lg, vm)
                if key in seen: break
                seen.add(key)
                x = self.ins[i]
                if not x.is_label:
                    touched = set(x.src) | set(x.dst)
                    for q, nm in ((lg, 'lgkm'), (vm, 'vm')):
                        for e in q:
                            if e[1] & touched:
                                if x.cnt is not None and not (e[1] & set(x.src)) and e[0] == x.cnt and x.cnt != 'smem':
                                    continue
                                errs.append('%s pending on %s at [%d] %s' % (nm, sorted(e[1] & touched)[:4], i, x.text))
                    if x.op == 's_waitcnt':
                        m = re.search(r'vmcnt\((\d+)\)', x.text)
                        if m:
                            n = int(m.group(1))
                            vm = vm[len(vm) - n:] if n < len(vm) and n > 0 else (() if n == 0 else vm)
                        m = re.search(r'lgkmcnt\((\d+)\)', x.text)
                        if m:
                            n = int(m.group(1))
                            if n == 0: lg = ()
                            elif not any(e[0] == 'smem' for e in lg):
                                lg = lg[len(lg) - n:] if n < len(lg) else lg
                    elif x.cnt == 'lgkm':
                        lg = lg + (('lgkm', frozenset(x.dst)),)
                        if len(lg) > 40: lg = lg[-40:]
                    elif x.cnt == 'smem':
                        lg = lg + (('smem', frozenset(x.dst)),)
                    elif x.cnt == 'vm':
                        vm = vm + (('vm', frozenset(x.dst)),)
                        if len(vm) > 70: vm = vm[-70:]
                nx = self.succ(i, lab)
                if not nx: break
                for k in nx[1:]:
                    stack.append((k, lg, vm))
                i = nx[0]
        return sorted(set(errs))
    def text(self):
        out = []
        for x in self.ins:
            out.append(x.text if x.is_label else '    ' + x.text)
        return '\n'.join(out)
    def max_regs(self):
        mv = ms = -1
        for x in self.ins:
            for r in list(x.dst) + list(x.src):
                if r[0] == 'v': mv = max(mv, r[1])
                if r[0] == 's': ms = max(ms, r[1])
        return mv + 1, ms + 1

def vr(i, n=1):
    return 'v%d' % i if n == 1 else 'v[%d:%d]' % (i, i + n - 1)
def sr(i, n=1):
    return 's%d' % i if n == 1 else 's[%d:%d]' % (i, i + n - 1)
```

```python
import sys, struct, argparse
from asmlib import Prog, vr, sr

def f32bits(x):
    return struct.unpack('<I', struct.pack('<f', x))[0]

SCALE_LOG2E = (128 ** -0.5) * 1.4426950408889634
WS_O = 0
WS_PART = 4 << 20

class Opt:
    nt = 1
    dbg = 0

def kd(name, nv, ns, extra=''):
    acc = (nv + 3) // 4 * 4
    return f""".section .rodata,"a"
.p2align 6
.amdhsa_kernel {name}
  .amdhsa_next_free_vgpr {nv}
  .amdhsa_next_free_sgpr {ns}
  .amdhsa_accum_offset {acc}
  .amdhsa_group_segment_fixed_size 0
  .amdhsa_kernarg_size 64
  .amdhsa_user_sgpr_count 2
  .amdhsa_user_sgpr_kernarg_segment_ptr 1
  .amdhsa_system_sgpr_workgroup_id_x 1
  .amdhsa_float_denorm_mode_32 3
  .amdhsa_float_denorm_mode_16_64 3
{extra}.end_amdhsa_kernel
.text
"""

def gen_k1(o):
    p = Prog()
    NT = ' nt' if o.nt else ''
    sX, sK, sV, sWq, sWs = 4, 6, 8, 10, 12
    rK, rV, rW, rX, rO = 16, 20, 24, 28, 32
    sWave, sB, sH, sKvh, sQh, sKq = 36, 37, 38, 39, 40, 41
    sRK, sRV, sKoff, sIss, sCnt = 42, 43, 44, 45, 46
    sC, sT0, sT1, sT2, sRole = 48, 49, 50, 51, 52
    sW4096 = 53
    vL = 1
    vT = list(range(2, 10))
    vKo = 10
    vVo = 14
    vWo = 15
    vXo = 19
    vLW = 21
    vLX = 22
    vLK = 23
    vLV = 24
    vA = 28
    vM, vThr, vL0, vL1 = 36, 37, 38, 39
    vQ = 40
    vS = 72
    vP = 88
    vF = 96
    vO = 128
    NV = 192

    R = [i * 32768 for i in range(5)]
    QS = [139264, 65536, 90112, 114688]

    p(f"""
    s_cmp_ge_u32 s2, 256
    s_cbranch_scc1 K1_END
    s_load_dwordx4 s[4:7], s[0:1], 0
    s_load_dwordx4 s[8:11], s[0:1], 16
    s_load_dwordx2 s[12:13], s[0:1], 56
    v_and_b32 v{vL}, 63, v0
    v_lshrrev_b32 v2, 6, v0
    s_and_b32 s{sT0}, s2, 7
    s_lshr_b32 s{sT1}, s2, 3
    v_readfirstlane_b32 s{sWave}, v2
    s_lshr_b32 s{sB}, s{sT1}, 2
    s_and_b32 s{sT1}, s{sT1}, 3
    s_lshl_b32 s{sH}, s{sT0}, 2
    s_add_u32 s{sH}, s{sH}, s{sT1}
    s_lshr_b32 s{sKvh}, s{sH}, 1
    s_and_b32 s{sQh}, s{sWave}, 1
    s_lshr_b32 s{sKq}, s{sWave}, 1
    s_lshr_b32 s{sRole}, s{sWave}, 2
    s_lshl_b32 s{sW4096}, s{sWave}, 12
    s_mov_b32 s{sC}, 0x{f32bits(SCALE_LOG2E):08x}
    """)
    p(f"""
    v_and_b32 v2, 15, v{vL}
    v_lshrrev_b32 v3, 4, v{vL}
    v_lshrrev_b32 v4, 2, v2
    v_and_b32 v5, 3, v2
    v_lshrrev_b32 v6, 5, v{vL}
    v_and_b32 v7, 31, v{vL}
    """)
    for u in range(4):
        p(f"""
        v_add_u32 v8, {4*u}, v3
        v_xor_b32 v8, v8, v2
        v_lshlrev_b32 v8, 4, v8
        v_lshl_add_u32 v{vKo+u}, v3, 8, v8
        """)
    p(f"""
    v_lshlrev_b32 v8, 2, v3
    v_xor_b32 v8, v8, v2
    v_lshlrev_b32 v8, 4, v8
    v_lshl_add_u32 v{vVo}, v3, 8, v8
    """)
    p(f"v_lshl_add_u32 v{vWo}, v3, 13, v8")
    for u in range(1, 4):
        p(f"v_add_u32 v{vWo+u}, {u*31744}, v{vWo}")
    p(f"""
    s_and_b32 s{sT0}, s{sWave}, 3
    s_lshl_b32 s{sT0}, s{sT0}, 4
    s_movk_i32 s{sT1}, 1152
    """)
    for u in range(2):
        p(f"""
        v_lshrrev_b32 v8, 3, v{vL}
        v_add_u32 v8, s{sT0}, v8
        v_add_u32 v8, {8*u}, v8
        v_mul_lo_u32 v8, v8, s{sT1}
        v_add_u32 v9, {4*u}, v3
        v_and_b32 v9, 7, v9
        v_and_b32 v{vXo+u}, 7, v{vL}
        v_xor_b32 v9, v9, v{vXo+u}
        v_lshl_add_u32 v8, v9, 4, v8
        v_subrev_u32 v{vXo+u}, {u*1024}, v8
        """)
    p(f"""
    v_lshl_add_u32 v8, v6, 3, v4
    v_lshlrev_b32 v8, 8, v8
    v_and_b32 v9, 1, v3
    v_lshlrev_b32 v9, 1, v9
    v_and_b32 v{vLW}, 1, v5
    v_add_u32 v9, v9, v{vLW}
    s_lshl_b32 s{sT0}, s{sKq}, 2
    v_add_u32 v9, s{sT0}, v9
    v_lshlrev_b32 v{vLW}, 2, v4
    v_xor_b32 v9, v9, v{vLW}
    v_lshl_add_u32 v8, v9, 4, v8
    v_lshrrev_b32 v9, 1, v5
    v_lshl_add_u32 v{vLW}, v9, 3, v8
    """)
    p(f"""
    s_lshl_b32 s{sT0}, s{sQh}, 5
    v_add_u32 v8, s{sT0}, v7
    v_lshrrev_b32 v9, 1, v8
    v_and_b32 v9, 7, v9
    v_xor_b32 v9, v9, v6
    v_lshlrev_b32 v9, 4, v9
    v_lshl_add_u32 v{vLX}, v8, 7, v9
    """)
    p(f"""
    s_lshl_b32 s{sT0}, s{sKq}, 5
    v_add_u32 v8, s{sT0}, v7
    v_and_b32 v9, 15, v8
    v_xor_b32 v9, v9, v6
    v_lshlrev_b32 v9, 4, v9
    v_lshl_add_u32 v{vLK}, v8, 8, v9
    """)
    p(f"""
    v_lshl_add_u32 v8, v6, 2, v4
    v_add_u32 v8, s{sT0}, v8
    v_lshlrev_b32 v8, 8, v8
    v_and_b32 v9, 1, v5
    v_lshl_add_u32 v8, v9, 3, v8
    v_and_b32 v9, 1, v3
    v_lshlrev_b32 v9, 1, v9
    v_lshrrev_b32 v2, 1, v5
    v_add_u32 v9, v9, v2
    v_lshlrev_b32 v2, 2, v4
    """)
    for a in range(4):
        p(f"""
        s_add_u32 s{sT1}, s{sKq}, {a}
        s_and_b32 s{sT1}, s{sT1}, 3
        s_lshl_b32 s{sT1}, s{sT1}, 2
        v_add_u32 v3, s{sT1}, v9
        v_xor_b32 v3, v3, v2
        v_lshl_add_u32 v{vLV+a}, v3, 4, v8
        """)
    p(f"""
    s_waitcnt lgkmcnt(0)
    s_lshl_b32 s{sT0}, s{sB}, 4
    s_add_u32 s{sT0}, s{sT0}, s{sKvh}
    s_lshl_b32 s{sT0}, s{sT0}, 18
    s_add_u32 s{rK}, s{sK}, s{sT0}
    s_addc_u32 s{rK+1}, s{sK+1}, 0
    s_mov_b32 s{rK+2}, 0x40000
    s_mov_b32 s{rK+3}, 0x20000
    s_add_u32 s{rV}, s{sV}, s{sT0}
    s_addc_u32 s{rV+1}, s{sV+1}, 0
    s_mov_b32 s{rV+2}, 0x40000
    s_mov_b32 s{rV+3}, 0x20000
    s_lshl_b32 s{sT0}, s{sH}, 8
    s_add_u32 s{rW}, s{sWq}, s{sT0}
    s_addc_u32 s{rW+1}, s{sWq+1}, 0
    s_sub_u32 s{rW+2}, {576*8192}, s{sT0}
    s_mov_b32 s{rW+3}, 0x20000
    s_mul_i32 s{sT0}, s{sB}, {64*1152}
    s_add_u32 s{rX}, s{sX}, s{sT0}
    s_addc_u32 s{rX+1}, s{sX+1}, 0
    s_mov_b32 s{rX+2}, {64*1152}
    s_mov_b32 s{rX+3}, 0x20000
    s_mov_b32 s{rO}, s{sWs}
    s_mov_b32 s{rO+1}, s{sWs+1}
    s_mov_b32 s{rO+2}, {4<<20}
    s_mov_b32 s{rO+3}, 0x20000
    """)

    def issue_chunk(c):
        qs = QS[c % 4]
        p(f"""
        s_lshl_b32 s{sT0}, s{sWave}, 17
        s_add_u32 s{sT0}, s{sT0}, {c*524288}
        s_add_u32 m0, s{sW4096}, {qs}
        """)
        for u in range(4):
            p(f"buffer_load_dwordx4 v{vWo+u}, s[{rW}:{rW+3}], s{sT0} offen offset:{u*1024} lds")
        p(f"""
        s_lshl_b32 s{sT1}, s{sWave}, 11
        s_add_u32 m0, s{sT1}, {qs+16384}
        s_movk_i32 s{sT0}, {c*128}
        """)
        for u in range(2):
            p(f"buffer_load_dwordx4 v{vXo+u}, s[{rX}:{rX+3}], s{sT0} offen offset:{u*1024} lds")

    def issue_kv_static(isK, tile, slot, wexpr_4096):
        p(f"""
        s_add_u32 m0, s{wexpr_4096}, {R[slot]}
        s_add_u32 s{sT0}, s{wexpr_4096}, {tile*32768}
        """)
        for u in range(4):
            if isK:
                p(f"buffer_load_dwordx4 v{vKo+u}, s[{rK}:{rK+3}], s{sT0} offen offset:{u*1024}{NT} lds")
            else:
                p(f"buffer_load_dwordx4 v{vVo}, s[{rV}:{rV+3}], s{sT0} offen offset:{u*1024}{NT} lds")

    p(f"""
    s_cmp_eq_u32 s{sRole}, 0
    s_cbranch_scc0 K1_ROLEB0
    """)
    for c in range(4):
        issue_chunk(c)
    p("s_branch K1_INIT_DONE")
    p.label("K1_ROLEB0")
    p(f"""
    s_sub_u32 s{sT2}, s{sWave}, 4
    s_lshl_b32 s{sT2}, s{sT2}, 13
    """)
    issue_kv_static(True, 0, 0, sT2)
    p(f"s_add_u32 s{sT2}, s{sT2}, 4096")
    issue_kv_static(True, 0, 0, sT2)
    p(f"s_sub_u32 s{sT2}, s{sT2}, 4096")
    issue_kv_static(False, 0, 1, sT2)
    p(f"s_add_u32 s{sT2}, s{sT2}, 4096")
    issue_kv_static(False, 0, 1, sT2)
    p.label("K1_INIT_DONE")

    for i in range(16):
        p(f"v_mov_b32 v{vS+i}, 0")
    for i in range(64):
        p(f"v_mov_b32 v{vO+i}, 0")
    p(f"""
    v_mov_b32 v{vM}, 0xf149f2ca
    v_mov_b32 v{vThr}, 0xf149f2ca
    v_mov_b32 v{vL0}, 0
    v_mov_b32 v{vL1}, 0
    """)

    waits = [18, 12, 12, 12, 12, 12, 12, 6, 0]
    for c in range(9):
        qs = QS[c % 4]
        p(f"""
        s_cmp_eq_u32 s{sRole}, 0
        s_cbranch_scc0 K1_QB{c}
        s_waitcnt vmcnt({waits[c]})
        """)
        p.label(f"K1_QB{c}")
        p("s_barrier")
        if 1 <= c <= 5:
            p(f"""
            s_cmp_eq_u32 s{sRole}, 0
            s_cbranch_scc0 K1_QI{c}
            """)
            issue_chunk(c + 3)
            p.label(f"K1_QI{c}")
        if c == 8:
            issue_kv_static(True, 1, 2, sW4096)
            issue_kv_static(False, 1, 3, sW4096)
        p(f"""
        v_add_u32 v{vA}, {qs}, v{vLW}
        v_add_u32 v{vA+1}, {qs+16384}, v{vLX}
        v_xor_b32 v{vA+2}, 32, v{vA+1}
        v_xor_b32 v{vA+3}, 64, v{vA+1}
        v_xor_b32 v{vA+4}, 96, v{vA+1}
        """)
        for ks in range(4):
            p(f"""
            ds_read_b64_tr_b16 v[{vF+8*ks}:{vF+8*ks+1}], v{vA} offset:{ks*4096}
            ds_read_b64_tr_b16 v[{vF+8*ks+2}:{vF+8*ks+3}], v{vA} offset:{ks*4096+1024}
            ds_read_b128 v[{vF+8*ks+4}:{vF+8*ks+7}], v{vA+1+ks}
            """)
        for ks in range(4):
            p(f"""
            s_waitcnt lgkmcnt({9-3*ks})
            v_mfma_f32_32x32x16_bf16 v[{vS}:{vS+15}], v[{vF+8*ks}:{vF+8*ks+3}], v[{vF+8*ks+4}:{vF+8*ks+7}], v[{vS}:{vS+15}]
            """)
    QX = R[4]
    p("s_barrier")
    for j in range(8):
        p(f"v_cvt_pk_bf16_f32 v{vP+j}, v{vS+2*j}, v{vS+2*j+1}")
    p(f"""
    s_lshl_b32 s{sT0}, s{sQh}, 13
    s_lshl_b32 s{sT1}, s{sKq}, 11
    s_add_u32 s{sT1}, s{sT1}, s{sT0}
    s_add_u32 s{sT1}, s{sT1}, {QX}
    s_add_u32 s{sT0}, s{sT0}, {QX}
    v_lshlrev_b32 v2, 4, v{vL}
    v_add_u32 v3, s{sT1}, v2
    v_add_u32 v2, s{sT0}, v2
    ds_write_b128 v3, v[{vP}:{vP+3}]
    ds_write_b128 v3, v[{vP+4}:{vP+7}] offset:1024
    s_waitcnt lgkmcnt(0)
    s_barrier
    """)
    for s in range(8):
        p(f"ds_read_b128 v[{vQ+4*s}:{vQ+4*s+3}], v2 offset:{s*1024}")
    p("s_waitcnt lgkmcnt(0)")
    if o.dbg == 1:
        p(f"""
        s_cmp_eq_u32 s{sKq}, 0
        s_cbranch_scc0 K1_DBGQ
        s_lshl_b32 s{sT0}, s{sB}, 5
        s_add_u32 s{sT0}, s{sT0}, s{sH}
        s_lshl_b32 s{sT0}, s{sT0}, 1
        s_add_u32 s{sT0}, s{sT0}, s{sQh}
        s_lshl_b32 s{sT0}, s{sT0}, 13
        v_lshlrev_b32 v2, 4, v{vL}
        """)
        for s in range(8):
            p(f"s_add_u32 s{sT1}, s{sT0}, {s*1024}")
            p(f"buffer_store_dwordx4 v[{vQ+4*s}:{vQ+4*s+3}], v2, s[{rO}:{rO+3}], s{sT1} offen")
        p.label("K1_DBGQ")
        p("s_waitcnt vmcnt(0)")
        p("s_endpgm")

    p(f"""
    s_mov_b32 s{sRK}, 0
    s_mov_b32 s{sRV}, 32768
    s_mov_b32 s{sIss}, {R[4]}
    s_add_u32 s{sKoff}, s{sW4096}, {2*32768}
    s_mov_b32 s{sCnt}, 0
    """)

    def advance_slot(s):
        p(f"""
        s_add_u32 s{s}, s{s}, 32768
        s_cmp_eq_u32 s{s}, {5*32768}
        s_cselect_b32 s{s}, 0, s{s}
        """)

    def step(tag, issue, wK, wV):
        p(f"""
        s_waitcnt vmcnt({wK})
        s_barrier
        v_add_u32 v{vA}, s{sRK}, v{vLK}
        """)
        for s in range(1, 8):
            p(f"v_xor_b32 v{vA+s}, {s<<5}, v{vA}")
        for s in range(8):
            p(f"ds_read_b128 v[{vF+4*s}:{vF+4*s+3}], v{vA+s}")
        if issue:
            p(f"s_add_u32 m0, s{sIss}, s{sW4096}")
            for u in range(4):
                p(f"buffer_load_dwordx4 v{vKo+u}, s[{rK}:{rK+3}], s{sKoff} offen offset:{u*1024}{NT} lds")
            advance_slot(sIss)
        for s in range(8):
            p(f"s_waitcnt lgkmcnt({7-s})")
            c = '0' if s == 0 else f"v[{vS}:{vS+15}]"
            p(f"v_mfma_f32_32x32x16_bf16 v[{vS}:{vS+15}], v[{vF+4*s}:{vF+4*s+3}], v[{vQ+4*s}:{vQ+4*s+3}], {c}")
        for a in range(4):
            p(f"v_add_u32 v{vA+a}, s{sRV}, v{vLV+a}")
        p(f"v_max3_f32 v2, v{vS}, v{vS+1}, v{vS+2}")
        p(f"v_max3_f32 v3, v{vS+3}, v{vS+4}, v{vS+5}")
        p(f"v_max3_f32 v2, v2, v{vS+6}, v{vS+7}")
        p(f"v_max3_f32 v3, v3, v{vS+8}, v{vS+9}")
        p(f"v_max3_f32 v2, v2, v{vS+10}, v{vS+11}")
        p(f"v_max3_f32 v3, v3, v{vS+12}, v{vS+13}")
        p(f"v_max3_f32 v2, v2, v{vS+14}, v{vS+15}")
        p(f"""
        v_max_f32 v2, v2, v3
        v_mov_b32 v3, v2
        v_permlane32_swap_b32 v2, v3
        v_max_f32 v2, v2, v3
        v_mul_f32 v2, s{sC}, v2
        v_cmp_gt_f32 vcc, v2, v{vThr}
        s_cbranch_vccnz K1_RS{tag}
        """)
        p.label(f"K1_BK{tag}")
        for i in range(16):
            p(f"v_fma_f32 v{vS+i}, v{vS+i}, s{sC}, -v{vM}")
        for i in range(16):
            p(f"v_exp_f32 v{vS+i}, v{vS+i}")
        for j in range(8):
            p(f"v_cvt_pk_bf16_f32 v{vP+j}, v{vS+2*j}, v{vS+2*j+1}")
            p(f"v_add_f32 v{vL0}, v{vL0}, v{vS+2*j}")
            p(f"v_add_f32 v{vL1}, v{vL1}, v{vS+2*j+1}")
        p(f"""
        s_waitcnt vmcnt({wV})
        s_barrier
        """)
        for a in range(4):
            for ks in range(2):
                f = vF + (a * 2 + ks) * 4
                p(f"ds_read_b64_tr_b16 v[{f}:{f+1}], v{vA+a} offset:{ks*4096}")
                p(f"ds_read_b64_tr_b16 v[{f+2}:{f+3}], v{vA+a} offset:{ks*4096+2048}")
        if issue:
            p(f"s_add_u32 m0, s{sIss}, s{sW4096}")
            for u in range(4):
                p(f"buffer_load_dwordx4 v{vVo}, s[{rV}:{rV+3}], s{sKoff} offen offset:{u*1024}{NT} lds")
            advance_slot(sIss)
            p(f"s_add_u32 s{sKoff}, s{sKoff}, 32768")
        n = 0
        for a in range(4):
            for ks in range(2):
                f = vF + (a * 2 + ks) * 4
                n += 1
                p(f"s_waitcnt lgkmcnt({16-2*n})")
                p(f"v_mfma_f32_32x32x16_bf16 v[{vO+16*a}:{vO+16*a+15}], v[{f}:{f+3}], v[{vP+4*ks}:{vP+4*ks+3}], v[{vO+16*a}:{vO+16*a+15}]")
        advance_slot(sRK); advance_slot(sRK)
        advance_slot(sRV); advance_slot(sRV)

    def rescale(tag):
        p.label(f"K1_RS{tag}")
        p(f"""
        v_max_f32 v3, v2, v{vM}
        v_sub_f32 v4, v{vM}, v3
        v_exp_f32 v4, v4
        v_mov_b32 v{vM}, v3
        v_add_f32 v{vThr}, 8.0, v3
        """.replace('8.0', '0x41000000'))
        p(f"v_mul_f32 v{vL0}, v{vL0}, v4")
        p(f"v_mul_f32 v{vL1}, v{vL1}, v4")
        for i in range(64):
            p(f"v_mul_f32 v{vO+i}, v{vO+i}, v4")
        p(f"s_branch K1_BK{tag}")

    p.label("K1_LOOP")
    step('L', True, 12, 12)
    p(f"""
    s_add_u32 s{sCnt}, s{sCnt}, 1
    s_cmp_lt_u32 s{sCnt}, 6
    s_cbranch_scc1 K1_LOOP
    """)
    step('A', False, 12, 8)
    step('B', False, 4, 0)

    STAT = R[1]
    OX = R[2]
    p(f"""
    v_add_f32 v{vL0}, v{vL0}, v{vL1}
    v_mov_b32 v{vL1}, v{vL0}
    v_permlane32_swap_b32 v{vL0}, v{vL1}
    v_add_f32 v{vThr}, v{vL0}, v{vL1}
    """)
    p(f"""
    v_and_b32 v7, 31, v{vL}
    s_lshl_b32 s{sT0}, s{sKq}, 9
    s_lshl_b32 s{sT1}, s{sQh}, 8
    s_add_u32 s{sT0}, s{sT0}, s{sT1}
    s_add_u32 s{sT0}, s{sT0}, {STAT}
    s_add_u32 s{sT1}, s{sT1}, {STAT}
    v_lshlrev_b32 v7, 3, v7
    v_add_u32 v2, s{sT0}, v7
    v_add_u32 v7, s{sT1}, v7
    ds_write_b64 v2, v[{vM}:{vM+1}]
    v_lshlrev_b32 v3, 4, v{vL}
    """)
    for a in range(1, 4):
        p(f"""
        s_add_u32 s{sT0}, s{sKq}, {a}
        s_and_b32 s{sT0}, s{sT0}, 3
        s_lshl_b32 s{sT2}, s{sQh}, 2
        s_add_u32 s{sT0}, s{sT0}, s{sT2}
        s_mul_i32 s{sT0}, s{sT0}, 12288
        s_add_u32 s{sT0}, s{sT0}, {OX + (3-a)*4096}
        v_add_u32 v4, s{sT0}, v3
        """)
        for g in range(4):
            p(f"ds_write_b128 v4, v[{vO+16*a+4*g}:{vO+16*a+4*g+3}] offset:{g*1024}")
    p(f"""
    s_lshl_b32 s{sT0}, s{sQh}, 2
    s_add_u32 s{sT0}, s{sT0}, s{sKq}
    s_mul_i32 s{sT0}, s{sT0}, 12288
    s_add_u32 s{sT0}, s{sT0}, {OX}
    v_add_u32 v4, s{sT0}, v3
    s_waitcnt lgkmcnt(0)
    s_barrier
    """)
    for k in range(4):
        p(f"ds_read_b64 v[{vS+2*k}:{vS+2*k+1}], v7 offset:{k*512}")
    for i in range(3):
        for g in range(4):
            p(f"ds_read_b128 v[{vO+16*(i+1)+4*g}:{vO+16*(i+1)+4*g+3}], v4 offset:{i*4096+g*1024}")
    p("s_waitcnt lgkmcnt(12)")
    m = [vS + 0, vS + 2, vS + 4, vS + 6]; l = [vS + 1, vS + 3, vS + 5, vS + 7]
    p(f"""
    v_max3_f32 v2, v{m[0]}, v{m[1]}, v{m[2]}
    v_max_f32 v2, v2, v{m[3]}
    """)
    for k in range(4):
        p(f"v_sub_f32 v{m[k]}, v{m[k]}, v2")
    for k in range(4):
        p(f"v_exp_f32 v{m[k]}, v{m[k]}")
    p(f"""
    v_mul_f32 v3, v{m[0]}, v{l[0]}
    v_fmac_f32 v3, v{m[1]}, v{l[1]}
    v_fmac_f32 v3, v{m[2]}, v{l[2]}
    v_fmac_f32 v3, v{m[3]}, v{l[3]}
    v_rcp_f32 v3, v3
    """)
    for k in range(4):
        p(f"v_mul_f32 v{m[k]}, v{m[k]}, v3")
    wr = vS + 8
    for kq in range(4):
        p(f"s_cmp_eq_u32 s{sKq}, {kq}")
        p(f"s_cbranch_scc0 K1_WR{kq}")
        for i in range(4):
            p(f"v_mov_b32 v{wr+i}, v{m[(kq+i)&3]}")
        p.label(f"K1_WR{kq}")
    for i in range(16):
        p(f"v_mul_f32 v{vO+i}, v{vO+i}, v{wr}")
    for s in range(3):
        p(f"s_waitcnt lgkmcnt({8-4*s})")
        for i in range(16):
            p(f"v_fmac_f32 v{vO+i}, v{vO+16*(s+1)+i}, v{wr+s+1}")
    order = [0, 2, 1, 3]
    for idx, g in enumerate(order):
        p(f"v_cvt_pk_bf16_f32 v{vP+2*idx}, v{vO+4*g}, v{vO+4*g+1}")
        p(f"v_cvt_pk_bf16_f32 v{vP+2*idx+1}, v{vO+4*g+2}, v{vO+4*g+3}")
    p(f"""
    v_and_b32 v2, 15, v{vL}
    v_lshrrev_b32 v3, 5, v{vL}
    v_lshl_add_u32 v2, v3, 4, v2
    v_lshlrev_b32 v2, 4, v2
    v_bfe_u32 v3, v{vL}, 4, 1
    v_lshl_add_u32 v2, v3, 17, v2
    s_lshl_b32 s{sT0}, s{sB}, 2
    s_lshl_b32 s{sT1}, s{sQh}, 1
    s_add_u32 s{sT0}, s{sT0}, s{sT1}
    s_lshl_b32 s{sT0}, s{sT0}, 7
    s_lshl_b32 s{sT1}, s{sH}, 2
    s_add_u32 s{sT0}, s{sT0}, s{sT1}
    s_add_u32 s{sT0}, s{sT0}, s{sKq}
    s_lshl_b32 s{sT0}, s{sT0}, 10
    buffer_store_dwordx4 v[{vP}:{vP+3}], v2, s[{rO}:{rO+3}], s{sT0} offen
    buffer_store_dwordx4 v[{vP+4}:{vP+7}], v2, s[{rO}:{rO+3}], s{sT0} offen offset:512
    """)
    p("s_branch K1_END")
    for tag in 'LAB':
        rescale(tag)
    p.label("K1_END")
    p("s_endpgm")
    return p

def gen_k2(o):
    p = Prog()
    sWo, sWs = 4, 6
    rW, rO, rP = 8, 12, 16
    sWave, sXc, sB, sNg, sT0, sT1, sT2 = 20, 21, 22, 23, 24, 25, 26
    vL = 1
    vOff = 10
    vLA = 19
    vAd = 20
    vAcc = 24
    vB = 60
    vF = 124
    NV = 160
    p(f"""
    s_cmp_ge_u32 s2, 256
    s_cbranch_scc1 K2_END
    s_load_dwordx2 s[4:5], s[0:1], 32
    s_load_dwordx2 s[6:7], s[0:1], 56
    v_and_b32 v{vL}, 63, v0
    v_lshrrev_b32 v2, 6, v0
    s_and_b32 s{sXc}, s2, 7
    s_lshr_b32 s{sT1}, s2, 3
    v_readfirstlane_b32 s{sWave}, v2
    s_lshr_b32 s{sB}, s{sT1}, 2
    s_and_b32 s{sNg}, s{sT1}, 3
    s_movk_i32 s{sT0}, 3641
    s_movk_i32 s{sT1}, 1152
    """)
    for i in range(9):
        p(f"""
        v_add_u32 v2, {64*i}, v{vL}
        v_mul_u32_u24 v3, s{sT0}, v2
        v_lshrrev_b32 v3, 16, v3
        v_mul_u32_u24 v4, 18, v3
        v_sub_u32 v4, v2, v4
        v_mul_u32_u24 v3, s{sT1}, v3
        v_lshl_add_u32 v3, v4, 4, v3
        v_subrev_u32 v{vOff+i}, {(i%4)*1024}, v3
        """)
    p(f"""
    v_lshrrev_b32 v2, 4, v{vL}
    v_and_b32 v3, 15, v{vL}
    v_lshrrev_b32 v4, 2, v3
    v_and_b32 v3, 3, v3
    v_lshl_add_u32 v2, v2, 2, v4
    v_mul_u32_u24 v2, 288, v2
    v_lshl_add_u32 v{vLA}, v3, 3, v2
    v_lshlrev_b32 v5, 4, v{vL}
    s_waitcnt lgkmcnt(0)
    s_mul_i32 s{sT0}, s{sXc}, {512*1152}
    s_mul_i32 s{sT1}, s{sNg}, 288
    s_add_u32 s{sT0}, s{sT0}, s{sT1}
    s_add_u32 s{rW}, s{sWo}, s{sT0}
    s_addc_u32 s{rW+1}, s{sWo+1}, 0
    s_sub_u32 s{rW+2}, {4096*1152}, s{sT0}
    s_mov_b32 s{rW+3}, 0x20000
    s_mov_b32 s{rO}, s{sWs}
    s_mov_b32 s{rO+1}, s{sWs+1}
    s_mov_b32 s{rO+2}, {4<<20}
    s_mov_b32 s{rO+3}, 0x20000
    s_add_u32 s{rP}, s{sWs}, {WS_PART}
    s_addc_u32 s{rP+1}, s{sWs+1}, 0
    s_mov_b32 s{rP+2}, {8*1152*1024}
    s_mov_b32 s{rP+3}, 0x20000
    """)
    p(f"""
    s_lshl_b32 s{sT2}, s{sB}, 2
    s_add_u32 s{sT2}, s{sT2}, s{sWave}
    s_lshl_b32 s{sT2}, s{sT2}, 7
    s_lshl_b32 s{sT0}, s{sXc}, 4
    s_add_u32 s{sT2}, s{sT2}, s{sT0}
    s_lshl_b32 s{sT2}, s{sT2}, 10
    """)
    for ph in range(4):
        p(f"s_add_u32 s{sT0}, s{sT2}, {ph*4096}")
        for u in range(4):
            k = ph * 4 + u
            p(f"buffer_load_dwordx4 v[{vB+4*k}:{vB+4*k+3}], v5, s[{rO}:{rO+3}], s{sT0} offen offset:{u*1024}")
        p(f"""
        s_add_u32 s{sT0}, s{sWave}, {4*ph}
        s_mul_i32 s{sT1}, s{sT0}, 9216
        s_mul_i32 s{sT0}, s{sT0}, 36864
        """)
        for i in range(9):
            if i % 4 == 0:
                p(f"s_add_u32 m0, s{sT1}, {(i//4)*4096}")
            p(f"buffer_load_dwordx4 v{vOff+i}, s[{rW}:{rW+3}], s{sT0} offen offset:{(i%4)*1024} lds")
    for i in range(36):
        p(f"v_mov_b32 v{vAcc+i}, 0")
    for ph in range(4):
        p(f"""
        s_waitcnt vmcnt({13*(3-ph)})
        s_barrier
        v_add_u32 v{vAd}, {ph*4*9216}, v{vLA}
        """)
        for kk in range(4):
            k = ph * 4 + kk
            for half in ((0, 5), (5, 9)):
                for nt in range(*half):
                    f = vF + 4 * nt
                    p(f"ds_read_b64_tr_b16 v[{f}:{f+1}], v{vAd} offset:{kk*9216+nt*32}")
                    p(f"ds_read_b64_tr_b16 v[{f+2}:{f+3}], v{vAd} offset:{kk*9216+4608+nt*32}")
                n = half[1] - half[0]
                for idx, nt in enumerate(range(*half)):
                    f = vF + 4 * nt
                    p(f"s_waitcnt lgkmcnt({2*(n-1-idx)})")
                    p(f"v_mfma_f32_16x16x32_bf16 v[{vAcc+4*nt}:{vAcc+4*nt+3}], v[{f}:{f+3}], v[{vB+4*k}:{vB+4*k+3}], v[{vAcc+4*nt}:{vAcc+4*nt+3}]")
    p(f"""
    s_lshl_b32 s{sT0}, s{sXc}, 3
    s_add_u32 s{sT0}, s{sT0}, s{sB}
    s_lshl_b32 s{sT0}, s{sT0}, 2
    s_add_u32 s{sT0}, s{sT0}, s{sNg}
    s_lshl_b32 s{sT0}, s{sT0}, 2
    s_add_u32 s{sT0}, s{sT0}, s{sWave}
    s_mul_i32 s{sT0}, s{sT0}, 9216
    """)
    for nt in range(9):
        if nt % 4 == 0 and nt > 0:
            p(f"s_add_u32 s{sT0}, s{sT0}, 4096")
        p(f"buffer_store_dwordx4 v[{vAcc+4*nt}:{vAcc+4*nt+3}], v5, s[{rP}:{rP+3}], s{sT0} offen offset:{(nt%4)*1024}")
    p.label("K2_END")
    p("s_endpgm")
    return p

def gen_k3(o):
    p = Prog()
    sOut, sWs = 4, 6
    rP, rOut = 8, 12
    sTile, sT0, sT1, sB, sNg, sQt, sNt = 16, 17, 18, 19, 20, 21, 22
    p(f"""
    s_cmp_ge_u32 s2, 288
    s_cbranch_scc1 K3_END
    s_load_dwordx2 s[4:5], s[0:1], 40
    s_load_dwordx2 s[6:7], s[0:1], 56
    v_and_b32 v1, 63, v0
    v_lshrrev_b32 v2, 6, v0
    s_lshl_b32 s{sTile}, s2, 2
    v_readfirstlane_b32 s{sT0}, v2
    v_lshlrev_b32 v3, 4, v1
    s_add_u32 s{sTile}, s{sTile}, s{sT0}
    s_waitcnt lgkmcnt(0)
    s_add_u32 s{rP}, s{sWs}, {WS_PART}
    s_addc_u32 s{rP+1}, s{sWs+1}, 0
    s_mov_b32 s{rP+2}, {8*1152*1024}
    s_mov_b32 s{rP+3}, 0x20000
    s_mov_b32 s{rOut}, s{sOut}
    s_mov_b32 s{rOut+1}, s{sOut+1}
    s_mov_b32 s{rOut+2}, {512*576*2}
    s_mov_b32 s{rOut+3}, 0x20000
    s_lshl_b32 s{sT0}, s{sTile}, 10
    """)
    for x in range(8):
        p(f"buffer_load_dwordx4 v[{8+4*x}:{8+4*x+3}], v3, s[{rP}:{rP+3}], s{sT0} offen")
        if x < 7:
            p(f"s_add_u32 s{sT0}, s{sT0}, {1152*1024}")
    p(f"""
    s_mul_i32 s{sT0}, s{sTile}, 7282
    s_lshr_b32 s{sT0}, s{sT0}, 16
    s_mul_i32 s{sT1}, s{sT0}, 9
    s_sub_u32 s{sNt}, s{sTile}, s{sT1}
    s_and_b32 s{sQt}, s{sT0}, 3
    s_lshr_b32 s{sT0}, s{sT0}, 2
    s_and_b32 s{sNg}, s{sT0}, 3
    s_lshr_b32 s{sB}, s{sT0}, 2
    s_lshl_b32 s{sT0}, s{sB}, 6
    s_lshl_b32 s{sT1}, s{sQt}, 4
    s_add_u32 s{sT0}, s{sT0}, s{sT1}
    s_mul_i32 s{sT0}, s{sT0}, 1152
    s_mul_i32 s{sT1}, s{sNg}, 288
    s_add_u32 s{sT0}, s{sT0}, s{sT1}
    s_lshl_b32 s{sT1}, s{sNt}, 5
    s_add_u32 s{sT0}, s{sT0}, s{sT1}
    s_movk_i32 s{sT1}, 1152
    v_and_b32 v4, 15, v1
    v_mul_u32_u24 v4, s{sT1}, v4
    v_lshrrev_b32 v5, 4, v1
    v_lshl_add_u32 v4, v5, 3, v4
    """)
    for x in range(1, 8):
        p(f"s_waitcnt vmcnt({7-x})")
        for e in range(4):
            p(f"v_add_f32 v{8+e}, v{8+e}, v{8+4*x+e}")
    p(f"""
    v_cvt_pk_bf16_f32 v8, v8, v9
    v_cvt_pk_bf16_f32 v9, v10, v11
    buffer_store_dwordx2 v[8:9], v4, s[{rOut}:{rOut+3}], s{sT0} offen
    """)
    p.label("K3_END")
    p("s_endpgm")
    return p

HEADER = """; GQA block (Q proj + attention + out proj), generated by gen.py
"""

def emit(o):
    ks = [('gqa_attn_kernel', gen_k1(o), 256, 512, 163840),
          ('gqa_oproj_kernel', gen_k2(o), 256, 256, 147456),
          ('gqa_reduce_kernel', gen_k3(o), 288, 256, 0)]
    if o.dbg == 1:
        ks = ks[:1]
    if o.dbg == 2:
        ks = ks[:1]
    out = [HEADER.rstrip()]
    for name, _, g, b, lds in ks:
        out.append(f"; @launch kernel={name} grid=({g},1,1) block=({b},1,1) lds={lds}")
    out.append('.amdgcn_target "amdgcn-amd-amdhsa--gfx950"')
    out.append('.text')
    tail = []
    for name, p, g, b, lds in ks:
        n = p.fix_hazards()
        errs = p.lint_waits()
        for e in errs[:20]:
            print(f"LINT[{name}]: {e}", file=sys.stderr)
        nv, ns = p.max_regs()
        print(f"{name}: {len(p.ins)} instrs, vgpr {nv}, sgpr {ns}, nops inserted {n}", file=sys.stderr)
        out.append(f".globl {name}\n.p2align 8\n.type {name},@function\n{name}:")
        out.append(p.text())
        out.append(kd(name, max(nv, 8), max(ns, 16)))
    return '\n'.join(out) + '\n'

if __name__ == '__main__':
    ap = argparse.ArgumentParser()
    ap.add_argument('-o', default='standalone__gqa_block_cached__near_ridge.s')
    ap.add_argument('--nt', type=int, default=1)
    ap.add_argument('--dbg', type=int, default=0)
    a = ap.parse_args()
    o = Opt(); o.nt = a.nt; o.dbg = a.dbg
    open(a.o, 'w').write(emit(o))
```

```python
import sys, struct, argparse
from asmlib import Prog, vr, sr

def f32bits(x):
    return struct.unpack('<I', struct.pack('<f', x))[0]

SCALE_LOG2E = (128 ** -0.5) * 1.4426950408889634
WS_O = 0
WS_PART = 4 << 20

class Opt:
    nt = 1
    dbg = 0
    stamps = 0
    extra = 0
    stampwave = 0

WS_STAMP = 128 << 20

def stamp(p, o, slot):
    if not o.stamps: return
    p(f"""
    {'s_memtime' if o.stamps == 2 else 's_memrealtime'} s[{60+2*slot}:{61+2*slot}]
    s_waitcnt lgkmcnt(0)
    """)

def stamp_flush(p, o, kidx, nslots, sws):
    if not o.stamps: return
    tag = f"STF{kidx}"
    p(f"""
    v_cmp_eq_u32 vcc, {o.stampwave*64}, v0
    s_and_saveexec_b64 s[92:93], vcc
    s_cbranch_execz {tag}
    s_lshl_b32 s94, s2, 7
    s_add_u32 s94, s94, {WS_STAMP + kidx*512*128}
    s_add_u32 s96, s{sws}, s94
    s_addc_u32 s97, s{sws+1}, 0
    v_mov_b32 v252, 0
    """)
    for i in range(nslots):
        p(f"""
        v_mov_b32 v250, s{60+2*i}
        v_mov_b32 v251, s{61+2*i}
        global_store_dwordx2 v252, v[250:251], s[96:97] offset:{8*i}
        """)
    p.label(tag)
    p("s_mov_b64 exec, s[92:93]")

def kd(name, nv, ns, extra=''):
    acc = (nv + 3) // 4 * 4
    return f""".section .rodata,"a"
.p2align 6
.amdhsa_kernel {name}
  .amdhsa_next_free_vgpr {nv}
  .amdhsa_next_free_sgpr {ns}
  .amdhsa_accum_offset {acc}
  .amdhsa_group_segment_fixed_size 0
  .amdhsa_kernarg_size 64
  .amdhsa_user_sgpr_count 2
  .amdhsa_user_sgpr_kernarg_segment_ptr 1
  .amdhsa_system_sgpr_workgroup_id_x 1
  .amdhsa_float_denorm_mode_32 3
  .amdhsa_float_denorm_mode_16_64 3
{extra}.end_amdhsa_kernel
.text
"""

def gen_k1(o):
    p = Prog()
    NT = ' nt' if o.nt else ''
    sX, sK, sV, sWq, sWs = 4, 6, 8, 10, 12
    rK, rV, rW, rX, rO = 16, 20, 24, 28, 32
    sWave, sB, sH, sKvh, sQh, sKq = 36, 37, 38, 39, 40, 41
    sRK, sRV, sKoff, sIss, sCnt = 42, 43, 44, 45, 46
    sC, sT0, sT1, sT2, sRole = 48, 49, 50, 51, 52
    sW4096 = 53
    vL = 1
    vT = list(range(2, 10))
    vKo = 10
    vVo = 14
    vWo = 15
    vXo = 19
    vLW = 21
    vLX = 22
    vLK = 23
    vLV = 24
    vA = 28
    vM, vThr, vL0, vL1 = 36, 37, 38, 39
    vQ = 40
    vS = 72
    vP = 88
    vF = 96
    vO = 128
    NV = 192

    R = [i * 32768 for i in range(5)]
    QS = [139264, 65536, 90112, 114688]

    p(f"""
    s_cmp_ge_u32 s2, 256
    s_cbranch_scc1 K1_END
    s_load_dwordx4 s[4:7], s[0:1], 0
    s_load_dwordx4 s[8:11], s[0:1], 16
    s_load_dwordx2 s[12:13], s[0:1], 56
    v_and_b32 v{vL}, 63, v0
    v_lshrrev_b32 v2, 6, v0
    s_and_b32 s{sT0}, s2, 7
    s_lshr_b32 s{sT1}, s2, 3
    v_readfirstlane_b32 s{sWave}, v2
    s_lshr_b32 s{sB}, s{sT1}, 2
    s_and_b32 s{sT1}, s{sT1}, 3
    s_lshl_b32 s{sH}, s{sT0}, 2
    s_add_u32 s{sH}, s{sH}, s{sT1}
    s_lshr_b32 s{sKvh}, s{sH}, 1
    s_and_b32 s{sQh}, s{sWave}, 1
    s_lshr_b32 s{sKq}, s{sWave}, 1
    s_lshr_b32 s{sRole}, s{sWave}, 2
    s_lshl_b32 s{sW4096}, s{sWave}, 12
    s_mov_b32 s{sC}, 0x{f32bits(SCALE_LOG2E):08x}
    """)
    p(f"""
    v_and_b32 v2, 15, v{vL}
    v_lshrrev_b32 v3, 4, v{vL}
    v_lshrrev_b32 v4, 2, v2
    v_and_b32 v5, 3, v2
    v_lshrrev_b32 v6, 5, v{vL}
    v_and_b32 v7, 31, v{vL}
    """)
    for u in range(4):
        p(f"""
        v_add_u32 v8, {4*u}, v3
        v_xor_b32 v8, v8, v2
        v_lshlrev_b32 v8, 4, v8
        v_lshl_add_u32 v{vKo+u}, v3, 8, v8
        """)
    p(f"""
    v_lshlrev_b32 v8, 2, v3
    v_xor_b32 v8, v8, v2
    v_lshlrev_b32 v8, 4, v8
    v_lshl_add_u32 v{vVo}, v3, 8, v8
    """)
    p(f"v_lshl_add_u32 v{vWo}, v3, 13, v8")
    for u in range(1, 4):
        p(f"v_add_u32 v{vWo+u}, {u*31744}, v{vWo}")
    p(f"""
    s_and_b32 s{sT0}, s{sWave}, 3
    s_lshl_b32 s{sT0}, s{sT0}, 4
    s_movk_i32 s{sT1}, 1152
    """)
    for u in range(2):
        p(f"""
        v_lshrrev_b32 v8, 3, v{vL}
        v_add_u32 v8, s{sT0}, v8
        v_add_u32 v8, {8*u}, v8
        v_mul_lo_u32 v8, v8, s{sT1}
        v_add_u32 v9, {4*u}, v3
        v_and_b32 v9, 7, v9
        v_and_b32 v{vXo+u}, 7, v{vL}
        v_xor_b32 v9, v9, v{vXo+u}
        v_lshl_add_u32 v8, v9, 4, v8
        v_subrev_u32 v{vXo+u}, {u*1024}, v8
        """)
    p(f"""
    v_lshl_add_u32 v8, v6, 3, v4
    v_lshlrev_b32 v8, 8, v8
    v_and_b32 v9, 1, v3
    v_lshlrev_b32 v9, 1, v9
    v_and_b32 v{vLW}, 1, v5
    v_add_u32 v9, v9, v{vLW}
    s_lshl_b32 s{sT0}, s{sKq}, 2
    v_add_u32 v9, s{sT0}, v9
    v_lshlrev_b32 v{vLW}, 2, v4
    v_xor_b32 v9, v9, v{vLW}
    v_lshl_add_u32 v8, v9, 4, v8
    v_lshrrev_b32 v9, 1, v5
    v_lshl_add_u32 v{vLW}, v9, 3, v8
    """)
    p(f"""
    s_lshl_b32 s{sT0}, s{sQh}, 5
    v_add_u32 v8, s{sT0}, v7
    v_lshrrev_b32 v9, 1, v8
    v_and_b32 v9, 7, v9
    v_xor_b32 v9, v9, v6
    v_lshlrev_b32 v9, 4, v9
    v_lshl_add_u32 v{vLX}, v8, 7, v9
    """)
    p(f"""
    s_lshl_b32 s{sT0}, s{sKq}, 5
    v_add_u32 v8, s{sT0}, v7
    v_and_b32 v9, 15, v8
    v_xor_b32 v9, v9, v6
    v_lshlrev_b32 v9, 4, v9
    v_lshl_add_u32 v{vLK}, v8, 8, v9
    """)
    p(f"""
    v_lshl_add_u32 v8, v6, 2, v4
    v_add_u32 v8, s{sT0}, v8
    v_lshlrev_b32 v8, 8, v8
    v_and_b32 v9, 1, v5
    v_lshl_add_u32 v8, v9, 3, v8
    v_and_b32 v9, 1, v3
    v_lshlrev_b32 v9, 1, v9
    v_lshrrev_b32 v2, 1, v5
    v_add_u32 v9, v9, v2
    v_lshlrev_b32 v2, 2, v4
    """)
    for a in range(4):
        p(f"""
        s_add_u32 s{sT1}, s{sKq}, {a}
        s_and_b32 s{sT1}, s{sT1}, 3
        s_lshl_b32 s{sT1}, s{sT1}, 2
        v_add_u32 v3, s{sT1}, v9
        v_xor_b32 v3, v3, v2
        v_lshl_add_u32 v{vLV+a}, v3, 4, v8
        """)
    p("s_waitcnt lgkmcnt(0)")
    stamp(p, o, 0)
    p(f"""
    s_lshl_b32 s{sT0}, s{sB}, 4
    s_add_u32 s{sT0}, s{sT0}, s{sKvh}
    s_lshl_b32 s{sT0}, s{sT0}, 18
    s_add_u32 s{rK}, s{sK}, s{sT0}
    s_addc_u32 s{rK+1}, s{sK+1}, 0
    s_mov_b32 s{rK+2}, 0x40000
    s_mov_b32 s{rK+3}, 0x20000
    s_add_u32 s{rV}, s{sV}, s{sT0}
    s_addc_u32 s{rV+1}, s{sV+1}, 0
    s_mov_b32 s{rV+2}, 0x40000
    s_mov_b32 s{rV+3}, 0x20000
    s_lshl_b32 s{sT0}, s{sH}, 8
    s_add_u32 s{rW}, s{sWq}, s{sT0}
    s_addc_u32 s{rW+1}, s{sWq+1}, 0
    s_sub_u32 s{rW+2}, {576*8192}, s{sT0}
    s_mov_b32 s{rW+3}, 0x20000
    s_mul_i32 s{sT0}, s{sB}, {64*1152}
    s_add_u32 s{rX}, s{sX}, s{sT0}
    s_addc_u32 s{rX+1}, s{sX+1}, 0
    s_mov_b32 s{rX+2}, {64*1152}
    s_mov_b32 s{rX+3}, 0x20000
    s_mov_b32 s{rO}, s{sWs}
    s_mov_b32 s{rO+1}, s{sWs+1}
    s_mov_b32 s{rO+2}, {4<<20}
    s_mov_b32 s{rO+3}, 0x20000
    """)

    def issue_chunk(c):
        qs = QS[c % 4]
        p(f"""
        s_lshl_b32 s{sT0}, s{sWave}, 17
        s_add_u32 s{sT0}, s{sT0}, {c*524288}
        s_add_u32 m0, s{sW4096}, {qs}
        """)
        for u in range(4):
            p(f"buffer_load_dwordx4 v{vWo+u}, s[{rW}:{rW+3}], s{sT0} offen offset:{u*1024} lds")
        p(f"""
        s_lshl_b32 s{sT1}, s{sWave}, 11
        s_add_u32 m0, s{sT1}, {qs+16384}
        s_movk_i32 s{sT0}, {c*128}
        """)
        for u in range(2):
            p(f"buffer_load_dwordx4 v{vXo+u}, s[{rX}:{rX+3}], s{sT0} offen offset:{u*1024} lds")

    def issue_kv_static(isK, tile, slot, wexpr_4096):
        p(f"""
        s_add_u32 m0, s{wexpr_4096}, {R[slot]}
        s_add_u32 s{sT0}, s{wexpr_4096}, {tile*32768}
        """)
        for u in range(4):
            if isK:
                p(f"buffer_load_dwordx4 v{vKo+u}, s[{rK}:{rK+3}], s{sT0} offen offset:{u*1024}{NT} lds")
            else:
                p(f"buffer_load_dwordx4 v{vVo}, s[{rV}:{rV+3}], s{sT0} offen offset:{u*1024}{NT} lds")

    p(f"""
    s_cmp_eq_u32 s{sRole}, 0
    s_cbranch_scc0 K1_ROLEB0
    """)
    for c in range(4):
        issue_chunk(c)
    p("s_branch K1_INIT_DONE")
    p.label("K1_ROLEB0")
    p(f"""
    s_sub_u32 s{sT2}, s{sWave}, 4
    s_lshl_b32 s{sT2}, s{sT2}, 13
    """)
    issue_kv_static(True, 0, 0, sT2)
    p(f"s_add_u32 s{sT2}, s{sT2}, 4096")
    issue_kv_static(True, 0, 0, sT2)
    p(f"s_sub_u32 s{sT2}, s{sT2}, 4096")
    issue_kv_static(False, 0, 1, sT2)
    p(f"s_add_u32 s{sT2}, s{sT2}, 4096")
    issue_kv_static(False, 0, 1, sT2)
    p.label("K1_INIT_DONE")

    for i in range(16):
        p(f"v_mov_b32 v{vS+i}, 0")
    for i in range(64):
        p(f"v_mov_b32 v{vO+i}, 0")
    p(f"""
    v_mov_b32 v{vM}, 0xf149f2ca
    v_mov_b32 v{vThr}, 0xf149f2ca
    v_mov_b32 v{vL0}, 0
    v_mov_b32 v{vL1}, 0
    """)

    waits = [18, 12, 12, 12, 12, 12, 12, 6, 0]
    for c in range(9):
        qs = QS[c % 4]
        p(f"""
        s_cmp_eq_u32 s{sRole}, 0
        s_cbranch_scc0 K1_QB{c}
        s_waitcnt vmcnt({waits[c]})
        """)
        p.label(f"K1_QB{c}")
        p("s_barrier")
        if c == 0: stamp(p, o, 1)
        if 1 <= c <= 5:
            p(f"""
            s_cmp_eq_u32 s{sRole}, 0
            s_cbranch_scc0 K1_QI{c}
            """)
            issue_chunk(c + 3)
            p.label(f"K1_QI{c}")
        if c == 8:
            issue_kv_static(True, 1, 2, sW4096)
            issue_kv_static(False, 1, 3, sW4096)
        p(f"""
        v_add_u32 v{vA}, {qs}, v{vLW}
        v_add_u32 v{vA+1}, {qs+16384}, v{vLX}
        v_xor_b32 v{vA+2}, 32, v{vA+1}
        v_xor_b32 v{vA+3}, 64, v{vA+1}
        v_xor_b32 v{vA+4}, 96, v{vA+1}
        """)
        for ks in range(4):
            p(f"""
            ds_read_b64_tr_b16 v[{vF+8*ks}:{vF+8*ks+1}], v{vA} offset:{ks*4096}
            ds_read_b64_tr_b16 v[{vF+8*ks+2}:{vF+8*ks+3}], v{vA} offset:{ks*4096+1024}
            ds_read_b128 v[{vF+8*ks+4}:{vF+8*ks+7}], v{vA+1+ks}
            """)
        for ks in range(4):
            p(f"""
            s_waitcnt lgkmcnt({9-3*ks})
            v_mfma_f32_32x32x16_bf16 v[{vS}:{vS+15}], v[{vF+8*ks}:{vF+8*ks+3}], v[{vF+8*ks+4}:{vF+8*ks+7}], v[{vS}:{vS+15}]
            """)
    stamp(p, o, 2)
    QX = R[4]
    p("s_barrier")
    for j in range(8):
        p(f"v_cvt_pk_bf16_f32 v{vP+j}, v{vS+2*j}, v{vS+2*j+1}")
    p(f"""
    s_lshl_b32 s{sT0}, s{sQh}, 13
    s_lshl_b32 s{sT1}, s{sKq}, 11
    s_add_u32 s{sT1}, s{sT1}, s{sT0}
    s_add_u32 s{sT1}, s{sT1}, {QX}
    s_add_u32 s{sT0}, s{sT0}, {QX}
    v_lshlrev_b32 v2, 4, v{vL}
    v_add_u32 v3, s{sT1}, v2
    v_add_u32 v2, s{sT0}, v2
    ds_write_b128 v3, v[{vP}:{vP+3}]
    ds_write_b128 v3, v[{vP+4}:{vP+7}] offset:1024
    s_waitcnt lgkmcnt(0)
    s_barrier
    """)
    for s in range(8):
        p(f"ds_read_b128 v[{vQ+4*s}:{vQ+4*s+3}], v2 offset:{s*1024}")
    p("s_waitcnt lgkmcnt(0)")
    if o.dbg == 1:
        p(f"""
        s_cmp_eq_u32 s{sKq}, 0
        s_cbranch_scc0 K1_DBGQ
        s_lshl_b32 s{sT0}, s{sB}, 5
        s_add_u32 s{sT0}, s{sT0}, s{sH}
        s_lshl_b32 s{sT0}, s{sT0}, 1
        s_add_u32 s{sT0}, s{sT0}, s{sQh}
        s_lshl_b32 s{sT0}, s{sT0}, 13
        v_lshlrev_b32 v2, 4, v{vL}
        """)
        for s in range(8):
            p(f"s_add_u32 s{sT1}, s{sT0}, {s*1024}")
            p(f"buffer_store_dwordx4 v[{vQ+4*s}:{vQ+4*s+3}], v2, s[{rO}:{rO+3}], s{sT1} offen")
        p.label("K1_DBGQ")
        p("s_waitcnt vmcnt(0)")
        p("s_endpgm")

    stamp(p, o, 3)
    p(f"""
    s_mov_b32 s{sRK}, 0
    s_mov_b32 s{sRV}, 32768
    s_mov_b32 s{sIss}, {R[4]}
    s_add_u32 s{sKoff}, s{sW4096}, {2*32768}
    s_mov_b32 s{sCnt}, 0
    """)

    def advance_slot(s):
        p(f"""
        s_add_u32 s{s}, s{s}, 32768
        s_cmp_eq_u32 s{s}, {5*32768}
        s_cselect_b32 s{s}, 0, s{s}
        """)

    def step(tag, issue, wK, wV):
        p(f"""
        s_waitcnt vmcnt({wK})
        s_barrier
        v_add_u32 v{vA}, s{sRK}, v{vLK}
        """)
        for s in range(1, 8):
            p(f"v_xor_b32 v{vA+s}, {s<<5}, v{vA}")
        for s in range(8):
            p(f"ds_read_b128 v[{vF+4*s}:{vF+4*s+3}], v{vA+s}")
        if issue:
            p(f"s_add_u32 m0, s{sIss}, s{sW4096}")
            for u in range(4):
                p(f"buffer_load_dwordx4 v{vKo+u}, s[{rK}:{rK+3}], s{sKoff} offen offset:{u*1024}{NT} lds")
            advance_slot(sIss)
        for s in range(8):
            p(f"s_waitcnt lgkmcnt({7-s})")
            c = '0' if s == 0 else f"v[{vS}:{vS+15}]"
            p(f"v_mfma_f32_32x32x16_bf16 v[{vS}:{vS+15}], v[{vF+4*s}:{vF+4*s+3}], v[{vQ+4*s}:{vQ+4*s+3}], {c}")
        for a in range(4):
            p(f"v_add_u32 v{vA+a}, s{sRV}, v{vLV+a}")
        p(f"v_max3_f32 v2, v{vS}, v{vS+1}, v{vS+2}")
        p(f"v_max3_f32 v3, v{vS+3}, v{vS+4}, v{vS+5}")
        p(f"v_max3_f32 v2, v2, v{vS+6}, v{vS+7}")
        p(f"v_max3_f32 v3, v3, v{vS+8}, v{vS+9}")
        p(f"v_max3_f32 v2, v2, v{vS+10}, v{vS+11}")
        p(f"v_max3_f32 v3, v3, v{vS+12}, v{vS+13}")
        p(f"v_max3_f32 v2, v2, v{vS+14}, v{vS+15}")
        p(f"""
        v_max_f32 v2, v2, v3
        v_mov_b32 v3, v2
        v_permlane32_swap_b32 v2, v3
        v_max_f32 v2, v2, v3
        v_mul_f32 v2, s{sC}, v2
        v_cmp_gt_f32 vcc, v2, v{vThr}
        s_cbranch_vccnz K1_RS{tag}
        """)
        p.label(f"K1_BK{tag}")
        for i in range(16):
            p(f"v_fma_f32 v{vS+i}, v{vS+i}, s{sC}, -v{vM}")
        for i in range(16):
            p(f"v_exp_f32 v{vS+i}, v{vS+i}")
        for j in range(8):
            p(f"v_cvt_pk_bf16_f32 v{vP+j}, v{vS+2*j}, v{vS+2*j+1}")
            p(f"v_add_f32 v{vL0}, v{vL0}, v{vS+2*j}")
            p(f"v_add_f32 v{vL1}, v{vL1}, v{vS+2*j+1}")
        p(f"""
        s_waitcnt vmcnt({wV})
        s_barrier
        """)
        for a in range(4):
            for ks in range(2):
                f = vF + (a * 2 + ks) * 4
                p(f"ds_read_b64_tr_b16 v[{f}:{f+1}], v{vA+a} offset:{ks*4096}")
                p(f"ds_read_b64_tr_b16 v[{f+2}:{f+3}], v{vA+a} offset:{ks*4096+2048}")
        if issue:
            p(f"s_add_u32 m0, s{sIss}, s{sW4096}")
            for u in range(4):
                p(f"buffer_load_dwordx4 v{vVo}, s[{rV}:{rV+3}], s{sKoff} offen offset:{u*1024}{NT} lds")
            advance_slot(sIss)
            p(f"s_add_u32 s{sKoff}, s{sKoff}, 32768")
        n = 0
        for a in range(4):
            for ks in range(2):
                f = vF + (a * 2 + ks) * 4
                n += 1
                p(f"s_waitcnt lgkmcnt({16-2*n})")
                p(f"v_mfma_f32_32x32x16_bf16 v[{vO+16*a}:{vO+16*a+15}], v[{f}:{f+3}], v[{vP+4*ks}:{vP+4*ks+3}], v[{vO+16*a}:{vO+16*a+15}]")
        advance_slot(sRK); advance_slot(sRK)
        advance_slot(sRV); advance_slot(sRV)

    def rescale(tag):
        p.label(f"K1_RS{tag}")
        p(f"""
        v_max_f32 v3, v2, v{vM}
        v_sub_f32 v4, v{vM}, v3
        v_exp_f32 v4, v4
        v_mov_b32 v{vM}, v3
        v_add_f32 v{vThr}, 8.0, v3
        """.replace('8.0', '0x41000000'))
        p(f"v_mul_f32 v{vL0}, v{vL0}, v4")
        p(f"v_mul_f32 v{vL1}, v{vL1}, v4")
        for i in range(64):
            p(f"v_mul_f32 v{vO+i}, v{vO+i}, v4")
        p(f"s_branch K1_BK{tag}")

    p.label("K1_LOOP")
    step('L', True, 12, 12)
    p(f"""
    s_add_u32 s{sCnt}, s{sCnt}, 1
    s_cmp_lt_u32 s{sCnt}, 6
    s_cbranch_scc1 K1_LOOP
    """)
    stamp(p, o, 4)
    step('A', False, 12, 8)
    step('B', False, 4, 0)
    stamp(p, o, 5)

    STAT = R[1]
    OX = R[2]
    p(f"""
    v_add_f32 v{vL0}, v{vL0}, v{vL1}
    v_mov_b32 v{vL1}, v{vL0}
    v_permlane32_swap_b32 v{vL0}, v{vL1}
    v_add_f32 v{vThr}, v{vL0}, v{vL1}
    """)
    p(f"""
    v_and_b32 v7, 31, v{vL}
    s_lshl_b32 s{sT0}, s{sKq}, 9
    s_lshl_b32 s{sT1}, s{sQh}, 8
    s_add_u32 s{sT0}, s{sT0}, s{sT1}
    s_add_u32 s{sT0}, s{sT0}, {STAT}
    s_add_u32 s{sT1}, s{sT1}, {STAT}
    v_lshlrev_b32 v7, 3, v7
    v_add_u32 v2, s{sT0}, v7
    v_add_u32 v7, s{sT1}, v7
    ds_write_b64 v2, v[{vM}:{vM+1}]
    v_lshlrev_b32 v3, 4, v{vL}
    """)
    for a in range(1, 4):
        p(f"""
        s_add_u32 s{sT0}, s{sKq}, {a}
        s_and_b32 s{sT0}, s{sT0}, 3
        s_lshl_b32 s{sT2}, s{sQh}, 2
        s_add_u32 s{sT0}, s{sT0}, s{sT2}
        s_mul_i32 s{sT0}, s{sT0}, 12288
        s_add_u32 s{sT0}, s{sT0}, {OX + (3-a)*4096}
        v_add_u32 v4, s{sT0}, v3
        """)
        for g in range(4):
            p(f"ds_write_b128 v4, v[{vO+16*a+4*g}:{vO+16*a+4*g+3}] offset:{g*1024}")
    p(f"""
    s_lshl_b32 s{sT0}, s{sQh}, 2
    s_add_u32 s{sT0}, s{sT0}, s{sKq}
    s_mul_i32 s{sT0}, s{sT0}, 12288
    s_add_u32 s{sT0}, s{sT0}, {OX}
    v_add_u32 v4, s{sT0}, v3
    s_waitcnt lgkmcnt(0)
    s_barrier
    """)
    for k in range(4):
        p(f"ds_read_b64 v[{vS+2*k}:{vS+2*k+1}], v7 offset:{k*512}")
    for i in range(3):
        for g in range(4):
            p(f"ds_read_b128 v[{vO+16*(i+1)+4*g}:{vO+16*(i+1)+4*g+3}], v4 offset:{i*4096+g*1024}")
    p("s_waitcnt lgkmcnt(12)")
    m = [vS + 0, vS + 2, vS + 4, vS + 6]; l = [vS + 1, vS + 3, vS + 5, vS + 7]
    p(f"""
    v_max3_f32 v2, v{m[0]}, v{m[1]}, v{m[2]}
    v_max_f32 v2, v2, v{m[3]}
    """)
    for k in range(4):
        p(f"v_sub_f32 v{m[k]}, v{m[k]}, v2")
    for k in range(4):
        p(f"v_exp_f32 v{m[k]}, v{m[k]}")
    p(f"""
    v_mul_f32 v3, v{m[0]}, v{l[0]}
    v_fmac_f32 v3, v{m[1]}, v{l[1]}
    v_fmac_f32 v3, v{m[2]}, v{l[2]}
    v_fmac_f32 v3, v{m[3]}, v{l[3]}
    v_rcp_f32 v3, v3
    """)
    for k in range(4):
        p(f"v_mul_f32 v{m[k]}, v{m[k]}, v3")
    wr = vS + 8
    for kq in range(4):
        p(f"s_cmp_eq_u32 s{sKq}, {kq}")
        p(f"s_cbranch_scc0 K1_WR{kq}")
        for i in range(4):
            p(f"v_mov_b32 v{wr+i}, v{m[(kq+i)&3]}")
        p.label(f"K1_WR{kq}")
    for i in range(16):
        p(f"v_mul_f32 v{vO+i}, v{vO+i}, v{wr}")
    for s in range(3):
        p(f"s_waitcnt lgkmcnt({8-4*s})")
        for i in range(16):
            p(f"v_fmac_f32 v{vO+i}, v{vO+16*(s+1)+i}, v{wr+s+1}")
    order = [0, 2, 1, 3]
    for idx, g in enumerate(order):
        p(f"v_cvt_pk_bf16_f32 v{vP+2*idx}, v{vO+4*g}, v{vO+4*g+1}")
        p(f"v_cvt_pk_bf16_f32 v{vP+2*idx+1}, v{vO+4*g+2}, v{vO+4*g+3}")
    p(f"""
    v_and_b32 v2, 15, v{vL}
    v_lshrrev_b32 v3, 5, v{vL}
    v_lshl_add_u32 v2, v3, 4, v2
    v_lshlrev_b32 v2, 4, v2
    v_bfe_u32 v3, v{vL}, 4, 1
    v_lshl_add_u32 v2, v3, 17, v2
    s_lshl_b32 s{sT0}, s{sB}, 2
    s_lshl_b32 s{sT1}, s{sQh}, 1
    s_add_u32 s{sT0}, s{sT0}, s{sT1}
    s_lshl_b32 s{sT0}, s{sT0}, 7
    s_lshl_b32 s{sT1}, s{sH}, 2
    s_add_u32 s{sT0}, s{sT0}, s{sT1}
    s_add_u32 s{sT0}, s{sT0}, s{sKq}
    s_lshl_b32 s{sT0}, s{sT0}, 10
    buffer_store_dwordx4 v[{vP}:{vP+3}], v2, s[{rO}:{rO+3}], s{sT0} offen
    buffer_store_dwordx4 v[{vP+4}:{vP+7}], v2, s[{rO}:{rO+3}], s{sT0} offen offset:512
    """)
    if o.stamps:
        p("s_waitcnt vmcnt(0)")
        stamp(p, o, 6)
        stamp_flush(p, o, 0, 7, sWs)
    p("s_branch K1_END")
    for tag in 'LAB':
        rescale(tag)
    p.label("K1_END")
    p("s_endpgm")
    return p

def gen_k2(o):
    p = Prog()
    sWo, sWs = 4, 6
    rW, rO, rP = 8, 12, 16
    sWave, sXc, sB, sNg, sT0, sT1, sT2 = 20, 21, 22, 23, 24, 25, 26
    vL = 1
    vOff = 10
    vLA = 19
    vAd = 20
    vAcc = 24
    vB = 60
    vF = 124
    NV = 160
    p(f"""
    s_cmp_ge_u32 s2, 256
    s_cbranch_scc1 K2_END
    s_load_dwordx2 s[4:5], s[0:1], 32
    s_load_dwordx2 s[6:7], s[0:1], 56
    v_and_b32 v{vL}, 63, v0
    v_lshrrev_b32 v2, 6, v0
    s_and_b32 s{sXc}, s2, 7
    s_lshr_b32 s{sT1}, s2, 3
    v_readfirstlane_b32 s{sWave}, v2
    s_lshr_b32 s{sB}, s{sT1}, 2
    s_and_b32 s{sNg}, s{sT1}, 3
    s_movk_i32 s{sT0}, 3641
    s_movk_i32 s{sT1}, 1152
    """)
    for i in range(9):
        p(f"""
        v_add_u32 v2, {64*i}, v{vL}
        v_mul_u32_u24 v3, s{sT0}, v2
        v_lshrrev_b32 v3, 16, v3
        v_mul_u32_u24 v4, 18, v3
        v_sub_u32 v4, v2, v4
        v_mul_u32_u24 v3, s{sT1}, v3
        v_lshl_add_u32 v3, v4, 4, v3
        v_subrev_u32 v{vOff+i}, {(i%4)*1024}, v3
        """)
    p(f"""
    v_lshrrev_b32 v2, 4, v{vL}
    v_and_b32 v3, 15, v{vL}
    v_lshrrev_b32 v4, 2, v3
    v_and_b32 v3, 3, v3
    v_lshl_add_u32 v2, v2, 2, v4
    v_mul_u32_u24 v2, 288, v2
    v_lshl_add_u32 v{vLA}, v3, 3, v2
    v_lshlrev_b32 v5, 4, v{vL}
    s_waitcnt lgkmcnt(0)
    """)
    stamp(p, o, 0)
    p(f"""
    s_mul_i32 s{sT0}, s{sXc}, {512*1152}
    s_mul_i32 s{sT1}, s{sNg}, 288
    s_add_u32 s{sT0}, s{sT0}, s{sT1}
    s_add_u32 s{rW}, s{sWo}, s{sT0}
    s_addc_u32 s{rW+1}, s{sWo+1}, 0
    s_sub_u32 s{rW+2}, {4096*1152}, s{sT0}
    s_mov_b32 s{rW+3}, 0x20000
    s_mov_b32 s{rO}, s{sWs}
    s_mov_b32 s{rO+1}, s{sWs+1}
    s_mov_b32 s{rO+2}, {4<<20}
    s_mov_b32 s{rO+3}, 0x20000
    s_add_u32 s{rP}, s{sWs}, {WS_PART}
    s_addc_u32 s{rP+1}, s{sWs+1}, 0
    s_mov_b32 s{rP+2}, {8*1152*1024}
    s_mov_b32 s{rP+3}, 0x20000
    """)
    p(f"""
    s_lshl_b32 s{sT2}, s{sB}, 2
    s_add_u32 s{sT2}, s{sT2}, s{sWave}
    s_lshl_b32 s{sT2}, s{sT2}, 7
    s_lshl_b32 s{sT0}, s{sXc}, 4
    s_add_u32 s{sT2}, s{sT2}, s{sT0}
    s_lshl_b32 s{sT2}, s{sT2}, 10
    """)
    for ph in range(4):
        p(f"s_add_u32 s{sT0}, s{sT2}, {ph*4096}")
        for u in range(4):
            k = ph * 4 + u
            p(f"buffer_load_dwordx4 v[{vB+4*k}:{vB+4*k+3}], v5, s[{rO}:{rO+3}], s{sT0} offen offset:{u*1024}")
        p(f"""
        s_add_u32 s{sT0}, s{sWave}, {4*ph}
        s_mul_i32 s{sT1}, s{sT0}, 9216
        s_mul_i32 s{sT0}, s{sT0}, 36864
        """)
        for i in range(9):
            if i % 4 == 0:
                p(f"s_add_u32 m0, s{sT1}, {(i//4)*4096}")
            p(f"buffer_load_dwordx4 v{vOff+i}, s[{rW}:{rW+3}], s{sT0} offen offset:{(i%4)*1024} lds")
    for i in range(36):
        p(f"v_mov_b32 v{vAcc+i}, 0")
    for ph in range(4):
        p(f"""
        s_waitcnt vmcnt({13*(3-ph)})
        s_barrier
        v_add_u32 v{vAd}, {ph*4*9216}, v{vLA}
        """)
        if ph in (0, 3): stamp(p, o, 1 if ph == 0 else 2)
        for kk in range(4):
            k = ph * 4 + kk
            for half in ((0, 5), (5, 9)):
                for nt in range(*half):
                    f = vF + 4 * nt
                    p(f"ds_read_b64_tr_b16 v[{f}:{f+1}], v{vAd} offset:{kk*9216+nt*32}")
                    p(f"ds_read_b64_tr_b16 v[{f+2}:{f+3}], v{vAd} offset:{kk*9216+4608+nt*32}")
                n = half[1] - half[0]
                for idx, nt in enumerate(range(*half)):
                    f = vF + 4 * nt
                    p(f"s_waitcnt lgkmcnt({2*(n-1-idx)})")
                    p(f"v_mfma_f32_16x16x32_bf16 v[{vAcc+4*nt}:{vAcc+4*nt+3}], v[{f}:{f+3}], v[{vB+4*k}:{vB+4*k+3}], v[{vAcc+4*nt}:{vAcc+4*nt+3}]")
    p(f"""
    s_lshl_b32 s{sT0}, s{sXc}, 3
    s_add_u32 s{sT0}, s{sT0}, s{sB}
    s_lshl_b32 s{sT0}, s{sT0}, 2
    s_add_u32 s{sT0}, s{sT0}, s{sNg}
    s_lshl_b32 s{sT0}, s{sT0}, 2
    s_add_u32 s{sT0}, s{sT0}, s{sWave}
    s_mul_i32 s{sT0}, s{sT0}, 9216
    """)
    for nt in range(9):
        if nt % 4 == 0 and nt > 0:
            p(f"s_add_u32 s{sT0}, s{sT0}, 4096")
        p(f"buffer_store_dwordx4 v[{vAcc+4*nt}:{vAcc+4*nt+3}], v5, s[{rP}:{rP+3}], s{sT0} offen offset:{(nt%4)*1024}")
    if o.stamps:
        stamp(p, o, 3)
        p("s_waitcnt vmcnt(0)")
        stamp(p, o, 4)
        stamp_flush(p, o, 1, 5, sWs)
    p.label("K2_END")
    p("s_endpgm")
    return p

def gen_k3(o):
    p = Prog()
    sOut, sWs = 4, 6
    rP, rOut = 8, 12
    sTile, sT0, sT1, sB, sNg, sQt, sNt = 16, 17, 18, 19, 20, 21, 22
    p(f"""
    s_cmp_ge_u32 s2, 288
    s_cbranch_scc1 K3_END
    s_load_dwordx2 s[4:5], s[0:1], 40
    s_load_dwordx2 s[6:7], s[0:1], 56
    v_and_b32 v1, 63, v0
    v_lshrrev_b32 v2, 6, v0
    s_lshl_b32 s{sTile}, s2, 2
    v_readfirstlane_b32 s{sT0}, v2
    v_lshlrev_b32 v3, 4, v1
    s_add_u32 s{sTile}, s{sTile}, s{sT0}
    s_waitcnt lgkmcnt(0)
    """)
    stamp(p, o, 0)
    p(f"""
    s_add_u32 s{rP}, s{sWs}, {WS_PART}
    s_addc_u32 s{rP+1}, s{sWs+1}, 0
    s_mov_b32 s{rP+2}, {8*1152*1024}
    s_mov_b32 s{rP+3}, 0x20000
    s_mov_b32 s{rOut}, s{sOut}
    s_mov_b32 s{rOut+1}, s{sOut+1}
    s_mov_b32 s{rOut+2}, {512*576*2}
    s_mov_b32 s{rOut+3}, 0x20000
    s_lshl_b32 s{sT0}, s{sTile}, 10
    """)
    for x in range(8):
        p(f"buffer_load_dwordx4 v[{8+4*x}:{8+4*x+3}], v3, s[{rP}:{rP+3}], s{sT0} offen")
        if x < 7:
            p(f"s_add_u32 s{sT0}, s{sT0}, {1152*1024}")
    p(f"""
    s_mul_i32 s{sT0}, s{sTile}, 7282
    s_lshr_b32 s{sT0}, s{sT0}, 16
    s_mul_i32 s{sT1}, s{sT0}, 9
    s_sub_u32 s{sNt}, s{sTile}, s{sT1}
    s_and_b32 s{sQt}, s{sT0}, 3
    s_lshr_b32 s{sT0}, s{sT0}, 2
    s_and_b32 s{sNg}, s{sT0}, 3
    s_lshr_b32 s{sB}, s{sT0}, 2
    s_lshl_b32 s{sT0}, s{sB}, 6
    s_lshl_b32 s{sT1}, s{sQt}, 4
    s_add_u32 s{sT0}, s{sT0}, s{sT1}
    s_mul_i32 s{sT0}, s{sT0}, 1152
    s_mul_i32 s{sT1}, s{sNg}, 288
    s_add_u32 s{sT0}, s{sT0}, s{sT1}
    s_lshl_b32 s{sT1}, s{sNt}, 5
    s_add_u32 s{sT0}, s{sT0}, s{sT1}
    s_movk_i32 s{sT1}, 1152
    v_and_b32 v4, 15, v1
    v_mul_u32_u24 v4, s{sT1}, v4
    v_lshrrev_b32 v5, 4, v1
    v_lshl_add_u32 v4, v5, 3, v4
    """)
    for x in range(1, 8):
        p(f"s_waitcnt vmcnt({7-x})")
        for e in range(4):
            p(f"v_add_f32 v{8+e}, v{8+e}, v{8+4*x+e}")
    p(f"""
    v_cvt_pk_bf16_f32 v8, v8, v9
    v_cvt_pk_bf16_f32 v9, v10, v11
    buffer_store_dwordx2 v[8:9], v4, s[{rOut}:{rOut+3}], s{sT0} offen
    """)
    if o.stamps:
        p("s_waitcnt vmcnt(0)")
        stamp(p, o, 1)
        stamp_flush(p, o, 2, 2, sWs)
    p.label("K3_END")
    p("s_endpgm")
    return p

HEADER = """; GQA block (Q proj + attention + out proj), generated by gen.py
"""

def emit(o):
    ks = [('gqa_attn_kernel', gen_k1(o), 256, 512, 163840),
          ('gqa_oproj_kernel', gen_k2(o), 256, 256, 147456),
          ('gqa_reduce_kernel', gen_k3(o), 288, 256, 0)]
    def empty(nm):
        p = Prog(); p("s_endpgm"); return (nm, p, 256, 64, 0)
    if o.extra == 1: ks = ks + [empty('gqa_e1_kernel')]
    if o.extra == 2: ks = [empty('gqa_e1_kernel')] + ks
    if o.extra == 3: ks = ks + [empty('gqa_e1_kernel'), empty('gqa_e2_kernel'), empty('gqa_e3_kernel')]
    if o.dbg == 1:
        ks = ks[:1]
    if o.dbg == 2:
        ks = ks[:1]
    out = [HEADER.rstrip()]
    for name, _, g, b, lds in ks:
        out.append(f"; @launch kernel={name} grid=({g},1,1) block=({b},1,1) lds={lds}")
    out.append('.amdgcn_target "amdgcn-amd-amdhsa--gfx950"')
    out.append('.text')
    tail = []
    for name, p, g, b, lds in ks:
        n = p.fix_hazards()
        errs = p.lint_waits()
        for e in errs[:20]:
            print(f"LINT[{name}]: {e}", file=sys.stderr)
        nv, ns = p.max_regs()
        print(f"{name}: {len(p.ins)} instrs, vgpr {nv}, sgpr {ns}, nops inserted {n}", file=sys.stderr)
        out.append(f".globl {name}\n.p2align 8\n.type {name},@function\n{name}:")
        out.append(p.text())
        if o.stamps and nv > 168 : nv = 256
        out.append(kd(name, max(nv, 8), max(ns, 16)))
    return '\n'.join(out) + '\n'

if __name__ == '__main__':
    ap = argparse.ArgumentParser()
    ap.add_argument('-o', default='standalone__gqa_block_cached__near_ridge.s')
    ap.add_argument('--nt', type=int, default=1)
    ap.add_argument('--dbg', type=int, default=0)
    ap.add_argument('--stamps', type=int, default=0)
    ap.add_argument('--extra', type=int, default=0)
    ap.add_argument('--stampwave', type=int, default=0)
    a = ap.parse_args()
    o = Opt(); o.nt = a.nt; o.dbg = a.dbg; o.stamps = a.stamps; o.extra = a.extra; o.stampwave = a.stampwave
    open(a.o, 'w').write(emit(o))
```

```python
import sys, struct, argparse
from asmlib import Prog, vr, sr

def f32bits(x):
    return struct.unpack('<I', struct.pack('<f', x))[0]

SCALE_LOG2E = (128 ** -0.5) * 1.4426950408889634
WS_O = 0
WS_PART = 4 << 20

class Opt:
    nt = 1
    dbg = 0
    stamps = 0
    extra = 0
    stampwave = 0

WS_STAMP = 128 << 20

def stamp(p, o, slot):
    if not o.stamps: return
    p(f"""
    {'s_memtime' if o.stamps == 2 else 's_memrealtime'} s[{60+2*slot}:{61+2*slot}]
    s_waitcnt lgkmcnt(0)
    """)

def stamp_flush(p, o, kidx, nslots, sws):
    if not o.stamps: return
    tag = f"STF{kidx}"
    if o.stamps == 3:
        base = [0, 7, 12][kidx]
        p(f"""
        s_cmp_eq_u32 s2, 0
        s_cbranch_scc0 {tag}
        s_load_dwordx2 s[96:97], s[0:1], 48
        s_waitcnt lgkmcnt(0)
        s_add_u32 s96, s96, {512*(2-kidx)}
        s_addc_u32 s97, s97, 0
        v_cmp_eq_u32 vcc, 0, v0
        s_and_saveexec_b64 s[92:93], vcc
        s_cbranch_execz {tag}x
        v_mov_b32 v252, 0
        """)
        for i in range(nslots):
            p(f"""
            v_mov_b32 v250, s{60+2*i}
            global_store_dword v252, v250, s[96:97] offset:{4*(base+i)}
            """)
        p.label(tag + 'x')
        p("s_mov_b64 exec, s[92:93]")
        p.label(tag)
        return
    p(f"""
    v_cmp_eq_u32 vcc, {o.stampwave*64}, v0
    s_and_saveexec_b64 s[92:93], vcc
    s_cbranch_execz {tag}
    s_lshl_b32 s94, s2, 7
    s_add_u32 s94, s94, {WS_STAMP + kidx*512*128}
    s_add_u32 s96, s{sws}, s94
    s_addc_u32 s97, s{sws+1}, 0
    v_mov_b32 v252, 0
    """)
    for i in range(nslots):
        p(f"""
        v_mov_b32 v250, s{60+2*i}
        v_mov_b32 v251, s{61+2*i}
        global_store_dwordx2 v252, v[250:251], s[96:97] offset:{8*i}
        """)
    p.label(tag)
    p("s_mov_b64 exec, s[92:93]")

def kd(name, nv, ns, extra=''):
    acc = (nv + 3) // 4 * 4
    return f""".section .rodata,"a"
.p2align 6
.amdhsa_kernel {name}
  .amdhsa_next_free_vgpr {nv}
  .amdhsa_next_free_sgpr {ns}
  .amdhsa_accum_offset {acc}
  .amdhsa_group_segment_fixed_size 0
  .amdhsa_kernarg_size 64
  .amdhsa_user_sgpr_count 2
  .amdhsa_user_sgpr_kernarg_segment_ptr 1
  .amdhsa_system_sgpr_workgroup_id_x 1
  .amdhsa_float_denorm_mode_32 3
  .amdhsa_float_denorm_mode_16_64 3
{extra}.end_amdhsa_kernel
.text
"""

def gen_k1(o):
    p = Prog()
    NT = ' nt' if o.nt else ''
    sX, sK, sV, sWq, sWs = 4, 6, 8, 10, 12
    rK, rV, rW, rX, rO = 16, 20, 24, 28, 32
    sWave, sB, sH, sKvh, sQh, sKq = 36, 37, 38, 39, 40, 41
    sRK, sRV, sKoff, sIss, sCnt = 42, 43, 44, 45, 46
    sC, sT0, sT1, sT2, sRole = 48, 49, 50, 51, 52
    sW4096 = 53
    vL = 1
    vT = list(range(2, 10))
    vKo = 10
    vVo = 14
    vWo = 15
    vXo = 19
    vLW = 21
    vLX = 22
    vLK = 23
    vLV = 24
    vA = 28
    vM, vThr, vL0, vL1 = 36, 37, 38, 39
    vQ = 40
    vS = 72
    vP = 88
    vF = 96
    vO = 128
    NV = 192

    R = [i * 32768 for i in range(5)]
    QS = [139264, 65536, 90112, 114688]

    p(f"""
    s_cmp_ge_u32 s2, 256
    s_cbranch_scc1 K1_END
    s_load_dwordx4 s[4:7], s[0:1], 0
    s_load_dwordx4 s[8:11], s[0:1], 16
    s_load_dwordx2 s[12:13], s[0:1], 56
    v_and_b32 v{vL}, 63, v0
    v_lshrrev_b32 v2, 6, v0
    s_and_b32 s{sT0}, s2, 7
    s_lshr_b32 s{sT1}, s2, 3
    v_readfirstlane_b32 s{sWave}, v2
    s_lshr_b32 s{sB}, s{sT1}, 2
    s_and_b32 s{sT1}, s{sT1}, 3
    s_lshl_b32 s{sH}, s{sT0}, 2
    s_add_u32 s{sH}, s{sH}, s{sT1}
    s_lshr_b32 s{sKvh}, s{sH}, 1
    s_and_b32 s{sQh}, s{sWave}, 1
    s_lshr_b32 s{sKq}, s{sWave}, 1
    s_lshr_b32 s{sRole}, s{sWave}, 2
    s_lshl_b32 s{sW4096}, s{sWave}, 12
    s_mov_b32 s{sC}, 0x{f32bits(SCALE_LOG2E):08x}
    """)
    p(f"""
    v_and_b32 v2, 15, v{vL}
    v_lshrrev_b32 v3, 4, v{vL}
    v_lshrrev_b32 v4, 2, v2
    v_and_b32 v5, 3, v2
    v_lshrrev_b32 v6, 5, v{vL}
    v_and_b32 v7, 31, v{vL}
    """)
    for u in range(4):
        p(f"""
        v_add_u32 v8, {4*u}, v3
        v_xor_b32 v8, v8, v2
        v_lshlrev_b32 v8, 4, v8
        v_lshl_add_u32 v{vKo+u}, v3, 8, v8
        """)
    p(f"""
    v_lshlrev_b32 v8, 2, v3
    v_xor_b32 v8, v8, v2
    v_lshlrev_b32 v8, 4, v8
    v_lshl_add_u32 v{vVo}, v3, 8, v8
    """)
    p(f"v_lshl_add_u32 v{vWo}, v3, 13, v8")
    for u in range(1, 4):
        p(f"v_add_u32 v{vWo+u}, {u*31744}, v{vWo}")
    p(f"""
    s_and_b32 s{sT0}, s{sWave}, 3
    s_lshl_b32 s{sT0}, s{sT0}, 4
    s_movk_i32 s{sT1}, 1152
    """)
    for u in range(2):
        p(f"""
        v_lshrrev_b32 v8, 3, v{vL}
        v_add_u32 v8, s{sT0}, v8
        v_add_u32 v8, {8*u}, v8
        v_mul_lo_u32 v8, v8, s{sT1}
        v_add_u32 v9, {4*u}, v3
        v_and_b32 v9, 7, v9
        v_and_b32 v{vXo+u}, 7, v{vL}
        v_xor_b32 v9, v9, v{vXo+u}
        v_lshl_add_u32 v8, v9, 4, v8
        v_subrev_u32 v{vXo+u}, {u*1024}, v8
        """)
    p(f"""
    v_lshl_add_u32 v8, v6, 3, v4
    v_lshlrev_b32 v8, 8, v8
    v_and_b32 v9, 1, v3
    v_lshlrev_b32 v9, 1, v9
    v_and_b32 v{vLW}, 1, v5
    v_add_u32 v9, v9, v{vLW}
    s_lshl_b32 s{sT0}, s{sKq}, 2
    v_add_u32 v9, s{sT0}, v9
    v_lshlrev_b32 v{vLW}, 2, v4
    v_xor_b32 v9, v9, v{vLW}
    v_lshl_add_u32 v8, v9, 4, v8
    v_lshrrev_b32 v9, 1, v5
    v_lshl_add_u32 v{vLW}, v9, 3, v8
    """)
    p(f"""
    s_lshl_b32 s{sT0}, s{sQh}, 5
    v_add_u32 v8, s{sT0}, v7
    v_lshrrev_b32 v9, 1, v8
    v_and_b32 v9, 7, v9
    v_xor_b32 v9, v9, v6
    v_lshlrev_b32 v9, 4, v9
    v_lshl_add_u32 v{vLX}, v8, 7, v9
    """)
    p(f"""
    s_lshl_b32 s{sT0}, s{sKq}, 5
    v_add_u32 v8, s{sT0}, v7
    v_and_b32 v9, 15, v8
    v_xor_b32 v9, v9, v6
    v_lshlrev_b32 v9, 4, v9
    v_lshl_add_u32 v{vLK}, v8, 8, v9
    """)
    p(f"""
    v_lshl_add_u32 v8, v6, 2, v4
    v_add_u32 v8, s{sT0}, v8
    v_lshlrev_b32 v8, 8, v8
    v_and_b32 v9, 1, v5
    v_lshl_add_u32 v8, v9, 3, v8
    v_and_b32 v9, 1, v3
    v_lshlrev_b32 v9, 1, v9
    v_lshrrev_b32 v2, 1, v5
    v_add_u32 v9, v9, v2
    v_lshlrev_b32 v2, 2, v4
    """)
    for a in range(4):
        p(f"""
        s_add_u32 s{sT1}, s{sKq}, {a}
        s_and_b32 s{sT1}, s{sT1}, 3
        s_lshl_b32 s{sT1}, s{sT1}, 2
        v_add_u32 v3, s{sT1}, v9
        v_xor_b32 v3, v3, v2
        v_lshl_add_u32 v{vLV+a}, v3, 4, v8
        """)
    p("s_waitcnt lgkmcnt(0)")
    stamp(p, o, 0)
    p(f"""
    s_lshl_b32 s{sT0}, s{sB}, 4
    s_add_u32 s{sT0}, s{sT0}, s{sKvh}
    s_lshl_b32 s{sT0}, s{sT0}, 18
    s_add_u32 s{rK}, s{sK}, s{sT0}
    s_addc_u32 s{rK+1}, s{sK+1}, 0
    s_mov_b32 s{rK+2}, 0x40000
    s_mov_b32 s{rK+3}, 0x20000
    s_add_u32 s{rV}, s{sV}, s{sT0}
    s_addc_u32 s{rV+1}, s{sV+1}, 0
    s_mov_b32 s{rV+2}, 0x40000
    s_mov_b32 s{rV+3}, 0x20000
    s_lshl_b32 s{sT0}, s{sH}, 8
    s_add_u32 s{rW}, s{sWq}, s{sT0}
    s_addc_u32 s{rW+1}, s{sWq+1}, 0
    s_sub_u32 s{rW+2}, {576*8192}, s{sT0}
    s_mov_b32 s{rW+3}, 0x20000
    s_mul_i32 s{sT0}, s{sB}, {64*1152}
    s_add_u32 s{rX}, s{sX}, s{sT0}
    s_addc_u32 s{rX+1}, s{sX+1}, 0
    s_mov_b32 s{rX+2}, {64*1152}
    s_mov_b32 s{rX+3}, 0x20000
    s_mov_b32 s{rO}, s{sWs}
    s_mov_b32 s{rO+1}, s{sWs+1}
    s_mov_b32 s{rO+2}, {4<<20}
    s_mov_b32 s{rO+3}, 0x20000
    """)

    def issue_chunk(c):
        qs = QS[c % 4]
        p(f"""
        s_lshl_b32 s{sT0}, s{sWave}, 17
        s_add_u32 s{sT0}, s{sT0}, {c*524288}
        s_add_u32 m0, s{sW4096}, {qs}
        """)
        for u in range(4):
            p(f"buffer_load_dwordx4 v{vWo+u}, s[{rW}:{rW+3}], s{sT0} offen offset:{u*1024} lds")
        p(f"""
        s_lshl_b32 s{sT1}, s{sWave}, 11
        s_add_u32 m0, s{sT1}, {qs+16384}
        s_movk_i32 s{sT0}, {c*128}
        """)
        for u in range(2):
            p(f"buffer_load_dwordx4 v{vXo+u}, s[{rX}:{rX+3}], s{sT0} offen offset:{u*1024} lds")

    def issue_kv_static(isK, tile, slot, wexpr_4096):
        p(f"""
        s_add_u32 m0, s{wexpr_4096}, {R[slot]}
        s_add_u32 s{sT0}, s{wexpr_4096}, {tile*32768}
        """)
        for u in range(4):
            if isK:
                p(f"buffer_load_dwordx4 v{vKo+u}, s[{rK}:{rK+3}], s{sT0} offen offset:{u*1024}{NT} lds")
            else:
                p(f"buffer_load_dwordx4 v{vVo}, s[{rV}:{rV+3}], s{sT0} offen offset:{u*1024}{NT} lds")

    p(f"""
    s_cmp_eq_u32 s{sRole}, 0
    s_cbranch_scc0 K1_ROLEB0
    """)
    for c in range(4):
        issue_chunk(c)
    p("s_branch K1_INIT_DONE")
    p.label("K1_ROLEB0")
    p(f"""
    s_sub_u32 s{sT2}, s{sWave}, 4
    s_lshl_b32 s{sT2}, s{sT2}, 13
    """)
    issue_kv_static(True, 0, 0, sT2)
    p(f"s_add_u32 s{sT2}, s{sT2}, 4096")
    issue_kv_static(True, 0, 0, sT2)
    p(f"s_sub_u32 s{sT2}, s{sT2}, 4096")
    issue_kv_static(False, 0, 1, sT2)
    p(f"s_add_u32 s{sT2}, s{sT2}, 4096")
    issue_kv_static(False, 0, 1, sT2)
    p.label("K1_INIT_DONE")

    for i in range(16):
        p(f"v_mov_b32 v{vS+i}, 0")
    for i in range(64):
        p(f"v_mov_b32 v{vO+i}, 0")
    p(f"""
    v_mov_b32 v{vM}, 0xf149f2ca
    v_mov_b32 v{vThr}, 0xf149f2ca
    v_mov_b32 v{vL0}, 0
    v_mov_b32 v{vL1}, 0
    """)

    waits = [18, 12, 12, 12, 12, 12, 12, 6, 0]
    for c in range(9):
        qs = QS[c % 4]
        p(f"""
        s_cmp_eq_u32 s{sRole}, 0
        s_cbranch_scc0 K1_QB{c}
        s_waitcnt vmcnt({waits[c]})
        """)
        p.label(f"K1_QB{c}")
        p("s_barrier")
        if c == 0: stamp(p, o, 1)
        if 1 <= c <= 5:
            p(f"""
            s_cmp_eq_u32 s{sRole}, 0
            s_cbranch_scc0 K1_QI{c}
            """)
            issue_chunk(c + 3)
            p.label(f"K1_QI{c}")
        if c == 8:
            issue_kv_static(True, 1, 2, sW4096)
            issue_kv_static(False, 1, 3, sW4096)
        p(f"""
        v_add_u32 v{vA}, {qs}, v{vLW}
        v_add_u32 v{vA+1}, {qs+16384}, v{vLX}
        v_xor_b32 v{vA+2}, 32, v{vA+1}
        v_xor_b32 v{vA+3}, 64, v{vA+1}
        v_xor_b32 v{vA+4}, 96, v{vA+1}
        """)
        for ks in range(4):
            p(f"""
            ds_read_b64_tr_b16 v[{vF+8*ks}:{vF+8*ks+1}], v{vA} offset:{ks*4096}
            ds_read_b64_tr_b16 v[{vF+8*ks+2}:{vF+8*ks+3}], v{vA} offset:{ks*4096+1024}
            ds_read_b128 v[{vF+8*ks+4}:{vF+8*ks+7}], v{vA+1+ks}
            """)
        for ks in range(4):
            p(f"""
            s_waitcnt lgkmcnt({9-3*ks})
            v_mfma_f32_32x32x16_bf16 v[{vS}:{vS+15}], v[{vF+8*ks}:{vF+8*ks+3}], v[{vF+8*ks+4}:{vF+8*ks+7}], v[{vS}:{vS+15}]
            """)
    stamp(p, o, 2)
    QX = R[4]
    p("s_barrier")
    for j in range(8):
        p(f"v_cvt_pk_bf16_f32 v{vP+j}, v{vS+2*j}, v{vS+2*j+1}")
    p(f"""
    s_lshl_b32 s{sT0}, s{sQh}, 13
    s_lshl_b32 s{sT1}, s{sKq}, 11
    s_add_u32 s{sT1}, s{sT1}, s{sT0}
    s_add_u32 s{sT1}, s{sT1}, {QX}
    s_add_u32 s{sT0}, s{sT0}, {QX}
    v_lshlrev_b32 v2, 4, v{vL}
    v_add_u32 v3, s{sT1}, v2
    v_add_u32 v2, s{sT0}, v2
    ds_write_b128 v3, v[{vP}:{vP+3}]
    ds_write_b128 v3, v[{vP+4}:{vP+7}] offset:1024
    s_waitcnt lgkmcnt(0)
    s_barrier
    """)
    for s in range(8):
        p(f"ds_read_b128 v[{vQ+4*s}:{vQ+4*s+3}], v2 offset:{s*1024}")
    p("s_waitcnt lgkmcnt(0)")
    if o.dbg == 1:
        p(f"""
        s_cmp_eq_u32 s{sKq}, 0
        s_cbranch_scc0 K1_DBGQ
        s_lshl_b32 s{sT0}, s{sB}, 5
        s_add_u32 s{sT0}, s{sT0}, s{sH}
        s_lshl_b32 s{sT0}, s{sT0}, 1
        s_add_u32 s{sT0}, s{sT0}, s{sQh}
        s_lshl_b32 s{sT0}, s{sT0}, 13
        v_lshlrev_b32 v2, 4, v{vL}
        """)
        for s in range(8):
            p(f"s_add_u32 s{sT1}, s{sT0}, {s*1024}")
            p(f"buffer_store_dwordx4 v[{vQ+4*s}:{vQ+4*s+3}], v2, s[{rO}:{rO+3}], s{sT1} offen")
        p.label("K1_DBGQ")
        p("s_waitcnt vmcnt(0)")
        p("s_endpgm")

    stamp(p, o, 3)
    p(f"""
    s_mov_b32 s{sRK}, 0
    s_mov_b32 s{sRV}, 32768
    s_mov_b32 s{sIss}, {R[4]}
    s_add_u32 s{sKoff}, s{sW4096}, {2*32768}
    s_mov_b32 s{sCnt}, 0
    """)

    def advance_slot(s):
        p(f"""
        s_add_u32 s{s}, s{s}, 32768
        s_cmp_eq_u32 s{s}, {5*32768}
        s_cselect_b32 s{s}, 0, s{s}
        """)

    def step(tag, issue, wK, wV):
        p(f"""
        s_waitcnt vmcnt({wK})
        s_barrier
        v_add_u32 v{vA}, s{sRK}, v{vLK}
        """)
        for s in range(1, 8):
            p(f"v_xor_b32 v{vA+s}, {s<<5}, v{vA}")
        for s in range(8):
            p(f"ds_read_b128 v[{vF+4*s}:{vF+4*s+3}], v{vA+s}")
        if issue:
            p(f"s_add_u32 m0, s{sIss}, s{sW4096}")
            for u in range(4):
                p(f"buffer_load_dwordx4 v{vKo+u}, s[{rK}:{rK+3}], s{sKoff} offen offset:{u*1024}{NT} lds")
            advance_slot(sIss)
        for s in range(8):
            p(f"s_waitcnt lgkmcnt({7-s})")
            c = '0' if s == 0 else f"v[{vS}:{vS+15}]"
            p(f"v_mfma_f32_32x32x16_bf16 v[{vS}:{vS+15}], v[{vF+4*s}:{vF+4*s+3}], v[{vQ+4*s}:{vQ+4*s+3}], {c}")
        for a in range(4):
            p(f"v_add_u32 v{vA+a}, s{sRV}, v{vLV+a}")
        p(f"v_max3_f32 v2, v{vS}, v{vS+1}, v{vS+2}")
        p(f"v_max3_f32 v3, v{vS+3}, v{vS+4}, v{vS+5}")
        p(f"v_max3_f32 v2, v2, v{vS+6}, v{vS+7}")
        p(f"v_max3_f32 v3, v3, v{vS+8}, v{vS+9}")
        p(f"v_max3_f32 v2, v2, v{vS+10}, v{vS+11}")
        p(f"v_max3_f32 v3, v3, v{vS+12}, v{vS+13}")
        p(f"v_max3_f32 v2, v2, v{vS+14}, v{vS+15}")
        p(f"""
        v_max_f32 v2, v2, v3
        v_mov_b32 v3, v2
        v_permlane32_swap_b32 v2, v3
        v_max_f32 v2, v2, v3
        v_mul_f32 v2, s{sC}, v2
        v_cmp_gt_f32 vcc, v2, v{vThr}
        s_cbranch_vccnz K1_RS{tag}
        """)
        p.label(f"K1_BK{tag}")
        for i in range(16):
            p(f"v_fma_f32 v{vS+i}, v{vS+i}, s{sC}, -v{vM}")
        for i in range(16):
            p(f"v_exp_f32 v{vS+i}, v{vS+i}")
        for j in range(8):
            p(f"v_cvt_pk_bf16_f32 v{vP+j}, v{vS+2*j}, v{vS+2*j+1}")
            p(f"v_add_f32 v{vL0}, v{vL0}, v{vS+2*j}")
            p(f"v_add_f32 v{vL1}, v{vL1}, v{vS+2*j+1}")
        p(f"""
        s_waitcnt vmcnt({wV})
        s_barrier
        """)
        for a in range(4):
            for ks in range(2):
                f = vF + (a * 2 + ks) * 4
                p(f"ds_read_b64_tr_b16 v[{f}:{f+1}], v{vA+a} offset:{ks*4096}")
                p(f"ds_read_b64_tr_b16 v[{f+2}:{f+3}], v{vA+a} offset:{ks*4096+2048}")
        if issue:
            p(f"s_add_u32 m0, s{sIss}, s{sW4096}")
            for u in range(4):
                p(f"buffer_load_dwordx4 v{vVo}, s[{rV}:{rV+3}], s{sKoff} offen offset:{u*1024}{NT} lds")
            advance_slot(sIss)
            p(f"s_add_u32 s{sKoff}, s{sKoff}, 32768")
        n = 0
        for a in range(4):
            for ks in range(2):
                f = vF + (a * 2 + ks) * 4
                n += 1
                p(f"s_waitcnt lgkmcnt({16-2*n})")
                p(f"v_mfma_f32_32x32x16_bf16 v[{vO+16*a}:{vO+16*a+15}], v[{f}:{f+3}], v[{vP+4*ks}:{vP+4*ks+3}], v[{vO+16*a}:{vO+16*a+15}]")
        advance_slot(sRK); advance_slot(sRK)
        advance_slot(sRV); advance_slot(sRV)

    def rescale(tag):
        p.label(f"K1_RS{tag}")
        p(f"""
        v_max_f32 v3, v2, v{vM}
        v_sub_f32 v4, v{vM}, v3
        v_exp_f32 v4, v4
        v_mov_b32 v{vM}, v3
        v_add_f32 v{vThr}, 8.0, v3
        """.replace('8.0', '0x41000000'))
        p(f"v_mul_f32 v{vL0}, v{vL0}, v4")
        p(f"v_mul_f32 v{vL1}, v{vL1}, v4")
        for i in range(64):
            p(f"v_mul_f32 v{vO+i}, v{vO+i}, v4")
        p(f"s_branch K1_BK{tag}")

    p.label("K1_LOOP")
    step('L', True, 12, 12)
    p(f"""
    s_add_u32 s{sCnt}, s{sCnt}, 1
    s_cmp_lt_u32 s{sCnt}, 6
    s_cbranch_scc1 K1_LOOP
    """)
    stamp(p, o, 4)
    step('A', False, 12, 8)
    step('B', False, 4, 0)
    stamp(p, o, 5)

    STAT = R[1]
    OX = R[2]
    p(f"""
    v_add_f32 v{vL0}, v{vL0}, v{vL1}
    v_mov_b32 v{vL1}, v{vL0}
    v_permlane32_swap_b32 v{vL0}, v{vL1}
    v_add_f32 v{vThr}, v{vL0}, v{vL1}
    """)
    p(f"""
    v_and_b32 v7, 31, v{vL}
    s_lshl_b32 s{sT0}, s{sKq}, 9
    s_lshl_b32 s{sT1}, s{sQh}, 8
    s_add_u32 s{sT0}, s{sT0}, s{sT1}
    s_add_u32 s{sT0}, s{sT0}, {STAT}
    s_add_u32 s{sT1}, s{sT1}, {STAT}
    v_lshlrev_b32 v7, 3, v7
    v_add_u32 v2, s{sT0}, v7
    v_add_u32 v7, s{sT1}, v7
    ds_write_b64 v2, v[{vM}:{vM+1}]
    v_lshlrev_b32 v3, 4, v{vL}
    """)
    for a in range(1, 4):
        p(f"""
        s_add_u32 s{sT0}, s{sKq}, {a}
        s_and_b32 s{sT0}, s{sT0}, 3
        s_lshl_b32 s{sT2}, s{sQh}, 2
        s_add_u32 s{sT0}, s{sT0}, s{sT2}
        s_mul_i32 s{sT0}, s{sT0}, 12288
        s_add_u32 s{sT0}, s{sT0}, {OX + (3-a)*4096}
        v_add_u32 v4, s{sT0}, v3
        """)
        for g in range(4):
            p(f"ds_write_b128 v4, v[{vO+16*a+4*g}:{vO+16*a+4*g+3}] offset:{g*1024}")
    p(f"""
    s_lshl_b32 s{sT0}, s{sQh}, 2
    s_add_u32 s{sT0}, s{sT0}, s{sKq}
    s_mul_i32 s{sT0}, s{sT0}, 12288
    s_add_u32 s{sT0}, s{sT0}, {OX}
    v_add_u32 v4, s{sT0}, v3
    s_waitcnt lgkmcnt(0)
    s_barrier
    """)
    for k in range(4):
        p(f"ds_read_b64 v[{vS+2*k}:{vS+2*k+1}], v7 offset:{k*512}")
    for i in range(3):
        for g in range(4):
            p(f"ds_read_b128 v[{vO+16*(i+1)+4*g}:{vO+16*(i+1)+4*g+3}], v4 offset:{i*4096+g*1024}")
    p("s_waitcnt lgkmcnt(12)")
    m = [vS + 0, vS + 2, vS + 4, vS + 6]; l = [vS + 1, vS + 3, vS + 5, vS + 7]
    p(f"""
    v_max3_f32 v2, v{m[0]}, v{m[1]}, v{m[2]}
    v_max_f32 v2, v2, v{m[3]}
    """)
    for k in range(4):
        p(f"v_sub_f32 v{m[k]}, v{m[k]}, v2")
    for k in range(4):
        p(f"v_exp_f32 v{m[k]}, v{m[k]}")
    p(f"""
    v_mul_f32 v3, v{m[0]}, v{l[0]}
    v_fmac_f32 v3, v{m[1]}, v{l[1]}
    v_fmac_f32 v3, v{m[2]}, v{l[2]}
    v_fmac_f32 v3, v{m[3]}, v{l[3]}
    v_rcp_f32 v3, v3
    """)
    for k in range(4):
        p(f"v_mul_f32 v{m[k]}, v{m[k]}, v3")
    wr = vS + 8
    for kq in range(4):
        p(f"s_cmp_eq_u32 s{sKq}, {kq}")
        p(f"s_cbranch_scc0 K1_WR{kq}")
        for i in range(4):
            p(f"v_mov_b32 v{wr+i}, v{m[(kq+i)&3]}")
        p.label(f"K1_WR{kq}")
    for i in range(16):
        p(f"v_mul_f32 v{vO+i}, v{vO+i}, v{wr}")
    for s in range(3):
        p(f"s_waitcnt lgkmcnt({8-4*s})")
        for i in range(16):
            p(f"v_fmac_f32 v{vO+i}, v{vO+16*(s+1)+i}, v{wr+s+1}")
    order = [0, 2, 1, 3]
    for idx, g in enumerate(order):
        p(f"v_cvt_pk_bf16_f32 v{vP+2*idx}, v{vO+4*g}, v{vO+4*g+1}")
        p(f"v_cvt_pk_bf16_f32 v{vP+2*idx+1}, v{vO+4*g+2}, v{vO+4*g+3}")
    p(f"""
    v_and_b32 v2, 15, v{vL}
    v_lshrrev_b32 v3, 5, v{vL}
    v_lshl_add_u32 v2, v3, 4, v2
    v_lshlrev_b32 v2, 4, v2
    v_bfe_u32 v3, v{vL}, 4, 1
    v_lshl_add_u32 v2, v3, 17, v2
    s_lshl_b32 s{sT0}, s{sB}, 2
    s_lshl_b32 s{sT1}, s{sQh}, 1
    s_add_u32 s{sT0}, s{sT0}, s{sT1}
    s_lshl_b32 s{sT0}, s{sT0}, 7
    s_lshl_b32 s{sT1}, s{sH}, 2
    s_add_u32 s{sT0}, s{sT0}, s{sT1}
    s_add_u32 s{sT0}, s{sT0}, s{sKq}
    s_lshl_b32 s{sT0}, s{sT0}, 10
    buffer_store_dwordx4 v[{vP}:{vP+3}], v2, s[{rO}:{rO+3}], s{sT0} offen
    buffer_store_dwordx4 v[{vP+4}:{vP+7}], v2, s[{rO}:{rO+3}], s{sT0} offen offset:512
    """)
    if o.stamps:
        p("s_waitcnt vmcnt(0)")
        stamp(p, o, 6)
        stamp_flush(p, o, 0, 7, sWs)
    p("s_branch K1_END")
    for tag in 'LAB':
        rescale(tag)
    p.label("K1_END")
    p("s_endpgm")
    return p

def gen_k2(o):
    p = Prog()
    sWo, sWs = 4, 6
    rW, rO, rP = 8, 12, 16
    sWave, sXc, sB, sNg, sT0, sT1, sT2 = 20, 21, 22, 23, 24, 25, 26
    vL = 1
    vOff = 10
    vLA = 19
    vAd = 20
    vAcc = 24
    vB = 60
    vF = 124
    NV = 160
    p(f"""
    s_cmp_ge_u32 s2, 256
    s_cbranch_scc1 K2_END
    s_load_dwordx2 s[4:5], s[0:1], 32
    s_load_dwordx2 s[6:7], s[0:1], 56
    v_and_b32 v{vL}, 63, v0
    v_lshrrev_b32 v2, 6, v0
    s_and_b32 s{sXc}, s2, 7
    s_lshr_b32 s{sT1}, s2, 3
    v_readfirstlane_b32 s{sWave}, v2
    s_lshr_b32 s{sB}, s{sT1}, 2
    s_and_b32 s{sNg}, s{sT1}, 3
    s_movk_i32 s{sT0}, 3641
    s_movk_i32 s{sT1}, 1152
    """)
    for i in range(9):
        p(f"""
        v_add_u32 v2, {64*i}, v{vL}
        v_mul_u32_u24 v3, s{sT0}, v2
        v_lshrrev_b32 v3, 16, v3
        v_mul_u32_u24 v4, 18, v3
        v_sub_u32 v4, v2, v4
        v_mul_u32_u24 v3, s{sT1}, v3
        v_lshl_add_u32 v3, v4, 4, v3
        v_subrev_u32 v{vOff+i}, {(i%4)*1024}, v3
        """)
    p(f"""
    v_lshrrev_b32 v2, 4, v{vL}
    v_and_b32 v3, 15, v{vL}
    v_lshrrev_b32 v4, 2, v3
    v_and_b32 v3, 3, v3
    v_lshl_add_u32 v2, v2, 2, v4
    v_mul_u32_u24 v2, 288, v2
    v_lshl_add_u32 v{vLA}, v3, 3, v2
    v_lshlrev_b32 v5, 4, v{vL}
    s_waitcnt lgkmcnt(0)
    """)
    stamp(p, o, 0)
    p(f"""
    s_mul_i32 s{sT0}, s{sXc}, {512*1152}
    s_mul_i32 s{sT1}, s{sNg}, 288
    s_add_u32 s{sT0}, s{sT0}, s{sT1}
    s_add_u32 s{rW}, s{sWo}, s{sT0}
    s_addc_u32 s{rW+1}, s{sWo+1}, 0
    s_sub_u32 s{rW+2}, {4096*1152}, s{sT0}
    s_mov_b32 s{rW+3}, 0x20000
    s_mov_b32 s{rO}, s{sWs}
    s_mov_b32 s{rO+1}, s{sWs+1}
    s_mov_b32 s{rO+2}, {4<<20}
    s_mov_b32 s{rO+3}, 0x20000
    s_add_u32 s{rP}, s{sWs}, {WS_PART}
    s_addc_u32 s{rP+1}, s{sWs+1}, 0
    s_mov_b32 s{rP+2}, {8*1152*1024}
    s_mov_b32 s{rP+3}, 0x20000
    """)
    p(f"""
    s_lshl_b32 s{sT2}, s{sB}, 2
    s_add_u32 s{sT2}, s{sT2}, s{sWave}
    s_lshl_b32 s{sT2}, s{sT2}, 7
    s_lshl_b32 s{sT0}, s{sXc}, 4
    s_add_u32 s{sT2}, s{sT2}, s{sT0}
    s_lshl_b32 s{sT2}, s{sT2}, 10
    """)
    for ph in range(4):
        p(f"s_add_u32 s{sT0}, s{sT2}, {ph*4096}")
        for u in range(4):
            k = ph * 4 + u
            p(f"buffer_load_dwordx4 v[{vB+4*k}:{vB+4*k+3}], v5, s[{rO}:{rO+3}], s{sT0} offen offset:{u*1024}")
        p(f"""
        s_add_u32 s{sT0}, s{sWave}, {4*ph}
        s_mul_i32 s{sT1}, s{sT0}, 9216
        s_mul_i32 s{sT0}, s{sT0}, 36864
        """)
        for i in range(9):
            if i % 4 == 0:
                p(f"s_add_u32 m0, s{sT1}, {(i//4)*4096}")
            p(f"buffer_load_dwordx4 v{vOff+i}, s[{rW}:{rW+3}], s{sT0} offen offset:{(i%4)*1024} lds")
    for i in range(36):
        p(f"v_mov_b32 v{vAcc+i}, 0")
    for ph in range(4):
        p(f"""
        s_waitcnt vmcnt({13*(3-ph)})
        s_barrier
        v_add_u32 v{vAd}, {ph*4*9216}, v{vLA}
        """)
        if ph in (0, 3): stamp(p, o, 1 if ph == 0 else 2)
        for kk in range(4):
            k = ph * 4 + kk
            for half in ((0, 5), (5, 9)):
                for nt in range(*half):
                    f = vF + 4 * nt
                    p(f"ds_read_b64_tr_b16 v[{f}:{f+1}], v{vAd} offset:{kk*9216+nt*32}")
                    p(f"ds_read_b64_tr_b16 v[{f+2}:{f+3}], v{vAd} offset:{kk*9216+4608+nt*32}")
                n = half[1] - half[0]
                for idx, nt in enumerate(range(*half)):
                    f = vF + 4 * nt
                    p(f"s_waitcnt lgkmcnt({2*(n-1-idx)})")
                    p(f"v_mfma_f32_16x16x32_bf16 v[{vAcc+4*nt}:{vAcc+4*nt+3}], v[{f}:{f+3}], v[{vB+4*k}:{vB+4*k+3}], v[{vAcc+4*nt}:{vAcc+4*nt+3}]")
    p(f"""
    s_lshl_b32 s{sT0}, s{sXc}, 3
    s_add_u32 s{sT0}, s{sT0}, s{sB}
    s_lshl_b32 s{sT0}, s{sT0}, 2
    s_add_u32 s{sT0}, s{sT0}, s{sNg}
    s_lshl_b32 s{sT0}, s{sT0}, 2
    s_add_u32 s{sT0}, s{sT0}, s{sWave}
    s_mul_i32 s{sT0}, s{sT0}, 9216
    """)
    for nt in range(9):
        if nt % 4 == 0 and nt > 0:
            p(f"s_add_u32 s{sT0}, s{sT0}, 4096")
        p(f"buffer_store_dwordx4 v[{vAcc+4*nt}:{vAcc+4*nt+3}], v5, s[{rP}:{rP+3}], s{sT0} offen offset:{(nt%4)*1024}")
    if o.stamps:
        stamp(p, o, 3)
        p("s_waitcnt vmcnt(0)")
        stamp(p, o, 4)
        stamp_flush(p, o, 1, 5, sWs)
    p.label("K2_END")
    p("s_endpgm")
    return p

def gen_k3(o):
    p = Prog()
    sOut, sWs = 4, 6
    rP, rOut = 8, 12
    sTile, sT0, sT1, sB, sNg, sQt, sNt = 16, 17, 18, 19, 20, 21, 22
    p(f"""
    s_cmp_ge_u32 s2, 288
    s_cbranch_scc1 K3_END
    s_load_dwordx2 s[4:5], s[0:1], 40
    s_load_dwordx2 s[6:7], s[0:1], 56
    v_and_b32 v1, 63, v0
    v_lshrrev_b32 v2, 6, v0
    s_lshl_b32 s{sTile}, s2, 2
    v_readfirstlane_b32 s{sT0}, v2
    v_lshlrev_b32 v3, 4, v1
    s_add_u32 s{sTile}, s{sTile}, s{sT0}
    s_waitcnt lgkmcnt(0)
    """)
    stamp(p, o, 0)
    p(f"""
    s_add_u32 s{rP}, s{sWs}, {WS_PART}
    s_addc_u32 s{rP+1}, s{sWs+1}, 0
    s_mov_b32 s{rP+2}, {8*1152*1024}
    s_mov_b32 s{rP+3}, 0x20000
    s_mov_b32 s{rOut}, s{sOut}
    s_mov_b32 s{rOut+1}, s{sOut+1}
    s_mov_b32 s{rOut+2}, {512*576*2}
    s_mov_b32 s{rOut+3}, 0x20000
    s_lshl_b32 s{sT0}, s{sTile}, 10
    """)
    for x in range(8):
        p(f"buffer_load_dwordx4 v[{8+4*x}:{8+4*x+3}], v3, s[{rP}:{rP+3}], s{sT0} offen")
        if x < 7:
            p(f"s_add_u32 s{sT0}, s{sT0}, {1152*1024}")
    p(f"""
    s_mul_i32 s{sT0}, s{sTile}, 7282
    s_lshr_b32 s{sT0}, s{sT0}, 16
    s_mul_i32 s{sT1}, s{sT0}, 9
    s_sub_u32 s{sNt}, s{sTile}, s{sT1}
    s_and_b32 s{sQt}, s{sT0}, 3
    s_lshr_b32 s{sT0}, s{sT0}, 2
    s_and_b32 s{sNg}, s{sT0}, 3
    s_lshr_b32 s{sB}, s{sT0}, 2
    s_lshl_b32 s{sT0}, s{sB}, 6
    s_lshl_b32 s{sT1}, s{sQt}, 4
    s_add_u32 s{sT0}, s{sT0}, s{sT1}
    s_mul_i32 s{sT0}, s{sT0}, 1152
    s_mul_i32 s{sT1}, s{sNg}, 288
    s_add_u32 s{sT0}, s{sT0}, s{sT1}
    s_lshl_b32 s{sT1}, s{sNt}, 5
    s_add_u32 s{sT0}, s{sT0}, s{sT1}
    s_movk_i32 s{sT1}, 1152
    v_and_b32 v4, 15, v1
    v_mul_u32_u24 v4, s{sT1}, v4
    v_lshrrev_b32 v5, 4, v1
    v_lshl_add_u32 v4, v5, 3, v4
    """)
    for x in range(1, 8):
        p(f"s_waitcnt vmcnt({7-x})")
        for e in range(4):
            p(f"v_add_f32 v{8+e}, v{8+e}, v{8+4*x+e}")
    p(f"""
    v_cvt_pk_bf16_f32 v8, v8, v9
    v_cvt_pk_bf16_f32 v9, v10, v11
    buffer_store_dwordx2 v[8:9], v4, s[{rOut}:{rOut+3}], s{sT0} offen
    """)
    if o.stamps:
        p("s_waitcnt vmcnt(0)")
        stamp(p, o, 1)
        stamp_flush(p, o, 2, 2, sWs)
    p.label("K3_END")
    p("s_endpgm")
    return p

HEADER = """; GQA block (Q proj + attention + out proj), generated by gen.py
"""

def emit(o):
    ks = [('gqa_attn_kernel', gen_k1(o), 256, 512, 163840),
          ('gqa_oproj_kernel', gen_k2(o), 256, 256, 147456),
          ('gqa_reduce_kernel', gen_k3(o), 288, 256, 0)]
    def empty(nm):
        p = Prog(); p("s_endpgm"); return (nm, p, 256, 64, 0)
    if o.extra == 1: ks = ks + [empty('gqa_e1_kernel')]
    if o.extra == 2: ks = [empty('gqa_e1_kernel')] + ks
    if o.extra == 3: ks = ks + [empty('gqa_e1_kernel'), empty('gqa_e2_kernel'), empty('gqa_e3_kernel')]
    if o.dbg == 1:
        ks = ks[:1]
    if o.dbg == 2:
        ks = ks[:1]
    out = [HEADER.rstrip()]
    for name, _, g, b, lds in ks:
        out.append(f"; @launch kernel={name} grid=({g},1,1) block=({b},1,1) lds={lds}")
    out.append('.amdgcn_target "amdgcn-amd-amdhsa--gfx950"')
    out.append('.text')
    tail = []
    for name, p, g, b, lds in ks:
        n = p.fix_hazards()
        errs = p.lint_waits()
        for e in errs[:20]:
            print(f"LINT[{name}]: {e}", file=sys.stderr)
        nv, ns = p.max_regs()
        print(f"{name}: {len(p.ins)} instrs, vgpr {nv}, sgpr {ns}, nops inserted {n}", file=sys.stderr)
        out.append(f".globl {name}\n.p2align 8\n.type {name},@function\n{name}:")
        out.append(p.text())
        if o.stamps and nv > 168 : nv = 256
        out.append(kd(name, max(nv, 8), max(ns, 16)))
    return '\n'.join(out) + '\n'

if __name__ == '__main__':
    ap = argparse.ArgumentParser()
    ap.add_argument('-o', default='standalone__gqa_block_cached__near_ridge.s')
    ap.add_argument('--nt', type=int, default=1)
    ap.add_argument('--dbg', type=int, default=0)
    ap.add_argument('--stamps', type=int, default=0)
    ap.add_argument('--extra', type=int, default=0)
    ap.add_argument('--stampwave', type=int, default=0)
    a = ap.parse_args()
    o = Opt(); o.nt = a.nt; o.dbg = a.dbg; o.stamps = a.stamps; o.extra = a.extra; o.stampwave = a.stampwave
    open(a.o, 'w').write(emit(o))
```

```python
import sys, argparse
from asmlib import Prog
import gen
from gen import f32bits, SCALE_LOG2E, stamp, stamp_flush, kd, HEADER

WS_O = 0
WS_PART = 4 << 20
WS_FLAG = 16 << 20
WS_SIZE = 17 << 20
MF = 'v_mfma_f32_32x32x16_bf16'
MF16 = 'v_mfma_f32_16x16x32_bf16'
def rg(b, n): return f"v[{b}:{b+n-1}]" if n > 1 else f"v{b}"

class Opt(gen.Opt):
    pass

OPTS = dict(nt=1, dbg=0, stamps=0, stampwave=0, wt=1, kdel=5, fuse=2, wot=1)
SPIN = 1 << 18

def gen_main(o):
    p = Prog()
    NT = ' nt' if o.nt else ''
    sX, sK, sV, sWq, sWs, sWo = 4, 6, 8, 10, 12, 14
    rK, rV, rW, rX, rO = 16, 20, 24, 28, 32
    sWave, sB, sH, sXc, sQh, sKq = 36, 37, 38, 39, 40, 41
    sRK, sRV, sOff, sIss, sCnt, sJj = 42, 43, 44, 45, 46, 47
    sC, sT0, sT1, sT2 = 48, 49, 50, 51
    sW4096, sWg = 53, 54
    sOut, sDbg, sN, sTag = 80, 82, 84, 86
    vL = 1
    vKo = 10; vVo = 14
    vWo = 15; vXo = 17; vLW = 21; vLX = 22
    vVA = 15; vTn = 19
    vLK = 23; vLV = 24
    vKA = 28
    vM, vThr, vL0, vL1 = 36, 37, 38, 39
    vQ = 40
    vS = [72, 88]
    vP = 104
    vKf = 112
    vVf = 144
    vO = 176
    vOff = 240
    vDum = 249
    vNon = 20
    R = [i * 32768 for i in range(5)]
    QS = [139264, 65536, 90112, 114688]
    lab = [0]
    def nl(s):
        lab[0] += 1
        return f"K1_{s}{lab[0]}"
    vq = []
    def vissue(tag, n): vq.extend([tag] * n)
    def vneed(*tags):
        idx = [i for i, t in enumerate(vq) if t in tags]
        if not idx: return 63
        n = len(vq) - 1 - idx[-1]
        del vq[:idx[-1] + 1]
        return min(n, 63)

    p(f"""
    s_cmp_ge_u32 s2, 256
    s_cbranch_scc1 K1_END
    s_load_dwordx4 s[4:7], s[0:1], 0
    s_load_dwordx4 s[8:11], s[0:1], 16
    s_load_dwordx2 s[12:13], s[0:1], 56
    s_load_dwordx2 s[14:15], s[0:1], 32
    s_load_dwordx4 s[80:83], s[0:1], 40
    v_and_b32 v{vL}, 63, v0
    v_lshrrev_b32 v2, 6, v0
    s_and_b32 s{sXc}, s2, 7
    s_lshr_b32 s{sT1}, s2, 3
    v_readfirstlane_b32 s{sWave}, v2
    s_lshr_b32 s{sB}, s{sT1}, 2
    s_and_b32 s{sJj}, s{sT1}, 3
    s_lshl_b32 s{sH}, s{sXc}, 2
    s_add_u32 s{sH}, s{sH}, s{sJj}
    s_lshl_b32 s{sWg}, s{sB}, 5
    s_add_u32 s{sWg}, s{sWg}, s{sH}
    s_and_b32 s{sQh}, s{sWave}, 1
    s_lshr_b32 s{sKq}, s{sWave}, 1
    s_lshl_b32 s{sW4096}, s{sWave}, 12
    s_mov_b32 s{sC}, 0x{f32bits(SCALE_LOG2E):08x}
    v_and_b32 v2, 15, v{vL}
    v_lshrrev_b32 v3, 4, v{vL}
    v_lshrrev_b32 v4, 2, v2
    v_and_b32 v5, 3, v2
    v_lshrrev_b32 v6, 5, v{vL}
    v_and_b32 v7, 31, v{vL}
    v_lshlrev_b32 v8, 2, v3
    v_xor_b32 v8, v8, v2
    v_lshlrev_b32 v8, 4, v8
    v_lshl_add_u32 v{vVo}, v3, 8, v8
    v_lshl_add_u32 v{vWo}, v3, 13, v8
    v_add_u32 v{vWo+1}, 31744, v{vWo}
    s_lshl_b32 s{sT0}, s{sWave}, 3
    s_movk_i32 s{sT1}, 1152
    v_lshrrev_b32 v8, 3, v{vL}
    v_add_u32 v8, s{sT0}, v8
    v_mul_lo_u32 v8, v8, s{sT1}
    s_lshl_b32 s{sT0}, s{sWave}, 2
    v_add_u32 v9, s{sT0}, v3
    v_and_b32 v9, 7, v9
    v_and_b32 v{vXo}, 7, v{vL}
    v_xor_b32 v9, v9, v{vXo}
    v_lshl_add_u32 v{vXo}, v9, 4, v8
    """)
    p("s_waitcnt lgkmcnt(0)")
    stamp(p, o, 0)
    p(f"""
    s_lshl_b32 s{sT0}, s{sH}, 8
    s_add_u32 s{rW}, s{sWq}, s{sT0}
    s_addc_u32 s{rW+1}, s{sWq+1}, 0
    s_sub_u32 s{rW+2}, {576*8192}, s{sT0}
    s_mov_b32 s{rW+3}, 0x20000
    s_mul_i32 s{sT0}, s{sB}, {64*1152}
    s_add_u32 s{rX}, s{sX}, s{sT0}
    s_addc_u32 s{rX+1}, s{sX+1}, 0
    s_mov_b32 s{rX+2}, {64*1152}
    s_mov_b32 s{rX+3}, 0x20000
    """)

    def issue_chunk(c):
        qs = QS[c % 4]
        p(f"""
        s_lshl_b32 s{sT0}, s{sWave}, 16
        s_add_u32 s{sT0}, s{sT0}, {c*524288}
        s_lshr_b32 s{sT1}, s{sW4096}, 1
        s_add_u32 m0, s{sT1}, {qs}
        """)
        for u in range(2):
            p(f"buffer_load_dwordx4 v{vWo+u}, s[{rW}:{rW+3}], s{sT0} offen offset:{u*1024} lds")
        p(f"""
        s_lshr_b32 s{sT1}, s{sW4096}, 2
        s_add_u32 m0, s{sT1}, {qs+16384}
        s_movk_i32 s{sT0}, {c*128}
        buffer_load_dwordx4 v{vXo}, s[{rX}:{rX+3}], s{sT0} offen lds
        """)
        vissue(('C', c), 3)

    if o.wt:
        p(f"""
        s_cmp_eq_u32 s{sWave}, 4
        s_cbranch_scc0 K1_WT1
        v_lshrrev_b32 v8, 1, v{vL}
        v_and_b32 v9, 1, v{vL}
        v_lshlrev_b32 v8, 13, v8
        v_lshl_add_u32 v8, v9, 7, v8
        s_mul_i32 s{sT0}, s{sB}, {72*8192}
        buffer_load_dword v{vDum}, v8, s[{rW}:{rW+3}], s{sT0} offen
        s_add_u32 s{sT0}, s{sT0}, {32*8192}
        buffer_load_dword v{vDum}, v8, s[{rW}:{rW+3}], s{sT0} offen
        s_add_u32 s{sT0}, s{sT0}, {32*8192}
        v_cmp_gt_u32 vcc, 16, v{vL}
        s_and_saveexec_b64 s[58:59], vcc
        buffer_load_dword v{vDum}, v8, s[{rW}:{rW+3}], s{sT0} offen
        s_mov_b64 exec, s[58:59]
        """)
        p.label("K1_WT1")
        p(f"""
        s_cmp_eq_u32 s{sWave}, 5
        s_cbranch_scc0 K1_WT2
        v_lshlrev_b32 v9, 7, v{vL}
        s_mul_i32 s{sT0}, s{sJj}, 18432
        buffer_load_dword v{vDum}, v9, s[{rX}:{rX+3}], s{sT0} offen
        s_add_u32 s{sT0}, s{sT0}, 8192
        buffer_load_dword v{vDum}, v9, s[{rX}:{rX+3}], s{sT0} offen
        s_add_u32 s{sT0}, s{sT0}, 8192
        v_cmp_gt_u32 vcc, 16, v{vL}
        s_and_saveexec_b64 s[58:59], vcc
        buffer_load_dword v{vDum}, v9, s[{rX}:{rX+3}], s{sT0} offen
        s_mov_b64 exec, s[58:59]
        """)
        p.label("K1_WT2")
    for c in range(4):
        issue_chunk(c)
    p(f"""
    s_lshl_b32 s{sT0}, s{sB}, 4
    s_lshr_b32 s{sT1}, s{sH}, 1
    s_add_u32 s{sT0}, s{sT0}, s{sT1}
    s_lshl_b32 s{sT0}, s{sT0}, 18
    s_add_u32 s{rK}, s{sK}, s{sT0}
    s_addc_u32 s{rK+1}, s{sK+1}, 0
    s_mov_b32 s{rK+2}, 0x40000
    s_mov_b32 s{rK+3}, 0x20000
    s_add_u32 s{rV}, s{sV}, s{sT0}
    s_addc_u32 s{rV+1}, s{sV+1}, 0
    s_mov_b32 s{rV+2}, 0x40000
    s_mov_b32 s{rV+3}, 0x20000
    s_mov_b32 s{rO}, s{sWs}
    s_mov_b32 s{rO+1}, s{sWs+1}
    s_mov_b32 s{rO+2}, {WS_SIZE}
    s_mov_b32 s{rO+3}, 0x20000
    """)
    for u in range(4):
        p(f"""
        v_add_u32 v8, {4*u}, v3
        v_xor_b32 v8, v8, v2
        v_lshlrev_b32 v8, 4, v8
        v_lshl_add_u32 v{vKo+u}, v3, 8, v8
        """)

    def issue_kv(isK, tile, slot):
        p(f"""
        s_add_u32 s{sT0}, s{sW4096}, {tile*32768}
        s_add_u32 m0, s{sW4096}, {R[slot]}
        """)
        for u in range(4):
            if isK: p(f"buffer_load_dwordx4 v{vKo+u}, s[{rK}:{rK+3}], s{sT0} offen offset:{u*1024}{NT} lds")
            else:   p(f"buffer_load_dwordx4 v{vVo}, s[{rV}:{rV+3}], s{sT0} offen offset:{u*1024}{NT} lds")
        vissue(('K' if isK else 'V', tile), 4)
    if o.kdel < 0:
        issue_kv(True, 0, 0); issue_kv(True, 1, 1)

    p(f"""
    v_lshl_add_u32 v8, v6, 3, v4
    v_lshlrev_b32 v8, 8, v8
    v_and_b32 v9, 1, v3
    v_lshlrev_b32 v9, 1, v9
    v_and_b32 v{vLW}, 1, v5
    v_add_u32 v9, v9, v{vLW}
    s_lshl_b32 s{sT0}, s{sKq}, 2
    v_add_u32 v9, s{sT0}, v9
    v_lshlrev_b32 v{vLW}, 2, v4
    v_xor_b32 v9, v9, v{vLW}
    v_lshl_add_u32 v8, v9, 4, v8
    v_lshrrev_b32 v9, 1, v5
    v_lshl_add_u32 v{vLW}, v9, 3, v8
    s_lshl_b32 s{sT0}, s{sQh}, 5
    v_add_u32 v8, s{sT0}, v7
    v_lshrrev_b32 v9, 1, v8
    v_and_b32 v9, 7, v9
    v_xor_b32 v9, v9, v6
    v_lshlrev_b32 v9, 4, v9
    v_lshl_add_u32 v{vLX}, v8, 7, v9
    s_lshl_b32 s{sT0}, s{sKq}, 5
    v_add_u32 v8, s{sT0}, v7
    v_and_b32 v9, 15, v8
    v_xor_b32 v9, v9, v6
    v_lshlrev_b32 v9, 4, v9
    v_lshl_add_u32 v{vLK}, v8, 8, v9
    v_lshl_add_u32 v8, v6, 2, v4
    v_add_u32 v8, s{sT0}, v8
    v_lshlrev_b32 v8, 8, v8
    v_and_b32 v9, 1, v5
    v_lshl_add_u32 v8, v9, 3, v8
    v_and_b32 v9, 1, v3
    v_lshlrev_b32 v9, 1, v9
    v_lshrrev_b32 v2, 1, v5
    v_add_u32 v9, v9, v2
    v_lshlrev_b32 v2, 2, v4
    """)
    for a in range(4):
        p(f"""
        s_add_u32 s{sT1}, s{sKq}, {a}
        s_and_b32 s{sT1}, s{sT1}, 3
        s_lshl_b32 s{sT1}, s{sT1}, 2
        v_add_u32 v3, s{sT1}, v9
        v_xor_b32 v3, v3, v2
        v_lshl_add_u32 v{vLV+a}, v3, 4, v8
        """)
    for i in range(16):
        p(f"v_mov_b32 v{vS[0]+i}, 0")
    for i in range(64):
        p(f"v_mov_b32 v{vO+i}, 0")
    p(f"""
    v_mov_b32 v{vM}, 0xf149f2ca
    v_mov_b32 v{vThr}, 0xf149f2ca
    v_mov_b32 v{vL0}, 0
    v_mov_b32 v{vL1}, 0
    """)
    if o.fuse:
        p(f"""
        s_movk_i32 s{sT0}, 3641
        s_movk_i32 s{sT1}, 1152
        """)
        for i in range(9):
            p(f"""
            v_add_u32 v2, {64*i}, v{vL}
            v_mul_u32_u24 v3, s{sT0}, v2
            v_lshrrev_b32 v3, 16, v3
            v_mul_u32_u24 v4, 18, v3
            v_sub_u32 v4, v2, v4
            v_mul_u32_u24 v3, s{sT1}, v3
            v_lshl_add_u32 v3, v4, 4, v3
            v_subrev_u32 v{vOff+i}, {(i%4)*1024}, v3
            """)

    FB = [vKf, vVf]
    A0 = vKA
    def q_phase(c, reads, extra):
        f = FB[(c - 1) % 2]
        rd = list(reads); ex = list(extra)
        for ks in range(4):
            if c >= 1:
                p(f"{MF} {rg(vS[0],16)}, {rg(f+8*ks,4)}, {rg(f+8*ks+4,4)}, {rg(vS[0],16)}")
            for _ in range(3):
                if rd: p(rd.pop(0))
            if ex and ks >= 1: ex.pop(0)()
        for e in ex: e()
    for c in range(9):
        qs = QS[c % 4]
        f = FB[c % 2]
        n = vneed(('C', c))
        p(f"""
        v_add_u32 v{A0}, {qs}, v{vLW}
        v_add_u32 v{A0+1}, {qs+16384}, v{vLX}
        v_xor_b32 v{A0+2}, 32, v{A0+1}
        v_xor_b32 v{A0+3}, 64, v{A0+1}
        v_xor_b32 v{A0+4}, 96, v{A0+1}
        s_waitcnt vmcnt({n}) lgkmcnt(0)
        s_barrier
        """)
        if c == 0: stamp(p, o, 1)
        reads = []
        for ks in range(4):
            reads.append(f"ds_read_b64_tr_b16 {rg(f+8*ks,2)}, v{A0} offset:{ks*4096}")
            reads.append(f"ds_read_b64_tr_b16 {rg(f+8*ks+2,2)}, v{A0} offset:{ks*4096+1024}")
            reads.append(f"ds_read_b128 {rg(f+8*ks+4,4)}, v{A0+1+ks}")
        extra = []
        if 1 <= c <= 5: extra.append(lambda c=c: issue_chunk(c + 3))
        if c == o.kdel:
            extra.append(lambda: issue_kv(True, 0, 0))
            extra.append(lambda: issue_kv(True, 1, 1))
        if c == 8:
            extra.append(lambda: issue_kv(False, 0, 2))
            extra.append(lambda: issue_kv(True, 2, 3))
        q_phase(c, reads, extra)
    p("s_waitcnt lgkmcnt(0)")
    p("s_barrier")
    q_phase(9, [], [])
    stamp(p, o, 2)
    QX = R[4]
    p(f"""
    s_lshl_b32 s{sT0}, s{sQh}, 13
    s_lshl_b32 s{sT1}, s{sKq}, 11
    s_add_u32 s{sT1}, s{sT1}, s{sT0}
    s_add_u32 s{sT1}, s{sT1}, {QX}
    s_add_u32 s{sT0}, s{sT0}, {QX}
    v_lshlrev_b32 v2, 4, v{vL}
    v_add_u32 v3, s{sT1}, v2
    v_add_u32 v2, s{sT0}, v2
    """)
    p(f"v_mov_b32 v{vKA}, v{vLK}")
    for s in range(1, 8):
        p(f"v_xor_b32 v{vKA+s}, {s<<5}, v{vLK}")
    for j in range(8):
        p(f"v_cvt_pk_bf16_f32 v{vP+j}, v{vS[0]+2*j}, v{vS[0]+2*j+1}")
    p(f"""
    ds_write_b128 v3, {rg(vP,4)}
    ds_write_b128 v3, {rg(vP+4,4)} offset:1024
    s_waitcnt lgkmcnt(0)
    s_barrier
    """)
    for s in range(8):
        p(f"ds_read_b128 {rg(vQ+4*s,4)}, v2 offset:{s*1024}")

    def k_addrs(sreg):
        p(f"v_add_u32 v{vKA}, s{sreg}, v{vLK}")
        for s in range(1, 8):
            p(f"v_xor_b32 v{vKA+s}, {s<<5}, v{vKA}")
    def v_addrs(sreg):
        for a in range(4):
            p(f"v_add_u32 v{vVA+a}, s{sreg}, v{vLV+a}")
    def advance_slot(s):
        p(f"""
        s_add_u32 s{s}, s{s}, 32768
        s_cmp_eq_u32 s{s}, {5*32768}
        s_cselect_b32 s{s}, 0, s{s}
        """)
    def tmax(S):
        p(f"""
        v_max3_f32 v2, v{S}, v{S+1}, v{S+2}
        v_max3_f32 v3, v{S+3}, v{S+4}, v{S+5}
        v_max3_f32 v2, v2, v{S+6}, v{S+7}
        v_max3_f32 v3, v3, v{S+8}, v{S+9}
        v_max3_f32 v2, v2, v{S+10}, v{S+11}
        v_max3_f32 v3, v3, v{S+12}, v{S+13}
        v_max3_f32 v2, v2, v{S+14}, v{S+15}
        v_max_f32 v2, v2, v3
        v_mov_b32 v3, v2
        s_nop 1
        v_permlane32_swap_b32 v2, v3
        v_max_f32 v2, v2, v3
        v_mul_f32 v{vTn}, s{sC}, v2
        """)

    n = vneed(('K', 0))
    p(f"s_waitcnt vmcnt({n}) lgkmcnt(0)")
    p("s_barrier")
    stamp(p, o, 3)
    for s in range(8):
        p(f"ds_read_b128 {rg(vKf+4*s,4)}, v{vKA+s}")
    issue_kv(False, 1, 4)
    p(f"s_mov_b32 s{sRK}, {R[1]}")
    if o.fuse:
        p(f"""
        s_cmp_eq_u32 s{sWave}, 7
        s_cbranch_scc0 K1_NON
        s_memrealtime s[{sN}:{sN+1}]
        s_waitcnt lgkmcnt(0)
        s_or_b32 s{sN}, s{sN}, 1
        v_mov_b32 v4, s{sN}
        v_mov_b32 v5, s{sN+1}
        v_mov_b32 v6, 0
        v_mov_b32 v7, 0
        v_mov_b32 v8, 0
        v_cmp_eq_u32 vcc, 0, v{vL}
        s_and_saveexec_b64 s[58:59], vcc
        global_atomic_cmpswap_x2 v[{vNon}:{vNon+1}], v8, v[4:7], s[{sDbg}:{sDbg+1}] sc0
        s_mov_b64 exec, s[58:59]
        """)
        p.label("K1_NON")
    n = vneed(('K', 1))
    p(f"s_waitcnt vmcnt({n}) lgkmcnt(0)")
    p("s_barrier")
    k_addrs(sRK)
    for s in range(8):
        c = '0' if s == 0 else rg(vS[0], 16)
        p(f"{MF} {rg(vS[0],16)}, {rg(vKf+4*s,4)}, {rg(vQ+4*s,4)}, {c}")
    for s in range(8):
        p(f"ds_read_b128 {rg(vKf+4*s,4)}, v{vKA+s}")
    issue_kv(True, 3, 0)
    p(f"""
    s_mov_b32 s{sRV}, {R[2]}
    s_mov_b32 s{sRK}, {R[3]}
    s_mov_b32 s{sIss}, {R[1]}
    s_add_u32 s{sOff}, s{sW4096}, {2*32768}
    s_mov_b32 s{sCnt}, 0
    """)
    v_addrs(sRV)
    k_addrs(sRK)
    tmax(vS[0])

    W = {}
    save = list(vq)
    for i in range(8):
        W[('a', i)] = vneed(('V', i))
        if i <= 5: vissue(('V', i + 2), 4)
        if i <= 5:
            W[('b', i)] = vneed(('K', i + 2))
            vissue(('K', i + 4), 4)
    print('loop waits', W, file=sys.stderr)

    def alpha(tag, cur, do_qk, issue, wv):
        S, Sn = vS[cur], vS[1 - cur]
        p(f"""
        s_waitcnt vmcnt({wv}) lgkmcnt(0)
        s_barrier
        v_cmp_gt_f32 vcc, v{vTn}, v{vThr}
        s_cbranch_vccnz K1_RS{tag}
        """)
        p.label(f"K1_BK{tag}")
        reads = [(a, ks, h) for a in range(4) for ks in range(2) for h in range(2)]
        for j in range(8):
            if do_qk:
                c = '0' if j == 0 else rg(Sn, 16)
                p(f"{MF} {rg(Sn,16)}, {rg(vKf+4*j,4)}, {rg(vQ+4*j,4)}, {c}")
            for (a, ks, h) in reads[2*j:2*j+2]:
                f = vVf + (a * 2 + ks) * 4 + 2 * h
                p(f"ds_read_b64_tr_b16 {rg(f,2)}, v{vVA+a} offset:{ks*4096+h*2048}")
            p(f"v_fma_f32 v{S+2*j}, v{S+2*j}, s{sC}, -v{vM}")
            p(f"v_fma_f32 v{S+2*j+1}, v{S+2*j+1}, s{sC}, -v{vM}")
            p(f"v_exp_f32 v{S+2*j}, v{S+2*j}")
            p(f"v_exp_f32 v{S+2*j+1}, v{S+2*j+1}")
            if j >= 1:
                k = j - 1
                p(f"v_cvt_pk_bf16_f32 v{vP+k}, v{S+2*k}, v{S+2*k+1}")
                p(f"v_add_f32 v{vL0}, v{vL0}, v{S+2*k}")
                p(f"v_add_f32 v{vL1}, v{vL1}, v{S+2*k+1}")
            if issue and j == 0:
                p(f"s_add_u32 m0, s{sIss}, s{sW4096}")
            if issue and j in (1, 3, 5, 7):
                u = (j - 1) // 2
                p(f"buffer_load_dwordx4 v{vVo}, s[{rV}:{rV+3}], s{sOff} offen offset:{u*1024}{NT} lds")
        p(f"v_cvt_pk_bf16_f32 v{vP+7}, v{S+14}, v{S+15}")
        p(f"v_add_f32 v{vL0}, v{vL0}, v{S+14}")
        p(f"v_add_f32 v{vL1}, v{vL1}, v{S+15}")
        if issue:
            advance_slot(sIss)

    def beta(tag, cur, read_k, issue, do_tmax, wv, barrier=True, extra=None):
        Sn = vS[1 - cur]
        p(f"s_waitcnt vmcnt({wv}) lgkmcnt(0)")
        if barrier: p("s_barrier")
        n = 0
        for a in range(4):
            for ks in range(2):
                f = vVf + (a * 2 + ks) * 4
                p(f"{MF} {rg(vO+16*a,16)}, {rg(f,4)}, {rg(vP+4*ks,4)}, {rg(vO+16*a,16)}")
                if read_k:
                    p(f"ds_read_b128 {rg(vKf+4*n,4)}, v{vKA+n}")
                if issue and n == 0:
                    p(f"s_add_u32 m0, s{sIss}, s{sW4096}")
                    p(f"s_add_u32 s{sT0}, s{sOff}, {2*32768}")
                if issue and n in (1, 3, 5, 7):
                    u = (n - 1) // 2
                    p(f"buffer_load_dwordx4 v{vKo+u}, s[{rK}:{rK+3}], s{sT0} offen offset:{u*1024}{NT} lds")
                if n == 2 and do_tmax:
                    tmax(Sn)
                n += 1
        if issue:
            advance_slot(sIss)
            p(f"s_add_u32 s{sOff}, s{sOff}, 32768")
        advance_slot(sRV); advance_slot(sRV)
        advance_slot(sRK); advance_slot(sRK)
        v_addrs(sRV)
        k_addrs(sRK)
        if extra: extra()

    def rescale(tag):
        p.label(f"K1_RS{tag}")
        p(f"""
        v_max_f32 v3, v{vTn}, v{vM}
        v_sub_f32 v4, v{vM}, v3
        v_exp_f32 v4, v4
        v_mov_b32 v{vM}, v3
        v_add_f32 v{vThr}, 0x41000000, v3
        """)
        p(f"v_mul_f32 v{vL0}, v{vL0}, v4")
        p(f"v_mul_f32 v{vL1}, v{vL1}, v4")
        for i in range(64):
            p(f"v_mul_f32 v{vO+i}, v{vO+i}, v4")
        p(f"s_branch K1_BK{tag}")

    def wo_srd():
        p(f"""
        s_mul_i32 s{sT0}, s{sXc}, {512*1152}
        s_mul_i32 s{sT1}, s{sJj}, 288
        s_add_u32 s{sT0}, s{sT0}, s{sT1}
        s_add_u32 s{rW}, s{sWo}, s{sT0}
        s_addc_u32 s{rW+1}, s{sWo+1}, 0
        s_sub_u32 s{rW+2}, {4096*1152}, s{sT0}
        s_mov_b32 s{rW+3}, 0x20000
        """)
    def wo_touch():
        if not (o.fuse and o.wot): return
        l = nl('WOT')
        p(f"""
        s_cmp_eq_u32 s{sCnt}, 1
        s_cbranch_scc0 {l}
        s_cmp_eq_u32 s{sWave}, 6
        s_cbranch_scc0 {l}
        s_mul_i32 s{sT0}, s{sXc}, {512*1152}
        s_add_u32 s{rX}, s{sWo}, s{sT0}
        s_addc_u32 s{rX+1}, s{sWo+1}, 0
        s_mov_b32 s{rX+2}, {512*1152}
        s_mov_b32 s{rX+3}, 0x20000
        s_lshr_b32 s{sT0}, s2, 3
        s_mul_i32 s{sT0}, s{sT0}, 18432
        v_lshlrev_b32 v2, 7, v{vL}
        buffer_load_dword v{vDum}, v2, s[{rX}:{rX+3}], s{sT0} offen
        s_add_u32 s{sT0}, s{sT0}, 8192
        buffer_load_dword v{vDum}, v2, s[{rX}:{rX+3}], s{sT0} offen
        s_add_u32 s{sT0}, s{sT0}, 8192
        v_cmp_gt_u32 vcc, 16, v{vL}
        s_and_saveexec_b64 s[58:59], vcc
        buffer_load_dword v{vDum}, v2, s[{rX}:{rX+3}], s{sT0} offen
        s_mov_b64 exec, s[58:59]
        """)
        p.label(l)

    wm = lambda keys: min(W[k] for k in keys)
    p.label("K1_LOOP")
    alpha('L0', 0, True, True, wm([('a', 0), ('a', 2), ('a', 4)]))
    beta('L0', 0, True, True, True, wm([('b', 0), ('b', 2), ('b', 4)]))
    alpha('L1', 1, True, True, wm([('a', 1), ('a', 3), ('a', 5)]))
    beta('L1', 1, True, True, True, wm([('b', 1), ('b', 3), ('b', 5)]), extra=wo_touch)
    p(f"""
    s_add_u32 s{sCnt}, s{sCnt}, 1
    s_cmp_lt_u32 s{sCnt}, 3
    s_cbranch_scc1 K1_LOOP
    """)
    stamp(p, o, 4)
    alpha('A', 0, True, False, W[('a', 6)])
    beta('A', 0, False, False, True, 63, barrier=False)
    alpha('B', 1, False, False, W[('a', 7)])
    p("s_waitcnt vmcnt(0) lgkmcnt(0)")
    for a in range(4):
        for ks in range(2):
            f = vVf + (a * 2 + ks) * 4
            p(f"{MF} {rg(vO+16*a,16)}, {rg(f,4)}, {rg(vP+4*ks,4)}, {rg(vO+16*a,16)}")
    stamp(p, o, 5)

    STAT = 0
    NONL = 4096
    OX = R[2]
    WOB = 16384
    vS0 = vS[0]
    def wo_group_dma(gexpr_sgpr):
        p(f"""
        s_mul_i32 s{sT1}, s{gexpr_sgpr}, 9216
        s_add_u32 s{sT1}, s{sT1}, {WOB}
        s_mul_i32 s{sT0}, s{gexpr_sgpr}, 36864
        """)
        for i in range(9):
            if i % 4 == 0:
                p(f"s_add_u32 m0, s{sT1}, {(i//4)*4096}")
            p(f"buffer_load_dwordx4 v{vOff+i}, s[{rW}:{rW+3}], s{sT0} offen offset:{(i%4)*1024} lds")
    p(f"""
    v_add_f32 v{vL0}, v{vL0}, v{vL1}
    v_mov_b32 v{vL1}, v{vL0}
    s_nop 1
    v_permlane32_swap_b32 v{vL0}, v{vL1}
    v_add_f32 v{vThr}, v{vL0}, v{vL1}
    v_and_b32 v7, 31, v{vL}
    s_lshl_b32 s{sT0}, s{sKq}, 9
    s_lshl_b32 s{sT1}, s{sQh}, 8
    s_add_u32 s{sT0}, s{sT0}, s{sT1}
    s_add_u32 s{sT0}, s{sT0}, {STAT}
    s_add_u32 s{sT1}, s{sT1}, {STAT}
    v_lshlrev_b32 v7, 3, v7
    v_add_u32 v2, s{sT0}, v7
    v_add_u32 v7, s{sT1}, v7
    v_lshlrev_b32 v3, 4, v{vL}
    """)
    if o.fuse: wo_srd()
    p(f"""
    s_barrier
    ds_write_b64 v2, v[{vM}:{vM+1}]
    """)
    if o.fuse:
        p(f"""
        s_cmp_eq_u32 s{sWave}, 7
        s_cbranch_scc0 K1_NON2
        v_readfirstlane_b32 s{sT0}, v{vNon}
        v_readfirstlane_b32 s{sT1}, v{vNon+1}
        s_or_b32 s{sT2}, s{sT0}, s{sT1}
        s_cmp_eq_u32 s{sT2}, 0
        s_cselect_b32 s{sN}, s{sN}, s{sT0}
        s_cselect_b32 s{sN+1}, s{sN+1}, s{sT1}
        v_mov_b32 v8, s{sN}
        v_mov_b32 v9, s{sN+1}
        v_mov_b32 v6, {NONL}
        ds_write_b64 v6, v[8:9]
        """)
        p.label("K1_NON2")
    for a in range(1, 4):
        p(f"""
        s_add_u32 s{sT0}, s{sKq}, {a}
        s_and_b32 s{sT0}, s{sT0}, 3
        s_lshl_b32 s{sT2}, s{sQh}, 2
        s_add_u32 s{sT0}, s{sT0}, s{sT2}
        s_mul_i32 s{sT0}, s{sT0}, 12288
        s_add_u32 s{sT0}, s{sT0}, {OX + (3-a)*4096}
        v_add_u32 v4, s{sT0}, v3
        """)
        for g in range(4):
            p(f"ds_write_b128 v4, {rg(vO+16*a+4*g,4)} offset:{g*1024}")
    if o.fuse:
        p(f"""
        s_cmp_lt_u32 s{sWave}, 5
        s_cbranch_scc0 K1_WG1
        """)
        wo_group_dma(sWave)
        p.label("K1_WG1")
    p(f"""
    s_lshl_b32 s{sT0}, s{sQh}, 2
    s_add_u32 s{sT0}, s{sT0}, s{sKq}
    s_mul_i32 s{sT0}, s{sT0}, 12288
    s_add_u32 s{sT0}, s{sT0}, {OX}
    v_add_u32 v4, s{sT0}, v3
    s_waitcnt lgkmcnt(0)
    s_barrier
    """)
    for k in range(4):
        p(f"ds_read_b64 v[{vS0+2*k}:{vS0+2*k+1}], v7 offset:{k*512}")
    for i in range(3):
        for g in range(4):
            p(f"ds_read_b128 {rg(vO+16*(i+1)+4*g,4)}, v4 offset:{i*4096+g*1024}")
    if o.fuse:
        p(f"""
        v_mov_b32 v6, {NONL}
        ds_read_b64 v[8:9], v6
        s_waitcnt lgkmcnt(13)
        """)
    else:
        p("s_waitcnt lgkmcnt(12)")
    m = [vS0 + 0, vS0 + 2, vS0 + 4, vS0 + 6]; l = [vS0 + 1, vS0 + 3, vS0 + 5, vS0 + 7]
    p(f"""
    v_max3_f32 v2, v{m[0]}, v{m[1]}, v{m[2]}
    v_max_f32 v2, v2, v{m[3]}
    """)
    for k in range(4):
        p(f"v_sub_f32 v{m[k]}, v{m[k]}, v2")
    for k in range(4):
        p(f"v_exp_f32 v{m[k]}, v{m[k]}")
    p(f"""
    v_mul_f32 v3, v{m[0]}, v{l[0]}
    v_fmac_f32 v3, v{m[1]}, v{l[1]}
    v_fmac_f32 v3, v{m[2]}, v{l[2]}
    v_fmac_f32 v3, v{m[3]}, v{l[3]}
    v_rcp_f32 v3, v3
    """)
    for k in range(4):
        p(f"v_mul_f32 v{m[k]}, v{m[k]}, v3")
    wr = vS0 + 8
    for kq in range(4):
        p(f"s_cmp_eq_u32 s{sKq}, {kq}")
        p(f"s_cbranch_scc0 K1_WR{kq}")
        for i in range(4):
            p(f"v_mov_b32 v{wr+i}, v{m[(kq+i)&3]}")
        p.label(f"K1_WR{kq}")
    for i in range(16):
        p(f"v_mul_f32 v{vO+i}, v{vO+i}, v{wr}")
    nextra = 1 if o.fuse else 0
    for s in range(3):
        p(f"s_waitcnt lgkmcnt({8-4*s+nextra})")
        for i in range(16):
            p(f"v_fmac_f32 v{vO+i}, v{vO+16*(s+1)+i}, v{wr+s+1}")
    order = [0, 2, 1, 3]
    for idx, g in enumerate(order):
        p(f"v_cvt_pk_bf16_f32 v{vP+2*idx}, v{vO+4*g}, v{vO+4*g+1}")
        p(f"v_cvt_pk_bf16_f32 v{vP+2*idx+1}, v{vO+4*g+2}, v{vO+4*g+3}")
    SC = ' sc1' if o.fuse else ''
    p(f"""
    v_and_b32 v2, 15, v{vL}
    v_lshrrev_b32 v3, 5, v{vL}
    v_lshl_add_u32 v2, v3, 4, v2
    v_lshlrev_b32 v2, 4, v2
    v_bfe_u32 v3, v{vL}, 4, 1
    v_lshl_add_u32 v2, v3, 12, v2
    s_lshl_b32 s{sT0}, s{sWg}, 14
    s_lshl_b32 s{sT1}, s{sQh}, 13
    s_add_u32 s{sT0}, s{sT0}, s{sT1}
    s_lshl_b32 s{sT1}, s{sKq}, 10
    s_add_u32 s{sT0}, s{sT0}, s{sT1}
    buffer_store_dwordx4 {rg(vP,4)}, v2, s[{rO}:{rO+3}], s{sT0} offen{SC}
    buffer_store_dwordx4 {rg(vP+4,4)}, v2, s[{rO}:{rO+3}], s{sT0} offen offset:512{SC}
    """)
    if not o.fuse:
        if o.stamps:
            p("s_waitcnt vmcnt(0)")
            stamp(p, o, 6)
            stamp_flush(p, o, 0, 7, sWs)
        p("s_branch K1_END")
    else:
        tail(p, o, locals())
    for tag in ('L0', 'L1', 'A', 'B'):
        rescale(tag)
    p.label("K1_END")
    p("s_endpgm")
    return p

def gemm_body(p, vAcc, vB, vF, vAd, vLA, base_expr_instr):
    p(base_expr_instr)
    for kk in range(8):
        if kk == 4:
            p(f"v_add_u32 v{vAd}, {4*9216}, v{vAd}")
        off = (kk % 4) * 9216
        p(f"s_waitcnt vmcnt({7-kk})")
        for half in ((0, 5), (5, 9)):
            for nt in range(*half):
                f = vF + 4 * nt
                p(f"ds_read_b64_tr_b16 {rg(f,2)}, v{vAd} offset:{off+nt*32}")
                p(f"ds_read_b64_tr_b16 {rg(f+2,2)}, v{vAd} offset:{off+4608+nt*32}")
            n = half[1] - half[0]
            for idx, nt in enumerate(range(*half)):
                f = vF + 4 * nt
                p(f"s_waitcnt lgkmcnt({2*(n-1-idx)})")
                p(f"{MF16} {rg(vAcc+4*nt,4)}, {rg(f,4)}, {rg(vB+4*kk,4)}, {rg(vAcc+4*nt,4)}")

def tail(p, o, L):
    g = lambda n: L[n]
    sWave, sB, sXc, sJj, sWg, sT0, sT1, sT2 = g('sWave'), g('sB'), g('sXc'), g('sJj'), g('sWg'), g('sT0'), g('sT1'), g('sT2')
    rO, rW, rX, sN, sTag, sOut, sWs = g('rO'), g('rW'), g('rX'), g('sN'), g('sTag'), g('sOut'), g('sWs')
    vL, vOff, WOB = g('vL'), g('vOff'), g('WOB')
    wo_group_dma = g('wo_group_dma')
    sQt, sKh2 = 40, 41
    vAcc, vB, vF, vLA, vAd = 28, 64, 96, 19, 20
    p(f"""
    s_waitcnt lgkmcnt(0)
    v_readfirstlane_b32 s{sN}, v8
    v_readfirstlane_b32 s{sN+1}, v9
    s_barrier
    """)
    p(f"s_add_u32 s{sT2}, s{sWave}, 5")
    wo_group_dma(sT2)
    p(f"""
    s_cmp_lt_u32 s{sWave}, 3
    s_cbranch_scc0 T_G2
    s_add_u32 s{sT2}, s{sWave}, 13
    """)
    wo_group_dma(sT2)
    p(f"""
    s_waitcnt vmcnt(18)
    s_branch T_G3
    """)
    p.label("T_G2")
    p("s_waitcnt vmcnt(9)")
    p.label("T_G3")
    p("s_barrier")
    if o.stamps: stamp(p, o, 6)
    p(f"""
    s_and_b32 s{sQt}, s{sWave}, 3
    s_lshr_b32 s{sKh2}, s{sWave}, 2
    s_cmp_eq_u32 s{sWave}, 7
    s_cbranch_scc0 T_NOPOLL
    v_mov_b32 v2, s{sN}
    s_lshl_b32 s{sT0}, s{sWg}, 7
    s_add_u32 s{sT0}, s{sT0}, {WS_FLAG}
    v_mov_b32 v3, 0
    v_cmp_eq_u32 vcc, 0, v{vL}
    s_and_saveexec_b64 s[58:59], vcc
    buffer_store_dword v2, v3, s[{rO}:{rO+3}], s{sT0} offen sc1
    s_mov_b64 exec, s[58:59]
    s_and_b32 s{sT0}, s{sWg}, 0xfc
    s_lshl_b32 s{sT0}, s{sT0}, 7
    s_add_u32 s{sT0}, s{sT0}, {WS_FLAG}
    v_and_b32 v3, 3, v{vL}
    v_lshlrev_b32 v3, 7, v3
    s_mov_b32 s{sT1}, 0
    """)
    p.label("T_POLL1")
    p(f"""
    buffer_load_dword v4, v3, s[{rO}:{rO+3}], s{sT0} offen sc1
    s_add_u32 s{sT1}, s{sT1}, 1
    s_waitcnt vmcnt(0)
    v_cmp_ne_u32 vcc, v4, v2
    s_cmp_lt_u32 s{sT1}, {SPIN}
    s_cbranch_scc0 T_NOPOLL
    s_cbranch_vccnz T_POLL1
    """)
    p.label("T_NOPOLL")
    p(f"""
    v_lshrrev_b32 v2, 4, v{vL}
    v_and_b32 v3, 15, v{vL}
    v_lshrrev_b32 v4, 2, v3
    v_and_b32 v6, 3, v3
    v_lshl_add_u32 v2, v2, 2, v4
    v_mul_u32_u24 v2, 288, v2
    v_lshl_add_u32 v{vLA}, v6, 3, v2
    v_lshlrev_b32 v5, 4, v{vL}
    s_and_b32 s{sTag}, s{sN}, 0xfff
    s_lshr_b32 s{sTag+1}, s{sN}, 12
    s_and_b32 s{sTag+1}, s{sTag+1}, 0xfff
    s_lshr_b32 s{sTag+2}, s{sN}, 24
    s_lshl_b32 s{sT0}, s{sN+1}, 8
    s_or_b32 s{sTag+2}, s{sTag+2}, s{sT0}
    s_and_b32 s{sTag+2}, s{sTag+2}, 0xfff
    s_lshr_b32 s{sTag+3}, s{sN+1}, 4
    s_and_b32 s{sTag+3}, s{sTag+3}, 0xfff
    """)
    for i in range(36):
        p(f"v_mov_b32 v{vAcc+i}, 0")
    p(f"""
    s_waitcnt vmcnt(0)
    s_barrier
    """)
    if o.stamps: stamp(p, o, 7)
    p(f"""
    s_and_b32 s{sT0}, s{sWg}, 0xfc
    s_lshl_b32 s{sT1}, s{sKh2}, 1
    s_add_u32 s{sT0}, s{sT0}, s{sT1}
    s_lshl_b32 s{sT0}, s{sT0}, 14
    s_lshl_b32 s{sT1}, s{sQt}, 12
    s_add_u32 s{sT0}, s{sT0}, s{sT1}
    s_add_u32 s{sT1}, s{sT0}, 16384
    """)
    for kk in range(8):
        p(f"buffer_load_dwordx4 {rg(vB+4*kk,4)}, v5, s[{rO}:{rO+3}], s{sT0 if kk < 4 else sT1} offen offset:{(kk&3)*1024} sc1")
    p(f"s_mul_i32 s{sT2}, s{sKh2}, {8*9216}")
    p(f"s_add_u32 s{sT2}, s{sT2}, {WOB}")
    gemm_body(p, vAcc, vB, vF, vAd, vLA, f"v_add_u32 v{vAd}, s{sT2}, v{vLA}")
    if o.stamps: stamp(p, o, 8)
    p(f"""
    s_barrier
    s_mul_i32 s{sT0}, s{sQt}, 9216
    v_add_u32 v2, s{sT0}, v5
    s_cmp_eq_u32 s{sKh2}, 0
    s_cbranch_scc0 T_H1
    """)
    for nt in range(5, 9):
        p(f"ds_write_b128 v2, {rg(vAcc+4*nt,4)} offset:{nt*1024}")
    p("s_branch T_H2")
    p.label("T_H1")
    for nt in range(0, 5):
        p(f"ds_write_b128 v2, {rg(vAcc+4*nt,4)} offset:{nt*1024}")
    p.label("T_H2")
    TAGGED = (o.fuse == 2)
    p(f"""
    v_mov_b32 v7, 0xfffff000
    s_lshl_b32 s{sT0}, s{sXc}, 3
    s_add_u32 s{sT0}, s{sT0}, s{sB}
    s_lshl_b32 s{sT0}, s{sT0}, 2
    s_add_u32 s{sT0}, s{sT0}, s{sJj}
    s_lshl_b32 s{sT0}, s{sT0}, 2
    s_add_u32 s{sT0}, s{sT0}, s{sQt}
    s_mul_i32 s{sT0}, s{sT0}, 9216
    s_add_u32 s{sT0}, s{sT0}, {WS_PART}
    s_waitcnt lgkmcnt(0)
    s_barrier
    s_cmp_eq_u32 s{sKh2}, 0
    s_cbranch_scc0 T_H3
    """)
    def fin(nts):
        for nt in nts:
            p(f"ds_read_b128 {rg(vF+4*nt,4)}, v2 offset:{nt*1024}")
        for idx, nt in enumerate(nts):
            p(f"s_waitcnt lgkmcnt({len(nts)-1-idx})")
            for e in range(4):
                p(f"v_add_f32 v{vAcc+4*nt+e}, v{vAcc+4*nt+e}, v{vF+4*nt+e}")
            if TAGGED:
                for e in range(4):
                    p(f"v_and_b32 v{vAcc+4*nt+e}, v7, v{vAcc+4*nt+e}")
                    p(f"v_or_b32 v{vAcc+4*nt+e}, s{sTag+e}, v{vAcc+4*nt+e}")
            p(f"s_add_u32 s{sT1}, s{sT0}, {(nt//4)*4096}")
            p(f"buffer_store_dwordx4 {rg(vAcc+4*nt,4)}, v5, s[{rO}:{rO+3}], s{sT1} offen offset:{(nt%4)*1024}{' sc1' if TAGGED else ''}")
    fin(list(range(0, 5)))
    p("s_branch T_H4")
    p.label("T_H3")
    fin(list(range(5, 9)))
    p.label("T_H4")
    if o.stamps: stamp(p, o, 9)
    if TAGGED:
        vX = 100
        p(f"""
        s_cmp_ge_u32 s{sWave}, 5
        s_cbranch_scc1 T_DONE
        v_cmp_gt_u32 vcc, 288, v0
        s_and_saveexec_b64 s[58:59], vcc
        s_mul_i32 s{sT0}, s{sXc}, 288
        v_add_u32 v2, s{sT0}, v0
        v_lshlrev_b32 v3, 4, v2
        s_lshl_b32 s{sT0}, s{sB}, 2
        s_add_u32 s{sT0}, s{sT0}, s{sJj}
        s_mul_i32 s{sT0}, s{sT0}, 36864
        s_add_u32 s{sT0}, s{sT0}, {WS_PART}
        s_mov_b32 s{rX}, s{sOut}
        s_mov_b32 s{rX+1}, s{sOut+1}
        s_mov_b32 s{rX+2}, {512*576*2}
        s_mov_b32 s{rX+3}, 0x20000
        v_lshrrev_b32 v4, 6, v2
        v_mul_u32_u24 v5, 57, v4
        v_lshrrev_b32 v5, 9, v5
        v_mul_u32_u24 v6, 9, v5
        v_sub_u32 v6, v4, v6
        v_and_b32 v4, 15, v2
        v_lshl_add_u32 v4, v5, 4, v4
        s_lshl_b32 s{sT1}, s{sB}, 6
        v_add_u32 v4, s{sT1}, v4
        s_movk_i32 s{sT1}, 1152
        v_mul_u32_u24 v4, s{sT1}, v4
        v_lshlrev_b32 v6, 5, v6
        v_add_u32 v4, v4, v6
        v_bfe_u32 v6, v2, 4, 2
        v_lshl_add_u32 v4, v6, 3, v4
        s_mul_i32 s{sT1}, s{sJj}, 288
        v_add_u32 v4, s{sT1}, v4
        s_mov_b32 s{sT2}, 0
        """)
        p.label("T_POLL2")
        p(f"s_mov_b32 s{sT1}, s{sT0}")
        for s in range(8):
            p(f"buffer_load_dwordx4 {rg(vX+4*s,4)}, v3, s[{rO}:{rO+3}], s{sT1} offen sc1")
            if s < 7: p(f"s_add_u32 s{sT1}, s{sT1}, {32*36864}")
        p(f"""
        s_add_u32 s{sT2}, s{sT2}, 1
        v_mov_b32 v6, 0
        """)
        for s in range(8):
            p(f"s_waitcnt vmcnt({7-s})")
            for e in range(4):
                p(f"v_xor_b32 v8, s{sTag+e}, v{vX+4*s+e}")
                p(f"v_or_b32 v6, v6, v8")
        p(f"""
        v_and_b32 v6, 0xfff, v6
        v_cmp_ne_u32 vcc, 0, v6
        s_cmp_lt_u32 s{sT2}, {SPIN}
        s_cbranch_scc0 T_SUM
        s_cbranch_vccnz T_POLL2
        """)
        p.label("T_SUM")
        for s in range(8):
            for e in range(4):
                p(f"v_and_b32 v{vX+4*s+e}, v7, v{vX+4*s+e}")
        for s in range(1, 8):
            for e in range(4):
                p(f"v_add_f32 v{vX+e}, v{vX+e}, v{vX+4*s+e}")
        p(f"""
        v_cvt_pk_bf16_f32 v8, v{vX}, v{vX+1}
        v_cvt_pk_bf16_f32 v9, v{vX+2}, v{vX+3}
        buffer_store_dwordx2 v[8:9], v4, s[{rX}:{rX+3}], 0 offen
        s_mov_b64 exec, s[58:59]
        """)
        p.label("T_DONE")
    if o.stamps:
        p("s_waitcnt vmcnt(0)")
        p("s_memrealtime s[90:91]" if o.stamps != 2 else "s_memtime s[90:91]")
        p("s_waitcnt lgkmcnt(0)")
        p("s_mov_b32 s60, s60")
        gen_flush_final(p, o, sWs)
    p("s_branch K1_END")

def gen_flush_final(p, o, sws):
    tag = "STFm"
    if o.stamps == 3:
        p(f"""
        s_cmp_eq_u32 s2, 0
        s_cbranch_scc0 {tag}
        s_load_dwordx2 s[96:97], s[0:1], 48
        s_waitcnt lgkmcnt(0)
        v_cmp_eq_u32 vcc, 0, v0
        s_and_saveexec_b64 s[92:93], vcc
        s_cbranch_execz {tag}x
        v_mov_b32 v252, 0
        """)
        for i in range(10):
            p(f"v_mov_b32 v250, s{60+2*i}")
            p(f"global_store_dword v252, v250, s[96:97] offset:{16+4*i}")
        p("v_mov_b32 v250, s90")
        p(f"global_store_dword v252, v250, s[96:97] offset:{16+40}")
        p.label(tag + 'x')
        p("s_mov_b64 exec, s[92:93]")
        p.label(tag)
        return
    p(f"""
    v_cmp_eq_u32 vcc, {o.stampwave*64}, v0
    s_and_saveexec_b64 s[92:93], vcc
    s_cbranch_execz {tag}
    s_lshl_b32 s94, s2, 7
    s_add_u32 s94, s94, {gen.WS_STAMP}
    s_add_u32 s96, s{sws}, s94
    s_addc_u32 s97, s{sws+1}, 0
    v_mov_b32 v252, 0
    """)
    for i in range(10):
        p(f"""
        v_mov_b32 v250, s{60+2*i}
        v_mov_b32 v251, s{61+2*i}
        global_store_dwordx2 v252, v[250:251], s[96:97] offset:{8*i}
        """)
    p(f"""
    v_mov_b32 v250, s90
    v_mov_b32 v251, s91
    global_store_dwordx2 v252, v[250:251], s[96:97] offset:80
    """)
    p.label(tag)
    p("s_mov_b64 exec, s[92:93]")

def gen_k2(o):
    p = Prog()
    sWo, sWs = 4, 6
    rW, rO = 8, 12
    sWave, sXc, sB, sNg, sT0, sT1, sT2, sQt, sKh2 = 20, 21, 22, 23, 24, 25, 26, 27, 28
    vL = 1; vOff = 10; vLA = 19; vAd = 20; vAcc = 28; vB = 64; vF = 96
    p(f"""
    s_cmp_ge_u32 s2, 256
    s_cbranch_scc1 K2_END
    s_load_dwordx2 s[4:5], s[0:1], 32
    s_load_dwordx2 s[6:7], s[0:1], 56
    v_and_b32 v{vL}, 63, v0
    v_lshrrev_b32 v2, 6, v0
    s_and_b32 s{sXc}, s2, 7
    s_lshr_b32 s{sT1}, s2, 3
    v_readfirstlane_b32 s{sWave}, v2
    s_lshr_b32 s{sB}, s{sT1}, 2
    s_and_b32 s{sNg}, s{sT1}, 3
    s_and_b32 s{sQt}, s{sWave}, 3
    s_lshr_b32 s{sKh2}, s{sWave}, 2
    s_movk_i32 s{sT0}, 3641
    s_movk_i32 s{sT1}, 1152
    """)
    for i in range(9):
        p(f"""
        v_add_u32 v2, {64*i}, v{vL}
        v_mul_u32_u24 v3, s{sT0}, v2
        v_lshrrev_b32 v3, 16, v3
        v_mul_u32_u24 v4, 18, v3
        v_sub_u32 v4, v2, v4
        v_mul_u32_u24 v3, s{sT1}, v3
        v_lshl_add_u32 v3, v4, 4, v3
        v_subrev_u32 v{vOff+i}, {(i%4)*1024}, v3
        """)
    p(f"""
    v_lshrrev_b32 v2, 4, v{vL}
    v_and_b32 v3, 15, v{vL}
    v_lshrrev_b32 v4, 2, v3
    v_and_b32 v6, 3, v3
    v_lshl_add_u32 v2, v2, 2, v4
    v_mul_u32_u24 v2, 288, v2
    v_lshl_add_u32 v{vLA}, v6, 3, v2
    v_lshlrev_b32 v5, 4, v{vL}
    s_waitcnt lgkmcnt(0)
    """)
    stamp(p, o, 0)
    p(f"""
    s_mul_i32 s{sT0}, s{sXc}, {512*1152}
    s_mul_i32 s{sT1}, s{sNg}, 288
    s_add_u32 s{sT0}, s{sT0}, s{sT1}
    s_add_u32 s{rW}, s{sWo}, s{sT0}
    s_addc_u32 s{rW+1}, s{sWo+1}, 0
    s_sub_u32 s{rW+2}, {4096*1152}, s{sT0}
    s_mov_b32 s{rW+3}, 0x20000
    s_mov_b32 s{rO}, s{sWs}
    s_mov_b32 s{rO+1}, s{sWs+1}
    s_mov_b32 s{rO+2}, {WS_SIZE}
    s_mov_b32 s{rO+3}, 0x20000
    """)
    for rep in range(2):
        p(f"""
        s_add_u32 s{sT0}, s{sWave}, {8*rep}
        s_mul_i32 s{sT1}, s{sT0}, 9216
        s_mul_i32 s{sT0}, s{sT0}, 36864
        """)
        for i in range(9):
            if i % 4 == 0:
                p(f"s_add_u32 m0, s{sT1}, {(i//4)*4096}")
            p(f"buffer_load_dwordx4 v{vOff+i}, s[{rW}:{rW+3}], s{sT0} offen offset:{(i%4)*1024} lds")
    p(f"""
    s_lshl_b32 s{sT0}, s{sB}, 3
    s_add_u32 s{sT0}, s{sT0}, s{sXc}
    s_lshl_b32 s{sT0}, s{sT0}, 2
    s_lshl_b32 s{sT1}, s{sKh2}, 1
    s_add_u32 s{sT0}, s{sT0}, s{sT1}
    s_lshl_b32 s{sT0}, s{sT0}, 14
    s_lshl_b32 s{sT1}, s{sQt}, 12
    s_add_u32 s{sT0}, s{sT0}, s{sT1}
    s_add_u32 s{sT1}, s{sT0}, 16384
    """)
    for kk in range(8):
        p(f"buffer_load_dwordx4 {rg(vB+4*kk,4)}, v5, s[{rO}:{rO+3}], s{sT0 if kk < 4 else sT1} offen offset:{(kk&3)*1024}")
    for i in range(36):
        p(f"v_mov_b32 v{vAcc+i}, 0")
    p(f"""
    s_waitcnt vmcnt(8)
    s_barrier
    s_mul_i32 s{sT2}, s{sKh2}, {8*9216}
    """)
    stamp(p, o, 1)
    gemm_body(p, vAcc, vB, vF, vAd, vLA, f"v_add_u32 v{vAd}, s{sT2}, v{vLA}")
    stamp(p, o, 2)
    p(f"""
    s_barrier
    s_mul_i32 s{sT0}, s{sQt}, 9216
    v_add_u32 v2, s{sT0}, v5
    s_cmp_eq_u32 s{sKh2}, 0
    s_cbranch_scc0 K2_H1
    """)
    for nt in range(5, 9):
        p(f"ds_write_b128 v2, {rg(vAcc+4*nt,4)} offset:{nt*1024}")
    p("s_branch K2_H2")
    p.label("K2_H1")
    for nt in range(0, 5):
        p(f"ds_write_b128 v2, {rg(vAcc+4*nt,4)} offset:{nt*1024}")
    p.label("K2_H2")
    p(f"""
    s_lshl_b32 s{sT0}, s{sXc}, 3
    s_add_u32 s{sT0}, s{sT0}, s{sB}
    s_lshl_b32 s{sT0}, s{sT0}, 2
    s_add_u32 s{sT0}, s{sT0}, s{sNg}
    s_lshl_b32 s{sT0}, s{sT0}, 2
    s_add_u32 s{sT0}, s{sT0}, s{sQt}
    s_mul_i32 s{sT0}, s{sT0}, 9216
    s_add_u32 s{sT0}, s{sT0}, {WS_PART}
    s_waitcnt lgkmcnt(0)
    s_barrier
    s_cmp_eq_u32 s{sKh2}, 0
    s_cbranch_scc0 K2_H3
    """)
    def fin(nts):
        for nt in nts:
            p(f"ds_read_b128 {rg(vF+4*nt,4)}, v2 offset:{nt*1024}")
        for idx, nt in enumerate(nts):
            p(f"s_waitcnt lgkmcnt({len(nts)-1-idx})")
            for e in range(4):
                p(f"v_add_f32 v{vAcc+4*nt+e}, v{vAcc+4*nt+e}, v{vF+4*nt+e}")
            p(f"s_add_u32 s{sT1}, s{sT0}, {(nt//4)*4096}")
            p(f"buffer_store_dwordx4 {rg(vAcc+4*nt,4)}, v5, s[{rO}:{rO+3}], s{sT1} offen offset:{(nt%4)*1024}")
    fin(list(range(0, 5)))
    p("s_branch K2_H4")
    p.label("K2_H3")
    fin(list(range(5, 9)))
    p.label("K2_H4")
    if o.stamps:
        stamp(p, o, 3)
        p("s_waitcnt vmcnt(0)")
        stamp(p, o, 4)
        stamp_flush(p, o, 1, 5, sWs)
    p.label("K2_END")
    p("s_endpgm")
    return p

def gen_k3(o):
    gen.WS_PART = WS_PART
    return gen.gen_k3(o)

def emit(o):
    ks = [('gqa_main_kernel', gen_main(o), 256, 512, 163840)]
    if o.fuse == 0:
        ks += [('gqa_oproj_kernel', gen_k2(o), 256, 512, 147456)]
    if o.fuse <= 1:
        ks += [('gqa_reduce_kernel', gen_k3(o), 288, 256, 0)]
    if o.dbg == 2:
        ks = ks[:1]
    out = [HEADER.rstrip()]
    for name, _, g, b, lds in ks:
        out.append(f"; @launch kernel={name} grid=({g},1,1) block=({b},1,1) lds={lds}")
    out.append('.amdgcn_target "amdgcn-amd-amdhsa--gfx950"')
    out.append('.text')
    for name, p, g, b, lds in ks:
        n = p.fix_hazards()
        errs = p.lint_waits()
        for e in errs[:20]:
            print(f"LINT[{name}]: {e}", file=sys.stderr)
        nv, ns = p.max_regs()
        print(f"{name}: {len(p.ins)} instrs, vgpr {nv}, sgpr {ns}, nops inserted {n}", file=sys.stderr)
        out.append(f".globl {name}\n.p2align 8\n.type {name},@function\n{name}:")
        out.append(p.text())
        out.append(kd(name, max(nv, 8), max(ns, 16)))
    return '\n'.join(out) + '\n'

if __name__ == '__main__':
    ap = argparse.ArgumentParser()
    ap.add_argument('-o', default='standalone__gqa_block_cached__near_ridge.s')
    for k, d in OPTS.items():
        ap.add_argument('--' + k, type=int, default=d)
    a = ap.parse_args()
    o = Opt()
    for k in OPTS:
        setattr(o, k, getattr(a, k))
    open(a.o, 'w').write(emit(o))
```

```python
import sys, argparse
from asmlib import Prog
import gen
from gen import f32bits, SCALE_LOG2E, stamp, stamp_flush, kd, HEADER

WS_O = 0
WS_PART = 4 << 20
WS_FLAG = 16 << 20
WS_SIZE = 17 << 20
MF = 'v_mfma_f32_32x32x16_bf16'
MF16 = 'v_mfma_f32_16x16x32_bf16'
def rg(b, n): return f"v[{b}:{b+n-1}]" if n > 1 else f"v{b}"

class Opt(gen.Opt):
    pass

OPTS = dict(nt=1, dbg=0, stamps=0, stampwave=0, wt=1, kdel=5, fuse=2, wot=1)
SPIN = 1 << 18

def gen_main(o):
    p = Prog()
    NT = ' nt' if o.nt else ''
    sX, sK, sV, sWq, sWs, sWo = 4, 6, 8, 10, 12, 14
    rK, rV, rW, rX, rO = 16, 20, 24, 28, 32
    sWave, sB, sH, sXc, sQh, sKq = 36, 37, 38, 39, 40, 41
    sRK, sRV, sOff, sIss, sCnt, sJj = 42, 43, 44, 45, 46, 47
    sC, sT0, sT1, sT2 = 48, 49, 50, 51
    sW4096, sWg = 53, 54
    sOut, sDbg, sN, sTag = 80, 82, 84, 86
    vL = 1
    vKo = 10; vVo = 14
    vWo = 15; vXo = 17; vLW = 21; vLX = 22
    vVA = 15; vTn = 19
    vLK = 23; vLV = 24
    vKA = 28
    vM, vThr, vL0, vL1 = 36, 37, 38, 39
    vQ = 40
    vS = [72, 88]
    vP = 104
    vKf = 112
    vVf = 144
    vO = 176
    vOff = 240
    vDum = 249
    vNon = 20
    R = [i * 32768 for i in range(5)]
    QS = [139264, 65536, 90112, 114688]
    lab = [0]
    def nl(s):
        lab[0] += 1
        return f"K1_{s}{lab[0]}"
    vq = []
    def vissue(tag, n): vq.extend([tag] * n)
    def vneed(*tags):
        idx = [i for i, t in enumerate(vq) if t in tags]
        if not idx: return 63
        n = len(vq) - 1 - idx[-1]
        del vq[:idx[-1] + 1]
        return min(n, 63)

    p(f"""
    s_cmp_ge_u32 s2, 256
    s_cbranch_scc1 K1_END
    s_load_dwordx4 s[4:7], s[0:1], 0
    s_load_dwordx4 s[8:11], s[0:1], 16
    s_load_dwordx2 s[12:13], s[0:1], 56
    s_load_dwordx2 s[14:15], s[0:1], 32
    s_load_dwordx4 s[80:83], s[0:1], 40
    v_and_b32 v{vL}, 63, v0
    v_lshrrev_b32 v2, 6, v0
    s_and_b32 s{sXc}, s2, 7
    s_lshr_b32 s{sT1}, s2, 3
    v_readfirstlane_b32 s{sWave}, v2
    s_lshr_b32 s{sB}, s{sT1}, 2
    s_and_b32 s{sJj}, s{sT1}, 3
    s_lshl_b32 s{sH}, s{sXc}, 2
    s_add_u32 s{sH}, s{sH}, s{sJj}
    s_lshl_b32 s{sWg}, s{sB}, 5
    s_add_u32 s{sWg}, s{sWg}, s{sH}
    s_and_b32 s{sQh}, s{sWave}, 1
    s_lshr_b32 s{sKq}, s{sWave}, 1
    s_lshl_b32 s{sW4096}, s{sWave}, 12
    s_mov_b32 s{sC}, 0x{f32bits(SCALE_LOG2E):08x}
    v_and_b32 v2, 15, v{vL}
    v_lshrrev_b32 v3, 4, v{vL}
    v_lshrrev_b32 v4, 2, v2
    v_and_b32 v5, 3, v2
    v_lshrrev_b32 v6, 5, v{vL}
    v_and_b32 v7, 31, v{vL}
    v_lshlrev_b32 v8, 2, v3
    v_xor_b32 v8, v8, v2
    v_lshlrev_b32 v8, 4, v8
    v_lshl_add_u32 v{vVo}, v3, 8, v8
    v_lshl_add_u32 v{vWo}, v3, 13, v8
    v_add_u32 v{vWo+1}, 31744, v{vWo}
    s_lshl_b32 s{sT0}, s{sWave}, 3
    s_movk_i32 s{sT1}, 1152
    v_lshrrev_b32 v8, 3, v{vL}
    v_add_u32 v8, s{sT0}, v8
    v_mul_lo_u32 v8, v8, s{sT1}
    s_lshl_b32 s{sT0}, s{sWave}, 2
    v_add_u32 v9, s{sT0}, v3
    v_and_b32 v9, 7, v9
    v_and_b32 v{vXo}, 7, v{vL}
    v_xor_b32 v9, v9, v{vXo}
    v_lshl_add_u32 v{vXo}, v9, 4, v8
    """)
    p("s_waitcnt lgkmcnt(0)")
    stamp(p, o, 0)
    p(f"""
    s_lshl_b32 s{sT0}, s{sH}, 8
    s_add_u32 s{rW}, s{sWq}, s{sT0}
    s_addc_u32 s{rW+1}, s{sWq+1}, 0
    s_sub_u32 s{rW+2}, {576*8192}, s{sT0}
    s_mov_b32 s{rW+3}, 0x20000
    s_mul_i32 s{sT0}, s{sB}, {64*1152}
    s_add_u32 s{rX}, s{sX}, s{sT0}
    s_addc_u32 s{rX+1}, s{sX+1}, 0
    s_mov_b32 s{rX+2}, {64*1152}
    s_mov_b32 s{rX+3}, 0x20000
    """)

    def issue_chunk(c):
        qs = QS[c % 4]
        p(f"""
        s_lshl_b32 s{sT0}, s{sWave}, 16
        s_add_u32 s{sT0}, s{sT0}, {c*524288}
        s_lshr_b32 s{sT1}, s{sW4096}, 1
        s_add_u32 m0, s{sT1}, {qs}
        """)
        for u in range(2):
            p(f"buffer_load_dwordx4 v{vWo+u}, s[{rW}:{rW+3}], s{sT0} offen offset:{u*1024} lds")
        p(f"""
        s_lshr_b32 s{sT1}, s{sW4096}, 2
        s_add_u32 m0, s{sT1}, {qs+16384}
        s_movk_i32 s{sT0}, {c*128}
        buffer_load_dwordx4 v{vXo}, s[{rX}:{rX+3}], s{sT0} offen lds
        """)
        vissue(('C', c), 3)

    if o.wt:
        p(f"""
        s_cmp_eq_u32 s{sWave}, 4
        s_cbranch_scc0 K1_WT1
        v_lshrrev_b32 v8, 1, v{vL}
        v_and_b32 v9, 1, v{vL}
        v_lshlrev_b32 v8, 13, v8
        v_lshl_add_u32 v8, v9, 7, v8
        s_mul_i32 s{sT0}, s{sB}, {72*8192}
        buffer_load_dword v{vDum}, v8, s[{rW}:{rW+3}], s{sT0} offen
        s_add_u32 s{sT0}, s{sT0}, {32*8192}
        buffer_load_dword v{vDum}, v8, s[{rW}:{rW+3}], s{sT0} offen
        s_add_u32 s{sT0}, s{sT0}, {32*8192}
        v_cmp_gt_u32 vcc, 16, v{vL}
        s_and_saveexec_b64 s[58:59], vcc
        buffer_load_dword v{vDum}, v8, s[{rW}:{rW+3}], s{sT0} offen
        s_mov_b64 exec, s[58:59]
        """)
        p.label("K1_WT1")
        p(f"""
        s_cmp_eq_u32 s{sWave}, 5
        s_cbranch_scc0 K1_WT2
        v_lshlrev_b32 v9, 7, v{vL}
        s_mul_i32 s{sT0}, s{sJj}, 18432
        buffer_load_dword v{vDum}, v9, s[{rX}:{rX+3}], s{sT0} offen
        s_add_u32 s{sT0}, s{sT0}, 8192
        buffer_load_dword v{vDum}, v9, s[{rX}:{rX+3}], s{sT0} offen
        s_add_u32 s{sT0}, s{sT0}, 8192
        v_cmp_gt_u32 vcc, 16, v{vL}
        s_and_saveexec_b64 s[58:59], vcc
        buffer_load_dword v{vDum}, v9, s[{rX}:{rX+3}], s{sT0} offen
        s_mov_b64 exec, s[58:59]
        """)
        p.label("K1_WT2")
    for c in range(4):
        issue_chunk(c)
    p(f"""
    s_lshl_b32 s{sT0}, s{sB}, 4
    s_lshr_b32 s{sT1}, s{sH}, 1
    s_add_u32 s{sT0}, s{sT0}, s{sT1}
    s_lshl_b32 s{sT0}, s{sT0}, 18
    s_add_u32 s{rK}, s{sK}, s{sT0}
    s_addc_u32 s{rK+1}, s{sK+1}, 0
    s_mov_b32 s{rK+2}, 0x40000
    s_mov_b32 s{rK+3}, 0x20000
    s_add_u32 s{rV}, s{sV}, s{sT0}
    s_addc_u32 s{rV+1}, s{sV+1}, 0
    s_mov_b32 s{rV+2}, 0x40000
    s_mov_b32 s{rV+3}, 0x20000
    s_mov_b32 s{rO}, s{sWs}
    s_mov_b32 s{rO+1}, s{sWs+1}
    s_mov_b32 s{rO+2}, {WS_SIZE}
    s_mov_b32 s{rO+3}, 0x20000
    """)
    for u in range(4):
        p(f"""
        v_add_u32 v8, {4*u}, v3
        v_xor_b32 v8, v8, v2
        v_lshlrev_b32 v8, 4, v8
        v_lshl_add_u32 v{vKo+u}, v3, 8, v8
        """)

    def issue_kv(isK, tile, slot):
        p(f"""
        s_add_u32 s{sT0}, s{sW4096}, {tile*32768}
        s_add_u32 m0, s{sW4096}, {R[slot]}
        """)
        for u in range(4):
            if isK: p(f"buffer_load_dwordx4 v{vKo+u}, s[{rK}:{rK+3}], s{sT0} offen offset:{u*1024}{NT} lds")
            else:   p(f"buffer_load_dwordx4 v{vVo}, s[{rV}:{rV+3}], s{sT0} offen offset:{u*1024}{NT} lds")
        vissue(('K' if isK else 'V', tile), 4)
    if o.kdel < 0:
        issue_kv(True, 0, 0); issue_kv(True, 1, 1)

    p(f"""
    v_lshl_add_u32 v8, v6, 3, v4
    v_lshlrev_b32 v8, 8, v8
    v_and_b32 v9, 1, v3
    v_lshlrev_b32 v9, 1, v9
    v_and_b32 v{vLW}, 1, v5
    v_add_u32 v9, v9, v{vLW}
    s_lshl_b32 s{sT0}, s{sKq}, 2
    v_add_u32 v9, s{sT0}, v9
    v_lshlrev_b32 v{vLW}, 2, v4
    v_xor_b32 v9, v9, v{vLW}
    v_lshl_add_u32 v8, v9, 4, v8
    v_lshrrev_b32 v9, 1, v5
    v_lshl_add_u32 v{vLW}, v9, 3, v8
    s_lshl_b32 s{sT0}, s{sQh}, 5
    v_add_u32 v8, s{sT0}, v7
    v_lshrrev_b32 v9, 1, v8
    v_and_b32 v9, 7, v9
    v_xor_b32 v9, v9, v6
    v_lshlrev_b32 v9, 4, v9
    v_lshl_add_u32 v{vLX}, v8, 7, v9
    s_lshl_b32 s{sT0}, s{sKq}, 5
    v_add_u32 v8, s{sT0}, v7
    v_and_b32 v9, 15, v8
    v_xor_b32 v9, v9, v6
    v_lshlrev_b32 v9, 4, v9
    v_lshl_add_u32 v{vLK}, v8, 8, v9
    v_lshl_add_u32 v8, v6, 2, v4
    v_add_u32 v8, s{sT0}, v8
    v_lshlrev_b32 v8, 8, v8
    v_and_b32 v9, 1, v5
    v_lshl_add_u32 v8, v9, 3, v8
    v_and_b32 v9, 1, v3
    v_lshlrev_b32 v9, 1, v9
    v_lshrrev_b32 v2, 1, v5
    v_add_u32 v9, v9, v2
    v_lshlrev_b32 v2, 2, v4
    """)
    for a in range(4):
        p(f"""
        s_add_u32 s{sT1}, s{sKq}, {a}
        s_and_b32 s{sT1}, s{sT1}, 3
        s_lshl_b32 s{sT1}, s{sT1}, 2
        v_add_u32 v3, s{sT1}, v9
        v_xor_b32 v3, v3, v2
        v_lshl_add_u32 v{vLV+a}, v3, 4, v8
        """)
    for i in range(16):
        p(f"v_mov_b32 v{vS[0]+i}, 0")
    for i in range(64):
        p(f"v_mov_b32 v{vO+i}, 0")
    p(f"""
    v_mov_b32 v{vM}, 0xf149f2ca
    v_mov_b32 v{vThr}, 0xf149f2ca
    v_mov_b32 v{vL0}, 0
    v_mov_b32 v{vL1}, 0
    """)
    if o.fuse:
        p(f"""
        s_movk_i32 s{sT0}, 3641
        s_movk_i32 s{sT1}, 1152
        """)
        for i in range(9):
            p(f"""
            v_add_u32 v2, {64*i}, v{vL}
            v_mul_u32_u24 v3, s{sT0}, v2
            v_lshrrev_b32 v3, 16, v3
            v_mul_u32_u24 v4, 18, v3
            v_sub_u32 v4, v2, v4
            v_mul_u32_u24 v3, s{sT1}, v3
            v_lshl_add_u32 v3, v4, 4, v3
            v_subrev_u32 v{vOff+i}, {(i%4)*1024}, v3
            """)

    FB = [vKf, vVf]
    A0 = vKA
    def q_phase(c, reads, extra):
        f = FB[(c - 1) % 2]
        rd = list(reads); ex = list(extra)
        for ks in range(4):
            if c >= 1:
                p(f"{MF} {rg(vS[0],16)}, {rg(f+8*ks,4)}, {rg(f+8*ks+4,4)}, {rg(vS[0],16)}")
            for _ in range(3):
                if rd: p(rd.pop(0))
            if ex and ks >= 1: ex.pop(0)()
        for e in ex: e()
    for c in range(9):
        qs = QS[c % 4]
        f = FB[c % 2]
        n = vneed(('C', c))
        p(f"""
        v_add_u32 v{A0}, {qs}, v{vLW}
        v_add_u32 v{A0+1}, {qs+16384}, v{vLX}
        v_xor_b32 v{A0+2}, 32, v{A0+1}
        v_xor_b32 v{A0+3}, 64, v{A0+1}
        v_xor_b32 v{A0+4}, 96, v{A0+1}
        s_waitcnt vmcnt({n}) lgkmcnt(0)
        s_barrier
        """)
        if c == 0: stamp(p, o, 1)
        reads = []
        for ks in range(4):
            reads.append(f"ds_read_b64_tr_b16 {rg(f+8*ks,2)}, v{A0} offset:{ks*4096}")
            reads.append(f"ds_read_b64_tr_b16 {rg(f+8*ks+2,2)}, v{A0} offset:{ks*4096+1024}")
            reads.append(f"ds_read_b128 {rg(f+8*ks+4,4)}, v{A0+1+ks}")
        extra = []
        if 1 <= c <= 5: extra.append(lambda c=c: issue_chunk(c + 3))
        if c == o.kdel:
            extra.append(lambda: issue_kv(True, 0, 0))
            extra.append(lambda: issue_kv(True, 1, 1))
        if c == 8:
            extra.append(lambda: issue_kv(False, 0, 2))
            extra.append(lambda: issue_kv(True, 2, 3))
        q_phase(c, reads, extra)
    p("s_waitcnt lgkmcnt(0)")
    p("s_barrier")
    q_phase(9, [], [])
    stamp(p, o, 2)
    QX = R[4]
    p(f"""
    s_lshl_b32 s{sT0}, s{sQh}, 13
    s_lshl_b32 s{sT1}, s{sKq}, 11
    s_add_u32 s{sT1}, s{sT1}, s{sT0}
    s_add_u32 s{sT1}, s{sT1}, {QX}
    s_add_u32 s{sT0}, s{sT0}, {QX}
    v_lshlrev_b32 v2, 4, v{vL}
    v_add_u32 v3, s{sT1}, v2
    v_add_u32 v2, s{sT0}, v2
    """)
    p(f"v_mov_b32 v{vKA}, v{vLK}")
    for s in range(1, 8):
        p(f"v_xor_b32 v{vKA+s}, {s<<5}, v{vLK}")
    for j in range(8):
        p(f"v_cvt_pk_bf16_f32 v{vP+j}, v{vS[0]+2*j}, v{vS[0]+2*j+1}")
    p(f"""
    ds_write_b128 v3, {rg(vP,4)}
    ds_write_b128 v3, {rg(vP+4,4)} offset:1024
    s_waitcnt lgkmcnt(0)
    s_barrier
    """)
    for s in range(8):
        p(f"ds_read_b128 {rg(vQ+4*s,4)}, v2 offset:{s*1024}")

    def k_addrs(sreg):
        p(f"v_add_u32 v{vKA}, s{sreg}, v{vLK}")
        for s in range(1, 8):
            p(f"v_xor_b32 v{vKA+s}, {s<<5}, v{vKA}")
    def v_addrs(sreg):
        for a in range(4):
            p(f"v_add_u32 v{vVA+a}, s{sreg}, v{vLV+a}")
    def advance_slot(s):
        p(f"""
        s_add_u32 s{s}, s{s}, 32768
        s_cmp_eq_u32 s{s}, {5*32768}
        s_cselect_b32 s{s}, 0, s{s}
        """)
    def tmax(S):
        p(f"""
        v_max3_f32 v2, v{S}, v{S+1}, v{S+2}
        v_max3_f32 v3, v{S+3}, v{S+4}, v{S+5}
        v_max3_f32 v2, v2, v{S+6}, v{S+7}
        v_max3_f32 v3, v3, v{S+8}, v{S+9}
        v_max3_f32 v2, v2, v{S+10}, v{S+11}
        v_max3_f32 v3, v3, v{S+12}, v{S+13}
        v_max3_f32 v2, v2, v{S+14}, v{S+15}
        v_max_f32 v2, v2, v3
        v_mov_b32 v3, v2
        s_nop 1
        v_permlane32_swap_b32 v2, v3
        v_max_f32 v2, v2, v3
        v_mul_f32 v{vTn}, s{sC}, v2
        """)

    n = vneed(('K', 0))
    p(f"s_waitcnt vmcnt({n}) lgkmcnt(0)")
    p("s_barrier")
    stamp(p, o, 3)
    for s in range(8):
        p(f"ds_read_b128 {rg(vKf+4*s,4)}, v{vKA+s}")
    issue_kv(False, 1, 4)
    p(f"s_mov_b32 s{sRK}, {R[1]}")
    if o.fuse:
        p(f"""
        s_cmp_eq_u32 s{sWave}, 7
        s_cbranch_scc0 K1_NON
        s_memrealtime s[{sN}:{sN+1}]
        s_waitcnt lgkmcnt(0)
        s_or_b32 s{sN}, s{sN}, 1
        v_mov_b32 v4, s{sN}
        v_mov_b32 v5, s{sN+1}
        v_mov_b32 v6, 0
        v_mov_b32 v7, 0
        v_mov_b32 v8, 0
        v_cmp_eq_u32 vcc, 0, v{vL}
        s_and_saveexec_b64 s[58:59], vcc
        global_atomic_cmpswap_x2 v[{vNon}:{vNon+1}], v8, v[4:7], s[{sDbg}:{sDbg+1}] sc0
        s_mov_b64 exec, s[58:59]
        """)
        p.label("K1_NON")
    n = vneed(('K', 1))
    p(f"s_waitcnt vmcnt({n}) lgkmcnt(0)")
    p("s_barrier")
    k_addrs(sRK)
    for s in range(8):
        c = '0' if s == 0 else rg(vS[0], 16)
        p(f"{MF} {rg(vS[0],16)}, {rg(vKf+4*s,4)}, {rg(vQ+4*s,4)}, {c}")
    for s in range(8):
        p(f"ds_read_b128 {rg(vKf+4*s,4)}, v{vKA+s}")
    issue_kv(True, 3, 0)
    p(f"""
    s_mov_b32 s{sRV}, {R[2]}
    s_mov_b32 s{sRK}, {R[3]}
    s_mov_b32 s{sIss}, {R[1]}
    s_add_u32 s{sOff}, s{sW4096}, {2*32768}
    s_mov_b32 s{sCnt}, 0
    """)
    v_addrs(sRV)
    k_addrs(sRK)
    tmax(vS[0])

    W = {}
    save = list(vq)
    for i in range(8):
        W[('a', i)] = vneed(('V', i))
        if i <= 5: vissue(('V', i + 2), 4)
        if i <= 5:
            W[('b', i)] = vneed(('K', i + 2))
            vissue(('K', i + 4), 4)
    print('loop waits', W, file=sys.stderr)

    def alpha(tag, cur, do_qk, issue, wv):
        S, Sn = vS[cur], vS[1 - cur]
        p(f"""
        s_waitcnt vmcnt({wv}) lgkmcnt(0)
        s_barrier
        v_cmp_gt_f32 vcc, v{vTn}, v{vThr}
        s_cbranch_vccnz K1_RS{tag}
        """)
        p.label(f"K1_BK{tag}")
        reads = [(a, ks, h) for a in range(4) for ks in range(2) for h in range(2)]
        for j in range(8):
            if do_qk:
                c = '0' if j == 0 else rg(Sn, 16)
                p(f"{MF} {rg(Sn,16)}, {rg(vKf+4*j,4)}, {rg(vQ+4*j,4)}, {c}")
            for (a, ks, h) in reads[2*j:2*j+2]:
                f = vVf + (a * 2 + ks) * 4 + 2 * h
                p(f"ds_read_b64_tr_b16 {rg(f,2)}, v{vVA+a} offset:{ks*4096+h*2048}")
            p(f"v_fma_f32 v{S+2*j}, v{S+2*j}, s{sC}, -v{vM}")
            p(f"v_fma_f32 v{S+2*j+1}, v{S+2*j+1}, s{sC}, -v{vM}")
            p(f"v_exp_f32 v{S+2*j}, v{S+2*j}")
            p(f"v_exp_f32 v{S+2*j+1}, v{S+2*j+1}")
            if j >= 1:
                k = j - 1
                p(f"v_cvt_pk_bf16_f32 v{vP+k}, v{S+2*k}, v{S+2*k+1}")
                p(f"v_add_f32 v{vL0}, v{vL0}, v{S+2*k}")
                p(f"v_add_f32 v{vL1}, v{vL1}, v{S+2*k+1}")
            if issue and j == 0:
                p(f"s_add_u32 m0, s{sIss}, s{sW4096}")
            if issue and j in (1, 3, 5, 7):
                u = (j - 1) // 2
                p(f"buffer_load_dwordx4 v{vVo}, s[{rV}:{rV+3}], s{sOff} offen offset:{u*1024}{NT} lds")
        p(f"v_cvt_pk_bf16_f32 v{vP+7}, v{S+14}, v{S+15}")
        p(f"v_add_f32 v{vL0}, v{vL0}, v{S+14}")
        p(f"v_add_f32 v{vL1}, v{vL1}, v{S+15}")
        if issue:
            advance_slot(sIss)

    def beta(tag, cur, read_k, issue, do_tmax, wv, barrier=True, extra=None):
        Sn = vS[1 - cur]
        p(f"s_waitcnt vmcnt({wv}) lgkmcnt(0)")
        if barrier: p("s_barrier")
        n = 0
        for a in range(4):
            for ks in range(2):
                f = vVf + (a * 2 + ks) * 4
                p(f"{MF} {rg(vO+16*a,16)}, {rg(f,4)}, {rg(vP+4*ks,4)}, {rg(vO+16*a,16)}")
                if read_k:
                    p(f"ds_read_b128 {rg(vKf+4*n,4)}, v{vKA+n}")
                if issue and n == 0:
                    p(f"s_add_u32 m0, s{sIss}, s{sW4096}")
                    p(f"s_add_u32 s{sT0}, s{sOff}, {2*32768}")
                if issue and n in (1, 3, 5, 7):
                    u = (n - 1) // 2
                    p(f"buffer_load_dwordx4 v{vKo+u}, s[{rK}:{rK+3}], s{sT0} offen offset:{u*1024}{NT} lds")
                if n == 2 and do_tmax:
                    tmax(Sn)
                n += 1
        if issue:
            advance_slot(sIss)
            p(f"s_add_u32 s{sOff}, s{sOff}, 32768")
        advance_slot(sRV); advance_slot(sRV)
        advance_slot(sRK); advance_slot(sRK)
        v_addrs(sRV)
        k_addrs(sRK)
        if extra: extra()

    def rescale(tag):
        p.label(f"K1_RS{tag}")
        p(f"""
        v_max_f32 v3, v{vTn}, v{vM}
        v_sub_f32 v4, v{vM}, v3
        v_exp_f32 v4, v4
        v_mov_b32 v{vM}, v3
        v_add_f32 v{vThr}, 0x41000000, v3
        """)
        p(f"v_mul_f32 v{vL0}, v{vL0}, v4")
        p(f"v_mul_f32 v{vL1}, v{vL1}, v4")
        for i in range(64):
            p(f"v_mul_f32 v{vO+i}, v{vO+i}, v4")
        p(f"s_branch K1_BK{tag}")

    def wo_srd():
        p(f"""
        s_mul_i32 s{sT0}, s{sXc}, {512*1152}
        s_mul_i32 s{sT1}, s{sJj}, 288
        s_add_u32 s{sT0}, s{sT0}, s{sT1}
        s_add_u32 s{rW}, s{sWo}, s{sT0}
        s_addc_u32 s{rW+1}, s{sWo+1}, 0
        s_sub_u32 s{rW+2}, {4096*1152}, s{sT0}
        s_mov_b32 s{rW+3}, 0x20000
        """)
    def wo_touch():
        if not (o.fuse and o.wot): return
        l = nl('WOT')
        p(f"""
        s_cmp_eq_u32 s{sCnt}, 1
        s_cbranch_scc0 {l}
        s_cmp_eq_u32 s{sWave}, 6
        s_cbranch_scc0 {l}
        s_mul_i32 s{sT0}, s{sXc}, {512*1152}
        s_add_u32 s{rX}, s{sWo}, s{sT0}
        s_addc_u32 s{rX+1}, s{sWo+1}, 0
        s_mov_b32 s{rX+2}, {512*1152}
        s_mov_b32 s{rX+3}, 0x20000
        s_lshr_b32 s{sT0}, s2, 3
        s_mul_i32 s{sT0}, s{sT0}, 18432
        v_lshlrev_b32 v2, 7, v{vL}
        buffer_load_dword v{vDum}, v2, s[{rX}:{rX+3}], s{sT0} offen
        s_add_u32 s{sT0}, s{sT0}, 8192
        buffer_load_dword v{vDum}, v2, s[{rX}:{rX+3}], s{sT0} offen
        s_add_u32 s{sT0}, s{sT0}, 8192
        v_cmp_gt_u32 vcc, 16, v{vL}
        s_and_saveexec_b64 s[58:59], vcc
        buffer_load_dword v{vDum}, v2, s[{rX}:{rX+3}], s{sT0} offen
        s_mov_b64 exec, s[58:59]
        """)
        p.label(l)

    wm = lambda keys: min(W[k] for k in keys)
    p.label("K1_LOOP")
    alpha('L0', 0, True, True, wm([('a', 0), ('a', 2), ('a', 4)]))
    beta('L0', 0, True, True, True, wm([('b', 0), ('b', 2), ('b', 4)]))
    alpha('L1', 1, True, True, wm([('a', 1), ('a', 3), ('a', 5)]))
    beta('L1', 1, True, True, True, wm([('b', 1), ('b', 3), ('b', 5)]), extra=wo_touch)
    p(f"""
    s_add_u32 s{sCnt}, s{sCnt}, 1
    s_cmp_lt_u32 s{sCnt}, 3
    s_cbranch_scc1 K1_LOOP
    """)
    stamp(p, o, 4)
    alpha('A', 0, True, False, W[('a', 6)])
    beta('A', 0, False, False, True, 63, barrier=False)
    alpha('B', 1, False, False, W[('a', 7)])
    p("s_waitcnt vmcnt(0) lgkmcnt(0)")
    for a in range(4):
        for ks in range(2):
            f = vVf + (a * 2 + ks) * 4
            p(f"{MF} {rg(vO+16*a,16)}, {rg(f,4)}, {rg(vP+4*ks,4)}, {rg(vO+16*a,16)}")
    stamp(p, o, 5)

    STAT = 0
    NONL = 4096
    OX = R[2]
    WOB = 16384
    vS0 = vS[0]
    def wo_group_dma(gexpr_sgpr):
        p(f"""
        s_mul_i32 s{sT1}, s{gexpr_sgpr}, 9216
        s_add_u32 s{sT1}, s{sT1}, {WOB}
        s_mul_i32 s{sT0}, s{gexpr_sgpr}, 36864
        """)
        for i in range(9):
            if i % 4 == 0:
                p(f"s_add_u32 m0, s{sT1}, {(i//4)*4096}")
            p(f"buffer_load_dwordx4 v{vOff+i}, s[{rW}:{rW+3}], s{sT0} offen offset:{(i%4)*1024} lds")
    p(f"""
    v_add_f32 v{vL0}, v{vL0}, v{vL1}
    v_mov_b32 v{vL1}, v{vL0}
    s_nop 1
    v_permlane32_swap_b32 v{vL0}, v{vL1}
    v_add_f32 v{vThr}, v{vL0}, v{vL1}
    v_and_b32 v7, 31, v{vL}
    s_lshl_b32 s{sT0}, s{sKq}, 9
    s_lshl_b32 s{sT1}, s{sQh}, 8
    s_add_u32 s{sT0}, s{sT0}, s{sT1}
    s_add_u32 s{sT0}, s{sT0}, {STAT}
    s_add_u32 s{sT1}, s{sT1}, {STAT}
    v_lshlrev_b32 v7, 3, v7
    v_add_u32 v2, s{sT0}, v7
    v_add_u32 v7, s{sT1}, v7
    v_lshlrev_b32 v3, 4, v{vL}
    """)
    if o.fuse: wo_srd()
    p(f"""
    s_barrier
    ds_write_b64 v2, v[{vM}:{vM+1}]
    """)
    if o.fuse:
        p(f"""
        s_cmp_eq_u32 s{sWave}, 7
        s_cbranch_scc0 K1_NON2
        v_readfirstlane_b32 s{sT0}, v{vNon}
        v_readfirstlane_b32 s{sT1}, v{vNon+1}
        s_or_b32 s{sT2}, s{sT0}, s{sT1}
        s_cmp_eq_u32 s{sT2}, 0
        s_cselect_b32 s{sN}, s{sN}, s{sT0}
        s_cselect_b32 s{sN+1}, s{sN+1}, s{sT1}
        v_mov_b32 v8, s{sN}
        v_mov_b32 v9, s{sN+1}
        v_mov_b32 v6, {NONL}
        ds_write_b64 v6, v[8:9]
        """)
        p.label("K1_NON2")
    for a in range(1, 4):
        p(f"""
        s_add_u32 s{sT0}, s{sKq}, {a}
        s_and_b32 s{sT0}, s{sT0}, 3
        s_lshl_b32 s{sT2}, s{sQh}, 2
        s_add_u32 s{sT0}, s{sT0}, s{sT2}
        s_mul_i32 s{sT0}, s{sT0}, 12288
        s_add_u32 s{sT0}, s{sT0}, {OX + (3-a)*4096}
        v_add_u32 v4, s{sT0}, v3
        """)
        for g in range(4):
            p(f"ds_write_b128 v4, {rg(vO+16*a+4*g,4)} offset:{g*1024}")
    if o.fuse:
        p(f"""
        s_cmp_lt_u32 s{sWave}, 5
        s_cbranch_scc0 K1_WG1
        """)
        wo_group_dma(sWave)
        p.label("K1_WG1")
    p(f"""
    s_lshl_b32 s{sT0}, s{sQh}, 2
    s_add_u32 s{sT0}, s{sT0}, s{sKq}
    s_mul_i32 s{sT0}, s{sT0}, 12288
    s_add_u32 s{sT0}, s{sT0}, {OX}
    v_add_u32 v4, s{sT0}, v3
    s_waitcnt lgkmcnt(0)
    s_barrier
    """)
    for k in range(4):
        p(f"ds_read_b64 v[{vS0+2*k}:{vS0+2*k+1}], v7 offset:{k*512}")
    for i in range(3):
        for g in range(4):
            p(f"ds_read_b128 {rg(vO+16*(i+1)+4*g,4)}, v4 offset:{i*4096+g*1024}")
    if o.fuse:
        p(f"""
        v_mov_b32 v6, {NONL}
        ds_read_b64 v[8:9], v6
        s_waitcnt lgkmcnt(13)
        """)
    else:
        p("s_waitcnt lgkmcnt(12)")
    m = [vS0 + 0, vS0 + 2, vS0 + 4, vS0 + 6]; l = [vS0 + 1, vS0 + 3, vS0 + 5, vS0 + 7]
    p(f"""
    v_max3_f32 v2, v{m[0]}, v{m[1]}, v{m[2]}
    v_max_f32 v2, v2, v{m[3]}
    """)
    for k in range(4):
        p(f"v_sub_f32 v{m[k]}, v{m[k]}, v2")
    for k in range(4):
        p(f"v_exp_f32 v{m[k]}, v{m[k]}")
    p(f"""
    v_mul_f32 v3, v{m[0]}, v{l[0]}
    v_fmac_f32 v3, v{m[1]}, v{l[1]}
    v_fmac_f32 v3, v{m[2]}, v{l[2]}
    v_fmac_f32 v3, v{m[3]}, v{l[3]}
    v_rcp_f32 v3, v3
    """)
    for k in range(4):
        p(f"v_mul_f32 v{m[k]}, v{m[k]}, v3")
    wr = vS0 + 8
    for kq in range(4):
        p(f"s_cmp_eq_u32 s{sKq}, {kq}")
        p(f"s_cbranch_scc0 K1_WR{kq}")
        for i in range(4):
            p(f"v_mov_b32 v{wr+i}, v{m[(kq+i)&3]}")
        p.label(f"K1_WR{kq}")
    for i in range(16):
        p(f"v_mul_f32 v{vO+i}, v{vO+i}, v{wr}")
    nextra = 1 if o.fuse else 0
    for s in range(3):
        p(f"s_waitcnt lgkmcnt({8-4*s+nextra})")
        for i in range(16):
            p(f"v_fmac_f32 v{vO+i}, v{vO+16*(s+1)+i}, v{wr+s+1}")
    order = [0, 2, 1, 3]
    for idx, g in enumerate(order):
        p(f"v_cvt_pk_bf16_f32 v{vP+2*idx}, v{vO+4*g}, v{vO+4*g+1}")
        p(f"v_cvt_pk_bf16_f32 v{vP+2*idx+1}, v{vO+4*g+2}, v{vO+4*g+3}")
    SC = ' sc1' if o.fuse else ''
    p(f"""
    v_and_b32 v2, 15, v{vL}
    v_lshrrev_b32 v3, 5, v{vL}
    v_lshl_add_u32 v2, v3, 4, v2
    v_lshlrev_b32 v2, 4, v2
    v_bfe_u32 v3, v{vL}, 4, 1
    v_lshl_add_u32 v2, v3, 12, v2
    s_lshl_b32 s{sT0}, s{sWg}, 14
    s_lshl_b32 s{sT1}, s{sQh}, 13
    s_add_u32 s{sT0}, s{sT0}, s{sT1}
    s_lshl_b32 s{sT1}, s{sKq}, 10
    s_add_u32 s{sT0}, s{sT0}, s{sT1}
    buffer_store_dwordx4 {rg(vP,4)}, v2, s[{rO}:{rO+3}], s{sT0} offen{SC}
    buffer_store_dwordx4 {rg(vP+4,4)}, v2, s[{rO}:{rO+3}], s{sT0} offen offset:512{SC}
    """)
    if not o.fuse:
        if o.stamps:
            p("s_waitcnt vmcnt(0)")
            stamp(p, o, 6)
            stamp_flush(p, o, 0, 7, sWs)
        p("s_branch K1_END")
    else:
        tail(p, o, locals())
    for tag in ('L0', 'L1', 'A', 'B'):
        rescale(tag)
    p.label("K1_END")
    p("s_endpgm")
    return p

def gemm_body(p, vAcc, vB, vF, vAd, vLA, base_expr_instr):
    p(base_expr_instr)
    for kk in range(8):
        if kk == 4:
            p(f"v_add_u32 v{vAd}, {4*9216}, v{vAd}")
        off = (kk % 4) * 9216
        p(f"s_waitcnt vmcnt({7-kk})")
        for half in ((0, 5), (5, 9)):
            for nt in range(*half):
                f = vF + 4 * nt
                p(f"ds_read_b64_tr_b16 {rg(f,2)}, v{vAd} offset:{off+nt*32}")
                p(f"ds_read_b64_tr_b16 {rg(f+2,2)}, v{vAd} offset:{off+4608+nt*32}")
            n = half[1] - half[0]
            for idx, nt in enumerate(range(*half)):
                f = vF + 4 * nt
                p(f"s_waitcnt lgkmcnt({2*(n-1-idx)})")
                p(f"{MF16} {rg(vAcc+4*nt,4)}, {rg(f,4)}, {rg(vB+4*kk,4)}, {rg(vAcc+4*nt,4)}")

def tail(p, o, L):
    g = lambda n: L[n]
    sWave, sB, sXc, sJj, sWg, sT0, sT1, sT2 = g('sWave'), g('sB'), g('sXc'), g('sJj'), g('sWg'), g('sT0'), g('sT1'), g('sT2')
    rO, rW, rX, sN, sTag, sOut, sWs = g('rO'), g('rW'), g('rX'), g('sN'), g('sTag'), g('sOut'), g('sWs')
    vL, vOff, WOB = g('vL'), g('vOff'), g('WOB')
    wo_group_dma = g('wo_group_dma')
    sQt, sKh2 = 40, 41
    vAcc, vB, vF, vLA, vAd = 28, 64, 96, 19, 20
    p(f"""
    s_waitcnt lgkmcnt(0)
    v_readfirstlane_b32 s{sN}, v8
    v_readfirstlane_b32 s{sN+1}, v9
    s_barrier
    """)
    p(f"s_add_u32 s{sT2}, s{sWave}, 5")
    wo_group_dma(sT2)
    p(f"""
    s_cmp_lt_u32 s{sWave}, 3
    s_cbranch_scc0 T_G2
    s_add_u32 s{sT2}, s{sWave}, 13
    """)
    wo_group_dma(sT2)
    p(f"""
    s_waitcnt vmcnt(18)
    s_branch T_G3
    """)
    p.label("T_G2")
    p("s_waitcnt vmcnt(9)")
    p.label("T_G3")
    p("s_barrier")
    if o.stamps: stamp(p, o, 6)
    p(f"""
    s_and_b32 s{sQt}, s{sWave}, 3
    s_lshr_b32 s{sKh2}, s{sWave}, 2
    s_cmp_eq_u32 s{sWave}, 7
    s_cbranch_scc0 T_NOPOLL
    v_mov_b32 v2, s{sN}
    s_lshl_b32 s{sT0}, s{sWg}, 7
    s_add_u32 s{sT0}, s{sT0}, {WS_FLAG}
    v_mov_b32 v3, 0
    v_cmp_eq_u32 vcc, 0, v{vL}
    s_and_saveexec_b64 s[58:59], vcc
    buffer_store_dword v2, v3, s[{rO}:{rO+3}], s{sT0} offen sc1
    s_mov_b64 exec, s[58:59]
    s_and_b32 s{sT0}, s{sWg}, 0xfc
    s_lshl_b32 s{sT0}, s{sT0}, 7
    s_add_u32 s{sT0}, s{sT0}, {WS_FLAG}
    v_and_b32 v3, 3, v{vL}
    v_lshlrev_b32 v3, 7, v3
    s_mov_b32 s{sT1}, 0
    """)
    p.label("T_POLL1")
    p(f"""
    buffer_load_dword v4, v3, s[{rO}:{rO+3}], s{sT0} offen sc1
    s_add_u32 s{sT1}, s{sT1}, 1
    s_waitcnt vmcnt(0)
    v_cmp_ne_u32 vcc, v4, v2
    s_cmp_lt_u32 s{sT1}, {SPIN}
    s_cbranch_scc0 T_NOPOLL
    s_cbranch_vccnz T_POLL1
    """)
    p.label("T_NOPOLL")
    p(f"""
    v_lshrrev_b32 v2, 4, v{vL}
    v_and_b32 v3, 15, v{vL}
    v_lshrrev_b32 v4, 2, v3
    v_and_b32 v6, 3, v3
    v_lshl_add_u32 v2, v2, 2, v4
    v_mul_u32_u24 v2, 288, v2
    v_lshl_add_u32 v{vLA}, v6, 3, v2
    v_lshlrev_b32 v5, 4, v{vL}
    s_and_b32 s{sTag}, s{sN}, 0xfff
    s_lshr_b32 s{sTag+1}, s{sN}, 12
    s_and_b32 s{sTag+1}, s{sTag+1}, 0xfff
    s_lshr_b32 s{sTag+2}, s{sN}, 24
    s_lshl_b32 s{sT0}, s{sN+1}, 8
    s_or_b32 s{sTag+2}, s{sTag+2}, s{sT0}
    s_and_b32 s{sTag+2}, s{sTag+2}, 0xfff
    s_lshr_b32 s{sTag+3}, s{sN+1}, 4
    s_and_b32 s{sTag+3}, s{sTag+3}, 0xfff
    """)
    for i in range(36):
        p(f"v_mov_b32 v{vAcc+i}, 0")
    p(f"""
    s_waitcnt vmcnt(0)
    s_barrier
    """)
    if o.stamps: stamp(p, o, 7)
    p(f"""
    s_and_b32 s{sT0}, s{sWg}, 0xfc
    s_lshl_b32 s{sT1}, s{sKh2}, 1
    s_add_u32 s{sT0}, s{sT0}, s{sT1}
    s_lshl_b32 s{sT0}, s{sT0}, 14
    s_lshl_b32 s{sT1}, s{sQt}, 12
    s_add_u32 s{sT0}, s{sT0}, s{sT1}
    s_add_u32 s{sT1}, s{sT0}, 16384
    """)
    for kk in range(8):
        p(f"buffer_load_dwordx4 {rg(vB+4*kk,4)}, v5, s[{rO}:{rO+3}], s{sT0 if kk < 4 else sT1} offen offset:{(kk&3)*1024} sc1")
    p(f"s_mul_i32 s{sT2}, s{sKh2}, {8*9216}")
    p(f"s_add_u32 s{sT2}, s{sT2}, {WOB}")
    gemm_body(p, vAcc, vB, vF, vAd, vLA, f"v_add_u32 v{vAd}, s{sT2}, v{vLA}")
    if o.stamps: stamp(p, o, 8)
    p(f"""
    s_barrier
    s_mul_i32 s{sT0}, s{sQt}, 9216
    v_add_u32 v2, s{sT0}, v5
    s_cmp_eq_u32 s{sKh2}, 0
    s_cbranch_scc0 T_H1
    """)
    for nt in range(5, 9):
        p(f"ds_write_b128 v2, {rg(vAcc+4*nt,4)} offset:{nt*1024}")
    p("s_branch T_H2")
    p.label("T_H1")
    for nt in range(0, 5):
        p(f"ds_write_b128 v2, {rg(vAcc+4*nt,4)} offset:{nt*1024}")
    p.label("T_H2")
    TAGGED = (o.fuse == 2)
    p(f"""
    v_mov_b32 v7, 0xfffff000
    s_lshl_b32 s{sT0}, s{sXc}, 3
    s_add_u32 s{sT0}, s{sT0}, s{sB}
    s_lshl_b32 s{sT0}, s{sT0}, 2
    s_add_u32 s{sT0}, s{sT0}, s{sJj}
    s_lshl_b32 s{sT0}, s{sT0}, 2
    s_add_u32 s{sT0}, s{sT0}, s{sQt}
    s_mul_i32 s{sT0}, s{sT0}, 9216
    s_add_u32 s{sT0}, s{sT0}, {WS_PART}
    s_waitcnt lgkmcnt(0)
    s_barrier
    s_cmp_eq_u32 s{sKh2}, 0
    s_cbranch_scc0 T_H3
    """)
    def fin(nts):
        for nt in nts:
            p(f"ds_read_b128 {rg(vF+4*nt,4)}, v2 offset:{nt*1024}")
        for idx, nt in enumerate(nts):
            p(f"s_waitcnt lgkmcnt({len(nts)-1-idx})")
            for e in range(4):
                p(f"v_add_f32 v{vAcc+4*nt+e}, v{vAcc+4*nt+e}, v{vF+4*nt+e}")
            if TAGGED:
                for e in range(4):
                    p(f"v_and_b32 v{vAcc+4*nt+e}, v7, v{vAcc+4*nt+e}")
                    p(f"v_or_b32 v{vAcc+4*nt+e}, s{sTag+e}, v{vAcc+4*nt+e}")
            p(f"s_add_u32 s{sT1}, s{sT0}, {(nt//4)*4096}")
            p(f"buffer_store_dwordx4 {rg(vAcc+4*nt,4)}, v5, s[{rO}:{rO+3}], s{sT1} offen offset:{(nt%4)*1024}{' sc1' if TAGGED else ''}")
    fin(list(range(0, 5)))
    p("s_branch T_H4")
    p.label("T_H3")
    fin(list(range(5, 9)))
    p.label("T_H4")
    if o.stamps: stamp(p, o, 9)
    if TAGGED:
        vX = 100
        p(f"""
        s_cmp_ge_u32 s{sWave}, 5
        s_cbranch_scc1 T_DONE
        v_cmp_gt_u32 vcc, 288, v0
        s_and_saveexec_b64 s[58:59], vcc
        s_mul_i32 s{sT0}, s{sXc}, 288
        v_add_u32 v2, s{sT0}, v0
        v_lshlrev_b32 v3, 4, v2
        s_lshl_b32 s{sT0}, s{sB}, 2
        s_add_u32 s{sT0}, s{sT0}, s{sJj}
        s_mul_i32 s{sT0}, s{sT0}, 36864
        s_add_u32 s{sT0}, s{sT0}, {WS_PART}
        s_mov_b32 s{rX}, s{sOut}
        s_mov_b32 s{rX+1}, s{sOut+1}
        s_mov_b32 s{rX+2}, {512*576*2}
        s_mov_b32 s{rX+3}, 0x20000
        v_lshrrev_b32 v4, 6, v2
        v_mul_u32_u24 v5, 57, v4
        v_lshrrev_b32 v5, 9, v5
        v_mul_u32_u24 v6, 9, v5
        v_sub_u32 v6, v4, v6
        v_and_b32 v4, 15, v2
        v_lshl_add_u32 v4, v5, 4, v4
        s_lshl_b32 s{sT1}, s{sB}, 6
        v_add_u32 v4, s{sT1}, v4
        s_movk_i32 s{sT1}, 1152
        v_mul_u32_u24 v4, s{sT1}, v4
        v_lshlrev_b32 v6, 5, v6
        v_add_u32 v4, v4, v6
        v_bfe_u32 v6, v2, 4, 2
        v_lshl_add_u32 v4, v6, 3, v4
        s_mul_i32 s{sT1}, s{sJj}, 288
        v_add_u32 v4, s{sT1}, v4
        s_mov_b32 s{sT2}, 0
        """)
        p.label("T_POLL2")
        p(f"s_mov_b32 s{sT1}, s{sT0}")
        for s in range(8):
            p(f"buffer_load_dwordx4 {rg(vX+4*s,4)}, v3, s[{rO}:{rO+3}], s{sT1} offen sc1")
            if s < 7: p(f"s_add_u32 s{sT1}, s{sT1}, {32*36864}")
        p(f"""
        s_add_u32 s{sT2}, s{sT2}, 1
        v_mov_b32 v6, 0
        """)
        for s in range(8):
            p(f"s_waitcnt vmcnt({7-s})")
            for e in range(4):
                p(f"v_xor_b32 v8, s{sTag+e}, v{vX+4*s+e}")
                p(f"v_or_b32 v6, v6, v8")
        p(f"""
        v_and_b32 v6, 0xfff, v6
        v_cmp_ne_u32 vcc, 0, v6
        s_cmp_lt_u32 s{sT2}, {SPIN}
        s_cbranch_scc0 T_SUM
        s_cbranch_vccnz T_POLL2
        """)
        p.label("T_SUM")
        for s in range(8):
            for e in range(4):
                p(f"v_and_b32 v{vX+4*s+e}, v7, v{vX+4*s+e}")
        for s in range(1, 8):
            for e in range(4):
                p(f"v_add_f32 v{vX+e}, v{vX+e}, v{vX+4*s+e}")
        p(f"""
        v_cvt_pk_bf16_f32 v8, v{vX}, v{vX+1}
        v_cvt_pk_bf16_f32 v9, v{vX+2}, v{vX+3}
        buffer_store_dwordx2 v[8:9], v4, s[{rX}:{rX+3}], 0 offen
        s_mov_b64 exec, s[58:59]
        """)
        p.label("T_DONE")
    if o.stamps:
        p("s_waitcnt vmcnt(0)")
        p("s_memrealtime s[90:91]" if o.stamps != 2 else "s_memtime s[90:91]")
        p("s_waitcnt lgkmcnt(0)")
        p("s_mov_b32 s60, s60")
        gen_flush_final(p, o, sWs)
    p("s_branch K1_END")

def gen_flush_final(p, o, sws):
    tag = "STFm"
    if o.stamps == 3:
        p(f"""
        s_cmp_eq_u32 s2, 0
        s_cbranch_scc0 {tag}
        s_load_dwordx2 s[96:97], s[0:1], 48
        s_waitcnt lgkmcnt(0)
        v_cmp_eq_u32 vcc, 0, v0
        s_and_saveexec_b64 s[92:93], vcc
        s_cbranch_execz {tag}x
        v_mov_b32 v252, 0
        """)
        for i in range(10):
            p(f"v_mov_b32 v250, s{60+2*i}")
            p(f"global_store_dword v252, v250, s[96:97] offset:{16+4*i}")
        p("v_mov_b32 v250, s90")
        p(f"global_store_dword v252, v250, s[96:97] offset:{16+40}")
        p.label(tag + 'x')
        p("s_mov_b64 exec, s[92:93]")
        p.label(tag)
        return
    p(f"""
    v_cmp_eq_u32 vcc, {o.stampwave*64}, v0
    s_and_saveexec_b64 s[92:93], vcc
    s_cbranch_execz {tag}
    s_lshl_b32 s94, s2, 7
    s_add_u32 s94, s94, {gen.WS_STAMP}
    s_add_u32 s96, s{sws}, s94
    s_addc_u32 s97, s{sws+1}, 0
    v_mov_b32 v252, 0
    """)
    for i in range(10):
        p(f"""
        v_mov_b32 v250, s{60+2*i}
        v_mov_b32 v251, s{61+2*i}
        global_store_dwordx2 v252, v[250:251], s[96:97] offset:{8*i}
        """)
    p(f"""
    v_mov_b32 v250, s90
    v_mov_b32 v251, s91
    global_store_dwordx2 v252, v[250:251], s[96:97] offset:80
    """)
    p.label(tag)
    p("s_mov_b64 exec, s[92:93]")

def gen_k2(o):
    p = Prog()
    sWo, sWs = 4, 6
    rW, rO = 8, 12
    sWave, sXc, sB, sNg, sT0, sT1, sT2, sQt, sKh2 = 20, 21, 22, 23, 24, 25, 26, 27, 28
    vL = 1; vOff = 10; vLA = 19; vAd = 20; vAcc = 28; vB = 64; vF = 96
    p(f"""
    s_cmp_ge_u32 s2, 256
    s_cbranch_scc1 K2_END
    s_load_dwordx2 s[4:5], s[0:1], 32
    s_load_dwordx2 s[6:7], s[0:1], 56
    v_and_b32 v{vL}, 63, v0
    v_lshrrev_b32 v2, 6, v0
    s_and_b32 s{sXc}, s2, 7
    s_lshr_b32 s{sT1}, s2, 3
    v_readfirstlane_b32 s{sWave}, v2
    s_lshr_b32 s{sB}, s{sT1}, 2
    s_and_b32 s{sNg}, s{sT1}, 3
    s_and_b32 s{sQt}, s{sWave}, 3
    s_lshr_b32 s{sKh2}, s{sWave}, 2
    s_movk_i32 s{sT0}, 3641
    s_movk_i32 s{sT1}, 1152
    """)
    for i in range(9):
        p(f"""
        v_add_u32 v2, {64*i}, v{vL}
        v_mul_u32_u24 v3, s{sT0}, v2
        v_lshrrev_b32 v3, 16, v3
        v_mul_u32_u24 v4, 18, v3
        v_sub_u32 v4, v2, v4
        v_mul_u32_u24 v3, s{sT1}, v3
        v_lshl_add_u32 v3, v4, 4, v3
        v_subrev_u32 v{vOff+i}, {(i%4)*1024}, v3
        """)
    p(f"""
    v_lshrrev_b32 v2, 4, v{vL}
    v_and_b32 v3, 15, v{vL}
    v_lshrrev_b32 v4, 2, v3
    v_and_b32 v6, 3, v3
    v_lshl_add_u32 v2, v2, 2, v4
    v_mul_u32_u24 v2, 288, v2
    v_lshl_add_u32 v{vLA}, v6, 3, v2
    v_lshlrev_b32 v5, 4, v{vL}
    s_waitcnt lgkmcnt(0)
    """)
    stamp(p, o, 0)
    p(f"""
    s_mul_i32 s{sT0}, s{sXc}, {512*1152}
    s_mul_i32 s{sT1}, s{sNg}, 288
    s_add_u32 s{sT0}, s{sT0}, s{sT1}
    s_add_u32 s{rW}, s{sWo}, s{sT0}
    s_addc_u32 s{rW+1}, s{sWo+1}, 0
    s_sub_u32 s{rW+2}, {4096*1152}, s{sT0}
    s_mov_b32 s{rW+3}, 0x20000
    s_mov_b32 s{rO}, s{sWs}
    s_mov_b32 s{rO+1}, s{sWs+1}
    s_mov_b32 s{rO+2}, {WS_SIZE}
    s_mov_b32 s{rO+3}, 0x20000
    """)
    for rep in range(2):
        p(f"""
        s_add_u32 s{sT0}, s{sWave}, {8*rep}
        s_mul_i32 s{sT1}, s{sT0}, 9216
        s_mul_i32 s{sT0}, s{sT0}, 36864
        """)
        for i in range(9):
            if i % 4 == 0:
                p(f"s_add_u32 m0, s{sT1}, {(i//4)*4096}")
            p(f"buffer_load_dwordx4 v{vOff+i}, s[{rW}:{rW+3}], s{sT0} offen offset:{(i%4)*1024} lds")
    p(f"""
    s_lshl_b32 s{sT0}, s{sB}, 3
    s_add_u32 s{sT0}, s{sT0}, s{sXc}
    s_lshl_b32 s{sT0}, s{sT0}, 2
    s_lshl_b32 s{sT1}, s{sKh2}, 1
    s_add_u32 s{sT0}, s{sT0}, s{sT1}
    s_lshl_b32 s{sT0}, s{sT0}, 14
    s_lshl_b32 s{sT1}, s{sQt}, 12
    s_add_u32 s{sT0}, s{sT0}, s{sT1}
    s_add_u32 s{sT1}, s{sT0}, 16384
    """)
    for kk in range(8):
        p(f"buffer_load_dwordx4 {rg(vB+4*kk,4)}, v5, s[{rO}:{rO+3}], s{sT0 if kk < 4 else sT1} offen offset:{(kk&3)*1024}")
    for i in range(36):
        p(f"v_mov_b32 v{vAcc+i}, 0")
    p(f"""
    s_waitcnt vmcnt(8)
    s_barrier
    s_mul_i32 s{sT2}, s{sKh2}, {8*9216}
    """)
    stamp(p, o, 1)
    gemm_body(p, vAcc, vB, vF, vAd, vLA, f"v_add_u32 v{vAd}, s{sT2}, v{vLA}")
    stamp(p, o, 2)
    p(f"""
    s_barrier
    s_mul_i32 s{sT0}, s{sQt}, 9216
    v_add_u32 v2, s{sT0}, v5
    s_cmp_eq_u32 s{sKh2}, 0
    s_cbranch_scc0 K2_H1
    """)
    for nt in range(5, 9):
        p(f"ds_write_b128 v2, {rg(vAcc+4*nt,4)} offset:{nt*1024}")
    p("s_branch K2_H2")
    p.label("K2_H1")
    for nt in range(0, 5):
        p(f"ds_write_b128 v2, {rg(vAcc+4*nt,4)} offset:{nt*1024}")
    p.label("K2_H2")
    p(f"""
    s_lshl_b32 s{sT0}, s{sXc}, 3
    s_add_u32 s{sT0}, s{sT0}, s{sB}
    s_lshl_b32 s{sT0}, s{sT0}, 2
    s_add_u32 s{sT0}, s{sT0}, s{sNg}
    s_lshl_b32 s{sT0}, s{sT0}, 2
    s_add_u32 s{sT0}, s{sT0}, s{sQt}
    s_mul_i32 s{sT0}, s{sT0}, 9216
    s_add_u32 s{sT0}, s{sT0}, {WS_PART}
    s_waitcnt lgkmcnt(0)
    s_barrier
    s_cmp_eq_u32 s{sKh2}, 0
    s_cbranch_scc0 K2_H3
    """)
    def fin(nts):
        for nt in nts:
            p(f"ds_read_b128 {rg(vF+4*nt,4)}, v2 offset:{nt*1024}")
        for idx, nt in enumerate(nts):
            p(f"s_waitcnt lgkmcnt({len(nts)-1-idx})")
            for e in range(4):
                p(f"v_add_f32 v{vAcc+4*nt+e}, v{vAcc+4*nt+e}, v{vF+4*nt+e}")
            p(f"s_add_u32 s{sT1}, s{sT0}, {(nt//4)*4096}")
            p(f"buffer_store_dwordx4 {rg(vAcc+4*nt,4)}, v5, s[{rO}:{rO+3}], s{sT1} offen offset:{(nt%4)*1024}")
    fin(list(range(0, 5)))
    p("s_branch K2_H4")
    p.label("K2_H3")
    fin(list(range(5, 9)))
    p.label("K2_H4")
    if o.stamps:
        stamp(p, o, 3)
        p("s_waitcnt vmcnt(0)")
        stamp(p, o, 4)
        stamp_flush(p, o, 1, 5, sWs)
    p.label("K2_END")
    p("s_endpgm")
    return p

def gen_k3(o):
    gen.WS_PART = WS_PART
    return gen.gen_k3(o)

def emit(o):
    ks = [('standalone__gqa_block_cached__near_ridge_kernel' if o.fuse == 2 else 'gqa_main_kernel', gen_main(o), 256, 512, 163840)]
    if o.fuse == 0:
        ks += [('gqa_oproj_kernel', gen_k2(o), 256, 512, 147456)]
    if o.fuse <= 1:
        ks += [('gqa_reduce_kernel', gen_k3(o), 288, 256, 0)]
    if o.dbg == 2:
        ks = ks[:1]
    out = [HEADER.rstrip()]
    for name, _, g, b, lds in ks:
        if len(ks) == 1 and o.fuse == 2:
            out.append(f"; @launch grid=({g},1,1) block=({b},1,1) lds={lds}")
        else:
            out.append(f"; @launch kernel={name} grid=({g},1,1) block=({b},1,1) lds={lds}")
    out.append('.amdgcn_target "amdgcn-amd-amdhsa--gfx950"')
    out.append('.text')
    for name, p, g, b, lds in ks:
        n = p.fix_hazards()
        errs = p.lint_waits()
        for e in errs[:20]:
            print(f"LINT[{name}]: {e}", file=sys.stderr)
        nv, ns = p.max_regs()
        print(f"{name}: {len(p.ins)} instrs, vgpr {nv}, sgpr {ns}, nops inserted {n}", file=sys.stderr)
        out.append(f".globl {name}\n.p2align 8\n.type {name},@function\n{name}:")
        out.append(p.text())
        out.append(kd(name, max(nv, 8), max(ns, 16)))
    return '\n'.join(out) + '\n'

if __name__ == '__main__':
    ap = argparse.ArgumentParser()
    ap.add_argument('-o', default='standalone__gqa_block_cached__near_ridge.s')
    for k, d in OPTS.items():
        ap.add_argument('--' + k, type=int, default=d)
    a = ap.parse_args()
    o = Opt()
    for k in OPTS:
        setattr(o, k, getattr(a, k))
    open(a.o, 'w').write(emit(o))
```

```python
import sys, argparse
from asmlib import Prog
import gen
from gen import f32bits, SCALE_LOG2E, stamp_flush, kd, HEADER
from gen import stamp as _stamp
STSETS = {0: {0:0,1:1,2:2,3:3,4:4,5:5,6:6,7:7,8:8,9:9},
          1: {5:0, 'e1':1, 'e2':2, 'e3':3, 'e4':4, 6:5, 7:6, 'g0':7, 8:8, 9:9},
          3: {'c0':0,'c1':1,'c2':2,'c3':3,'c4':4,'c5':5,'c6':6,'c7':7,'c8':8, 2:9},
          4: {0:0,'c0':1,'w1':2,'c1':3,'m1':4,'w2':5,'c2':6,'m2':7,'w3':8,'c3':9},
          2: {7:0, 'g0':1, 8:2, 'r1':3, 'r2':4, 'r3':5, 9:6, 'p1':7, 'p2':8, 'p3':9}}
def stamp(p, o, name):
    m = STSETS[getattr(o, 'stset', 0)]
    if name in m: _stamp(p, o, m[name])


WS_O = 0
WS_PART = 4 << 20
WS_FLAG = 16 << 20
WS_SIZE = 17 << 20
MF = 'v_mfma_f32_32x32x16_bf16'
MF16 = 'v_mfma_f32_16x16x32_bf16'
def rg(b, n): return f"v[{b}:{b+n-1}]" if n > 1 else f"v{b}"

class Opt(gen.Opt):
    pass

OPTS = dict(prepoll=1, early=1, dry=0, dmapos=1, skew=0, stset=0, nt=1, dbg=0, stamps=0, stampwave=0, wt=1, kdel=5, k1del=5, late=0, fuse=2, wot=1)
SPIN = 1 << 18

def gen_main(o):
    p = Prog()
    NT = ' nt' if o.nt else ''
    sX, sK, sV, sWq, sWs, sWo = 4, 6, 8, 10, 12, 14
    rK, rV, rW, rX, rO = 16, 20, 24, 28, 32
    sWave, sB, sH, sXc, sQh, sKq = 36, 37, 38, 39, 40, 41
    sRK, sRV, sOff, sIss, sCnt, sJj = 42, 43, 44, 45, 46, 47
    sC, sT0, sT1, sT2 = 48, 49, 50, 51
    sW4096, sWg = 53, 54
    sPar, sStep, sEK, sRngV, sKprev, sOffB = 55, 56, 57, 52, 98, 99
    vOb = 250
    sOut, sDbg, sN, sTag = 80, 82, 84, 86
    vL = 1
    vKo = 10; vVo = 14
    vWo = 15; vXo = 17; vLW = 21; vLX = 22
    vVA = 15; vTn = 19
    vLK = 23; vLV = 24
    vKA = 28
    vM, vThr, vL0, vL1 = 36, 37, 38, 39
    vQ = 40
    vS = [72, 88]
    vP = 104
    vKf = 112
    vVf = 144
    vO = 176
    vOff = 240
    vDum = 249
    vNon = 20
    R = [i * 32768 for i in range(5)]
    QS = [139264, 65536, 90112, 114688]
    lab = [0]
    def nl(s):
        lab[0] += 1
        return f"K1_{s}{lab[0]}"
    vq = []
    def vissue(tag, n): vq.extend([tag] * n)
    def vneed(*tags):
        idx = [i for i, t in enumerate(vq) if t in tags]
        if not idx: return 63
        n = len(vq) - 1 - idx[-1]
        del vq[:idx[-1] + 1]
        return min(n, 63)

    p(f"""
    s_cmp_ge_u32 s2, 256
    s_cbranch_scc1 K1_END
    s_load_dwordx4 s[4:7], s[0:1], 0
    s_load_dwordx4 s[8:11], s[0:1], 16
    s_load_dwordx2 s[12:13], s[0:1], 56
    s_load_dwordx2 s[14:15], s[0:1], 32
    s_load_dwordx4 s[80:83], s[0:1], 40
    v_and_b32 v{vL}, 63, v0
    v_lshrrev_b32 v2, 6, v0
    s_and_b32 s{sXc}, s2, 7
    s_lshr_b32 s{sT1}, s2, 3
    v_readfirstlane_b32 s{sWave}, v2
    s_lshr_b32 s{sB}, s{sT1}, 2
    s_and_b32 s{sJj}, s{sT1}, 3
    s_lshl_b32 s{sH}, s{sXc}, 2
    s_add_u32 s{sH}, s{sH}, s{sJj}
    s_lshl_b32 s{sWg}, s{sB}, 5
    s_add_u32 s{sWg}, s{sWg}, s{sH}
    s_and_b32 s{sQh}, s{sWave}, 1
    s_lshr_b32 s{sKq}, s{sWave}, 1
    s_and_b32 s{sPar}, s{sH}, {1 if o.skew else 0}
    s_lshl_b32 s{sW4096}, s{sWave}, 12
    s_mov_b32 s{sC}, 0x{f32bits(SCALE_LOG2E):08x}
    v_and_b32 v2, 15, v{vL}
    v_lshrrev_b32 v3, 4, v{vL}
    v_lshrrev_b32 v4, 2, v2
    v_and_b32 v5, 3, v2
    v_lshrrev_b32 v6, 5, v{vL}
    v_and_b32 v7, 31, v{vL}
    v_lshlrev_b32 v8, 2, v3
    v_xor_b32 v8, v8, v2
    v_lshlrev_b32 v8, 4, v8
    v_lshl_add_u32 v{vVo}, v3, 8, v8
    v_lshl_add_u32 v{vWo}, v3, 13, v8
    v_add_u32 v{vWo+1}, 31744, v{vWo}
    s_lshl_b32 s{sT0}, s{sWave}, 3
    s_movk_i32 s{sT1}, 1152
    v_lshrrev_b32 v8, 3, v{vL}
    v_add_u32 v8, s{sT0}, v8
    v_mul_lo_u32 v8, v8, s{sT1}
    s_lshl_b32 s{sT0}, s{sWave}, 2
    v_add_u32 v9, s{sT0}, v3
    v_and_b32 v9, 7, v9
    v_and_b32 v{vXo}, 7, v{vL}
    v_xor_b32 v9, v9, v{vXo}
    v_lshl_add_u32 v{vXo}, v9, 4, v8
    """)
    p("s_waitcnt lgkmcnt(0)")
    stamp(p, o, 0)
    p(f"""
    s_lshl_b32 s{sT0}, s{sH}, 8
    s_add_u32 s{rW}, s{sWq}, s{sT0}
    s_addc_u32 s{rW+1}, s{sWq+1}, 0
    s_sub_u32 s{rW+2}, {576*8192}, s{sT0}
    s_mov_b32 s{rW+3}, 0x20000
    s_mul_i32 s{sT0}, s{sB}, {64*1152}
    s_add_u32 s{rX}, s{sX}, s{sT0}
    s_addc_u32 s{rX+1}, s{sX+1}, 0
    s_mov_b32 s{rX+2}, {64*1152}
    s_mov_b32 s{rX+3}, 0x20000
    """)

    def issue_chunk(c):
        qs = QS[c % 4]
        p(f"""
        s_lshl_b32 s{sT0}, s{sWave}, 16
        s_add_u32 s{sT0}, s{sT0}, {c*524288}
        s_lshr_b32 s{sT1}, s{sW4096}, 1
        s_add_u32 m0, s{sT1}, {qs}
        """)
        for u in range(2):
            p(f"buffer_load_dwordx4 v{vWo+u}, s[{rW}:{rW+3}], s{sT0} offen offset:{u*1024} lds")
        p(f"""
        s_lshr_b32 s{sT1}, s{sW4096}, 2
        s_add_u32 m0, s{sT1}, {qs+16384}
        s_movk_i32 s{sT0}, {c*128}
        buffer_load_dwordx4 v{vXo}, s[{rX}:{rX+3}], s{sT0} offen lds
        """)
        vissue(('C', c), 3)

    if o.wt:
        p(f"""
        s_cmp_eq_u32 s{sWave}, 4
        s_cbranch_scc0 K1_WT1
        v_lshrrev_b32 v8, 1, v{vL}
        v_and_b32 v9, 1, v{vL}
        v_lshlrev_b32 v8, 13, v8
        v_lshl_add_u32 v8, v9, 7, v8
        s_mul_i32 s{sT0}, s{sB}, {72*8192}
        buffer_load_dword v{vDum}, v8, s[{rW}:{rW+3}], s{sT0} offen
        s_add_u32 s{sT0}, s{sT0}, {32*8192}
        buffer_load_dword v{vDum}, v8, s[{rW}:{rW+3}], s{sT0} offen
        s_add_u32 s{sT0}, s{sT0}, {32*8192}
        v_cmp_gt_u32 vcc, 16, v{vL}
        s_and_saveexec_b64 s[58:59], vcc
        buffer_load_dword v{vDum}, v8, s[{rW}:{rW+3}], s{sT0} offen
        s_mov_b64 exec, s[58:59]
        """)
        p.label("K1_WT1")
        p(f"""
        s_cmp_eq_u32 s{sWave}, 5
        s_cbranch_scc0 K1_WT2
        v_lshlrev_b32 v9, 7, v{vL}
        s_mul_i32 s{sT0}, s{sJj}, 18432
        buffer_load_dword v{vDum}, v9, s[{rX}:{rX+3}], s{sT0} offen
        s_add_u32 s{sT0}, s{sT0}, 8192
        buffer_load_dword v{vDum}, v9, s[{rX}:{rX+3}], s{sT0} offen
        s_add_u32 s{sT0}, s{sT0}, 8192
        v_cmp_gt_u32 vcc, 16, v{vL}
        s_and_saveexec_b64 s[58:59], vcc
        buffer_load_dword v{vDum}, v9, s[{rX}:{rX+3}], s{sT0} offen
        s_mov_b64 exec, s[58:59]
        """)
        p.label("K1_WT2")
    for c in range(4):
        issue_chunk(c)
    if o.fuse:
        p(f"""
        s_cmp_eq_u32 s2, 0
        s_cbranch_scc0 K1_NON
        s_cmp_eq_u32 s{sWave}, 7
        s_cbranch_scc0 K1_NON
        s_memrealtime s[{sN}:{sN+1}]
        s_waitcnt lgkmcnt(0)
        s_or_b32 s{sN}, s{sN}, 1
        v_mov_b32 v8, s{sN}
        v_mov_b32 v9, s{sN+1}
        v_mov_b32 v{vNon}, 0
        v_cmp_eq_u32 vcc, 0, v{vL}
        s_and_saveexec_b64 s[58:59], vcc
        global_store_dwordx2 v{vNon}, v[8:9], s[{sDbg}:{sDbg+1}] sc1
        s_mov_b64 exec, s[58:59]
        """)
        p.label("K1_NON")
    p(f"""
    s_lshl_b32 s{sT0}, s{sB}, 4
    s_lshr_b32 s{sT1}, s{sH}, 1
    s_add_u32 s{sT0}, s{sT0}, s{sT1}
    s_lshl_b32 s{sT0}, s{sT0}, 18
    s_add_u32 s{rK}, s{sK}, s{sT0}
    s_addc_u32 s{rK+1}, s{sK+1}, 0
    s_mov_b32 s{rK+2}, 0x40000
    s_mov_b32 s{rK+3}, 0x20000
    s_add_u32 s{rV}, s{sV}, s{sT0}
    s_addc_u32 s{rV+1}, s{sV+1}, 0
    s_mov_b32 s{rV+2}, 0x40000
    s_mov_b32 s{rV+3}, 0x20000
    s_mov_b32 s{rO}, s{sWs}
    s_mov_b32 s{rO+1}, s{sWs+1}
    s_mov_b32 s{rO+2}, {WS_SIZE}
    s_mov_b32 s{rO+3}, 0x20000
    """)
    for u in range(4):
        p(f"""
        v_add_u32 v8, {4*u}, v3
        v_xor_b32 v8, v8, v2
        v_lshlrev_b32 v8, 4, v8
        v_lshl_add_u32 v{vKo+u}, v3, 8, v8
        """)

    def issue_kv(isK, tile, slot):
        p(f"""
        s_add_u32 s{sT0}, s{sW4096}, {tile*32768}
        s_add_u32 m0, s{sW4096}, {R[slot]}
        """)
        for u in range(4):
            if isK: p(f"buffer_load_dwordx4 v{vKo+u}, s[{rK}:{rK+3}], s{sT0} offen offset:{u*1024}{NT} lds")
            else:   p(f"buffer_load_dwordx4 v{vVo}, s[{rV}:{rV+3}], s{sT0} offen offset:{u*1024}{NT} lds")
        vissue(('K' if isK else 'V', tile), 4)
    def issue_v0k2():
        l1, l2 = nl('P'), nl('P')
        p(f"s_cmp_eq_u32 s{sPar}, 0")
        p(f"s_cbranch_scc0 {l1}")
        sv = list(vq)
        issue_kv(False, 0, 2); issue_kv(True, 2, 3)
        p(f"s_branch {l2}")
        p.label(l1)
        del vq[:]; vq.extend(sv)
        issue_kv(False, 0, 3); issue_kv(True, 2, 2)
        p.label(l2)
    if o.kdel < 0:
        issue_kv(True, 0, 0)
    if o.k1del < 0:
        issue_kv(True, 1, 1)

    p(f"""
    v_lshl_add_u32 v8, v6, 3, v4
    v_lshlrev_b32 v8, 8, v8
    v_and_b32 v9, 1, v3
    v_lshlrev_b32 v9, 1, v9
    v_and_b32 v{vLW}, 1, v5
    v_add_u32 v9, v9, v{vLW}
    s_lshl_b32 s{sT0}, s{sKq}, 2
    v_add_u32 v9, s{sT0}, v9
    v_lshlrev_b32 v{vLW}, 2, v4
    v_xor_b32 v9, v9, v{vLW}
    v_lshl_add_u32 v8, v9, 4, v8
    v_lshrrev_b32 v9, 1, v5
    v_lshl_add_u32 v{vLW}, v9, 3, v8
    s_lshl_b32 s{sT0}, s{sQh}, 5
    v_add_u32 v8, s{sT0}, v7
    v_lshrrev_b32 v9, 1, v8
    v_and_b32 v9, 7, v9
    v_xor_b32 v9, v9, v6
    v_lshlrev_b32 v9, 4, v9
    v_lshl_add_u32 v{vLX}, v8, 7, v9
    s_lshl_b32 s{sT0}, s{sKq}, 5
    v_add_u32 v8, s{sT0}, v7
    v_and_b32 v9, 15, v8
    v_xor_b32 v9, v9, v6
    v_lshlrev_b32 v9, 4, v9
    v_lshl_add_u32 v{vLK}, v8, 8, v9
    v_lshl_add_u32 v8, v6, 2, v4
    v_add_u32 v8, s{sT0}, v8
    v_lshlrev_b32 v8, 8, v8
    v_and_b32 v9, 1, v5
    v_lshl_add_u32 v8, v9, 3, v8
    v_and_b32 v9, 1, v3
    v_lshlrev_b32 v9, 1, v9
    v_lshrrev_b32 v2, 1, v5
    v_add_u32 v9, v9, v2
    v_lshlrev_b32 v2, 2, v4
    """)
    for a in range(4):
        p(f"""
        s_add_u32 s{sT1}, s{sKq}, {a}
        s_and_b32 s{sT1}, s{sT1}, 3
        s_lshl_b32 s{sT1}, s{sT1}, 2
        v_add_u32 v3, s{sT1}, v9
        v_xor_b32 v3, v3, v2
        v_lshl_add_u32 v{vLV+a}, v3, 4, v8
        """)
    for i in range(16):
        p(f"v_mov_b32 v{vS[0]+i}, 0")
    for i in range(64):
        p(f"v_mov_b32 v{vO+i}, 0")
    p(f"""
    v_mov_b32 v{vM}, 0xf149f2ca
    v_mov_b32 v{vThr}, 0xf149f2ca
    v_mov_b32 v{vL0}, 0
    v_mov_b32 v{vL1}, 0
    """)
    if o.fuse:
        p(f"""
        s_movk_i32 s{sT0}, 3641
        s_movk_i32 s{sT1}, 1152
        """)
        for i in range(9):
            p(f"""
            v_add_u32 v2, {64*i}, v{vL}
            v_mul_u32_u24 v3, s{sT0}, v2
            v_lshrrev_b32 v3, 16, v3
            v_mul_u32_u24 v4, 18, v3
            v_sub_u32 v4, v2, v4
            v_mul_u32_u24 v3, s{sT1}, v3
            v_lshl_add_u32 v3, v4, 4, v3
            v_subrev_u32 v{vOff+i}, {(i%4)*1024}, v3
            """)

    FB = [vKf, vVf]
    A0 = vKA
    def q_phase(c, reads, extra):
        f = FB[(c - 1) % 2]
        rd = list(reads); ex = list(extra)
        for ks in range(4):
            if c >= 1:
                p(f"{MF} {rg(vS[0],16)}, {rg(f+8*ks,4)}, {rg(f+8*ks+4,4)}, {rg(vS[0],16)}")
            for _ in range(3):
                if rd: p(rd.pop(0))
            if ex and ks >= 1: ex.pop(0)()
        for e in ex: e()
    for c in range(9):
        qs = QS[c % 4]
        f = FB[c % 2]
        n = vneed(('C', c))
        p(f"""
        v_add_u32 v{A0}, {qs}, v{vLW}
        v_add_u32 v{A0+1}, {qs+16384}, v{vLX}
        v_xor_b32 v{A0+2}, 32, v{A0+1}
        v_xor_b32 v{A0+3}, 64, v{A0+1}
        v_xor_b32 v{A0+4}, 96, v{A0+1}
        s_waitcnt vmcnt({n}) lgkmcnt(0)
        """)
        stamp(p, o, f'w{c}')
        p("s_barrier")
        if c == 0: stamp(p, o, 1)
        stamp(p, o, f'c{c}')
        reads = []
        for ks in range(4):
            reads.append(f"ds_read_b64_tr_b16 {rg(f+8*ks,2)}, v{A0} offset:{ks*4096}")
            reads.append(f"ds_read_b64_tr_b16 {rg(f+8*ks+2,2)}, v{A0} offset:{ks*4096+1024}")
            reads.append(f"ds_read_b128 {rg(f+8*ks+4,4)}, v{A0+1+ks}")
        extra = []
        if 1 <= c <= 5: extra.append(lambda c=c: issue_chunk(c + 3))
        if c == o.kdel:
            extra.append(lambda: issue_kv(True, 0, 0))
            if o.k1del == c: extra.append(lambda: issue_kv(True, 1, 1))
        elif c == o.k1del:
            extra.append(lambda: issue_kv(True, 1, 1))
        if c == 8 and o.late == 0:
            extra.append(issue_v0k2)
        q_phase(c, reads, extra)
        stamp(p, o, f'm{c}')
    p("s_waitcnt lgkmcnt(0)")
    p("s_barrier")
    q_phase(9, [], [])
    stamp(p, o, 2)
    QX = R[4]
    p(f"""
    s_lshl_b32 s{sT0}, s{sQh}, 13
    s_lshl_b32 s{sT1}, s{sKq}, 11
    s_add_u32 s{sT1}, s{sT1}, s{sT0}
    s_add_u32 s{sT1}, s{sT1}, {QX}
    s_add_u32 s{sT0}, s{sT0}, {QX}
    v_lshlrev_b32 v2, 4, v{vL}
    v_add_u32 v3, s{sT1}, v2
    v_add_u32 v2, s{sT0}, v2
    """)
    p(f"v_mov_b32 v{vKA}, v{vLK}")
    for s in range(1, 8):
        p(f"v_xor_b32 v{vKA+s}, {s<<5}, v{vLK}")
    for j in range(8):
        p(f"v_cvt_pk_bf16_f32 v{vP+j}, v{vS[0]+2*j}, v{vS[0]+2*j+1}")
    p(f"""
    ds_write_b128 v3, {rg(vP,4)}
    ds_write_b128 v3, {rg(vP+4,4)} offset:1024
    s_waitcnt lgkmcnt(0)
    s_barrier
    """)
    for s in range(8):
        p(f"ds_read_b128 {rg(vQ+4*s,4)}, v2 offset:{s*1024}")
    if o.kdel > 8: issue_kv(True, 0, 0)
    if o.k1del > 8: issue_kv(True, 1, 1)
    if o.late:
        issue_v0k2()

    def k_addrs(sreg):
        p(f"v_add_u32 v{vKA}, s{sreg}, v{vLK}")
        for s in range(1, 8):
            p(f"v_xor_b32 v{vKA+s}, {s<<5}, v{vKA}")
    def v_addrs(sreg):
        for a in range(4):
            p(f"v_add_u32 v{vVA+a}, s{sreg}, v{vLV+a}")
    def advance_slot(s):
        p(f"""
        s_add_u32 s{s}, s{s}, 32768
        s_cmp_eq_u32 s{s}, {5*32768}
        s_cselect_b32 s{s}, 0, s{s}
        """)
    def tmax(S):
        p(f"""
        v_max3_f32 v2, v{S}, v{S+1}, v{S+2}
        v_max3_f32 v3, v{S+3}, v{S+4}, v{S+5}
        v_max3_f32 v2, v2, v{S+6}, v{S+7}
        v_max3_f32 v3, v3, v{S+8}, v{S+9}
        v_max3_f32 v2, v2, v{S+10}, v{S+11}
        v_max3_f32 v3, v3, v{S+12}, v{S+13}
        v_max3_f32 v2, v2, v{S+14}, v{S+15}
        v_max_f32 v2, v2, v3
        v_mov_b32 v3, v2
        s_nop 1
        v_permlane32_swap_b32 v2, v3
        v_max_f32 v2, v2, v3
        v_mul_f32 v{vTn}, s{sC}, v2
        """)

    n = vneed(('K', 0))
    p(f"s_waitcnt vmcnt({n}) lgkmcnt(0)")
    p("s_barrier")
    stamp(p, o, 3)
    for s in range(8):
        p(f"ds_read_b128 {rg(vKf+4*s,4)}, v{vKA+s}")
    issue_kv(False, 1, 4)
    p(f"s_mov_b32 s{sRK}, {R[1]}")
    n = vneed(('K', 1))
    p(f"s_waitcnt vmcnt({n}) lgkmcnt(0)")
    p("s_barrier")
    k_addrs(sRK)
    for s in range(8):
        c = '0' if s == 0 else rg(vS[0], 16)
        p(f"{MF} {rg(vS[0],16)}, {rg(vKf+4*s,4)}, {rg(vQ+4*s,4)}, {c}")
    for s in range(8):
        p(f"ds_read_b128 {rg(vKf+4*s,4)}, v{vKA+s}")
    issue_kv(True, 3, 0)
    p(f"""
    s_mov_b32 s{sKprev}, {R[1]}
    s_mov_b32 s{sRV}, {R[3]}
    s_mov_b32 s{sRK}, {R[2]}
    s_mov_b32 s{sStep}, 32768
    s_mov_b32 s{sEK}, {R[3]}
    s_mov_b32 s{sRngV}, 65536
    s_mov_b32 s{sOff}, {4*32768}
    s_mov_b32 s{sOffB}, {2*32768}
    s_cmp_eq_u32 s{sPar}, 0
    s_cselect_b32 s{sRV}, {R[2]}, s{sRV}
    s_cselect_b32 s{sRK}, {R[3]}, s{sRK}
    s_cselect_b32 s{sStep}, 65536, s{sStep}
    s_cselect_b32 s{sEK}, {5*32768}, s{sEK}
    s_cselect_b32 s{sRngV}, {5*32768}, s{sRngV}
    s_cselect_b32 s{sOff}, {2*32768}, s{sOff}
    s_cselect_b32 s{sOffB}, {4*32768}, s{sOffB}
    s_cbranch_scc1 K1_PAR0
    s_mov_b32 s{sT0}, s{rK}
    s_mov_b32 s{sT1}, s{rK+1}
    s_mov_b32 s{rK}, s{rV}
    s_mov_b32 s{rK+1}, s{rV+1}
    s_mov_b32 s{rV}, s{sT0}
    s_mov_b32 s{rV+1}, s{sT1}
    """)
    for u in range(4): p(f"v_mov_b32 v{vOb+u}, v{vVo}")
    p("s_branch K1_PAR1")
    p.label("K1_PAR0")
    for u in range(4):
        p(f"v_mov_b32 v{vOb+u}, v{vKo+u}")
    for u in range(4):
        p(f"v_mov_b32 v{vKo+u}, v{vVo}")
    p.label("K1_PAR1")
    p(f"""
    s_add_u32 s{sOff}, s{sOff}, s{sW4096}
    s_add_u32 s{sOffB}, s{sOffB}, s{sW4096}
    s_mov_b32 s{sCnt}, 0
    """)
    v_addrs(sRV)
    k_addrs(sRK)
    tmax(vS[0])

    W = {}
    for par in (0, 1):
        q2 = list(vq)
        def need2(tag):
            idx = [i for i, t in enumerate(q2) if t == tag]
            if not idx: return 63
            n = len(q2) - 1 - idx[-1]
            del q2[:idx[-1] + 1]
            return min(n, 63)
        for i in range(8):
            n = need2(('V', i)); W[('a', i)] = min(W.get(('a', i), 63), n)
            if i <= 5: q2.extend([('V', i + 2) if par == 0 else ('K', i + 4)] * 4)
            if i <= 5:
                n = need2(('K', i + 2)); W[('b', i)] = min(W.get(('b', i), 63), n)
                q2.extend([('K', i + 4) if par == 0 else ('V', i + 2)] * 4)
        if not o.skew: break
    print('loop waits', W, file=sys.stderr)

    def alpha(tag, cur, do_qk, issue, wv):
        S, Sn = vS[cur], vS[1 - cur]
        p(f"""
        s_waitcnt vmcnt({wv}) lgkmcnt(0)
        s_barrier
        v_cmp_gt_f32 vcc, v{vTn}, v{vThr}
        s_cbranch_vccnz K1_RS{tag}
        """)
        p.label(f"K1_BK{tag}")
        reads = [(a, ks, h) for a in range(4) for ks in range(2) for h in range(2)]
        for j in range(8):
            if do_qk:
                c = '0' if j == 0 else rg(Sn, 16)
                p(f"{MF} {rg(Sn,16)}, {rg(vKf+4*j,4)}, {rg(vQ+4*j,4)}, {c}")
            for (a, ks, h) in reads[2*j:2*j+2]:
                f = vVf + (a * 2 + ks) * 4 + 2 * h
                p(f"ds_read_b64_tr_b16 {rg(f,2)}, v{vVA+a} offset:{ks*4096+h*2048}")
            p(f"v_fma_f32 v{S+2*j}, v{S+2*j}, s{sC}, -v{vM}")
            p(f"v_fma_f32 v{S+2*j+1}, v{S+2*j+1}, s{sC}, -v{vM}")
            p(f"v_exp_f32 v{S+2*j}, v{S+2*j}")
            p(f"v_exp_f32 v{S+2*j+1}, v{S+2*j+1}")
            if j >= 1:
                k = j - 1
                p(f"v_cvt_pk_bf16_f32 v{vP+k}, v{S+2*k}, v{S+2*k+1}")
                p(f"v_add_f32 v{vL0}, v{vL0}, v{S+2*k}")
                p(f"v_add_f32 v{vL1}, v{vL1}, v{S+2*k+1}")
            if issue and j == 0:
                p(f"s_add_u32 m0, s{sKprev}, s{sW4096}")
            if issue and o.dmapos == 0 and j in (1, 3, 5, 7):
                u = (j - 1) // 2
                p(f"buffer_load_dwordx4 v{vKo+u}, s[{rV}:{rV+3}], s{sOff} offen offset:{u*1024}{NT} lds")
        p(f"v_cvt_pk_bf16_f32 v{vP+7}, v{S+14}, v{S+15}")
        p(f"v_add_f32 v{vL0}, v{vL0}, v{S+14}")
        p(f"v_add_f32 v{vL1}, v{vL1}, v{S+15}")
        if issue and o.dmapos == 1:
            for u in range(4):
                p(f"buffer_load_dwordx4 v{vKo+u}, s[{rV}:{rV+3}], s{sOff} offen offset:{u*1024}{NT} lds")
        if issue:
            p(f"s_add_u32 s{sOff}, s{sOff}, 32768")

    def beta(tag, cur, read_k, issue, do_tmax, wv, barrier=True, extra=None):
        Sn = vS[1 - cur]
        p(f"s_waitcnt vmcnt({wv}) lgkmcnt(0)")
        if barrier: p("s_barrier")
        n = 0
        for a in range(4):
            for ks in range(2):
                f = vVf + (a * 2 + ks) * 4
                p(f"{MF} {rg(vO+16*a,16)}, {rg(f,4)}, {rg(vP+4*ks,4)}, {rg(vO+16*a,16)}")
                if read_k:
                    p(f"ds_read_b128 {rg(vKf+4*n,4)}, v{vKA+n}")
                if issue and n == 0:
                    p(f"s_add_u32 m0, s{sRV}, s{sW4096}")
                if issue and o.dmapos == 0 and n in (1, 3, 5, 7):
                    u = (n - 1) // 2
                    p(f"buffer_load_dwordx4 v{vOb+u}, s[{rK}:{rK+3}], s{sOffB} offen offset:{u*1024}{NT} lds")
                if n == 2 and do_tmax:
                    tmax(Sn)
                n += 1
        if issue and o.dmapos == 1:
            pass
        if issue and o.dmapos == 1:
            for u in range(4):
                p(f"buffer_load_dwordx4 v{vOb+u}, s[{rK}:{rK+3}], s{sOffB} offen offset:{u*1024}{NT} lds")
        if issue:
            p(f"s_add_u32 s{sOffB}, s{sOffB}, 32768")
        p(f"""
        s_mov_b32 s{sKprev}, s{sRK}
        s_add_u32 s{sRV}, s{sRV}, s{sStep}
        s_cmp_ge_u32 s{sRV}, {5*32768}
        s_cselect_b32 s{sT0}, s{sRngV}, 0
        s_sub_u32 s{sRV}, s{sRV}, s{sT0}
        s_add_u32 s{sRK}, s{sRK}, s{sStep}
        s_cmp_ge_u32 s{sRK}, s{sEK}
        s_cselect_b32 s{sT0}, s{sEK}, 0
        s_sub_u32 s{sRK}, s{sRK}, s{sT0}
        """)
        v_addrs(sRV)
        k_addrs(sRK)
        if extra: extra()

    def rescale(tag):
        p.label(f"K1_RS{tag}")
        p(f"""
        v_max_f32 v3, v{vTn}, v{vM}
        v_sub_f32 v4, v{vM}, v3
        v_exp_f32 v4, v4
        v_mov_b32 v{vM}, v3
        v_add_f32 v{vThr}, 0x41000000, v3
        """)
        p(f"v_mul_f32 v{vL0}, v{vL0}, v4")
        p(f"v_mul_f32 v{vL1}, v{vL1}, v4")
        for i in range(64):
            p(f"v_mul_f32 v{vO+i}, v{vO+i}, v4")
        p(f"s_branch K1_BK{tag}")

    def wo_srd():
        p(f"""
        s_mul_i32 s{sT0}, s{sXc}, {512*1152}
        s_mul_i32 s{sT1}, s{sJj}, 288
        s_add_u32 s{sT0}, s{sT0}, s{sT1}
        s_add_u32 s{rW}, s{sWo}, s{sT0}
        s_addc_u32 s{rW+1}, s{sWo+1}, 0
        s_sub_u32 s{rW+2}, {4096*1152}, s{sT0}
        s_mov_b32 s{rW+3}, 0x20000
        """)
    def wo_touch():
        if not (o.fuse and o.wot): return
        l = nl('WOT')
        p(f"""
        s_cmp_eq_u32 s{sCnt}, 1
        s_cbranch_scc0 {l}
        s_cmp_eq_u32 s{sWave}, 6
        s_cbranch_scc0 {l}
        s_mul_i32 s{sT0}, s{sXc}, {512*1152}
        s_add_u32 s{rX}, s{sWo}, s{sT0}
        s_addc_u32 s{rX+1}, s{sWo+1}, 0
        s_mov_b32 s{rX+2}, {512*1152}
        s_mov_b32 s{rX+3}, 0x20000
        s_lshr_b32 s{sT0}, s2, 3
        s_mul_i32 s{sT0}, s{sT0}, 18432
        v_lshlrev_b32 v2, 7, v{vL}
        buffer_load_dword v{vDum}, v2, s[{rX}:{rX+3}], s{sT0} offen
        s_add_u32 s{sT0}, s{sT0}, 8192
        buffer_load_dword v{vDum}, v2, s[{rX}:{rX+3}], s{sT0} offen
        s_add_u32 s{sT0}, s{sT0}, 8192
        v_cmp_gt_u32 vcc, 16, v{vL}
        s_and_saveexec_b64 s[58:59], vcc
        buffer_load_dword v{vDum}, v2, s[{rX}:{rX+3}], s{sT0} offen
        s_mov_b64 exec, s[58:59]
        """)
        p.label(l)

    wm = lambda keys: min(W[k] for k in keys)
    loop_start = len(p.ins)
    p.label("K1_LOOP")
    alpha('L0', 0, True, True, wm([('a', 0), ('a', 2), ('a', 4)]))
    beta('L0', 0, True, True, True, wm([('b', 0), ('b', 2), ('b', 4)]))
    alpha('L1', 1, True, True, wm([('a', 1), ('a', 3), ('a', 5)]))
    beta('L1', 1, True, True, True, wm([('b', 1), ('b', 3), ('b', 5)]), extra=wo_touch)
    p(f"""
    s_add_u32 s{sCnt}, s{sCnt}, 1
    s_cmp_lt_u32 s{sCnt}, 3
    s_cbranch_scc1 K1_LOOP
    """)
    if o.dry:
        keep = []
        for x in p.ins[loop_start:]:
            drop = False
            if o.dry & 1 and x.kind == 'mfma': drop = True
            if o.dry & 2 and x.kind == 'ds': drop = True
            if o.dry & 4 and x.kind == 'valu' and not x.op.startswith('v_cmp'): drop = True
            if not drop: keep.append(x)
        p.ins[loop_start:] = keep
    stamp(p, o, 4)
    if o.fuse:
        p(f"""
        s_cmp_eq_u32 s{sWave}, 7
        s_cbranch_scc0 K1_NL
        v_mov_b32 v8, 0
        global_load_dwordx2 v[{vNon}:{vNon+1}], v8, s[{sDbg}:{sDbg+1}] sc1
        """)
        p.label("K1_NL")
    alpha('A', 0, True, False, W[('a', 6)])
    beta('A', 0, False, False, True, 63, barrier=False)
    alpha('B', 1, False, False, W[('a', 7)])
    p("s_waitcnt vmcnt(0) lgkmcnt(0)")
    for a in range(4):
        for ks in range(2):
            f = vVf + (a * 2 + ks) * 4
            p(f"{MF} {rg(vO+16*a,16)}, {rg(f,4)}, {rg(vP+4*ks,4)}, {rg(vO+16*a,16)}")
    stamp(p, o, 5)

    STAT = 0
    NONL = 4096
    OX = R[2]
    WOB = 16384
    vS0 = vS[0]
    def wo_group_dma(gexpr_sgpr):
        p(f"""
        s_mul_i32 s{sT1}, s{gexpr_sgpr}, 9216
        s_add_u32 s{sT1}, s{sT1}, {WOB}
        s_mul_i32 s{sT0}, s{gexpr_sgpr}, 36864
        """)
        for i in range(9):
            if i % 4 == 0:
                p(f"s_add_u32 m0, s{sT1}, {(i//4)*4096}")
            p(f"buffer_load_dwordx4 v{vOff+i}, s[{rW}:{rW+3}], s{sT0} offen offset:{(i%4)*1024} lds")
    p(f"""
    v_add_f32 v{vL0}, v{vL0}, v{vL1}
    v_mov_b32 v{vL1}, v{vL0}
    s_nop 1
    v_permlane32_swap_b32 v{vL0}, v{vL1}
    v_add_f32 v{vThr}, v{vL0}, v{vL1}
    v_and_b32 v7, 31, v{vL}
    s_lshl_b32 s{sT0}, s{sKq}, 9
    s_lshl_b32 s{sT1}, s{sQh}, 8
    s_add_u32 s{sT0}, s{sT0}, s{sT1}
    s_add_u32 s{sT0}, s{sT0}, {STAT}
    s_add_u32 s{sT1}, s{sT1}, {STAT}
    v_lshlrev_b32 v7, 3, v7
    v_add_u32 v2, s{sT0}, v7
    v_add_u32 v7, s{sT1}, v7
    v_lshlrev_b32 v3, 4, v{vL}
    """)
    if o.fuse: wo_srd()
    p("s_barrier")
    stamp(p, o, 'e1')
    p(f"""
    ds_write_b64 v2, v[{vM}:{vM+1}]
    """)
    if o.fuse:
        p(f"""
        s_cmp_eq_u32 s{sWave}, 7
        s_cbranch_scc0 K1_NON2
        s_mov_b32 s{sT2}, 0
        """)
        p.label("K1_NONP")
        p(f"""
        v_readfirstlane_b32 s{sT0}, v{vNon}
        s_add_u32 s{sT2}, s{sT2}, 1
        s_cmp_lg_u32 s{sT0}, 0
        s_cbranch_scc1 K1_NONOK
        s_cmp_lt_u32 s{sT2}, {SPIN}
        s_cbranch_scc0 K1_NONOK
        v_mov_b32 v8, 0
        global_load_dwordx2 v[{vNon}:{vNon+1}], v8, s[{sDbg}:{sDbg+1}] sc1
        s_waitcnt vmcnt(0)
        s_branch K1_NONP
        """)
        p.label("K1_NONOK")
        p(f"""
        v_mov_b32 v6, {NONL}
        ds_write_b64 v6, v[{vNon}:{vNon+1}]
        """)
        p.label("K1_NON2")
    for a in range(1, 4):
        p(f"""
        s_add_u32 s{sT0}, s{sKq}, {a}
        s_and_b32 s{sT0}, s{sT0}, 3
        s_lshl_b32 s{sT2}, s{sQh}, 2
        s_add_u32 s{sT0}, s{sT0}, s{sT2}
        s_mul_i32 s{sT0}, s{sT0}, 12288
        s_add_u32 s{sT0}, s{sT0}, {OX + (3-a)*4096}
        v_add_u32 v4, s{sT0}, v3
        """)
        for g in range(4):
            p(f"ds_write_b128 v4, {rg(vO+16*a+4*g,4)} offset:{g*1024}")
    if o.fuse and o.early:
        p(f"""
        s_cmp_lt_u32 s{sWave}, 5
        s_cbranch_scc0 K1_WG1
        """)
        wo_group_dma(sWave)
        p.label("K1_WG1")
    p(f"""
    s_lshl_b32 s{sT0}, s{sQh}, 2
    s_add_u32 s{sT0}, s{sT0}, s{sKq}
    s_mul_i32 s{sT0}, s{sT0}, 12288
    s_add_u32 s{sT0}, s{sT0}, {OX}
    v_add_u32 v4, s{sT0}, v3
    s_waitcnt lgkmcnt(0)
    """)
    stamp(p, o, 'e2')
    p("s_barrier")
    stamp(p, o, 'e3')
    for k in range(4):
        p(f"ds_read_b64 v[{vS0+2*k}:{vS0+2*k+1}], v7 offset:{k*512}")
    for i in range(3):
        for g in range(4):
            p(f"ds_read_b128 {rg(vO+16*(i+1)+4*g,4)}, v4 offset:{i*4096+g*1024}")
    if o.fuse:
        p(f"""
        v_mov_b32 v6, {NONL}
        ds_read_b64 v[8:9], v6
        s_waitcnt lgkmcnt(13)
        """)
    else:
        p("s_waitcnt lgkmcnt(12)")
    m = [vS0 + 0, vS0 + 2, vS0 + 4, vS0 + 6]; l = [vS0 + 1, vS0 + 3, vS0 + 5, vS0 + 7]
    p(f"""
    v_max3_f32 v2, v{m[0]}, v{m[1]}, v{m[2]}
    v_max_f32 v2, v2, v{m[3]}
    """)
    for k in range(4):
        p(f"v_sub_f32 v{m[k]}, v{m[k]}, v2")
    for k in range(4):
        p(f"v_exp_f32 v{m[k]}, v{m[k]}")
    p(f"""
    v_mul_f32 v3, v{m[0]}, v{l[0]}
    v_fmac_f32 v3, v{m[1]}, v{l[1]}
    v_fmac_f32 v3, v{m[2]}, v{l[2]}
    v_fmac_f32 v3, v{m[3]}, v{l[3]}
    v_rcp_f32 v3, v3
    """)
    for k in range(4):
        p(f"v_mul_f32 v{m[k]}, v{m[k]}, v3")
    wr = vS0 + 8
    for kq in range(4):
        p(f"s_cmp_eq_u32 s{sKq}, {kq}")
        p(f"s_cbranch_scc0 K1_WR{kq}")
        for i in range(4):
            p(f"v_mov_b32 v{wr+i}, v{m[(kq+i)&3]}")
        p.label(f"K1_WR{kq}")
    for i in range(16):
        p(f"v_mul_f32 v{vO+i}, v{vO+i}, v{wr}")
    nextra = 1 if o.fuse else 0
    for s in range(3):
        p(f"s_waitcnt lgkmcnt({8-4*s+nextra})")
        for i in range(16):
            p(f"v_fmac_f32 v{vO+i}, v{vO+16*(s+1)+i}, v{wr+s+1}")
    order = [0, 2, 1, 3]
    for idx, g in enumerate(order):
        p(f"v_cvt_pk_bf16_f32 v{vP+2*idx}, v{vO+4*g}, v{vO+4*g+1}")
        p(f"v_cvt_pk_bf16_f32 v{vP+2*idx+1}, v{vO+4*g+2}, v{vO+4*g+3}")
    stamp(p, o, 'e4')
    SC = ' sc1' if o.fuse else ''
    p(f"""
    v_and_b32 v2, 15, v{vL}
    v_lshrrev_b32 v3, 5, v{vL}
    v_lshl_add_u32 v2, v3, 4, v2
    v_lshlrev_b32 v2, 4, v2
    v_bfe_u32 v3, v{vL}, 4, 1
    v_lshl_add_u32 v2, v3, 12, v2
    s_lshl_b32 s{sT0}, s{sWg}, 14
    s_lshl_b32 s{sT1}, s{sQh}, 13
    s_add_u32 s{sT0}, s{sT0}, s{sT1}
    s_lshl_b32 s{sT1}, s{sKq}, 10
    s_add_u32 s{sT0}, s{sT0}, s{sT1}
    buffer_store_dwordx4 {rg(vP,4)}, v2, s[{rO}:{rO+3}], s{sT0} offen{SC}
    buffer_store_dwordx4 {rg(vP+4,4)}, v2, s[{rO}:{rO+3}], s{sT0} offen offset:512{SC}
    """)
    if not o.fuse:
        if o.stamps:
            p("s_waitcnt vmcnt(0)")
            stamp(p, o, 6)
            stamp_flush(p, o, 0, 7, sWs)
        p("s_branch K1_END")
    else:
        tail(p, o, locals())
    for tag in ('L0', 'L1', 'A', 'B'):
        rescale(tag)
    p.label("K1_END")
    p("s_endpgm")
    return p

def gemm_body(p, vAcc, vB, vF, vAd, vLA, base_expr_instr, vm_base=0):
    p(base_expr_instr)
    p(f"v_add_u32 v{vAd+1}, {4*9216}, v{vAd}")
    HA, HB = list(range(0, 5)), list(range(5, 9))
    def reads(kk, half):
        ad = vAd + (kk // 4)
        off = (kk % 4) * 9216
        for nt in half:
            f = vF + 4 * nt
            p(f"ds_read_b64_tr_b16 {rg(f,2)}, v{ad} offset:{off+nt*32}")
            p(f"ds_read_b64_tr_b16 {rg(f+2,2)}, v{ad} offset:{off+4608+nt*32}")
    def mfmas(kk, half, younger):
        n = len(half)
        h1 = (n + 1) // 2
        for idx, nt in enumerate(half):
            f = vF + 4 * nt
            if idx == 0: p(f"s_waitcnt lgkmcnt({min(15, younger + 2*(n-h1))})")
            if idx == h1: p(f"s_waitcnt lgkmcnt({min(15, younger)})")
            p(f"{MF16} {rg(vAcc+4*nt,4)}, {rg(f,4)}, {rg(vB+4*kk,4)}, {rg(vAcc+4*nt,4)}")
    reads(0, HA)
    for kk in range(8):
        reads(kk, HB)
        p(f"s_waitcnt vmcnt({7-kk+vm_base})")
        mfmas(kk, HA, 2 * len(HB))
        if kk < 7:
            reads(kk + 1, HA)
            mfmas(kk, HB, 2 * len(HA))
        else:
            mfmas(kk, HB, 0)

def tail(p, o, L):
    g = lambda n: L[n]
    sWave, sB, sXc, sJj, sWg, sT0, sT1, sT2 = g('sWave'), g('sB'), g('sXc'), g('sJj'), g('sWg'), g('sT0'), g('sT1'), g('sT2')
    rO, rW, rX, sN, sTag, sOut, sWs = g('rO'), g('rW'), g('rX'), g('sN'), g('sTag'), g('sOut'), g('sWs')
    vL, vOff, WOB = g('vL'), g('vOff'), g('WOB')
    wo_group_dma = g('wo_group_dma')
    sQt, sKh2 = 40, 41
    vAcc, vB, vF, vLA, vAd = 28, 64, 96, 19, 20
    p(f"""
    s_waitcnt vmcnt(0) lgkmcnt(0)
    v_readfirstlane_b32 s{sN}, v8
    v_readfirstlane_b32 s{sN+1}, v9
    s_barrier
    """)
    if o.stamps: stamp(p, o, 6)
    p(f"""
    s_and_b32 s{sQt}, s{sWave}, 3
    s_lshr_b32 s{sKh2}, s{sWave}, 2
    s_cmp_eq_u32 s{sWave}, 7
    s_cbranch_scc0 T_NOFLAG
    v_mov_b32 v9, s{sN}
    s_lshl_b32 s{sT0}, s{sWg}, 7
    s_add_u32 s{sT0}, s{sT0}, {WS_FLAG}
    v_mov_b32 v3, 0
    v_cmp_eq_u32 vcc, 0, v{vL}
    s_and_saveexec_b64 s[58:59], vcc
    buffer_store_dword v9, v3, s[{rO}:{rO+3}], s{sT0} offen sc1
    s_mov_b64 exec, s[58:59]
    s_and_b32 s{sT0}, s{sWg}, 0xfc
    s_lshl_b32 s{sT0}, s{sT0}, 7
    s_add_u32 s{sT0}, s{sT0}, {WS_FLAG}
    v_and_b32 v8, 3, v{vL}
    v_lshlrev_b32 v8, 7, v8
    s_mov_b32 s{sT1}, 0
    buffer_load_dword v10, v8, s[{rO}:{rO+3}], s{sT0} offen sc1
    buffer_load_dword v11, v8, s[{rO}:{rO+3}], s{sT0} offen sc1
    """)
    p("s_branch T_SETUP")
    p.label("T_NOFLAG")
    if o.early:
        p(f"s_add_u32 s{sT2}, s{sWave}, 5")
        wo_group_dma(sT2)
        p(f"""
        s_cmp_lt_u32 s{sWave}, 4
        s_cbranch_scc0 T_SETUP
        s_add_u32 s{sT2}, s{sWave}, 12
        """)
        wo_group_dma(sT2)
    else:
        wo_group_dma(sWave)
        p(f"s_add_u32 s{sT2}, s{sWave}, 7")
        wo_group_dma(sT2)
        p(f"""
        s_cmp_lt_u32 s{sWave}, 2
        s_cbranch_scc0 T_SETUP
        s_add_u32 s{sT2}, s{sWave}, 14
        """)
        wo_group_dma(sT2)
    p.label("T_SETUP")
    p(f"""
    v_lshrrev_b32 v2, 4, v{vL}
    v_and_b32 v3, 15, v{vL}
    v_lshrrev_b32 v4, 2, v3
    v_and_b32 v6, 3, v3
    v_lshl_add_u32 v2, v2, 2, v4
    v_mul_u32_u24 v2, 288, v2
    v_lshl_add_u32 v{vLA}, v6, 3, v2
    v_lshlrev_b32 v5, 4, v{vL}
    s_and_b32 s{sTag}, s{sN}, 0xfff
    s_lshr_b32 s{sTag+1}, s{sN}, 12
    s_and_b32 s{sTag+1}, s{sTag+1}, 0xfff
    s_lshr_b32 s{sTag+2}, s{sN}, 24
    s_lshl_b32 s{sT2}, s{sN+1}, 8
    s_or_b32 s{sTag+2}, s{sTag+2}, s{sT2}
    s_and_b32 s{sTag+2}, s{sTag+2}, 0xfff
    s_lshr_b32 s{sTag+3}, s{sN+1}, 4
    s_and_b32 s{sTag+3}, s{sTag+3}, 0xfff
    """)
    for i in range(36):
        p(f"v_mov_b32 v{vAcc+i}, 0")
    p(f"""
    s_cmp_eq_u32 s{sWave}, 7
    s_cbranch_scc0 T_NOPOLL
    """)
    p.label("T_POLL1")
    p(f"""
    s_waitcnt vmcnt(1)
    v_cmp_ne_u32 vcc, v10, v9
    s_cbranch_vccz T_NOPOLL
    buffer_load_dword v10, v8, s[{rO}:{rO+3}], s{sT0} offen sc1
    s_add_u32 s{sT1}, s{sT1}, 1
    s_waitcnt vmcnt(1)
    v_cmp_ne_u32 vcc, v11, v9
    s_cbranch_vccz T_NOPOLL
    buffer_load_dword v11, v8, s[{rO}:{rO+3}], s{sT0} offen sc1
    s_cmp_lt_u32 s{sT1}, {SPIN}
    s_cbranch_scc1 T_POLL1
    """)
    p.label("T_NOPOLL")
    p(f"""
    s_waitcnt vmcnt(0)
    s_barrier
    """)
    if o.stamps: stamp(p, o, 7)
    p(f"""
    s_and_b32 s{sT0}, s{sWg}, 0xfc
    s_lshl_b32 s{sT1}, s{sKh2}, 1
    s_add_u32 s{sT0}, s{sT0}, s{sT1}
    s_lshl_b32 s{sT0}, s{sT0}, 14
    s_lshl_b32 s{sT1}, s{sQt}, 12
    s_add_u32 s{sT0}, s{sT0}, s{sT1}
    s_add_u32 s{sT1}, s{sT0}, 16384
    """)
    for kk in range(8):
        p(f"buffer_load_dwordx4 {rg(vB+4*kk,4)}, v5, s[{rO}:{rO+3}], s{sT0 if kk < 4 else sT1} offen offset:{(kk&3)*1024} sc1")
    p(f"s_mul_i32 s{sT2}, s{sKh2}, {8*9216}")
    p(f"s_add_u32 s{sT2}, s{sT2}, {WOB}")
    if o.stamps and o.stset:
        p("s_waitcnt vmcnt(0)")
        stamp(p, o, 'g0')
    gemm_body(p, vAcc, vB, vF, vAd, vLA, f"v_add_u32 v{vAd}, s{sT2}, v{vLA}")
    if o.stamps: stamp(p, o, 8)
    p("s_barrier")
    stamp(p, o, 'r1')
    p(f"""
    s_mul_i32 s{sT0}, s{sQt}, 9216
    v_add_u32 v2, s{sT0}, v5
    s_cmp_eq_u32 s{sKh2}, 0
    s_cbranch_scc0 T_H1
    """)
    for nt in range(5, 9):
        p(f"ds_write_b128 v2, {rg(vAcc+4*nt,4)} offset:{nt*1024}")
    p("s_branch T_H2")
    p.label("T_H1")
    for nt in range(0, 5):
        p(f"ds_write_b128 v2, {rg(vAcc+4*nt,4)} offset:{nt*1024}")
    p.label("T_H2")
    TAGGED = (o.fuse == 2)
    p(f"""
    v_mov_b32 v7, 0xfffff000
    s_lshl_b32 s{sT0}, s{sXc}, 3
    s_add_u32 s{sT0}, s{sT0}, s{sB}
    s_lshl_b32 s{sT0}, s{sT0}, 2
    s_add_u32 s{sT0}, s{sT0}, s{sJj}
    s_lshl_b32 s{sT0}, s{sT0}, 2
    s_add_u32 s{sT0}, s{sT0}, s{sQt}
    s_mul_i32 s{sT0}, s{sT0}, 9216
    s_add_u32 s{sT0}, s{sT0}, {WS_PART}
    s_waitcnt lgkmcnt(0)
    """)
    stamp(p, o, 'r2')
    p("s_barrier")
    stamp(p, o, 'r3')
    p(f"""
    s_cmp_eq_u32 s{sKh2}, 0
    s_cbranch_scc0 T_H3
    """)
    def fin(nts):
        for nt in nts:
            p(f"ds_read_b128 {rg(vF+4*nt,4)}, v2 offset:{nt*1024}")
        for idx, nt in enumerate(nts):
            p(f"s_waitcnt lgkmcnt({len(nts)-1-idx})")
            for e in range(4):
                p(f"v_add_f32 v{vAcc+4*nt+e}, v{vAcc+4*nt+e}, v{vF+4*nt+e}")
            if TAGGED:
                for e in range(4):
                    p(f"v_and_b32 v{vAcc+4*nt+e}, v7, v{vAcc+4*nt+e}")
                    p(f"v_or_b32 v{vAcc+4*nt+e}, s{sTag+e}, v{vAcc+4*nt+e}")
            p(f"s_add_u32 s{sT1}, s{sT0}, {(nt//4)*4096}")
            p(f"buffer_store_dwordx4 {rg(vAcc+4*nt,4)}, v5, s[{rO}:{rO+3}], s{sT1} offen offset:{(nt%4)*1024}{' sc1' if TAGGED else ''}")
    fin(list(range(0, 5)))
    p("s_branch T_H4")
    p.label("T_H3")
    fin(list(range(5, 9)))
    p.label("T_H4")
    if o.stamps: stamp(p, o, 9)
    if TAGGED:
        vX = 100
        p(f"""
        s_cmp_ge_u32 s{sWave}, 5
        s_cbranch_scc1 T_DONE
        v_cmp_gt_u32 vcc, 288, v0
        s_and_saveexec_b64 s[58:59], vcc
        s_mul_i32 s{sT0}, s{sXc}, 288
        v_add_u32 v2, s{sT0}, v0
        v_lshlrev_b32 v3, 4, v2
        s_lshl_b32 s{sT0}, s{sB}, 2
        s_add_u32 s{sT0}, s{sT0}, s{sJj}
        s_mul_i32 s{sT0}, s{sT0}, 36864
        s_add_u32 s{sT0}, s{sT0}, {WS_PART}
        s_mov_b32 s{rX}, s{sOut}
        s_mov_b32 s{rX+1}, s{sOut+1}
        s_mov_b32 s{rX+2}, {512*576*2}
        s_mov_b32 s{rX+3}, 0x20000
        v_lshrrev_b32 v4, 6, v2
        v_mul_u32_u24 v5, 57, v4
        v_lshrrev_b32 v5, 9, v5
        v_mul_u32_u24 v6, 9, v5
        v_sub_u32 v6, v4, v6
        v_and_b32 v4, 15, v2
        v_lshl_add_u32 v4, v5, 4, v4
        s_lshl_b32 s{sT1}, s{sB}, 6
        v_add_u32 v4, s{sT1}, v4
        s_movk_i32 s{sT1}, 1152
        v_mul_u32_u24 v4, s{sT1}, v4
        v_lshlrev_b32 v6, 5, v6
        v_add_u32 v4, v4, v6
        v_bfe_u32 v6, v2, 4, 2
        v_lshl_add_u32 v4, v6, 3, v4
        s_mul_i32 s{sT1}, s{sJj}, 288
        v_add_u32 v4, s{sT1}, v4
        s_mov_b32 s{sT2}, 0
        """)
        if o.prepoll:
            p(f"""
            s_mov_b64 s[56:57], exec
            v_readfirstlane_b32 s{sT1}, v3
            v_mul_u32_u24 v6, {32*36864 // 1024}, v{vL}
            v_lshlrev_b32 v6, 10, v6
            v_add_u32 v6, s{sT1}, v6
            v_mov_b32 v9, s{sTag}
            s_mov_b64 exec, 0xff
            buffer_load_dword v10, v6, s[{rO}:{rO+3}], s{sT0} offen sc1
            buffer_load_dword v11, v6, s[{rO}:{rO+3}], s{sT0} offen sc1
            """)
            p.label("T_PP")
            p(f"""
            s_waitcnt vmcnt(1)
            v_xor_b32 v8, v10, v9
            v_and_b32 v8, 0xfff, v8
            v_cmp_ne_u32 vcc, 0, v8
            s_cbranch_vccz T_PPD
            buffer_load_dword v10, v6, s[{rO}:{rO+3}], s{sT0} offen sc1
            s_add_u32 s{sT2}, s{sT2}, 1
            s_waitcnt vmcnt(1)
            v_xor_b32 v8, v11, v9
            v_and_b32 v8, 0xfff, v8
            v_cmp_ne_u32 vcc, 0, v8
            s_cbranch_vccz T_PPD
            buffer_load_dword v11, v6, s[{rO}:{rO+3}], s{sT0} offen sc1
            s_cmp_lt_u32 s{sT2}, {SPIN}
            s_cbranch_scc1 T_PP
            """)
            p.label("T_PPD")
            p(f"""
            s_mov_b64 exec, s[56:57]
            s_mov_b32 s{sT2}, 0
            """)
        p.label("T_POLL2")
        p(f"s_mov_b32 s{sT1}, s{sT0}")
        for s in range(8):
            p(f"buffer_load_dwordx4 {rg(vX+4*s,4)}, v3, s[{rO}:{rO+3}], s{sT1} offen sc1")
            if s < 7: p(f"s_add_u32 s{sT1}, s{sT1}, {32*36864}")
        p(f"""
        s_add_u32 s{sT2}, s{sT2}, 1
        v_mov_b32 v6, 0
        """)
        for s in range(8):
            p(f"s_waitcnt vmcnt({7-s})")
            for e in range(4):
                p(f"v_xor_b32 v8, s{sTag+e}, v{vX+4*s+e}")
                p(f"v_or_b32 v6, v6, v8")
        p(f"""
        v_and_b32 v6, 0xfff, v6
        v_cmp_ne_u32 vcc, 0, v6
        s_cmp_lt_u32 s{sT2}, {SPIN}
        s_cbranch_scc0 T_SUM
        s_cbranch_vccnz T_POLL2
        """)
        p.label("T_SUM")
        if o.stamps and o.stset == 2:
            p(f"s_mov_b32 s76, s{sT2}")
            p("s_mov_b32 s77, 0")
        for s in range(8):
            for e in range(4):
                p(f"v_and_b32 v{vX+4*s+e}, v7, v{vX+4*s+e}")
        for s in range(1, 8):
            for e in range(4):
                p(f"v_add_f32 v{vX+e}, v{vX+e}, v{vX+4*s+e}")
        p(f"""
        v_cvt_pk_bf16_f32 v8, v{vX}, v{vX+1}
        v_cvt_pk_bf16_f32 v9, v{vX+2}, v{vX+3}
        buffer_store_dwordx2 v[8:9], v4, s[{rX}:{rX+3}], 0 offen
        s_mov_b64 exec, s[58:59]
        """)
        p.label("T_DONE")
    if o.stamps:
        p("s_waitcnt vmcnt(0)")
        p("s_memrealtime s[90:91]" if o.stamps != 2 else "s_memtime s[90:91]")
        p("s_waitcnt lgkmcnt(0)")
        p("s_mov_b32 s60, s60")
        gen_flush_final(p, o, sWs)
    p("s_branch K1_END")

def gen_flush_final(p, o, sws):
    tag = "STFm"
    if o.stamps == 3:
        p(f"""
        s_cmp_eq_u32 s2, 0
        s_cbranch_scc0 {tag}
        s_load_dwordx2 s[96:97], s[0:1], 48
        s_waitcnt lgkmcnt(0)
        v_cmp_eq_u32 vcc, 0, v0
        s_and_saveexec_b64 s[92:93], vcc
        s_cbranch_execz {tag}x
        v_mov_b32 v4, 0
        """)
        for i in range(10):
            p(f"v_mov_b32 v2, s{60+2*i}")
            p(f"global_store_dword v4, v2, s[96:97] offset:{16+4*i}")
        p("v_mov_b32 v2, s90")
        p(f"global_store_dword v4, v2, s[96:97] offset:{16+40}")
        p.label(tag + 'x')
        p("s_mov_b64 exec, s[92:93]")
        p.label(tag)
        return
    p(f"""
    v_cmp_eq_u32 vcc, {o.stampwave*64}, v0
    s_and_saveexec_b64 s[92:93], vcc
    s_cbranch_execz {tag}
    s_lshl_b32 s94, s2, 7
    s_add_u32 s94, s94, {gen.WS_STAMP}
    s_add_u32 s96, s{sws}, s94
    s_addc_u32 s97, s{sws+1}, 0
    v_mov_b32 v4, 0
    """)
    for i in range(10):
        p(f"""
        v_mov_b32 v2, s{60+2*i}
        v_mov_b32 v3, s{61+2*i}
        global_store_dwordx2 v4, v[2:3], s[96:97] offset:{8*i}
        """)
    p(f"""
    v_mov_b32 v2, s90
    v_mov_b32 v3, s91
    global_store_dwordx2 v4, v[2:3], s[96:97] offset:80
    """)
    p.label(tag)
    p("s_mov_b64 exec, s[92:93]")

def gen_k2(o):
    p = Prog()
    sWo, sWs = 4, 6
    rW, rO = 8, 12
    sWave, sXc, sB, sNg, sT0, sT1, sT2, sQt, sKh2 = 20, 21, 22, 23, 24, 25, 26, 27, 28
    vL = 1; vOff = 10; vLA = 19; vAd = 20; vAcc = 28; vB = 64; vF = 96
    p(f"""
    s_cmp_ge_u32 s2, 256
    s_cbranch_scc1 K2_END
    s_load_dwordx2 s[4:5], s[0:1], 32
    s_load_dwordx2 s[6:7], s[0:1], 56
    v_and_b32 v{vL}, 63, v0
    v_lshrrev_b32 v2, 6, v0
    s_and_b32 s{sXc}, s2, 7
    s_lshr_b32 s{sT1}, s2, 3
    v_readfirstlane_b32 s{sWave}, v2
    s_lshr_b32 s{sB}, s{sT1}, 2
    s_and_b32 s{sNg}, s{sT1}, 3
    s_and_b32 s{sQt}, s{sWave}, 3
    s_lshr_b32 s{sKh2}, s{sWave}, 2
    s_movk_i32 s{sT0}, 3641
    s_movk_i32 s{sT1}, 1152
    """)
    for i in range(9):
        p(f"""
        v_add_u32 v2, {64*i}, v{vL}
        v_mul_u32_u24 v3, s{sT0}, v2
        v_lshrrev_b32 v3, 16, v3
        v_mul_u32_u24 v4, 18, v3
        v_sub_u32 v4, v2, v4
        v_mul_u32_u24 v3, s{sT1}, v3
        v_lshl_add_u32 v3, v4, 4, v3
        v_subrev_u32 v{vOff+i}, {(i%4)*1024}, v3
        """)
    p(f"""
    v_lshrrev_b32 v2, 4, v{vL}
    v_and_b32 v3, 15, v{vL}
    v_lshrrev_b32 v4, 2, v3
    v_and_b32 v6, 3, v3
    v_lshl_add_u32 v2, v2, 2, v4
    v_mul_u32_u24 v2, 288, v2
    v_lshl_add_u32 v{vLA}, v6, 3, v2
    v_lshlrev_b32 v5, 4, v{vL}
    s_waitcnt lgkmcnt(0)
    """)
    stamp(p, o, 0)
    p(f"""
    s_mul_i32 s{sT0}, s{sXc}, {512*1152}
    s_mul_i32 s{sT1}, s{sNg}, 288
    s_add_u32 s{sT0}, s{sT0}, s{sT1}
    s_add_u32 s{rW}, s{sWo}, s{sT0}
    s_addc_u32 s{rW+1}, s{sWo+1}, 0
    s_sub_u32 s{rW+2}, {4096*1152}, s{sT0}
    s_mov_b32 s{rW+3}, 0x20000
    s_mov_b32 s{rO}, s{sWs}
    s_mov_b32 s{rO+1}, s{sWs+1}
    s_mov_b32 s{rO+2}, {WS_SIZE}
    s_mov_b32 s{rO+3}, 0x20000
    """)
    for rep in range(2):
        p(f"""
        s_add_u32 s{sT0}, s{sWave}, {8*rep}
        s_mul_i32 s{sT1}, s{sT0}, 9216
        s_mul_i32 s{sT0}, s{sT0}, 36864
        """)
        for i in range(9):
            if i % 4 == 0:
                p(f"s_add_u32 m0, s{sT1}, {(i//4)*4096}")
            p(f"buffer_load_dwordx4 v{vOff+i}, s[{rW}:{rW+3}], s{sT0} offen offset:{(i%4)*1024} lds")
    p(f"""
    s_lshl_b32 s{sT0}, s{sB}, 3
    s_add_u32 s{sT0}, s{sT0}, s{sXc}
    s_lshl_b32 s{sT0}, s{sT0}, 2
    s_lshl_b32 s{sT1}, s{sKh2}, 1
    s_add_u32 s{sT0}, s{sT0}, s{sT1}
    s_lshl_b32 s{sT0}, s{sT0}, 14
    s_lshl_b32 s{sT1}, s{sQt}, 12
    s_add_u32 s{sT0}, s{sT0}, s{sT1}
    s_add_u32 s{sT1}, s{sT0}, 16384
    """)
    for kk in range(8):
        p(f"buffer_load_dwordx4 {rg(vB+4*kk,4)}, v5, s[{rO}:{rO+3}], s{sT0 if kk < 4 else sT1} offen offset:{(kk&3)*1024}")
    for i in range(36):
        p(f"v_mov_b32 v{vAcc+i}, 0")
    p(f"""
    s_waitcnt vmcnt(8)
    s_barrier
    s_mul_i32 s{sT2}, s{sKh2}, {8*9216}
    """)
    stamp(p, o, 1)
    gemm_body(p, vAcc, vB, vF, vAd, vLA, f"v_add_u32 v{vAd}, s{sT2}, v{vLA}")
    stamp(p, o, 2)
    p(f"""
    s_barrier
    s_mul_i32 s{sT0}, s{sQt}, 9216
    v_add_u32 v2, s{sT0}, v5
    s_cmp_eq_u32 s{sKh2}, 0
    s_cbranch_scc0 K2_H1
    """)
    for nt in range(5, 9):
        p(f"ds_write_b128 v2, {rg(vAcc+4*nt,4)} offset:{nt*1024}")
    p("s_branch K2_H2")
    p.label("K2_H1")
    for nt in range(0, 5):
        p(f"ds_write_b128 v2, {rg(vAcc+4*nt,4)} offset:{nt*1024}")
    p.label("K2_H2")
    p(f"""
    s_lshl_b32 s{sT0}, s{sXc}, 3
    s_add_u32 s{sT0}, s{sT0}, s{sB}
    s_lshl_b32 s{sT0}, s{sT0}, 2
    s_add_u32 s{sT0}, s{sT0}, s{sNg}
    s_lshl_b32 s{sT0}, s{sT0}, 2
    s_add_u32 s{sT0}, s{sT0}, s{sQt}
    s_mul_i32 s{sT0}, s{sT0}, 9216
    s_add_u32 s{sT0}, s{sT0}, {WS_PART}
    s_waitcnt lgkmcnt(0)
    s_barrier
    s_cmp_eq_u32 s{sKh2}, 0
    s_cbranch_scc0 K2_H3
    """)
    def fin(nts):
        for nt in nts:
            p(f"ds_read_b128 {rg(vF+4*nt,4)}, v2 offset:{nt*1024}")
        for idx, nt in enumerate(nts):
            p(f"s_waitcnt lgkmcnt({len(nts)-1-idx})")
            for e in range(4):
                p(f"v_add_f32 v{vAcc+4*nt+e}, v{vAcc+4*nt+e}, v{vF+4*nt+e}")
            p(f"s_add_u32 s{sT1}, s{sT0}, {(nt//4)*4096}")
            p(f"buffer_store_dwordx4 {rg(vAcc+4*nt,4)}, v5, s[{rO}:{rO+3}], s{sT1} offen offset:{(nt%4)*1024}")
    fin(list(range(0, 5)))
    p("s_branch K2_H4")
    p.label("K2_H3")
    fin(list(range(5, 9)))
    p.label("K2_H4")
    if o.stamps:
        stamp(p, o, 3)
        p("s_waitcnt vmcnt(0)")
        stamp(p, o, 4)
        stamp_flush(p, o, 1, 5, sWs)
    p.label("K2_END")
    p("s_endpgm")
    return p

def gen_k3(o):
    gen.WS_PART = WS_PART
    return gen.gen_k3(o)

def emit(o):
    ks = [('standalone__gqa_block_cached__near_ridge_kernel' if o.fuse == 2 else 'gqa_main_kernel', gen_main(o), 256, 512, 163840)]
    if o.fuse == 0:
        ks += [('gqa_oproj_kernel', gen_k2(o), 256, 512, 147456)]
    if o.fuse <= 1:
        ks += [('gqa_reduce_kernel', gen_k3(o), 288, 256, 0)]
    if o.dbg == 2:
        ks = ks[:1]
    out = [HEADER.rstrip()]
    for name, _, g, b, lds in ks:
        if len(ks) == 1 and o.fuse == 2:
            out.append(f"; @launch grid=({g},1,1) block=({b},1,1) lds={lds}")
        else:
            out.append(f"; @launch kernel={name} grid=({g},1,1) block=({b},1,1) lds={lds}")
    out.append('.amdgcn_target "amdgcn-amd-amdhsa--gfx950"')
    out.append('.text')
    for name, p, g, b, lds in ks:
        n = p.fix_hazards()
        errs = p.lint_waits()
        for e in errs[:20]:
            print(f"LINT[{name}]: {e}", file=sys.stderr)
        nv, ns = p.max_regs()
        print(f"{name}: {len(p.ins)} instrs, vgpr {nv}, sgpr {ns}, nops inserted {n}", file=sys.stderr)
        out.append(f".globl {name}\n.p2align 8\n.type {name},@function\n{name}:")
        out.append(p.text())
        out.append(kd(name, max(nv, 8), max(ns, 16)))
    return '\n'.join(out) + '\n'

if __name__ == '__main__':
    ap = argparse.ArgumentParser()
    ap.add_argument('-o', default='standalone__gqa_block_cached__near_ridge.s')
    for k, d in OPTS.items():
        ap.add_argument('--' + k, type=int, default=d)
    a = ap.parse_args()
    o = Opt()
    for k in OPTS:
        setattr(o, k, getattr(a, k))
    open(a.o, 'w').write(emit(o))
```

```python
import sys, argparse
from asmlib import Prog
import gen
from gen import f32bits, SCALE_LOG2E, stamp_flush, kd, HEADER
from gen import stamp as _stamp
STSETS = {0: {0:0,1:1,2:2,3:3,4:4,5:5,6:6,7:7,8:8,9:9},
          1: {5:0, 'e1':1, 'e2':2, 'e3':3, 'e4':4, 6:5, 7:6, 'g0':7, 8:8, 9:9},
          3: {'c0':0,'c1':1,'c2':2,'c3':3,'c4':4,'c5':5,'c6':6,'c7':7,'c8':8, 2:9},
          4: {0:0,'c0':1,'w1':2,'c1':3,'m1':4,'w2':5,'c2':6,'m2':7,'w3':8,'c3':9},
          2: {7:0, 'g0':1, 8:2, 'r1':3, 'r2':4, 'r3':5, 9:6, 'p1':7, 'p2':8, 'p3':9}}
def stamp(p, o, name):
    m = STSETS[getattr(o, 'stset', 0)]
    if name in m: _stamp(p, o, m[name])


WS_O = 0
WS_PART = 4 << 20
WS_FLAG = 16 << 20
WS_SIZE = 17 << 20
MF = 'v_mfma_f32_32x32x16_bf16'
MF16 = 'v_mfma_f32_16x16x32_bf16'
def rg(b, n): return f"v[{b}:{b+n-1}]" if n > 1 else f"v{b}"

class Opt(gen.Opt):
    pass

OPTS = dict(prepoll=1, early=1, dry=0, dmapos=1, skew=0, stset=0, nt=1, dbg=0, stamps=0, stampwave=0, wt=1, kdel=5, k1del=5, late=0, fuse=2, wot=1)
SPIN = 1 << 18

def gen_main(o):
    p = Prog()
    NT = ' nt' if o.nt else ''
    sX, sK, sV, sWq, sWs, sWo = 4, 6, 8, 10, 12, 14
    rK, rV, rW, rX, rO = 16, 20, 24, 28, 32
    sWave, sB, sH, sXc, sQh, sKq = 36, 37, 38, 39, 40, 41
    sRK, sRV, sOff, sIss, sCnt, sJj = 42, 43, 44, 45, 46, 47
    sC, sT0, sT1, sT2 = 48, 49, 50, 51
    sW4096, sWg = 53, 54
    sPar, sStep, sEK, sRngV, sKprev, sOffB = 55, 56, 57, 52, 98, 99
    vOb = 250
    sOut, sDbg, sN, sTag = 80, 82, 84, 86
    vL = 1
    vKo = 10; vVo = 14
    vWo = 15; vXo = 17; vLW = 21; vLX = 22
    vVA = 15; vTn = 19
    vLK = 23; vLV = 24
    vKA = 28
    vM, vThr, vL0, vL1 = 36, 37, 38, 39
    vQ = 40
    vS = [72, 88]
    vP = 104
    vKf = 112
    vVf = 144
    vO = 176
    vOff = 240
    vDum = 249
    vNon = 20
    R = [i * 32768 for i in range(5)]
    QS = [139264, 65536, 90112, 114688]
    lab = [0]
    def nl(s):
        lab[0] += 1
        return f"K1_{s}{lab[0]}"
    vq = []
    def vissue(tag, n): vq.extend([tag] * n)
    def vneed(*tags):
        idx = [i for i, t in enumerate(vq) if t in tags]
        if not idx: return 63
        n = len(vq) - 1 - idx[-1]
        del vq[:idx[-1] + 1]
        return min(n, 63)

    p(f"""
    s_cmp_ge_u32 s2, 256
    s_cbranch_scc1 K1_END
    s_load_dwordx4 s[4:7], s[0:1], 0
    s_load_dwordx4 s[8:11], s[0:1], 16
    s_load_dwordx2 s[12:13], s[0:1], 56
    s_load_dwordx2 s[14:15], s[0:1], 32
    s_load_dwordx4 s[80:83], s[0:1], 40
    v_and_b32 v{vL}, 63, v0
    v_lshrrev_b32 v2, 6, v0
    s_and_b32 s{sXc}, s2, 7
    s_lshr_b32 s{sT1}, s2, 3
    v_readfirstlane_b32 s{sWave}, v2
    s_lshr_b32 s{sB}, s{sT1}, 2
    s_and_b32 s{sJj}, s{sT1}, 3
    s_lshl_b32 s{sH}, s{sXc}, 2
    s_add_u32 s{sH}, s{sH}, s{sJj}
    s_lshl_b32 s{sWg}, s{sB}, 5
    s_add_u32 s{sWg}, s{sWg}, s{sH}
    s_and_b32 s{sQh}, s{sWave}, 1
    s_lshr_b32 s{sKq}, s{sWave}, 1
    s_and_b32 s{sPar}, s{sH}, {1 if o.skew else 0}
    s_lshl_b32 s{sW4096}, s{sWave}, 12
    s_mov_b32 s{sC}, 0x{f32bits(SCALE_LOG2E):08x}
    v_and_b32 v2, 15, v{vL}
    v_lshrrev_b32 v3, 4, v{vL}
    v_lshrrev_b32 v4, 2, v2
    v_and_b32 v5, 3, v2
    v_lshrrev_b32 v6, 5, v{vL}
    v_and_b32 v7, 31, v{vL}
    v_lshlrev_b32 v8, 2, v3
    v_xor_b32 v8, v8, v2
    v_lshlrev_b32 v8, 4, v8
    v_lshl_add_u32 v{vVo}, v3, 8, v8
    v_lshl_add_u32 v{vWo}, v3, 13, v8
    v_add_u32 v{vWo+1}, 31744, v{vWo}
    s_lshl_b32 s{sT0}, s{sWave}, 3
    s_movk_i32 s{sT1}, 1152
    v_lshrrev_b32 v8, 3, v{vL}
    v_add_u32 v8, s{sT0}, v8
    v_mul_lo_u32 v8, v8, s{sT1}
    s_lshl_b32 s{sT0}, s{sWave}, 2
    v_add_u32 v9, s{sT0}, v3
    v_and_b32 v9, 7, v9
    v_and_b32 v{vXo}, 7, v{vL}
    v_xor_b32 v9, v9, v{vXo}
    v_lshl_add_u32 v{vXo}, v9, 4, v8
    """)
    p("s_waitcnt lgkmcnt(0)")
    stamp(p, o, 0)
    p(f"""
    s_lshl_b32 s{sT0}, s{sH}, 8
    s_add_u32 s{rW}, s{sWq}, s{sT0}
    s_addc_u32 s{rW+1}, s{sWq+1}, 0
    s_sub_u32 s{rW+2}, {576*8192}, s{sT0}
    s_mov_b32 s{rW+3}, 0x20000
    s_mul_i32 s{sT0}, s{sB}, {64*1152}
    s_add_u32 s{rX}, s{sX}, s{sT0}
    s_addc_u32 s{rX+1}, s{sX+1}, 0
    s_mov_b32 s{rX+2}, {64*1152}
    s_mov_b32 s{rX+3}, 0x20000
    """)

    def issue_chunk(c):
        qs = QS[c % 4]
        p(f"""
        s_lshl_b32 s{sT0}, s{sWave}, 16
        s_add_u32 s{sT0}, s{sT0}, {c*524288}
        s_lshr_b32 s{sT1}, s{sW4096}, 1
        s_add_u32 m0, s{sT1}, {qs}
        """)
        for u in range(2):
            p(f"buffer_load_dwordx4 v{vWo+u}, s[{rW}:{rW+3}], s{sT0} offen offset:{u*1024} lds")
        p(f"""
        s_lshr_b32 s{sT1}, s{sW4096}, 2
        s_add_u32 m0, s{sT1}, {qs+16384}
        s_movk_i32 s{sT0}, {c*128}
        buffer_load_dwordx4 v{vXo}, s[{rX}:{rX+3}], s{sT0} offen lds
        """)
        vissue(('C', c), 3)

    if o.wt:
        p(f"""
        s_cmp_eq_u32 s{sWave}, 4
        s_cbranch_scc0 K1_WT1
        v_lshrrev_b32 v8, 1, v{vL}
        v_and_b32 v9, 1, v{vL}
        v_lshlrev_b32 v8, 13, v8
        v_lshl_add_u32 v8, v9, 7, v8
        s_mul_i32 s{sT0}, s{sB}, {72*8192}
        buffer_load_dword v{vDum}, v8, s[{rW}:{rW+3}], s{sT0} offen
        s_add_u32 s{sT0}, s{sT0}, {32*8192}
        buffer_load_dword v{vDum}, v8, s[{rW}:{rW+3}], s{sT0} offen
        s_add_u32 s{sT0}, s{sT0}, {32*8192}
        v_cmp_gt_u32 vcc, 16, v{vL}
        s_and_saveexec_b64 s[58:59], vcc
        buffer_load_dword v{vDum}, v8, s[{rW}:{rW+3}], s{sT0} offen
        s_mov_b64 exec, s[58:59]
        """)
        p.label("K1_WT1")
        p(f"""
        s_cmp_eq_u32 s{sWave}, 5
        s_cbranch_scc0 K1_WT2
        v_lshlrev_b32 v9, 7, v{vL}
        s_mul_i32 s{sT0}, s{sJj}, 18432
        buffer_load_dword v{vDum}, v9, s[{rX}:{rX+3}], s{sT0} offen
        s_add_u32 s{sT0}, s{sT0}, 8192
        buffer_load_dword v{vDum}, v9, s[{rX}:{rX+3}], s{sT0} offen
        s_add_u32 s{sT0}, s{sT0}, 8192
        v_cmp_gt_u32 vcc, 16, v{vL}
        s_and_saveexec_b64 s[58:59], vcc
        buffer_load_dword v{vDum}, v9, s[{rX}:{rX+3}], s{sT0} offen
        s_mov_b64 exec, s[58:59]
        """)
        p.label("K1_WT2")
    for c in range(4):
        issue_chunk(c)
    if o.fuse:
        p(f"""
        s_cmp_eq_u32 s2, 0
        s_cbranch_scc0 K1_NON
        s_cmp_eq_u32 s{sWave}, 7
        s_cbranch_scc0 K1_NON
        s_memrealtime s[{sN}:{sN+1}]
        s_waitcnt lgkmcnt(0)
        s_or_b32 s{sN}, s{sN}, 1
        v_mov_b32 v8, s{sN}
        v_mov_b32 v9, s{sN+1}
        v_mov_b32 v{vNon}, 0
        v_cmp_eq_u32 vcc, 0, v{vL}
        s_and_saveexec_b64 s[58:59], vcc
        global_store_dwordx2 v{vNon}, v[8:9], s[{sDbg}:{sDbg+1}] sc1
        s_mov_b64 exec, s[58:59]
        """)
        p.label("K1_NON")
    p(f"""
    s_lshl_b32 s{sT0}, s{sB}, 4
    s_lshr_b32 s{sT1}, s{sH}, 1
    s_add_u32 s{sT0}, s{sT0}, s{sT1}
    s_lshl_b32 s{sT0}, s{sT0}, 18
    s_add_u32 s{rK}, s{sK}, s{sT0}
    s_addc_u32 s{rK+1}, s{sK+1}, 0
    s_mov_b32 s{rK+2}, 0x40000
    s_mov_b32 s{rK+3}, 0x20000
    s_add_u32 s{rV}, s{sV}, s{sT0}
    s_addc_u32 s{rV+1}, s{sV+1}, 0
    s_mov_b32 s{rV+2}, 0x40000
    s_mov_b32 s{rV+3}, 0x20000
    s_mov_b32 s{rO}, s{sWs}
    s_mov_b32 s{rO+1}, s{sWs+1}
    s_mov_b32 s{rO+2}, {WS_SIZE}
    s_mov_b32 s{rO+3}, 0x20000
    """)
    for u in range(4):
        p(f"""
        v_add_u32 v8, {4*u}, v3
        v_xor_b32 v8, v8, v2
        v_lshlrev_b32 v8, 4, v8
        v_lshl_add_u32 v{vKo+u}, v3, 8, v8
        """)

    def issue_kv(isK, tile, slot):
        p(f"""
        s_add_u32 s{sT0}, s{sW4096}, {tile*32768}
        s_add_u32 m0, s{sW4096}, {R[slot]}
        """)
        for u in range(4):
            if isK: p(f"buffer_load_dwordx4 v{vKo+u}, s[{rK}:{rK+3}], s{sT0} offen offset:{u*1024}{NT} lds")
            else:   p(f"buffer_load_dwordx4 v{vVo}, s[{rV}:{rV+3}], s{sT0} offen offset:{u*1024}{NT} lds")
        vissue(('K' if isK else 'V', tile), 4)
    VQ = {}
    def par_branch(f0, f1):
        l1, l2 = nl('P'), nl('P')
        p(f"s_cmp_eq_u32 s{sPar}, 0")
        p(f"s_cbranch_scc0 {l1}")
        sv = list(vq)
        f0()
        after0 = list(vq)
        p(f"s_branch {l2}")
        p.label(l1)
        del vq[:]; vq.extend(VQ.get(1, sv))
        f1()
        VQ[1] = list(vq)
        del vq[:]; vq.extend(after0)
        p.label(l2)
    def issue_v0k2():
        if o.skew == 2:
            par_branch(lambda: (issue_kv(True, 2, 2), issue_kv(False, 0, 3)), lambda: (issue_kv(False, 0, 2), issue_kv(False, 1, 3)))
            return
        l1, l2 = nl('P'), nl('P')
        p(f"s_cmp_eq_u32 s{sPar}, 0")
        p(f"s_cbranch_scc0 {l1}")
        sv = list(vq)
        issue_kv(False, 0, 2); issue_kv(True, 2, 3)
        p(f"s_branch {l2}")
        p.label(l1)
        del vq[:]; vq.extend(sv)
        issue_kv(False, 0, 3); issue_kv(True, 2, 2)
        p.label(l2)
    if o.kdel < 0:
        issue_kv(True, 0, 0)
    if o.k1del < 0:
        issue_kv(True, 1, 1)

    p(f"""
    v_lshl_add_u32 v8, v6, 3, v4
    v_lshlrev_b32 v8, 8, v8
    v_and_b32 v9, 1, v3
    v_lshlrev_b32 v9, 1, v9
    v_and_b32 v{vLW}, 1, v5
    v_add_u32 v9, v9, v{vLW}
    s_lshl_b32 s{sT0}, s{sKq}, 2
    v_add_u32 v9, s{sT0}, v9
    v_lshlrev_b32 v{vLW}, 2, v4
    v_xor_b32 v9, v9, v{vLW}
    v_lshl_add_u32 v8, v9, 4, v8
    v_lshrrev_b32 v9, 1, v5
    v_lshl_add_u32 v{vLW}, v9, 3, v8
    s_lshl_b32 s{sT0}, s{sQh}, 5
    v_add_u32 v8, s{sT0}, v7
    v_lshrrev_b32 v9, 1, v8
    v_and_b32 v9, 7, v9
    v_xor_b32 v9, v9, v6
    v_lshlrev_b32 v9, 4, v9
    v_lshl_add_u32 v{vLX}, v8, 7, v9
    s_lshl_b32 s{sT0}, s{sKq}, 5
    v_add_u32 v8, s{sT0}, v7
    v_and_b32 v9, 15, v8
    v_xor_b32 v9, v9, v6
    v_lshlrev_b32 v9, 4, v9
    v_lshl_add_u32 v{vLK}, v8, 8, v9
    v_lshl_add_u32 v8, v6, 2, v4
    v_add_u32 v8, s{sT0}, v8
    v_lshlrev_b32 v8, 8, v8
    v_and_b32 v9, 1, v5
    v_lshl_add_u32 v8, v9, 3, v8
    v_and_b32 v9, 1, v3
    v_lshlrev_b32 v9, 1, v9
    v_lshrrev_b32 v2, 1, v5
    v_add_u32 v9, v9, v2
    v_lshlrev_b32 v2, 2, v4
    """)
    for a in range(4):
        p(f"""
        s_add_u32 s{sT1}, s{sKq}, {a}
        s_and_b32 s{sT1}, s{sT1}, 3
        s_lshl_b32 s{sT1}, s{sT1}, 2
        v_add_u32 v3, s{sT1}, v9
        v_xor_b32 v3, v3, v2
        v_lshl_add_u32 v{vLV+a}, v3, 4, v8
        """)
    for i in range(16):
        p(f"v_mov_b32 v{vS[0]+i}, 0")
    for i in range(64):
        p(f"v_mov_b32 v{vO+i}, 0")
    p(f"""
    v_mov_b32 v{vM}, 0xf149f2ca
    v_mov_b32 v{vThr}, 0xf149f2ca
    v_mov_b32 v{vL0}, 0
    v_mov_b32 v{vL1}, 0
    """)
    if o.fuse:
        p(f"""
        s_movk_i32 s{sT0}, 3641
        s_movk_i32 s{sT1}, 1152
        """)
        for i in range(9):
            p(f"""
            v_add_u32 v2, {64*i}, v{vL}
            v_mul_u32_u24 v3, s{sT0}, v2
            v_lshrrev_b32 v3, 16, v3
            v_mul_u32_u24 v4, 18, v3
            v_sub_u32 v4, v2, v4
            v_mul_u32_u24 v3, s{sT1}, v3
            v_lshl_add_u32 v3, v4, 4, v3
            v_subrev_u32 v{vOff+i}, {(i%4)*1024}, v3
            """)

    FB = [vKf, vVf]
    A0 = vKA
    def q_phase(c, reads, extra):
        f = FB[(c - 1) % 2]
        rd = list(reads); ex = list(extra)
        for ks in range(4):
            if c >= 1:
                p(f"{MF} {rg(vS[0],16)}, {rg(f+8*ks,4)}, {rg(f+8*ks+4,4)}, {rg(vS[0],16)}")
            for _ in range(3):
                if rd: p(rd.pop(0))
            if ex and ks >= 1: ex.pop(0)()
        for e in ex: e()
    for c in range(9):
        qs = QS[c % 4]
        f = FB[c % 2]
        n = vneed(('C', c))
        p(f"""
        v_add_u32 v{A0}, {qs}, v{vLW}
        v_add_u32 v{A0+1}, {qs+16384}, v{vLX}
        v_xor_b32 v{A0+2}, 32, v{A0+1}
        v_xor_b32 v{A0+3}, 64, v{A0+1}
        v_xor_b32 v{A0+4}, 96, v{A0+1}
        s_waitcnt vmcnt({n}) lgkmcnt(0)
        """)
        stamp(p, o, f'w{c}')
        p("s_barrier")
        if c == 0: stamp(p, o, 1)
        stamp(p, o, f'c{c}')
        reads = []
        for ks in range(4):
            reads.append(f"ds_read_b64_tr_b16 {rg(f+8*ks,2)}, v{A0} offset:{ks*4096}")
            reads.append(f"ds_read_b64_tr_b16 {rg(f+8*ks+2,2)}, v{A0} offset:{ks*4096+1024}")
            reads.append(f"ds_read_b128 {rg(f+8*ks+4,4)}, v{A0+1+ks}")
        extra = []
        if 1 <= c <= 5: extra.append(lambda c=c: issue_chunk(c + 3))
        if c == o.kdel:
            extra.append(lambda: issue_kv(True, 0, 0))
            if o.k1del == c: extra.append(lambda: issue_kv(True, 1, 1))
        elif c == o.k1del:
            extra.append(lambda: issue_kv(True, 1, 1))
        if c == 8 and o.late == 0:
            extra.append(issue_v0k2)
        q_phase(c, reads, extra)
        stamp(p, o, f'm{c}')
    p("s_waitcnt lgkmcnt(0)")
    p("s_barrier")
    q_phase(9, [], [])
    stamp(p, o, 2)
    QX = R[4]
    p(f"""
    s_lshl_b32 s{sT0}, s{sQh}, 13
    s_lshl_b32 s{sT1}, s{sKq}, 11
    s_add_u32 s{sT1}, s{sT1}, s{sT0}
    s_add_u32 s{sT1}, s{sT1}, {QX}
    s_add_u32 s{sT0}, s{sT0}, {QX}
    v_lshlrev_b32 v2, 4, v{vL}
    v_add_u32 v3, s{sT1}, v2
    v_add_u32 v2, s{sT0}, v2
    """)
    p(f"v_mov_b32 v{vKA}, v{vLK}")
    for s in range(1, 8):
        p(f"v_xor_b32 v{vKA+s}, {s<<5}, v{vLK}")
    for j in range(8):
        p(f"v_cvt_pk_bf16_f32 v{vP+j}, v{vS[0]+2*j}, v{vS[0]+2*j+1}")
    p(f"""
    ds_write_b128 v3, {rg(vP,4)}
    ds_write_b128 v3, {rg(vP+4,4)} offset:1024
    s_waitcnt lgkmcnt(0)
    s_barrier
    """)
    for s in range(8):
        p(f"ds_read_b128 {rg(vQ+4*s,4)}, v2 offset:{s*1024}")
    if o.kdel > 8: issue_kv(True, 0, 0)
    if o.k1del > 8: issue_kv(True, 1, 1)
    if o.late:
        issue_v0k2()

    def k_addrs(sreg):
        p(f"v_add_u32 v{vKA}, s{sreg}, v{vLK}")
        for s in range(1, 8):
            p(f"v_xor_b32 v{vKA+s}, {s<<5}, v{vKA}")
    def v_addrs(sreg):
        for a in range(4):
            p(f"v_add_u32 v{vVA+a}, s{sreg}, v{vLV+a}")
    def advance_slot(s):
        p(f"""
        s_add_u32 s{s}, s{s}, 32768
        s_cmp_eq_u32 s{s}, {5*32768}
        s_cselect_b32 s{s}, 0, s{s}
        """)
    def tmax(S):
        p(f"""
        v_max3_f32 v2, v{S}, v{S+1}, v{S+2}
        v_max3_f32 v3, v{S+3}, v{S+4}, v{S+5}
        v_max3_f32 v2, v2, v{S+6}, v{S+7}
        v_max3_f32 v3, v3, v{S+8}, v{S+9}
        v_max3_f32 v2, v2, v{S+10}, v{S+11}
        v_max3_f32 v3, v3, v{S+12}, v{S+13}
        v_max3_f32 v2, v2, v{S+14}, v{S+15}
        v_max_f32 v2, v2, v3
        v_mov_b32 v3, v2
        s_nop 1
        v_permlane32_swap_b32 v2, v3
        v_max_f32 v2, v2, v3
        v_mul_f32 v{vTn}, s{sC}, v2
        """)

    def need_both(tag):
        res = []
        for q in ([vq] if o.skew != 2 else [vq, VQ[1]]):
            idx = [i for i, t in enumerate(q) if t == tag]
            if not idx: res.append(63); continue
            res.append(min(63, len(q) - 1 - idx[-1]))
            del q[:idx[-1] + 1]
        return res if len(res) == 2 else res * 2
    def wait2(n0, n1):
        if n0 == n1:
            p(f"s_waitcnt vmcnt({n0}) lgkmcnt(0)")
        else:
            l1, l2 = nl('W'), nl('W')
            p(f"s_cmp_eq_u32 s{sPar}, 0")
            p(f"s_cbranch_scc0 {l1}")
            p(f"s_waitcnt vmcnt({n0}) lgkmcnt(0)")
            p(f"s_branch {l2}")
            p.label(l1)
            p(f"s_waitcnt vmcnt({n1}) lgkmcnt(0)")
            p.label(l2)
    if o.skew == 2 and 1 not in VQ: VQ[1] = list(vq)
    wait2(*need_both(('K', 0)))
    p("s_barrier")
    stamp(p, o, 3)
    for s in range(8):
        p(f"ds_read_b128 {rg(vKf+4*s,4)}, v{vKA+s}")
    if o.skew == 2: par_branch(lambda: issue_kv(False, 1, 4), lambda: issue_kv(False, 2, 4))
    else: issue_kv(False, 1, 4)
    p(f"s_mov_b32 s{sRK}, {R[1]}")
    wait2(*need_both(('K', 1)))
    p("s_barrier")
    k_addrs(sRK)
    for s in range(8):
        c = '0' if s == 0 else rg(vS[0], 16)
        p(f"{MF} {rg(vS[0],16)}, {rg(vKf+4*s,4)}, {rg(vQ+4*s,4)}, {c}")
    for s in range(8):
        p(f"ds_read_b128 {rg(vKf+4*s,4)}, v{vKA+s}")
    if o.skew == 2: par_branch(lambda: issue_kv(True, 3, 0), lambda: issue_kv(True, 2, 0))
    else: issue_kv(True, 3, 0)
    if o.skew == 2:
        p(f"""
        s_mov_b32 s{sKprev}, {R[1]}
        s_mov_b32 s{sRV}, {R[2]}
        s_mov_b32 s{sRK}, {R[0]}
        s_mov_b32 s{sStep}, 32768
        s_mov_b32 s{sEK}, {R[2]}
        s_mov_b32 s{sRngV}, {3*32768}
        s_mov_b32 s{sOff}, {3*32768}
        s_mov_b32 s{sOffB}, {3*32768}
        s_cmp_eq_u32 s{sPar}, 0
        s_cselect_b32 s{sRV}, {R[3]}, s{sRV}
        s_cselect_b32 s{sRK}, {R[2]}, s{sRK}
        s_cselect_b32 s{sEK}, {R[3]}, s{sEK}
        s_cselect_b32 s{sRngV}, {2*32768}, s{sRngV}
        s_cselect_b32 s{sOff}, {4*32768}, s{sOff}
        s_cselect_b32 s{sOffB}, {2*32768}, s{sOffB}
        s_mov_b32 s{sT0}, s{rK}
        s_mov_b32 s{sT1}, s{rK+1}
        s_mov_b32 s{rK}, s{rV}
        s_mov_b32 s{rK+1}, s{rV+1}
        s_mov_b32 s{rV}, s{sT0}
        s_mov_b32 s{rV+1}, s{sT1}
        s_add_u32 s{sOff}, s{sOff}, s{sW4096}
        s_add_u32 s{sOffB}, s{sOffB}, s{sW4096}
        s_mov_b32 s{sCnt}, 0
        """)
        for u in range(4): p(f"v_mov_b32 v{vOb+u}, v{vVo}")
    else:
        p(f"""
        s_mov_b32 s{sKprev}, {R[1]}
        s_mov_b32 s{sRV}, {R[3]}
        s_mov_b32 s{sRK}, {R[2]}
        s_mov_b32 s{sStep}, 32768
        s_mov_b32 s{sEK}, {R[3]}
        s_mov_b32 s{sRngV}, 65536
        s_mov_b32 s{sOff}, {4*32768}
        s_mov_b32 s{sOffB}, {2*32768}
        s_cmp_eq_u32 s{sPar}, 0
        s_cselect_b32 s{sRV}, {R[2]}, s{sRV}
        s_cselect_b32 s{sRK}, {R[3]}, s{sRK}
        s_cselect_b32 s{sStep}, 65536, s{sStep}
        s_cselect_b32 s{sEK}, {5*32768}, s{sEK}
        s_cselect_b32 s{sRngV}, {5*32768}, s{sRngV}
        s_cselect_b32 s{sOff}, {2*32768}, s{sOff}
        s_cselect_b32 s{sOffB}, {4*32768}, s{sOffB}
        s_cbranch_scc1 K1_PAR0
        s_mov_b32 s{sT0}, s{rK}
        s_mov_b32 s{sT1}, s{rK+1}
        s_mov_b32 s{rK}, s{rV}
        s_mov_b32 s{rK+1}, s{rV+1}
        s_mov_b32 s{rV}, s{sT0}
        s_mov_b32 s{rV+1}, s{sT1}
        """)
        for u in range(4): p(f"v_mov_b32 v{vOb+u}, v{vVo}")
        p("s_branch K1_PAR1")
        p.label("K1_PAR0")
        for u in range(4):
            p(f"v_mov_b32 v{vOb+u}, v{vKo+u}")
        for u in range(4):
            p(f"v_mov_b32 v{vKo+u}, v{vVo}")
        p.label("K1_PAR1")
        p(f"""
        s_add_u32 s{sOff}, s{sOff}, s{sW4096}
        s_add_u32 s{sOffB}, s{sOffB}, s{sW4096}
        s_mov_b32 s{sCnt}, 0
        """)
    v_addrs(sRV)
    k_addrs(sRK)
    tmax(vS[0])

    W = {}; WP = {0: {}, 1: {}}
    for par in (0, 1):
        q2 = list(vq if (par == 0 or o.skew != 2) else VQ[1])
        def need2(tag):
            idx = [i for i, t in enumerate(q2) if t == tag]
            if not idx: return 63
            n = len(q2) - 1 - idx[-1]
            del q2[:idx[-1] + 1]
            return min(n, 63)
        for i in range(8):
            n = need2(('V', i)); WP[par][('a', i)] = n
            if o.skew == 2: ta, tb = ('K', i + 4 - par), ('V', i + 2 + par)
            else: ta, tb = (('V', i + 2), ('K', i + 4)) if par == 0 else (('K', i + 4), ('V', i + 2))
            if i <= 5: q2.extend([ta] * 4)
            if i <= 5:
                n = need2(('K', i + 2)); WP[par][('b', i)] = n
                q2.extend([tb] * 4)
        if not o.skew: WP[1] = WP[0]; break
    for k in WP[0]:
        W[k] = (WP[0][k], WP[1][k]) if o.skew == 2 else (min(WP[0][k], WP[1][k]),) * 2
    print('loop waits', W, file=sys.stderr)

    def alpha(tag, cur, do_qk, issue, wv):
        S, Sn = vS[cur], vS[1 - cur]
        wait2(*wv)
        p(f"""
        s_barrier
        v_cmp_gt_f32 vcc, v{vTn}, v{vThr}
        s_cbranch_vccnz K1_RS{tag}
        """)
        p.label(f"K1_BK{tag}")
        reads = [(a, ks, h) for a in range(4) for ks in range(2) for h in range(2)]
        for j in range(8):
            if do_qk:
                c = '0' if j == 0 else rg(Sn, 16)
                p(f"{MF} {rg(Sn,16)}, {rg(vKf+4*j,4)}, {rg(vQ+4*j,4)}, {c}")
            for (a, ks, h) in reads[2*j:2*j+2]:
                f = vVf + (a * 2 + ks) * 4 + 2 * h
                p(f"ds_read_b64_tr_b16 {rg(f,2)}, v{vVA+a} offset:{ks*4096+h*2048}")
            p(f"v_fma_f32 v{S+2*j}, v{S+2*j}, s{sC}, -v{vM}")
            p(f"v_fma_f32 v{S+2*j+1}, v{S+2*j+1}, s{sC}, -v{vM}")
            p(f"v_exp_f32 v{S+2*j}, v{S+2*j}")
            p(f"v_exp_f32 v{S+2*j+1}, v{S+2*j+1}")
            if j >= 1:
                k = j - 1
                p(f"v_cvt_pk_bf16_f32 v{vP+k}, v{S+2*k}, v{S+2*k+1}")
                p(f"v_add_f32 v{vL0}, v{vL0}, v{S+2*k}")
                p(f"v_add_f32 v{vL1}, v{vL1}, v{S+2*k+1}")
            if issue and j == 0:
                p(f"s_add_u32 m0, s{sKprev}, s{sW4096}")
            if issue and o.dmapos == 0 and j in (1, 3, 5, 7):
                u = (j - 1) // 2
                p(f"buffer_load_dwordx4 v{vKo+u}, s[{rV}:{rV+3}], s{sOff} offen offset:{u*1024}{NT} lds")
        p(f"v_cvt_pk_bf16_f32 v{vP+7}, v{S+14}, v{S+15}")
        p(f"v_add_f32 v{vL0}, v{vL0}, v{S+14}")
        p(f"v_add_f32 v{vL1}, v{vL1}, v{S+15}")
        if issue and o.dmapos == 1:
            for u in range(4):
                p(f"buffer_load_dwordx4 v{vKo+u}, s[{rV}:{rV+3}], s{sOff} offen offset:{u*1024}{NT} lds")
        if issue:
            p(f"s_add_u32 s{sOff}, s{sOff}, 32768")

    def beta(tag, cur, read_k, issue, do_tmax, wv, barrier=True, extra=None):
        Sn = vS[1 - cur]
        wait2(*wv)
        if barrier: p("s_barrier")
        n = 0
        for a in range(4):
            for ks in range(2):
                f = vVf + (a * 2 + ks) * 4
                p(f"{MF} {rg(vO+16*a,16)}, {rg(f,4)}, {rg(vP+4*ks,4)}, {rg(vO+16*a,16)}")
                if read_k:
                    p(f"ds_read_b128 {rg(vKf+4*n,4)}, v{vKA+n}")
                if issue and n == 0:
                    p(f"s_add_u32 m0, s{sRV}, s{sW4096}")
                if issue and o.dmapos == 0 and n in (1, 3, 5, 7):
                    u = (n - 1) // 2
                    p(f"buffer_load_dwordx4 v{vOb+u}, s[{rK}:{rK+3}], s{sOffB} offen offset:{u*1024}{NT} lds")
                if n == 2 and do_tmax:
                    tmax(Sn)
                n += 1
        if issue and o.dmapos == 1:
            pass
        if issue and o.dmapos == 1:
            for u in range(4):
                p(f"buffer_load_dwordx4 v{vOb+u}, s[{rK}:{rK+3}], s{sOffB} offen offset:{u*1024}{NT} lds")
        if issue:
            p(f"s_add_u32 s{sOffB}, s{sOffB}, 32768")
        p(f"""
        s_mov_b32 s{sKprev}, s{sRK}
        s_add_u32 s{sRV}, s{sRV}, s{sStep}
        s_cmp_ge_u32 s{sRV}, {5*32768}
        s_cselect_b32 s{sT0}, s{sRngV}, 0
        s_sub_u32 s{sRV}, s{sRV}, s{sT0}
        s_add_u32 s{sRK}, s{sRK}, s{sStep}
        s_cmp_ge_u32 s{sRK}, s{sEK}
        s_cselect_b32 s{sT0}, s{sEK}, 0
        s_sub_u32 s{sRK}, s{sRK}, s{sT0}
        """)
        v_addrs(sRV)
        k_addrs(sRK)
        if extra: extra()

    def rescale(tag):
        p.label(f"K1_RS{tag}")
        p(f"""
        v_max_f32 v3, v{vTn}, v{vM}
        v_sub_f32 v4, v{vM}, v3
        v_exp_f32 v4, v4
        v_mov_b32 v{vM}, v3
        v_add_f32 v{vThr}, 0x41000000, v3
        """)
        p(f"v_mul_f32 v{vL0}, v{vL0}, v4")
        p(f"v_mul_f32 v{vL1}, v{vL1}, v4")
        for i in range(64):
            p(f"v_mul_f32 v{vO+i}, v{vO+i}, v4")
        p(f"s_branch K1_BK{tag}")

    def wo_srd():
        p(f"""
        s_mul_i32 s{sT0}, s{sXc}, {512*1152}
        s_mul_i32 s{sT1}, s{sJj}, 288
        s_add_u32 s{sT0}, s{sT0}, s{sT1}
        s_add_u32 s{rW}, s{sWo}, s{sT0}
        s_addc_u32 s{rW+1}, s{sWo+1}, 0
        s_sub_u32 s{rW+2}, {4096*1152}, s{sT0}
        s_mov_b32 s{rW+3}, 0x20000
        """)
    def wo_touch():
        if not (o.fuse and o.wot): return
        l = nl('WOT')
        p(f"""
        s_cmp_eq_u32 s{sCnt}, 1
        s_cbranch_scc0 {l}
        s_cmp_eq_u32 s{sWave}, 6
        s_cbranch_scc0 {l}
        s_mul_i32 s{sT0}, s{sXc}, {512*1152}
        s_add_u32 s{rX}, s{sWo}, s{sT0}
        s_addc_u32 s{rX+1}, s{sWo+1}, 0
        s_mov_b32 s{rX+2}, {512*1152}
        s_mov_b32 s{rX+3}, 0x20000
        s_lshr_b32 s{sT0}, s2, 3
        s_mul_i32 s{sT0}, s{sT0}, 18432
        v_lshlrev_b32 v2, 7, v{vL}
        buffer_load_dword v{vDum}, v2, s[{rX}:{rX+3}], s{sT0} offen
        s_add_u32 s{sT0}, s{sT0}, 8192
        buffer_load_dword v{vDum}, v2, s[{rX}:{rX+3}], s{sT0} offen
        s_add_u32 s{sT0}, s{sT0}, 8192
        v_cmp_gt_u32 vcc, 16, v{vL}
        s_and_saveexec_b64 s[58:59], vcc
        buffer_load_dword v{vDum}, v2, s[{rX}:{rX+3}], s{sT0} offen
        s_mov_b64 exec, s[58:59]
        """)
        p.label(l)

    wm = lambda keys: (min(W[k][0] for k in keys), min(W[k][1] for k in keys))
    loop_start = len(p.ins)
    p.label("K1_LOOP")
    alpha('L0', 0, True, True, wm([('a', 0), ('a', 2), ('a', 4)]))
    beta('L0', 0, True, True, True, wm([('b', 0), ('b', 2), ('b', 4)]))
    alpha('L1', 1, True, True, wm([('a', 1), ('a', 3), ('a', 5)]))
    beta('L1', 1, True, True, True, wm([('b', 1), ('b', 3), ('b', 5)]), extra=wo_touch)
    p(f"""
    s_add_u32 s{sCnt}, s{sCnt}, 1
    s_cmp_lt_u32 s{sCnt}, 3
    s_cbranch_scc1 K1_LOOP
    """)
    if o.dry:
        keep = []
        for x in p.ins[loop_start:]:
            drop = False
            if o.dry & 1 and x.kind == 'mfma': drop = True
            if o.dry & 2 and x.kind == 'ds': drop = True
            if o.dry & 4 and x.kind == 'valu' and not x.op.startswith('v_cmp'): drop = True
            if not drop: keep.append(x)
        p.ins[loop_start:] = keep
    stamp(p, o, 4)
    if o.fuse:
        p(f"""
        s_cmp_eq_u32 s{sWave}, 7
        s_cbranch_scc0 K1_NL
        v_mov_b32 v8, 0
        global_load_dwordx2 v[{vNon}:{vNon+1}], v8, s[{sDbg}:{sDbg+1}] sc1
        """)
        p.label("K1_NL")
    alpha('A', 0, True, False, W[('a', 6)])
    beta('A', 0, False, False, True, (63, 63), barrier=False)
    alpha('B', 1, False, False, W[('a', 7)])
    p("s_waitcnt vmcnt(0) lgkmcnt(0)")
    for a in range(4):
        for ks in range(2):
            f = vVf + (a * 2 + ks) * 4
            p(f"{MF} {rg(vO+16*a,16)}, {rg(f,4)}, {rg(vP+4*ks,4)}, {rg(vO+16*a,16)}")
    stamp(p, o, 5)

    STAT = 0
    NONL = 4096
    OX = R[2]
    WOB = 16384
    vS0 = vS[0]
    def wo_group_dma(gexpr_sgpr):
        p(f"""
        s_mul_i32 s{sT1}, s{gexpr_sgpr}, 9216
        s_add_u32 s{sT1}, s{sT1}, {WOB}
        s_mul_i32 s{sT0}, s{gexpr_sgpr}, 36864
        """)
        for i in range(9):
            if i % 4 == 0:
                p(f"s_add_u32 m0, s{sT1}, {(i//4)*4096}")
            p(f"buffer_load_dwordx4 v{vOff+i}, s[{rW}:{rW+3}], s{sT0} offen offset:{(i%4)*1024} lds")
    p(f"""
    v_add_f32 v{vL0}, v{vL0}, v{vL1}
    v_mov_b32 v{vL1}, v{vL0}
    s_nop 1
    v_permlane32_swap_b32 v{vL0}, v{vL1}
    v_add_f32 v{vThr}, v{vL0}, v{vL1}
    v_and_b32 v7, 31, v{vL}
    s_lshl_b32 s{sT0}, s{sKq}, 9
    s_lshl_b32 s{sT1}, s{sQh}, 8
    s_add_u32 s{sT0}, s{sT0}, s{sT1}
    s_add_u32 s{sT0}, s{sT0}, {STAT}
    s_add_u32 s{sT1}, s{sT1}, {STAT}
    v_lshlrev_b32 v7, 3, v7
    v_add_u32 v2, s{sT0}, v7
    v_add_u32 v7, s{sT1}, v7
    v_lshlrev_b32 v3, 4, v{vL}
    """)
    if o.fuse: wo_srd()
    p("s_barrier")
    stamp(p, o, 'e1')
    p(f"""
    ds_write_b64 v2, v[{vM}:{vM+1}]
    """)
    if o.fuse:
        p(f"""
        s_cmp_eq_u32 s{sWave}, 7
        s_cbranch_scc0 K1_NON2
        s_mov_b32 s{sT2}, 0
        """)
        p.label("K1_NONP")
        p(f"""
        v_readfirstlane_b32 s{sT0}, v{vNon}
        s_add_u32 s{sT2}, s{sT2}, 1
        s_cmp_lg_u32 s{sT0}, 0
        s_cbranch_scc1 K1_NONOK
        s_cmp_lt_u32 s{sT2}, {SPIN}
        s_cbranch_scc0 K1_NONOK
        v_mov_b32 v8, 0
        global_load_dwordx2 v[{vNon}:{vNon+1}], v8, s[{sDbg}:{sDbg+1}] sc1
        s_waitcnt vmcnt(0)
        s_branch K1_NONP
        """)
        p.label("K1_NONOK")
        p(f"""
        v_mov_b32 v6, {NONL}
        ds_write_b64 v6, v[{vNon}:{vNon+1}]
        """)
        p.label("K1_NON2")
    for a in range(1, 4):
        p(f"""
        s_add_u32 s{sT0}, s{sKq}, {a}
        s_and_b32 s{sT0}, s{sT0}, 3
        s_lshl_b32 s{sT2}, s{sQh}, 2
        s_add_u32 s{sT0}, s{sT0}, s{sT2}
        s_mul_i32 s{sT0}, s{sT0}, 12288
        s_add_u32 s{sT0}, s{sT0}, {OX + (3-a)*4096}
        v_add_u32 v4, s{sT0}, v3
        """)
        for g in range(4):
            p(f"ds_write_b128 v4, {rg(vO+16*a+4*g,4)} offset:{g*1024}")
    if o.fuse and o.early:
        p(f"""
        s_cmp_lt_u32 s{sWave}, 5
        s_cbranch_scc0 K1_WG1
        """)
        wo_group_dma(sWave)
        p.label("K1_WG1")
    p(f"""
    s_lshl_b32 s{sT0}, s{sQh}, 2
    s_add_u32 s{sT0}, s{sT0}, s{sKq}
    s_mul_i32 s{sT0}, s{sT0}, 12288
    s_add_u32 s{sT0}, s{sT0}, {OX}
    v_add_u32 v4, s{sT0}, v3
    s_waitcnt lgkmcnt(0)
    """)
    stamp(p, o, 'e2')
    p("s_barrier")
    stamp(p, o, 'e3')
    for k in range(4):
        p(f"ds_read_b64 v[{vS0+2*k}:{vS0+2*k+1}], v7 offset:{k*512}")
    for i in range(3):
        for g in range(4):
            p(f"ds_read_b128 {rg(vO+16*(i+1)+4*g,4)}, v4 offset:{i*4096+g*1024}")
    if o.fuse:
        p(f"""
        v_mov_b32 v6, {NONL}
        ds_read_b64 v[8:9], v6
        s_waitcnt lgkmcnt(13)
        """)
    else:
        p("s_waitcnt lgkmcnt(12)")
    m = [vS0 + 0, vS0 + 2, vS0 + 4, vS0 + 6]; l = [vS0 + 1, vS0 + 3, vS0 + 5, vS0 + 7]
    p(f"""
    v_max3_f32 v2, v{m[0]}, v{m[1]}, v{m[2]}
    v_max_f32 v2, v2, v{m[3]}
    """)
    for k in range(4):
        p(f"v_sub_f32 v{m[k]}, v{m[k]}, v2")
    for k in range(4):
        p(f"v_exp_f32 v{m[k]}, v{m[k]}")
    p(f"""
    v_mul_f32 v3, v{m[0]}, v{l[0]}
    v_fmac_f32 v3, v{m[1]}, v{l[1]}
    v_fmac_f32 v3, v{m[2]}, v{l[2]}
    v_fmac_f32 v3, v{m[3]}, v{l[3]}
    v_rcp_f32 v3, v3
    """)
    for k in range(4):
        p(f"v_mul_f32 v{m[k]}, v{m[k]}, v3")
    wr = vS0 + 8
    for kq in range(4):
        p(f"s_cmp_eq_u32 s{sKq}, {kq}")
        p(f"s_cbranch_scc0 K1_WR{kq}")
        for i in range(4):
            p(f"v_mov_b32 v{wr+i}, v{m[(kq+i)&3]}")
        p.label(f"K1_WR{kq}")
    for i in range(16):
        p(f"v_mul_f32 v{vO+i}, v{vO+i}, v{wr}")
    nextra = 1 if o.fuse else 0
    for s in range(3):
        p(f"s_waitcnt lgkmcnt({8-4*s+nextra})")
        for i in range(16):
            p(f"v_fmac_f32 v{vO+i}, v{vO+16*(s+1)+i}, v{wr+s+1}")
    order = [0, 2, 1, 3]
    for idx, g in enumerate(order):
        p(f"v_cvt_pk_bf16_f32 v{vP+2*idx}, v{vO+4*g}, v{vO+4*g+1}")
        p(f"v_cvt_pk_bf16_f32 v{vP+2*idx+1}, v{vO+4*g+2}, v{vO+4*g+3}")
    stamp(p, o, 'e4')
    SC = ' sc1' if o.fuse else ''
    p(f"""
    v_and_b32 v2, 15, v{vL}
    v_lshrrev_b32 v3, 5, v{vL}
    v_lshl_add_u32 v2, v3, 4, v2
    v_lshlrev_b32 v2, 4, v2
    v_bfe_u32 v3, v{vL}, 4, 1
    v_lshl_add_u32 v2, v3, 12, v2
    s_lshl_b32 s{sT0}, s{sWg}, 14
    s_lshl_b32 s{sT1}, s{sQh}, 13
    s_add_u32 s{sT0}, s{sT0}, s{sT1}
    s_lshl_b32 s{sT1}, s{sKq}, 10
    s_add_u32 s{sT0}, s{sT0}, s{sT1}
    buffer_store_dwordx4 {rg(vP,4)}, v2, s[{rO}:{rO+3}], s{sT0} offen{SC}
    buffer_store_dwordx4 {rg(vP+4,4)}, v2, s[{rO}:{rO+3}], s{sT0} offen offset:512{SC}
    """)
    if not o.fuse:
        if o.stamps:
            p("s_waitcnt vmcnt(0)")
            stamp(p, o, 6)
            stamp_flush(p, o, 0, 7, sWs)
        p("s_branch K1_END")
    else:
        tail(p, o, locals())
    for tag in ('L0', 'L1', 'A', 'B'):
        rescale(tag)
    p.label("K1_END")
    p("s_endpgm")
    return p

def gemm_body(p, vAcc, vB, vF, vAd, vLA, base_expr_instr, vm_base=0):
    p(base_expr_instr)
    p(f"v_add_u32 v{vAd+1}, {4*9216}, v{vAd}")
    HA, HB = list(range(0, 5)), list(range(5, 9))
    def reads(kk, half):
        ad = vAd + (kk // 4)
        off = (kk % 4) * 9216
        for nt in half:
            f = vF + 4 * nt
            p(f"ds_read_b64_tr_b16 {rg(f,2)}, v{ad} offset:{off+nt*32}")
            p(f"ds_read_b64_tr_b16 {rg(f+2,2)}, v{ad} offset:{off+4608+nt*32}")
    def mfmas(kk, half, younger):
        n = len(half)
        h1 = (n + 1) // 2
        for idx, nt in enumerate(half):
            f = vF + 4 * nt
            if idx == 0: p(f"s_waitcnt lgkmcnt({min(15, younger + 2*(n-h1))})")
            if idx == h1: p(f"s_waitcnt lgkmcnt({min(15, younger)})")
            p(f"{MF16} {rg(vAcc+4*nt,4)}, {rg(f,4)}, {rg(vB+4*kk,4)}, {rg(vAcc+4*nt,4)}")
    reads(0, HA)
    for kk in range(8):
        reads(kk, HB)
        p(f"s_waitcnt vmcnt({7-kk+vm_base})")
        mfmas(kk, HA, 2 * len(HB))
        if kk < 7:
            reads(kk + 1, HA)
            mfmas(kk, HB, 2 * len(HA))
        else:
            mfmas(kk, HB, 0)

def tail(p, o, L):
    g = lambda n: L[n]
    sWave, sB, sXc, sJj, sWg, sT0, sT1, sT2 = g('sWave'), g('sB'), g('sXc'), g('sJj'), g('sWg'), g('sT0'), g('sT1'), g('sT2')
    rO, rW, rX, sN, sTag, sOut, sWs = g('rO'), g('rW'), g('rX'), g('sN'), g('sTag'), g('sOut'), g('sWs')
    vL, vOff, WOB = g('vL'), g('vOff'), g('WOB')
    wo_group_dma = g('wo_group_dma')
    sQt, sKh2 = 40, 41
    vAcc, vB, vF, vLA, vAd = 28, 64, 96, 19, 20
    p(f"""
    s_waitcnt vmcnt(0) lgkmcnt(0)
    v_readfirstlane_b32 s{sN}, v8
    v_readfirstlane_b32 s{sN+1}, v9
    s_barrier
    """)
    if o.stamps: stamp(p, o, 6)
    p(f"""
    s_and_b32 s{sQt}, s{sWave}, 3
    s_lshr_b32 s{sKh2}, s{sWave}, 2
    s_cmp_eq_u32 s{sWave}, 7
    s_cbranch_scc0 T_NOFLAG
    v_mov_b32 v9, s{sN}
    s_lshl_b32 s{sT0}, s{sWg}, 7
    s_add_u32 s{sT0}, s{sT0}, {WS_FLAG}
    v_mov_b32 v3, 0
    v_cmp_eq_u32 vcc, 0, v{vL}
    s_and_saveexec_b64 s[58:59], vcc
    buffer_store_dword v9, v3, s[{rO}:{rO+3}], s{sT0} offen sc1
    s_mov_b64 exec, s[58:59]
    s_and_b32 s{sT0}, s{sWg}, 0xfc
    s_lshl_b32 s{sT0}, s{sT0}, 7
    s_add_u32 s{sT0}, s{sT0}, {WS_FLAG}
    v_and_b32 v8, 3, v{vL}
    v_lshlrev_b32 v8, 7, v8
    s_mov_b32 s{sT1}, 0
    buffer_load_dword v10, v8, s[{rO}:{rO+3}], s{sT0} offen sc1
    buffer_load_dword v11, v8, s[{rO}:{rO+3}], s{sT0} offen sc1
    """)
    p("s_branch T_SETUP")
    p.label("T_NOFLAG")
    if o.early:
        p(f"s_add_u32 s{sT2}, s{sWave}, 5")
        wo_group_dma(sT2)
        p(f"""
        s_cmp_lt_u32 s{sWave}, 4
        s_cbranch_scc0 T_SETUP
        s_add_u32 s{sT2}, s{sWave}, 12
        """)
        wo_group_dma(sT2)
    else:
        wo_group_dma(sWave)
        p(f"s_add_u32 s{sT2}, s{sWave}, 7")
        wo_group_dma(sT2)
        p(f"""
        s_cmp_lt_u32 s{sWave}, 2
        s_cbranch_scc0 T_SETUP
        s_add_u32 s{sT2}, s{sWave}, 14
        """)
        wo_group_dma(sT2)
    p.label("T_SETUP")
    p(f"""
    v_lshrrev_b32 v2, 4, v{vL}
    v_and_b32 v3, 15, v{vL}
    v_lshrrev_b32 v4, 2, v3
    v_and_b32 v6, 3, v3
    v_lshl_add_u32 v2, v2, 2, v4
    v_mul_u32_u24 v2, 288, v2
    v_lshl_add_u32 v{vLA}, v6, 3, v2
    v_lshlrev_b32 v5, 4, v{vL}
    s_and_b32 s{sTag}, s{sN}, 0xfff
    s_lshr_b32 s{sTag+1}, s{sN}, 12
    s_and_b32 s{sTag+1}, s{sTag+1}, 0xfff
    s_lshr_b32 s{sTag+2}, s{sN}, 24
    s_lshl_b32 s{sT2}, s{sN+1}, 8
    s_or_b32 s{sTag+2}, s{sTag+2}, s{sT2}
    s_and_b32 s{sTag+2}, s{sTag+2}, 0xfff
    s_lshr_b32 s{sTag+3}, s{sN+1}, 4
    s_and_b32 s{sTag+3}, s{sTag+3}, 0xfff
    """)
    for i in range(36):
        p(f"v_mov_b32 v{vAcc+i}, 0")
    p(f"""
    s_cmp_eq_u32 s{sWave}, 7
    s_cbranch_scc0 T_NOPOLL
    """)
    p.label("T_POLL1")
    p(f"""
    s_waitcnt vmcnt(1)
    v_cmp_ne_u32 vcc, v10, v9
    s_cbranch_vccz T_NOPOLL
    buffer_load_dword v10, v8, s[{rO}:{rO+3}], s{sT0} offen sc1
    s_add_u32 s{sT1}, s{sT1}, 1
    s_waitcnt vmcnt(1)
    v_cmp_ne_u32 vcc, v11, v9
    s_cbranch_vccz T_NOPOLL
    buffer_load_dword v11, v8, s[{rO}:{rO+3}], s{sT0} offen sc1
    s_cmp_lt_u32 s{sT1}, {SPIN}
    s_cbranch_scc1 T_POLL1
    """)
    p.label("T_NOPOLL")
    p(f"""
    s_waitcnt vmcnt(0)
    s_barrier
    """)
    if o.stamps: stamp(p, o, 7)
    p(f"""
    s_and_b32 s{sT0}, s{sWg}, 0xfc
    s_lshl_b32 s{sT1}, s{sKh2}, 1
    s_add_u32 s{sT0}, s{sT0}, s{sT1}
    s_lshl_b32 s{sT0}, s{sT0}, 14
    s_lshl_b32 s{sT1}, s{sQt}, 12
    s_add_u32 s{sT0}, s{sT0}, s{sT1}
    s_add_u32 s{sT1}, s{sT0}, 16384
    """)
    for kk in range(8):
        p(f"buffer_load_dwordx4 {rg(vB+4*kk,4)}, v5, s[{rO}:{rO+3}], s{sT0 if kk < 4 else sT1} offen offset:{(kk&3)*1024} sc1")
    p(f"s_mul_i32 s{sT2}, s{sKh2}, {8*9216}")
    p(f"s_add_u32 s{sT2}, s{sT2}, {WOB}")
    if o.stamps and o.stset:
        p("s_waitcnt vmcnt(0)")
        stamp(p, o, 'g0')
    gemm_body(p, vAcc, vB, vF, vAd, vLA, f"v_add_u32 v{vAd}, s{sT2}, v{vLA}")
    if o.stamps: stamp(p, o, 8)
    p("s_barrier")
    stamp(p, o, 'r1')
    p(f"""
    s_mul_i32 s{sT0}, s{sQt}, 9216
    v_add_u32 v2, s{sT0}, v5
    s_cmp_eq_u32 s{sKh2}, 0
    s_cbranch_scc0 T_H1
    """)
    for nt in range(5, 9):
        p(f"ds_write_b128 v2, {rg(vAcc+4*nt,4)} offset:{nt*1024}")
    p("s_branch T_H2")
    p.label("T_H1")
    for nt in range(0, 5):
        p(f"ds_write_b128 v2, {rg(vAcc+4*nt,4)} offset:{nt*1024}")
    p.label("T_H2")
    TAGGED = (o.fuse == 2)
    p(f"""
    v_mov_b32 v7, 0xfffff000
    s_lshl_b32 s{sT0}, s{sXc}, 3
    s_add_u32 s{sT0}, s{sT0}, s{sB}
    s_lshl_b32 s{sT0}, s{sT0}, 2
    s_add_u32 s{sT0}, s{sT0}, s{sJj}
    s_lshl_b32 s{sT0}, s{sT0}, 2
    s_add_u32 s{sT0}, s{sT0}, s{sQt}
    s_mul_i32 s{sT0}, s{sT0}, 9216
    s_add_u32 s{sT0}, s{sT0}, {WS_PART}
    s_waitcnt lgkmcnt(0)
    """)
    stamp(p, o, 'r2')
    p("s_barrier")
    stamp(p, o, 'r3')
    p(f"""
    s_cmp_eq_u32 s{sKh2}, 0
    s_cbranch_scc0 T_H3
    """)
    def fin(nts):
        for nt in nts:
            p(f"ds_read_b128 {rg(vF+4*nt,4)}, v2 offset:{nt*1024}")
        for idx, nt in enumerate(nts):
            p(f"s_waitcnt lgkmcnt({len(nts)-1-idx})")
            for e in range(4):
                p(f"v_add_f32 v{vAcc+4*nt+e}, v{vAcc+4*nt+e}, v{vF+4*nt+e}")
            if TAGGED:
                for e in range(4):
                    p(f"v_and_b32 v{vAcc+4*nt+e}, v7, v{vAcc+4*nt+e}")
                    p(f"v_or_b32 v{vAcc+4*nt+e}, s{sTag+e}, v{vAcc+4*nt+e}")
            p(f"s_add_u32 s{sT1}, s{sT0}, {(nt//4)*4096}")
            p(f"buffer_store_dwordx4 {rg(vAcc+4*nt,4)}, v5, s[{rO}:{rO+3}], s{sT1} offen offset:{(nt%4)*1024}{' sc1' if TAGGED else ''}")
    fin(list(range(0, 5)))
    p("s_branch T_H4")
    p.label("T_H3")
    fin(list(range(5, 9)))
    p.label("T_H4")
    if o.stamps: stamp(p, o, 9)
    if TAGGED:
        vX = 100
        p(f"""
        s_cmp_ge_u32 s{sWave}, 5
        s_cbranch_scc1 T_DONE
        v_cmp_gt_u32 vcc, 288, v0
        s_and_saveexec_b64 s[58:59], vcc
        s_mul_i32 s{sT0}, s{sXc}, 288
        v_add_u32 v2, s{sT0}, v0
        v_lshlrev_b32 v3, 4, v2
        s_lshl_b32 s{sT0}, s{sB}, 2
        s_add_u32 s{sT0}, s{sT0}, s{sJj}
        s_mul_i32 s{sT0}, s{sT0}, 36864
        s_add_u32 s{sT0}, s{sT0}, {WS_PART}
        s_mov_b32 s{rX}, s{sOut}
        s_mov_b32 s{rX+1}, s{sOut+1}
        s_mov_b32 s{rX+2}, {512*576*2}
        s_mov_b32 s{rX+3}, 0x20000
        v_lshrrev_b32 v4, 6, v2
        v_mul_u32_u24 v5, 57, v4
        v_lshrrev_b32 v5, 9, v5
        v_mul_u32_u24 v6, 9, v5
        v_sub_u32 v6, v4, v6
        v_and_b32 v4, 15, v2
        v_lshl_add_u32 v4, v5, 4, v4
        s_lshl_b32 s{sT1}, s{sB}, 6
        v_add_u32 v4, s{sT1}, v4
        s_movk_i32 s{sT1}, 1152
        v_mul_u32_u24 v4, s{sT1}, v4
        v_lshlrev_b32 v6, 5, v6
        v_add_u32 v4, v4, v6
        v_bfe_u32 v6, v2, 4, 2
        v_lshl_add_u32 v4, v6, 3, v4
        s_mul_i32 s{sT1}, s{sJj}, 288
        v_add_u32 v4, s{sT1}, v4
        s_mov_b32 s{sT2}, 0
        """)
        if o.prepoll:
            p(f"""
            s_mov_b64 s[56:57], exec
            v_readfirstlane_b32 s{sT1}, v3
            v_mul_u32_u24 v6, {32*36864 // 1024}, v{vL}
            v_lshlrev_b32 v6, 10, v6
            v_add_u32 v6, s{sT1}, v6
            v_mov_b32 v9, s{sTag}
            s_mov_b64 exec, 0xff
            buffer_load_dword v10, v6, s[{rO}:{rO+3}], s{sT0} offen sc1
            buffer_load_dword v11, v6, s[{rO}:{rO+3}], s{sT0} offen sc1
            """)
            p.label("T_PP")
            p(f"""
            s_waitcnt vmcnt(1)
            v_xor_b32 v8, v10, v9
            v_and_b32 v8, 0xfff, v8
            v_cmp_ne_u32 vcc, 0, v8
            s_cbranch_vccz T_PPD
            buffer_load_dword v10, v6, s[{rO}:{rO+3}], s{sT0} offen sc1
            s_add_u32 s{sT2}, s{sT2}, 1
            s_waitcnt vmcnt(1)
            v_xor_b32 v8, v11, v9
            v_and_b32 v8, 0xfff, v8
            v_cmp_ne_u32 vcc, 0, v8
            s_cbranch_vccz T_PPD
            buffer_load_dword v11, v6, s[{rO}:{rO+3}], s{sT0} offen sc1
            s_cmp_lt_u32 s{sT2}, {SPIN}
            s_cbranch_scc1 T_PP
            """)
            p.label("T_PPD")
            p(f"""
            s_mov_b64 exec, s[56:57]
            s_mov_b32 s{sT2}, 0
            """)
        p.label("T_POLL2")
        p(f"s_mov_b32 s{sT1}, s{sT0}")
        for s in range(8):
            p(f"buffer_load_dwordx4 {rg(vX+4*s,4)}, v3, s[{rO}:{rO+3}], s{sT1} offen sc1")
            if s < 7: p(f"s_add_u32 s{sT1}, s{sT1}, {32*36864}")
        p(f"""
        s_add_u32 s{sT2}, s{sT2}, 1
        v_mov_b32 v6, 0
        """)
        for s in range(8):
            p(f"s_waitcnt vmcnt({7-s})")
            for e in range(4):
                p(f"v_xor_b32 v8, s{sTag+e}, v{vX+4*s+e}")
                p(f"v_or_b32 v6, v6, v8")
        p(f"""
        v_and_b32 v6, 0xfff, v6
        v_cmp_ne_u32 vcc, 0, v6
        s_cmp_lt_u32 s{sT2}, {SPIN}
        s_cbranch_scc0 T_SUM
        s_cbranch_vccnz T_POLL2
        """)
        p.label("T_SUM")
        if o.stamps and o.stset == 2:
            p(f"s_mov_b32 s76, s{sT2}")
            p("s_mov_b32 s77, 0")
        for s in range(8):
            for e in range(4):
                p(f"v_and_b32 v{vX+4*s+e}, v7, v{vX+4*s+e}")
        for s in range(1, 8):
            for e in range(4):
                p(f"v_add_f32 v{vX+e}, v{vX+e}, v{vX+4*s+e}")
        p(f"""
        v_cvt_pk_bf16_f32 v8, v{vX}, v{vX+1}
        v_cvt_pk_bf16_f32 v9, v{vX+2}, v{vX+3}
        buffer_store_dwordx2 v[8:9], v4, s[{rX}:{rX+3}], 0 offen
        s_mov_b64 exec, s[58:59]
        """)
        p.label("T_DONE")
    if o.stamps:
        p("s_waitcnt vmcnt(0)")
        p("s_memrealtime s[90:91]" if o.stamps != 2 else "s_memtime s[90:91]")
        p("s_waitcnt lgkmcnt(0)")
        p("s_mov_b32 s60, s60")
        gen_flush_final(p, o, sWs)
    p("s_branch K1_END")

def gen_flush_final(p, o, sws):
    tag = "STFm"
    if o.stamps == 3:
        p(f"""
        s_cmp_eq_u32 s2, 0
        s_cbranch_scc0 {tag}
        s_load_dwordx2 s[96:97], s[0:1], 48
        s_waitcnt lgkmcnt(0)
        v_cmp_eq_u32 vcc, 0, v0
        s_and_saveexec_b64 s[92:93], vcc
        s_cbranch_execz {tag}x
        v_mov_b32 v4, 0
        """)
        for i in range(10):
            p(f"v_mov_b32 v2, s{60+2*i}")
            p(f"global_store_dword v4, v2, s[96:97] offset:{16+4*i}")
        p("v_mov_b32 v2, s90")
        p(f"global_store_dword v4, v2, s[96:97] offset:{16+40}")
        p.label(tag + 'x')
        p("s_mov_b64 exec, s[92:93]")
        p.label(tag)
        return
    p(f"""
    v_cmp_eq_u32 vcc, {o.stampwave*64}, v0
    s_and_saveexec_b64 s[92:93], vcc
    s_cbranch_execz {tag}
    s_lshl_b32 s94, s2, 7
    s_add_u32 s94, s94, {gen.WS_STAMP}
    s_add_u32 s96, s{sws}, s94
    s_addc_u32 s97, s{sws+1}, 0
    v_mov_b32 v4, 0
    """)
    for i in range(10):
        p(f"""
        v_mov_b32 v2, s{60+2*i}
        v_mov_b32 v3, s{61+2*i}
        global_store_dwordx2 v4, v[2:3], s[96:97] offset:{8*i}
        """)
    p(f"""
    v_mov_b32 v2, s90
    v_mov_b32 v3, s91
    global_store_dwordx2 v4, v[2:3], s[96:97] offset:80
    """)
    p.label(tag)
    p("s_mov_b64 exec, s[92:93]")

def gen_k2(o):
    p = Prog()
    sWo, sWs = 4, 6
    rW, rO = 8, 12
    sWave, sXc, sB, sNg, sT0, sT1, sT2, sQt, sKh2 = 20, 21, 22, 23, 24, 25, 26, 27, 28
    vL = 1; vOff = 10; vLA = 19; vAd = 20; vAcc = 28; vB = 64; vF = 96
    p(f"""
    s_cmp_ge_u32 s2, 256
    s_cbranch_scc1 K2_END
    s_load_dwordx2 s[4:5], s[0:1], 32
    s_load_dwordx2 s[6:7], s[0:1], 56
    v_and_b32 v{vL}, 63, v0
    v_lshrrev_b32 v2, 6, v0
    s_and_b32 s{sXc}, s2, 7
    s_lshr_b32 s{sT1}, s2, 3
    v_readfirstlane_b32 s{sWave}, v2
    s_lshr_b32 s{sB}, s{sT1}, 2
    s_and_b32 s{sNg}, s{sT1}, 3
    s_and_b32 s{sQt}, s{sWave}, 3
    s_lshr_b32 s{sKh2}, s{sWave}, 2
    s_movk_i32 s{sT0}, 3641
    s_movk_i32 s{sT1}, 1152
    """)
    for i in range(9):
        p(f"""
        v_add_u32 v2, {64*i}, v{vL}
        v_mul_u32_u24 v3, s{sT0}, v2
        v_lshrrev_b32 v3, 16, v3
        v_mul_u32_u24 v4, 18, v3
        v_sub_u32 v4, v2, v4
        v_mul_u32_u24 v3, s{sT1}, v3
        v_lshl_add_u32 v3, v4, 4, v3
        v_subrev_u32 v{vOff+i}, {(i%4)*1024}, v3
        """)
    p(f"""
    v_lshrrev_b32 v2, 4, v{vL}
    v_and_b32 v3, 15, v{vL}
    v_lshrrev_b32 v4, 2, v3
    v_and_b32 v6, 3, v3
    v_lshl_add_u32 v2, v2, 2, v4
    v_mul_u32_u24 v2, 288, v2
    v_lshl_add_u32 v{vLA}, v6, 3, v2
    v_lshlrev_b32 v5, 4, v{vL}
    s_waitcnt lgkmcnt(0)
    """)
    stamp(p, o, 0)
    p(f"""
    s_mul_i32 s{sT0}, s{sXc}, {512*1152}
    s_mul_i32 s{sT1}, s{sNg}, 288
    s_add_u32 s{sT0}, s{sT0}, s{sT1}
    s_add_u32 s{rW}, s{sWo}, s{sT0}
    s_addc_u32 s{rW+1}, s{sWo+1}, 0
    s_sub_u32 s{rW+2}, {4096*1152}, s{sT0}
    s_mov_b32 s{rW+3}, 0x20000
    s_mov_b32 s{rO}, s{sWs}
    s_mov_b32 s{rO+1}, s{sWs+1}
    s_mov_b32 s{rO+2}, {WS_SIZE}
    s_mov_b32 s{rO+3}, 0x20000
    """)
    for rep in range(2):
        p(f"""
        s_add_u32 s{sT0}, s{sWave}, {8*rep}
        s_mul_i32 s{sT1}, s{sT0}, 9216
        s_mul_i32 s{sT0}, s{sT0}, 36864
        """)
        for i in range(9):
            if i % 4 == 0:
                p(f"s_add_u32 m0, s{sT1}, {(i//4)*4096}")
            p(f"buffer_load_dwordx4 v{vOff+i}, s[{rW}:{rW+3}], s{sT0} offen offset:{(i%4)*1024} lds")
    p(f"""
    s_lshl_b32 s{sT0}, s{sB}, 3
    s_add_u32 s{sT0}, s{sT0}, s{sXc}
    s_lshl_b32 s{sT0}, s{sT0}, 2
    s_lshl_b32 s{sT1}, s{sKh2}, 1
    s_add_u32 s{sT0}, s{sT0}, s{sT1}
    s_lshl_b32 s{sT0}, s{sT0}, 14
    s_lshl_b32 s{sT1}, s{sQt}, 12
    s_add_u32 s{sT0}, s{sT0}, s{sT1}
    s_add_u32 s{sT1}, s{sT0}, 16384
    """)
    for kk in range(8):
        p(f"buffer_load_dwordx4 {rg(vB+4*kk,4)}, v5, s[{rO}:{rO+3}], s{sT0 if kk < 4 else sT1} offen offset:{(kk&3)*1024}")
    for i in range(36):
        p(f"v_mov_b32 v{vAcc+i}, 0")
    p(f"""
    s_waitcnt vmcnt(8)
    s_barrier
    s_mul_i32 s{sT2}, s{sKh2}, {8*9216}
    """)
    stamp(p, o, 1)
    gemm_body(p, vAcc, vB, vF, vAd, vLA, f"v_add_u32 v{vAd}, s{sT2}, v{vLA}")
    stamp(p, o, 2)
    p(f"""
    s_barrier
    s_mul_i32 s{sT0}, s{sQt}, 9216
    v_add_u32 v2, s{sT0}, v5
    s_cmp_eq_u32 s{sKh2}, 0
    s_cbranch_scc0 K2_H1
    """)
    for nt in range(5, 9):
        p(f"ds_write_b128 v2, {rg(vAcc+4*nt,4)} offset:{nt*1024}")
    p("s_branch K2_H2")
    p.label("K2_H1")
    for nt in range(0, 5):
        p(f"ds_write_b128 v2, {rg(vAcc+4*nt,4)} offset:{nt*1024}")
    p.label("K2_H2")
    p(f"""
    s_lshl_b32 s{sT0}, s{sXc}, 3
    s_add_u32 s{sT0}, s{sT0}, s{sB}
    s_lshl_b32 s{sT0}, s{sT0}, 2
    s_add_u32 s{sT0}, s{sT0}, s{sNg}
    s_lshl_b32 s{sT0}, s{sT0}, 2
    s_add_u32 s{sT0}, s{sT0}, s{sQt}
    s_mul_i32 s{sT0}, s{sT0}, 9216
    s_add_u32 s{sT0}, s{sT0}, {WS_PART}
    s_waitcnt lgkmcnt(0)
    s_barrier
    s_cmp_eq_u32 s{sKh2}, 0
    s_cbranch_scc0 K2_H3
    """)
    def fin(nts):
        for nt in nts:
            p(f"ds_read_b128 {rg(vF+4*nt,4)}, v2 offset:{nt*1024}")
        for idx, nt in enumerate(nts):
            p(f"s_waitcnt lgkmcnt({len(nts)-1-idx})")
            for e in range(4):
                p(f"v_add_f32 v{vAcc+4*nt+e}, v{vAcc+4*nt+e}, v{vF+4*nt+e}")
            p(f"s_add_u32 s{sT1}, s{sT0}, {(nt//4)*4096}")
            p(f"buffer_store_dwordx4 {rg(vAcc+4*nt,4)}, v5, s[{rO}:{rO+3}], s{sT1} offen offset:{(nt%4)*1024}")
    fin(list(range(0, 5)))
    p("s_branch K2_H4")
    p.label("K2_H3")
    fin(list(range(5, 9)))
    p.label("K2_H4")
    if o.stamps:
        stamp(p, o, 3)
        p("s_waitcnt vmcnt(0)")
        stamp(p, o, 4)
        stamp_flush(p, o, 1, 5, sWs)
    p.label("K2_END")
    p("s_endpgm")
    return p

def gen_k3(o):
    gen.WS_PART = WS_PART
    return gen.gen_k3(o)

def emit(o):
    ks = [('standalone__gqa_block_cached__near_ridge_kernel' if o.fuse == 2 else 'gqa_main_kernel', gen_main(o), 256, 512, 163840)]
    if o.fuse == 0:
        ks += [('gqa_oproj_kernel', gen_k2(o), 256, 512, 147456)]
    if o.fuse <= 1:
        ks += [('gqa_reduce_kernel', gen_k3(o), 288, 256, 0)]
    if o.dbg == 2:
        ks = ks[:1]
    out = [HEADER.rstrip()]
    for name, _, g, b, lds in ks:
        if len(ks) == 1 and o.fuse == 2:
            out.append(f"; @launch grid=({g},1,1) block=({b},1,1) lds={lds}")
        else:
            out.append(f"; @launch kernel={name} grid=({g},1,1) block=({b},1,1) lds={lds}")
    out.append('.amdgcn_target "amdgcn-amd-amdhsa--gfx950"')
    out.append('.text')
    for name, p, g, b, lds in ks:
        n = p.fix_hazards()
        errs = p.lint_waits()
        for e in errs[:20]:
            print(f"LINT[{name}]: {e}", file=sys.stderr)
        nv, ns = p.max_regs()
        print(f"{name}: {len(p.ins)} instrs, vgpr {nv}, sgpr {ns}, nops inserted {n}", file=sys.stderr)
        out.append(f".globl {name}\n.p2align 8\n.type {name},@function\n{name}:")
        out.append(p.text())
        out.append(kd(name, max(nv, 8), max(ns, 16)))
    return '\n'.join(out) + '\n'

if __name__ == '__main__':
    ap = argparse.ArgumentParser()
    ap.add_argument('-o', default='standalone__gqa_block_cached__near_ridge.s')
    for k, d in OPTS.items():
        ap.add_argument('--' + k, type=int, default=d)
    a = ap.parse_args()
    o = Opt()
    for k in OPTS:
        setattr(o, k, getattr(a, k))
    open(a.o, 'w').write(emit(o))
```

```python
import sys, argparse
from asmlib import Prog
import gen
from gen import f32bits, SCALE_LOG2E, stamp_flush, kd, HEADER
from gen import stamp as _stamp
STSETS = {0: {0:0,1:1,2:2,3:3,4:4,5:5,6:6,7:7,8:8,9:9},
          1: {5:0, 'e1':1, 'e2':2, 'e3':3, 'e4':4, 6:5, 7:6, 'g0':7, 8:8, 9:9},
          3: {'c0':0,'c1':1,'c2':2,'c3':3,'c4':4,'c5':5,'c6':6,'c7':7,'c8':8, 2:9},
          4: {0:0,'c0':1,'w1':2,'c1':3,'m1':4,'w2':5,'c2':6,'m2':7,'w3':8,'c3':9},
          2: {7:0, 'g0':1, 8:2, 'r1':3, 'r2':4, 'r3':5, 9:6, 'p1':7, 'p2':8, 'p3':9}}
def stamp(p, o, name):
    m = STSETS[getattr(o, 'stset', 0)]
    if name in m: _stamp(p, o, m[name])


WS_O = 0
WS_PART = 4 << 20
WS_FLAG = 16 << 20
WS_SIZE = 17 << 20
MF = 'v_mfma_f32_32x32x16_bf16'
MF16 = 'v_mfma_f32_16x16x32_bf16'
def rg(b, n): return f"v[{b}:{b+n-1}]" if n > 1 else f"v{b}"

class Opt(gen.Opt):
    pass

OPTS = dict(tlb=0, outsc=0, prepoll=1, early=1, dry=0, dmapos=1, skew=0, stset=0, nt=1, dbg=0, stamps=0, stampwave=0, wt=1, kdel=5, k1del=5, late=0, fuse=2, wot=1)
SPIN = 1 << 18

def gen_main(o):
    p = Prog()
    NT = ' nt' if o.nt else ''
    sX, sK, sV, sWq, sWs, sWo = 4, 6, 8, 10, 12, 14
    rK, rV, rW, rX, rO = 16, 20, 24, 28, 32
    sWave, sB, sH, sXc, sQh, sKq = 36, 37, 38, 39, 40, 41
    sRK, sRV, sOff, sIss, sCnt, sJj = 42, 43, 44, 45, 46, 47
    sC, sT0, sT1, sT2 = 48, 49, 50, 51
    sW4096, sWg = 53, 54
    sPar, sStep, sEK, sRngV, sKprev, sOffB = 55, 56, 57, 52, 98, 99
    vOb = 250
    sOut, sDbg, sN, sTag = 80, 82, 84, 86
    vL = 1
    vKo = 10; vVo = 14
    vWo = 15; vXo = 17; vLW = 21; vLX = 22
    vVA = 15; vTn = 19
    vLK = 23; vLV = 24
    vKA = 28
    vM, vThr, vL0, vL1 = 36, 37, 38, 39
    vQ = 40
    vS = [72, 88]
    vP = 104
    vKf = 112
    vVf = 144
    vO = 176
    vOff = 240
    vDum = 249
    vNon = 20
    R = [i * 32768 for i in range(5)]
    QS = [139264, 65536, 90112, 114688]
    lab = [0]
    def nl(s):
        lab[0] += 1
        return f"K1_{s}{lab[0]}"
    vq = []
    def vissue(tag, n): vq.extend([tag] * n)
    def vneed(*tags):
        idx = [i for i, t in enumerate(vq) if t in tags]
        if not idx: return 63
        n = len(vq) - 1 - idx[-1]
        del vq[:idx[-1] + 1]
        return min(n, 63)

    p(f"""
    s_cmp_ge_u32 s2, 256
    s_cbranch_scc1 K1_END
    s_load_dwordx4 s[4:7], s[0:1], 0
    s_load_dwordx4 s[8:11], s[0:1], 16
    s_load_dwordx2 s[12:13], s[0:1], 56
    s_load_dwordx2 s[14:15], s[0:1], 32
    s_load_dwordx4 s[80:83], s[0:1], 40
    v_and_b32 v{vL}, 63, v0
    v_lshrrev_b32 v2, 6, v0
    s_and_b32 s{sXc}, s2, 7
    s_lshr_b32 s{sT1}, s2, 3
    v_readfirstlane_b32 s{sWave}, v2
    s_lshr_b32 s{sB}, s{sT1}, 2
    s_and_b32 s{sJj}, s{sT1}, 3
    s_lshl_b32 s{sH}, s{sXc}, 2
    s_add_u32 s{sH}, s{sH}, s{sJj}
    s_lshl_b32 s{sWg}, s{sB}, 5
    s_add_u32 s{sWg}, s{sWg}, s{sH}
    s_and_b32 s{sQh}, s{sWave}, 1
    s_lshr_b32 s{sKq}, s{sWave}, 1
    s_and_b32 s{sPar}, s{sH}, {1 if o.skew else 0}
    s_lshl_b32 s{sW4096}, s{sWave}, 12
    s_mov_b32 s{sC}, 0x{f32bits(SCALE_LOG2E):08x}
    v_and_b32 v2, 15, v{vL}
    v_lshrrev_b32 v3, 4, v{vL}
    v_lshrrev_b32 v4, 2, v2
    v_and_b32 v5, 3, v2
    v_lshrrev_b32 v6, 5, v{vL}
    v_and_b32 v7, 31, v{vL}
    v_lshlrev_b32 v8, 2, v3
    v_xor_b32 v8, v8, v2
    v_lshlrev_b32 v8, 4, v8
    v_lshl_add_u32 v{vVo}, v3, 8, v8
    v_lshl_add_u32 v{vWo}, v3, 13, v8
    v_add_u32 v{vWo+1}, 31744, v{vWo}
    s_lshl_b32 s{sT0}, s{sWave}, 3
    s_movk_i32 s{sT1}, 1152
    v_lshrrev_b32 v8, 3, v{vL}
    v_add_u32 v8, s{sT0}, v8
    v_mul_lo_u32 v8, v8, s{sT1}
    s_lshl_b32 s{sT0}, s{sWave}, 2
    v_add_u32 v9, s{sT0}, v3
    v_and_b32 v9, 7, v9
    v_and_b32 v{vXo}, 7, v{vL}
    v_xor_b32 v9, v9, v{vXo}
    v_lshl_add_u32 v{vXo}, v9, 4, v8
    """)
    p("s_waitcnt lgkmcnt(0)")
    stamp(p, o, 0)
    p(f"""
    s_lshl_b32 s{sT0}, s{sH}, 8
    s_add_u32 s{rW}, s{sWq}, s{sT0}
    s_addc_u32 s{rW+1}, s{sWq+1}, 0
    s_sub_u32 s{rW+2}, {576*8192}, s{sT0}
    s_mov_b32 s{rW+3}, 0x20000
    s_mul_i32 s{sT0}, s{sB}, {64*1152}
    s_add_u32 s{rX}, s{sX}, s{sT0}
    s_addc_u32 s{rX+1}, s{sX+1}, 0
    s_mov_b32 s{rX+2}, {64*1152}
    s_mov_b32 s{rX+3}, 0x20000
    """)

    def issue_chunk(c):
        qs = QS[c % 4]
        p(f"""
        s_lshl_b32 s{sT0}, s{sWave}, 16
        s_add_u32 s{sT0}, s{sT0}, {c*524288}
        s_lshr_b32 s{sT1}, s{sW4096}, 1
        s_add_u32 m0, s{sT1}, {qs}
        """)
        for u in range(2):
            p(f"buffer_load_dwordx4 v{vWo+u}, s[{rW}:{rW+3}], s{sT0} offen offset:{u*1024} lds")
        p(f"""
        s_lshr_b32 s{sT1}, s{sW4096}, 2
        s_add_u32 m0, s{sT1}, {qs+16384}
        s_movk_i32 s{sT0}, {c*128}
        buffer_load_dwordx4 v{vXo}, s[{rX}:{rX+3}], s{sT0} offen lds
        """)
        vissue(('C', c), 3)

    if o.wt:
        p(f"""
        s_cmp_eq_u32 s{sWave}, 4
        s_cbranch_scc0 K1_WT1
        v_lshrrev_b32 v8, 1, v{vL}
        v_and_b32 v9, 1, v{vL}
        v_lshlrev_b32 v8, 13, v8
        v_lshl_add_u32 v8, v9, 7, v8
        s_mul_i32 s{sT0}, s{sB}, {72*8192}
        buffer_load_dword v{vDum}, v8, s[{rW}:{rW+3}], s{sT0} offen
        s_add_u32 s{sT0}, s{sT0}, {32*8192}
        buffer_load_dword v{vDum}, v8, s[{rW}:{rW+3}], s{sT0} offen
        s_add_u32 s{sT0}, s{sT0}, {32*8192}
        v_cmp_gt_u32 vcc, 16, v{vL}
        s_and_saveexec_b64 s[58:59], vcc
        buffer_load_dword v{vDum}, v8, s[{rW}:{rW+3}], s{sT0} offen
        s_mov_b64 exec, s[58:59]
        """)
        p.label("K1_WT1")
        p(f"""
        s_cmp_eq_u32 s{sWave}, 5
        s_cbranch_scc0 K1_WT2
        v_lshlrev_b32 v9, 7, v{vL}
        s_mul_i32 s{sT0}, s{sJj}, 18432
        buffer_load_dword v{vDum}, v9, s[{rX}:{rX+3}], s{sT0} offen
        s_add_u32 s{sT0}, s{sT0}, 8192
        buffer_load_dword v{vDum}, v9, s[{rX}:{rX+3}], s{sT0} offen
        s_add_u32 s{sT0}, s{sT0}, 8192
        v_cmp_gt_u32 vcc, 16, v{vL}
        s_and_saveexec_b64 s[58:59], vcc
        buffer_load_dword v{vDum}, v9, s[{rX}:{rX+3}], s{sT0} offen
        s_mov_b64 exec, s[58:59]
        """)
        p.label("K1_WT2")
    for c in range(4):
        issue_chunk(c)
    if o.fuse:
        p(f"""
        s_cmp_eq_u32 s2, 0
        s_cbranch_scc0 K1_NON
        s_cmp_eq_u32 s{sWave}, 7
        s_cbranch_scc0 K1_NON
        s_memrealtime s[{sN}:{sN+1}]
        s_waitcnt lgkmcnt(0)
        s_or_b32 s{sN}, s{sN}, 1
        v_mov_b32 v8, s{sN}
        v_mov_b32 v9, s{sN+1}
        v_mov_b32 v{vNon}, 0
        v_cmp_eq_u32 vcc, 0, v{vL}
        s_and_saveexec_b64 s[58:59], vcc
        global_store_dwordx2 v{vNon}, v[8:9], s[{sDbg}:{sDbg+1}] sc1
        s_mov_b64 exec, s[58:59]
        """)
        p.label("K1_NON")
    p(f"""
    s_lshl_b32 s{sT0}, s{sB}, 4
    s_lshr_b32 s{sT1}, s{sH}, 1
    s_add_u32 s{sT0}, s{sT0}, s{sT1}
    s_lshl_b32 s{sT0}, s{sT0}, 18
    s_add_u32 s{rK}, s{sK}, s{sT0}
    s_addc_u32 s{rK+1}, s{sK+1}, 0
    s_mov_b32 s{rK+2}, 0x40000
    s_mov_b32 s{rK+3}, 0x20000
    s_add_u32 s{rV}, s{sV}, s{sT0}
    s_addc_u32 s{rV+1}, s{sV+1}, 0
    s_mov_b32 s{rV+2}, 0x40000
    s_mov_b32 s{rV+3}, 0x20000
    s_mov_b32 s{rO}, s{sWs}
    s_mov_b32 s{rO+1}, s{sWs+1}
    s_mov_b32 s{rO+2}, {WS_SIZE}
    s_mov_b32 s{rO+3}, 0x20000
    """)
    for u in range(4):
        p(f"""
        v_add_u32 v8, {4*u}, v3
        v_xor_b32 v8, v8, v2
        v_lshlrev_b32 v8, 4, v8
        v_lshl_add_u32 v{vKo+u}, v3, 8, v8
        """)

    def issue_kv(isK, tile, slot):
        p(f"""
        s_add_u32 s{sT0}, s{sW4096}, {tile*32768}
        s_add_u32 m0, s{sW4096}, {R[slot]}
        """)
        for u in range(4):
            if isK: p(f"buffer_load_dwordx4 v{vKo+u}, s[{rK}:{rK+3}], s{sT0} offen offset:{u*1024}{NT} lds")
            else:   p(f"buffer_load_dwordx4 v{vVo}, s[{rV}:{rV+3}], s{sT0} offen offset:{u*1024}{NT} lds")
        vissue(('K' if isK else 'V', tile), 4)
    VQ = {}
    def par_branch(f0, f1):
        l1, l2 = nl('P'), nl('P')
        p(f"s_cmp_eq_u32 s{sPar}, 0")
        p(f"s_cbranch_scc0 {l1}")
        sv = list(vq)
        f0()
        after0 = list(vq)
        p(f"s_branch {l2}")
        p.label(l1)
        del vq[:]; vq.extend(VQ.get(1, sv))
        f1()
        VQ[1] = list(vq)
        del vq[:]; vq.extend(after0)
        p.label(l2)
    def issue_v0k2():
        if o.skew == 2:
            par_branch(lambda: (issue_kv(True, 2, 2), issue_kv(False, 0, 3)), lambda: (issue_kv(False, 0, 2), issue_kv(False, 1, 3)))
            return
        l1, l2 = nl('P'), nl('P')
        p(f"s_cmp_eq_u32 s{sPar}, 0")
        p(f"s_cbranch_scc0 {l1}")
        sv = list(vq)
        issue_kv(False, 0, 2); issue_kv(True, 2, 3)
        p(f"s_branch {l2}")
        p.label(l1)
        del vq[:]; vq.extend(sv)
        issue_kv(False, 0, 3); issue_kv(True, 2, 2)
        p.label(l2)
    if o.kdel < 0:
        issue_kv(True, 0, 0)
    if o.k1del < 0:
        issue_kv(True, 1, 1)

    p(f"""
    v_lshl_add_u32 v8, v6, 3, v4
    v_lshlrev_b32 v8, 8, v8
    v_and_b32 v9, 1, v3
    v_lshlrev_b32 v9, 1, v9
    v_and_b32 v{vLW}, 1, v5
    v_add_u32 v9, v9, v{vLW}
    s_lshl_b32 s{sT0}, s{sKq}, 2
    v_add_u32 v9, s{sT0}, v9
    v_lshlrev_b32 v{vLW}, 2, v4
    v_xor_b32 v9, v9, v{vLW}
    v_lshl_add_u32 v8, v9, 4, v8
    v_lshrrev_b32 v9, 1, v5
    v_lshl_add_u32 v{vLW}, v9, 3, v8
    s_lshl_b32 s{sT0}, s{sQh}, 5
    v_add_u32 v8, s{sT0}, v7
    v_lshrrev_b32 v9, 1, v8
    v_and_b32 v9, 7, v9
    v_xor_b32 v9, v9, v6
    v_lshlrev_b32 v9, 4, v9
    v_lshl_add_u32 v{vLX}, v8, 7, v9
    s_lshl_b32 s{sT0}, s{sKq}, 5
    v_add_u32 v8, s{sT0}, v7
    v_and_b32 v9, 15, v8
    v_xor_b32 v9, v9, v6
    v_lshlrev_b32 v9, 4, v9
    v_lshl_add_u32 v{vLK}, v8, 8, v9
    v_lshl_add_u32 v8, v6, 2, v4
    v_add_u32 v8, s{sT0}, v8
    v_lshlrev_b32 v8, 8, v8
    v_and_b32 v9, 1, v5
    v_lshl_add_u32 v8, v9, 3, v8
    v_and_b32 v9, 1, v3
    v_lshlrev_b32 v9, 1, v9
    v_lshrrev_b32 v2, 1, v5
    v_add_u32 v9, v9, v2
    v_lshlrev_b32 v2, 2, v4
    """)
    for a in range(4):
        p(f"""
        s_add_u32 s{sT1}, s{sKq}, {a}
        s_and_b32 s{sT1}, s{sT1}, 3
        s_lshl_b32 s{sT1}, s{sT1}, 2
        v_add_u32 v3, s{sT1}, v9
        v_xor_b32 v3, v3, v2
        v_lshl_add_u32 v{vLV+a}, v3, 4, v8
        """)
    for i in range(16):
        p(f"v_mov_b32 v{vS[0]+i}, 0")
    for i in range(64):
        p(f"v_mov_b32 v{vO+i}, 0")
    p(f"""
    v_mov_b32 v{vM}, 0xf149f2ca
    v_mov_b32 v{vThr}, 0xf149f2ca
    v_mov_b32 v{vL0}, 0
    v_mov_b32 v{vL1}, 0
    """)
    if o.fuse:
        p(f"""
        s_movk_i32 s{sT0}, 3641
        s_movk_i32 s{sT1}, 1152
        """)
        for i in range(9):
            p(f"""
            v_add_u32 v2, {64*i}, v{vL}
            v_mul_u32_u24 v3, s{sT0}, v2
            v_lshrrev_b32 v3, 16, v3
            v_mul_u32_u24 v4, 18, v3
            v_sub_u32 v4, v2, v4
            v_mul_u32_u24 v3, s{sT1}, v3
            v_lshl_add_u32 v3, v4, 4, v3
            v_subrev_u32 v{vOff+i}, {(i%4)*1024}, v3
            """)

    FB = [vKf, vVf]
    A0 = vKA
    def q_phase(c, reads, extra):
        f = FB[(c - 1) % 2]
        rd = list(reads); ex = list(extra)
        for ks in range(4):
            if c >= 1:
                p(f"{MF} {rg(vS[0],16)}, {rg(f+8*ks,4)}, {rg(f+8*ks+4,4)}, {rg(vS[0],16)}")
            for _ in range(3):
                if rd: p(rd.pop(0))
            if ex and ks >= 1: ex.pop(0)()
        for e in ex: e()
    for c in range(9):
        qs = QS[c % 4]
        f = FB[c % 2]
        n = vneed(('C', c))
        p(f"""
        v_add_u32 v{A0}, {qs}, v{vLW}
        v_add_u32 v{A0+1}, {qs+16384}, v{vLX}
        v_xor_b32 v{A0+2}, 32, v{A0+1}
        v_xor_b32 v{A0+3}, 64, v{A0+1}
        v_xor_b32 v{A0+4}, 96, v{A0+1}
        s_waitcnt vmcnt({n}) lgkmcnt(0)
        """)
        stamp(p, o, f'w{c}')
        p("s_barrier")
        if c == 0: stamp(p, o, 1)
        stamp(p, o, f'c{c}')
        reads = []
        for ks in range(4):
            reads.append(f"ds_read_b64_tr_b16 {rg(f+8*ks,2)}, v{A0} offset:{ks*4096}")
            reads.append(f"ds_read_b64_tr_b16 {rg(f+8*ks+2,2)}, v{A0} offset:{ks*4096+1024}")
            reads.append(f"ds_read_b128 {rg(f+8*ks+4,4)}, v{A0+1+ks}")
        extra = []
        if 1 <= c <= 5: extra.append(lambda c=c: issue_chunk(c + 3))
        if c == o.kdel:
            extra.append(lambda: issue_kv(True, 0, 0))
            if o.k1del == c: extra.append(lambda: issue_kv(True, 1, 1))
        elif c == o.k1del:
            extra.append(lambda: issue_kv(True, 1, 1))
        if c == 8 and o.late == 0:
            extra.append(issue_v0k2)
        q_phase(c, reads, extra)
        stamp(p, o, f'm{c}')
    p("s_waitcnt lgkmcnt(0)")
    p("s_barrier")
    q_phase(9, [], [])
    stamp(p, o, 2)
    QX = R[4]
    p(f"""
    s_lshl_b32 s{sT0}, s{sQh}, 13
    s_lshl_b32 s{sT1}, s{sKq}, 11
    s_add_u32 s{sT1}, s{sT1}, s{sT0}
    s_add_u32 s{sT1}, s{sT1}, {QX}
    s_add_u32 s{sT0}, s{sT0}, {QX}
    v_lshlrev_b32 v2, 4, v{vL}
    v_add_u32 v3, s{sT1}, v2
    v_add_u32 v2, s{sT0}, v2
    """)
    p(f"v_mov_b32 v{vKA}, v{vLK}")
    for s in range(1, 8):
        p(f"v_xor_b32 v{vKA+s}, {s<<5}, v{vLK}")
    for j in range(8):
        p(f"v_cvt_pk_bf16_f32 v{vP+j}, v{vS[0]+2*j}, v{vS[0]+2*j+1}")
    p(f"""
    ds_write_b128 v3, {rg(vP,4)}
    ds_write_b128 v3, {rg(vP+4,4)} offset:1024
    s_waitcnt lgkmcnt(0)
    s_barrier
    """)
    for s in range(8):
        p(f"ds_read_b128 {rg(vQ+4*s,4)}, v2 offset:{s*1024}")
    if o.kdel > 8: issue_kv(True, 0, 0)
    if o.k1del > 8: issue_kv(True, 1, 1)
    if o.late:
        issue_v0k2()

    def k_addrs(sreg):
        p(f"v_add_u32 v{vKA}, s{sreg}, v{vLK}")
        for s in range(1, 8):
            p(f"v_xor_b32 v{vKA+s}, {s<<5}, v{vKA}")
    def v_addrs(sreg):
        for a in range(4):
            p(f"v_add_u32 v{vVA+a}, s{sreg}, v{vLV+a}")
    def advance_slot(s):
        p(f"""
        s_add_u32 s{s}, s{s}, 32768
        s_cmp_eq_u32 s{s}, {5*32768}
        s_cselect_b32 s{s}, 0, s{s}
        """)
    def tmax(S):
        p(f"""
        v_max3_f32 v2, v{S}, v{S+1}, v{S+2}
        v_max3_f32 v3, v{S+3}, v{S+4}, v{S+5}
        v_max3_f32 v2, v2, v{S+6}, v{S+7}
        v_max3_f32 v3, v3, v{S+8}, v{S+9}
        v_max3_f32 v2, v2, v{S+10}, v{S+11}
        v_max3_f32 v3, v3, v{S+12}, v{S+13}
        v_max3_f32 v2, v2, v{S+14}, v{S+15}
        v_max_f32 v2, v2, v3
        v_mov_b32 v3, v2
        s_nop 1
        v_permlane32_swap_b32 v2, v3
        v_max_f32 v2, v2, v3
        v_mul_f32 v{vTn}, s{sC}, v2
        """)

    def need_both(tag):
        res = []
        for q in ([vq] if o.skew != 2 else [vq, VQ[1]]):
            idx = [i for i, t in enumerate(q) if t == tag]
            if not idx: res.append(63); continue
            res.append(min(63, len(q) - 1 - idx[-1]))
            del q[:idx[-1] + 1]
        return res if len(res) == 2 else res * 2
    def wait2(n0, n1):
        if n0 == n1:
            p(f"s_waitcnt vmcnt({n0}) lgkmcnt(0)")
        else:
            l1, l2 = nl('W'), nl('W')
            p(f"s_cmp_eq_u32 s{sPar}, 0")
            p(f"s_cbranch_scc0 {l1}")
            p(f"s_waitcnt vmcnt({n0}) lgkmcnt(0)")
            p(f"s_branch {l2}")
            p.label(l1)
            p(f"s_waitcnt vmcnt({n1}) lgkmcnt(0)")
            p.label(l2)
    if o.skew == 2 and 1 not in VQ: VQ[1] = list(vq)
    wait2(*need_both(('K', 0)))
    p("s_barrier")
    stamp(p, o, 3)
    for s in range(8):
        p(f"ds_read_b128 {rg(vKf+4*s,4)}, v{vKA+s}")
    if o.skew == 2: par_branch(lambda: issue_kv(False, 1, 4), lambda: issue_kv(False, 2, 4))
    else: issue_kv(False, 1, 4)
    p(f"s_mov_b32 s{sRK}, {R[1]}")
    wait2(*need_both(('K', 1)))
    p("s_barrier")
    k_addrs(sRK)
    for s in range(8):
        c = '0' if s == 0 else rg(vS[0], 16)
        p(f"{MF} {rg(vS[0],16)}, {rg(vKf+4*s,4)}, {rg(vQ+4*s,4)}, {c}")
    for s in range(8):
        p(f"ds_read_b128 {rg(vKf+4*s,4)}, v{vKA+s}")
    if o.skew == 2: par_branch(lambda: issue_kv(True, 3, 0), lambda: issue_kv(True, 2, 0))
    else: issue_kv(True, 3, 0)
    if o.skew == 2:
        p(f"""
        s_mov_b32 s{sKprev}, {R[1]}
        s_mov_b32 s{sRV}, {R[2]}
        s_mov_b32 s{sRK}, {R[0]}
        s_mov_b32 s{sStep}, 32768
        s_mov_b32 s{sEK}, {R[2]}
        s_mov_b32 s{sRngV}, {3*32768}
        s_mov_b32 s{sOff}, {3*32768}
        s_mov_b32 s{sOffB}, {3*32768}
        s_cmp_eq_u32 s{sPar}, 0
        s_cselect_b32 s{sRV}, {R[3]}, s{sRV}
        s_cselect_b32 s{sRK}, {R[2]}, s{sRK}
        s_cselect_b32 s{sEK}, {R[3]}, s{sEK}
        s_cselect_b32 s{sRngV}, {2*32768}, s{sRngV}
        s_cselect_b32 s{sOff}, {4*32768}, s{sOff}
        s_cselect_b32 s{sOffB}, {2*32768}, s{sOffB}
        s_mov_b32 s{sT0}, s{rK}
        s_mov_b32 s{sT1}, s{rK+1}
        s_mov_b32 s{rK}, s{rV}
        s_mov_b32 s{rK+1}, s{rV+1}
        s_mov_b32 s{rV}, s{sT0}
        s_mov_b32 s{rV+1}, s{sT1}
        s_add_u32 s{sOff}, s{sOff}, s{sW4096}
        s_add_u32 s{sOffB}, s{sOffB}, s{sW4096}
        s_mov_b32 s{sCnt}, 0
        """)
        for u in range(4): p(f"v_mov_b32 v{vOb+u}, v{vVo}")
    else:
        p(f"""
        s_mov_b32 s{sKprev}, {R[1]}
        s_mov_b32 s{sRV}, {R[3]}
        s_mov_b32 s{sRK}, {R[2]}
        s_mov_b32 s{sStep}, 32768
        s_mov_b32 s{sEK}, {R[3]}
        s_mov_b32 s{sRngV}, 65536
        s_mov_b32 s{sOff}, {4*32768}
        s_mov_b32 s{sOffB}, {2*32768}
        s_cmp_eq_u32 s{sPar}, 0
        s_cselect_b32 s{sRV}, {R[2]}, s{sRV}
        s_cselect_b32 s{sRK}, {R[3]}, s{sRK}
        s_cselect_b32 s{sStep}, 65536, s{sStep}
        s_cselect_b32 s{sEK}, {5*32768}, s{sEK}
        s_cselect_b32 s{sRngV}, {5*32768}, s{sRngV}
        s_cselect_b32 s{sOff}, {2*32768}, s{sOff}
        s_cselect_b32 s{sOffB}, {4*32768}, s{sOffB}
        s_cbranch_scc1 K1_PAR0
        s_mov_b32 s{sT0}, s{rK}
        s_mov_b32 s{sT1}, s{rK+1}
        s_mov_b32 s{rK}, s{rV}
        s_mov_b32 s{rK+1}, s{rV+1}
        s_mov_b32 s{rV}, s{sT0}
        s_mov_b32 s{rV+1}, s{sT1}
        """)
        for u in range(4): p(f"v_mov_b32 v{vOb+u}, v{vVo}")
        p("s_branch K1_PAR1")
        p.label("K1_PAR0")
        for u in range(4):
            p(f"v_mov_b32 v{vOb+u}, v{vKo+u}")
        for u in range(4):
            p(f"v_mov_b32 v{vKo+u}, v{vVo}")
        p.label("K1_PAR1")
        p(f"""
        s_add_u32 s{sOff}, s{sOff}, s{sW4096}
        s_add_u32 s{sOffB}, s{sOffB}, s{sW4096}
        s_mov_b32 s{sCnt}, 0
        """)
    v_addrs(sRV)
    k_addrs(sRK)
    tmax(vS[0])

    W = {}; WP = {0: {}, 1: {}}
    for par in (0, 1):
        q2 = list(vq if (par == 0 or o.skew != 2) else VQ[1])
        def need2(tag):
            idx = [i for i, t in enumerate(q2) if t == tag]
            if not idx: return 63
            n = len(q2) - 1 - idx[-1]
            del q2[:idx[-1] + 1]
            return min(n, 63)
        for i in range(8):
            n = need2(('V', i)); WP[par][('a', i)] = n
            if o.skew == 2: ta, tb = ('K', i + 4 - par), ('V', i + 2 + par)
            else: ta, tb = (('V', i + 2), ('K', i + 4)) if par == 0 else (('K', i + 4), ('V', i + 2))
            if i <= 5: q2.extend([ta] * 4)
            if i <= 5:
                n = need2(('K', i + 2)); WP[par][('b', i)] = n
                q2.extend([tb] * 4)
        if not o.skew: WP[1] = WP[0]; break
    for k in WP[0]:
        W[k] = (WP[0][k], WP[1][k]) if o.skew == 2 else (min(WP[0][k], WP[1][k]),) * 2
    print('loop waits', W, file=sys.stderr)

    def alpha(tag, cur, do_qk, issue, wv):
        S, Sn = vS[cur], vS[1 - cur]
        wait2(*wv)
        p(f"""
        s_barrier
        v_cmp_gt_f32 vcc, v{vTn}, v{vThr}
        s_cbranch_vccnz K1_RS{tag}
        """)
        p.label(f"K1_BK{tag}")
        reads = [(a, ks, h) for a in range(4) for ks in range(2) for h in range(2)]
        for j in range(8):
            if do_qk:
                c = '0' if j == 0 else rg(Sn, 16)
                p(f"{MF} {rg(Sn,16)}, {rg(vKf+4*j,4)}, {rg(vQ+4*j,4)}, {c}")
            for (a, ks, h) in reads[2*j:2*j+2]:
                f = vVf + (a * 2 + ks) * 4 + 2 * h
                p(f"ds_read_b64_tr_b16 {rg(f,2)}, v{vVA+a} offset:{ks*4096+h*2048}")
            p(f"v_fma_f32 v{S+2*j}, v{S+2*j}, s{sC}, -v{vM}")
            p(f"v_fma_f32 v{S+2*j+1}, v{S+2*j+1}, s{sC}, -v{vM}")
            p(f"v_exp_f32 v{S+2*j}, v{S+2*j}")
            p(f"v_exp_f32 v{S+2*j+1}, v{S+2*j+1}")
            if j >= 1:
                k = j - 1
                p(f"v_cvt_pk_bf16_f32 v{vP+k}, v{S+2*k}, v{S+2*k+1}")
                p(f"v_add_f32 v{vL0}, v{vL0}, v{S+2*k}")
                p(f"v_add_f32 v{vL1}, v{vL1}, v{S+2*k+1}")
            if issue and j == 0:
                p(f"s_add_u32 m0, s{sKprev}, s{sW4096}")
            if issue and o.dmapos == 0 and j in (1, 3, 5, 7):
                u = (j - 1) // 2
                p(f"buffer_load_dwordx4 v{vKo+u}, s[{rV}:{rV+3}], s{sOff} offen offset:{u*1024}{NT} lds")
        p(f"v_cvt_pk_bf16_f32 v{vP+7}, v{S+14}, v{S+15}")
        p(f"v_add_f32 v{vL0}, v{vL0}, v{S+14}")
        p(f"v_add_f32 v{vL1}, v{vL1}, v{S+15}")
        if issue and o.dmapos == 1:
            for u in range(4):
                p(f"buffer_load_dwordx4 v{vKo+u}, s[{rV}:{rV+3}], s{sOff} offen offset:{u*1024}{NT} lds")
        if issue:
            p(f"s_add_u32 s{sOff}, s{sOff}, 32768")

    def beta(tag, cur, read_k, issue, do_tmax, wv, barrier=True, extra=None):
        Sn = vS[1 - cur]
        wait2(*wv)
        if barrier: p("s_barrier")
        n = 0
        for a in range(4):
            for ks in range(2):
                f = vVf + (a * 2 + ks) * 4
                p(f"{MF} {rg(vO+16*a,16)}, {rg(f,4)}, {rg(vP+4*ks,4)}, {rg(vO+16*a,16)}")
                if read_k:
                    p(f"ds_read_b128 {rg(vKf+4*n,4)}, v{vKA+n}")
                if issue and n == 0:
                    p(f"s_add_u32 m0, s{sRV}, s{sW4096}")
                if issue and o.dmapos == 0 and n in (1, 3, 5, 7):
                    u = (n - 1) // 2
                    p(f"buffer_load_dwordx4 v{vOb+u}, s[{rK}:{rK+3}], s{sOffB} offen offset:{u*1024}{NT} lds")
                if n == 2 and do_tmax:
                    tmax(Sn)
                n += 1
        if issue and o.dmapos == 1:
            pass
        if issue and o.dmapos == 1:
            for u in range(4):
                p(f"buffer_load_dwordx4 v{vOb+u}, s[{rK}:{rK+3}], s{sOffB} offen offset:{u*1024}{NT} lds")
        if issue:
            p(f"s_add_u32 s{sOffB}, s{sOffB}, 32768")
        p(f"""
        s_mov_b32 s{sKprev}, s{sRK}
        s_add_u32 s{sRV}, s{sRV}, s{sStep}
        s_cmp_ge_u32 s{sRV}, {5*32768}
        s_cselect_b32 s{sT0}, s{sRngV}, 0
        s_sub_u32 s{sRV}, s{sRV}, s{sT0}
        s_add_u32 s{sRK}, s{sRK}, s{sStep}
        s_cmp_ge_u32 s{sRK}, s{sEK}
        s_cselect_b32 s{sT0}, s{sEK}, 0
        s_sub_u32 s{sRK}, s{sRK}, s{sT0}
        """)
        v_addrs(sRV)
        k_addrs(sRK)
        if extra: extra()

    def rescale(tag):
        p.label(f"K1_RS{tag}")
        p(f"""
        v_max_f32 v3, v{vTn}, v{vM}
        v_sub_f32 v4, v{vM}, v3
        v_exp_f32 v4, v4
        v_mov_b32 v{vM}, v3
        v_add_f32 v{vThr}, 0x41000000, v3
        """)
        p(f"v_mul_f32 v{vL0}, v{vL0}, v4")
        p(f"v_mul_f32 v{vL1}, v{vL1}, v4")
        for i in range(64):
            p(f"v_mul_f32 v{vO+i}, v{vO+i}, v4")
        p(f"s_branch K1_BK{tag}")

    def wo_srd():
        p(f"""
        s_mul_i32 s{sT0}, s{sXc}, {512*1152}
        s_mul_i32 s{sT1}, s{sJj}, 288
        s_add_u32 s{sT0}, s{sT0}, s{sT1}
        s_add_u32 s{rW}, s{sWo}, s{sT0}
        s_addc_u32 s{rW+1}, s{sWo+1}, 0
        s_sub_u32 s{rW+2}, {4096*1152}, s{sT0}
        s_mov_b32 s{rW+3}, 0x20000
        """)
    def wo_touch():
        if not (o.fuse and o.wot): return
        l = nl('WOT')
        p(f"""
        s_cmp_eq_u32 s{sCnt}, 1
        s_cbranch_scc0 {l}
        s_cmp_eq_u32 s{sWave}, 6
        s_cbranch_scc0 {l}
        s_mul_i32 s{sT0}, s{sXc}, {512*1152}
        s_add_u32 s{rX}, s{sWo}, s{sT0}
        s_addc_u32 s{rX+1}, s{sWo+1}, 0
        s_mov_b32 s{rX+2}, {512*1152}
        s_mov_b32 s{rX+3}, 0x20000
        s_lshr_b32 s{sT0}, s2, 3
        s_mul_i32 s{sT0}, s{sT0}, 18432
        v_lshlrev_b32 v2, 7, v{vL}
        buffer_load_dword v{vDum}, v2, s[{rX}:{rX+3}], s{sT0} offen
        s_add_u32 s{sT0}, s{sT0}, 8192
        buffer_load_dword v{vDum}, v2, s[{rX}:{rX+3}], s{sT0} offen
        s_add_u32 s{sT0}, s{sT0}, 8192
        v_cmp_gt_u32 vcc, 16, v{vL}
        s_and_saveexec_b64 s[58:59], vcc
        buffer_load_dword v{vDum}, v2, s[{rX}:{rX+3}], s{sT0} offen
        s_mov_b64 exec, s[58:59]
        """)
        p.label(l)
        if o.tlb:
            l = nl('TLB')
            p(f"""
            s_cmp_eq_u32 s{sCnt}, {o.tlb - 1}
            s_cbranch_scc0 {l}
            s_cmp_eq_u32 s{sWave}, 5
            s_cbranch_scc0 {l}
            s_lshl_b32 s{sT0}, s{sB}, 2
            s_add_u32 s{sT0}, s{sT0}, s{sJj}
            s_mul_i32 s{sT0}, s{sT0}, 36864
            s_add_u32 s{sT0}, s{sT0}, {WS_PART}
            v_mul_u32_u24 v2, 1152, v{vL}
            v_lshlrev_b32 v2, 10, v2
            v_add_u32 v2, s{sT0}, v2
            s_lshl_b32 s{sT0}, s{sWg}, 14
            v_mov_b32 v3, s{sT0}
            v_cmp_eq_u32 vcc, 8, v{vL}
            s_lshl_b32 s{sT0}, s{sWg}, 7
            s_add_u32 s{sT0}, s{sT0}, {WS_FLAG}
            v_cndmask_b32 v2, v2, v3, vcc
            v_mov_b32 v3, s{sT0}
            v_cmp_eq_u32 vcc, 9, v{vL}
            s_mul_i32 s{sT0}, s{sB}, {64*1152}
            v_mov_b32 v4, s{sT0}
            v_cndmask_b32 v2, v2, v3, vcc
            s_mov_b64 s[58:59], exec
            s_mov_b64 exec, 0x3ff
            buffer_load_dword v{vDum}, v2, s[{rO}:{rO+3}], 0 offen sc1
            s_mov_b64 exec, 1
            global_load_dword v{vDum}, v4, s[{sOut}:{sOut+1}] sc1
            s_mov_b64 exec, s[58:59]
            """)
            p.label(l)

    wm = lambda keys: (min(W[k][0] for k in keys), min(W[k][1] for k in keys))
    loop_start = len(p.ins)
    p.label("K1_LOOP")
    alpha('L0', 0, True, True, wm([('a', 0), ('a', 2), ('a', 4)]))
    beta('L0', 0, True, True, True, wm([('b', 0), ('b', 2), ('b', 4)]))
    alpha('L1', 1, True, True, wm([('a', 1), ('a', 3), ('a', 5)]))
    beta('L1', 1, True, True, True, wm([('b', 1), ('b', 3), ('b', 5)]), extra=wo_touch)
    p(f"""
    s_add_u32 s{sCnt}, s{sCnt}, 1
    s_cmp_lt_u32 s{sCnt}, 3
    s_cbranch_scc1 K1_LOOP
    """)
    if o.dry:
        keep = []
        for x in p.ins[loop_start:]:
            drop = False
            if o.dry & 1 and x.kind == 'mfma': drop = True
            if o.dry & 2 and x.kind == 'ds': drop = True
            if o.dry & 4 and x.kind == 'valu' and not x.op.startswith('v_cmp'): drop = True
            if not drop: keep.append(x)
        p.ins[loop_start:] = keep
    stamp(p, o, 4)
    if o.fuse:
        p(f"""
        s_cmp_eq_u32 s{sWave}, 7
        s_cbranch_scc0 K1_NL
        v_mov_b32 v8, 0
        global_load_dwordx2 v[{vNon}:{vNon+1}], v8, s[{sDbg}:{sDbg+1}] sc1
        """)
        p.label("K1_NL")
    alpha('A', 0, True, False, W[('a', 6)])
    beta('A', 0, False, False, True, (63, 63), barrier=False)
    alpha('B', 1, False, False, W[('a', 7)])
    p("s_waitcnt vmcnt(0) lgkmcnt(0)")
    for a in range(4):
        for ks in range(2):
            f = vVf + (a * 2 + ks) * 4
            p(f"{MF} {rg(vO+16*a,16)}, {rg(f,4)}, {rg(vP+4*ks,4)}, {rg(vO+16*a,16)}")
    stamp(p, o, 5)

    STAT = 0
    NONL = 4096
    OX = R[2]
    WOB = 16384
    vS0 = vS[0]
    def wo_group_dma(gexpr_sgpr):
        p(f"""
        s_mul_i32 s{sT1}, s{gexpr_sgpr}, 9216
        s_add_u32 s{sT1}, s{sT1}, {WOB}
        s_mul_i32 s{sT0}, s{gexpr_sgpr}, 36864
        """)
        for i in range(9):
            if i % 4 == 0:
                p(f"s_add_u32 m0, s{sT1}, {(i//4)*4096}")
            p(f"buffer_load_dwordx4 v{vOff+i}, s[{rW}:{rW+3}], s{sT0} offen offset:{(i%4)*1024} lds")
    p(f"""
    v_add_f32 v{vL0}, v{vL0}, v{vL1}
    v_mov_b32 v{vL1}, v{vL0}
    s_nop 1
    v_permlane32_swap_b32 v{vL0}, v{vL1}
    v_add_f32 v{vThr}, v{vL0}, v{vL1}
    v_and_b32 v7, 31, v{vL}
    s_lshl_b32 s{sT0}, s{sKq}, 9
    s_lshl_b32 s{sT1}, s{sQh}, 8
    s_add_u32 s{sT0}, s{sT0}, s{sT1}
    s_add_u32 s{sT0}, s{sT0}, {STAT}
    s_add_u32 s{sT1}, s{sT1}, {STAT}
    v_lshlrev_b32 v7, 3, v7
    v_add_u32 v2, s{sT0}, v7
    v_add_u32 v7, s{sT1}, v7
    v_lshlrev_b32 v3, 4, v{vL}
    """)
    if o.fuse: wo_srd()
    p("s_barrier")
    stamp(p, o, 'e1')
    p(f"""
    ds_write_b64 v2, v[{vM}:{vM+1}]
    """)
    if o.fuse:
        p(f"""
        s_cmp_eq_u32 s{sWave}, 7
        s_cbranch_scc0 K1_NON2
        s_mov_b32 s{sT2}, 0
        """)
        p.label("K1_NONP")
        p(f"""
        v_readfirstlane_b32 s{sT0}, v{vNon}
        s_add_u32 s{sT2}, s{sT2}, 1
        s_cmp_lg_u32 s{sT0}, 0
        s_cbranch_scc1 K1_NONOK
        s_cmp_lt_u32 s{sT2}, {SPIN}
        s_cbranch_scc0 K1_NONOK
        v_mov_b32 v8, 0
        global_load_dwordx2 v[{vNon}:{vNon+1}], v8, s[{sDbg}:{sDbg+1}] sc1
        s_waitcnt vmcnt(0)
        s_branch K1_NONP
        """)
        p.label("K1_NONOK")
        p(f"""
        v_mov_b32 v6, {NONL}
        ds_write_b64 v6, v[{vNon}:{vNon+1}]
        """)
        p.label("K1_NON2")
    for a in range(1, 4):
        p(f"""
        s_add_u32 s{sT0}, s{sKq}, {a}
        s_and_b32 s{sT0}, s{sT0}, 3
        s_lshl_b32 s{sT2}, s{sQh}, 2
        s_add_u32 s{sT0}, s{sT0}, s{sT2}
        s_mul_i32 s{sT0}, s{sT0}, 12288
        s_add_u32 s{sT0}, s{sT0}, {OX + (3-a)*4096}
        v_add_u32 v4, s{sT0}, v3
        """)
        for g in range(4):
            p(f"ds_write_b128 v4, {rg(vO+16*a+4*g,4)} offset:{g*1024}")
    if o.fuse and o.early:
        p(f"""
        s_cmp_lt_u32 s{sWave}, 5
        s_cbranch_scc0 K1_WG1
        """)
        wo_group_dma(sWave)
        p.label("K1_WG1")
    p(f"""
    s_lshl_b32 s{sT0}, s{sQh}, 2
    s_add_u32 s{sT0}, s{sT0}, s{sKq}
    s_mul_i32 s{sT0}, s{sT0}, 12288
    s_add_u32 s{sT0}, s{sT0}, {OX}
    v_add_u32 v4, s{sT0}, v3
    s_waitcnt lgkmcnt(0)
    """)
    stamp(p, o, 'e2')
    p("s_barrier")
    stamp(p, o, 'e3')
    for k in range(4):
        p(f"ds_read_b64 v[{vS0+2*k}:{vS0+2*k+1}], v7 offset:{k*512}")
    for i in range(3):
        for g in range(4):
            p(f"ds_read_b128 {rg(vO+16*(i+1)+4*g,4)}, v4 offset:{i*4096+g*1024}")
    if o.fuse:
        p(f"""
        v_mov_b32 v6, {NONL}
        ds_read_b64 v[8:9], v6
        s_waitcnt lgkmcnt(13)
        """)
    else:
        p("s_waitcnt lgkmcnt(12)")
    m = [vS0 + 0, vS0 + 2, vS0 + 4, vS0 + 6]; l = [vS0 + 1, vS0 + 3, vS0 + 5, vS0 + 7]
    p(f"""
    v_max3_f32 v2, v{m[0]}, v{m[1]}, v{m[2]}
    v_max_f32 v2, v2, v{m[3]}
    """)
    for k in range(4):
        p(f"v_sub_f32 v{m[k]}, v{m[k]}, v2")
    for k in range(4):
        p(f"v_exp_f32 v{m[k]}, v{m[k]}")
    p(f"""
    v_mul_f32 v3, v{m[0]}, v{l[0]}
    v_fmac_f32 v3, v{m[1]}, v{l[1]}
    v_fmac_f32 v3, v{m[2]}, v{l[2]}
    v_fmac_f32 v3, v{m[3]}, v{l[3]}
    v_rcp_f32 v3, v3
    """)
    for k in range(4):
        p(f"v_mul_f32 v{m[k]}, v{m[k]}, v3")
    wr = vS0 + 8
    for kq in range(4):
        p(f"s_cmp_eq_u32 s{sKq}, {kq}")
        p(f"s_cbranch_scc0 K1_WR{kq}")
        for i in range(4):
            p(f"v_mov_b32 v{wr+i}, v{m[(kq+i)&3]}")
        p.label(f"K1_WR{kq}")
    for i in range(16):
        p(f"v_mul_f32 v{vO+i}, v{vO+i}, v{wr}")
    nextra = 1 if o.fuse else 0
    for s in range(3):
        p(f"s_waitcnt lgkmcnt({8-4*s+nextra})")
        for i in range(16):
            p(f"v_fmac_f32 v{vO+i}, v{vO+16*(s+1)+i}, v{wr+s+1}")
    order = [0, 2, 1, 3]
    for idx, g in enumerate(order):
        p(f"v_cvt_pk_bf16_f32 v{vP+2*idx}, v{vO+4*g}, v{vO+4*g+1}")
        p(f"v_cvt_pk_bf16_f32 v{vP+2*idx+1}, v{vO+4*g+2}, v{vO+4*g+3}")
    stamp(p, o, 'e4')
    SC = ' sc1' if o.fuse else ''
    p(f"""
    v_and_b32 v2, 15, v{vL}
    v_lshrrev_b32 v3, 5, v{vL}
    v_lshl_add_u32 v2, v3, 4, v2
    v_lshlrev_b32 v2, 4, v2
    v_bfe_u32 v3, v{vL}, 4, 1
    v_lshl_add_u32 v2, v3, 12, v2
    s_lshl_b32 s{sT0}, s{sWg}, 14
    s_lshl_b32 s{sT1}, s{sQh}, 13
    s_add_u32 s{sT0}, s{sT0}, s{sT1}
    s_lshl_b32 s{sT1}, s{sKq}, 10
    s_add_u32 s{sT0}, s{sT0}, s{sT1}
    buffer_store_dwordx4 {rg(vP,4)}, v2, s[{rO}:{rO+3}], s{sT0} offen{SC}
    buffer_store_dwordx4 {rg(vP+4,4)}, v2, s[{rO}:{rO+3}], s{sT0} offen offset:512{SC}
    """)
    if not o.fuse:
        if o.stamps:
            p("s_waitcnt vmcnt(0)")
            stamp(p, o, 6)
            stamp_flush(p, o, 0, 7, sWs)
        p("s_branch K1_END")
    else:
        tail(p, o, locals())
    for tag in ('L0', 'L1', 'A', 'B'):
        rescale(tag)
    p.label("K1_END")
    p("s_endpgm")
    return p

def gemm_body(p, vAcc, vB, vF, vAd, vLA, base_expr_instr, vm_base=0):
    p(base_expr_instr)
    p(f"v_add_u32 v{vAd+1}, {4*9216}, v{vAd}")
    HA, HB = list(range(0, 5)), list(range(5, 9))
    def reads(kk, half):
        ad = vAd + (kk // 4)
        off = (kk % 4) * 9216
        for nt in half:
            f = vF + 4 * nt
            p(f"ds_read_b64_tr_b16 {rg(f,2)}, v{ad} offset:{off+nt*32}")
            p(f"ds_read_b64_tr_b16 {rg(f+2,2)}, v{ad} offset:{off+4608+nt*32}")
    def mfmas(kk, half, younger):
        n = len(half)
        h1 = (n + 1) // 2
        for idx, nt in enumerate(half):
            f = vF + 4 * nt
            if idx == 0: p(f"s_waitcnt lgkmcnt({min(15, younger + 2*(n-h1))})")
            if idx == h1: p(f"s_waitcnt lgkmcnt({min(15, younger)})")
            p(f"{MF16} {rg(vAcc+4*nt,4)}, {rg(f,4)}, {rg(vB+4*kk,4)}, {rg(vAcc+4*nt,4)}")
    reads(0, HA)
    for kk in range(8):
        reads(kk, HB)
        p(f"s_waitcnt vmcnt({7-kk+vm_base})")
        mfmas(kk, HA, 2 * len(HB))
        if kk < 7:
            reads(kk + 1, HA)
            mfmas(kk, HB, 2 * len(HA))
        else:
            mfmas(kk, HB, 0)

def tail(p, o, L):
    g = lambda n: L[n]
    sWave, sB, sXc, sJj, sWg, sT0, sT1, sT2 = g('sWave'), g('sB'), g('sXc'), g('sJj'), g('sWg'), g('sT0'), g('sT1'), g('sT2')
    rO, rW, rX, sN, sTag, sOut, sWs = g('rO'), g('rW'), g('rX'), g('sN'), g('sTag'), g('sOut'), g('sWs')
    vL, vOff, WOB = g('vL'), g('vOff'), g('WOB')
    wo_group_dma = g('wo_group_dma')
    sQt, sKh2 = 40, 41
    vAcc, vB, vF, vLA, vAd = 28, 64, 96, 19, 20
    p(f"""
    s_waitcnt vmcnt(0) lgkmcnt(0)
    v_readfirstlane_b32 s{sN}, v8
    v_readfirstlane_b32 s{sN+1}, v9
    s_barrier
    """)
    if o.stamps: stamp(p, o, 6)
    p(f"""
    s_and_b32 s{sQt}, s{sWave}, 3
    s_lshr_b32 s{sKh2}, s{sWave}, 2
    s_cmp_eq_u32 s{sWave}, 7
    s_cbranch_scc0 T_NOFLAG
    v_mov_b32 v9, s{sN}
    s_lshl_b32 s{sT0}, s{sWg}, 7
    s_add_u32 s{sT0}, s{sT0}, {WS_FLAG}
    v_mov_b32 v3, 0
    v_cmp_eq_u32 vcc, 0, v{vL}
    s_and_saveexec_b64 s[58:59], vcc
    buffer_store_dword v9, v3, s[{rO}:{rO+3}], s{sT0} offen sc1
    s_mov_b64 exec, s[58:59]
    s_and_b32 s{sT0}, s{sWg}, 0xfc
    s_lshl_b32 s{sT0}, s{sT0}, 7
    s_add_u32 s{sT0}, s{sT0}, {WS_FLAG}
    v_and_b32 v8, 3, v{vL}
    v_lshlrev_b32 v8, 7, v8
    s_mov_b32 s{sT1}, 0
    buffer_load_dword v10, v8, s[{rO}:{rO+3}], s{sT0} offen sc1
    buffer_load_dword v11, v8, s[{rO}:{rO+3}], s{sT0} offen sc1
    """)
    p("s_branch T_SETUP")
    p.label("T_NOFLAG")
    if o.early:
        p(f"s_add_u32 s{sT2}, s{sWave}, 5")
        wo_group_dma(sT2)
        p(f"""
        s_cmp_lt_u32 s{sWave}, 4
        s_cbranch_scc0 T_SETUP
        s_add_u32 s{sT2}, s{sWave}, 12
        """)
        wo_group_dma(sT2)
    else:
        wo_group_dma(sWave)
        p(f"s_add_u32 s{sT2}, s{sWave}, 7")
        wo_group_dma(sT2)
        p(f"""
        s_cmp_lt_u32 s{sWave}, 2
        s_cbranch_scc0 T_SETUP
        s_add_u32 s{sT2}, s{sWave}, 14
        """)
        wo_group_dma(sT2)
    p.label("T_SETUP")
    p(f"""
    v_lshrrev_b32 v2, 4, v{vL}
    v_and_b32 v3, 15, v{vL}
    v_lshrrev_b32 v4, 2, v3
    v_and_b32 v6, 3, v3
    v_lshl_add_u32 v2, v2, 2, v4
    v_mul_u32_u24 v2, 288, v2
    v_lshl_add_u32 v{vLA}, v6, 3, v2
    v_lshlrev_b32 v5, 4, v{vL}
    s_and_b32 s{sTag}, s{sN}, 0xfff
    s_lshr_b32 s{sTag+1}, s{sN}, 12
    s_and_b32 s{sTag+1}, s{sTag+1}, 0xfff
    s_lshr_b32 s{sTag+2}, s{sN}, 24
    s_lshl_b32 s{sT2}, s{sN+1}, 8
    s_or_b32 s{sTag+2}, s{sTag+2}, s{sT2}
    s_and_b32 s{sTag+2}, s{sTag+2}, 0xfff
    s_lshr_b32 s{sTag+3}, s{sN+1}, 4
    s_and_b32 s{sTag+3}, s{sTag+3}, 0xfff
    """)
    for i in range(36):
        p(f"v_mov_b32 v{vAcc+i}, 0")
    p(f"""
    s_cmp_eq_u32 s{sWave}, 7
    s_cbranch_scc0 T_NOPOLL
    """)
    p.label("T_POLL1")
    p(f"""
    s_waitcnt vmcnt(1)
    v_cmp_ne_u32 vcc, v10, v9
    s_cbranch_vccz T_NOPOLL
    buffer_load_dword v10, v8, s[{rO}:{rO+3}], s{sT0} offen sc1
    s_add_u32 s{sT1}, s{sT1}, 1
    s_waitcnt vmcnt(1)
    v_cmp_ne_u32 vcc, v11, v9
    s_cbranch_vccz T_NOPOLL
    buffer_load_dword v11, v8, s[{rO}:{rO+3}], s{sT0} offen sc1
    s_cmp_lt_u32 s{sT1}, {SPIN}
    s_cbranch_scc1 T_POLL1
    """)
    p.label("T_NOPOLL")
    p(f"""
    s_waitcnt vmcnt(0)
    s_barrier
    """)
    if o.stamps: stamp(p, o, 7)
    p(f"""
    s_and_b32 s{sT0}, s{sWg}, 0xfc
    s_lshl_b32 s{sT1}, s{sKh2}, 1
    s_add_u32 s{sT0}, s{sT0}, s{sT1}
    s_lshl_b32 s{sT0}, s{sT0}, 14
    s_lshl_b32 s{sT1}, s{sQt}, 12
    s_add_u32 s{sT0}, s{sT0}, s{sT1}
    s_add_u32 s{sT1}, s{sT0}, 16384
    """)
    for kk in range(8):
        p(f"buffer_load_dwordx4 {rg(vB+4*kk,4)}, v5, s[{rO}:{rO+3}], s{sT0 if kk < 4 else sT1} offen offset:{(kk&3)*1024} sc1")
    p(f"s_mul_i32 s{sT2}, s{sKh2}, {8*9216}")
    p(f"s_add_u32 s{sT2}, s{sT2}, {WOB}")
    if o.stamps and o.stset:
        p("s_waitcnt vmcnt(0)")
        stamp(p, o, 'g0')
    gemm_body(p, vAcc, vB, vF, vAd, vLA, f"v_add_u32 v{vAd}, s{sT2}, v{vLA}")
    if o.stamps: stamp(p, o, 8)
    p("s_barrier")
    stamp(p, o, 'r1')
    p(f"""
    s_mul_i32 s{sT0}, s{sQt}, 9216
    v_add_u32 v2, s{sT0}, v5
    s_cmp_eq_u32 s{sKh2}, 0
    s_cbranch_scc0 T_H1
    """)
    for nt in range(5, 9):
        p(f"ds_write_b128 v2, {rg(vAcc+4*nt,4)} offset:{nt*1024}")
    p("s_branch T_H2")
    p.label("T_H1")
    for nt in range(0, 5):
        p(f"ds_write_b128 v2, {rg(vAcc+4*nt,4)} offset:{nt*1024}")
    p.label("T_H2")
    TAGGED = (o.fuse == 2)
    p(f"""
    v_mov_b32 v7, 0xfffff000
    s_lshl_b32 s{sT0}, s{sXc}, 3
    s_add_u32 s{sT0}, s{sT0}, s{sB}
    s_lshl_b32 s{sT0}, s{sT0}, 2
    s_add_u32 s{sT0}, s{sT0}, s{sJj}
    s_lshl_b32 s{sT0}, s{sT0}, 2
    s_add_u32 s{sT0}, s{sT0}, s{sQt}
    s_mul_i32 s{sT0}, s{sT0}, 9216
    s_add_u32 s{sT0}, s{sT0}, {WS_PART}
    s_waitcnt lgkmcnt(0)
    """)
    stamp(p, o, 'r2')
    p("s_barrier")
    stamp(p, o, 'r3')
    p(f"""
    s_cmp_eq_u32 s{sKh2}, 0
    s_cbranch_scc0 T_H3
    """)
    def fin(nts):
        for nt in nts:
            p(f"ds_read_b128 {rg(vF+4*nt,4)}, v2 offset:{nt*1024}")
        for idx, nt in enumerate(nts):
            p(f"s_waitcnt lgkmcnt({len(nts)-1-idx})")
            for e in range(4):
                p(f"v_add_f32 v{vAcc+4*nt+e}, v{vAcc+4*nt+e}, v{vF+4*nt+e}")
            if TAGGED:
                for e in range(4):
                    p(f"v_and_b32 v{vAcc+4*nt+e}, v7, v{vAcc+4*nt+e}")
                    p(f"v_or_b32 v{vAcc+4*nt+e}, s{sTag+e}, v{vAcc+4*nt+e}")
            p(f"s_add_u32 s{sT1}, s{sT0}, {(nt//4)*4096}")
            p(f"buffer_store_dwordx4 {rg(vAcc+4*nt,4)}, v5, s[{rO}:{rO+3}], s{sT1} offen offset:{(nt%4)*1024}{' sc1' if TAGGED else ''}")
    fin(list(range(0, 5)))
    p("s_branch T_H4")
    p.label("T_H3")
    fin(list(range(5, 9)))
    p.label("T_H4")
    if o.stamps: stamp(p, o, 9)
    if TAGGED:
        vX = 100
        p(f"""
        s_cmp_ge_u32 s{sWave}, 5
        s_cbranch_scc1 T_DONE
        v_cmp_gt_u32 vcc, 288, v0
        s_and_saveexec_b64 s[58:59], vcc
        s_mul_i32 s{sT0}, s{sXc}, 288
        v_add_u32 v2, s{sT0}, v0
        v_lshlrev_b32 v3, 4, v2
        s_lshl_b32 s{sT0}, s{sB}, 2
        s_add_u32 s{sT0}, s{sT0}, s{sJj}
        s_mul_i32 s{sT0}, s{sT0}, 36864
        s_add_u32 s{sT0}, s{sT0}, {WS_PART}
        s_mov_b32 s{rX}, s{sOut}
        s_mov_b32 s{rX+1}, s{sOut+1}
        s_mov_b32 s{rX+2}, {512*576*2}
        s_mov_b32 s{rX+3}, 0x20000
        v_lshrrev_b32 v4, 6, v2
        v_mul_u32_u24 v5, 57, v4
        v_lshrrev_b32 v5, 9, v5
        v_mul_u32_u24 v6, 9, v5
        v_sub_u32 v6, v4, v6
        v_and_b32 v4, 15, v2
        v_lshl_add_u32 v4, v5, 4, v4
        s_lshl_b32 s{sT1}, s{sB}, 6
        v_add_u32 v4, s{sT1}, v4
        s_movk_i32 s{sT1}, 1152
        v_mul_u32_u24 v4, s{sT1}, v4
        v_lshlrev_b32 v6, 5, v6
        v_add_u32 v4, v4, v6
        v_bfe_u32 v6, v2, 4, 2
        v_lshl_add_u32 v4, v6, 3, v4
        s_mul_i32 s{sT1}, s{sJj}, 288
        v_add_u32 v4, s{sT1}, v4
        s_mov_b32 s{sT2}, 0
        """)
        if o.prepoll:
            p(f"""
            s_mov_b64 s[56:57], exec
            v_readfirstlane_b32 s{sT1}, v3
            v_mul_u32_u24 v6, {32*36864 // 1024}, v{vL}
            v_lshlrev_b32 v6, 10, v6
            v_add_u32 v6, s{sT1}, v6
            v_mov_b32 v9, s{sTag}
            s_mov_b64 exec, 0xff
            buffer_load_dword v10, v6, s[{rO}:{rO+3}], s{sT0} offen sc1
            buffer_load_dword v11, v6, s[{rO}:{rO+3}], s{sT0} offen sc1
            """)
            p.label("T_PP")
            p(f"""
            s_waitcnt vmcnt(1)
            v_xor_b32 v8, v10, v9
            v_and_b32 v8, 0xfff, v8
            v_cmp_ne_u32 vcc, 0, v8
            s_cbranch_vccz T_PPD
            buffer_load_dword v10, v6, s[{rO}:{rO+3}], s{sT0} offen sc1
            s_add_u32 s{sT2}, s{sT2}, 1
            s_waitcnt vmcnt(1)
            v_xor_b32 v8, v11, v9
            v_and_b32 v8, 0xfff, v8
            v_cmp_ne_u32 vcc, 0, v8
            s_cbranch_vccz T_PPD
            buffer_load_dword v11, v6, s[{rO}:{rO+3}], s{sT0} offen sc1
            s_cmp_lt_u32 s{sT2}, {SPIN}
            s_cbranch_scc1 T_PP
            """)
            p.label("T_PPD")
            p(f"""
            s_mov_b64 exec, s[56:57]
            s_mov_b32 s{sT2}, 0
            """)
        p.label("T_POLL2")
        p(f"s_mov_b32 s{sT1}, s{sT0}")
        for s in range(8):
            p(f"buffer_load_dwordx4 {rg(vX+4*s,4)}, v3, s[{rO}:{rO+3}], s{sT1} offen sc1")
            if s < 7: p(f"s_add_u32 s{sT1}, s{sT1}, {32*36864}")
        p(f"""
        s_add_u32 s{sT2}, s{sT2}, 1
        v_mov_b32 v6, 0
        """)
        for s in range(8):
            p(f"s_waitcnt vmcnt({7-s})")
            for e in range(4):
                p(f"v_xor_b32 v8, s{sTag+e}, v{vX+4*s+e}")
                p(f"v_or_b32 v6, v6, v8")
        p(f"""
        v_and_b32 v6, 0xfff, v6
        v_cmp_ne_u32 vcc, 0, v6
        s_cmp_lt_u32 s{sT2}, {SPIN}
        s_cbranch_scc0 T_SUM
        s_cbranch_vccnz T_POLL2
        """)
        p.label("T_SUM")
        if o.stamps and o.stset == 2:
            p(f"s_mov_b32 s76, s{sT2}")
            p("s_mov_b32 s77, 0")
        for s in range(8):
            for e in range(4):
                p(f"v_and_b32 v{vX+4*s+e}, v7, v{vX+4*s+e}")
        for s in range(1, 8):
            for e in range(4):
                p(f"v_add_f32 v{vX+e}, v{vX+e}, v{vX+4*s+e}")
        p(f"""
        v_cvt_pk_bf16_f32 v8, v{vX}, v{vX+1}
        v_cvt_pk_bf16_f32 v9, v{vX+2}, v{vX+3}
        buffer_store_dwordx2 v[8:9], v4, s[{rX}:{rX+3}], 0 offen{' sc1' if o.outsc else ''}
        s_mov_b64 exec, s[58:59]
        """)
        p.label("T_DONE")
    if o.stamps:
        p("s_waitcnt vmcnt(0)")
        p("s_memrealtime s[90:91]" if o.stamps != 2 else "s_memtime s[90:91]")
        p("s_waitcnt lgkmcnt(0)")
        p("s_mov_b32 s60, s60")
        gen_flush_final(p, o, sWs)
    p("s_branch K1_END")

def gen_flush_final(p, o, sws):
    tag = "STFm"
    if o.stamps == 3:
        p(f"""
        s_cmp_eq_u32 s2, 0
        s_cbranch_scc0 {tag}
        s_load_dwordx2 s[96:97], s[0:1], 48
        s_waitcnt lgkmcnt(0)
        v_cmp_eq_u32 vcc, 0, v0
        s_and_saveexec_b64 s[92:93], vcc
        s_cbranch_execz {tag}x
        v_mov_b32 v4, 0
        """)
        for i in range(10):
            p(f"v_mov_b32 v2, s{60+2*i}")
            p(f"global_store_dword v4, v2, s[96:97] offset:{16+4*i}")
        p("v_mov_b32 v2, s90")
        p(f"global_store_dword v4, v2, s[96:97] offset:{16+40}")
        p.label(tag + 'x')
        p("s_mov_b64 exec, s[92:93]")
        p.label(tag)
        return
    p(f"""
    v_cmp_eq_u32 vcc, {o.stampwave*64}, v0
    s_and_saveexec_b64 s[92:93], vcc
    s_cbranch_execz {tag}
    s_lshl_b32 s94, s2, 7
    s_add_u32 s94, s94, {gen.WS_STAMP}
    s_add_u32 s96, s{sws}, s94
    s_addc_u32 s97, s{sws+1}, 0
    v_mov_b32 v4, 0
    """)
    for i in range(10):
        p(f"""
        v_mov_b32 v2, s{60+2*i}
        v_mov_b32 v3, s{61+2*i}
        global_store_dwordx2 v4, v[2:3], s[96:97] offset:{8*i}
        """)
    p(f"""
    v_mov_b32 v2, s90
    v_mov_b32 v3, s91
    global_store_dwordx2 v4, v[2:3], s[96:97] offset:80
    """)
    p.label(tag)
    p("s_mov_b64 exec, s[92:93]")

def gen_k2(o):
    p = Prog()
    sWo, sWs = 4, 6
    rW, rO = 8, 12
    sWave, sXc, sB, sNg, sT0, sT1, sT2, sQt, sKh2 = 20, 21, 22, 23, 24, 25, 26, 27, 28
    vL = 1; vOff = 10; vLA = 19; vAd = 20; vAcc = 28; vB = 64; vF = 96
    p(f"""
    s_cmp_ge_u32 s2, 256
    s_cbranch_scc1 K2_END
    s_load_dwordx2 s[4:5], s[0:1], 32
    s_load_dwordx2 s[6:7], s[0:1], 56
    v_and_b32 v{vL}, 63, v0
    v_lshrrev_b32 v2, 6, v0
    s_and_b32 s{sXc}, s2, 7
    s_lshr_b32 s{sT1}, s2, 3
    v_readfirstlane_b32 s{sWave}, v2
    s_lshr_b32 s{sB}, s{sT1}, 2
    s_and_b32 s{sNg}, s{sT1}, 3
    s_and_b32 s{sQt}, s{sWave}, 3
    s_lshr_b32 s{sKh2}, s{sWave}, 2
    s_movk_i32 s{sT0}, 3641
    s_movk_i32 s{sT1}, 1152
    """)
    for i in range(9):
        p(f"""
        v_add_u32 v2, {64*i}, v{vL}
        v_mul_u32_u24 v3, s{sT0}, v2
        v_lshrrev_b32 v3, 16, v3
        v_mul_u32_u24 v4, 18, v3
        v_sub_u32 v4, v2, v4
        v_mul_u32_u24 v3, s{sT1}, v3
        v_lshl_add_u32 v3, v4, 4, v3
        v_subrev_u32 v{vOff+i}, {(i%4)*1024}, v3
        """)
    p(f"""
    v_lshrrev_b32 v2, 4, v{vL}
    v_and_b32 v3, 15, v{vL}
    v_lshrrev_b32 v4, 2, v3
    v_and_b32 v6, 3, v3
    v_lshl_add_u32 v2, v2, 2, v4
    v_mul_u32_u24 v2, 288, v2
    v_lshl_add_u32 v{vLA}, v6, 3, v2
    v_lshlrev_b32 v5, 4, v{vL}
    s_waitcnt lgkmcnt(0)
    """)
    stamp(p, o, 0)
    p(f"""
    s_mul_i32 s{sT0}, s{sXc}, {512*1152}
    s_mul_i32 s{sT1}, s{sNg}, 288
    s_add_u32 s{sT0}, s{sT0}, s{sT1}
    s_add_u32 s{rW}, s{sWo}, s{sT0}
    s_addc_u32 s{rW+1}, s{sWo+1}, 0
    s_sub_u32 s{rW+2}, {4096*1152}, s{sT0}
    s_mov_b32 s{rW+3}, 0x20000
    s_mov_b32 s{rO}, s{sWs}
    s_mov_b32 s{rO+1}, s{sWs+1}
    s_mov_b32 s{rO+2}, {WS_SIZE}
    s_mov_b32 s{rO+3}, 0x20000
    """)
    for rep in range(2):
        p(f"""
        s_add_u32 s{sT0}, s{sWave}, {8*rep}
        s_mul_i32 s{sT1}, s{sT0}, 9216
        s_mul_i32 s{sT0}, s{sT0}, 36864
        """)
        for i in range(9):
            if i % 4 == 0:
                p(f"s_add_u32 m0, s{sT1}, {(i//4)*4096}")
            p(f"buffer_load_dwordx4 v{vOff+i}, s[{rW}:{rW+3}], s{sT0} offen offset:{(i%4)*1024} lds")
    p(f"""
    s_lshl_b32 s{sT0}, s{sB}, 3
    s_add_u32 s{sT0}, s{sT0}, s{sXc}
    s_lshl_b32 s{sT0}, s{sT0}, 2
    s_lshl_b32 s{sT1}, s{sKh2}, 1
    s_add_u32 s{sT0}, s{sT0}, s{sT1}
    s_lshl_b32 s{sT0}, s{sT0}, 14
    s_lshl_b32 s{sT1}, s{sQt}, 12
    s_add_u32 s{sT0}, s{sT0}, s{sT1}
    s_add_u32 s{sT1}, s{sT0}, 16384
    """)
    for kk in range(8):
        p(f"buffer_load_dwordx4 {rg(vB+4*kk,4)}, v5, s[{rO}:{rO+3}], s{sT0 if kk < 4 else sT1} offen offset:{(kk&3)*1024}")
    for i in range(36):
        p(f"v_mov_b32 v{vAcc+i}, 0")
    p(f"""
    s_waitcnt vmcnt(8)
    s_barrier
    s_mul_i32 s{sT2}, s{sKh2}, {8*9216}
    """)
    stamp(p, o, 1)
    gemm_body(p, vAcc, vB, vF, vAd, vLA, f"v_add_u32 v{vAd}, s{sT2}, v{vLA}")
    stamp(p, o, 2)
    p(f"""
    s_barrier
    s_mul_i32 s{sT0}, s{sQt}, 9216
    v_add_u32 v2, s{sT0}, v5
    s_cmp_eq_u32 s{sKh2}, 0
    s_cbranch_scc0 K2_H1
    """)
    for nt in range(5, 9):
        p(f"ds_write_b128 v2, {rg(vAcc+4*nt,4)} offset:{nt*1024}")
    p("s_branch K2_H2")
    p.label("K2_H1")
    for nt in range(0, 5):
        p(f"ds_write_b128 v2, {rg(vAcc+4*nt,4)} offset:{nt*1024}")
    p.label("K2_H2")
    p(f"""
    s_lshl_b32 s{sT0}, s{sXc}, 3
    s_add_u32 s{sT0}, s{sT0}, s{sB}
    s_lshl_b32 s{sT0}, s{sT0}, 2
    s_add_u32 s{sT0}, s{sT0}, s{sNg}
    s_lshl_b32 s{sT0}, s{sT0}, 2
    s_add_u32 s{sT0}, s{sT0}, s{sQt}
    s_mul_i32 s{sT0}, s{sT0}, 9216
    s_add_u32 s{sT0}, s{sT0}, {WS_PART}
    s_waitcnt lgkmcnt(0)
    s_barrier
    s_cmp_eq_u32 s{sKh2}, 0
    s_cbranch_scc0 K2_H3
    """)
    def fin(nts):
        for nt in nts:
            p(f"ds_read_b128 {rg(vF+4*nt,4)}, v2 offset:{nt*1024}")
        for idx, nt in enumerate(nts):
            p(f"s_waitcnt lgkmcnt({len(nts)-1-idx})")
            for e in range(4):
                p(f"v_add_f32 v{vAcc+4*nt+e}, v{vAcc+4*nt+e}, v{vF+4*nt+e}")
            p(f"s_add_u32 s{sT1}, s{sT0}, {(nt//4)*4096}")
            p(f"buffer_store_dwordx4 {rg(vAcc+4*nt,4)}, v5, s[{rO}:{rO+3}], s{sT1} offen offset:{(nt%4)*1024}")
    fin(list(range(0, 5)))
    p("s_branch K2_H4")
    p.label("K2_H3")
    fin(list(range(5, 9)))
    p.label("K2_H4")
    if o.stamps:
        stamp(p, o, 3)
        p("s_waitcnt vmcnt(0)")
        stamp(p, o, 4)
        stamp_flush(p, o, 1, 5, sWs)
    p.label("K2_END")
    p("s_endpgm")
    return p

def gen_k3(o):
    gen.WS_PART = WS_PART
    return gen.gen_k3(o)

def emit(o):
    ks = [('standalone__gqa_block_cached__near_ridge_kernel' if o.fuse == 2 else 'gqa_main_kernel', gen_main(o), 256, 512, 163840)]
    if o.fuse == 0:
        ks += [('gqa_oproj_kernel', gen_k2(o), 256, 512, 147456)]
    if o.fuse <= 1:
        ks += [('gqa_reduce_kernel', gen_k3(o), 288, 256, 0)]
    if o.dbg == 2:
        ks = ks[:1]
    out = [HEADER.rstrip()]
    for name, _, g, b, lds in ks:
        if len(ks) == 1 and o.fuse == 2:
            out.append(f"; @launch grid=({g},1,1) block=({b},1,1) lds={lds}")
        else:
            out.append(f"; @launch kernel={name} grid=({g},1,1) block=({b},1,1) lds={lds}")
    out.append('.amdgcn_target "amdgcn-amd-amdhsa--gfx950"')
    out.append('.text')
    for name, p, g, b, lds in ks:
        n = p.fix_hazards()
        errs = p.lint_waits()
        for e in errs[:20]:
            print(f"LINT[{name}]: {e}", file=sys.stderr)
        nv, ns = p.max_regs()
        print(f"{name}: {len(p.ins)} instrs, vgpr {nv}, sgpr {ns}, nops inserted {n}", file=sys.stderr)
        out.append(f".globl {name}\n.p2align 8\n.type {name},@function\n{name}:")
        out.append(p.text())
        out.append(kd(name, max(nv, 8), max(ns, 16)))
    return '\n'.join(out) + '\n'

if __name__ == '__main__':
    ap = argparse.ArgumentParser()
    ap.add_argument('-o', default='standalone__gqa_block_cached__near_ridge.s')
    for k, d in OPTS.items():
        ap.add_argument('--' + k, type=int, default=d)
    a = ap.parse_args()
    o = Opt()
    for k in OPTS:
        setattr(o, k, getattr(a, k))
    open(a.o, 'w').write(emit(o))
```

```python
import sys, argparse
from asmlib import Prog
import gen
from gen import f32bits, SCALE_LOG2E, stamp_flush, kd, HEADER
from gen import stamp as _stamp
STSETS = {0: {0:0,1:1,2:2,3:3,4:4,5:5,6:6,7:7,8:8,9:9},
          1: {5:0, 'e1':1, 'e2':2, 'e3':3, 'e4':4, 6:5, 7:6, 'g0':7, 8:8, 9:9},
          3: {'c0':0,'c1':1,'c2':2,'c3':3,'c4':4,'c5':5,'c6':6,'c7':7,'c8':8, 2:9},
          4: {0:0,'c0':1,'w1':2,'c1':3,'m1':4,'w2':5,'c2':6,'m2':7,'w3':8,'c3':9},
          2: {7:0, 'g0':1, 8:2, 'r1':3, 'r2':4, 'r3':5, 9:6, 'p1':7, 'p2':8, 'p3':9}}
def stamp(p, o, name):
    m = STSETS[getattr(o, 'stset', 0)]
    if name in m: _stamp(p, o, m[name])


WS_O = 0
WS_PART = 4 << 20
WS_FLAG = 16 << 20
WS_SIZE = 17 << 20
MF = 'v_mfma_f32_32x32x16_bf16'
MF16 = 'v_mfma_f32_16x16x32_bf16'
def rg(b, n): return f"v[{b}:{b+n-1}]" if n > 1 else f"v{b}"

class Opt(gen.Opt):
    pass

OPTS = dict(icpf=0, tlb=0, outsc=0, prepoll=1, early=1, dry=0, dmapos=1, skew=0, stset=0, nt=1, dbg=0, stamps=0, stampwave=0, wt=1, kdel=5, k1del=5, late=0, fuse=2, wot=1)
SPIN = 1 << 18

def gen_main(o):
    p = Prog()
    NT = ' nt' if o.nt else ''
    sX, sK, sV, sWq, sWs, sWo = 4, 6, 8, 10, 12, 14
    rK, rV, rW, rX, rO = 16, 20, 24, 28, 32
    sWave, sB, sH, sXc, sQh, sKq = 36, 37, 38, 39, 40, 41
    sRK, sRV, sOff, sIss, sCnt, sJj = 42, 43, 44, 45, 46, 47
    sC, sT0, sT1, sT2 = 48, 49, 50, 51
    sW4096, sWg = 53, 54
    sPar, sStep, sEK, sRngV, sKprev, sOffB = 55, 56, 57, 52, 98, 99
    vOb = 250
    sOut, sDbg, sN, sTag = 80, 82, 84, 86
    vL = 1
    vKo = 10; vVo = 14
    vWo = 15; vXo = 17; vLW = 21; vLX = 22
    vVA = 15; vTn = 19
    vLK = 23; vLV = 24
    vKA = 28
    vM, vThr, vL0, vL1 = 36, 37, 38, 39
    vQ = 40
    vS = [72, 88]
    vP = 104
    vKf = 112
    vVf = 144
    vO = 176
    vOff = 240
    vDum = 249
    vNon = 20
    R = [i * 32768 for i in range(5)]
    QS = [139264, 65536, 90112, 114688]
    lab = [0]
    def nl(s):
        lab[0] += 1
        return f"K1_{s}{lab[0]}"
    vq = []
    def vissue(tag, n): vq.extend([tag] * n)
    def vneed(*tags):
        idx = [i for i, t in enumerate(vq) if t in tags]
        if not idx: return 63
        n = len(vq) - 1 - idx[-1]
        del vq[:idx[-1] + 1]
        return min(n, 63)

    p(f"""
    s_cmp_ge_u32 s2, 256
    s_cbranch_scc1 K1_END
    s_load_dwordx4 s[4:7], s[0:1], 0
    s_load_dwordx4 s[8:11], s[0:1], 16
    s_load_dwordx2 s[12:13], s[0:1], 56
    s_load_dwordx2 s[14:15], s[0:1], 32
    s_load_dwordx4 s[80:83], s[0:1], 40
    """)
    if o.icpf:
        ICL = o.icpf
        p(f"""
        s_getpc_b64 s[90:91]
        """)
        p.label("K1_PCREF")
        p(f"""
        s_mov_b32 s93, K1_END-K1_PCREF
        v_cmp_gt_u32 vcc, {ICL}, v0
        s_and_saveexec_b64 s[58:59], vcc
        s_cbranch_execz K1_ICD
        s_lshr_b32 s92, s2, 3
        s_mul_i32 s92, s92, {ICL*128}
        v_lshlrev_b32 v2, 7, v0
        v_add_u32 v2, s92, v2
        v_min_u32 v2, s93, v2
        global_load_dword v{vDum}, v2, s[90:91]
        """)
        p.label("K1_ICD")
        p("s_mov_b64 exec, s[58:59]")
    p(f"""
    v_and_b32 v{vL}, 63, v0
    v_lshrrev_b32 v2, 6, v0
    s_and_b32 s{sXc}, s2, 7
    s_lshr_b32 s{sT1}, s2, 3
    v_readfirstlane_b32 s{sWave}, v2
    s_lshr_b32 s{sB}, s{sT1}, 2
    s_and_b32 s{sJj}, s{sT1}, 3
    s_lshl_b32 s{sH}, s{sXc}, 2
    s_add_u32 s{sH}, s{sH}, s{sJj}
    s_lshl_b32 s{sWg}, s{sB}, 5
    s_add_u32 s{sWg}, s{sWg}, s{sH}
    s_and_b32 s{sQh}, s{sWave}, 1
    s_lshr_b32 s{sKq}, s{sWave}, 1
    s_and_b32 s{sPar}, s{sH}, {1 if o.skew else 0}
    s_lshl_b32 s{sW4096}, s{sWave}, 12
    s_mov_b32 s{sC}, 0x{f32bits(SCALE_LOG2E):08x}
    v_and_b32 v2, 15, v{vL}
    v_lshrrev_b32 v3, 4, v{vL}
    v_lshrrev_b32 v4, 2, v2
    v_and_b32 v5, 3, v2
    v_lshrrev_b32 v6, 5, v{vL}
    v_and_b32 v7, 31, v{vL}
    v_lshlrev_b32 v8, 2, v3
    v_xor_b32 v8, v8, v2
    v_lshlrev_b32 v8, 4, v8
    v_lshl_add_u32 v{vVo}, v3, 8, v8
    v_lshl_add_u32 v{vWo}, v3, 13, v8
    v_add_u32 v{vWo+1}, 31744, v{vWo}
    s_lshl_b32 s{sT0}, s{sWave}, 3
    s_movk_i32 s{sT1}, 1152
    v_lshrrev_b32 v8, 3, v{vL}
    v_add_u32 v8, s{sT0}, v8
    v_mul_lo_u32 v8, v8, s{sT1}
    s_lshl_b32 s{sT0}, s{sWave}, 2
    v_add_u32 v9, s{sT0}, v3
    v_and_b32 v9, 7, v9
    v_and_b32 v{vXo}, 7, v{vL}
    v_xor_b32 v9, v9, v{vXo}
    v_lshl_add_u32 v{vXo}, v9, 4, v8
    """)
    p("s_waitcnt lgkmcnt(0)")
    stamp(p, o, 0)
    p(f"""
    s_lshl_b32 s{sT0}, s{sH}, 8
    s_add_u32 s{rW}, s{sWq}, s{sT0}
    s_addc_u32 s{rW+1}, s{sWq+1}, 0
    s_sub_u32 s{rW+2}, {576*8192}, s{sT0}
    s_mov_b32 s{rW+3}, 0x20000
    s_mul_i32 s{sT0}, s{sB}, {64*1152}
    s_add_u32 s{rX}, s{sX}, s{sT0}
    s_addc_u32 s{rX+1}, s{sX+1}, 0
    s_mov_b32 s{rX+2}, {64*1152}
    s_mov_b32 s{rX+3}, 0x20000
    """)

    def issue_chunk(c):
        qs = QS[c % 4]
        p(f"""
        s_lshl_b32 s{sT0}, s{sWave}, 16
        s_add_u32 s{sT0}, s{sT0}, {c*524288}
        s_lshr_b32 s{sT1}, s{sW4096}, 1
        s_add_u32 m0, s{sT1}, {qs}
        """)
        for u in range(2):
            p(f"buffer_load_dwordx4 v{vWo+u}, s[{rW}:{rW+3}], s{sT0} offen offset:{u*1024} lds")
        p(f"""
        s_lshr_b32 s{sT1}, s{sW4096}, 2
        s_add_u32 m0, s{sT1}, {qs+16384}
        s_movk_i32 s{sT0}, {c*128}
        buffer_load_dwordx4 v{vXo}, s[{rX}:{rX+3}], s{sT0} offen lds
        """)
        vissue(('C', c), 3)

    if o.wt:
        p(f"""
        s_cmp_eq_u32 s{sWave}, 4
        s_cbranch_scc0 K1_WT1
        v_lshrrev_b32 v8, 1, v{vL}
        v_and_b32 v9, 1, v{vL}
        v_lshlrev_b32 v8, 13, v8
        v_lshl_add_u32 v8, v9, 7, v8
        s_mul_i32 s{sT0}, s{sB}, {72*8192}
        buffer_load_dword v{vDum}, v8, s[{rW}:{rW+3}], s{sT0} offen
        s_add_u32 s{sT0}, s{sT0}, {32*8192}
        buffer_load_dword v{vDum}, v8, s[{rW}:{rW+3}], s{sT0} offen
        s_add_u32 s{sT0}, s{sT0}, {32*8192}
        v_cmp_gt_u32 vcc, 16, v{vL}
        s_and_saveexec_b64 s[58:59], vcc
        buffer_load_dword v{vDum}, v8, s[{rW}:{rW+3}], s{sT0} offen
        s_mov_b64 exec, s[58:59]
        """)
        p.label("K1_WT1")
        p(f"""
        s_cmp_eq_u32 s{sWave}, 5
        s_cbranch_scc0 K1_WT2
        v_lshlrev_b32 v9, 7, v{vL}
        s_mul_i32 s{sT0}, s{sJj}, 18432
        buffer_load_dword v{vDum}, v9, s[{rX}:{rX+3}], s{sT0} offen
        s_add_u32 s{sT0}, s{sT0}, 8192
        buffer_load_dword v{vDum}, v9, s[{rX}:{rX+3}], s{sT0} offen
        s_add_u32 s{sT0}, s{sT0}, 8192
        v_cmp_gt_u32 vcc, 16, v{vL}
        s_and_saveexec_b64 s[58:59], vcc
        buffer_load_dword v{vDum}, v9, s[{rX}:{rX+3}], s{sT0} offen
        s_mov_b64 exec, s[58:59]
        """)
        p.label("K1_WT2")
    for c in range(4):
        issue_chunk(c)
    if o.fuse:
        p(f"""
        s_cmp_eq_u32 s2, 0
        s_cbranch_scc0 K1_NON
        s_cmp_eq_u32 s{sWave}, 7
        s_cbranch_scc0 K1_NON
        s_memrealtime s[{sN}:{sN+1}]
        s_waitcnt lgkmcnt(0)
        s_or_b32 s{sN}, s{sN}, 1
        v_mov_b32 v8, s{sN}
        v_mov_b32 v9, s{sN+1}
        v_mov_b32 v{vNon}, 0
        v_cmp_eq_u32 vcc, 0, v{vL}
        s_and_saveexec_b64 s[58:59], vcc
        global_store_dwordx2 v{vNon}, v[8:9], s[{sDbg}:{sDbg+1}] sc1
        s_mov_b64 exec, s[58:59]
        """)
        p.label("K1_NON")
    p(f"""
    s_lshl_b32 s{sT0}, s{sB}, 4
    s_lshr_b32 s{sT1}, s{sH}, 1
    s_add_u32 s{sT0}, s{sT0}, s{sT1}
    s_lshl_b32 s{sT0}, s{sT0}, 18
    s_add_u32 s{rK}, s{sK}, s{sT0}
    s_addc_u32 s{rK+1}, s{sK+1}, 0
    s_mov_b32 s{rK+2}, 0x40000
    s_mov_b32 s{rK+3}, 0x20000
    s_add_u32 s{rV}, s{sV}, s{sT0}
    s_addc_u32 s{rV+1}, s{sV+1}, 0
    s_mov_b32 s{rV+2}, 0x40000
    s_mov_b32 s{rV+3}, 0x20000
    s_mov_b32 s{rO}, s{sWs}
    s_mov_b32 s{rO+1}, s{sWs+1}
    s_mov_b32 s{rO+2}, {WS_SIZE}
    s_mov_b32 s{rO+3}, 0x20000
    """)
    for u in range(4):
        p(f"""
        v_add_u32 v8, {4*u}, v3
        v_xor_b32 v8, v8, v2
        v_lshlrev_b32 v8, 4, v8
        v_lshl_add_u32 v{vKo+u}, v3, 8, v8
        """)

    def issue_kv(isK, tile, slot):
        p(f"""
        s_add_u32 s{sT0}, s{sW4096}, {tile*32768}
        s_add_u32 m0, s{sW4096}, {R[slot]}
        """)
        for u in range(4):
            if isK: p(f"buffer_load_dwordx4 v{vKo+u}, s[{rK}:{rK+3}], s{sT0} offen offset:{u*1024}{NT} lds")
            else:   p(f"buffer_load_dwordx4 v{vVo}, s[{rV}:{rV+3}], s{sT0} offen offset:{u*1024}{NT} lds")
        vissue(('K' if isK else 'V', tile), 4)
    VQ = {}
    def par_branch(f0, f1):
        l1, l2 = nl('P'), nl('P')
        p(f"s_cmp_eq_u32 s{sPar}, 0")
        p(f"s_cbranch_scc0 {l1}")
        sv = list(vq)
        f0()
        after0 = list(vq)
        p(f"s_branch {l2}")
        p.label(l1)
        del vq[:]; vq.extend(VQ.get(1, sv))
        f1()
        VQ[1] = list(vq)
        del vq[:]; vq.extend(after0)
        p.label(l2)
    def issue_v0k2():
        if o.skew == 2:
            par_branch(lambda: (issue_kv(True, 2, 2), issue_kv(False, 0, 3)), lambda: (issue_kv(False, 0, 2), issue_kv(False, 1, 3)))
            return
        l1, l2 = nl('P'), nl('P')
        p(f"s_cmp_eq_u32 s{sPar}, 0")
        p(f"s_cbranch_scc0 {l1}")
        sv = list(vq)
        issue_kv(False, 0, 2); issue_kv(True, 2, 3)
        p(f"s_branch {l2}")
        p.label(l1)
        del vq[:]; vq.extend(sv)
        issue_kv(False, 0, 3); issue_kv(True, 2, 2)
        p.label(l2)
    if o.kdel < 0:
        issue_kv(True, 0, 0)
    if o.k1del < 0:
        issue_kv(True, 1, 1)

    p(f"""
    v_lshl_add_u32 v8, v6, 3, v4
    v_lshlrev_b32 v8, 8, v8
    v_and_b32 v9, 1, v3
    v_lshlrev_b32 v9, 1, v9
    v_and_b32 v{vLW}, 1, v5
    v_add_u32 v9, v9, v{vLW}
    s_lshl_b32 s{sT0}, s{sKq}, 2
    v_add_u32 v9, s{sT0}, v9
    v_lshlrev_b32 v{vLW}, 2, v4
    v_xor_b32 v9, v9, v{vLW}
    v_lshl_add_u32 v8, v9, 4, v8
    v_lshrrev_b32 v9, 1, v5
    v_lshl_add_u32 v{vLW}, v9, 3, v8
    s_lshl_b32 s{sT0}, s{sQh}, 5
    v_add_u32 v8, s{sT0}, v7
    v_lshrrev_b32 v9, 1, v8
    v_and_b32 v9, 7, v9
    v_xor_b32 v9, v9, v6
    v_lshlrev_b32 v9, 4, v9
    v_lshl_add_u32 v{vLX}, v8, 7, v9
    s_lshl_b32 s{sT0}, s{sKq}, 5
    v_add_u32 v8, s{sT0}, v7
    v_and_b32 v9, 15, v8
    v_xor_b32 v9, v9, v6
    v_lshlrev_b32 v9, 4, v9
    v_lshl_add_u32 v{vLK}, v8, 8, v9
    v_lshl_add_u32 v8, v6, 2, v4
    v_add_u32 v8, s{sT0}, v8
    v_lshlrev_b32 v8, 8, v8
    v_and_b32 v9, 1, v5
    v_lshl_add_u32 v8, v9, 3, v8
    v_and_b32 v9, 1, v3
    v_lshlrev_b32 v9, 1, v9
    v_lshrrev_b32 v2, 1, v5
    v_add_u32 v9, v9, v2
    v_lshlrev_b32 v2, 2, v4
    """)
    for a in range(4):
        p(f"""
        s_add_u32 s{sT1}, s{sKq}, {a}
        s_and_b32 s{sT1}, s{sT1}, 3
        s_lshl_b32 s{sT1}, s{sT1}, 2
        v_add_u32 v3, s{sT1}, v9
        v_xor_b32 v3, v3, v2
        v_lshl_add_u32 v{vLV+a}, v3, 4, v8
        """)
    for i in range(16):
        p(f"v_mov_b32 v{vS[0]+i}, 0")
    for i in range(64):
        p(f"v_mov_b32 v{vO+i}, 0")
    p(f"""
    v_mov_b32 v{vM}, 0xf149f2ca
    v_mov_b32 v{vThr}, 0xf149f2ca
    v_mov_b32 v{vL0}, 0
    v_mov_b32 v{vL1}, 0
    """)
    if o.fuse:
        p(f"""
        s_movk_i32 s{sT0}, 3641
        s_movk_i32 s{sT1}, 1152
        """)
        for i in range(9):
            p(f"""
            v_add_u32 v2, {64*i}, v{vL}
            v_mul_u32_u24 v3, s{sT0}, v2
            v_lshrrev_b32 v3, 16, v3
            v_mul_u32_u24 v4, 18, v3
            v_sub_u32 v4, v2, v4
            v_mul_u32_u24 v3, s{sT1}, v3
            v_lshl_add_u32 v3, v4, 4, v3
            v_subrev_u32 v{vOff+i}, {(i%4)*1024}, v3
            """)

    FB = [vKf, vVf]
    A0 = vKA
    def q_phase(c, reads, extra):
        f = FB[(c - 1) % 2]
        rd = list(reads); ex = list(extra)
        for ks in range(4):
            if c >= 1:
                p(f"{MF} {rg(vS[0],16)}, {rg(f+8*ks,4)}, {rg(f+8*ks+4,4)}, {rg(vS[0],16)}")
            for _ in range(3):
                if rd: p(rd.pop(0))
            if ex and ks >= 1: ex.pop(0)()
        for e in ex: e()
    for c in range(9):
        qs = QS[c % 4]
        f = FB[c % 2]
        n = vneed(('C', c))
        p(f"""
        v_add_u32 v{A0}, {qs}, v{vLW}
        v_add_u32 v{A0+1}, {qs+16384}, v{vLX}
        v_xor_b32 v{A0+2}, 32, v{A0+1}
        v_xor_b32 v{A0+3}, 64, v{A0+1}
        v_xor_b32 v{A0+4}, 96, v{A0+1}
        s_waitcnt vmcnt({n}) lgkmcnt(0)
        """)
        stamp(p, o, f'w{c}')
        p("s_barrier")
        if c == 0: stamp(p, o, 1)
        stamp(p, o, f'c{c}')
        reads = []
        for ks in range(4):
            reads.append(f"ds_read_b64_tr_b16 {rg(f+8*ks,2)}, v{A0} offset:{ks*4096}")
            reads.append(f"ds_read_b64_tr_b16 {rg(f+8*ks+2,2)}, v{A0} offset:{ks*4096+1024}")
            reads.append(f"ds_read_b128 {rg(f+8*ks+4,4)}, v{A0+1+ks}")
        extra = []
        if 1 <= c <= 5: extra.append(lambda c=c: issue_chunk(c + 3))
        if c == o.kdel:
            extra.append(lambda: issue_kv(True, 0, 0))
            if o.k1del == c: extra.append(lambda: issue_kv(True, 1, 1))
        elif c == o.k1del:
            extra.append(lambda: issue_kv(True, 1, 1))
        if c == 8 and o.late == 0:
            extra.append(issue_v0k2)
        q_phase(c, reads, extra)
        stamp(p, o, f'm{c}')
    p("s_waitcnt lgkmcnt(0)")
    p("s_barrier")
    q_phase(9, [], [])
    stamp(p, o, 2)
    QX = R[4]
    p(f"""
    s_lshl_b32 s{sT0}, s{sQh}, 13
    s_lshl_b32 s{sT1}, s{sKq}, 11
    s_add_u32 s{sT1}, s{sT1}, s{sT0}
    s_add_u32 s{sT1}, s{sT1}, {QX}
    s_add_u32 s{sT0}, s{sT0}, {QX}
    v_lshlrev_b32 v2, 4, v{vL}
    v_add_u32 v3, s{sT1}, v2
    v_add_u32 v2, s{sT0}, v2
    """)
    p(f"v_mov_b32 v{vKA}, v{vLK}")
    for s in range(1, 8):
        p(f"v_xor_b32 v{vKA+s}, {s<<5}, v{vLK}")
    for j in range(8):
        p(f"v_cvt_pk_bf16_f32 v{vP+j}, v{vS[0]+2*j}, v{vS[0]+2*j+1}")
    p(f"""
    ds_write_b128 v3, {rg(vP,4)}
    ds_write_b128 v3, {rg(vP+4,4)} offset:1024
    s_waitcnt lgkmcnt(0)
    s_barrier
    """)
    for s in range(8):
        p(f"ds_read_b128 {rg(vQ+4*s,4)}, v2 offset:{s*1024}")
    if o.kdel > 8: issue_kv(True, 0, 0)
    if o.k1del > 8: issue_kv(True, 1, 1)
    if o.late:
        issue_v0k2()

    def k_addrs(sreg):
        p(f"v_add_u32 v{vKA}, s{sreg}, v{vLK}")
        for s in range(1, 8):
            p(f"v_xor_b32 v{vKA+s}, {s<<5}, v{vKA}")
    def v_addrs(sreg):
        for a in range(4):
            p(f"v_add_u32 v{vVA+a}, s{sreg}, v{vLV+a}")
    def advance_slot(s):
        p(f"""
        s_add_u32 s{s}, s{s}, 32768
        s_cmp_eq_u32 s{s}, {5*32768}
        s_cselect_b32 s{s}, 0, s{s}
        """)
    def tmax(S):
        p(f"""
        v_max3_f32 v2, v{S}, v{S+1}, v{S+2}
        v_max3_f32 v3, v{S+3}, v{S+4}, v{S+5}
        v_max3_f32 v2, v2, v{S+6}, v{S+7}
        v_max3_f32 v3, v3, v{S+8}, v{S+9}
        v_max3_f32 v2, v2, v{S+10}, v{S+11}
        v_max3_f32 v3, v3, v{S+12}, v{S+13}
        v_max3_f32 v2, v2, v{S+14}, v{S+15}
        v_max_f32 v2, v2, v3
        v_mov_b32 v3, v2
        s_nop 1
        v_permlane32_swap_b32 v2, v3
        v_max_f32 v2, v2, v3
        v_mul_f32 v{vTn}, s{sC}, v2
        """)

    def need_both(tag):
        res = []
        for q in ([vq] if o.skew != 2 else [vq, VQ[1]]):
            idx = [i for i, t in enumerate(q) if t == tag]
            if not idx: res.append(63); continue
            res.append(min(63, len(q) - 1 - idx[-1]))
            del q[:idx[-1] + 1]
        return res if len(res) == 2 else res * 2
    def wait2(n0, n1):
        if n0 == n1:
            p(f"s_waitcnt vmcnt({n0}) lgkmcnt(0)")
        else:
            l1, l2 = nl('W'), nl('W')
            p(f"s_cmp_eq_u32 s{sPar}, 0")
            p(f"s_cbranch_scc0 {l1}")
            p(f"s_waitcnt vmcnt({n0}) lgkmcnt(0)")
            p(f"s_branch {l2}")
            p.label(l1)
            p(f"s_waitcnt vmcnt({n1}) lgkmcnt(0)")
            p.label(l2)
    if o.skew == 2 and 1 not in VQ: VQ[1] = list(vq)
    wait2(*need_both(('K', 0)))
    p("s_barrier")
    stamp(p, o, 3)
    for s in range(8):
        p(f"ds_read_b128 {rg(vKf+4*s,4)}, v{vKA+s}")
    if o.skew == 2: par_branch(lambda: issue_kv(False, 1, 4), lambda: issue_kv(False, 2, 4))
    else: issue_kv(False, 1, 4)
    p(f"s_mov_b32 s{sRK}, {R[1]}")
    wait2(*need_both(('K', 1)))
    p("s_barrier")
    k_addrs(sRK)
    for s in range(8):
        c = '0' if s == 0 else rg(vS[0], 16)
        p(f"{MF} {rg(vS[0],16)}, {rg(vKf+4*s,4)}, {rg(vQ+4*s,4)}, {c}")
    for s in range(8):
        p(f"ds_read_b128 {rg(vKf+4*s,4)}, v{vKA+s}")
    if o.skew == 2: par_branch(lambda: issue_kv(True, 3, 0), lambda: issue_kv(True, 2, 0))
    else: issue_kv(True, 3, 0)
    if o.skew == 2:
        p(f"""
        s_mov_b32 s{sKprev}, {R[1]}
        s_mov_b32 s{sRV}, {R[2]}
        s_mov_b32 s{sRK}, {R[0]}
        s_mov_b32 s{sStep}, 32768
        s_mov_b32 s{sEK}, {R[2]}
        s_mov_b32 s{sRngV}, {3*32768}
        s_mov_b32 s{sOff}, {3*32768}
        s_mov_b32 s{sOffB}, {3*32768}
        s_cmp_eq_u32 s{sPar}, 0
        s_cselect_b32 s{sRV}, {R[3]}, s{sRV}
        s_cselect_b32 s{sRK}, {R[2]}, s{sRK}
        s_cselect_b32 s{sEK}, {R[3]}, s{sEK}
        s_cselect_b32 s{sRngV}, {2*32768}, s{sRngV}
        s_cselect_b32 s{sOff}, {4*32768}, s{sOff}
        s_cselect_b32 s{sOffB}, {2*32768}, s{sOffB}
        s_mov_b32 s{sT0}, s{rK}
        s_mov_b32 s{sT1}, s{rK+1}
        s_mov_b32 s{rK}, s{rV}
        s_mov_b32 s{rK+1}, s{rV+1}
        s_mov_b32 s{rV}, s{sT0}
        s_mov_b32 s{rV+1}, s{sT1}
        s_add_u32 s{sOff}, s{sOff}, s{sW4096}
        s_add_u32 s{sOffB}, s{sOffB}, s{sW4096}
        s_mov_b32 s{sCnt}, 0
        """)
        for u in range(4): p(f"v_mov_b32 v{vOb+u}, v{vVo}")
    else:
        p(f"""
        s_mov_b32 s{sKprev}, {R[1]}
        s_mov_b32 s{sRV}, {R[3]}
        s_mov_b32 s{sRK}, {R[2]}
        s_mov_b32 s{sStep}, 32768
        s_mov_b32 s{sEK}, {R[3]}
        s_mov_b32 s{sRngV}, 65536
        s_mov_b32 s{sOff}, {4*32768}
        s_mov_b32 s{sOffB}, {2*32768}
        s_cmp_eq_u32 s{sPar}, 0
        s_cselect_b32 s{sRV}, {R[2]}, s{sRV}
        s_cselect_b32 s{sRK}, {R[3]}, s{sRK}
        s_cselect_b32 s{sStep}, 65536, s{sStep}
        s_cselect_b32 s{sEK}, {5*32768}, s{sEK}
        s_cselect_b32 s{sRngV}, {5*32768}, s{sRngV}
        s_cselect_b32 s{sOff}, {2*32768}, s{sOff}
        s_cselect_b32 s{sOffB}, {4*32768}, s{sOffB}
        s_cbranch_scc1 K1_PAR0
        s_mov_b32 s{sT0}, s{rK}
        s_mov_b32 s{sT1}, s{rK+1}
        s_mov_b32 s{rK}, s{rV}
        s_mov_b32 s{rK+1}, s{rV+1}
        s_mov_b32 s{rV}, s{sT0}
        s_mov_b32 s{rV+1}, s{sT1}
        """)
        for u in range(4): p(f"v_mov_b32 v{vOb+u}, v{vVo}")
        p("s_branch K1_PAR1")
        p.label("K1_PAR0")
        for u in range(4):
            p(f"v_mov_b32 v{vOb+u}, v{vKo+u}")
        for u in range(4):
            p(f"v_mov_b32 v{vKo+u}, v{vVo}")
        p.label("K1_PAR1")
        p(f"""
        s_add_u32 s{sOff}, s{sOff}, s{sW4096}
        s_add_u32 s{sOffB}, s{sOffB}, s{sW4096}
        s_mov_b32 s{sCnt}, 0
        """)
    v_addrs(sRV)
    k_addrs(sRK)
    tmax(vS[0])

    W = {}; WP = {0: {}, 1: {}}
    for par in (0, 1):
        q2 = list(vq if (par == 0 or o.skew != 2) else VQ[1])
        def need2(tag):
            idx = [i for i, t in enumerate(q2) if t == tag]
            if not idx: return 63
            n = len(q2) - 1 - idx[-1]
            del q2[:idx[-1] + 1]
            return min(n, 63)
        for i in range(8):
            n = need2(('V', i)); WP[par][('a', i)] = n
            if o.skew == 2: ta, tb = ('K', i + 4 - par), ('V', i + 2 + par)
            else: ta, tb = (('V', i + 2), ('K', i + 4)) if par == 0 else (('K', i + 4), ('V', i + 2))
            if i <= 5: q2.extend([ta] * 4)
            if i <= 5:
                n = need2(('K', i + 2)); WP[par][('b', i)] = n
                q2.extend([tb] * 4)
        if not o.skew: WP[1] = WP[0]; break
    for k in WP[0]:
        W[k] = (WP[0][k], WP[1][k]) if o.skew == 2 else (min(WP[0][k], WP[1][k]),) * 2
    print('loop waits', W, file=sys.stderr)

    def alpha(tag, cur, do_qk, issue, wv):
        S, Sn = vS[cur], vS[1 - cur]
        wait2(*wv)
        p(f"""
        s_barrier
        v_cmp_gt_f32 vcc, v{vTn}, v{vThr}
        s_cbranch_vccnz K1_RS{tag}
        """)
        p.label(f"K1_BK{tag}")
        reads = [(a, ks, h) for a in range(4) for ks in range(2) for h in range(2)]
        for j in range(8):
            if do_qk:
                c = '0' if j == 0 else rg(Sn, 16)
                p(f"{MF} {rg(Sn,16)}, {rg(vKf+4*j,4)}, {rg(vQ+4*j,4)}, {c}")
            for (a, ks, h) in reads[2*j:2*j+2]:
                f = vVf + (a * 2 + ks) * 4 + 2 * h
                p(f"ds_read_b64_tr_b16 {rg(f,2)}, v{vVA+a} offset:{ks*4096+h*2048}")
            p(f"v_fma_f32 v{S+2*j}, v{S+2*j}, s{sC}, -v{vM}")
            p(f"v_fma_f32 v{S+2*j+1}, v{S+2*j+1}, s{sC}, -v{vM}")
            p(f"v_exp_f32 v{S+2*j}, v{S+2*j}")
            p(f"v_exp_f32 v{S+2*j+1}, v{S+2*j+1}")
            if j >= 1:
                k = j - 1
                p(f"v_cvt_pk_bf16_f32 v{vP+k}, v{S+2*k}, v{S+2*k+1}")
                p(f"v_add_f32 v{vL0}, v{vL0}, v{S+2*k}")
                p(f"v_add_f32 v{vL1}, v{vL1}, v{S+2*k+1}")
            if issue and j == 0:
                p(f"s_add_u32 m0, s{sKprev}, s{sW4096}")
            if issue and o.dmapos == 0 and j in (1, 3, 5, 7):
                u = (j - 1) // 2
                p(f"buffer_load_dwordx4 v{vKo+u}, s[{rV}:{rV+3}], s{sOff} offen offset:{u*1024}{NT} lds")
        p(f"v_cvt_pk_bf16_f32 v{vP+7}, v{S+14}, v{S+15}")
        p(f"v_add_f32 v{vL0}, v{vL0}, v{S+14}")
        p(f"v_add_f32 v{vL1}, v{vL1}, v{S+15}")
        if issue and o.dmapos == 1:
            for u in range(4):
                p(f"buffer_load_dwordx4 v{vKo+u}, s[{rV}:{rV+3}], s{sOff} offen offset:{u*1024}{NT} lds")
        if issue:
            p(f"s_add_u32 s{sOff}, s{sOff}, 32768")

    def beta(tag, cur, read_k, issue, do_tmax, wv, barrier=True, extra=None):
        Sn = vS[1 - cur]
        wait2(*wv)
        if barrier: p("s_barrier")
        n = 0
        for a in range(4):
            for ks in range(2):
                f = vVf + (a * 2 + ks) * 4
                p(f"{MF} {rg(vO+16*a,16)}, {rg(f,4)}, {rg(vP+4*ks,4)}, {rg(vO+16*a,16)}")
                if read_k:
                    p(f"ds_read_b128 {rg(vKf+4*n,4)}, v{vKA+n}")
                if issue and n == 0:
                    p(f"s_add_u32 m0, s{sRV}, s{sW4096}")
                if issue and o.dmapos == 0 and n in (1, 3, 5, 7):
                    u = (n - 1) // 2
                    p(f"buffer_load_dwordx4 v{vOb+u}, s[{rK}:{rK+3}], s{sOffB} offen offset:{u*1024}{NT} lds")
                if n == 2 and do_tmax:
                    tmax(Sn)
                n += 1
        if issue and o.dmapos == 1:
            pass
        if issue and o.dmapos == 1:
            for u in range(4):
                p(f"buffer_load_dwordx4 v{vOb+u}, s[{rK}:{rK+3}], s{sOffB} offen offset:{u*1024}{NT} lds")
        if issue:
            p(f"s_add_u32 s{sOffB}, s{sOffB}, 32768")
        p(f"""
        s_mov_b32 s{sKprev}, s{sRK}
        s_add_u32 s{sRV}, s{sRV}, s{sStep}
        s_cmp_ge_u32 s{sRV}, {5*32768}
        s_cselect_b32 s{sT0}, s{sRngV}, 0
        s_sub_u32 s{sRV}, s{sRV}, s{sT0}
        s_add_u32 s{sRK}, s{sRK}, s{sStep}
        s_cmp_ge_u32 s{sRK}, s{sEK}
        s_cselect_b32 s{sT0}, s{sEK}, 0
        s_sub_u32 s{sRK}, s{sRK}, s{sT0}
        """)
        v_addrs(sRV)
        k_addrs(sRK)
        if extra: extra()

    def rescale(tag):
        p.label(f"K1_RS{tag}")
        p(f"""
        v_max_f32 v3, v{vTn}, v{vM}
        v_sub_f32 v4, v{vM}, v3
        v_exp_f32 v4, v4
        v_mov_b32 v{vM}, v3
        v_add_f32 v{vThr}, 0x41000000, v3
        """)
        p(f"v_mul_f32 v{vL0}, v{vL0}, v4")
        p(f"v_mul_f32 v{vL1}, v{vL1}, v4")
        for i in range(64):
            p(f"v_mul_f32 v{vO+i}, v{vO+i}, v4")
        p(f"s_branch K1_BK{tag}")

    def wo_srd():
        p(f"""
        s_mul_i32 s{sT0}, s{sXc}, {512*1152}
        s_mul_i32 s{sT1}, s{sJj}, 288
        s_add_u32 s{sT0}, s{sT0}, s{sT1}
        s_add_u32 s{rW}, s{sWo}, s{sT0}
        s_addc_u32 s{rW+1}, s{sWo+1}, 0
        s_sub_u32 s{rW+2}, {4096*1152}, s{sT0}
        s_mov_b32 s{rW+3}, 0x20000
        """)
    def wo_touch():
        if not (o.fuse and o.wot): return
        l = nl('WOT')
        p(f"""
        s_cmp_eq_u32 s{sCnt}, 1
        s_cbranch_scc0 {l}
        s_cmp_eq_u32 s{sWave}, 6
        s_cbranch_scc0 {l}
        s_mul_i32 s{sT0}, s{sXc}, {512*1152}
        s_add_u32 s{rX}, s{sWo}, s{sT0}
        s_addc_u32 s{rX+1}, s{sWo+1}, 0
        s_mov_b32 s{rX+2}, {512*1152}
        s_mov_b32 s{rX+3}, 0x20000
        s_lshr_b32 s{sT0}, s2, 3
        s_mul_i32 s{sT0}, s{sT0}, 18432
        v_lshlrev_b32 v2, 7, v{vL}
        buffer_load_dword v{vDum}, v2, s[{rX}:{rX+3}], s{sT0} offen
        s_add_u32 s{sT0}, s{sT0}, 8192
        buffer_load_dword v{vDum}, v2, s[{rX}:{rX+3}], s{sT0} offen
        s_add_u32 s{sT0}, s{sT0}, 8192
        v_cmp_gt_u32 vcc, 16, v{vL}
        s_and_saveexec_b64 s[58:59], vcc
        buffer_load_dword v{vDum}, v2, s[{rX}:{rX+3}], s{sT0} offen
        s_mov_b64 exec, s[58:59]
        """)
        p.label(l)
        if o.tlb:
            l = nl('TLB')
            p(f"""
            s_cmp_eq_u32 s{sCnt}, {o.tlb - 1}
            s_cbranch_scc0 {l}
            s_cmp_eq_u32 s{sWave}, 5
            s_cbranch_scc0 {l}
            s_lshl_b32 s{sT0}, s{sB}, 2
            s_add_u32 s{sT0}, s{sT0}, s{sJj}
            s_mul_i32 s{sT0}, s{sT0}, 36864
            s_add_u32 s{sT0}, s{sT0}, {WS_PART}
            v_mul_u32_u24 v2, 1152, v{vL}
            v_lshlrev_b32 v2, 10, v2
            v_add_u32 v2, s{sT0}, v2
            s_lshl_b32 s{sT0}, s{sWg}, 14
            v_mov_b32 v3, s{sT0}
            v_cmp_eq_u32 vcc, 8, v{vL}
            s_lshl_b32 s{sT0}, s{sWg}, 7
            s_add_u32 s{sT0}, s{sT0}, {WS_FLAG}
            v_cndmask_b32 v2, v2, v3, vcc
            v_mov_b32 v3, s{sT0}
            v_cmp_eq_u32 vcc, 9, v{vL}
            s_mul_i32 s{sT0}, s{sB}, {64*1152}
            v_mov_b32 v4, s{sT0}
            v_cndmask_b32 v2, v2, v3, vcc
            s_mov_b64 s[58:59], exec
            s_mov_b64 exec, 0x3ff
            buffer_load_dword v{vDum}, v2, s[{rO}:{rO+3}], 0 offen sc1
            s_mov_b64 exec, 1
            global_load_dword v{vDum}, v4, s[{sOut}:{sOut+1}] sc1
            s_mov_b64 exec, s[58:59]
            """)
            p.label(l)

    wm = lambda keys: (min(W[k][0] for k in keys), min(W[k][1] for k in keys))
    loop_start = len(p.ins)
    p.label("K1_LOOP")
    alpha('L0', 0, True, True, wm([('a', 0), ('a', 2), ('a', 4)]))
    beta('L0', 0, True, True, True, wm([('b', 0), ('b', 2), ('b', 4)]))
    alpha('L1', 1, True, True, wm([('a', 1), ('a', 3), ('a', 5)]))
    beta('L1', 1, True, True, True, wm([('b', 1), ('b', 3), ('b', 5)]), extra=wo_touch)
    p(f"""
    s_add_u32 s{sCnt}, s{sCnt}, 1
    s_cmp_lt_u32 s{sCnt}, 3
    s_cbranch_scc1 K1_LOOP
    """)
    if o.dry:
        keep = []
        for x in p.ins[loop_start:]:
            drop = False
            if o.dry & 1 and x.kind == 'mfma': drop = True
            if o.dry & 2 and x.kind == 'ds': drop = True
            if o.dry & 4 and x.kind == 'valu' and not x.op.startswith('v_cmp'): drop = True
            if not drop: keep.append(x)
        p.ins[loop_start:] = keep
    stamp(p, o, 4)
    if o.fuse:
        p(f"""
        s_cmp_eq_u32 s{sWave}, 7
        s_cbranch_scc0 K1_NL
        v_mov_b32 v8, 0
        global_load_dwordx2 v[{vNon}:{vNon+1}], v8, s[{sDbg}:{sDbg+1}] sc1
        """)
        p.label("K1_NL")
    alpha('A', 0, True, False, W[('a', 6)])
    beta('A', 0, False, False, True, (63, 63), barrier=False)
    alpha('B', 1, False, False, W[('a', 7)])
    p("s_waitcnt vmcnt(0) lgkmcnt(0)")
    for a in range(4):
        for ks in range(2):
            f = vVf + (a * 2 + ks) * 4
            p(f"{MF} {rg(vO+16*a,16)}, {rg(f,4)}, {rg(vP+4*ks,4)}, {rg(vO+16*a,16)}")
    stamp(p, o, 5)

    STAT = 0
    NONL = 4096
    OX = R[2]
    WOB = 16384
    vS0 = vS[0]
    def wo_group_dma(gexpr_sgpr):
        p(f"""
        s_mul_i32 s{sT1}, s{gexpr_sgpr}, 9216
        s_add_u32 s{sT1}, s{sT1}, {WOB}
        s_mul_i32 s{sT0}, s{gexpr_sgpr}, 36864
        """)
        for i in range(9):
            if i % 4 == 0:
                p(f"s_add_u32 m0, s{sT1}, {(i//4)*4096}")
            p(f"buffer_load_dwordx4 v{vOff+i}, s[{rW}:{rW+3}], s{sT0} offen offset:{(i%4)*1024} lds")
    p(f"""
    v_add_f32 v{vL0}, v{vL0}, v{vL1}
    v_mov_b32 v{vL1}, v{vL0}
    s_nop 1
    v_permlane32_swap_b32 v{vL0}, v{vL1}
    v_add_f32 v{vThr}, v{vL0}, v{vL1}
    v_and_b32 v7, 31, v{vL}
    s_lshl_b32 s{sT0}, s{sKq}, 9
    s_lshl_b32 s{sT1}, s{sQh}, 8
    s_add_u32 s{sT0}, s{sT0}, s{sT1}
    s_add_u32 s{sT0}, s{sT0}, {STAT}
    s_add_u32 s{sT1}, s{sT1}, {STAT}
    v_lshlrev_b32 v7, 3, v7
    v_add_u32 v2, s{sT0}, v7
    v_add_u32 v7, s{sT1}, v7
    v_lshlrev_b32 v3, 4, v{vL}
    """)
    if o.fuse: wo_srd()
    p("s_barrier")
    stamp(p, o, 'e1')
    p(f"""
    ds_write_b64 v2, v[{vM}:{vM+1}]
    """)
    if o.fuse:
        p(f"""
        s_cmp_eq_u32 s{sWave}, 7
        s_cbranch_scc0 K1_NON2
        s_mov_b32 s{sT2}, 0
        """)
        p.label("K1_NONP")
        p(f"""
        v_readfirstlane_b32 s{sT0}, v{vNon}
        s_add_u32 s{sT2}, s{sT2}, 1
        s_cmp_lg_u32 s{sT0}, 0
        s_cbranch_scc1 K1_NONOK
        s_cmp_lt_u32 s{sT2}, {SPIN}
        s_cbranch_scc0 K1_NONOK
        v_mov_b32 v8, 0
        global_load_dwordx2 v[{vNon}:{vNon+1}], v8, s[{sDbg}:{sDbg+1}] sc1
        s_waitcnt vmcnt(0)
        s_branch K1_NONP
        """)
        p.label("K1_NONOK")
        p(f"""
        v_mov_b32 v6, {NONL}
        ds_write_b64 v6, v[{vNon}:{vNon+1}]
        """)
        p.label("K1_NON2")
    for a in range(1, 4):
        p(f"""
        s_add_u32 s{sT0}, s{sKq}, {a}
        s_and_b32 s{sT0}, s{sT0}, 3
        s_lshl_b32 s{sT2}, s{sQh}, 2
        s_add_u32 s{sT0}, s{sT0}, s{sT2}
        s_mul_i32 s{sT0}, s{sT0}, 12288
        s_add_u32 s{sT0}, s{sT0}, {OX + (3-a)*4096}
        v_add_u32 v4, s{sT0}, v3
        """)
        for g in range(4):
            p(f"ds_write_b128 v4, {rg(vO+16*a+4*g,4)} offset:{g*1024}")
    if o.fuse and o.early:
        p(f"""
        s_cmp_lt_u32 s{sWave}, 5
        s_cbranch_scc0 K1_WG1
        """)
        wo_group_dma(sWave)
        p.label("K1_WG1")
    p(f"""
    s_lshl_b32 s{sT0}, s{sQh}, 2
    s_add_u32 s{sT0}, s{sT0}, s{sKq}
    s_mul_i32 s{sT0}, s{sT0}, 12288
    s_add_u32 s{sT0}, s{sT0}, {OX}
    v_add_u32 v4, s{sT0}, v3
    s_waitcnt lgkmcnt(0)
    """)
    stamp(p, o, 'e2')
    p("s_barrier")
    stamp(p, o, 'e3')
    for k in range(4):
        p(f"ds_read_b64 v[{vS0+2*k}:{vS0+2*k+1}], v7 offset:{k*512}")
    for i in range(3):
        for g in range(4):
            p(f"ds_read_b128 {rg(vO+16*(i+1)+4*g,4)}, v4 offset:{i*4096+g*1024}")
    if o.fuse:
        p(f"""
        v_mov_b32 v6, {NONL}
        ds_read_b64 v[8:9], v6
        s_waitcnt lgkmcnt(13)
        """)
    else:
        p("s_waitcnt lgkmcnt(12)")
    m = [vS0 + 0, vS0 + 2, vS0 + 4, vS0 + 6]; l = [vS0 + 1, vS0 + 3, vS0 + 5, vS0 + 7]
    p(f"""
    v_max3_f32 v2, v{m[0]}, v{m[1]}, v{m[2]}
    v_max_f32 v2, v2, v{m[3]}
    """)
    for k in range(4):
        p(f"v_sub_f32 v{m[k]}, v{m[k]}, v2")
    for k in range(4):
        p(f"v_exp_f32 v{m[k]}, v{m[k]}")
    p(f"""
    v_mul_f32 v3, v{m[0]}, v{l[0]}
    v_fmac_f32 v3, v{m[1]}, v{l[1]}
    v_fmac_f32 v3, v{m[2]}, v{l[2]}
    v_fmac_f32 v3, v{m[3]}, v{l[3]}
    v_rcp_f32 v3, v3
    """)
    for k in range(4):
        p(f"v_mul_f32 v{m[k]}, v{m[k]}, v3")
    wr = vS0 + 8
    for kq in range(4):
        p(f"s_cmp_eq_u32 s{sKq}, {kq}")
        p(f"s_cbranch_scc0 K1_WR{kq}")
        for i in range(4):
            p(f"v_mov_b32 v{wr+i}, v{m[(kq+i)&3]}")
        p.label(f"K1_WR{kq}")
    for i in range(16):
        p(f"v_mul_f32 v{vO+i}, v{vO+i}, v{wr}")
    nextra = 1 if o.fuse else 0
    for s in range(3):
        p(f"s_waitcnt lgkmcnt({8-4*s+nextra})")
        for i in range(16):
            p(f"v_fmac_f32 v{vO+i}, v{vO+16*(s+1)+i}, v{wr+s+1}")
    order = [0, 2, 1, 3]
    for idx, g in enumerate(order):
        p(f"v_cvt_pk_bf16_f32 v{vP+2*idx}, v{vO+4*g}, v{vO+4*g+1}")
        p(f"v_cvt_pk_bf16_f32 v{vP+2*idx+1}, v{vO+4*g+2}, v{vO+4*g+3}")
    stamp(p, o, 'e4')
    SC = ' sc1' if o.fuse else ''
    p(f"""
    v_and_b32 v2, 15, v{vL}
    v_lshrrev_b32 v3, 5, v{vL}
    v_lshl_add_u32 v2, v3, 4, v2
    v_lshlrev_b32 v2, 4, v2
    v_bfe_u32 v3, v{vL}, 4, 1
    v_lshl_add_u32 v2, v3, 12, v2
    s_lshl_b32 s{sT0}, s{sWg}, 14
    s_lshl_b32 s{sT1}, s{sQh}, 13
    s_add_u32 s{sT0}, s{sT0}, s{sT1}
    s_lshl_b32 s{sT1}, s{sKq}, 10
    s_add_u32 s{sT0}, s{sT0}, s{sT1}
    buffer_store_dwordx4 {rg(vP,4)}, v2, s[{rO}:{rO+3}], s{sT0} offen{SC}
    buffer_store_dwordx4 {rg(vP+4,4)}, v2, s[{rO}:{rO+3}], s{sT0} offen offset:512{SC}
    """)
    if not o.fuse:
        if o.stamps:
            p("s_waitcnt vmcnt(0)")
            stamp(p, o, 6)
            stamp_flush(p, o, 0, 7, sWs)
        p("s_branch K1_END")
    else:
        tail(p, o, locals())
    for tag in ('L0', 'L1', 'A', 'B'):
        rescale(tag)
    p.label("K1_END")
    p("s_endpgm")
    return p

def gemm_body(p, vAcc, vB, vF, vAd, vLA, base_expr_instr, vm_base=0):
    p(base_expr_instr)
    p(f"v_add_u32 v{vAd+1}, {4*9216}, v{vAd}")
    HA, HB = list(range(0, 5)), list(range(5, 9))
    def reads(kk, half):
        ad = vAd + (kk // 4)
        off = (kk % 4) * 9216
        for nt in half:
            f = vF + 4 * nt
            p(f"ds_read_b64_tr_b16 {rg(f,2)}, v{ad} offset:{off+nt*32}")
            p(f"ds_read_b64_tr_b16 {rg(f+2,2)}, v{ad} offset:{off+4608+nt*32}")
    def mfmas(kk, half, younger):
        n = len(half)
        h1 = (n + 1) // 2
        for idx, nt in enumerate(half):
            f = vF + 4 * nt
            if idx == 0: p(f"s_waitcnt lgkmcnt({min(15, younger + 2*(n-h1))})")
            if idx == h1: p(f"s_waitcnt lgkmcnt({min(15, younger)})")
            p(f"{MF16} {rg(vAcc+4*nt,4)}, {rg(f,4)}, {rg(vB+4*kk,4)}, {rg(vAcc+4*nt,4)}")
    reads(0, HA)
    for kk in range(8):
        reads(kk, HB)
        p(f"s_waitcnt vmcnt({7-kk+vm_base})")
        mfmas(kk, HA, 2 * len(HB))
        if kk < 7:
            reads(kk + 1, HA)
            mfmas(kk, HB, 2 * len(HA))
        else:
            mfmas(kk, HB, 0)

def tail(p, o, L):
    g = lambda n: L[n]
    sWave, sB, sXc, sJj, sWg, sT0, sT1, sT2 = g('sWave'), g('sB'), g('sXc'), g('sJj'), g('sWg'), g('sT0'), g('sT1'), g('sT2')
    rO, rW, rX, sN, sTag, sOut, sWs = g('rO'), g('rW'), g('rX'), g('sN'), g('sTag'), g('sOut'), g('sWs')
    vL, vOff, WOB = g('vL'), g('vOff'), g('WOB')
    wo_group_dma = g('wo_group_dma')
    sQt, sKh2 = 40, 41
    vAcc, vB, vF, vLA, vAd = 28, 64, 96, 19, 20
    p(f"""
    s_waitcnt vmcnt(0) lgkmcnt(0)
    v_readfirstlane_b32 s{sN}, v8
    v_readfirstlane_b32 s{sN+1}, v9
    s_barrier
    """)
    if o.stamps: stamp(p, o, 6)
    p(f"""
    s_and_b32 s{sQt}, s{sWave}, 3
    s_lshr_b32 s{sKh2}, s{sWave}, 2
    s_cmp_eq_u32 s{sWave}, 7
    s_cbranch_scc0 T_NOFLAG
    v_mov_b32 v9, s{sN}
    s_lshl_b32 s{sT0}, s{sWg}, 7
    s_add_u32 s{sT0}, s{sT0}, {WS_FLAG}
    v_mov_b32 v3, 0
    v_cmp_eq_u32 vcc, 0, v{vL}
    s_and_saveexec_b64 s[58:59], vcc
    buffer_store_dword v9, v3, s[{rO}:{rO+3}], s{sT0} offen sc1
    s_mov_b64 exec, s[58:59]
    s_and_b32 s{sT0}, s{sWg}, 0xfc
    s_lshl_b32 s{sT0}, s{sT0}, 7
    s_add_u32 s{sT0}, s{sT0}, {WS_FLAG}
    v_and_b32 v8, 3, v{vL}
    v_lshlrev_b32 v8, 7, v8
    s_mov_b32 s{sT1}, 0
    buffer_load_dword v10, v8, s[{rO}:{rO+3}], s{sT0} offen sc1
    buffer_load_dword v11, v8, s[{rO}:{rO+3}], s{sT0} offen sc1
    """)
    p("s_branch T_SETUP")
    p.label("T_NOFLAG")
    if o.early:
        p(f"s_add_u32 s{sT2}, s{sWave}, 5")
        wo_group_dma(sT2)
        p(f"""
        s_cmp_lt_u32 s{sWave}, 4
        s_cbranch_scc0 T_SETUP
        s_add_u32 s{sT2}, s{sWave}, 12
        """)
        wo_group_dma(sT2)
    else:
        wo_group_dma(sWave)
        p(f"s_add_u32 s{sT2}, s{sWave}, 7")
        wo_group_dma(sT2)
        p(f"""
        s_cmp_lt_u32 s{sWave}, 2
        s_cbranch_scc0 T_SETUP
        s_add_u32 s{sT2}, s{sWave}, 14
        """)
        wo_group_dma(sT2)
    p.label("T_SETUP")
    p(f"""
    v_lshrrev_b32 v2, 4, v{vL}
    v_and_b32 v3, 15, v{vL}
    v_lshrrev_b32 v4, 2, v3
    v_and_b32 v6, 3, v3
    v_lshl_add_u32 v2, v2, 2, v4
    v_mul_u32_u24 v2, 288, v2
    v_lshl_add_u32 v{vLA}, v6, 3, v2
    v_lshlrev_b32 v5, 4, v{vL}
    s_and_b32 s{sTag}, s{sN}, 0xfff
    s_lshr_b32 s{sTag+1}, s{sN}, 12
    s_and_b32 s{sTag+1}, s{sTag+1}, 0xfff
    s_lshr_b32 s{sTag+2}, s{sN}, 24
    s_lshl_b32 s{sT2}, s{sN+1}, 8
    s_or_b32 s{sTag+2}, s{sTag+2}, s{sT2}
    s_and_b32 s{sTag+2}, s{sTag+2}, 0xfff
    s_lshr_b32 s{sTag+3}, s{sN+1}, 4
    s_and_b32 s{sTag+3}, s{sTag+3}, 0xfff
    """)
    for i in range(36):
        p(f"v_mov_b32 v{vAcc+i}, 0")
    p(f"""
    s_cmp_eq_u32 s{sWave}, 7
    s_cbranch_scc0 T_NOPOLL
    """)
    p.label("T_POLL1")
    p(f"""
    s_waitcnt vmcnt(1)
    v_cmp_ne_u32 vcc, v10, v9
    s_cbranch_vccz T_NOPOLL
    buffer_load_dword v10, v8, s[{rO}:{rO+3}], s{sT0} offen sc1
    s_add_u32 s{sT1}, s{sT1}, 1
    s_waitcnt vmcnt(1)
    v_cmp_ne_u32 vcc, v11, v9
    s_cbranch_vccz T_NOPOLL
    buffer_load_dword v11, v8, s[{rO}:{rO+3}], s{sT0} offen sc1
    s_cmp_lt_u32 s{sT1}, {SPIN}
    s_cbranch_scc1 T_POLL1
    """)
    p.label("T_NOPOLL")
    p(f"""
    s_waitcnt vmcnt(0)
    s_barrier
    """)
    if o.stamps: stamp(p, o, 7)
    p(f"""
    s_and_b32 s{sT0}, s{sWg}, 0xfc
    s_lshl_b32 s{sT1}, s{sKh2}, 1
    s_add_u32 s{sT0}, s{sT0}, s{sT1}
    s_lshl_b32 s{sT0}, s{sT0}, 14
    s_lshl_b32 s{sT1}, s{sQt}, 12
    s_add_u32 s{sT0}, s{sT0}, s{sT1}
    s_add_u32 s{sT1}, s{sT0}, 16384
    """)
    for kk in range(8):
        p(f"buffer_load_dwordx4 {rg(vB+4*kk,4)}, v5, s[{rO}:{rO+3}], s{sT0 if kk < 4 else sT1} offen offset:{(kk&3)*1024} sc1")
    p(f"s_mul_i32 s{sT2}, s{sKh2}, {8*9216}")
    p(f"s_add_u32 s{sT2}, s{sT2}, {WOB}")
    if o.stamps and o.stset:
        p("s_waitcnt vmcnt(0)")
        stamp(p, o, 'g0')
    gemm_body(p, vAcc, vB, vF, vAd, vLA, f"v_add_u32 v{vAd}, s{sT2}, v{vLA}")
    if o.stamps: stamp(p, o, 8)
    p("s_barrier")
    stamp(p, o, 'r1')
    p(f"""
    s_mul_i32 s{sT0}, s{sQt}, 9216
    v_add_u32 v2, s{sT0}, v5
    s_cmp_eq_u32 s{sKh2}, 0
    s_cbranch_scc0 T_H1
    """)
    for nt in range(5, 9):
        p(f"ds_write_b128 v2, {rg(vAcc+4*nt,4)} offset:{nt*1024}")
    p("s_branch T_H2")
    p.label("T_H1")
    for nt in range(0, 5):
        p(f"ds_write_b128 v2, {rg(vAcc+4*nt,4)} offset:{nt*1024}")
    p.label("T_H2")
    TAGGED = (o.fuse == 2)
    p(f"""
    v_mov_b32 v7, 0xfffff000
    s_lshl_b32 s{sT0}, s{sXc}, 3
    s_add_u32 s{sT0}, s{sT0}, s{sB}
    s_lshl_b32 s{sT0}, s{sT0}, 2
    s_add_u32 s{sT0}, s{sT0}, s{sJj}
    s_lshl_b32 s{sT0}, s{sT0}, 2
    s_add_u32 s{sT0}, s{sT0}, s{sQt}
    s_mul_i32 s{sT0}, s{sT0}, 9216
    s_add_u32 s{sT0}, s{sT0}, {WS_PART}
    s_waitcnt lgkmcnt(0)
    """)
    stamp(p, o, 'r2')
    p("s_barrier")
    stamp(p, o, 'r3')
    p(f"""
    s_cmp_eq_u32 s{sKh2}, 0
    s_cbranch_scc0 T_H3
    """)
    def fin(nts):
        for nt in nts:
            p(f"ds_read_b128 {rg(vF+4*nt,4)}, v2 offset:{nt*1024}")
        for idx, nt in enumerate(nts):
            p(f"s_waitcnt lgkmcnt({len(nts)-1-idx})")
            for e in range(4):
                p(f"v_add_f32 v{vAcc+4*nt+e}, v{vAcc+4*nt+e}, v{vF+4*nt+e}")
            if TAGGED:
                for e in range(4):
                    p(f"v_and_b32 v{vAcc+4*nt+e}, v7, v{vAcc+4*nt+e}")
                    p(f"v_or_b32 v{vAcc+4*nt+e}, s{sTag+e}, v{vAcc+4*nt+e}")
            p(f"s_add_u32 s{sT1}, s{sT0}, {(nt//4)*4096}")
            p(f"buffer_store_dwordx4 {rg(vAcc+4*nt,4)}, v5, s[{rO}:{rO+3}], s{sT1} offen offset:{(nt%4)*1024}{' sc1' if TAGGED else ''}")
    fin(list(range(0, 5)))
    p("s_branch T_H4")
    p.label("T_H3")
    fin(list(range(5, 9)))
    p.label("T_H4")
    if o.stamps: stamp(p, o, 9)
    if TAGGED:
        vX = 100
        p(f"""
        s_cmp_ge_u32 s{sWave}, 5
        s_cbranch_scc1 T_DONE
        v_cmp_gt_u32 vcc, 288, v0
        s_and_saveexec_b64 s[58:59], vcc
        s_mul_i32 s{sT0}, s{sXc}, 288
        v_add_u32 v2, s{sT0}, v0
        v_lshlrev_b32 v3, 4, v2
        s_lshl_b32 s{sT0}, s{sB}, 2
        s_add_u32 s{sT0}, s{sT0}, s{sJj}
        s_mul_i32 s{sT0}, s{sT0}, 36864
        s_add_u32 s{sT0}, s{sT0}, {WS_PART}
        s_mov_b32 s{rX}, s{sOut}
        s_mov_b32 s{rX+1}, s{sOut+1}
        s_mov_b32 s{rX+2}, {512*576*2}
        s_mov_b32 s{rX+3}, 0x20000
        v_lshrrev_b32 v4, 6, v2
        v_mul_u32_u24 v5, 57, v4
        v_lshrrev_b32 v5, 9, v5
        v_mul_u32_u24 v6, 9, v5
        v_sub_u32 v6, v4, v6
        v_and_b32 v4, 15, v2
        v_lshl_add_u32 v4, v5, 4, v4
        s_lshl_b32 s{sT1}, s{sB}, 6
        v_add_u32 v4, s{sT1}, v4
        s_movk_i32 s{sT1}, 1152
        v_mul_u32_u24 v4, s{sT1}, v4
        v_lshlrev_b32 v6, 5, v6
        v_add_u32 v4, v4, v6
        v_bfe_u32 v6, v2, 4, 2
        v_lshl_add_u32 v4, v6, 3, v4
        s_mul_i32 s{sT1}, s{sJj}, 288
        v_add_u32 v4, s{sT1}, v4
        s_mov_b32 s{sT2}, 0
        """)
        if o.prepoll:
            p(f"""
            s_mov_b64 s[56:57], exec
            v_readfirstlane_b32 s{sT1}, v3
            v_mul_u32_u24 v6, {32*36864 // 1024}, v{vL}
            v_lshlrev_b32 v6, 10, v6
            v_add_u32 v6, s{sT1}, v6
            v_mov_b32 v9, s{sTag}
            s_mov_b64 exec, 0xff
            buffer_load_dword v10, v6, s[{rO}:{rO+3}], s{sT0} offen sc1
            buffer_load_dword v11, v6, s[{rO}:{rO+3}], s{sT0} offen sc1
            """)
            p.label("T_PP")
            p(f"""
            s_waitcnt vmcnt(1)
            v_xor_b32 v8, v10, v9
            v_and_b32 v8, 0xfff, v8
            v_cmp_ne_u32 vcc, 0, v8
            s_cbranch_vccz T_PPD
            buffer_load_dword v10, v6, s[{rO}:{rO+3}], s{sT0} offen sc1
            s_add_u32 s{sT2}, s{sT2}, 1
            s_waitcnt vmcnt(1)
            v_xor_b32 v8, v11, v9
            v_and_b32 v8, 0xfff, v8
            v_cmp_ne_u32 vcc, 0, v8
            s_cbranch_vccz T_PPD
            buffer_load_dword v11, v6, s[{rO}:{rO+3}], s{sT0} offen sc1
            s_cmp_lt_u32 s{sT2}, {SPIN}
            s_cbranch_scc1 T_PP
            """)
            p.label("T_PPD")
            p(f"""
            s_mov_b64 exec, s[56:57]
            s_mov_b32 s{sT2}, 0
            """)
        p.label("T_POLL2")
        p(f"s_mov_b32 s{sT1}, s{sT0}")
        for s in range(8):
            p(f"buffer_load_dwordx4 {rg(vX+4*s,4)}, v3, s[{rO}:{rO+3}], s{sT1} offen sc1")
            if s < 7: p(f"s_add_u32 s{sT1}, s{sT1}, {32*36864}")
        p(f"""
        s_add_u32 s{sT2}, s{sT2}, 1
        v_mov_b32 v6, 0
        """)
        for s in range(8):
            p(f"s_waitcnt vmcnt({7-s})")
            for e in range(4):
                p(f"v_xor_b32 v8, s{sTag+e}, v{vX+4*s+e}")
                p(f"v_or_b32 v6, v6, v8")
        p(f"""
        v_and_b32 v6, 0xfff, v6
        v_cmp_ne_u32 vcc, 0, v6
        s_cmp_lt_u32 s{sT2}, {SPIN}
        s_cbranch_scc0 T_SUM
        s_cbranch_vccnz T_POLL2
        """)
        p.label("T_SUM")
        if o.stamps and o.stset == 2:
            p(f"s_mov_b32 s76, s{sT2}")
            p("s_mov_b32 s77, 0")
        for s in range(8):
            for e in range(4):
                p(f"v_and_b32 v{vX+4*s+e}, v7, v{vX+4*s+e}")
        for s in range(1, 8):
            for e in range(4):
                p(f"v_add_f32 v{vX+e}, v{vX+e}, v{vX+4*s+e}")
        p(f"""
        v_cvt_pk_bf16_f32 v8, v{vX}, v{vX+1}
        v_cvt_pk_bf16_f32 v9, v{vX+2}, v{vX+3}
        buffer_store_dwordx2 v[8:9], v4, s[{rX}:{rX+3}], 0 offen{' sc1' if o.outsc else ''}
        s_mov_b64 exec, s[58:59]
        """)
        p.label("T_DONE")
    if o.stamps:
        p("s_waitcnt vmcnt(0)")
        p("s_memrealtime s[90:91]" if o.stamps != 2 else "s_memtime s[90:91]")
        p("s_waitcnt lgkmcnt(0)")
        p("s_mov_b32 s60, s60")
        gen_flush_final(p, o, sWs)
    p("s_branch K1_END")

def gen_flush_final(p, o, sws):
    tag = "STFm"
    if o.stamps == 3:
        p(f"""
        s_cmp_eq_u32 s2, 0
        s_cbranch_scc0 {tag}
        s_load_dwordx2 s[96:97], s[0:1], 48
        s_waitcnt lgkmcnt(0)
        v_cmp_eq_u32 vcc, 0, v0
        s_and_saveexec_b64 s[92:93], vcc
        s_cbranch_execz {tag}x
        v_mov_b32 v4, 0
        """)
        for i in range(10):
            p(f"v_mov_b32 v2, s{60+2*i}")
            p(f"global_store_dword v4, v2, s[96:97] offset:{16+4*i}")
        p("v_mov_b32 v2, s90")
        p(f"global_store_dword v4, v2, s[96:97] offset:{16+40}")
        p.label(tag + 'x')
        p("s_mov_b64 exec, s[92:93]")
        p.label(tag)
        return
    p(f"""
    v_cmp_eq_u32 vcc, {o.stampwave*64}, v0
    s_and_saveexec_b64 s[92:93], vcc
    s_cbranch_execz {tag}
    s_lshl_b32 s94, s2, 7
    s_add_u32 s94, s94, {gen.WS_STAMP}
    s_add_u32 s96, s{sws}, s94
    s_addc_u32 s97, s{sws+1}, 0
    v_mov_b32 v4, 0
    """)
    for i in range(10):
        p(f"""
        v_mov_b32 v2, s{60+2*i}
        v_mov_b32 v3, s{61+2*i}
        global_store_dwordx2 v4, v[2:3], s[96:97] offset:{8*i}
        """)
    p(f"""
    v_mov_b32 v2, s90
    v_mov_b32 v3, s91
    global_store_dwordx2 v4, v[2:3], s[96:97] offset:80
    """)
    p.label(tag)
    p("s_mov_b64 exec, s[92:93]")

def gen_k2(o):
    p = Prog()
    sWo, sWs = 4, 6
    rW, rO = 8, 12
    sWave, sXc, sB, sNg, sT0, sT1, sT2, sQt, sKh2 = 20, 21, 22, 23, 24, 25, 26, 27, 28
    vL = 1; vOff = 10; vLA = 19; vAd = 20; vAcc = 28; vB = 64; vF = 96
    p(f"""
    s_cmp_ge_u32 s2, 256
    s_cbranch_scc1 K2_END
    s_load_dwordx2 s[4:5], s[0:1], 32
    s_load_dwordx2 s[6:7], s[0:1], 56
    v_and_b32 v{vL}, 63, v0
    v_lshrrev_b32 v2, 6, v0
    s_and_b32 s{sXc}, s2, 7
    s_lshr_b32 s{sT1}, s2, 3
    v_readfirstlane_b32 s{sWave}, v2
    s_lshr_b32 s{sB}, s{sT1}, 2
    s_and_b32 s{sNg}, s{sT1}, 3
    s_and_b32 s{sQt}, s{sWave}, 3
    s_lshr_b32 s{sKh2}, s{sWave}, 2
    s_movk_i32 s{sT0}, 3641
    s_movk_i32 s{sT1}, 1152
    """)
    for i in range(9):
        p(f"""
        v_add_u32 v2, {64*i}, v{vL}
        v_mul_u32_u24 v3, s{sT0}, v2
        v_lshrrev_b32 v3, 16, v3
        v_mul_u32_u24 v4, 18, v3
        v_sub_u32 v4, v2, v4
        v_mul_u32_u24 v3, s{sT1}, v3
        v_lshl_add_u32 v3, v4, 4, v3
        v_subrev_u32 v{vOff+i}, {(i%4)*1024}, v3
        """)
    p(f"""
    v_lshrrev_b32 v2, 4, v{vL}
    v_and_b32 v3, 15, v{vL}
    v_lshrrev_b32 v4, 2, v3
    v_and_b32 v6, 3, v3
    v_lshl_add_u32 v2, v2, 2, v4
    v_mul_u32_u24 v2, 288, v2
    v_lshl_add_u32 v{vLA}, v6, 3, v2
    v_lshlrev_b32 v5, 4, v{vL}
    s_waitcnt lgkmcnt(0)
    """)
    stamp(p, o, 0)
    p(f"""
    s_mul_i32 s{sT0}, s{sXc}, {512*1152}
    s_mul_i32 s{sT1}, s{sNg}, 288
    s_add_u32 s{sT0}, s{sT0}, s{sT1}
    s_add_u32 s{rW}, s{sWo}, s{sT0}
    s_addc_u32 s{rW+1}, s{sWo+1}, 0
    s_sub_u32 s{rW+2}, {4096*1152}, s{sT0}
    s_mov_b32 s{rW+3}, 0x20000
    s_mov_b32 s{rO}, s{sWs}
    s_mov_b32 s{rO+1}, s{sWs+1}
    s_mov_b32 s{rO+2}, {WS_SIZE}
    s_mov_b32 s{rO+3}, 0x20000
    """)
    for rep in range(2):
        p(f"""
        s_add_u32 s{sT0}, s{sWave}, {8*rep}
        s_mul_i32 s{sT1}, s{sT0}, 9216
        s_mul_i32 s{sT0}, s{sT0}, 36864
        """)
        for i in range(9):
            if i % 4 == 0:
                p(f"s_add_u32 m0, s{sT1}, {(i//4)*4096}")
            p(f"buffer_load_dwordx4 v{vOff+i}, s[{rW}:{rW+3}], s{sT0} offen offset:{(i%4)*1024} lds")
    p(f"""
    s_lshl_b32 s{sT0}, s{sB}, 3
    s_add_u32 s{sT0}, s{sT0}, s{sXc}
    s_lshl_b32 s{sT0}, s{sT0}, 2
    s_lshl_b32 s{sT1}, s{sKh2}, 1
    s_add_u32 s{sT0}, s{sT0}, s{sT1}
    s_lshl_b32 s{sT0}, s{sT0}, 14
    s_lshl_b32 s{sT1}, s{sQt}, 12
    s_add_u32 s{sT0}, s{sT0}, s{sT1}
    s_add_u32 s{sT1}, s{sT0}, 16384
    """)
    for kk in range(8):
        p(f"buffer_load_dwordx4 {rg(vB+4*kk,4)}, v5, s[{rO}:{rO+3}], s{sT0 if kk < 4 else sT1} offen offset:{(kk&3)*1024}")
    for i in range(36):
        p(f"v_mov_b32 v{vAcc+i}, 0")
    p(f"""
    s_waitcnt vmcnt(8)
    s_barrier
    s_mul_i32 s{sT2}, s{sKh2}, {8*9216}
    """)
    stamp(p, o, 1)
    gemm_body(p, vAcc, vB, vF, vAd, vLA, f"v_add_u32 v{vAd}, s{sT2}, v{vLA}")
    stamp(p, o, 2)
    p(f"""
    s_barrier
    s_mul_i32 s{sT0}, s{sQt}, 9216
    v_add_u32 v2, s{sT0}, v5
    s_cmp_eq_u32 s{sKh2}, 0
    s_cbranch_scc0 K2_H1
    """)
    for nt in range(5, 9):
        p(f"ds_write_b128 v2, {rg(vAcc+4*nt,4)} offset:{nt*1024}")
    p("s_branch K2_H2")
    p.label("K2_H1")
    for nt in range(0, 5):
        p(f"ds_write_b128 v2, {rg(vAcc+4*nt,4)} offset:{nt*1024}")
    p.label("K2_H2")
    p(f"""
    s_lshl_b32 s{sT0}, s{sXc}, 3
    s_add_u32 s{sT0}, s{sT0}, s{sB}
    s_lshl_b32 s{sT0}, s{sT0}, 2
    s_add_u32 s{sT0}, s{sT0}, s{sNg}
    s_lshl_b32 s{sT0}, s{sT0}, 2
    s_add_u32 s{sT0}, s{sT0}, s{sQt}
    s_mul_i32 s{sT0}, s{sT0}, 9216
    s_add_u32 s{sT0}, s{sT0}, {WS_PART}
    s_waitcnt lgkmcnt(0)
    s_barrier
    s_cmp_eq_u32 s{sKh2}, 0
    s_cbranch_scc0 K2_H3
    """)
    def fin(nts):
        for nt in nts:
            p(f"ds_read_b128 {rg(vF+4*nt,4)}, v2 offset:{nt*1024}")
        for idx, nt in enumerate(nts):
            p(f"s_waitcnt lgkmcnt({len(nts)-1-idx})")
            for e in range(4):
                p(f"v_add_f32 v{vAcc+4*nt+e}, v{vAcc+4*nt+e}, v{vF+4*nt+e}")
            p(f"s_add_u32 s{sT1}, s{sT0}, {(nt//4)*4096}")
            p(f"buffer_store_dwordx4 {rg(vAcc+4*nt,4)}, v5, s[{rO}:{rO+3}], s{sT1} offen offset:{(nt%4)*1024}")
    fin(list(range(0, 5)))
    p("s_branch K2_H4")
    p.label("K2_H3")
    fin(list(range(5, 9)))
    p.label("K2_H4")
    if o.stamps:
        stamp(p, o, 3)
        p("s_waitcnt vmcnt(0)")
        stamp(p, o, 4)
        stamp_flush(p, o, 1, 5, sWs)
    p.label("K2_END")
    p("s_endpgm")
    return p

def gen_k3(o):
    gen.WS_PART = WS_PART
    return gen.gen_k3(o)

def emit(o):
    ks = [('standalone__gqa_block_cached__near_ridge_kernel' if o.fuse == 2 else 'gqa_main_kernel', gen_main(o), 256, 512, 163840)]
    if o.fuse == 0:
        ks += [('gqa_oproj_kernel', gen_k2(o), 256, 512, 147456)]
    if o.fuse <= 1:
        ks += [('gqa_reduce_kernel', gen_k3(o), 288, 256, 0)]
    if o.dbg == 2:
        ks = ks[:1]
    out = [HEADER.rstrip()]
    for name, _, g, b, lds in ks:
        if len(ks) == 1 and o.fuse == 2:
            out.append(f"; @launch grid=({g},1,1) block=({b},1,1) lds={lds}")
        else:
            out.append(f"; @launch kernel={name} grid=({g},1,1) block=({b},1,1) lds={lds}")
    out.append('.amdgcn_target "amdgcn-amd-amdhsa--gfx950"')
    out.append('.text')
    for name, p, g, b, lds in ks:
        n = p.fix_hazards()
        errs = p.lint_waits()
        for e in errs[:20]:
            print(f"LINT[{name}]: {e}", file=sys.stderr)
        nv, ns = p.max_regs()
        print(f"{name}: {len(p.ins)} instrs, vgpr {nv}, sgpr {ns}, nops inserted {n}", file=sys.stderr)
        out.append(f".globl {name}\n.p2align 8\n.type {name},@function\n{name}:")
        out.append(p.text())
        out.append(kd(name, max(nv, 8), max(ns, 16)))
    return '\n'.join(out) + '\n'

if __name__ == '__main__':
    ap = argparse.ArgumentParser()
    ap.add_argument('-o', default='standalone__gqa_block_cached__near_ridge.s')
    for k, d in OPTS.items():
        ap.add_argument('--' + k, type=int, default=d)
    a = ap.parse_args()
    o = Opt()
    for k in OPTS:
        setattr(o, k, getattr(a, k))
    open(a.o, 'w').write(emit(o))
```

```python
import sys, argparse
from asmlib import Prog
import gen
from gen import f32bits, SCALE_LOG2E, stamp_flush, kd, HEADER
from gen import stamp as _stamp
STSETS = {0: {0:0,1:1,2:2,3:3,4:4,5:5,6:6,7:7,8:8,9:9},
          1: {5:0, 'e1':1, 'e2':2, 'e3':3, 'e4':4, 6:5, 7:6, 'g0':7, 8:8, 9:9},
          3: {'c0':0,'c1':1,'c2':2,'c3':3,'c4':4,'c5':5,'c6':6,'c7':7,'c8':8, 2:9},
          4: {0:0,'c0':1,'w1':2,'c1':3,'m1':4,'w2':5,'c2':6,'m2':7,'w3':8,'c3':9},
          2: {7:0, 'g0':1, 8:2, 'r1':3, 'r2':4, 'r3':5, 9:6, 'p1':7, 'p2':8, 'p3':9}}
def stamp(p, o, name):
    m = STSETS[getattr(o, 'stset', 0)]
    if name in m: _stamp(p, o, m[name])


WS_O = 0
WS_PART = 4 << 20
WS_FLAG = 16 << 20
WS_SIZE = 17 << 20
MF = 'v_mfma_f32_32x32x16_bf16'
MF16 = 'v_mfma_f32_16x16x32_bf16'
def rg(b, n): return f"v[{b}:{b+n-1}]" if n > 1 else f"v{b}"

class Opt(gen.Opt):
    pass

OPTS = dict(v7e=1, fast=1, icpf=4, tlb=2, lead=4, outsc=1, prepoll=1, early=1, dry=0, dmapos=1, skew=0, stset=0, nt=1, dbg=0, stamps=0, stampwave=0, wt=1, kdel=5, k1del=5, late=0, fuse=2, wot=1)
SPIN = 1 << 18

def gen_main(o):
    p = Prog()
    NT = ' nt' if o.nt else ''
    sX, sK, sV, sWq, sWs, sWo = 4, 6, 8, 10, 12, 14
    rK, rV, rW, rX, rO = 16, 20, 24, 28, 32
    sWave, sB, sH, sXc, sQh, sKq = 36, 37, 38, 39, 40, 41
    sRK, sRV, sOff, sIss, sCnt, sJj = 42, 43, 44, 45, 46, 47
    sC, sT0, sT1, sT2 = 48, 49, 50, 51
    sW4096, sWg = 53, 54
    sPar, sStep, sEK, sRngV, sKprev, sOffB = 55, 56, 57, 52, 98, 99
    vOb = 250
    sOut, sDbg, sN, sTag = 80, 82, 84, 86
    vL = 1
    vKo = 10; vVo = 14
    vWo = 15; vXo = 17; vLW = 21; vLX = 22
    vVA = 15; vTn = 19
    vLK = 23; vLV = 24
    vKA = 28
    vM, vThr, vL0, vL1 = 36, 37, 38, 39
    vQ = 40
    vS = [72, 88]
    vP = 104
    vKf = 112
    vVf = 144
    vO = 176
    vOff = 240
    vDum = 249
    vNon = 20
    R = [i * 32768 for i in range(5)]
    NS = o.lead + 1
    HL = o.lead // 2
    assert not o.skew
    QS = [139264, 65536, 90112, 114688]
    lab = [0]
    def nl(s):
        lab[0] += 1
        return f"K1_{s}{lab[0]}"
    vq = []
    def vissue(tag, n): vq.extend([tag] * n)
    def vneed(*tags):
        idx = [i for i, t in enumerate(vq) if t in tags]
        if not idx: return 63
        n = len(vq) - 1 - idx[-1]
        del vq[:idx[-1] + 1]
        return min(n, 63)

    p(f"""
    s_cmp_ge_u32 s2, 256
    s_cbranch_scc1 K1_END
    s_load_dwordx4 s[4:7], s[0:1], 0
    s_load_dwordx4 s[8:11], s[0:1], 16
    s_load_dwordx2 s[12:13], s[0:1], 56
    s_load_dwordx2 s[14:15], s[0:1], 32
    s_load_dwordx4 s[80:83], s[0:1], 40
    """)
    if o.icpf:
        ICL = o.icpf
        p(f"""
        s_getpc_b64 s[90:91]
        """)
        p.label("K1_PCREF")
        p(f"""
        s_mov_b32 s93, K1_END-K1_PCREF
        v_cmp_gt_u32 vcc, {ICL}, v0
        s_and_saveexec_b64 s[58:59], vcc
        s_cbranch_execz K1_ICD
        s_lshr_b32 s92, s2, 3
        s_mul_i32 s92, s92, {ICL*128}
        v_lshlrev_b32 v2, 7, v0
        v_add_u32 v2, s92, v2
        v_min_u32 v2, s93, v2
        global_load_dword v{vDum}, v2, s[90:91]
        """)
        p.label("K1_ICD")
        p("s_mov_b64 exec, s[58:59]")
    p(f"""
    v_and_b32 v{vL}, 63, v0
    v_lshrrev_b32 v2, 6, v0
    s_and_b32 s{sXc}, s2, 7
    s_lshr_b32 s{sT1}, s2, 3
    v_readfirstlane_b32 s{sWave}, v2
    s_lshr_b32 s{sB}, s{sT1}, 2
    s_and_b32 s{sJj}, s{sT1}, 3
    s_lshl_b32 s{sH}, s{sXc}, 2
    s_add_u32 s{sH}, s{sH}, s{sJj}
    s_lshl_b32 s{sWg}, s{sB}, 5
    s_add_u32 s{sWg}, s{sWg}, s{sH}
    s_and_b32 s{sQh}, s{sWave}, 1
    s_lshr_b32 s{sKq}, s{sWave}, 1
    s_and_b32 s{sPar}, s{sH}, {1 if o.skew else 0}
    s_lshl_b32 s{sW4096}, s{sWave}, 12
    s_mov_b32 s{sC}, 0x{f32bits(SCALE_LOG2E):08x}
    v_and_b32 v2, 15, v{vL}
    v_lshrrev_b32 v3, 4, v{vL}
    v_lshrrev_b32 v4, 2, v2
    v_and_b32 v5, 3, v2
    v_lshrrev_b32 v6, 5, v{vL}
    v_and_b32 v7, 31, v{vL}
    v_lshlrev_b32 v8, 2, v3
    v_xor_b32 v8, v8, v2
    v_lshlrev_b32 v8, 4, v8
    v_lshl_add_u32 v{vVo}, v3, 8, v8
    v_lshl_add_u32 v{vWo}, v3, 13, v8
    v_add_u32 v{vWo+1}, 31744, v{vWo}
    s_lshl_b32 s{sT0}, s{sWave}, 3
    s_movk_i32 s{sT1}, 1152
    v_lshrrev_b32 v8, 3, v{vL}
    v_add_u32 v8, s{sT0}, v8
    v_mul_lo_u32 v8, v8, s{sT1}
    s_lshl_b32 s{sT0}, s{sWave}, 2
    v_add_u32 v9, s{sT0}, v3
    v_and_b32 v9, 7, v9
    v_and_b32 v{vXo}, 7, v{vL}
    v_xor_b32 v9, v9, v{vXo}
    v_lshl_add_u32 v{vXo}, v9, 4, v8
    """)
    p("s_waitcnt lgkmcnt(0)")
    stamp(p, o, 0)
    p(f"""
    s_lshl_b32 s{sT0}, s{sH}, 8
    s_add_u32 s{rW}, s{sWq}, s{sT0}
    s_addc_u32 s{rW+1}, s{sWq+1}, 0
    s_sub_u32 s{rW+2}, {576*8192}, s{sT0}
    s_mov_b32 s{rW+3}, 0x20000
    s_mul_i32 s{sT0}, s{sB}, {64*1152}
    s_add_u32 s{rX}, s{sX}, s{sT0}
    s_addc_u32 s{rX+1}, s{sX+1}, 0
    s_mov_b32 s{rX+2}, {64*1152}
    s_mov_b32 s{rX+3}, 0x20000
    """)

    def issue_chunk(c):
        qs = QS[c % 4]
        p(f"""
        s_lshl_b32 s{sT0}, s{sWave}, 16
        s_add_u32 s{sT0}, s{sT0}, {c*524288}
        s_lshr_b32 s{sT1}, s{sW4096}, 1
        s_add_u32 m0, s{sT1}, {qs}
        """)
        for u in range(2):
            p(f"buffer_load_dwordx4 v{vWo+u}, s[{rW}:{rW+3}], s{sT0} offen offset:{u*1024} lds")
        p(f"""
        s_lshr_b32 s{sT1}, s{sW4096}, 2
        s_add_u32 m0, s{sT1}, {qs+16384}
        s_movk_i32 s{sT0}, {c*128}
        buffer_load_dwordx4 v{vXo}, s[{rX}:{rX+3}], s{sT0} offen lds
        """)
        vissue(('C', c), 3)

    if o.wt:
        p(f"""
        s_cmp_eq_u32 s{sWave}, 4
        s_cbranch_scc0 K1_WT1
        v_lshrrev_b32 v8, 1, v{vL}
        v_and_b32 v9, 1, v{vL}
        v_lshlrev_b32 v8, 13, v8
        v_lshl_add_u32 v8, v9, 7, v8
        s_mul_i32 s{sT0}, s{sB}, {72*8192}
        buffer_load_dword v{vDum}, v8, s[{rW}:{rW+3}], s{sT0} offen
        s_add_u32 s{sT0}, s{sT0}, {32*8192}
        buffer_load_dword v{vDum}, v8, s[{rW}:{rW+3}], s{sT0} offen
        s_add_u32 s{sT0}, s{sT0}, {32*8192}
        v_cmp_gt_u32 vcc, 16, v{vL}
        s_and_saveexec_b64 s[58:59], vcc
        buffer_load_dword v{vDum}, v8, s[{rW}:{rW+3}], s{sT0} offen
        s_mov_b64 exec, s[58:59]
        """)
        p.label("K1_WT1")
        p(f"""
        s_cmp_eq_u32 s{sWave}, 5
        s_cbranch_scc0 K1_WT2
        v_lshlrev_b32 v9, 7, v{vL}
        s_mul_i32 s{sT0}, s{sJj}, 18432
        buffer_load_dword v{vDum}, v9, s[{rX}:{rX+3}], s{sT0} offen
        s_add_u32 s{sT0}, s{sT0}, 8192
        buffer_load_dword v{vDum}, v9, s[{rX}:{rX+3}], s{sT0} offen
        s_add_u32 s{sT0}, s{sT0}, 8192
        v_cmp_gt_u32 vcc, 16, v{vL}
        s_and_saveexec_b64 s[58:59], vcc
        buffer_load_dword v{vDum}, v9, s[{rX}:{rX+3}], s{sT0} offen
        s_mov_b64 exec, s[58:59]
        """)
        p.label("K1_WT2")
    for c in range(4):
        issue_chunk(c)
    if o.fuse:
        p(f"""
        s_cmp_eq_u32 s2, 0
        s_cbranch_scc0 K1_NON
        s_cmp_eq_u32 s{sWave}, 7
        s_cbranch_scc0 K1_NON
        s_memrealtime s[{sN}:{sN+1}]
        s_waitcnt lgkmcnt(0)
        s_or_b32 s{sN}, s{sN}, 1
        v_mov_b32 v8, s{sN}
        v_mov_b32 v9, s{sN+1}
        v_mov_b32 v{vNon}, 0
        v_cmp_eq_u32 vcc, 0, v{vL}
        s_and_saveexec_b64 s[58:59], vcc
        global_store_dwordx2 v{vNon}, v[8:9], s[{sDbg}:{sDbg+1}] sc1
        s_mov_b64 exec, s[58:59]
        """)
        p.label("K1_NON")
    p(f"""
    s_lshl_b32 s{sT0}, s{sB}, 4
    s_lshr_b32 s{sT1}, s{sH}, 1
    s_add_u32 s{sT0}, s{sT0}, s{sT1}
    s_lshl_b32 s{sT0}, s{sT0}, 18
    s_add_u32 s{rK}, s{sK}, s{sT0}
    s_addc_u32 s{rK+1}, s{sK+1}, 0
    s_mov_b32 s{rK+2}, 0x40000
    s_mov_b32 s{rK+3}, 0x20000
    s_add_u32 s{rV}, s{sV}, s{sT0}
    s_addc_u32 s{rV+1}, s{sV+1}, 0
    s_mov_b32 s{rV+2}, 0x40000
    s_mov_b32 s{rV+3}, 0x20000
    s_mov_b32 s{rO}, s{sWs}
    s_mov_b32 s{rO+1}, s{sWs+1}
    s_mov_b32 s{rO+2}, {WS_SIZE}
    s_mov_b32 s{rO+3}, 0x20000
    """)
    for u in range(4):
        p(f"""
        v_add_u32 v8, {4*u}, v3
        v_xor_b32 v8, v8, v2
        v_lshlrev_b32 v8, 4, v8
        v_lshl_add_u32 v{vKo+u}, v3, 8, v8
        """)

    def issue_kv(isK, tile, slot):
        p(f"""
        s_add_u32 s{sT0}, s{sW4096}, {tile*32768}
        s_add_u32 m0, s{sW4096}, {R[slot]}
        """)
        for u in range(4):
            if isK: p(f"buffer_load_dwordx4 v{vKo+u}, s[{rK}:{rK+3}], s{sT0} offen offset:{u*1024}{NT} lds")
            else:   p(f"buffer_load_dwordx4 v{vVo}, s[{rV}:{rV+3}], s{sT0} offen offset:{u*1024}{NT} lds")
        vissue(('K' if isK else 'V', tile), 4)
    def issue_v0k2():
        l1, l2 = nl('P'), nl('P')
        p(f"s_cmp_eq_u32 s{sPar}, 0")
        p(f"s_cbranch_scc0 {l1}")
        sv = list(vq)
        issue_kv(False, 0, 2); issue_kv(True, 2, 3)
        p(f"s_branch {l2}")
        p.label(l1)
        del vq[:]; vq.extend(sv)
        issue_kv(False, 0, 3); issue_kv(True, 2, 2)
        p.label(l2)
    if o.kdel < 0:
        issue_kv(True, 0, 0)
    if o.k1del < 0:
        issue_kv(True, 1, 1)

    p(f"""
    v_lshl_add_u32 v8, v6, 3, v4
    v_lshlrev_b32 v8, 8, v8
    v_and_b32 v9, 1, v3
    v_lshlrev_b32 v9, 1, v9
    v_and_b32 v{vLW}, 1, v5
    v_add_u32 v9, v9, v{vLW}
    s_lshl_b32 s{sT0}, s{sKq}, 2
    v_add_u32 v9, s{sT0}, v9
    v_lshlrev_b32 v{vLW}, 2, v4
    v_xor_b32 v9, v9, v{vLW}
    v_lshl_add_u32 v8, v9, 4, v8
    v_lshrrev_b32 v9, 1, v5
    v_lshl_add_u32 v{vLW}, v9, 3, v8
    s_lshl_b32 s{sT0}, s{sQh}, 5
    v_add_u32 v8, s{sT0}, v7
    v_lshrrev_b32 v9, 1, v8
    v_and_b32 v9, 7, v9
    v_xor_b32 v9, v9, v6
    v_lshlrev_b32 v9, 4, v9
    v_lshl_add_u32 v{vLX}, v8, 7, v9
    s_lshl_b32 s{sT0}, s{sKq}, 5
    v_add_u32 v8, s{sT0}, v7
    v_and_b32 v9, 15, v8
    v_xor_b32 v9, v9, v6
    v_lshlrev_b32 v9, 4, v9
    v_lshl_add_u32 v{vLK}, v8, 8, v9
    v_lshl_add_u32 v8, v6, 2, v4
    v_add_u32 v8, s{sT0}, v8
    v_lshlrev_b32 v8, 8, v8
    v_and_b32 v9, 1, v5
    v_lshl_add_u32 v8, v9, 3, v8
    v_and_b32 v9, 1, v3
    v_lshlrev_b32 v9, 1, v9
    v_lshrrev_b32 v2, 1, v5
    v_add_u32 v9, v9, v2
    v_lshlrev_b32 v2, 2, v4
    """)
    for a in range(4):
        p(f"""
        s_add_u32 s{sT1}, s{sKq}, {a}
        s_and_b32 s{sT1}, s{sT1}, 3
        s_lshl_b32 s{sT1}, s{sT1}, 2
        v_add_u32 v3, s{sT1}, v9
        v_xor_b32 v3, v3, v2
        v_lshl_add_u32 v{vLV+a}, v3, 4, v8
        """)
    for i in range(16):
        p(f"v_mov_b32 v{vS[0]+i}, 0")
    for i in range(64):
        p(f"v_mov_b32 v{vO+i}, 0")
    p(f"""
    v_mov_b32 v{vM}, 0xf149f2ca
    v_mov_b32 v{vThr}, 0xf149f2ca
    v_mov_b32 v{vL0}, 0
    v_mov_b32 v{vL1}, 0
    """)
    if o.fuse:
        p(f"""
        s_movk_i32 s{sT0}, 3641
        s_movk_i32 s{sT1}, 1152
        """)
        for i in range(9):
            p(f"""
            v_add_u32 v2, {64*i}, v{vL}
            v_mul_u32_u24 v3, s{sT0}, v2
            v_lshrrev_b32 v3, 16, v3
            v_mul_u32_u24 v4, 18, v3
            v_sub_u32 v4, v2, v4
            v_mul_u32_u24 v3, s{sT1}, v3
            v_lshl_add_u32 v3, v4, 4, v3
            v_subrev_u32 v{vOff+i}, {(i%4)*1024}, v3
            """)

    FB = [vKf, vVf]
    A0 = vKA
    def q_phase(c, reads, extra):
        f = FB[(c - 1) % 2]
        rd = list(reads); ex = list(extra)
        for ks in range(4):
            if c >= 1:
                p(f"{MF} {rg(vS[0],16)}, {rg(f+8*ks,4)}, {rg(f+8*ks+4,4)}, {rg(vS[0],16)}")
            for _ in range(3):
                if rd: p(rd.pop(0))
            if ex and ks >= 1: ex.pop(0)()
        for e in ex: e()
    for c in range(9):
        qs = QS[c % 4]
        f = FB[c % 2]
        n = vneed(('C', c))
        p(f"""
        v_add_u32 v{A0}, {qs}, v{vLW}
        v_add_u32 v{A0+1}, {qs+16384}, v{vLX}
        v_xor_b32 v{A0+2}, 32, v{A0+1}
        v_xor_b32 v{A0+3}, 64, v{A0+1}
        v_xor_b32 v{A0+4}, 96, v{A0+1}
        s_waitcnt vmcnt({n}) lgkmcnt(0)
        """)
        stamp(p, o, f'w{c}')
        p("s_barrier")
        if c == 0: stamp(p, o, 1)
        stamp(p, o, f'c{c}')
        reads = []
        for ks in range(4):
            reads.append(f"ds_read_b64_tr_b16 {rg(f+8*ks,2)}, v{A0} offset:{ks*4096}")
            reads.append(f"ds_read_b64_tr_b16 {rg(f+8*ks+2,2)}, v{A0} offset:{ks*4096+1024}")
            reads.append(f"ds_read_b128 {rg(f+8*ks+4,4)}, v{A0+1+ks}")
        extra = []
        if 1 <= c <= 5: extra.append(lambda c=c: issue_chunk(c + 3))
        if c == o.kdel:
            extra.append(lambda: issue_kv(True, 0, 0))
            if o.k1del == c: extra.append(lambda: issue_kv(True, 1, 1))
        elif c == o.k1del:
            extra.append(lambda: issue_kv(True, 1, 1))
        if c == 8 and o.late == 0 and o.lead == 4:
            extra.append(issue_v0k2)
        q_phase(c, reads, extra)
        stamp(p, o, f'm{c}')
    p("s_waitcnt lgkmcnt(0)")
    p("s_barrier")
    q_phase(9, [], [])
    stamp(p, o, 2)
    QX = R[4]
    p(f"""
    s_lshl_b32 s{sT0}, s{sQh}, 13
    s_lshl_b32 s{sT1}, s{sKq}, 11
    s_add_u32 s{sT1}, s{sT1}, s{sT0}
    s_add_u32 s{sT1}, s{sT1}, {QX}
    s_add_u32 s{sT0}, s{sT0}, {QX}
    v_lshlrev_b32 v2, 4, v{vL}
    v_add_u32 v3, s{sT1}, v2
    v_add_u32 v2, s{sT0}, v2
    """)
    p(f"v_mov_b32 v{vKA}, v{vLK}")
    for s in range(1, 8):
        p(f"v_xor_b32 v{vKA+s}, {s<<5}, v{vLK}")
    for j in range(8):
        p(f"v_cvt_pk_bf16_f32 v{vP+j}, v{vS[0]+2*j}, v{vS[0]+2*j+1}")
    p(f"""
    ds_write_b128 v3, {rg(vP,4)}
    ds_write_b128 v3, {rg(vP+4,4)} offset:1024
    s_waitcnt lgkmcnt(0)
    s_barrier
    """)
    for s in range(8):
        p(f"ds_read_b128 {rg(vQ+4*s,4)}, v2 offset:{s*1024}")
    if o.kdel > 8: issue_kv(True, 0, 0)
    if o.k1del > 8: issue_kv(True, 1, 1)
    if o.late and o.lead == 4:
        issue_v0k2()

    def k_addrs(sreg):
        p(f"v_add_u32 v{vKA}, s{sreg}, v{vLK}")
        for s in range(1, 8):
            p(f"v_xor_b32 v{vKA+s}, {s<<5}, v{vKA}")
    def v_addrs(sreg):
        for a in range(4):
            p(f"v_add_u32 v{vVA+a}, s{sreg}, v{vLV+a}")
    def advance_slot(s):
        p(f"""
        s_add_u32 s{s}, s{s}, 32768
        s_cmp_eq_u32 s{s}, {5*32768}
        s_cselect_b32 s{s}, 0, s{s}
        """)
    def tmax(S):
        p(f"""
        v_max3_f32 v2, v{S}, v{S+1}, v{S+2}
        v_max3_f32 v3, v{S+3}, v{S+4}, v{S+5}
        v_max3_f32 v2, v2, v{S+6}, v{S+7}
        v_max3_f32 v3, v3, v{S+8}, v{S+9}
        v_max3_f32 v2, v2, v{S+10}, v{S+11}
        v_max3_f32 v3, v3, v{S+12}, v{S+13}
        v_max3_f32 v2, v2, v{S+14}, v{S+15}
        v_max_f32 v2, v2, v3
        v_mov_b32 v3, v2
        s_nop 1
        v_permlane32_swap_b32 v2, v3
        v_max_f32 v2, v2, v3
        v_mul_f32 v{vTn}, s{sC}, v2
        """)

    n = vneed(('K', 0))
    p(f"s_waitcnt vmcnt({n}) lgkmcnt(0)")
    p("s_barrier")
    stamp(p, o, 3)
    for s in range(8):
        p(f"ds_read_b128 {rg(vKf+4*s,4)}, v{vKA+s}")
    if o.lead == 4: issue_kv(False, 1, 4)
    else: issue_kv(False, 0, 2)
    p(f"s_mov_b32 s{sRK}, {R[1]}")
    n = vneed(('K', 1))
    p(f"s_waitcnt vmcnt({n}) lgkmcnt(0)")
    p("s_barrier")
    k_addrs(sRK)
    for s in range(8):
        c = '0' if s == 0 else rg(vS[0], 16)
        p(f"{MF} {rg(vS[0],16)}, {rg(vKf+4*s,4)}, {rg(vQ+4*s,4)}, {c}")
    for s in range(8):
        p(f"ds_read_b128 {rg(vKf+4*s,4)}, v{vKA+s}")
    if o.lead == 4: issue_kv(True, 3, 0)
    else: issue_kv(True, 2, 0)
    p(f"""
    s_mov_b32 s{sKprev}, {R[1]}
    s_mov_b32 s{sRV}, {R[2]}
    s_mov_b32 s{sRK}, {R[3 % NS]}
    s_add_u32 s{sOff}, s{sW4096}, {HL*32768}
    s_add_u32 s{sOffB}, s{sW4096}, {(2+HL)*32768}
    s_mov_b32 s{sStep}, 32768
    s_mov_b32 s{sCnt}, 0
    """)
    v_addrs(sRV)
    k_addrs(sRK)
    tmax(vS[0])

    W = {}
    q2 = list(vq)
    def need2(tag):
        idx = [i for i, t in enumerate(q2) if t == tag]
        if not idx: return 63
        n = len(q2) - 1 - idx[-1]
        del q2[:idx[-1] + 1]
        return min(n, 63)
    for i in range(8):
        W[('a', i)] = need2(('V', i))
        if i <= 5 or (i == 6 and o.lead == 2): q2.extend([('V', i + HL) if not (o.v7e and i == 5) else ('D', 0)] * 4)
        if i <= 5:
            W[('b', i)] = need2(('K', i + 2))
            q2.extend([('K', i + 2 + HL) if not (o.v7e and i == 4) else ('V', 7)] * 4)
    print('loop waits', W, file=sys.stderr)

    def alpha(tag, cur, do_qk, issue, wv):
        S, Sn = vS[cur], vS[1 - cur]
        p(f"""
        s_waitcnt vmcnt({wv}) lgkmcnt(0)
        s_barrier
        v_cmp_gt_f32 vcc, v{vTn}, v{vThr}
        s_cbranch_vccnz K1_RS{tag}
        """)
        p.label(f"K1_BK{tag}")
        reads = [(a, ks, h) for a in range(4) for ks in range(2) for h in range(2)]
        for j in range(8):
            if do_qk:
                c = '0' if j == 0 else rg(Sn, 16)
                p(f"{MF} {rg(Sn,16)}, {rg(vKf+4*j,4)}, {rg(vQ+4*j,4)}, {c}")
            for (a, ks, h) in reads[2*j:2*j+2]:
                f = vVf + (a * 2 + ks) * 4 + 2 * h
                p(f"ds_read_b64_tr_b16 {rg(f,2)}, v{vVA+a} offset:{ks*4096+h*2048}")
            p(f"v_fma_f32 v{S+2*j}, v{S+2*j}, s{sC}, -v{vM}")
            p(f"v_fma_f32 v{S+2*j+1}, v{S+2*j+1}, s{sC}, -v{vM}")
            p(f"v_exp_f32 v{S+2*j}, v{S+2*j}")
            p(f"v_exp_f32 v{S+2*j+1}, v{S+2*j+1}")
            if j >= 1:
                k = j - 1
                p(f"v_cvt_pk_bf16_f32 v{vP+k}, v{S+2*k}, v{S+2*k+1}")
                p(f"v_add_f32 v{vL0}, v{vL0}, v{S+2*k}")
                p(f"v_add_f32 v{vL1}, v{vL1}, v{S+2*k+1}")
            if issue and j == 0:
                p(f"s_add_u32 m0, s{sKprev}, s{sW4096}")
            if issue and o.dmapos == 0 and j in (1, 3, 5, 7):
                u = (j - 1) // 2
                p(f"buffer_load_dwordx4 v{vVo}, s[{rV}:{rV+3}], s{sOff} offen offset:{u*1024}{NT} lds")
        p(f"v_cvt_pk_bf16_f32 v{vP+7}, v{S+14}, v{S+15}")
        p(f"v_add_f32 v{vL0}, v{vL0}, v{S+14}")
        p(f"v_add_f32 v{vL1}, v{vL1}, v{S+15}")
        if issue and o.dmapos == 1:
            for u in range(4):
                p(f"buffer_load_dwordx4 v{vVo}, s[{rV}:{rV+3}], s{sOff} offen offset:{u*1024}{NT} lds")
        if issue:
            p(f"s_add_u32 s{sOff}, s{sOff}, s{sStep}")

    def beta(tag, cur, read_k, issue, do_tmax, wv, barrier=True, extra=None):
        Sn = vS[1 - cur]
        p(f"s_waitcnt vmcnt({wv}) lgkmcnt(0)")
        if barrier: p("s_barrier")
        n = 0
        for a in range(4):
            for ks in range(2):
                f = vVf + (a * 2 + ks) * 4
                p(f"{MF} {rg(vO+16*a,16)}, {rg(f,4)}, {rg(vP+4*ks,4)}, {rg(vO+16*a,16)}")
                if read_k:
                    p(f"ds_read_b128 {rg(vKf+4*n,4)}, v{vKA+n}")
                if issue and n == 0:
                    p(f"s_add_u32 m0, s{sRV}, s{sW4096}")
                if issue and o.dmapos == 0 and n in (1, 3, 5, 7):
                    u = (n - 1) // 2
                    p(f"buffer_load_dwordx4 v{vKo+u}, s[{rK}:{rK+3}], s{sOffB} offen offset:{u*1024}{NT} lds")
                if n == 2 and do_tmax:
                    tmax(Sn)
                n += 1
        if issue and o.dmapos == 1:
            pass
        if issue and o.dmapos == 1:
            for u in range(4):
                p(f"buffer_load_dwordx4 v{vKo+u}, s[{rK}:{rK+3}], s{sOffB} offen offset:{u*1024}{NT} lds")
        if issue:
            p(f"s_add_u32 s{sOffB}, s{sOffB}, 32768")
        p(f"""
        s_mov_b32 s{sKprev}, s{sRK}
        s_add_u32 s{sRV}, s{sRV}, 65536
        s_cmp_ge_u32 s{sRV}, {NS*32768}
        s_cselect_b32 s{sT0}, {NS*32768}, 0
        s_sub_u32 s{sRV}, s{sRV}, s{sT0}
        s_add_u32 s{sRK}, s{sRK}, 65536
        s_cmp_ge_u32 s{sRK}, {NS*32768}
        s_cselect_b32 s{sT0}, {NS*32768}, 0
        s_sub_u32 s{sRK}, s{sRK}, s{sT0}
        """)
        v_addrs(sRV)
        k_addrs(sRK)
        if extra: extra()

    def rescale(tag):
        p.label(f"K1_RS{tag}")
        p(f"""
        v_max_f32 v3, v{vTn}, v{vM}
        v_sub_f32 v4, v{vM}, v3
        v_exp_f32 v4, v4
        v_mov_b32 v{vM}, v3
        v_add_f32 v{vThr}, 0x41000000, v3
        """)
        p(f"v_mul_f32 v{vL0}, v{vL0}, v4")
        p(f"v_mul_f32 v{vL1}, v{vL1}, v4")
        for i in range(64):
            p(f"v_mul_f32 v{vO+i}, v{vO+i}, v4")
        p(f"s_branch K1_BK{tag}")

    def wo_srd():
        p(f"""
        s_mul_i32 s{sT0}, s{sXc}, {512*1152}
        s_mul_i32 s{sT1}, s{sJj}, 288
        s_add_u32 s{sT0}, s{sT0}, s{sT1}
        s_add_u32 s{rW}, s{sWo}, s{sT0}
        s_addc_u32 s{rW+1}, s{sWo+1}, 0
        s_sub_u32 s{rW+2}, {4096*1152}, s{sT0}
        s_mov_b32 s{rW+3}, 0x20000
        """)
    def wo_touch():
        if not (o.fuse and o.wot): return
        l = nl('WOT')
        p(f"""
        s_cmp_eq_u32 s{sCnt}, 1
        s_cbranch_scc0 {l}
        s_cmp_eq_u32 s{sWave}, 6
        s_cbranch_scc0 {l}
        s_mul_i32 s{sT0}, s{sXc}, {512*1152}
        s_add_u32 s{rX}, s{sWo}, s{sT0}
        s_addc_u32 s{rX+1}, s{sWo+1}, 0
        s_mov_b32 s{rX+2}, {512*1152}
        s_mov_b32 s{rX+3}, 0x20000
        s_lshr_b32 s{sT0}, s2, 3
        s_mul_i32 s{sT0}, s{sT0}, 18432
        v_lshlrev_b32 v2, 7, v{vL}
        buffer_load_dword v{vDum}, v2, s[{rX}:{rX+3}], s{sT0} offen
        s_add_u32 s{sT0}, s{sT0}, 8192
        buffer_load_dword v{vDum}, v2, s[{rX}:{rX+3}], s{sT0} offen
        s_add_u32 s{sT0}, s{sT0}, 8192
        v_cmp_gt_u32 vcc, 16, v{vL}
        s_and_saveexec_b64 s[58:59], vcc
        buffer_load_dword v{vDum}, v2, s[{rX}:{rX+3}], s{sT0} offen
        s_mov_b64 exec, s[58:59]
        """)
        p.label(l)
        if o.tlb:
            l = nl('TLB')
            p(f"""
            s_cmp_eq_u32 s{sCnt}, {o.tlb - 1}
            s_cbranch_scc0 {l}
            s_cmp_eq_u32 s{sWave}, 5
            s_cbranch_scc0 {l}
            s_lshl_b32 s{sT0}, s{sB}, 2
            s_add_u32 s{sT0}, s{sT0}, s{sJj}
            s_mul_i32 s{sT0}, s{sT0}, 36864
            s_add_u32 s{sT0}, s{sT0}, {WS_PART}
            v_mul_u32_u24 v2, 1152, v{vL}
            v_lshlrev_b32 v2, 10, v2
            v_add_u32 v2, s{sT0}, v2
            s_lshl_b32 s{sT0}, s{sWg}, 14
            v_mov_b32 v3, s{sT0}
            v_cmp_eq_u32 vcc, 8, v{vL}
            s_lshl_b32 s{sT0}, s{sWg}, 7
            s_add_u32 s{sT0}, s{sT0}, {WS_FLAG}
            v_cndmask_b32 v2, v2, v3, vcc
            v_mov_b32 v3, s{sT0}
            v_cmp_eq_u32 vcc, 9, v{vL}
            s_mul_i32 s{sT0}, s{sB}, {64*1152}
            v_mov_b32 v4, s{sT0}
            v_cndmask_b32 v2, v2, v3, vcc
            s_mov_b64 s[58:59], exec
            s_mov_b64 exec, 0x3ff
            buffer_load_dword v{vDum}, v2, s[{rO}:{rO+3}], 0 offen sc1
            s_mov_b64 exec, 1
            global_load_dword v{vDum}, v4, s[{sOut}:{sOut+1}] sc1
            s_mov_b64 exec, s[58:59]
            """)
            p.label(l)

    wm = lambda keys: min(W[k] for k in keys)
    loop_start = len(p.ins)
    p.label("K1_LOOP")
    alpha('L0', 0, True, True, wm([('a', 0), ('a', 2), ('a', 4)]))
    beta('L0', 0, True, True, True, wm([('b', 0), ('b', 2), ('b', 4)]))
    alpha('L1', 1, True, True, wm([('a', 1), ('a', 3), ('a', 5)]))
    beta('L1', 1, True, True, True, wm([('b', 1), ('b', 3), ('b', 5)]), extra=wo_touch)
    p(f"s_add_u32 s{sCnt}, s{sCnt}, 1")
    if o.v7e:
        assert o.lead == 4
        p(f"""
        s_cmp_eq_u32 s{sCnt}, 2
        s_cbranch_scc0 K1_V7E
        s_mov_b32 s{rK}, s{rV}
        s_mov_b32 s{rK+1}, s{rV+1}
        s_add_u32 s{sOffB}, s{sW4096}, {7*32768}
        s_mov_b32 s{sStep}, 65536
        """)
        for u in range(4): p(f"v_mov_b32 v{vKo+u}, v{vVo}")
        p.label("K1_V7E")
    p(f"""
    s_cmp_lt_u32 s{sCnt}, 3
    s_cbranch_scc1 K1_LOOP
    """)
    if o.dry:
        keep = []
        for x in p.ins[loop_start:]:
            drop = False
            if o.dry & 1 and x.kind == 'mfma': drop = True
            if o.dry & 2 and x.kind == 'ds': drop = True
            if o.dry & 4 and x.kind == 'valu' and not x.op.startswith('v_cmp'): drop = True
            if not drop: keep.append(x)
        p.ins[loop_start:] = keep
    stamp(p, o, 4)
    if o.fuse:
        p(f"""
        s_cmp_eq_u32 s{sWave}, 7
        s_cbranch_scc0 K1_NL
        v_mov_b32 v8, 0
        global_load_dwordx2 v[{vNon}:{vNon+1}], v8, s[{sDbg}:{sDbg+1}] sc1
        """)
        p.label("K1_NL")
    if o.lead == 4:
        STAT, NONL, OX = 0, 4096, R[2]
        NEARLY = 5 if o.early else 0
        def wo_addr(G): return 16384 + G * 9216
    else:
        STAT, NONL, OX = 98304, 102400, 0
        NEARLY = 6 if o.early else 0
        def wo_addr(G): return (108544 + G * 9216) if G < 6 else (G - 6) * 9216
    def wo_group_dma(gexpr_sgpr):
        p(f"s_mul_i32 s{sT1}, s{gexpr_sgpr}, 9216")
        if o.lead == 4:
            p(f"s_add_u32 s{sT1}, s{sT1}, 16384")
        else:
            p(f"""
            s_add_u32 s{sT0}, s{sT1}, 108544
            s_sub_u32 s{sT1}, s{sT1}, {6*9216}
            s_cmp_lt_u32 s{gexpr_sgpr}, 6
            s_cselect_b32 s{sT1}, s{sT0}, s{sT1}
            """)
        p(f"s_mul_i32 s{sT0}, s{gexpr_sgpr}, 36864")
        for i in range(9):
            if i % 4 == 0:
                p(f"s_add_u32 m0, s{sT1}, {(i//4)*4096}")
            p(f"buffer_load_dwordx4 v{vOff+i}, s[{rW}:{rW+3}], s{sT0} offen offset:{(i%4)*1024} lds")
    def early_wo():
        p(f"""
        s_cmp_lt_u32 s{sWave}, {NEARLY}
        s_cbranch_scc0 K1_WG1
        """)
        wo_group_dma(sWave)
        p.label("K1_WG1")
    if o.fuse: wo_srd()
    EARLY_IN_LOOP = o.fuse and o.lead == 2 and NEARLY > 0
    alpha('A', 0, True, o.lead == 2, W[('a', 6)])
    def v7_ptr():
        p(f"s_mov_b32 s{sRV}, {R[0]}")
        v_addrs(sRV)
    beta('A', 0, False, False, True, 63, barrier=False, extra=(early_wo if EARLY_IN_LOOP else (v7_ptr if o.v7e else None)))
    if EARLY_IN_LOOP:
        assert W[('a', 7)] == 0
        p(f"""
        s_cmp_lt_u32 s{sWave}, {NEARLY}
        s_cbranch_scc0 K1_V7A
        s_waitcnt vmcnt(9)
        s_branch K1_V7B
        """)
        p.label("K1_V7A")
        p("s_waitcnt vmcnt(0)")
        p.label("K1_V7B")
        alpha('B', 1, False, False, 63)
    else:
        alpha('B', 1, False, False, W[('a', 7)])
    p("s_waitcnt lgkmcnt(0)" if EARLY_IN_LOOP else "s_waitcnt vmcnt(0) lgkmcnt(0)")
    for a in range(4):
        for ks in range(2):
            f = vVf + (a * 2 + ks) * 4
            p(f"{MF} {rg(vO+16*a,16)}, {rg(f,4)}, {rg(vP+4*ks,4)}, {rg(vO+16*a,16)}")
    stamp(p, o, 5)

    vS0 = vS[0]
    p(f"""
    v_add_f32 v{vL0}, v{vL0}, v{vL1}
    v_mov_b32 v{vL1}, v{vL0}
    s_nop 1
    v_permlane32_swap_b32 v{vL0}, v{vL1}
    v_add_f32 v{vThr}, v{vL0}, v{vL1}
    v_and_b32 v7, 31, v{vL}
    s_lshl_b32 s{sT0}, s{sKq}, 9
    s_lshl_b32 s{sT1}, s{sQh}, 8
    s_add_u32 s{sT0}, s{sT0}, s{sT1}
    s_add_u32 s{sT0}, s{sT0}, {STAT}
    s_add_u32 s{sT1}, s{sT1}, {STAT}
    v_lshlrev_b32 v7, 3, v7
    v_add_u32 v2, s{sT0}, v7
    v_add_u32 v7, s{sT1}, v7
    v_lshlrev_b32 v3, 4, v{vL}
    """)
    p("s_barrier")
    stamp(p, o, 'e1')
    p(f"""
    ds_write_b64 v2, v[{vM}:{vM+1}]
    """)
    if o.fuse:
        p(f"""
        s_cmp_eq_u32 s{sWave}, 7
        s_cbranch_scc0 K1_NON2
        s_mov_b32 s{sT2}, 0
        """)
        p.label("K1_NONP")
        p(f"""
        v_readfirstlane_b32 s{sT0}, v{vNon}
        s_add_u32 s{sT2}, s{sT2}, 1
        s_cmp_lg_u32 s{sT0}, 0
        s_cbranch_scc1 K1_NONOK
        s_cmp_lt_u32 s{sT2}, {SPIN}
        s_cbranch_scc0 K1_NONOK
        v_mov_b32 v8, 0
        global_load_dwordx2 v[{vNon}:{vNon+1}], v8, s[{sDbg}:{sDbg+1}] sc1
        s_waitcnt vmcnt(0)
        s_branch K1_NONP
        """)
        p.label("K1_NONOK")
        p(f"""
        v_mov_b32 v6, {NONL}
        ds_write_b64 v6, v[{vNon}:{vNon+1}]
        """)
        if o.fast:
            p(f"""
            s_and_b32 s{sT0}, s{sWg}, 0xfc
            s_lshl_b32 s{sT0}, s{sT0}, 7
            s_add_u32 s{sT0}, s{sT0}, {WS_FLAG}
            v_and_b32 v12, 3, v{vL}
            v_lshlrev_b32 v13, 7, v12
            buffer_load_dword v11, v13, s[{rO}:{rO+3}], s{sT0} offen sc1
            """)
        p.label("K1_NON2")
    for a in range(1, 4):
        p(f"""
        s_add_u32 s{sT0}, s{sKq}, {a}
        s_and_b32 s{sT0}, s{sT0}, 3
        s_lshl_b32 s{sT2}, s{sQh}, 2
        s_add_u32 s{sT0}, s{sT0}, s{sT2}
        s_mul_i32 s{sT0}, s{sT0}, 12288
        s_add_u32 s{sT0}, s{sT0}, {OX + (3-a)*4096}
        v_add_u32 v4, s{sT0}, v3
        """)
        for g in range(4):
            p(f"ds_write_b128 v4, {rg(vO+16*a+4*g,4)} offset:{g*1024}")
    if o.fuse and o.lead == 4 and NEARLY:
        early_wo()
    p(f"""
    s_lshl_b32 s{sT0}, s{sQh}, 2
    s_add_u32 s{sT0}, s{sT0}, s{sKq}
    s_mul_i32 s{sT0}, s{sT0}, 12288
    s_add_u32 s{sT0}, s{sT0}, {OX}
    v_add_u32 v4, s{sT0}, v3
    s_waitcnt lgkmcnt(0)
    """)
    stamp(p, o, 'e2')
    p("s_barrier")
    stamp(p, o, 'e3')
    for k in range(4):
        p(f"ds_read_b64 v[{vS0+2*k}:{vS0+2*k+1}], v7 offset:{k*512}")
    for i in range(3):
        for g in range(4):
            p(f"ds_read_b128 {rg(vO+16*(i+1)+4*g,4)}, v4 offset:{i*4096+g*1024}")
    if o.fuse:
        p(f"""
        v_mov_b32 v6, {NONL}
        ds_read_b64 v[8:9], v6
        s_waitcnt lgkmcnt(13)
        """)
    else:
        p("s_waitcnt lgkmcnt(12)")
    m = [vS0 + 0, vS0 + 2, vS0 + 4, vS0 + 6]; l = [vS0 + 1, vS0 + 3, vS0 + 5, vS0 + 7]
    p(f"""
    v_max3_f32 v2, v{m[0]}, v{m[1]}, v{m[2]}
    v_max_f32 v2, v2, v{m[3]}
    """)
    for k in range(4):
        p(f"v_sub_f32 v{m[k]}, v{m[k]}, v2")
    for k in range(4):
        p(f"v_exp_f32 v{m[k]}, v{m[k]}")
    p(f"""
    v_mul_f32 v3, v{m[0]}, v{l[0]}
    v_fmac_f32 v3, v{m[1]}, v{l[1]}
    v_fmac_f32 v3, v{m[2]}, v{l[2]}
    v_fmac_f32 v3, v{m[3]}, v{l[3]}
    v_rcp_f32 v3, v3
    """)
    for k in range(4):
        p(f"v_mul_f32 v{m[k]}, v{m[k]}, v3")
    wr = vS0 + 8
    for kq in range(4):
        p(f"s_cmp_eq_u32 s{sKq}, {kq}")
        p(f"s_cbranch_scc0 K1_WR{kq}")
        for i in range(4):
            p(f"v_mov_b32 v{wr+i}, v{m[(kq+i)&3]}")
        p.label(f"K1_WR{kq}")
    for i in range(16):
        p(f"v_mul_f32 v{vO+i}, v{vO+i}, v{wr}")
    nextra = 1 if o.fuse else 0
    for s in range(3):
        p(f"s_waitcnt lgkmcnt({8-4*s+nextra})")
        for i in range(16):
            p(f"v_fmac_f32 v{vO+i}, v{vO+16*(s+1)+i}, v{wr+s+1}")
    order = [0, 2, 1, 3]
    for idx, g in enumerate(order):
        p(f"v_cvt_pk_bf16_f32 v{vP+2*idx}, v{vO+4*g}, v{vO+4*g+1}")
        p(f"v_cvt_pk_bf16_f32 v{vP+2*idx+1}, v{vO+4*g+2}, v{vO+4*g+3}")
    if o.fuse and o.fast:
        p(f"""
        s_cmp_eq_u32 s{sWave}, 7
        s_cbranch_scc0 K1_RDY
        s_waitcnt vmcnt(0)
        v_cmp_eq_u32 vcc, v11, v{vNon}
        v_cmp_eq_u32 s[58:59], s{sJj}, v12
        s_or_b64 vcc, vcc, s[58:59]
        s_cmp_eq_u64 vcc, -1
        s_cselect_b32 s{sT0}, 1, 0
        v_mov_b32 v12, s{sT0}
        v_mov_b32 v6, {NONL+8}
        ds_write_b32 v6, v12
        """)
        p.label("K1_RDY")
    stamp(p, o, 'e4')
    SC = ' sc1' if o.fuse else ''
    p(f"""
    v_and_b32 v2, 15, v{vL}
    v_lshrrev_b32 v3, 5, v{vL}
    v_lshl_add_u32 v2, v3, 4, v2
    v_lshlrev_b32 v2, 4, v2
    v_bfe_u32 v3, v{vL}, 4, 1
    v_lshl_add_u32 v2, v3, 12, v2
    s_lshl_b32 s{sT0}, s{sWg}, 14
    s_lshl_b32 s{sT1}, s{sQh}, 13
    s_add_u32 s{sT0}, s{sT0}, s{sT1}
    s_lshl_b32 s{sT1}, s{sKq}, 10
    s_add_u32 s{sT0}, s{sT0}, s{sT1}
    buffer_store_dwordx4 {rg(vP,4)}, v2, s[{rO}:{rO+3}], s{sT0} offen{SC}
    buffer_store_dwordx4 {rg(vP+4,4)}, v2, s[{rO}:{rO+3}], s{sT0} offen offset:512{SC}
    """)
    if not o.fuse:
        if o.stamps:
            p("s_waitcnt vmcnt(0)")
            stamp(p, o, 6)
            stamp_flush(p, o, 0, 7, sWs)
        p("s_branch K1_END")
    else:
        tail(p, o, locals())
    for tag in ('L0', 'L1', 'A', 'B'):
        rescale(tag)
    p.label("K1_END")
    p("s_endpgm")
    return p

def gemm_body(p, vAcc, vB, vF, vAd, vLA, sKh2, sT, wo_addr, vm_base=0):
    HA, HB = list(range(0, 5)), list(range(5, 9))
    def addr(kk):
        c0, c1 = wo_addr(kk), wo_addr(8 + kk)
        p(f"""
        s_mov_b32 s{sT}, {c1}
        s_cmp_eq_u32 s{sKh2}, 0
        s_cselect_b32 s{sT}, {c0}, s{sT}
        v_add_u32 v{vAd + (kk & 1)}, s{sT}, v{vLA}
        """)
    def reads(kk, half):
        ad = vAd + (kk & 1)
        for nt in half:
            f = vF + 4 * nt
            p(f"ds_read_b64_tr_b16 {rg(f,2)}, v{ad} offset:{nt*32}")
            p(f"ds_read_b64_tr_b16 {rg(f+2,2)}, v{ad} offset:{4608+nt*32}")
    def mfmas(kk, half, younger):
        n = len(half)
        h1 = (n + 1) // 2
        for idx, nt in enumerate(half):
            f = vF + 4 * nt
            if idx == 0: p(f"s_waitcnt lgkmcnt({min(15, younger + 2*(n-h1))})")
            if idx == h1: p(f"s_waitcnt lgkmcnt({min(15, younger)})")
            p(f"{MF16} {rg(vAcc+4*nt,4)}, {rg(f,4)}, {rg(vB+4*kk,4)}, {rg(vAcc+4*nt,4)}")
    addr(0)
    reads(0, HA)
    for kk in range(8):
        reads(kk, HB)
        if kk < 7: addr(kk + 1)
        p(f"s_waitcnt vmcnt({7-kk+vm_base})")
        mfmas(kk, HA, 2 * len(HB))
        if kk < 7:
            reads(kk + 1, HA)
            mfmas(kk, HB, 2 * len(HA))
        else:
            mfmas(kk, HB, 0)

def tail(p, o, L):
    g = lambda n: L[n]
    sWave, sB, sXc, sJj, sWg, sT0, sT1, sT2 = g('sWave'), g('sB'), g('sXc'), g('sJj'), g('sWg'), g('sT0'), g('sT1'), g('sT2')
    rO, rW, rX, sN, sTag, sOut, sWs = g('rO'), g('rW'), g('rX'), g('sN'), g('sTag'), g('sOut'), g('sWs')
    vL, vOff, wo_addr, NEARLY = g('vL'), g('vOff'), g('wo_addr'), g('NEARLY')
    wo_group_dma = g('wo_group_dma')
    sQt, sKh2 = 40, 41
    vAcc, vB, vF, vLA, vAd = 28, 64, 96, 19, 20
    p(f"""
    s_waitcnt vmcnt(0) lgkmcnt(0)
    v_readfirstlane_b32 s{sN}, v8
    v_readfirstlane_b32 s{sN+1}, v9
    s_barrier
    """)
    if o.stamps: stamp(p, o, 6)
    NONL = g('NONL')
    sFast = 52
    def b_loads():
        p(f"""
        s_and_b32 s{sT0}, s{sWg}, 0xfc
        s_lshl_b32 s{sT1}, s{sKh2}, 1
        s_add_u32 s{sT0}, s{sT0}, s{sT1}
        s_lshl_b32 s{sT0}, s{sT0}, 14
        s_lshl_b32 s{sT1}, s{sQt}, 12
        s_add_u32 s{sT0}, s{sT0}, s{sT1}
        s_add_u32 s{sT1}, s{sT0}, 16384
        """)
        for kk in range(8):
            p(f"buffer_load_dwordx4 {rg(vB+4*kk,4)}, v5, s[{rO}:{rO+3}], s{sT0 if kk < 4 else sT1} offen offset:{(kk&3)*1024} sc1")
    p(f"""
    s_and_b32 s{sQt}, s{sWave}, 3
    s_lshr_b32 s{sKh2}, s{sWave}, 2
    v_lshlrev_b32 v5, 4, v{vL}
    s_mov_b32 s{sFast}, 0
    """)
    if o.fast:
        p(f"""
        v_mov_b32 v6, {NONL+8}
        ds_read_b32 v12, v6
        """)
    p(f"""
    s_cmp_eq_u32 s{sWave}, 7
    s_cbranch_scc0 T_F0
    v_mov_b32 v9, s{sN}
    s_lshl_b32 s{sT0}, s{sWg}, 7
    s_add_u32 s{sT0}, s{sT0}, {WS_FLAG}
    v_mov_b32 v3, 0
    v_cmp_eq_u32 vcc, 0, v{vL}
    s_and_saveexec_b64 s[58:59], vcc
    buffer_store_dword v9, v3, s[{rO}:{rO+3}], s{sT0} offen sc1
    s_mov_b64 exec, s[58:59]
    """)
    p.label("T_F0")
    if o.fast:
        p(f"""
        s_waitcnt lgkmcnt(0)
        v_readfirstlane_b32 s{sFast}, v12
        s_cmp_eq_u32 s{sFast}, 0
        s_cbranch_scc1 T_SLOW
        """)
        b_loads()
        p.label("T_SLOW")
    p(f"""
    s_cmp_eq_u32 s{sWave}, 7
    s_cbranch_scc0 T_NOFLAG
    s_cmp_eq_u32 s{sFast}, 0
    s_cbranch_scc0 T_SETUP
    s_and_b32 s{sT0}, s{sWg}, 0xfc
    s_lshl_b32 s{sT0}, s{sT0}, 7
    s_add_u32 s{sT0}, s{sT0}, {WS_FLAG}
    v_and_b32 v8, 3, v{vL}
    v_lshlrev_b32 v8, 7, v8
    s_mov_b32 s{sT1}, 0
    buffer_load_dword v10, v8, s[{rO}:{rO+3}], s{sT0} offen sc1
    buffer_load_dword v11, v8, s[{rO}:{rO+3}], s{sT0} offen sc1
    """)
    p("s_branch T_SETUP")
    p.label("T_NOFLAG")
    nlate = 16 - NEARLY
    for rep in range((nlate + 6) // 7):
        cnt = min(7, nlate - 7 * rep)
        if cnt < 7:
            p(f"s_cmp_lt_u32 s{sWave}, {cnt}")
            p("s_cbranch_scc0 T_SETUP")
        p(f"s_add_u32 s{sT2}, s{sWave}, {NEARLY + 7*rep}")
        wo_group_dma(sT2)
    p.label("T_SETUP")
    p(f"""
    v_lshrrev_b32 v2, 4, v{vL}
    v_and_b32 v3, 15, v{vL}
    v_lshrrev_b32 v4, 2, v3
    v_and_b32 v6, 3, v3
    v_lshl_add_u32 v2, v2, 2, v4
    v_mul_u32_u24 v2, 288, v2
    v_lshl_add_u32 v{vLA}, v6, 3, v2
    s_and_b32 s{sTag}, s{sN}, 0xfff
    s_lshr_b32 s{sTag+1}, s{sN}, 12
    s_and_b32 s{sTag+1}, s{sTag+1}, 0xfff
    s_lshr_b32 s{sTag+2}, s{sN}, 24
    s_lshl_b32 s{sT2}, s{sN+1}, 8
    s_or_b32 s{sTag+2}, s{sTag+2}, s{sT2}
    s_and_b32 s{sTag+2}, s{sTag+2}, 0xfff
    s_lshr_b32 s{sTag+3}, s{sN+1}, 4
    s_and_b32 s{sTag+3}, s{sTag+3}, 0xfff
    """)
    for i in range(36):
        p(f"v_mov_b32 v{vAcc+i}, 0")
    p(f"""
    s_cmp_eq_u32 s{sWave}, 7
    s_cbranch_scc0 T_NOPOLL
    s_cmp_eq_u32 s{sFast}, 0
    s_cbranch_scc0 T_NOPOLL
    """)
    p.label("T_POLL1")
    p(f"""
    s_waitcnt vmcnt(1)
    v_cmp_ne_u32 vcc, v10, v9
    s_cbranch_vccz T_NOPOLL
    buffer_load_dword v10, v8, s[{rO}:{rO+3}], s{sT0} offen sc1
    s_add_u32 s{sT1}, s{sT1}, 1
    s_waitcnt vmcnt(1)
    v_cmp_ne_u32 vcc, v11, v9
    s_cbranch_vccz T_NOPOLL
    buffer_load_dword v11, v8, s[{rO}:{rO+3}], s{sT0} offen sc1
    s_cmp_lt_u32 s{sT1}, {SPIN}
    s_cbranch_scc1 T_POLL1
    """)
    p.label("T_NOPOLL")
    p(f"""
    s_waitcnt vmcnt(0)
    s_barrier
    """)
    if o.stamps: stamp(p, o, 7)
    p(f"s_cmp_eq_u32 s{sFast}, 0")
    p("s_cbranch_scc0 T_BDONE")
    b_loads()
    p.label("T_BDONE")
    if o.stamps and o.stset:
        p("s_waitcnt vmcnt(0)")
        stamp(p, o, 'g0')
    gemm_body(p, vAcc, vB, vF, vAd, vLA, sKh2, sT2, wo_addr)
    if o.stamps: stamp(p, o, 8)
    p("s_barrier")
    stamp(p, o, 'r1')
    p(f"""
    s_mul_i32 s{sT0}, s{sQt}, 9216
    v_add_u32 v2, s{sT0}, v5
    s_cmp_eq_u32 s{sKh2}, 0
    s_cbranch_scc0 T_H1
    """)
    for nt in range(5, 9):
        p(f"ds_write_b128 v2, {rg(vAcc+4*nt,4)} offset:{nt*1024}")
    p("s_branch T_H2")
    p.label("T_H1")
    for nt in range(0, 5):
        p(f"ds_write_b128 v2, {rg(vAcc+4*nt,4)} offset:{nt*1024}")
    p.label("T_H2")
    TAGGED = (o.fuse == 2)
    p(f"""
    v_mov_b32 v7, 0xfffff000
    s_lshl_b32 s{sT0}, s{sXc}, 3
    s_add_u32 s{sT0}, s{sT0}, s{sB}
    s_lshl_b32 s{sT0}, s{sT0}, 2
    s_add_u32 s{sT0}, s{sT0}, s{sJj}
    s_lshl_b32 s{sT0}, s{sT0}, 2
    s_add_u32 s{sT0}, s{sT0}, s{sQt}
    s_mul_i32 s{sT0}, s{sT0}, 9216
    s_add_u32 s{sT0}, s{sT0}, {WS_PART}
    s_waitcnt lgkmcnt(0)
    """)
    stamp(p, o, 'r2')
    p("s_barrier")
    stamp(p, o, 'r3')
    p(f"""
    s_cmp_eq_u32 s{sKh2}, 0
    s_cbranch_scc0 T_H3
    """)
    def fin(nts):
        for nt in nts:
            p(f"ds_read_b128 {rg(vF+4*nt,4)}, v2 offset:{nt*1024}")
        for idx, nt in enumerate(nts):
            p(f"s_waitcnt lgkmcnt({len(nts)-1-idx})")
            for e in range(4):
                p(f"v_add_f32 v{vAcc+4*nt+e}, v{vAcc+4*nt+e}, v{vF+4*nt+e}")
            if TAGGED:
                for e in range(4):
                    p(f"v_and_b32 v{vAcc+4*nt+e}, v7, v{vAcc+4*nt+e}")
                    p(f"v_or_b32 v{vAcc+4*nt+e}, s{sTag+e}, v{vAcc+4*nt+e}")
            p(f"s_add_u32 s{sT1}, s{sT0}, {(nt//4)*4096}")
            p(f"buffer_store_dwordx4 {rg(vAcc+4*nt,4)}, v5, s[{rO}:{rO+3}], s{sT1} offen offset:{(nt%4)*1024}{' sc1' if TAGGED else ''}")
    fin(list(range(0, 5)))
    p("s_branch T_H4")
    p.label("T_H3")
    fin(list(range(5, 9)))
    p.label("T_H4")
    if o.stamps: stamp(p, o, 9)
    if TAGGED:
        vX = 100
        p(f"""
        s_cmp_ge_u32 s{sWave}, 5
        s_cbranch_scc1 T_DONE
        v_cmp_gt_u32 vcc, 288, v0
        s_and_saveexec_b64 s[58:59], vcc
        s_mul_i32 s{sT0}, s{sXc}, 288
        v_add_u32 v2, s{sT0}, v0
        v_lshlrev_b32 v3, 4, v2
        s_lshl_b32 s{sT0}, s{sB}, 2
        s_add_u32 s{sT0}, s{sT0}, s{sJj}
        s_mul_i32 s{sT0}, s{sT0}, 36864
        s_add_u32 s{sT0}, s{sT0}, {WS_PART}
        s_mov_b32 s{rX}, s{sOut}
        s_mov_b32 s{rX+1}, s{sOut+1}
        s_mov_b32 s{rX+2}, {512*576*2}
        s_mov_b32 s{rX+3}, 0x20000
        v_lshrrev_b32 v4, 6, v2
        v_mul_u32_u24 v5, 57, v4
        v_lshrrev_b32 v5, 9, v5
        v_mul_u32_u24 v6, 9, v5
        v_sub_u32 v6, v4, v6
        v_and_b32 v4, 15, v2
        v_lshl_add_u32 v4, v5, 4, v4
        s_lshl_b32 s{sT1}, s{sB}, 6
        v_add_u32 v4, s{sT1}, v4
        s_movk_i32 s{sT1}, 1152
        v_mul_u32_u24 v4, s{sT1}, v4
        v_lshlrev_b32 v6, 5, v6
        v_add_u32 v4, v4, v6
        v_bfe_u32 v6, v2, 4, 2
        v_lshl_add_u32 v4, v6, 3, v4
        s_mul_i32 s{sT1}, s{sJj}, 288
        v_add_u32 v4, s{sT1}, v4
        s_mov_b32 s{sT2}, 0
        """)
        if o.prepoll:
            p(f"""
            s_mov_b64 s[56:57], exec
            v_readfirstlane_b32 s{sT1}, v3
            v_mul_u32_u24 v6, {32*36864 // 1024}, v{vL}
            v_lshlrev_b32 v6, 10, v6
            v_add_u32 v6, s{sT1}, v6
            v_mov_b32 v9, s{sTag}
            s_mov_b64 exec, 0xff
            buffer_load_dword v10, v6, s[{rO}:{rO+3}], s{sT0} offen sc1
            buffer_load_dword v11, v6, s[{rO}:{rO+3}], s{sT0} offen sc1
            """)
            p.label("T_PP")
            p(f"""
            s_waitcnt vmcnt(1)
            v_xor_b32 v8, v10, v9
            v_and_b32 v8, 0xfff, v8
            v_cmp_ne_u32 vcc, 0, v8
            s_cbranch_vccz T_PPD
            buffer_load_dword v10, v6, s[{rO}:{rO+3}], s{sT0} offen sc1
            s_add_u32 s{sT2}, s{sT2}, 1
            s_waitcnt vmcnt(1)
            v_xor_b32 v8, v11, v9
            v_and_b32 v8, 0xfff, v8
            v_cmp_ne_u32 vcc, 0, v8
            s_cbranch_vccz T_PPD
            buffer_load_dword v11, v6, s[{rO}:{rO+3}], s{sT0} offen sc1
            s_cmp_lt_u32 s{sT2}, {SPIN}
            s_cbranch_scc1 T_PP
            """)
            p.label("T_PPD")
            p(f"""
            s_mov_b64 exec, s[56:57]
            s_mov_b32 s{sT2}, 0
            """)
        p.label("T_POLL2")
        p(f"s_mov_b32 s{sT1}, s{sT0}")
        for s in range(8):
            p(f"buffer_load_dwordx4 {rg(vX+4*s,4)}, v3, s[{rO}:{rO+3}], s{sT1} offen sc1")
            if s < 7: p(f"s_add_u32 s{sT1}, s{sT1}, {32*36864}")
        p(f"""
        s_add_u32 s{sT2}, s{sT2}, 1
        v_mov_b32 v6, 0
        """)
        for s in range(8):
            p(f"s_waitcnt vmcnt({7-s})")
            for e in range(4):
                p(f"v_xor_b32 v8, s{sTag+e}, v{vX+4*s+e}")
                p(f"v_or_b32 v6, v6, v8")
        p(f"""
        v_and_b32 v6, 0xfff, v6
        v_cmp_ne_u32 vcc, 0, v6
        s_cmp_lt_u32 s{sT2}, {SPIN}
        s_cbranch_scc0 T_SUM
        s_cbranch_vccnz T_POLL2
        """)
        p.label("T_SUM")
        if o.stamps and o.stset == 2:
            p(f"s_mov_b32 s76, s{sT2}")
            p("s_mov_b32 s77, 0")
        for s in range(8):
            for e in range(4):
                p(f"v_and_b32 v{vX+4*s+e}, v7, v{vX+4*s+e}")
        for s in range(1, 8):
            for e in range(4):
                p(f"v_add_f32 v{vX+e}, v{vX+e}, v{vX+4*s+e}")
        p(f"""
        v_cvt_pk_bf16_f32 v8, v{vX}, v{vX+1}
        v_cvt_pk_bf16_f32 v9, v{vX+2}, v{vX+3}
        buffer_store_dwordx2 v[8:9], v4, s[{rX}:{rX+3}], 0 offen{' sc1' if o.outsc else ''}
        s_mov_b64 exec, s[58:59]
        """)
        p.label("T_DONE")
    if o.stamps:
        p("s_waitcnt vmcnt(0)")
        p("s_memrealtime s[90:91]" if o.stamps != 2 else "s_memtime s[90:91]")
        p("s_waitcnt lgkmcnt(0)")
        p("s_mov_b32 s60, s60")
        gen_flush_final(p, o, sWs)
    p("s_branch K1_END")

def gen_flush_final(p, o, sws):
    tag = "STFm"
    if o.stamps == 3:
        p(f"""
        s_cmp_eq_u32 s2, 0
        s_cbranch_scc0 {tag}
        s_load_dwordx2 s[96:97], s[0:1], 48
        s_waitcnt lgkmcnt(0)
        v_cmp_eq_u32 vcc, 0, v0
        s_and_saveexec_b64 s[92:93], vcc
        s_cbranch_execz {tag}x
        v_mov_b32 v4, 0
        """)
        for i in range(10):
            p(f"v_mov_b32 v2, s{60+2*i}")
            p(f"global_store_dword v4, v2, s[96:97] offset:{16+4*i}")
        p("v_mov_b32 v2, s90")
        p(f"global_store_dword v4, v2, s[96:97] offset:{16+40}")
        p.label(tag + 'x')
        p("s_mov_b64 exec, s[92:93]")
        p.label(tag)
        return
    p(f"""
    v_cmp_eq_u32 vcc, {o.stampwave*64}, v0
    s_and_saveexec_b64 s[92:93], vcc
    s_cbranch_execz {tag}
    s_lshl_b32 s94, s2, 7
    s_add_u32 s94, s94, {gen.WS_STAMP}
    s_add_u32 s96, s{sws}, s94
    s_addc_u32 s97, s{sws+1}, 0
    v_mov_b32 v4, 0
    """)
    for i in range(10):
        p(f"""
        v_mov_b32 v2, s{60+2*i}
        v_mov_b32 v3, s{61+2*i}
        global_store_dwordx2 v4, v[2:3], s[96:97] offset:{8*i}
        """)
    p(f"""
    v_mov_b32 v2, s90
    v_mov_b32 v3, s91
    global_store_dwordx2 v4, v[2:3], s[96:97] offset:80
    """)
    p.label(tag)
    p("s_mov_b64 exec, s[92:93]")

def emit(o):
    ks = [('standalone__gqa_block_cached__near_ridge_kernel' if o.fuse == 2 else 'gqa_main_kernel', gen_main(o), 256, 512, 163840)]
    if o.dbg == 2:
        ks = ks[:1]
    out = [HEADER.rstrip()]
    for name, _, g, b, lds in ks:
        if len(ks) == 1 and o.fuse == 2:
            out.append(f"; @launch grid=({g},1,1) block=({b},1,1) lds={lds}")
        else:
            out.append(f"; @launch kernel={name} grid=({g},1,1) block=({b},1,1) lds={lds}")
    out.append('.amdgcn_target "amdgcn-amd-amdhsa--gfx950"')
    out.append('.text')
    for name, p, g, b, lds in ks:
        n = p.fix_hazards()
        errs = p.lint_waits()
        for e in errs[:20]:
            print(f"LINT[{name}]: {e}", file=sys.stderr)
        nv, ns = p.max_regs()
        print(f"{name}: {len(p.ins)} instrs, vgpr {nv}, sgpr {ns}, nops inserted {n}", file=sys.stderr)
        out.append(f".globl {name}\n.p2align 8\n.type {name},@function\n{name}:")
        out.append(p.text())
        out.append(kd(name, max(nv, 8), max(ns, 16)))
    return '\n'.join(out) + '\n'

if __name__ == '__main__':
    ap = argparse.ArgumentParser()
    ap.add_argument('-o', default='standalone__gqa_block_cached__near_ridge.s')
    for k, d in OPTS.items():
        ap.add_argument('--' + k, type=int, default=d)
    a = ap.parse_args()
    o = Opt()
    for k in OPTS:
        setattr(o, k, getattr(a, k))
    open(a.o, 'w').write(emit(o))
```

```python
import sys, argparse
from asmlib import Prog
import gen
from gen import f32bits, SCALE_LOG2E, stamp_flush, kd, HEADER
from gen import stamp as _stamp
STSETS = {0: {0:0,1:1,2:2,3:3,4:4,5:5,6:6,7:7,8:8,9:9},
          1: {5:0, 'e1':1, 'e2':2, 'e3':3, 'e4':4, 6:5, 7:6, 'g0':7, 8:8, 9:9},
          3: {'c0':0,'c1':1,'c2':2,'c3':3,'c4':4,'c5':5,'c6':6,'c7':7,'c8':8, 2:9},
          4: {0:0,'c0':1,'w1':2,'c1':3,'m1':4,'w2':5,'c2':6,'m2':7,'w3':8,'c3':9},
          2: {7:0, 'g0':1, 8:2, 'r1':3, 'r2':4, 'r3':5, 9:6, 'p1':7, 'p2':8, 'p3':9}}
def stamp(p, o, name):
    m = STSETS[getattr(o, 'stset', 0)]
    if name in m: _stamp(p, o, m[name])


WS_O = 0
WS_PART = 4 << 20
WS_FLAG = 16 << 20
WS_SIZE = 17 << 20
MF = 'v_mfma_f32_32x32x16_bf16'
MF16 = 'v_mfma_f32_16x16x32_bf16'
def rg(b, n): return f"v[{b}:{b+n-1}]" if n > 1 else f"v{b}"

class Opt(gen.Opt):
    pass

OPTS = dict(pg=0, v7e=0, fast=1, icpf=4, tlb=2, lead=4, outsc=1, prepoll=1, early=1, dry=0, dmapos=1, skew=0, stset=0, nt=1, dbg=0, stamps=0, stampwave=0, wt=1, kdel=5, k1del=5, late=0, fuse=2, wot=1)
SPIN = 1 << 18

def gen_main(o):
    p = Prog()
    NT = ' nt' if o.nt else ''
    sX, sK, sV, sWq, sWs, sWo = 4, 6, 8, 10, 12, 14
    rK, rV, rW, rX, rO = 16, 20, 24, 28, 32
    sWave, sB, sH, sXc, sQh, sKq = 36, 37, 38, 39, 40, 41
    sRK, sRV, sOff, sIss, sCnt, sJj = 42, 43, 44, 45, 46, 47
    sC, sT0, sT1, sT2 = 48, 49, 50, 51
    sW4096, sWg = 53, 54
    sPar, sStep, sEK, sRngV, sKprev, sOffB = 55, 56, 57, 52, 98, 99
    vOb = 250
    sOut, sDbg, sN, sTag = 80, 82, 84, 86
    vL = 1
    vKo = 10; vVo = 14
    vWo = 15; vXo = 17; vLW = 21; vLX = 22
    vVA = 15; vTn = 19
    vLK = 23; vLV = 24
    vKA = 28
    vM, vThr, vL0, vL1 = 36, 37, 38, 39
    vQ = 40
    vS = [72, 88]
    vP = 104
    vKf = 112
    vVf = 144
    vO = 176
    vOff = 240
    vDum = 249
    vNon = 20
    R = [i * 32768 for i in range(5)]
    NS = o.lead + 1
    HL = o.lead // 2
    assert not o.skew
    QS = [139264, 65536, 90112, 114688]
    lab = [0]
    def nl(s):
        lab[0] += 1
        return f"K1_{s}{lab[0]}"
    vq = []
    def vissue(tag, n): vq.extend([tag] * n)
    def vneed(*tags):
        idx = [i for i, t in enumerate(vq) if t in tags]
        if not idx: return 63
        n = len(vq) - 1 - idx[-1]
        del vq[:idx[-1] + 1]
        return min(n, 63)

    p(f"""
    s_cmp_ge_u32 s2, 256
    s_cbranch_scc1 K1_END
    s_load_dwordx4 s[4:7], s[0:1], 0
    s_load_dwordx4 s[8:11], s[0:1], 16
    s_load_dwordx2 s[12:13], s[0:1], 56
    s_load_dwordx2 s[14:15], s[0:1], 32
    s_load_dwordx4 s[80:83], s[0:1], 40
    """)
    if o.icpf:
        ICL = o.icpf
        p(f"""
        s_getpc_b64 s[90:91]
        """)
        p.label("K1_PCREF")
        p(f"""
        s_mov_b32 s93, K1_END-K1_PCREF
        v_cmp_gt_u32 vcc, {ICL}, v0
        s_and_saveexec_b64 s[58:59], vcc
        s_cbranch_execz K1_ICD
        s_lshr_b32 s92, s2, 3
        s_mul_i32 s92, s92, {ICL*128}
        v_lshlrev_b32 v2, 7, v0
        v_add_u32 v2, s92, v2
        v_min_u32 v2, s93, v2
        global_load_dword v{vDum}, v2, s[90:91]
        """)
        p.label("K1_ICD")
        p("s_mov_b64 exec, s[58:59]")
    p(f"""
    v_and_b32 v{vL}, 63, v0
    v_lshrrev_b32 v2, 6, v0
    s_and_b32 s{sXc}, s2, 7
    s_lshr_b32 s{sT1}, s2, 3
    v_readfirstlane_b32 s{sWave}, v2
    s_lshr_b32 s{sB}, s{sT1}, 2
    s_and_b32 s{sJj}, s{sT1}, 3
    s_lshl_b32 s{sH}, s{sXc}, 2
    s_add_u32 s{sH}, s{sH}, s{sJj}
    s_lshl_b32 s{sWg}, s{sB}, 5
    s_add_u32 s{sWg}, s{sWg}, s{sH}
    s_and_b32 s{sQh}, s{sWave}, 1
    s_lshr_b32 s{sKq}, s{sWave}, 1
    s_and_b32 s{sPar}, s{sH}, {1 if o.skew else 0}
    s_lshl_b32 s{sW4096}, s{sWave}, 12
    s_mov_b32 s{sC}, 0x{f32bits(SCALE_LOG2E):08x}
    v_and_b32 v2, 15, v{vL}
    v_lshrrev_b32 v3, 4, v{vL}
    v_lshrrev_b32 v4, 2, v2
    v_and_b32 v5, 3, v2
    v_lshrrev_b32 v6, 5, v{vL}
    v_and_b32 v7, 31, v{vL}
    v_lshlrev_b32 v8, 2, v3
    v_xor_b32 v8, v8, v2
    v_lshlrev_b32 v8, 4, v8
    v_lshl_add_u32 v{vVo}, v3, 8, v8
    v_lshl_add_u32 v{vWo}, v3, 13, v8
    v_add_u32 v{vWo+1}, 31744, v{vWo}
    s_lshl_b32 s{sT0}, s{sWave}, 3
    s_movk_i32 s{sT1}, 1152
    v_lshrrev_b32 v8, 3, v{vL}
    v_add_u32 v8, s{sT0}, v8
    v_mul_lo_u32 v8, v8, s{sT1}
    s_lshl_b32 s{sT0}, s{sWave}, 2
    v_add_u32 v9, s{sT0}, v3
    v_and_b32 v9, 7, v9
    v_and_b32 v{vXo}, 7, v{vL}
    v_xor_b32 v9, v9, v{vXo}
    v_lshl_add_u32 v{vXo}, v9, 4, v8
    """)
    p("s_waitcnt lgkmcnt(0)")
    stamp(p, o, 0)
    p(f"""
    s_lshl_b32 s{sT0}, s{sH}, 8
    s_add_u32 s{rW}, s{sWq}, s{sT0}
    s_addc_u32 s{rW+1}, s{sWq+1}, 0
    s_sub_u32 s{rW+2}, {576*8192}, s{sT0}
    s_mov_b32 s{rW+3}, 0x20000
    s_mul_i32 s{sT0}, s{sB}, {64*1152}
    s_add_u32 s{rX}, s{sX}, s{sT0}
    s_addc_u32 s{rX+1}, s{sX+1}, 0
    s_mov_b32 s{rX+2}, {64*1152}
    s_mov_b32 s{rX+3}, 0x20000
    """)

    def issue_chunk(c):
        qs = QS[c % 4]
        p(f"""
        s_lshl_b32 s{sT0}, s{sWave}, 16
        s_add_u32 s{sT0}, s{sT0}, {c*524288}
        s_lshr_b32 s{sT1}, s{sW4096}, 1
        s_add_u32 m0, s{sT1}, {qs}
        """)
        for u in range(2):
            p(f"buffer_load_dwordx4 v{vWo+u}, s[{rW}:{rW+3}], s{sT0} offen offset:{u*1024} lds")
        p(f"""
        s_lshr_b32 s{sT1}, s{sW4096}, 2
        s_add_u32 m0, s{sT1}, {qs+16384}
        s_movk_i32 s{sT0}, {c*128}
        buffer_load_dwordx4 v{vXo}, s[{rX}:{rX+3}], s{sT0} offen lds
        """)
        vissue(('C', c), 3)

    if o.wt:
        p(f"""
        s_cmp_eq_u32 s{sWave}, 4
        s_cbranch_scc0 K1_WT1
        v_lshrrev_b32 v8, 1, v{vL}
        v_and_b32 v9, 1, v{vL}
        v_lshlrev_b32 v8, 13, v8
        v_lshl_add_u32 v8, v9, 7, v8
        s_mul_i32 s{sT0}, s{sB}, {72*8192}
        buffer_load_dword v{vDum}, v8, s[{rW}:{rW+3}], s{sT0} offen
        s_add_u32 s{sT0}, s{sT0}, {32*8192}
        buffer_load_dword v{vDum}, v8, s[{rW}:{rW+3}], s{sT0} offen
        s_add_u32 s{sT0}, s{sT0}, {32*8192}
        v_cmp_gt_u32 vcc, 16, v{vL}
        s_and_saveexec_b64 s[58:59], vcc
        buffer_load_dword v{vDum}, v8, s[{rW}:{rW+3}], s{sT0} offen
        s_mov_b64 exec, s[58:59]
        """)
        p.label("K1_WT1")
        p(f"""
        s_cmp_eq_u32 s{sWave}, 5
        s_cbranch_scc0 K1_WT2
        v_lshlrev_b32 v9, 7, v{vL}
        s_mul_i32 s{sT0}, s{sJj}, 18432
        buffer_load_dword v{vDum}, v9, s[{rX}:{rX+3}], s{sT0} offen
        s_add_u32 s{sT0}, s{sT0}, 8192
        buffer_load_dword v{vDum}, v9, s[{rX}:{rX+3}], s{sT0} offen
        s_add_u32 s{sT0}, s{sT0}, 8192
        v_cmp_gt_u32 vcc, 16, v{vL}
        s_and_saveexec_b64 s[58:59], vcc
        buffer_load_dword v{vDum}, v9, s[{rX}:{rX+3}], s{sT0} offen
        s_mov_b64 exec, s[58:59]
        """)
        p.label("K1_WT2")
    for c in range(4):
        issue_chunk(c)
    if o.fuse:
        p(f"""
        s_cmp_eq_u32 s2, 0
        s_cbranch_scc0 K1_NON
        s_cmp_eq_u32 s{sWave}, 7
        s_cbranch_scc0 K1_NON
        s_memrealtime s[{sN}:{sN+1}]
        s_waitcnt lgkmcnt(0)
        s_or_b32 s{sN}, s{sN}, 1
        v_mov_b32 v8, s{sN}
        v_mov_b32 v9, s{sN+1}
        v_mov_b32 v{vNon}, 0
        v_cmp_eq_u32 vcc, 0, v{vL}
        s_and_saveexec_b64 s[58:59], vcc
        global_store_dwordx2 v{vNon}, v[8:9], s[{sDbg}:{sDbg+1}] sc1
        s_mov_b64 exec, s[58:59]
        """)
        p.label("K1_NON")
    p(f"""
    s_lshl_b32 s{sT0}, s{sB}, 4
    s_lshr_b32 s{sT1}, s{sH}, 1
    s_add_u32 s{sT0}, s{sT0}, s{sT1}
    s_lshl_b32 s{sT0}, s{sT0}, 18
    s_add_u32 s{rK}, s{sK}, s{sT0}
    s_addc_u32 s{rK+1}, s{sK+1}, 0
    s_mov_b32 s{rK+2}, 0x40000
    s_mov_b32 s{rK+3}, 0x20000
    s_add_u32 s{rV}, s{sV}, s{sT0}
    s_addc_u32 s{rV+1}, s{sV+1}, 0
    s_mov_b32 s{rV+2}, 0x40000
    s_mov_b32 s{rV+3}, 0x20000
    s_mov_b32 s{rO}, s{sWs}
    s_mov_b32 s{rO+1}, s{sWs+1}
    s_mov_b32 s{rO+2}, {WS_SIZE}
    s_mov_b32 s{rO+3}, 0x20000
    """)
    for u in range(4):
        p(f"""
        v_add_u32 v8, {4*u}, v3
        v_xor_b32 v8, v8, v2
        v_lshlrev_b32 v8, 4, v8
        v_lshl_add_u32 v{vKo+u}, v3, 8, v8
        """)

    if o.pg:
        p(f"""
        s_cmp_eq_u32 s{sWave}, 6
        s_cbranch_scc0 K1_PG
        s_mov_b64 s[58:59], exec
        v_mov_b32 v8, 0
        s_mov_b64 exec, 1
        buffer_load_dword v{vDum}, v8, s[{rK}:{rK+3}], 0 offen{NT}
        buffer_load_dword v{vDum}, v8, s[{rV}:{rV+3}], 0 offen{NT}
        s_mul_i32 s{sT0}, s{sXc}, {512*1152}
        v_mov_b32 v9, s{sT0}
        global_load_dword v{vDum}, v9, s[{sWo}:{sWo+1}]
        v_add_u32 v9, {512*1152-128}, v9
        global_load_dword v{vDum}, v9, s[{sWo}:{sWo+1}]
        s_mul_i32 s{sT0}, s{sB}, {64*1152}
        v_mov_b32 v9, s{sT0}
        global_load_dword v{vDum}, v9, s[{sOut}:{sOut+1}] sc1
        s_mov_b64 exec, 0x3ff
        s_lshl_b32 s{sT0}, s{sB}, 2
        s_add_u32 s{sT0}, s{sT0}, s{sJj}
        s_mul_i32 s{sT0}, s{sT0}, 36864
        s_add_u32 s{sT0}, s{sT0}, {WS_PART}
        v_mul_u32_u24 v9, 1152, v{vL}
        v_lshlrev_b32 v9, 10, v9
        v_add_u32 v9, s{sT0}, v9
        s_lshl_b32 s{sT0}, s{sWg}, 14
        v_mov_b32 v8, s{sT0}
        v_cmp_eq_u32 vcc, 8, v{vL}
        s_lshl_b32 s{sT0}, s{sWg}, 7
        s_add_u32 s{sT0}, s{sT0}, {WS_FLAG}
        v_cndmask_b32 v9, v9, v8, vcc
        v_mov_b32 v8, s{sT0}
        v_cmp_eq_u32 vcc, 9, v{vL}
        v_cndmask_b32 v9, v9, v8, vcc
        buffer_load_dword v{vDum}, v9, s[{rO}:{rO+3}], 0 offen sc1
        s_mov_b64 exec, s[58:59]
        """)
        p.label("K1_PG")
    def issue_kv(isK, tile, slot):
        p(f"""
        s_add_u32 s{sT0}, s{sW4096}, {tile*32768}
        s_add_u32 m0, s{sW4096}, {R[slot]}
        """)
        for u in range(4):
            if isK: p(f"buffer_load_dwordx4 v{vKo+u}, s[{rK}:{rK+3}], s{sT0} offen offset:{u*1024}{NT} lds")
            else:   p(f"buffer_load_dwordx4 v{vVo}, s[{rV}:{rV+3}], s{sT0} offen offset:{u*1024}{NT} lds")
        vissue(('K' if isK else 'V', tile), 4)
    def issue_v0k2():
        l1, l2 = nl('P'), nl('P')
        p(f"s_cmp_eq_u32 s{sPar}, 0")
        p(f"s_cbranch_scc0 {l1}")
        sv = list(vq)
        issue_kv(False, 0, 2); issue_kv(True, 2, 3)
        p(f"s_branch {l2}")
        p.label(l1)
        del vq[:]; vq.extend(sv)
        issue_kv(False, 0, 3); issue_kv(True, 2, 2)
        p.label(l2)
    if o.kdel < 0:
        issue_kv(True, 0, 0)
    if o.k1del < 0:
        issue_kv(True, 1, 1)

    p(f"""
    v_lshl_add_u32 v8, v6, 3, v4
    v_lshlrev_b32 v8, 8, v8
    v_and_b32 v9, 1, v3
    v_lshlrev_b32 v9, 1, v9
    v_and_b32 v{vLW}, 1, v5
    v_add_u32 v9, v9, v{vLW}
    s_lshl_b32 s{sT0}, s{sKq}, 2
    v_add_u32 v9, s{sT0}, v9
    v_lshlrev_b32 v{vLW}, 2, v4
    v_xor_b32 v9, v9, v{vLW}
    v_lshl_add_u32 v8, v9, 4, v8
    v_lshrrev_b32 v9, 1, v5
    v_lshl_add_u32 v{vLW}, v9, 3, v8
    s_lshl_b32 s{sT0}, s{sQh}, 5
    v_add_u32 v8, s{sT0}, v7
    v_lshrrev_b32 v9, 1, v8
    v_and_b32 v9, 7, v9
    v_xor_b32 v9, v9, v6
    v_lshlrev_b32 v9, 4, v9
    v_lshl_add_u32 v{vLX}, v8, 7, v9
    s_lshl_b32 s{sT0}, s{sKq}, 5
    v_add_u32 v8, s{sT0}, v7
    v_and_b32 v9, 15, v8
    v_xor_b32 v9, v9, v6
    v_lshlrev_b32 v9, 4, v9
    v_lshl_add_u32 v{vLK}, v8, 8, v9
    v_lshl_add_u32 v8, v6, 2, v4
    v_add_u32 v8, s{sT0}, v8
    v_lshlrev_b32 v8, 8, v8
    v_and_b32 v9, 1, v5
    v_lshl_add_u32 v8, v9, 3, v8
    v_and_b32 v9, 1, v3
    v_lshlrev_b32 v9, 1, v9
    v_lshrrev_b32 v2, 1, v5
    v_add_u32 v9, v9, v2
    v_lshlrev_b32 v2, 2, v4
    """)
    for a in range(4):
        p(f"""
        s_add_u32 s{sT1}, s{sKq}, {a}
        s_and_b32 s{sT1}, s{sT1}, 3
        s_lshl_b32 s{sT1}, s{sT1}, 2
        v_add_u32 v3, s{sT1}, v9
        v_xor_b32 v3, v3, v2
        v_lshl_add_u32 v{vLV+a}, v3, 4, v8
        """)
    for i in range(16):
        p(f"v_mov_b32 v{vS[0]+i}, 0")
    for i in range(64):
        p(f"v_mov_b32 v{vO+i}, 0")
    p(f"""
    v_mov_b32 v{vM}, 0xf149f2ca
    v_mov_b32 v{vThr}, 0xf149f2ca
    v_mov_b32 v{vL0}, 0
    v_mov_b32 v{vL1}, 0
    """)
    if o.fuse:
        p(f"""
        s_movk_i32 s{sT0}, 3641
        s_movk_i32 s{sT1}, 1152
        """)
        for i in range(9):
            p(f"""
            v_add_u32 v2, {64*i}, v{vL}
            v_mul_u32_u24 v3, s{sT0}, v2
            v_lshrrev_b32 v3, 16, v3
            v_mul_u32_u24 v4, 18, v3
            v_sub_u32 v4, v2, v4
            v_mul_u32_u24 v3, s{sT1}, v3
            v_lshl_add_u32 v3, v4, 4, v3
            v_subrev_u32 v{vOff+i}, {(i%4)*1024}, v3
            """)

    FB = [vKf, vVf]
    A0 = vKA
    def q_phase(c, reads, extra):
        f = FB[(c - 1) % 2]
        rd = list(reads); ex = list(extra)
        for ks in range(4):
            if c >= 1:
                p(f"{MF} {rg(vS[0],16)}, {rg(f+8*ks,4)}, {rg(f+8*ks+4,4)}, {rg(vS[0],16)}")
            for _ in range(3):
                if rd: p(rd.pop(0))
            if ex and ks >= 1: ex.pop(0)()
        for e in ex: e()
    for c in range(9):
        qs = QS[c % 4]
        f = FB[c % 2]
        n = vneed(('C', c))
        p(f"""
        v_add_u32 v{A0}, {qs}, v{vLW}
        v_add_u32 v{A0+1}, {qs+16384}, v{vLX}
        v_xor_b32 v{A0+2}, 32, v{A0+1}
        v_xor_b32 v{A0+3}, 64, v{A0+1}
        v_xor_b32 v{A0+4}, 96, v{A0+1}
        s_waitcnt vmcnt({n}) lgkmcnt(0)
        """)
        stamp(p, o, f'w{c}')
        p("s_barrier")
        if c == 0: stamp(p, o, 1)
        stamp(p, o, f'c{c}')
        reads = []
        for ks in range(4):
            reads.append(f"ds_read_b64_tr_b16 {rg(f+8*ks,2)}, v{A0} offset:{ks*4096}")
            reads.append(f"ds_read_b64_tr_b16 {rg(f+8*ks+2,2)}, v{A0} offset:{ks*4096+1024}")
            reads.append(f"ds_read_b128 {rg(f+8*ks+4,4)}, v{A0+1+ks}")
        extra = []
        if 1 <= c <= 5: extra.append(lambda c=c: issue_chunk(c + 3))
        if c == o.kdel:
            extra.append(lambda: issue_kv(True, 0, 0))
            if o.k1del == c: extra.append(lambda: issue_kv(True, 1, 1))
        elif c == o.k1del:
            extra.append(lambda: issue_kv(True, 1, 1))
        if c == 8 and o.late == 0 and o.lead == 4:
            extra.append(issue_v0k2)
        q_phase(c, reads, extra)
        stamp(p, o, f'm{c}')
    p("s_waitcnt lgkmcnt(0)")
    p("s_barrier")
    q_phase(9, [], [])
    stamp(p, o, 2)
    QX = R[4]
    p(f"""
    s_lshl_b32 s{sT0}, s{sQh}, 13
    s_lshl_b32 s{sT1}, s{sKq}, 11
    s_add_u32 s{sT1}, s{sT1}, s{sT0}
    s_add_u32 s{sT1}, s{sT1}, {QX}
    s_add_u32 s{sT0}, s{sT0}, {QX}
    v_lshlrev_b32 v2, 4, v{vL}
    v_add_u32 v3, s{sT1}, v2
    v_add_u32 v2, s{sT0}, v2
    """)
    p(f"v_mov_b32 v{vKA}, v{vLK}")
    for s in range(1, 8):
        p(f"v_xor_b32 v{vKA+s}, {s<<5}, v{vLK}")
    for j in range(8):
        p(f"v_cvt_pk_bf16_f32 v{vP+j}, v{vS[0]+2*j}, v{vS[0]+2*j+1}")
    p(f"""
    ds_write_b128 v3, {rg(vP,4)}
    ds_write_b128 v3, {rg(vP+4,4)} offset:1024
    s_waitcnt lgkmcnt(0)
    s_barrier
    """)
    for s in range(8):
        p(f"ds_read_b128 {rg(vQ+4*s,4)}, v2 offset:{s*1024}")
    if o.kdel > 8: issue_kv(True, 0, 0)
    if o.k1del > 8: issue_kv(True, 1, 1)
    if o.late and o.lead == 4:
        issue_v0k2()

    def k_addrs(sreg):
        p(f"v_add_u32 v{vKA}, s{sreg}, v{vLK}")
        for s in range(1, 8):
            p(f"v_xor_b32 v{vKA+s}, {s<<5}, v{vKA}")
    def v_addrs(sreg):
        for a in range(4):
            p(f"v_add_u32 v{vVA+a}, s{sreg}, v{vLV+a}")
    def advance_slot(s):
        p(f"""
        s_add_u32 s{s}, s{s}, 32768
        s_cmp_eq_u32 s{s}, {5*32768}
        s_cselect_b32 s{s}, 0, s{s}
        """)
    def tmax(S):
        p(f"""
        v_max3_f32 v2, v{S}, v{S+1}, v{S+2}
        v_max3_f32 v3, v{S+3}, v{S+4}, v{S+5}
        v_max3_f32 v2, v2, v{S+6}, v{S+7}
        v_max3_f32 v3, v3, v{S+8}, v{S+9}
        v_max3_f32 v2, v2, v{S+10}, v{S+11}
        v_max3_f32 v3, v3, v{S+12}, v{S+13}
        v_max3_f32 v2, v2, v{S+14}, v{S+15}
        v_max_f32 v2, v2, v3
        v_mov_b32 v3, v2
        s_nop 1
        v_permlane32_swap_b32 v2, v3
        v_max_f32 v2, v2, v3
        v_mul_f32 v{vTn}, s{sC}, v2
        """)

    n = vneed(('K', 0))
    p(f"s_waitcnt vmcnt({n}) lgkmcnt(0)")
    p("s_barrier")
    stamp(p, o, 3)
    for s in range(8):
        p(f"ds_read_b128 {rg(vKf+4*s,4)}, v{vKA+s}")
    if o.lead == 4: issue_kv(False, 1, 4)
    else: issue_kv(False, 0, 2)
    p(f"s_mov_b32 s{sRK}, {R[1]}")
    n = vneed(('K', 1))
    p(f"s_waitcnt vmcnt({n}) lgkmcnt(0)")
    p("s_barrier")
    k_addrs(sRK)
    for s in range(8):
        c = '0' if s == 0 else rg(vS[0], 16)
        p(f"{MF} {rg(vS[0],16)}, {rg(vKf+4*s,4)}, {rg(vQ+4*s,4)}, {c}")
    for s in range(8):
        p(f"ds_read_b128 {rg(vKf+4*s,4)}, v{vKA+s}")
    if o.lead == 4: issue_kv(True, 3, 0)
    else: issue_kv(True, 2, 0)
    p(f"""
    s_mov_b32 s{sKprev}, {R[1]}
    s_mov_b32 s{sRV}, {R[2]}
    s_mov_b32 s{sRK}, {R[3 % NS]}
    s_add_u32 s{sOff}, s{sW4096}, {HL*32768}
    s_add_u32 s{sOffB}, s{sW4096}, {(2+HL)*32768}
    s_mov_b32 s{sStep}, 32768
    s_mov_b32 s{sCnt}, 0
    """)
    v_addrs(sRV)
    k_addrs(sRK)
    tmax(vS[0])

    W = {}
    q2 = list(vq)
    def need2(tag):
        idx = [i for i, t in enumerate(q2) if t == tag]
        if not idx: return 63
        n = len(q2) - 1 - idx[-1]
        del q2[:idx[-1] + 1]
        return min(n, 63)
    for i in range(8):
        W[('a', i)] = need2(('V', i))
        if i <= 5 or (i == 6 and o.lead == 2): q2.extend([('V', i + HL) if not (o.v7e and i == 5) else ('D', 0)] * 4)
        if i <= 5:
            W[('b', i)] = need2(('K', i + 2))
            q2.extend([('K', i + 2 + HL) if not (o.v7e and i == 4) else ('V', 7)] * 4)
    print('loop waits', W, file=sys.stderr)

    def alpha(tag, cur, do_qk, issue, wv):
        S, Sn = vS[cur], vS[1 - cur]
        p(f"""
        s_waitcnt vmcnt({wv}) lgkmcnt(0)
        s_barrier
        v_cmp_gt_f32 vcc, v{vTn}, v{vThr}
        s_cbranch_vccnz K1_RS{tag}
        """)
        p.label(f"K1_BK{tag}")
        reads = [(a, ks, h) for a in range(4) for ks in range(2) for h in range(2)]
        for j in range(8):
            if do_qk:
                c = '0' if j == 0 else rg(Sn, 16)
                p(f"{MF} {rg(Sn,16)}, {rg(vKf+4*j,4)}, {rg(vQ+4*j,4)}, {c}")
            for (a, ks, h) in reads[2*j:2*j+2]:
                f = vVf + (a * 2 + ks) * 4 + 2 * h
                p(f"ds_read_b64_tr_b16 {rg(f,2)}, v{vVA+a} offset:{ks*4096+h*2048}")
            p(f"v_fma_f32 v{S+2*j}, v{S+2*j}, s{sC}, -v{vM}")
            p(f"v_fma_f32 v{S+2*j+1}, v{S+2*j+1}, s{sC}, -v{vM}")
            p(f"v_exp_f32 v{S+2*j}, v{S+2*j}")
            p(f"v_exp_f32 v{S+2*j+1}, v{S+2*j+1}")
            if j >= 1:
                k = j - 1
                p(f"v_cvt_pk_bf16_f32 v{vP+k}, v{S+2*k}, v{S+2*k+1}")
                p(f"v_add_f32 v{vL0}, v{vL0}, v{S+2*k}")
                p(f"v_add_f32 v{vL1}, v{vL1}, v{S+2*k+1}")
            if issue and j == 0:
                p(f"s_add_u32 m0, s{sKprev}, s{sW4096}")
            if issue and o.dmapos == 0 and j in (1, 3, 5, 7):
                u = (j - 1) // 2
                p(f"buffer_load_dwordx4 v{vVo}, s[{rV}:{rV+3}], s{sOff} offen offset:{u*1024}{NT} lds")
        p(f"v_cvt_pk_bf16_f32 v{vP+7}, v{S+14}, v{S+15}")
        p(f"v_add_f32 v{vL0}, v{vL0}, v{S+14}")
        p(f"v_add_f32 v{vL1}, v{vL1}, v{S+15}")
        if issue and o.dmapos == 1:
            for u in range(4):
                p(f"buffer_load_dwordx4 v{vVo}, s[{rV}:{rV+3}], s{sOff} offen offset:{u*1024}{NT} lds")
        if issue:
            p(f"s_add_u32 s{sOff}, s{sOff}, s{sStep}")

    def beta(tag, cur, read_k, issue, do_tmax, wv, barrier=True, extra=None):
        Sn = vS[1 - cur]
        p(f"s_waitcnt vmcnt({wv}) lgkmcnt(0)")
        if barrier: p("s_barrier")
        n = 0
        for a in range(4):
            for ks in range(2):
                f = vVf + (a * 2 + ks) * 4
                p(f"{MF} {rg(vO+16*a,16)}, {rg(f,4)}, {rg(vP+4*ks,4)}, {rg(vO+16*a,16)}")
                if read_k:
                    p(f"ds_read_b128 {rg(vKf+4*n,4)}, v{vKA+n}")
                if issue and n == 0:
                    p(f"s_add_u32 m0, s{sRV}, s{sW4096}")
                if issue and o.dmapos == 0 and n in (1, 3, 5, 7):
                    u = (n - 1) // 2
                    p(f"buffer_load_dwordx4 v{vKo+u}, s[{rK}:{rK+3}], s{sOffB} offen offset:{u*1024}{NT} lds")
                if n == 2 and do_tmax:
                    tmax(Sn)
                n += 1
        if issue and o.dmapos == 1:
            pass
        if issue and o.dmapos == 1:
            for u in range(4):
                p(f"buffer_load_dwordx4 v{vKo+u}, s[{rK}:{rK+3}], s{sOffB} offen offset:{u*1024}{NT} lds")
        if issue:
            p(f"s_add_u32 s{sOffB}, s{sOffB}, 32768")
        p(f"""
        s_mov_b32 s{sKprev}, s{sRK}
        s_add_u32 s{sRV}, s{sRV}, 65536
        s_cmp_ge_u32 s{sRV}, {NS*32768}
        s_cselect_b32 s{sT0}, {NS*32768}, 0
        s_sub_u32 s{sRV}, s{sRV}, s{sT0}
        s_add_u32 s{sRK}, s{sRK}, 65536
        s_cmp_ge_u32 s{sRK}, {NS*32768}
        s_cselect_b32 s{sT0}, {NS*32768}, 0
        s_sub_u32 s{sRK}, s{sRK}, s{sT0}
        """)
        v_addrs(sRV)
        k_addrs(sRK)
        if extra: extra()

    def rescale(tag):
        p.label(f"K1_RS{tag}")
        p(f"""
        v_max_f32 v3, v{vTn}, v{vM}
        v_sub_f32 v4, v{vM}, v3
        v_exp_f32 v4, v4
        v_mov_b32 v{vM}, v3
        v_add_f32 v{vThr}, 0x41000000, v3
        """)
        p(f"v_mul_f32 v{vL0}, v{vL0}, v4")
        p(f"v_mul_f32 v{vL1}, v{vL1}, v4")
        for i in range(64):
            p(f"v_mul_f32 v{vO+i}, v{vO+i}, v4")
        p(f"s_branch K1_BK{tag}")

    def wo_srd():
        p(f"""
        s_mul_i32 s{sT0}, s{sXc}, {512*1152}
        s_mul_i32 s{sT1}, s{sJj}, 288
        s_add_u32 s{sT0}, s{sT0}, s{sT1}
        s_add_u32 s{rW}, s{sWo}, s{sT0}
        s_addc_u32 s{rW+1}, s{sWo+1}, 0
        s_sub_u32 s{rW+2}, {4096*1152}, s{sT0}
        s_mov_b32 s{rW+3}, 0x20000
        """)
    def wo_touch():
        if not (o.fuse and o.wot): return
        l = nl('WOT')
        p(f"""
        s_cmp_eq_u32 s{sCnt}, 1
        s_cbranch_scc0 {l}
        s_cmp_eq_u32 s{sWave}, 6
        s_cbranch_scc0 {l}
        s_mul_i32 s{sT0}, s{sXc}, {512*1152}
        s_add_u32 s{rX}, s{sWo}, s{sT0}
        s_addc_u32 s{rX+1}, s{sWo+1}, 0
        s_mov_b32 s{rX+2}, {512*1152}
        s_mov_b32 s{rX+3}, 0x20000
        s_lshr_b32 s{sT0}, s2, 3
        s_mul_i32 s{sT0}, s{sT0}, 18432
        v_lshlrev_b32 v2, 7, v{vL}
        buffer_load_dword v{vDum}, v2, s[{rX}:{rX+3}], s{sT0} offen
        s_add_u32 s{sT0}, s{sT0}, 8192
        buffer_load_dword v{vDum}, v2, s[{rX}:{rX+3}], s{sT0} offen
        s_add_u32 s{sT0}, s{sT0}, 8192
        v_cmp_gt_u32 vcc, 16, v{vL}
        s_and_saveexec_b64 s[58:59], vcc
        buffer_load_dword v{vDum}, v2, s[{rX}:{rX+3}], s{sT0} offen
        s_mov_b64 exec, s[58:59]
        """)
        p.label(l)
        if o.tlb:
            l = nl('TLB')
            p(f"""
            s_cmp_eq_u32 s{sCnt}, {o.tlb - 1}
            s_cbranch_scc0 {l}
            s_cmp_eq_u32 s{sWave}, 5
            s_cbranch_scc0 {l}
            s_lshl_b32 s{sT0}, s{sB}, 2
            s_add_u32 s{sT0}, s{sT0}, s{sJj}
            s_mul_i32 s{sT0}, s{sT0}, 36864
            s_add_u32 s{sT0}, s{sT0}, {WS_PART}
            v_mul_u32_u24 v2, 1152, v{vL}
            v_lshlrev_b32 v2, 10, v2
            v_add_u32 v2, s{sT0}, v2
            s_lshl_b32 s{sT0}, s{sWg}, 14
            v_mov_b32 v3, s{sT0}
            v_cmp_eq_u32 vcc, 8, v{vL}
            s_lshl_b32 s{sT0}, s{sWg}, 7
            s_add_u32 s{sT0}, s{sT0}, {WS_FLAG}
            v_cndmask_b32 v2, v2, v3, vcc
            v_mov_b32 v3, s{sT0}
            v_cmp_eq_u32 vcc, 9, v{vL}
            s_mul_i32 s{sT0}, s{sB}, {64*1152}
            v_mov_b32 v4, s{sT0}
            v_cndmask_b32 v2, v2, v3, vcc
            s_mov_b64 s[58:59], exec
            s_mov_b64 exec, 0x3ff
            buffer_load_dword v{vDum}, v2, s[{rO}:{rO+3}], 0 offen sc1
            s_mov_b64 exec, 1
            global_load_dword v{vDum}, v4, s[{sOut}:{sOut+1}] sc1
            s_mov_b64 exec, s[58:59]
            """)
            p.label(l)

    wm = lambda keys: min(W[k] for k in keys)
    loop_start = len(p.ins)
    p.label("K1_LOOP")
    alpha('L0', 0, True, True, wm([('a', 0), ('a', 2), ('a', 4)]))
    beta('L0', 0, True, True, True, wm([('b', 0), ('b', 2), ('b', 4)]))
    alpha('L1', 1, True, True, wm([('a', 1), ('a', 3), ('a', 5)]))
    beta('L1', 1, True, True, True, wm([('b', 1), ('b', 3), ('b', 5)]), extra=wo_touch)
    p(f"s_add_u32 s{sCnt}, s{sCnt}, 1")
    if o.v7e:
        assert o.lead == 4
        p(f"""
        s_cmp_eq_u32 s{sCnt}, 2
        s_cbranch_scc0 K1_V7E
        s_mov_b32 s{rK}, s{rV}
        s_mov_b32 s{rK+1}, s{rV+1}
        s_add_u32 s{sOffB}, s{sW4096}, {7*32768}
        s_mov_b32 s{sStep}, 65536
        """)
        for u in range(4): p(f"v_mov_b32 v{vKo+u}, v{vVo}")
        p.label("K1_V7E")
    p(f"""
    s_cmp_lt_u32 s{sCnt}, 3
    s_cbranch_scc1 K1_LOOP
    """)
    if o.dry:
        keep = []
        for x in p.ins[loop_start:]:
            drop = False
            if o.dry & 1 and x.kind == 'mfma': drop = True
            if o.dry & 2 and x.kind == 'ds': drop = True
            if o.dry & 4 and x.kind == 'valu' and not x.op.startswith('v_cmp'): drop = True
            if not drop: keep.append(x)
        p.ins[loop_start:] = keep
    stamp(p, o, 4)
    if o.fuse:
        p(f"""
        s_cmp_eq_u32 s{sWave}, 7
        s_cbranch_scc0 K1_NL
        v_mov_b32 v8, 0
        global_load_dwordx2 v[{vNon}:{vNon+1}], v8, s[{sDbg}:{sDbg+1}] sc1
        """)
        p.label("K1_NL")
    if o.lead == 4:
        STAT, NONL, OX = 0, 4096, R[2]
        NEARLY = 5 if o.early else 0
        def wo_addr(G): return 16384 + G * 9216
    else:
        STAT, NONL, OX = 98304, 102400, 0
        NEARLY = 6 if o.early else 0
        def wo_addr(G): return (108544 + G * 9216) if G < 6 else (G - 6) * 9216
    def wo_group_dma(gexpr_sgpr):
        p(f"s_mul_i32 s{sT1}, s{gexpr_sgpr}, 9216")
        if o.lead == 4:
            p(f"s_add_u32 s{sT1}, s{sT1}, 16384")
        else:
            p(f"""
            s_add_u32 s{sT0}, s{sT1}, 108544
            s_sub_u32 s{sT1}, s{sT1}, {6*9216}
            s_cmp_lt_u32 s{gexpr_sgpr}, 6
            s_cselect_b32 s{sT1}, s{sT0}, s{sT1}
            """)
        p(f"s_mul_i32 s{sT0}, s{gexpr_sgpr}, 36864")
        for i in range(9):
            if i % 4 == 0:
                p(f"s_add_u32 m0, s{sT1}, {(i//4)*4096}")
            p(f"buffer_load_dwordx4 v{vOff+i}, s[{rW}:{rW+3}], s{sT0} offen offset:{(i%4)*1024} lds")
    def early_wo():
        p(f"""
        s_cmp_lt_u32 s{sWave}, {NEARLY}
        s_cbranch_scc0 K1_WG1
        """)
        wo_group_dma(sWave)
        p.label("K1_WG1")
    if o.fuse: wo_srd()
    EARLY_IN_LOOP = o.fuse and o.lead == 2 and NEARLY > 0
    alpha('A', 0, True, o.lead == 2, W[('a', 6)])
    def v7_ptr():
        p(f"s_mov_b32 s{sRV}, {R[0]}")
        v_addrs(sRV)
    beta('A', 0, False, False, True, 63, barrier=False, extra=(early_wo if EARLY_IN_LOOP else (v7_ptr if o.v7e else None)))
    if EARLY_IN_LOOP:
        assert W[('a', 7)] == 0
        p(f"""
        s_cmp_lt_u32 s{sWave}, {NEARLY}
        s_cbranch_scc0 K1_V7A
        s_waitcnt vmcnt(9)
        s_branch K1_V7B
        """)
        p.label("K1_V7A")
        p("s_waitcnt vmcnt(0)")
        p.label("K1_V7B")
        alpha('B', 1, False, False, 63)
    else:
        alpha('B', 1, False, False, W[('a', 7)])
    p("s_waitcnt lgkmcnt(0)" if EARLY_IN_LOOP else "s_waitcnt vmcnt(0) lgkmcnt(0)")
    for a in range(4):
        for ks in range(2):
            f = vVf + (a * 2 + ks) * 4
            p(f"{MF} {rg(vO+16*a,16)}, {rg(f,4)}, {rg(vP+4*ks,4)}, {rg(vO+16*a,16)}")
    stamp(p, o, 5)

    vS0 = vS[0]
    p(f"""
    v_add_f32 v{vL0}, v{vL0}, v{vL1}
    v_mov_b32 v{vL1}, v{vL0}
    s_nop 1
    v_permlane32_swap_b32 v{vL0}, v{vL1}
    v_add_f32 v{vThr}, v{vL0}, v{vL1}
    v_and_b32 v7, 31, v{vL}
    s_lshl_b32 s{sT0}, s{sKq}, 9
    s_lshl_b32 s{sT1}, s{sQh}, 8
    s_add_u32 s{sT0}, s{sT0}, s{sT1}
    s_add_u32 s{sT0}, s{sT0}, {STAT}
    s_add_u32 s{sT1}, s{sT1}, {STAT}
    v_lshlrev_b32 v7, 3, v7
    v_add_u32 v2, s{sT0}, v7
    v_add_u32 v7, s{sT1}, v7
    v_lshlrev_b32 v3, 4, v{vL}
    """)
    p("s_barrier")
    stamp(p, o, 'e1')
    p(f"""
    ds_write_b64 v2, v[{vM}:{vM+1}]
    """)
    if o.fuse:
        p(f"""
        s_cmp_eq_u32 s{sWave}, 7
        s_cbranch_scc0 K1_NON2
        s_mov_b32 s{sT2}, 0
        """)
        p.label("K1_NONP")
        p(f"""
        v_readfirstlane_b32 s{sT0}, v{vNon}
        s_add_u32 s{sT2}, s{sT2}, 1
        s_cmp_lg_u32 s{sT0}, 0
        s_cbranch_scc1 K1_NONOK
        s_cmp_lt_u32 s{sT2}, {SPIN}
        s_cbranch_scc0 K1_NONOK
        v_mov_b32 v8, 0
        global_load_dwordx2 v[{vNon}:{vNon+1}], v8, s[{sDbg}:{sDbg+1}] sc1
        s_waitcnt vmcnt(0)
        s_branch K1_NONP
        """)
        p.label("K1_NONOK")
        p(f"""
        v_mov_b32 v6, {NONL}
        ds_write_b64 v6, v[{vNon}:{vNon+1}]
        """)
        if o.fast:
            p(f"""
            s_and_b32 s{sT0}, s{sWg}, 0xfc
            s_lshl_b32 s{sT0}, s{sT0}, 7
            s_add_u32 s{sT0}, s{sT0}, {WS_FLAG}
            v_and_b32 v12, 3, v{vL}
            v_lshlrev_b32 v13, 7, v12
            buffer_load_dword v11, v13, s[{rO}:{rO+3}], s{sT0} offen sc1
            """)
        p.label("K1_NON2")
    for a in range(1, 4):
        p(f"""
        s_add_u32 s{sT0}, s{sKq}, {a}
        s_and_b32 s{sT0}, s{sT0}, 3
        s_lshl_b32 s{sT2}, s{sQh}, 2
        s_add_u32 s{sT0}, s{sT0}, s{sT2}
        s_mul_i32 s{sT0}, s{sT0}, 12288
        s_add_u32 s{sT0}, s{sT0}, {OX + (3-a)*4096}
        v_add_u32 v4, s{sT0}, v3
        """)
        for g in range(4):
            p(f"ds_write_b128 v4, {rg(vO+16*a+4*g,4)} offset:{g*1024}")
    if o.fuse and o.lead == 4 and NEARLY:
        early_wo()
    p(f"""
    s_lshl_b32 s{sT0}, s{sQh}, 2
    s_add_u32 s{sT0}, s{sT0}, s{sKq}
    s_mul_i32 s{sT0}, s{sT0}, 12288
    s_add_u32 s{sT0}, s{sT0}, {OX}
    v_add_u32 v4, s{sT0}, v3
    s_waitcnt lgkmcnt(0)
    """)
    stamp(p, o, 'e2')
    p("s_barrier")
    stamp(p, o, 'e3')
    for k in range(4):
        p(f"ds_read_b64 v[{vS0+2*k}:{vS0+2*k+1}], v7 offset:{k*512}")
    for i in range(3):
        for g in range(4):
            p(f"ds_read_b128 {rg(vO+16*(i+1)+4*g,4)}, v4 offset:{i*4096+g*1024}")
    if o.fuse:
        p(f"""
        v_mov_b32 v6, {NONL}
        ds_read_b64 v[8:9], v6
        s_waitcnt lgkmcnt(13)
        """)
    else:
        p("s_waitcnt lgkmcnt(12)")
    m = [vS0 + 0, vS0 + 2, vS0 + 4, vS0 + 6]; l = [vS0 + 1, vS0 + 3, vS0 + 5, vS0 + 7]
    p(f"""
    v_max3_f32 v2, v{m[0]}, v{m[1]}, v{m[2]}
    v_max_f32 v2, v2, v{m[3]}
    """)
    for k in range(4):
        p(f"v_sub_f32 v{m[k]}, v{m[k]}, v2")
    for k in range(4):
        p(f"v_exp_f32 v{m[k]}, v{m[k]}")
    p(f"""
    v_mul_f32 v3, v{m[0]}, v{l[0]}
    v_fmac_f32 v3, v{m[1]}, v{l[1]}
    v_fmac_f32 v3, v{m[2]}, v{l[2]}
    v_fmac_f32 v3, v{m[3]}, v{l[3]}
    v_rcp_f32 v3, v3
    """)
    for k in range(4):
        p(f"v_mul_f32 v{m[k]}, v{m[k]}, v3")
    wr = vS0 + 8
    for kq in range(4):
        p(f"s_cmp_eq_u32 s{sKq}, {kq}")
        p(f"s_cbranch_scc0 K1_WR{kq}")
        for i in range(4):
            p(f"v_mov_b32 v{wr+i}, v{m[(kq+i)&3]}")
        p.label(f"K1_WR{kq}")
    for i in range(16):
        p(f"v_mul_f32 v{vO+i}, v{vO+i}, v{wr}")
    nextra = 1 if o.fuse else 0
    for s in range(3):
        p(f"s_waitcnt lgkmcnt({8-4*s+nextra})")
        for i in range(16):
            p(f"v_fmac_f32 v{vO+i}, v{vO+16*(s+1)+i}, v{wr+s+1}")
    order = [0, 2, 1, 3]
    for idx, g in enumerate(order):
        p(f"v_cvt_pk_bf16_f32 v{vP+2*idx}, v{vO+4*g}, v{vO+4*g+1}")
        p(f"v_cvt_pk_bf16_f32 v{vP+2*idx+1}, v{vO+4*g+2}, v{vO+4*g+3}")
    if o.fuse and o.fast:
        p(f"""
        s_cmp_eq_u32 s{sWave}, 7
        s_cbranch_scc0 K1_RDY
        s_waitcnt vmcnt(0)
        v_cmp_eq_u32 vcc, v11, v{vNon}
        v_cmp_eq_u32 s[58:59], s{sJj}, v12
        s_or_b64 vcc, vcc, s[58:59]
        s_cmp_eq_u64 vcc, -1
        s_cselect_b32 s{sT0}, 1, 0
        v_mov_b32 v12, s{sT0}
        v_mov_b32 v6, {NONL+8}
        ds_write_b32 v6, v12
        """)
        p.label("K1_RDY")
    stamp(p, o, 'e4')
    SC = ' sc1' if o.fuse else ''
    p(f"""
    v_and_b32 v2, 15, v{vL}
    v_lshrrev_b32 v3, 5, v{vL}
    v_lshl_add_u32 v2, v3, 4, v2
    v_lshlrev_b32 v2, 4, v2
    v_bfe_u32 v3, v{vL}, 4, 1
    v_lshl_add_u32 v2, v3, 12, v2
    s_lshl_b32 s{sT0}, s{sWg}, 14
    s_lshl_b32 s{sT1}, s{sQh}, 13
    s_add_u32 s{sT0}, s{sT0}, s{sT1}
    s_lshl_b32 s{sT1}, s{sKq}, 10
    s_add_u32 s{sT0}, s{sT0}, s{sT1}
    buffer_store_dwordx4 {rg(vP,4)}, v2, s[{rO}:{rO+3}], s{sT0} offen{SC}
    buffer_store_dwordx4 {rg(vP+4,4)}, v2, s[{rO}:{rO+3}], s{sT0} offen offset:512{SC}
    """)
    if not o.fuse:
        if o.stamps:
            p("s_waitcnt vmcnt(0)")
            stamp(p, o, 6)
            stamp_flush(p, o, 0, 7, sWs)
        p("s_branch K1_END")
    else:
        tail(p, o, locals())
    for tag in ('L0', 'L1', 'A', 'B'):
        rescale(tag)
    p.label("K1_END")
    p("s_endpgm")
    return p

def gemm_body(p, vAcc, vB, vF, vAd, vLA, sKh2, sT, wo_addr, vm_base=0):
    HA, HB = list(range(0, 5)), list(range(5, 9))
    def addr(kk):
        c0, c1 = wo_addr(kk), wo_addr(8 + kk)
        p(f"""
        s_mov_b32 s{sT}, {c1}
        s_cmp_eq_u32 s{sKh2}, 0
        s_cselect_b32 s{sT}, {c0}, s{sT}
        v_add_u32 v{vAd + (kk & 1)}, s{sT}, v{vLA}
        """)
    def reads(kk, half):
        ad = vAd + (kk & 1)
        for nt in half:
            f = vF + 4 * nt
            p(f"ds_read_b64_tr_b16 {rg(f,2)}, v{ad} offset:{nt*32}")
            p(f"ds_read_b64_tr_b16 {rg(f+2,2)}, v{ad} offset:{4608+nt*32}")
    def mfmas(kk, half, younger):
        n = len(half)
        h1 = (n + 1) // 2
        for idx, nt in enumerate(half):
            f = vF + 4 * nt
            if idx == 0: p(f"s_waitcnt lgkmcnt({min(15, younger + 2*(n-h1))})")
            if idx == h1: p(f"s_waitcnt lgkmcnt({min(15, younger)})")
            p(f"{MF16} {rg(vAcc+4*nt,4)}, {rg(f,4)}, {rg(vB+4*kk,4)}, {rg(vAcc+4*nt,4)}")
    addr(0)
    reads(0, HA)
    for kk in range(8):
        reads(kk, HB)
        if kk < 7: addr(kk + 1)
        p(f"s_waitcnt vmcnt({7-kk+vm_base})")
        mfmas(kk, HA, 2 * len(HB))
        if kk < 7:
            reads(kk + 1, HA)
            mfmas(kk, HB, 2 * len(HA))
        else:
            mfmas(kk, HB, 0)

def tail(p, o, L):
    g = lambda n: L[n]
    sWave, sB, sXc, sJj, sWg, sT0, sT1, sT2 = g('sWave'), g('sB'), g('sXc'), g('sJj'), g('sWg'), g('sT0'), g('sT1'), g('sT2')
    rO, rW, rX, sN, sTag, sOut, sWs = g('rO'), g('rW'), g('rX'), g('sN'), g('sTag'), g('sOut'), g('sWs')
    vL, vOff, wo_addr, NEARLY = g('vL'), g('vOff'), g('wo_addr'), g('NEARLY')
    wo_group_dma = g('wo_group_dma')
    sQt, sKh2 = 40, 41
    vAcc, vB, vF, vLA, vAd = 28, 64, 96, 19, 20
    p(f"""
    s_waitcnt vmcnt(0) lgkmcnt(0)
    v_readfirstlane_b32 s{sN}, v8
    v_readfirstlane_b32 s{sN+1}, v9
    s_barrier
    """)
    if o.stamps: stamp(p, o, 6)
    NONL = g('NONL')
    sFast = 52
    def b_loads():
        p(f"""
        s_and_b32 s{sT0}, s{sWg}, 0xfc
        s_lshl_b32 s{sT1}, s{sKh2}, 1
        s_add_u32 s{sT0}, s{sT0}, s{sT1}
        s_lshl_b32 s{sT0}, s{sT0}, 14
        s_lshl_b32 s{sT1}, s{sQt}, 12
        s_add_u32 s{sT0}, s{sT0}, s{sT1}
        s_add_u32 s{sT1}, s{sT0}, 16384
        """)
        for kk in range(8):
            p(f"buffer_load_dwordx4 {rg(vB+4*kk,4)}, v5, s[{rO}:{rO+3}], s{sT0 if kk < 4 else sT1} offen offset:{(kk&3)*1024} sc1")
    p(f"""
    s_and_b32 s{sQt}, s{sWave}, 3
    s_lshr_b32 s{sKh2}, s{sWave}, 2
    v_lshlrev_b32 v5, 4, v{vL}
    s_mov_b32 s{sFast}, 0
    """)
    if o.fast:
        p(f"""
        v_mov_b32 v6, {NONL+8}
        ds_read_b32 v12, v6
        """)
    p(f"""
    s_cmp_eq_u32 s{sWave}, 7
    s_cbranch_scc0 T_F0
    v_mov_b32 v9, s{sN}
    s_lshl_b32 s{sT0}, s{sWg}, 7
    s_add_u32 s{sT0}, s{sT0}, {WS_FLAG}
    v_mov_b32 v3, 0
    v_cmp_eq_u32 vcc, 0, v{vL}
    s_and_saveexec_b64 s[58:59], vcc
    buffer_store_dword v9, v3, s[{rO}:{rO+3}], s{sT0} offen sc1
    s_mov_b64 exec, s[58:59]
    """)
    p.label("T_F0")
    if o.fast:
        p(f"""
        s_waitcnt lgkmcnt(0)
        v_readfirstlane_b32 s{sFast}, v12
        s_cmp_eq_u32 s{sFast}, 0
        s_cbranch_scc1 T_SLOW
        """)
        b_loads()
        p.label("T_SLOW")
    p(f"""
    s_cmp_eq_u32 s{sWave}, 7
    s_cbranch_scc0 T_NOFLAG
    s_cmp_eq_u32 s{sFast}, 0
    s_cbranch_scc0 T_SETUP
    s_and_b32 s{sT0}, s{sWg}, 0xfc
    s_lshl_b32 s{sT0}, s{sT0}, 7
    s_add_u32 s{sT0}, s{sT0}, {WS_FLAG}
    v_and_b32 v8, 3, v{vL}
    v_lshlrev_b32 v8, 7, v8
    s_mov_b32 s{sT1}, 0
    buffer_load_dword v10, v8, s[{rO}:{rO+3}], s{sT0} offen sc1
    buffer_load_dword v11, v8, s[{rO}:{rO+3}], s{sT0} offen sc1
    """)
    p("s_branch T_SETUP")
    p.label("T_NOFLAG")
    nlate = 16 - NEARLY
    for rep in range((nlate + 6) // 7):
        cnt = min(7, nlate - 7 * rep)
        if cnt < 7:
            p(f"s_cmp_lt_u32 s{sWave}, {cnt}")
            p("s_cbranch_scc0 T_SETUP")
        p(f"s_add_u32 s{sT2}, s{sWave}, {NEARLY + 7*rep}")
        wo_group_dma(sT2)
    p.label("T_SETUP")
    p(f"""
    v_lshrrev_b32 v2, 4, v{vL}
    v_and_b32 v3, 15, v{vL}
    v_lshrrev_b32 v4, 2, v3
    v_and_b32 v6, 3, v3
    v_lshl_add_u32 v2, v2, 2, v4
    v_mul_u32_u24 v2, 288, v2
    v_lshl_add_u32 v{vLA}, v6, 3, v2
    s_and_b32 s{sTag}, s{sN}, 0xfff
    s_lshr_b32 s{sTag+1}, s{sN}, 12
    s_and_b32 s{sTag+1}, s{sTag+1}, 0xfff
    s_lshr_b32 s{sTag+2}, s{sN}, 24
    s_lshl_b32 s{sT2}, s{sN+1}, 8
    s_or_b32 s{sTag+2}, s{sTag+2}, s{sT2}
    s_and_b32 s{sTag+2}, s{sTag+2}, 0xfff
    s_lshr_b32 s{sTag+3}, s{sN+1}, 4
    s_and_b32 s{sTag+3}, s{sTag+3}, 0xfff
    """)
    for i in range(36):
        p(f"v_mov_b32 v{vAcc+i}, 0")
    p(f"""
    s_cmp_eq_u32 s{sWave}, 7
    s_cbranch_scc0 T_NOPOLL
    s_cmp_eq_u32 s{sFast}, 0
    s_cbranch_scc0 T_NOPOLL
    """)
    p.label("T_POLL1")
    p(f"""
    s_waitcnt vmcnt(1)
    v_cmp_ne_u32 vcc, v10, v9
    s_cbranch_vccz T_NOPOLL
    buffer_load_dword v10, v8, s[{rO}:{rO+3}], s{sT0} offen sc1
    s_add_u32 s{sT1}, s{sT1}, 1
    s_waitcnt vmcnt(1)
    v_cmp_ne_u32 vcc, v11, v9
    s_cbranch_vccz T_NOPOLL
    buffer_load_dword v11, v8, s[{rO}:{rO+3}], s{sT0} offen sc1
    s_cmp_lt_u32 s{sT1}, {SPIN}
    s_cbranch_scc1 T_POLL1
    """)
    p.label("T_NOPOLL")
    p(f"""
    s_waitcnt vmcnt(0)
    s_barrier
    """)
    if o.stamps: stamp(p, o, 7)
    p(f"s_cmp_eq_u32 s{sFast}, 0")
    p("s_cbranch_scc0 T_BDONE")
    b_loads()
    p.label("T_BDONE")
    if o.stamps and o.stset:
        p("s_waitcnt vmcnt(0)")
        stamp(p, o, 'g0')
    gemm_body(p, vAcc, vB, vF, vAd, vLA, sKh2, sT2, wo_addr)
    if o.stamps: stamp(p, o, 8)
    p("s_barrier")
    stamp(p, o, 'r1')
    p(f"""
    s_mul_i32 s{sT0}, s{sQt}, 9216
    v_add_u32 v2, s{sT0}, v5
    s_cmp_eq_u32 s{sKh2}, 0
    s_cbranch_scc0 T_H1
    """)
    for nt in range(5, 9):
        p(f"ds_write_b128 v2, {rg(vAcc+4*nt,4)} offset:{nt*1024}")
    p("s_branch T_H2")
    p.label("T_H1")
    for nt in range(0, 5):
        p(f"ds_write_b128 v2, {rg(vAcc+4*nt,4)} offset:{nt*1024}")
    p.label("T_H2")
    TAGGED = (o.fuse == 2)
    p(f"""
    v_mov_b32 v7, 0xfffff000
    s_lshl_b32 s{sT0}, s{sXc}, 3
    s_add_u32 s{sT0}, s{sT0}, s{sB}
    s_lshl_b32 s{sT0}, s{sT0}, 2
    s_add_u32 s{sT0}, s{sT0}, s{sJj}
    s_lshl_b32 s{sT0}, s{sT0}, 2
    s_add_u32 s{sT0}, s{sT0}, s{sQt}
    s_mul_i32 s{sT0}, s{sT0}, 9216
    s_add_u32 s{sT0}, s{sT0}, {WS_PART}
    s_waitcnt lgkmcnt(0)
    """)
    stamp(p, o, 'r2')
    p("s_barrier")
    stamp(p, o, 'r3')
    p(f"""
    s_cmp_eq_u32 s{sKh2}, 0
    s_cbranch_scc0 T_H3
    """)
    def fin(nts):
        for nt in nts:
            p(f"ds_read_b128 {rg(vF+4*nt,4)}, v2 offset:{nt*1024}")
        for idx, nt in enumerate(nts):
            p(f"s_waitcnt lgkmcnt({len(nts)-1-idx})")
            for e in range(4):
                p(f"v_add_f32 v{vAcc+4*nt+e}, v{vAcc+4*nt+e}, v{vF+4*nt+e}")
            if TAGGED:
                for e in range(4):
                    p(f"v_and_b32 v{vAcc+4*nt+e}, v7, v{vAcc+4*nt+e}")
                    p(f"v_or_b32 v{vAcc+4*nt+e}, s{sTag+e}, v{vAcc+4*nt+e}")
            p(f"s_add_u32 s{sT1}, s{sT0}, {(nt//4)*4096}")
            p(f"buffer_store_dwordx4 {rg(vAcc+4*nt,4)}, v5, s[{rO}:{rO+3}], s{sT1} offen offset:{(nt%4)*1024}{' sc1' if TAGGED else ''}")
    fin(list(range(0, 5)))
    p("s_branch T_H4")
    p.label("T_H3")
    fin(list(range(5, 9)))
    p.label("T_H4")
    if o.stamps: stamp(p, o, 9)
    if TAGGED:
        vX = 100
        p(f"""
        s_cmp_ge_u32 s{sWave}, 5
        s_cbranch_scc1 T_DONE
        v_cmp_gt_u32 vcc, 288, v0
        s_and_saveexec_b64 s[58:59], vcc
        s_mul_i32 s{sT0}, s{sXc}, 288
        v_add_u32 v2, s{sT0}, v0
        v_lshlrev_b32 v3, 4, v2
        s_lshl_b32 s{sT0}, s{sB}, 2
        s_add_u32 s{sT0}, s{sT0}, s{sJj}
        s_mul_i32 s{sT0}, s{sT0}, 36864
        s_add_u32 s{sT0}, s{sT0}, {WS_PART}
        s_mov_b32 s{rX}, s{sOut}
        s_mov_b32 s{rX+1}, s{sOut+1}
        s_mov_b32 s{rX+2}, {512*576*2}
        s_mov_b32 s{rX+3}, 0x20000
        v_lshrrev_b32 v4, 6, v2
        v_mul_u32_u24 v5, 57, v4
        v_lshrrev_b32 v5, 9, v5
        v_mul_u32_u24 v6, 9, v5
        v_sub_u32 v6, v4, v6
        v_and_b32 v4, 15, v2
        v_lshl_add_u32 v4, v5, 4, v4
        s_lshl_b32 s{sT1}, s{sB}, 6
        v_add_u32 v4, s{sT1}, v4
        s_movk_i32 s{sT1}, 1152
        v_mul_u32_u24 v4, s{sT1}, v4
        v_lshlrev_b32 v6, 5, v6
        v_add_u32 v4, v4, v6
        v_bfe_u32 v6, v2, 4, 2
        v_lshl_add_u32 v4, v6, 3, v4
        s_mul_i32 s{sT1}, s{sJj}, 288
        v_add_u32 v4, s{sT1}, v4
        s_mov_b32 s{sT2}, 0
        """)
        if o.prepoll:
            p(f"""
            s_mov_b64 s[56:57], exec
            v_readfirstlane_b32 s{sT1}, v3
            v_mul_u32_u24 v6, {32*36864 // 1024}, v{vL}
            v_lshlrev_b32 v6, 10, v6
            v_add_u32 v6, s{sT1}, v6
            v_mov_b32 v9, s{sTag}
            s_mov_b64 exec, 0xff
            buffer_load_dword v10, v6, s[{rO}:{rO+3}], s{sT0} offen sc1
            buffer_load_dword v11, v6, s[{rO}:{rO+3}], s{sT0} offen sc1
            """)
            p.label("T_PP")
            p(f"""
            s_waitcnt vmcnt(1)
            v_xor_b32 v8, v10, v9
            v_and_b32 v8, 0xfff, v8
            v_cmp_ne_u32 vcc, 0, v8
            s_cbranch_vccz T_PPD
            buffer_load_dword v10, v6, s[{rO}:{rO+3}], s{sT0} offen sc1
            s_add_u32 s{sT2}, s{sT2}, 1
            s_waitcnt vmcnt(1)
            v_xor_b32 v8, v11, v9
            v_and_b32 v8, 0xfff, v8
            v_cmp_ne_u32 vcc, 0, v8
            s_cbranch_vccz T_PPD
            buffer_load_dword v11, v6, s[{rO}:{rO+3}], s{sT0} offen sc1
            s_cmp_lt_u32 s{sT2}, {SPIN}
            s_cbranch_scc1 T_PP
            """)
            p.label("T_PPD")
            p(f"""
            s_mov_b64 exec, s[56:57]
            s_mov_b32 s{sT2}, 0
            """)
        p.label("T_POLL2")
        p(f"s_mov_b32 s{sT1}, s{sT0}")
        for s in range(8):
            p(f"buffer_load_dwordx4 {rg(vX+4*s,4)}, v3, s[{rO}:{rO+3}], s{sT1} offen sc1")
            if s < 7: p(f"s_add_u32 s{sT1}, s{sT1}, {32*36864}")
        p(f"""
        s_add_u32 s{sT2}, s{sT2}, 1
        v_mov_b32 v6, 0
        """)
        for s in range(8):
            p(f"s_waitcnt vmcnt({7-s})")
            for e in range(4):
                p(f"v_xor_b32 v8, s{sTag+e}, v{vX+4*s+e}")
                p(f"v_or_b32 v6, v6, v8")
        p(f"""
        v_and_b32 v6, 0xfff, v6
        v_cmp_ne_u32 vcc, 0, v6
        s_cmp_lt_u32 s{sT2}, {SPIN}
        s_cbranch_scc0 T_SUM
        s_cbranch_vccnz T_POLL2
        """)
        p.label("T_SUM")
        if o.stamps and o.stset == 2:
            p(f"s_mov_b32 s76, s{sT2}")
            p("s_mov_b32 s77, 0")
        for s in range(8):
            for e in range(4):
                p(f"v_and_b32 v{vX+4*s+e}, v7, v{vX+4*s+e}")
        for s in range(1, 8):
            for e in range(4):
                p(f"v_add_f32 v{vX+e}, v{vX+e}, v{vX+4*s+e}")
        p(f"""
        v_cvt_pk_bf16_f32 v8, v{vX}, v{vX+1}
        v_cvt_pk_bf16_f32 v9, v{vX+2}, v{vX+3}
        buffer_store_dwordx2 v[8:9], v4, s[{rX}:{rX+3}], 0 offen{' sc1' if o.outsc else ''}
        s_mov_b64 exec, s[58:59]
        """)
        p.label("T_DONE")
    if o.stamps:
        p("s_waitcnt vmcnt(0)")
        p("s_memrealtime s[90:91]" if o.stamps != 2 else "s_memtime s[90:91]")
        p("s_waitcnt lgkmcnt(0)")
        p("s_mov_b32 s60, s60")
        gen_flush_final(p, o, sWs)
    p("s_branch K1_END")

def gen_flush_final(p, o, sws):
    tag = "STFm"
    if o.stamps == 3:
        p(f"""
        s_cmp_eq_u32 s2, 0
        s_cbranch_scc0 {tag}
        s_load_dwordx2 s[96:97], s[0:1], 48
        s_waitcnt lgkmcnt(0)
        v_cmp_eq_u32 vcc, 0, v0
        s_and_saveexec_b64 s[92:93], vcc
        s_cbranch_execz {tag}x
        v_mov_b32 v4, 0
        """)
        for i in range(10):
            p(f"v_mov_b32 v2, s{60+2*i}")
            p(f"global_store_dword v4, v2, s[96:97] offset:{16+4*i}")
        p("v_mov_b32 v2, s90")
        p(f"global_store_dword v4, v2, s[96:97] offset:{16+40}")
        p.label(tag + 'x')
        p("s_mov_b64 exec, s[92:93]")
        p.label(tag)
        return
    p(f"""
    v_cmp_eq_u32 vcc, {o.stampwave*64}, v0
    s_and_saveexec_b64 s[92:93], vcc
    s_cbranch_execz {tag}
    s_lshl_b32 s94, s2, 7
    s_add_u32 s94, s94, {gen.WS_STAMP}
    s_add_u32 s96, s{sws}, s94
    s_addc_u32 s97, s{sws+1}, 0
    v_mov_b32 v4, 0
    """)
    for i in range(10):
        p(f"""
        v_mov_b32 v2, s{60+2*i}
        v_mov_b32 v3, s{61+2*i}
        global_store_dwordx2 v4, v[2:3], s[96:97] offset:{8*i}
        """)
    p(f"""
    v_mov_b32 v2, s90
    v_mov_b32 v3, s91
    global_store_dwordx2 v4, v[2:3], s[96:97] offset:80
    """)
    p.label(tag)
    p("s_mov_b64 exec, s[92:93]")

def emit(o):
    ks = [('standalone__gqa_block_cached__near_ridge_kernel' if o.fuse == 2 else 'gqa_main_kernel', gen_main(o), 256, 512, 163840)]
    if o.dbg == 2:
        ks = ks[:1]
    out = [HEADER.rstrip()]
    for name, _, g, b, lds in ks:
        if len(ks) == 1 and o.fuse == 2:
            out.append(f"; @launch grid=({g},1,1) block=({b},1,1) lds={lds}")
        else:
            out.append(f"; @launch kernel={name} grid=({g},1,1) block=({b},1,1) lds={lds}")
    out.append('.amdgcn_target "amdgcn-amd-amdhsa--gfx950"')
    out.append('.text')
    for name, p, g, b, lds in ks:
        n = p.fix_hazards()
        errs = p.lint_waits()
        for e in errs[:20]:
            print(f"LINT[{name}]: {e}", file=sys.stderr)
        nv, ns = p.max_regs()
        print(f"{name}: {len(p.ins)} instrs, vgpr {nv}, sgpr {ns}, nops inserted {n}", file=sys.stderr)
        out.append(f".globl {name}\n.p2align 8\n.type {name},@function\n{name}:")
        out.append(p.text())
        out.append(kd(name, max(nv, 8), max(ns, 16)))
    return '\n'.join(out) + '\n'

if __name__ == '__main__':
    ap = argparse.ArgumentParser()
    ap.add_argument('-o', default='standalone__gqa_block_cached__near_ridge.s')
    for k, d in OPTS.items():
        ap.add_argument('--' + k, type=int, default=d)
    a = ap.parse_args()
    o = Opt()
    for k in OPTS:
        setattr(o, k, getattr(a, k))
    open(a.o, 'w').write(emit(o))
```

```python
import sys, argparse
from asmlib import Prog
import gen
from gen import f32bits, SCALE_LOG2E, stamp_flush, kd, HEADER
from gen import stamp as _stamp
STSETS = {0: {0:0,1:1,2:2,3:3,4:4,5:5,6:6,7:7,8:8,9:9},
          1: {5:0, 'e1':1, 'e2':2, 'e3':3, 'e4':4, 6:5, 7:6, 'g0':7, 8:8, 9:9},
          3: {'c0':0,'c1':1,'c2':2,'c3':3,'c4':4,'c5':5,'c6':6,'c7':7,'c8':8, 2:9},
          4: {0:0,'c0':1,'w1':2,'c1':3,'m1':4,'w2':5,'c2':6,'m2':7,'w3':8,'c3':9},
          2: {7:0, 'g0':1, 8:2, 'r1':3, 'r2':4, 'r3':5, 9:6, 'p1':7, 'p2':8, 'p3':9}}
def stamp(p, o, name):
    m = STSETS[getattr(o, 'stset', 0)]
    if name in m: _stamp(p, o, m[name])


WS_O = 0
WS_PART = 4 << 20
WS_FLAG = 16 << 20
WS_SIZE = 17 << 20
MF = 'v_mfma_f32_32x32x16_bf16'
MF16 = 'v_mfma_f32_16x16x32_bf16'
def rg(b, n): return f"v[{b}:{b+n-1}]" if n > 1 else f"v{b}"

class Opt(gen.Opt):
    pass

OPTS = dict(pg=0, v7e=0, fast=1, icpf=4, tlb=0, lead=4, outsc=1, prepoll=1, early=1, dry=0, dmapos=1, skew=0, stset=0, nt=1, dbg=0, stamps=0, stampwave=0, wt=1, kdel=5, k1del=5, late=0, fuse=2, wot=1)
SPIN = 1 << 18

def gen_main(o):
    p = Prog()
    NT = ' nt' if o.nt else ''
    sX, sK, sV, sWq, sWs, sWo = 4, 6, 8, 10, 12, 14
    rK, rV, rW, rX, rO = 16, 20, 24, 28, 32
    sWave, sB, sH, sXc, sQh, sKq = 36, 37, 38, 39, 40, 41
    sRK, sRV, sOff, sIss, sCnt, sJj = 42, 43, 44, 45, 46, 47
    sC, sT0, sT1, sT2 = 48, 49, 50, 51
    sW4096, sWg = 53, 54
    sPar, sStep, sEK, sRngV, sKprev, sOffB = 55, 56, 57, 52, 98, 99
    vOb = 250
    sOut, sDbg, sN, sTag = 80, 82, 84, 86
    vL = 1
    vKo = 10; vVo = 14
    vWo = 15; vXo = 17; vLW = 21; vLX = 22
    vVA = 15; vTn = 19
    vLK = 23; vLV = 24
    vKA = 28
    vM, vThr, vL0, vL1 = 36, 37, 38, 39
    vQ = 40
    vS = [72, 88]
    vP = 104
    vKf = 112
    vVf = 144
    vO = 176
    vOff = 240
    vDum = 249
    vNon = 20
    R = [i * 32768 for i in range(5)]
    NS = o.lead + 1
    HL = o.lead // 2
    assert not o.skew
    QS = [139264, 65536, 90112, 114688]
    lab = [0]
    def nl(s):
        lab[0] += 1
        return f"K1_{s}{lab[0]}"
    vq = []
    def vissue(tag, n): vq.extend([tag] * n)
    def vneed(*tags):
        idx = [i for i, t in enumerate(vq) if t in tags]
        if not idx: return 63
        n = len(vq) - 1 - idx[-1]
        del vq[:idx[-1] + 1]
        return min(n, 63)

    p(f"""
    s_cmp_ge_u32 s2, 256
    s_cbranch_scc1 K1_END
    s_load_dwordx4 s[4:7], s[0:1], 0
    s_load_dwordx4 s[8:11], s[0:1], 16
    s_load_dwordx2 s[12:13], s[0:1], 56
    s_load_dwordx2 s[14:15], s[0:1], 32
    s_load_dwordx4 s[80:83], s[0:1], 40
    """)
    if o.icpf:
        ICL = o.icpf
        p(f"""
        s_getpc_b64 s[90:91]
        """)
        p.label("K1_PCREF")
        p(f"""
        s_mov_b32 s93, K1_END-K1_PCREF
        v_cmp_gt_u32 vcc, {ICL}, v0
        s_and_saveexec_b64 s[58:59], vcc
        s_cbranch_execz K1_ICD
        s_lshr_b32 s92, s2, 3
        s_mul_i32 s92, s92, {ICL*128}
        v_lshlrev_b32 v2, 7, v0
        v_add_u32 v2, s92, v2
        v_min_u32 v2, s93, v2
        global_load_dword v{vDum}, v2, s[90:91]
        """)
        p.label("K1_ICD")
        p("s_mov_b64 exec, s[58:59]")
    p(f"""
    v_and_b32 v{vL}, 63, v0
    v_lshrrev_b32 v2, 6, v0
    s_and_b32 s{sXc}, s2, 7
    s_lshr_b32 s{sT1}, s2, 3
    v_readfirstlane_b32 s{sWave}, v2
    s_lshr_b32 s{sB}, s{sT1}, 2
    s_and_b32 s{sJj}, s{sT1}, 3
    s_lshl_b32 s{sH}, s{sXc}, 2
    s_add_u32 s{sH}, s{sH}, s{sJj}
    s_lshl_b32 s{sWg}, s{sB}, 5
    s_add_u32 s{sWg}, s{sWg}, s{sH}
    s_and_b32 s{sQh}, s{sWave}, 1
    s_lshr_b32 s{sKq}, s{sWave}, 1
    s_and_b32 s{sPar}, s{sH}, {1 if o.skew else 0}
    s_lshl_b32 s{sW4096}, s{sWave}, 12
    s_mov_b32 s{sC}, 0x{f32bits(SCALE_LOG2E):08x}
    v_and_b32 v2, 15, v{vL}
    v_lshrrev_b32 v3, 4, v{vL}
    v_lshrrev_b32 v4, 2, v2
    v_and_b32 v5, 3, v2
    v_lshrrev_b32 v6, 5, v{vL}
    v_and_b32 v7, 31, v{vL}
    v_lshlrev_b32 v8, 2, v3
    v_xor_b32 v8, v8, v2
    v_lshlrev_b32 v8, 4, v8
    v_lshl_add_u32 v{vVo}, v3, 8, v8
    v_lshl_add_u32 v{vWo}, v3, 13, v8
    v_add_u32 v{vWo+1}, 31744, v{vWo}
    s_lshl_b32 s{sT0}, s{sWave}, 3
    s_movk_i32 s{sT1}, 1152
    v_lshrrev_b32 v8, 3, v{vL}
    v_add_u32 v8, s{sT0}, v8
    v_mul_lo_u32 v8, v8, s{sT1}
    s_lshl_b32 s{sT0}, s{sWave}, 2
    v_add_u32 v9, s{sT0}, v3
    v_and_b32 v9, 7, v9
    v_and_b32 v{vXo}, 7, v{vL}
    v_xor_b32 v9, v9, v{vXo}
    v_lshl_add_u32 v{vXo}, v9, 4, v8
    """)
    p("s_waitcnt lgkmcnt(0)")
    stamp(p, o, 0)
    p(f"""
    s_lshl_b32 s{sT0}, s{sH}, 8
    s_add_u32 s{rW}, s{sWq}, s{sT0}
    s_addc_u32 s{rW+1}, s{sWq+1}, 0
    s_sub_u32 s{rW+2}, {576*8192}, s{sT0}
    s_mov_b32 s{rW+3}, 0x20000
    s_mul_i32 s{sT0}, s{sB}, {64*1152}
    s_add_u32 s{rX}, s{sX}, s{sT0}
    s_addc_u32 s{rX+1}, s{sX+1}, 0
    s_mov_b32 s{rX+2}, {64*1152}
    s_mov_b32 s{rX+3}, 0x20000
    """)

    def issue_chunk(c):
        qs = QS[c % 4]
        p(f"""
        s_lshl_b32 s{sT0}, s{sWave}, 16
        s_add_u32 s{sT0}, s{sT0}, {c*524288}
        s_lshr_b32 s{sT1}, s{sW4096}, 1
        s_add_u32 m0, s{sT1}, {qs}
        """)
        for u in range(2):
            p(f"buffer_load_dwordx4 v{vWo+u}, s[{rW}:{rW+3}], s{sT0} offen offset:{u*1024} lds")
        p(f"""
        s_lshr_b32 s{sT1}, s{sW4096}, 2
        s_add_u32 m0, s{sT1}, {qs+16384}
        s_movk_i32 s{sT0}, {c*128}
        buffer_load_dwordx4 v{vXo}, s[{rX}:{rX+3}], s{sT0} offen lds
        """)
        vissue(('C', c), 3)

    if o.wt:
        p(f"""
        s_cmp_eq_u32 s{sWave}, 4
        s_cbranch_scc0 K1_WT1
        v_lshrrev_b32 v8, 1, v{vL}
        v_and_b32 v9, 1, v{vL}
        v_lshlrev_b32 v8, 13, v8
        v_lshl_add_u32 v8, v9, 7, v8
        s_mul_i32 s{sT0}, s{sB}, {72*8192}
        buffer_load_dword v{vDum}, v8, s[{rW}:{rW+3}], s{sT0} offen
        s_add_u32 s{sT0}, s{sT0}, {32*8192}
        buffer_load_dword v{vDum}, v8, s[{rW}:{rW+3}], s{sT0} offen
        s_add_u32 s{sT0}, s{sT0}, {32*8192}
        v_cmp_gt_u32 vcc, 16, v{vL}
        s_and_saveexec_b64 s[58:59], vcc
        buffer_load_dword v{vDum}, v8, s[{rW}:{rW+3}], s{sT0} offen
        s_mov_b64 exec, s[58:59]
        """)
        p.label("K1_WT1")
        p(f"""
        s_cmp_eq_u32 s{sWave}, 5
        s_cbranch_scc0 K1_WT2
        v_lshlrev_b32 v9, 7, v{vL}
        s_mul_i32 s{sT0}, s{sJj}, 18432
        buffer_load_dword v{vDum}, v9, s[{rX}:{rX+3}], s{sT0} offen
        s_add_u32 s{sT0}, s{sT0}, 8192
        buffer_load_dword v{vDum}, v9, s[{rX}:{rX+3}], s{sT0} offen
        s_add_u32 s{sT0}, s{sT0}, 8192
        v_cmp_gt_u32 vcc, 16, v{vL}
        s_and_saveexec_b64 s[58:59], vcc
        buffer_load_dword v{vDum}, v9, s[{rX}:{rX+3}], s{sT0} offen
        s_mov_b64 exec, s[58:59]
        """)
        p.label("K1_WT2")
    for c in range(4):
        issue_chunk(c)
    if o.fuse:
        p(f"""
        s_cmp_eq_u32 s2, 0
        s_cbranch_scc0 K1_NON
        s_cmp_eq_u32 s{sWave}, 7
        s_cbranch_scc0 K1_NON
        s_memrealtime s[{sN}:{sN+1}]
        s_waitcnt lgkmcnt(0)
        s_or_b32 s{sN}, s{sN}, 1
        v_mov_b32 v8, s{sN}
        v_mov_b32 v9, s{sN+1}
        v_mov_b32 v{vNon}, 0
        v_cmp_eq_u32 vcc, 0, v{vL}
        s_and_saveexec_b64 s[58:59], vcc
        global_store_dwordx2 v{vNon}, v[8:9], s[{sDbg}:{sDbg+1}] sc1
        s_mov_b64 exec, s[58:59]
        """)
        p.label("K1_NON")
    p(f"""
    s_lshl_b32 s{sT0}, s{sB}, 4
    s_lshr_b32 s{sT1}, s{sH}, 1
    s_add_u32 s{sT0}, s{sT0}, s{sT1}
    s_lshl_b32 s{sT0}, s{sT0}, 18
    s_add_u32 s{rK}, s{sK}, s{sT0}
    s_addc_u32 s{rK+1}, s{sK+1}, 0
    s_mov_b32 s{rK+2}, 0x40000
    s_mov_b32 s{rK+3}, 0x20000
    s_add_u32 s{rV}, s{sV}, s{sT0}
    s_addc_u32 s{rV+1}, s{sV+1}, 0
    s_mov_b32 s{rV+2}, 0x40000
    s_mov_b32 s{rV+3}, 0x20000
    s_mov_b32 s{rO}, s{sWs}
    s_mov_b32 s{rO+1}, s{sWs+1}
    s_mov_b32 s{rO+2}, {WS_SIZE}
    s_mov_b32 s{rO+3}, 0x20000
    """)
    for u in range(4):
        p(f"""
        v_add_u32 v8, {4*u}, v3
        v_xor_b32 v8, v8, v2
        v_lshlrev_b32 v8, 4, v8
        v_lshl_add_u32 v{vKo+u}, v3, 8, v8
        """)

    if o.pg:
        p(f"""
        s_cmp_eq_u32 s{sWave}, 6
        s_cbranch_scc0 K1_PG
        s_mov_b64 s[58:59], exec
        v_mov_b32 v8, 0
        s_mov_b64 exec, 1
        buffer_load_dword v{vDum}, v8, s[{rK}:{rK+3}], 0 offen{NT}
        buffer_load_dword v{vDum}, v8, s[{rV}:{rV+3}], 0 offen{NT}
        s_mul_i32 s{sT0}, s{sXc}, {512*1152}
        v_mov_b32 v9, s{sT0}
        global_load_dword v{vDum}, v9, s[{sWo}:{sWo+1}]
        v_add_u32 v9, {512*1152-128}, v9
        global_load_dword v{vDum}, v9, s[{sWo}:{sWo+1}]
        s_mul_i32 s{sT0}, s{sB}, {64*1152}
        v_mov_b32 v9, s{sT0}
        global_load_dword v{vDum}, v9, s[{sOut}:{sOut+1}] sc1
        s_mov_b64 exec, 0x3ff
        s_lshl_b32 s{sT0}, s{sB}, 2
        s_add_u32 s{sT0}, s{sT0}, s{sJj}
        s_mul_i32 s{sT0}, s{sT0}, 36864
        s_add_u32 s{sT0}, s{sT0}, {WS_PART}
        v_mul_u32_u24 v9, 1152, v{vL}
        v_lshlrev_b32 v9, 10, v9
        v_add_u32 v9, s{sT0}, v9
        s_lshl_b32 s{sT0}, s{sWg}, 14
        v_mov_b32 v8, s{sT0}
        v_cmp_eq_u32 vcc, 8, v{vL}
        s_lshl_b32 s{sT0}, s{sWg}, 7
        s_add_u32 s{sT0}, s{sT0}, {WS_FLAG}
        v_cndmask_b32 v9, v9, v8, vcc
        v_mov_b32 v8, s{sT0}
        v_cmp_eq_u32 vcc, 9, v{vL}
        v_cndmask_b32 v9, v9, v8, vcc
        buffer_load_dword v{vDum}, v9, s[{rO}:{rO+3}], 0 offen sc1
        s_mov_b64 exec, s[58:59]
        """)
        p.label("K1_PG")
    def issue_kv(isK, tile, slot):
        p(f"""
        s_add_u32 s{sT0}, s{sW4096}, {tile*32768}
        s_add_u32 m0, s{sW4096}, {R[slot]}
        """)
        for u in range(4):
            if isK: p(f"buffer_load_dwordx4 v{vKo+u}, s[{rK}:{rK+3}], s{sT0} offen offset:{u*1024}{NT} lds")
            else:   p(f"buffer_load_dwordx4 v{vVo}, s[{rV}:{rV+3}], s{sT0} offen offset:{u*1024}{NT} lds")
        vissue(('K' if isK else 'V', tile), 4)
    def issue_v0k2():
        l1, l2 = nl('P'), nl('P')
        p(f"s_cmp_eq_u32 s{sPar}, 0")
        p(f"s_cbranch_scc0 {l1}")
        sv = list(vq)
        issue_kv(False, 0, 2); issue_kv(True, 2, 3)
        p(f"s_branch {l2}")
        p.label(l1)
        del vq[:]; vq.extend(sv)
        issue_kv(False, 0, 3); issue_kv(True, 2, 2)
        p.label(l2)
    if o.kdel < 0:
        issue_kv(True, 0, 0)
    if o.k1del < 0:
        issue_kv(True, 1, 1)

    p(f"""
    v_lshl_add_u32 v8, v6, 3, v4
    v_lshlrev_b32 v8, 8, v8
    v_and_b32 v9, 1, v3
    v_lshlrev_b32 v9, 1, v9
    v_and_b32 v{vLW}, 1, v5
    v_add_u32 v9, v9, v{vLW}
    s_lshl_b32 s{sT0}, s{sKq}, 2
    v_add_u32 v9, s{sT0}, v9
    v_lshlrev_b32 v{vLW}, 2, v4
    v_xor_b32 v9, v9, v{vLW}
    v_lshl_add_u32 v8, v9, 4, v8
    v_lshrrev_b32 v9, 1, v5
    v_lshl_add_u32 v{vLW}, v9, 3, v8
    s_lshl_b32 s{sT0}, s{sQh}, 5
    v_add_u32 v8, s{sT0}, v7
    v_lshrrev_b32 v9, 1, v8
    v_and_b32 v9, 7, v9
    v_xor_b32 v9, v9, v6
    v_lshlrev_b32 v9, 4, v9
    v_lshl_add_u32 v{vLX}, v8, 7, v9
    s_lshl_b32 s{sT0}, s{sKq}, 5
    v_add_u32 v8, s{sT0}, v7
    v_and_b32 v9, 15, v8
    v_xor_b32 v9, v9, v6
    v_lshlrev_b32 v9, 4, v9
    v_lshl_add_u32 v{vLK}, v8, 8, v9
    v_lshl_add_u32 v8, v6, 2, v4
    v_add_u32 v8, s{sT0}, v8
    v_lshlrev_b32 v8, 8, v8
    v_and_b32 v9, 1, v5
    v_lshl_add_u32 v8, v9, 3, v8
    v_and_b32 v9, 1, v3
    v_lshlrev_b32 v9, 1, v9
    v_lshrrev_b32 v2, 1, v5
    v_add_u32 v9, v9, v2
    v_lshlrev_b32 v2, 2, v4
    """)
    for a in range(4):
        p(f"""
        s_add_u32 s{sT1}, s{sKq}, {a}
        s_and_b32 s{sT1}, s{sT1}, 3
        s_lshl_b32 s{sT1}, s{sT1}, 2
        v_add_u32 v3, s{sT1}, v9
        v_xor_b32 v3, v3, v2
        v_lshl_add_u32 v{vLV+a}, v3, 4, v8
        """)
    for i in range(16):
        p(f"v_mov_b32 v{vS[0]+i}, 0")
    for i in range(64):
        p(f"v_mov_b32 v{vO+i}, 0")
    p(f"""
    v_mov_b32 v{vM}, 0xf149f2ca
    v_mov_b32 v{vThr}, 0xf149f2ca
    v_mov_b32 v{vL0}, 0
    v_mov_b32 v{vL1}, 0
    """)
    if o.fuse:
        p(f"""
        s_movk_i32 s{sT0}, 3641
        s_movk_i32 s{sT1}, 1152
        """)
        for i in range(9):
            p(f"""
            v_add_u32 v2, {64*i}, v{vL}
            v_mul_u32_u24 v3, s{sT0}, v2
            v_lshrrev_b32 v3, 16, v3
            v_mul_u32_u24 v4, 18, v3
            v_sub_u32 v4, v2, v4
            v_mul_u32_u24 v3, s{sT1}, v3
            v_lshl_add_u32 v3, v4, 4, v3
            v_subrev_u32 v{vOff+i}, {(i%4)*1024}, v3
            """)

    FB = [vKf, vVf]
    A0 = vKA
    def q_phase(c, reads, extra):
        f = FB[(c - 1) % 2]
        rd = list(reads); ex = list(extra)
        for ks in range(4):
            if c >= 1:
                p(f"{MF} {rg(vS[0],16)}, {rg(f+8*ks,4)}, {rg(f+8*ks+4,4)}, {rg(vS[0],16)}")
            for _ in range(3):
                if rd: p(rd.pop(0))
            if ex and ks >= 1: ex.pop(0)()
        for e in ex: e()
    for c in range(9):
        qs = QS[c % 4]
        f = FB[c % 2]
        n = vneed(('C', c))
        p(f"""
        v_add_u32 v{A0}, {qs}, v{vLW}
        v_add_u32 v{A0+1}, {qs+16384}, v{vLX}
        v_xor_b32 v{A0+2}, 32, v{A0+1}
        v_xor_b32 v{A0+3}, 64, v{A0+1}
        v_xor_b32 v{A0+4}, 96, v{A0+1}
        s_waitcnt vmcnt({n}) lgkmcnt(0)
        """)
        stamp(p, o, f'w{c}')
        p("s_barrier")
        if c == 0: stamp(p, o, 1)
        stamp(p, o, f'c{c}')
        reads = []
        for ks in range(4):
            reads.append(f"ds_read_b64_tr_b16 {rg(f+8*ks,2)}, v{A0} offset:{ks*4096}")
            reads.append(f"ds_read_b64_tr_b16 {rg(f+8*ks+2,2)}, v{A0} offset:{ks*4096+1024}")
            reads.append(f"ds_read_b128 {rg(f+8*ks+4,4)}, v{A0+1+ks}")
        extra = []
        if 1 <= c <= 5: extra.append(lambda c=c: issue_chunk(c + 3))
        if c == o.kdel:
            extra.append(lambda: issue_kv(True, 0, 0))
            if o.k1del == c: extra.append(lambda: issue_kv(True, 1, 1))
        elif c == o.k1del:
            extra.append(lambda: issue_kv(True, 1, 1))
        if c == 8 and o.late == 0 and o.lead == 4:
            extra.append(issue_v0k2)
        q_phase(c, reads, extra)
        stamp(p, o, f'm{c}')
    p("s_waitcnt lgkmcnt(0)")
    p("s_barrier")
    q_phase(9, [], [])
    stamp(p, o, 2)
    QX = R[4]
    p(f"""
    s_lshl_b32 s{sT0}, s{sQh}, 13
    s_lshl_b32 s{sT1}, s{sKq}, 11
    s_add_u32 s{sT1}, s{sT1}, s{sT0}
    s_add_u32 s{sT1}, s{sT1}, {QX}
    s_add_u32 s{sT0}, s{sT0}, {QX}
    v_lshlrev_b32 v2, 4, v{vL}
    v_add_u32 v3, s{sT1}, v2
    v_add_u32 v2, s{sT0}, v2
    """)
    p(f"v_mov_b32 v{vKA}, v{vLK}")
    for s in range(1, 8):
        p(f"v_xor_b32 v{vKA+s}, {s<<5}, v{vLK}")
    for j in range(8):
        p(f"v_cvt_pk_bf16_f32 v{vP+j}, v{vS[0]+2*j}, v{vS[0]+2*j+1}")
    p(f"""
    ds_write_b128 v3, {rg(vP,4)}
    ds_write_b128 v3, {rg(vP+4,4)} offset:1024
    s_waitcnt lgkmcnt(0)
    s_barrier
    """)
    for s in range(8):
        p(f"ds_read_b128 {rg(vQ+4*s,4)}, v2 offset:{s*1024}")
    if o.kdel > 8: issue_kv(True, 0, 0)
    if o.k1del > 8: issue_kv(True, 1, 1)
    if o.late and o.lead == 4:
        issue_v0k2()

    def k_addrs(sreg):
        p(f"v_add_u32 v{vKA}, s{sreg}, v{vLK}")
        for s in range(1, 8):
            p(f"v_xor_b32 v{vKA+s}, {s<<5}, v{vKA}")
    def v_addrs(sreg):
        for a in range(4):
            p(f"v_add_u32 v{vVA+a}, s{sreg}, v{vLV+a}")
    def advance_slot(s):
        p(f"""
        s_add_u32 s{s}, s{s}, 32768
        s_cmp_eq_u32 s{s}, {5*32768}
        s_cselect_b32 s{s}, 0, s{s}
        """)
    def tmax(S):
        p(f"""
        v_max3_f32 v2, v{S}, v{S+1}, v{S+2}
        v_max3_f32 v3, v{S+3}, v{S+4}, v{S+5}
        v_max3_f32 v2, v2, v{S+6}, v{S+7}
        v_max3_f32 v3, v3, v{S+8}, v{S+9}
        v_max3_f32 v2, v2, v{S+10}, v{S+11}
        v_max3_f32 v3, v3, v{S+12}, v{S+13}
        v_max3_f32 v2, v2, v{S+14}, v{S+15}
        v_max_f32 v2, v2, v3
        v_mov_b32 v3, v2
        s_nop 1
        v_permlane32_swap_b32 v2, v3
        v_max_f32 v2, v2, v3
        v_mul_f32 v{vTn}, s{sC}, v2
        """)

    n = vneed(('K', 0))
    p(f"s_waitcnt vmcnt({n}) lgkmcnt(0)")
    p("s_barrier")
    stamp(p, o, 3)
    for s in range(8):
        p(f"ds_read_b128 {rg(vKf+4*s,4)}, v{vKA+s}")
    if o.lead == 4: issue_kv(False, 1, 4)
    else: issue_kv(False, 0, 2)
    p(f"s_mov_b32 s{sRK}, {R[1]}")
    n = vneed(('K', 1))
    p(f"s_waitcnt vmcnt({n}) lgkmcnt(0)")
    p("s_barrier")
    k_addrs(sRK)
    for s in range(8):
        c = '0' if s == 0 else rg(vS[0], 16)
        p(f"{MF} {rg(vS[0],16)}, {rg(vKf+4*s,4)}, {rg(vQ+4*s,4)}, {c}")
    for s in range(8):
        p(f"ds_read_b128 {rg(vKf+4*s,4)}, v{vKA+s}")
    if o.lead == 4: issue_kv(True, 3, 0)
    else: issue_kv(True, 2, 0)
    p(f"""
    s_mov_b32 s{sKprev}, {R[1]}
    s_mov_b32 s{sRV}, {R[2]}
    s_mov_b32 s{sRK}, {R[3 % NS]}
    s_add_u32 s{sOff}, s{sW4096}, {HL*32768}
    s_add_u32 s{sOffB}, s{sW4096}, {(2+HL)*32768}
    s_mov_b32 s{sStep}, 32768
    s_mov_b32 s{sCnt}, 0
    """)
    v_addrs(sRV)
    k_addrs(sRK)
    tmax(vS[0])

    W = {}
    q2 = list(vq)
    def need2(tag):
        idx = [i for i, t in enumerate(q2) if t == tag]
        if not idx: return 63
        n = len(q2) - 1 - idx[-1]
        del q2[:idx[-1] + 1]
        return min(n, 63)
    for i in range(8):
        W[('a', i)] = need2(('V', i))
        if i <= 5 or (i == 6 and o.lead == 2): q2.extend([('V', i + HL) if not (o.v7e and i == 5) else ('D', 0)] * 4)
        if i <= 5:
            W[('b', i)] = need2(('K', i + 2))
            q2.extend([('K', i + 2 + HL) if not (o.v7e and i == 4) else ('V', 7)] * 4)
    print('loop waits', W, file=sys.stderr)

    def alpha(tag, cur, do_qk, issue, wv):
        S, Sn = vS[cur], vS[1 - cur]
        p(f"""
        s_waitcnt vmcnt({wv}) lgkmcnt(0)
        s_barrier
        v_cmp_gt_f32 vcc, v{vTn}, v{vThr}
        s_cbranch_vccnz K1_RS{tag}
        """)
        p.label(f"K1_BK{tag}")
        reads = [(a, ks, h) for a in range(4) for ks in range(2) for h in range(2)]
        for j in range(8):
            if do_qk:
                c = '0' if j == 0 else rg(Sn, 16)
                p(f"{MF} {rg(Sn,16)}, {rg(vKf+4*j,4)}, {rg(vQ+4*j,4)}, {c}")
            for (a, ks, h) in reads[2*j:2*j+2]:
                f = vVf + (a * 2 + ks) * 4 + 2 * h
                p(f"ds_read_b64_tr_b16 {rg(f,2)}, v{vVA+a} offset:{ks*4096+h*2048}")
            p(f"v_fma_f32 v{S+2*j}, v{S+2*j}, s{sC}, -v{vM}")
            p(f"v_fma_f32 v{S+2*j+1}, v{S+2*j+1}, s{sC}, -v{vM}")
            p(f"v_exp_f32 v{S+2*j}, v{S+2*j}")
            p(f"v_exp_f32 v{S+2*j+1}, v{S+2*j+1}")
            if j >= 1:
                k = j - 1
                p(f"v_cvt_pk_bf16_f32 v{vP+k}, v{S+2*k}, v{S+2*k+1}")
                p(f"v_add_f32 v{vL0}, v{vL0}, v{S+2*k}")
                p(f"v_add_f32 v{vL1}, v{vL1}, v{S+2*k+1}")
            if issue and j == 0:
                p(f"s_add_u32 m0, s{sKprev}, s{sW4096}")
            if issue and o.dmapos == 0 and j in (1, 3, 5, 7):
                u = (j - 1) // 2
                p(f"buffer_load_dwordx4 v{vVo}, s[{rV}:{rV+3}], s{sOff} offen offset:{u*1024}{NT} lds")
        p(f"v_cvt_pk_bf16_f32 v{vP+7}, v{S+14}, v{S+15}")
        p(f"v_add_f32 v{vL0}, v{vL0}, v{S+14}")
        p(f"v_add_f32 v{vL1}, v{vL1}, v{S+15}")
        if issue and o.dmapos == 1:
            for u in range(4):
                p(f"buffer_load_dwordx4 v{vVo}, s[{rV}:{rV+3}], s{sOff} offen offset:{u*1024}{NT} lds")
        if issue:
            p(f"s_add_u32 s{sOff}, s{sOff}, s{sStep}")

    def beta(tag, cur, read_k, issue, do_tmax, wv, barrier=True, extra=None):
        Sn = vS[1 - cur]
        p(f"s_waitcnt vmcnt({wv}) lgkmcnt(0)")
        if barrier: p("s_barrier")
        n = 0
        for a in range(4):
            for ks in range(2):
                f = vVf + (a * 2 + ks) * 4
                p(f"{MF} {rg(vO+16*a,16)}, {rg(f,4)}, {rg(vP+4*ks,4)}, {rg(vO+16*a,16)}")
                if read_k:
                    p(f"ds_read_b128 {rg(vKf+4*n,4)}, v{vKA+n}")
                if issue and n == 0:
                    p(f"s_add_u32 m0, s{sRV}, s{sW4096}")
                if issue and o.dmapos == 0 and n in (1, 3, 5, 7):
                    u = (n - 1) // 2
                    p(f"buffer_load_dwordx4 v{vKo+u}, s[{rK}:{rK+3}], s{sOffB} offen offset:{u*1024}{NT} lds")
                if n == 2 and do_tmax:
                    tmax(Sn)
                n += 1
        if issue and o.dmapos == 1:
            pass
        if issue and o.dmapos == 1:
            for u in range(4):
                p(f"buffer_load_dwordx4 v{vKo+u}, s[{rK}:{rK+3}], s{sOffB} offen offset:{u*1024}{NT} lds")
        if issue:
            p(f"s_add_u32 s{sOffB}, s{sOffB}, 32768")
        p(f"""
        s_mov_b32 s{sKprev}, s{sRK}
        s_add_u32 s{sRV}, s{sRV}, 65536
        s_cmp_ge_u32 s{sRV}, {NS*32768}
        s_cselect_b32 s{sT0}, {NS*32768}, 0
        s_sub_u32 s{sRV}, s{sRV}, s{sT0}
        s_add_u32 s{sRK}, s{sRK}, 65536
        s_cmp_ge_u32 s{sRK}, {NS*32768}
        s_cselect_b32 s{sT0}, {NS*32768}, 0
        s_sub_u32 s{sRK}, s{sRK}, s{sT0}
        """)
        v_addrs(sRV)
        k_addrs(sRK)
        if extra: extra()

    def rescale(tag):
        p.label(f"K1_RS{tag}")
        p(f"""
        v_max_f32 v3, v{vTn}, v{vM}
        v_sub_f32 v4, v{vM}, v3
        v_exp_f32 v4, v4
        v_mov_b32 v{vM}, v3
        v_add_f32 v{vThr}, 0x41000000, v3
        """)
        p(f"v_mul_f32 v{vL0}, v{vL0}, v4")
        p(f"v_mul_f32 v{vL1}, v{vL1}, v4")
        for i in range(64):
            p(f"v_mul_f32 v{vO+i}, v{vO+i}, v4")
        p(f"s_branch K1_BK{tag}")

    def wo_srd():
        p(f"""
        s_mul_i32 s{sT0}, s{sXc}, {512*1152}
        s_mul_i32 s{sT1}, s{sJj}, 288
        s_add_u32 s{sT0}, s{sT0}, s{sT1}
        s_add_u32 s{rW}, s{sWo}, s{sT0}
        s_addc_u32 s{rW+1}, s{sWo+1}, 0
        s_sub_u32 s{rW+2}, {4096*1152}, s{sT0}
        s_mov_b32 s{rW+3}, 0x20000
        """)
    def wo_touch():
        if not (o.fuse and o.wot): return
        l = nl('WOT')
        p(f"""
        s_cmp_eq_u32 s{sCnt}, 1
        s_cbranch_scc0 {l}
        s_cmp_eq_u32 s{sWave}, 6
        s_cbranch_scc0 {l}
        s_mul_i32 s{sT0}, s{sXc}, {512*1152}
        s_add_u32 s{rX}, s{sWo}, s{sT0}
        s_addc_u32 s{rX+1}, s{sWo+1}, 0
        s_mov_b32 s{rX+2}, {512*1152}
        s_mov_b32 s{rX+3}, 0x20000
        s_lshr_b32 s{sT0}, s2, 3
        s_mul_i32 s{sT0}, s{sT0}, 18432
        v_lshlrev_b32 v2, 7, v{vL}
        buffer_load_dword v{vDum}, v2, s[{rX}:{rX+3}], s{sT0} offen
        s_add_u32 s{sT0}, s{sT0}, 8192
        buffer_load_dword v{vDum}, v2, s[{rX}:{rX+3}], s{sT0} offen
        s_add_u32 s{sT0}, s{sT0}, 8192
        v_cmp_gt_u32 vcc, 16, v{vL}
        s_and_saveexec_b64 s[58:59], vcc
        buffer_load_dword v{vDum}, v2, s[{rX}:{rX+3}], s{sT0} offen
        s_mov_b64 exec, s[58:59]
        """)
        p.label(l)
        if o.tlb:
            l = nl('TLB')
            p(f"""
            s_cmp_eq_u32 s{sCnt}, {o.tlb - 1}
            s_cbranch_scc0 {l}
            s_cmp_eq_u32 s{sWave}, 5
            s_cbranch_scc0 {l}
            s_lshl_b32 s{sT0}, s{sB}, 2
            s_add_u32 s{sT0}, s{sT0}, s{sJj}
            s_mul_i32 s{sT0}, s{sT0}, 36864
            s_add_u32 s{sT0}, s{sT0}, {WS_PART}
            v_mul_u32_u24 v2, 1152, v{vL}
            v_lshlrev_b32 v2, 10, v2
            v_add_u32 v2, s{sT0}, v2
            s_lshl_b32 s{sT0}, s{sWg}, 14
            v_mov_b32 v3, s{sT0}
            v_cmp_eq_u32 vcc, 8, v{vL}
            s_lshl_b32 s{sT0}, s{sWg}, 7
            s_add_u32 s{sT0}, s{sT0}, {WS_FLAG}
            v_cndmask_b32 v2, v2, v3, vcc
            v_mov_b32 v3, s{sT0}
            v_cmp_eq_u32 vcc, 9, v{vL}
            s_mul_i32 s{sT0}, s{sB}, {64*1152}
            v_mov_b32 v4, s{sT0}
            v_cndmask_b32 v2, v2, v3, vcc
            s_mov_b64 s[58:59], exec
            s_mov_b64 exec, 0x3ff
            buffer_load_dword v{vDum}, v2, s[{rO}:{rO+3}], 0 offen sc1
            s_mov_b64 exec, 1
            global_load_dword v{vDum}, v4, s[{sOut}:{sOut+1}] sc1
            s_mov_b64 exec, s[58:59]
            """)
            p.label(l)

    wm = lambda keys: min(W[k] for k in keys)
    loop_start = len(p.ins)
    p.label("K1_LOOP")
    alpha('L0', 0, True, True, wm([('a', 0), ('a', 2), ('a', 4)]))
    beta('L0', 0, True, True, True, wm([('b', 0), ('b', 2), ('b', 4)]))
    alpha('L1', 1, True, True, wm([('a', 1), ('a', 3), ('a', 5)]))
    beta('L1', 1, True, True, True, wm([('b', 1), ('b', 3), ('b', 5)]), extra=wo_touch)
    p(f"s_add_u32 s{sCnt}, s{sCnt}, 1")
    if o.v7e:
        assert o.lead == 4
        p(f"""
        s_cmp_eq_u32 s{sCnt}, 2
        s_cbranch_scc0 K1_V7E
        s_mov_b32 s{rK}, s{rV}
        s_mov_b32 s{rK+1}, s{rV+1}
        s_add_u32 s{sOffB}, s{sW4096}, {7*32768}
        s_mov_b32 s{sStep}, 65536
        """)
        for u in range(4): p(f"v_mov_b32 v{vKo+u}, v{vVo}")
        p.label("K1_V7E")
    p(f"""
    s_cmp_lt_u32 s{sCnt}, 3
    s_cbranch_scc1 K1_LOOP
    """)
    if o.dry:
        keep = []
        for x in p.ins[loop_start:]:
            drop = False
            if o.dry & 1 and x.kind == 'mfma': drop = True
            if o.dry & 2 and x.kind == 'ds': drop = True
            if o.dry & 4 and x.kind == 'valu' and not x.op.startswith('v_cmp'): drop = True
            if not drop: keep.append(x)
        p.ins[loop_start:] = keep
    stamp(p, o, 4)
    if o.fuse:
        p(f"""
        s_cmp_eq_u32 s{sWave}, 7
        s_cbranch_scc0 K1_NL
        v_mov_b32 v8, 0
        global_load_dwordx2 v[{vNon}:{vNon+1}], v8, s[{sDbg}:{sDbg+1}] sc1
        """)
        p.label("K1_NL")
    if o.lead == 4:
        STAT, NONL, OX = 0, 4096, R[2]
        NEARLY = 5 if o.early else 0
        def wo_addr(G): return 16384 + G * 9216
    else:
        STAT, NONL, OX = 98304, 102400, 0
        NEARLY = 6 if o.early else 0
        def wo_addr(G): return (108544 + G * 9216) if G < 6 else (G - 6) * 9216
    def wo_group_dma(gexpr_sgpr):
        p(f"s_mul_i32 s{sT1}, s{gexpr_sgpr}, 9216")
        if o.lead == 4:
            p(f"s_add_u32 s{sT1}, s{sT1}, 16384")
        else:
            p(f"""
            s_add_u32 s{sT0}, s{sT1}, 108544
            s_sub_u32 s{sT1}, s{sT1}, {6*9216}
            s_cmp_lt_u32 s{gexpr_sgpr}, 6
            s_cselect_b32 s{sT1}, s{sT0}, s{sT1}
            """)
        p(f"s_mul_i32 s{sT0}, s{gexpr_sgpr}, 36864")
        for i in range(9):
            if i % 4 == 0:
                p(f"s_add_u32 m0, s{sT1}, {(i//4)*4096}")
            p(f"buffer_load_dwordx4 v{vOff+i}, s[{rW}:{rW+3}], s{sT0} offen offset:{(i%4)*1024} lds")
    def early_wo():
        p(f"""
        s_cmp_lt_u32 s{sWave}, {NEARLY}
        s_cbranch_scc0 K1_WG1
        """)
        wo_group_dma(sWave)
        p.label("K1_WG1")
    if o.fuse: wo_srd()
    EARLY_IN_LOOP = o.fuse and o.lead == 2 and NEARLY > 0
    alpha('A', 0, True, o.lead == 2, W[('a', 6)])
    def v7_ptr():
        p(f"s_mov_b32 s{sRV}, {R[0]}")
        v_addrs(sRV)
    beta('A', 0, False, False, True, 63, barrier=False, extra=(early_wo if EARLY_IN_LOOP else (v7_ptr if o.v7e else None)))
    if EARLY_IN_LOOP:
        assert W[('a', 7)] == 0
        p(f"""
        s_cmp_lt_u32 s{sWave}, {NEARLY}
        s_cbranch_scc0 K1_V7A
        s_waitcnt vmcnt(9)
        s_branch K1_V7B
        """)
        p.label("K1_V7A")
        p("s_waitcnt vmcnt(0)")
        p.label("K1_V7B")
        alpha('B', 1, False, False, 63)
    else:
        alpha('B', 1, False, False, W[('a', 7)])
    p("s_waitcnt lgkmcnt(0)" if EARLY_IN_LOOP else "s_waitcnt vmcnt(0) lgkmcnt(0)")
    for a in range(4):
        for ks in range(2):
            f = vVf + (a * 2 + ks) * 4
            p(f"{MF} {rg(vO+16*a,16)}, {rg(f,4)}, {rg(vP+4*ks,4)}, {rg(vO+16*a,16)}")
    stamp(p, o, 5)

    vS0 = vS[0]
    p(f"""
    v_add_f32 v{vL0}, v{vL0}, v{vL1}
    v_mov_b32 v{vL1}, v{vL0}
    s_nop 1
    v_permlane32_swap_b32 v{vL0}, v{vL1}
    v_add_f32 v{vThr}, v{vL0}, v{vL1}
    v_and_b32 v7, 31, v{vL}
    s_lshl_b32 s{sT0}, s{sKq}, 9
    s_lshl_b32 s{sT1}, s{sQh}, 8
    s_add_u32 s{sT0}, s{sT0}, s{sT1}
    s_add_u32 s{sT0}, s{sT0}, {STAT}
    s_add_u32 s{sT1}, s{sT1}, {STAT}
    v_lshlrev_b32 v7, 3, v7
    v_add_u32 v2, s{sT0}, v7
    v_add_u32 v7, s{sT1}, v7
    v_lshlrev_b32 v3, 4, v{vL}
    """)
    p("s_barrier")
    stamp(p, o, 'e1')
    p(f"""
    ds_write_b64 v2, v[{vM}:{vM+1}]
    """)
    if o.fuse:
        p(f"""
        s_cmp_eq_u32 s{sWave}, 7
        s_cbranch_scc0 K1_NON2
        s_mov_b32 s{sT2}, 0
        """)
        p.label("K1_NONP")
        p(f"""
        v_readfirstlane_b32 s{sT0}, v{vNon}
        s_add_u32 s{sT2}, s{sT2}, 1
        s_cmp_lg_u32 s{sT0}, 0
        s_cbranch_scc1 K1_NONOK
        s_cmp_lt_u32 s{sT2}, {SPIN}
        s_cbranch_scc0 K1_NONOK
        v_mov_b32 v8, 0
        global_load_dwordx2 v[{vNon}:{vNon+1}], v8, s[{sDbg}:{sDbg+1}] sc1
        s_waitcnt vmcnt(0)
        s_branch K1_NONP
        """)
        p.label("K1_NONOK")
        p(f"""
        v_mov_b32 v6, {NONL}
        ds_write_b64 v6, v[{vNon}:{vNon+1}]
        """)
        if o.fast:
            p(f"""
            s_and_b32 s{sT0}, s{sWg}, 0xfc
            s_lshl_b32 s{sT0}, s{sT0}, 7
            s_add_u32 s{sT0}, s{sT0}, {WS_FLAG}
            v_and_b32 v12, 3, v{vL}
            v_lshlrev_b32 v13, 7, v12
            buffer_load_dword v11, v13, s[{rO}:{rO+3}], s{sT0} offen sc1
            """)
        p.label("K1_NON2")
    for a in range(1, 4):
        p(f"""
        s_add_u32 s{sT0}, s{sKq}, {a}
        s_and_b32 s{sT0}, s{sT0}, 3
        s_lshl_b32 s{sT2}, s{sQh}, 2
        s_add_u32 s{sT0}, s{sT0}, s{sT2}
        s_mul_i32 s{sT0}, s{sT0}, 12288
        s_add_u32 s{sT0}, s{sT0}, {OX + (3-a)*4096}
        v_add_u32 v4, s{sT0}, v3
        """)
        for g in range(4):
            p(f"ds_write_b128 v4, {rg(vO+16*a+4*g,4)} offset:{g*1024}")
    if o.fuse and o.lead == 4 and NEARLY:
        early_wo()
    p(f"""
    s_lshl_b32 s{sT0}, s{sQh}, 2
    s_add_u32 s{sT0}, s{sT0}, s{sKq}
    s_mul_i32 s{sT0}, s{sT0}, 12288
    s_add_u32 s{sT0}, s{sT0}, {OX}
    v_add_u32 v4, s{sT0}, v3
    s_waitcnt lgkmcnt(0)
    """)
    stamp(p, o, 'e2')
    p("s_barrier")
    stamp(p, o, 'e3')
    for k in range(4):
        p(f"ds_read_b64 v[{vS0+2*k}:{vS0+2*k+1}], v7 offset:{k*512}")
    for i in range(3):
        for g in range(4):
            p(f"ds_read_b128 {rg(vO+16*(i+1)+4*g,4)}, v4 offset:{i*4096+g*1024}")
    if o.fuse:
        p(f"""
        v_mov_b32 v6, {NONL}
        ds_read_b64 v[8:9], v6
        s_waitcnt lgkmcnt(13)
        """)
    else:
        p("s_waitcnt lgkmcnt(12)")
    m = [vS0 + 0, vS0 + 2, vS0 + 4, vS0 + 6]; l = [vS0 + 1, vS0 + 3, vS0 + 5, vS0 + 7]
    p(f"""
    v_max3_f32 v2, v{m[0]}, v{m[1]}, v{m[2]}
    v_max_f32 v2, v2, v{m[3]}
    """)
    for k in range(4):
        p(f"v_sub_f32 v{m[k]}, v{m[k]}, v2")
    for k in range(4):
        p(f"v_exp_f32 v{m[k]}, v{m[k]}")
    p(f"""
    v_mul_f32 v3, v{m[0]}, v{l[0]}
    v_fmac_f32 v3, v{m[1]}, v{l[1]}
    v_fmac_f32 v3, v{m[2]}, v{l[2]}
    v_fmac_f32 v3, v{m[3]}, v{l[3]}
    v_rcp_f32 v3, v3
    """)
    for k in range(4):
        p(f"v_mul_f32 v{m[k]}, v{m[k]}, v3")
    wr = vS0 + 8
    for kq in range(4):
        p(f"s_cmp_eq_u32 s{sKq}, {kq}")
        p(f"s_cbranch_scc0 K1_WR{kq}")
        for i in range(4):
            p(f"v_mov_b32 v{wr+i}, v{m[(kq+i)&3]}")
        p.label(f"K1_WR{kq}")
    for i in range(16):
        p(f"v_mul_f32 v{vO+i}, v{vO+i}, v{wr}")
    nextra = 1 if o.fuse else 0
    for s in range(3):
        p(f"s_waitcnt lgkmcnt({8-4*s+nextra})")
        for i in range(16):
            p(f"v_fmac_f32 v{vO+i}, v{vO+16*(s+1)+i}, v{wr+s+1}")
    order = [0, 2, 1, 3]
    for idx, g in enumerate(order):
        p(f"v_cvt_pk_bf16_f32 v{vP+2*idx}, v{vO+4*g}, v{vO+4*g+1}")
        p(f"v_cvt_pk_bf16_f32 v{vP+2*idx+1}, v{vO+4*g+2}, v{vO+4*g+3}")
    if o.fuse and o.fast:
        p(f"""
        s_cmp_eq_u32 s{sWave}, 7
        s_cbranch_scc0 K1_RDY
        s_waitcnt vmcnt(0)
        v_cmp_eq_u32 vcc, v11, v{vNon}
        v_cmp_eq_u32 s[58:59], s{sJj}, v12
        s_or_b64 vcc, vcc, s[58:59]
        s_cmp_eq_u64 vcc, -1
        s_cselect_b32 s{sT0}, 1, 0
        v_mov_b32 v12, s{sT0}
        v_mov_b32 v6, {NONL+8}
        ds_write_b32 v6, v12
        """)
        p.label("K1_RDY")
    stamp(p, o, 'e4')
    SC = ' sc1' if o.fuse else ''
    p(f"""
    v_and_b32 v2, 15, v{vL}
    v_lshrrev_b32 v3, 5, v{vL}
    v_lshl_add_u32 v2, v3, 4, v2
    v_lshlrev_b32 v2, 4, v2
    v_bfe_u32 v3, v{vL}, 4, 1
    v_lshl_add_u32 v2, v3, 12, v2
    s_lshl_b32 s{sT0}, s{sWg}, 14
    s_lshl_b32 s{sT1}, s{sQh}, 13
    s_add_u32 s{sT0}, s{sT0}, s{sT1}
    s_lshl_b32 s{sT1}, s{sKq}, 10
    s_add_u32 s{sT0}, s{sT0}, s{sT1}
    buffer_store_dwordx4 {rg(vP,4)}, v2, s[{rO}:{rO+3}], s{sT0} offen{SC}
    buffer_store_dwordx4 {rg(vP+4,4)}, v2, s[{rO}:{rO+3}], s{sT0} offen offset:512{SC}
    """)
    if not o.fuse:
        if o.stamps:
            p("s_waitcnt vmcnt(0)")
            stamp(p, o, 6)
            stamp_flush(p, o, 0, 7, sWs)
        p("s_branch K1_END")
    else:
        tail(p, o, locals())
    for tag in ('L0', 'L1', 'A', 'B'):
        rescale(tag)
    p.label("K1_END")
    p("s_endpgm")
    return p

def gemm_body(p, vAcc, vB, vF, vAd, vLA, sKh2, sT, wo_addr, HA, HB, vmwait=True):
    def addr(kk):
        c0, c1 = wo_addr(kk), wo_addr(8 + kk)
        p(f"""
        s_mov_b32 s{sT}, {c1}
        s_cmp_eq_u32 s{sKh2}, 0
        s_cselect_b32 s{sT}, {c0}, s{sT}
        v_add_u32 v{vAd + (kk & 1)}, s{sT}, v{vLA}
        """)
    def reads(kk, half):
        ad = vAd + (kk & 1)
        for nt in half:
            f = vF + 4 * nt
            p(f"ds_read_b64_tr_b16 {rg(f,2)}, v{ad} offset:{nt*32}")
            p(f"ds_read_b64_tr_b16 {rg(f+2,2)}, v{ad} offset:{4608+nt*32}")
    def mfmas(kk, half, younger):
        n = len(half)
        h1 = (n + 1) // 2 if n > 3 else n
        for idx, nt in enumerate(half):
            f = vF + 4 * nt
            if idx == 0: p(f"s_waitcnt lgkmcnt({min(15, younger + 2*(n-h1))})")
            if idx == h1 and h1 < n: p(f"s_waitcnt lgkmcnt({min(15, younger)})")
            p(f"{MF16} {rg(vAcc+4*nt,4)}, {rg(f,4)}, {rg(vB+4*kk,4)}, {rg(vAcc+4*nt,4)}")
    addr(0)
    reads(0, HA)
    for kk in range(8):
        reads(kk, HB)
        if kk < 7: addr(kk + 1)
        if vmwait: p(f"s_waitcnt vmcnt({7-kk})")
        mfmas(kk, HA, 2 * len(HB))
        if kk < 7:
            reads(kk + 1, HA)
            mfmas(kk, HB, 2 * len(HA))
        else:
            mfmas(kk, HB, 0)

def tail(p, o, L):
    g = lambda n: L[n]
    sWave, sB, sXc, sJj, sWg, sT0, sT1, sT2 = g('sWave'), g('sB'), g('sXc'), g('sJj'), g('sWg'), g('sT0'), g('sT1'), g('sT2')
    rO, rW, rX, sN, sTag, sOut, sWs = g('rO'), g('rW'), g('rX'), g('sN'), g('sTag'), g('sOut'), g('sWs')
    vL, vOff, wo_addr, NEARLY = g('vL'), g('vOff'), g('wo_addr'), g('NEARLY')
    wo_group_dma = g('wo_group_dma')
    sQt, sKh2 = 40, 41
    vAcc, vB, vF, vLA, vAd = 28, 64, 96, 19, 20
    p(f"""
    s_waitcnt vmcnt(0) lgkmcnt(0)
    v_readfirstlane_b32 s{sN}, v8
    v_readfirstlane_b32 s{sN+1}, v9
    s_barrier
    """)
    if o.stamps: stamp(p, o, 6)
    NONL = g('NONL')
    sFast = 52
    def b_loads():
        p(f"""
        s_and_b32 s{sT0}, s{sWg}, 0xfc
        s_lshl_b32 s{sT1}, s{sKh2}, 1
        s_add_u32 s{sT0}, s{sT0}, s{sT1}
        s_lshl_b32 s{sT0}, s{sT0}, 14
        s_lshl_b32 s{sT1}, s{sQt}, 12
        s_add_u32 s{sT0}, s{sT0}, s{sT1}
        s_add_u32 s{sT1}, s{sT0}, 16384
        """)
        for kk in range(8):
            p(f"buffer_load_dwordx4 {rg(vB+4*kk,4)}, v5, s[{rO}:{rO+3}], s{sT0 if kk < 4 else sT1} offen offset:{(kk&3)*1024} sc1")
    p(f"""
    s_and_b32 s{sQt}, s{sWave}, 3
    s_lshr_b32 s{sKh2}, s{sWave}, 2
    v_lshlrev_b32 v5, 4, v{vL}
    s_mov_b32 s{sFast}, 0
    """)
    if o.fast:
        p(f"""
        v_mov_b32 v6, {NONL+8}
        ds_read_b32 v12, v6
        """)
    p(f"""
    s_cmp_eq_u32 s{sWave}, 7
    s_cbranch_scc0 T_F0
    v_mov_b32 v9, s{sN}
    s_lshl_b32 s{sT0}, s{sWg}, 7
    s_add_u32 s{sT0}, s{sT0}, {WS_FLAG}
    v_mov_b32 v3, 0
    v_cmp_eq_u32 vcc, 0, v{vL}
    s_and_saveexec_b64 s[58:59], vcc
    buffer_store_dword v9, v3, s[{rO}:{rO+3}], s{sT0} offen sc1
    s_mov_b64 exec, s[58:59]
    """)
    p.label("T_F0")
    if o.fast:
        p(f"""
        s_waitcnt lgkmcnt(0)
        v_readfirstlane_b32 s{sFast}, v12
        s_cmp_eq_u32 s{sFast}, 0
        s_cbranch_scc1 T_SLOW
        """)
        b_loads()
        p.label("T_SLOW")
    p(f"""
    s_cmp_eq_u32 s{sWave}, 7
    s_cbranch_scc0 T_NOFLAG
    s_cmp_eq_u32 s{sFast}, 0
    s_cbranch_scc0 T_SETUP
    s_and_b32 s{sT0}, s{sWg}, 0xfc
    s_lshl_b32 s{sT0}, s{sT0}, 7
    s_add_u32 s{sT0}, s{sT0}, {WS_FLAG}
    v_and_b32 v8, 3, v{vL}
    v_lshlrev_b32 v8, 7, v8
    s_mov_b32 s{sT1}, 0
    buffer_load_dword v10, v8, s[{rO}:{rO+3}], s{sT0} offen sc1
    buffer_load_dword v11, v8, s[{rO}:{rO+3}], s{sT0} offen sc1
    """)
    p("s_branch T_SETUP")
    p.label("T_NOFLAG")
    nlate = 16 - NEARLY
    for rep in range((nlate + 6) // 7):
        cnt = min(7, nlate - 7 * rep)
        if cnt < 7:
            p(f"s_cmp_lt_u32 s{sWave}, {cnt}")
            p("s_cbranch_scc0 T_SETUP")
        p(f"s_add_u32 s{sT2}, s{sWave}, {NEARLY + 7*rep}")
        wo_group_dma(sT2)
    p.label("T_SETUP")
    p(f"""
    v_lshrrev_b32 v2, 4, v{vL}
    v_and_b32 v3, 15, v{vL}
    v_lshrrev_b32 v4, 2, v3
    v_and_b32 v6, 3, v3
    v_lshl_add_u32 v2, v2, 2, v4
    v_mul_u32_u24 v2, 288, v2
    v_lshl_add_u32 v{vLA}, v6, 3, v2
    s_and_b32 s{sTag}, s{sN}, 0xfff
    s_lshr_b32 s{sTag+1}, s{sN}, 12
    s_and_b32 s{sTag+1}, s{sTag+1}, 0xfff
    s_lshr_b32 s{sTag+2}, s{sN}, 24
    s_lshl_b32 s{sT2}, s{sN+1}, 8
    s_or_b32 s{sTag+2}, s{sTag+2}, s{sT2}
    s_and_b32 s{sTag+2}, s{sTag+2}, 0xfff
    s_lshr_b32 s{sTag+3}, s{sN+1}, 4
    s_and_b32 s{sTag+3}, s{sTag+3}, 0xfff
    """)
    for i in range(36):
        p(f"v_mov_b32 v{vAcc+i}, 0")
    p(f"""
    s_cmp_eq_u32 s{sWave}, 7
    s_cbranch_scc0 T_NOPOLL
    s_cmp_eq_u32 s{sFast}, 0
    s_cbranch_scc0 T_NOPOLL
    """)
    p.label("T_POLL1")
    p(f"""
    s_waitcnt vmcnt(1)
    v_cmp_ne_u32 vcc, v10, v9
    s_cbranch_vccz T_NOPOLL
    buffer_load_dword v10, v8, s[{rO}:{rO+3}], s{sT0} offen sc1
    s_add_u32 s{sT1}, s{sT1}, 1
    s_waitcnt vmcnt(1)
    v_cmp_ne_u32 vcc, v11, v9
    s_cbranch_vccz T_NOPOLL
    buffer_load_dword v11, v8, s[{rO}:{rO+3}], s{sT0} offen sc1
    s_cmp_lt_u32 s{sT1}, {SPIN}
    s_cbranch_scc1 T_POLL1
    """)
    p.label("T_NOPOLL")
    p(f"""
    s_waitcnt vmcnt(0)
    s_barrier
    """)
    if o.stamps: stamp(p, o, 7)
    p(f"s_cmp_eq_u32 s{sFast}, 0")
    p("s_cbranch_scc0 T_BDONE")
    b_loads()
    p.label("T_BDONE")
    if o.stamps and o.stset:
        p("s_waitcnt vmcnt(0)")
        stamp(p, o, 'g0')
    TAGGED = True
    lc = [0]
    def exchange(keep0, keep1, lds_base, lds_idx, part_off, part_idx, pre_barrier):
        lc[0] += 1; k = lc[0]
        ntile = len(keep0) + len(keep1)
        if pre_barrier: p("s_barrier")
        p(f"""
        s_mul_i32 s{sT0}, s{sQt}, {ntile*1024}
        s_add_u32 s{sT0}, s{sT0}, {lds_base}
        v_add_u32 v2, s{sT0}, v5
        s_cmp_eq_u32 s{sKh2}, 0
        s_cbranch_scc0 T_X{k}a
        """)
        for nt in keep1: p(f"ds_write_b128 v2, {rg(vAcc+4*nt,4)} offset:{lds_idx(nt)*1024}")
        p(f"s_branch T_X{k}b")
        p.label(f"T_X{k}a")
        for nt in keep0: p(f"ds_write_b128 v2, {rg(vAcc+4*nt,4)} offset:{lds_idx(nt)*1024}")
        p.label(f"T_X{k}b")
        p(f"""
        s_lshl_b32 s{sT0}, s{sXc}, 3
        s_add_u32 s{sT0}, s{sT0}, s{sB}
        s_lshl_b32 s{sT0}, s{sT0}, 2
        s_add_u32 s{sT0}, s{sT0}, s{sJj}
        s_mul_i32 s{sT0}, s{sT0}, 36864
        s_mul_i32 s{sT1}, s{sQt}, {ntile*1024}
        s_add_u32 s{sT0}, s{sT0}, s{sT1}
        s_add_u32 s{sT0}, s{sT0}, {WS_PART + part_off}
        s_waitcnt lgkmcnt(0)
        s_barrier
        s_cmp_eq_u32 s{sKh2}, 0
        s_cbranch_scc0 T_X{k}c
        """)
        def fin(nts):
            for nt in nts:
                p(f"ds_read_b128 {rg(vF+4*nt,4)}, v2 offset:{lds_idx(nt)*1024}")
            for idx, nt in enumerate(nts):
                p(f"s_waitcnt lgkmcnt({len(nts)-1-idx})")
                for e in range(4):
                    p(f"v_add_f32 v{vAcc+4*nt+e}, v{vAcc+4*nt+e}, v{vF+4*nt+e}")
                for e in range(4):
                    p(f"v_and_b32 v{vAcc+4*nt+e}, v7, v{vAcc+4*nt+e}")
                    p(f"v_or_b32 v{vAcc+4*nt+e}, s{sTag+e}, v{vAcc+4*nt+e}")
                off = part_idx(nt) * 1024
                if off >= 4096:
                    p(f"s_add_u32 s{sT1}, s{sT0}, 4096")
                    p(f"buffer_store_dwordx4 {rg(vAcc+4*nt,4)}, v5, s[{rO}:{rO+3}], s{sT1} offen offset:{off-4096} sc1")
                else:
                    p(f"buffer_store_dwordx4 {rg(vAcc+4*nt,4)}, v5, s[{rO}:{rO+3}], s{sT0} offen offset:{off} sc1")
        fin(keep0)
        p(f"s_branch T_X{k}d")
        p.label(f"T_X{k}c")
        fin(keep1)
        p.label(f"T_X{k}d")
    p("v_mov_b32 v7, 0xfffff000")
    gemm_body(p, vAcc, vB, vF, vAd, vLA, sKh2, sT2, wo_addr, [0, 1], [2, 3], True)
    if o.stamps: stamp(p, o, 8)
    exchange([0, 1], [2, 3], 0, lambda nt: nt, 0, lambda nt: nt, False)
    gemm_body(p, vAcc, vB, vF, vAd, vLA, sKh2, sT2, wo_addr, [4, 5, 6], [7, 8], False)
    stamp(p, o, 'r1')
    exchange([4, 5, 6], [7, 8], 16384, lambda nt: nt - 4, 16384, lambda nt: nt - 4, True)
    if o.stamps: stamp(p, o, 9)
    if TAGGED:
        vX = 100
        p(f"""
        s_cmp_ge_u32 s{sWave}, 5
        s_cbranch_scc1 T_DONE
        v_cmp_gt_u32 vcc, 288, v0
        s_and_saveexec_b64 s[58:59], vcc
        s_mov_b32 s{rX}, s{sOut}
        s_mov_b32 s{rX+1}, s{sOut+1}
        s_mov_b32 s{rX+2}, {512*576*2}
        s_mov_b32 s{rX+3}, 0x20000
        s_cmp_lt_u32 s{sWave}, 2
        s_cbranch_scc0 T_PB
        s_lshl_b32 s{sT0}, s{sXc}, 7
        v_add_u32 v2, s{sT0}, v0
        v_lshlrev_b32 v3, 4, v2
        v_lshrrev_b32 v4, 6, v2
        v_lshrrev_b32 v5, 2, v4
        v_and_b32 v6, 3, v4
        s_branch T_PC
        """)
        p.label("T_PB")
        p(f"""
        s_mul_i32 s{sT0}, s{sXc}, 160
        s_sub_u32 s{sT0}, s{sT0}, 128
        v_add_u32 v2, s{sT0}, v0
        v_lshlrev_b32 v3, 4, v2
        v_add_u32 v3, 16384, v3
        v_lshrrev_b32 v4, 6, v2
        v_mul_u32_u24 v5, 52, v4
        v_lshrrev_b32 v5, 8, v5
        v_mul_u32_u24 v6, 5, v5
        v_sub_u32 v6, v4, v6
        v_add_u32 v6, 4, v6
        """)
        p.label("T_PC")
        p(f"""
        s_lshl_b32 s{sT0}, s{sB}, 2
        s_add_u32 s{sT0}, s{sT0}, s{sJj}
        s_mul_i32 s{sT0}, s{sT0}, 36864
        s_add_u32 s{sT0}, s{sT0}, {WS_PART}
        v_and_b32 v4, 15, v2
        v_lshl_add_u32 v4, v5, 4, v4
        s_lshl_b32 s{sT1}, s{sB}, 6
        v_add_u32 v4, s{sT1}, v4
        s_movk_i32 s{sT1}, 1152
        v_mul_u32_u24 v4, s{sT1}, v4
        v_lshlrev_b32 v6, 5, v6
        v_add_u32 v4, v4, v6
        v_bfe_u32 v6, v2, 4, 2
        v_lshl_add_u32 v4, v6, 3, v4
        s_mul_i32 s{sT1}, s{sJj}, 288
        v_add_u32 v4, s{sT1}, v4
        s_mov_b32 s{sT2}, 0
        """)
        if o.prepoll:
            p(f"""
            s_mov_b64 s[56:57], exec
            v_readfirstlane_b32 s{sT1}, v3
            v_mul_u32_u24 v6, {32*36864 // 1024}, v{vL}
            v_lshlrev_b32 v6, 10, v6
            v_add_u32 v6, s{sT1}, v6
            v_mov_b32 v9, s{sTag}
            s_mov_b64 exec, 0xff
            buffer_load_dword v10, v6, s[{rO}:{rO+3}], s{sT0} offen sc1
            buffer_load_dword v11, v6, s[{rO}:{rO+3}], s{sT0} offen sc1
            """)
            p.label("T_PP")
            p(f"""
            s_waitcnt vmcnt(1)
            v_xor_b32 v8, v10, v9
            v_and_b32 v8, 0xfff, v8
            v_cmp_ne_u32 vcc, 0, v8
            s_cbranch_vccz T_PPD
            buffer_load_dword v10, v6, s[{rO}:{rO+3}], s{sT0} offen sc1
            s_add_u32 s{sT2}, s{sT2}, 1
            s_waitcnt vmcnt(1)
            v_xor_b32 v8, v11, v9
            v_and_b32 v8, 0xfff, v8
            v_cmp_ne_u32 vcc, 0, v8
            s_cbranch_vccz T_PPD
            buffer_load_dword v11, v6, s[{rO}:{rO+3}], s{sT0} offen sc1
            s_cmp_lt_u32 s{sT2}, {SPIN}
            s_cbranch_scc1 T_PP
            """)
            p.label("T_PPD")
            p(f"""
            s_mov_b64 exec, s[56:57]
            s_mov_b32 s{sT2}, 0
            """)
        p.label("T_POLL2")
        p(f"s_mov_b32 s{sT1}, s{sT0}")
        for s in range(8):
            p(f"buffer_load_dwordx4 {rg(vX+4*s,4)}, v3, s[{rO}:{rO+3}], s{sT1} offen sc1")
            if s < 7: p(f"s_add_u32 s{sT1}, s{sT1}, {32*36864}")
        p(f"""
        s_add_u32 s{sT2}, s{sT2}, 1
        v_mov_b32 v6, 0
        """)
        for s in range(8):
            p(f"s_waitcnt vmcnt({7-s})")
            for e in range(4):
                p(f"v_xor_b32 v8, s{sTag+e}, v{vX+4*s+e}")
                p(f"v_or_b32 v6, v6, v8")
        p(f"""
        v_and_b32 v6, 0xfff, v6
        v_cmp_ne_u32 vcc, 0, v6
        s_cmp_lt_u32 s{sT2}, {SPIN}
        s_cbranch_scc0 T_SUM
        s_cbranch_vccnz T_POLL2
        """)
        p.label("T_SUM")
        if o.stamps and o.stset == 2:
            p(f"s_mov_b32 s76, s{sT2}")
            p("s_mov_b32 s77, 0")
        for s in range(8):
            for e in range(4):
                p(f"v_and_b32 v{vX+4*s+e}, v7, v{vX+4*s+e}")
        for s in range(1, 8):
            for e in range(4):
                p(f"v_add_f32 v{vX+e}, v{vX+e}, v{vX+4*s+e}")
        p(f"""
        v_cvt_pk_bf16_f32 v8, v{vX}, v{vX+1}
        v_cvt_pk_bf16_f32 v9, v{vX+2}, v{vX+3}
        buffer_store_dwordx2 v[8:9], v4, s[{rX}:{rX+3}], 0 offen{' sc1' if o.outsc else ''}
        s_mov_b64 exec, s[58:59]
        """)
        p.label("T_DONE")
    if o.stamps:
        p("s_waitcnt vmcnt(0)")
        p("s_memrealtime s[90:91]" if o.stamps != 2 else "s_memtime s[90:91]")
        p("s_waitcnt lgkmcnt(0)")
        p("s_mov_b32 s60, s60")
        gen_flush_final(p, o, sWs)
    p("s_branch K1_END")

def gen_flush_final(p, o, sws):
    tag = "STFm"
    if o.stamps == 3:
        p(f"""
        s_cmp_eq_u32 s2, 0
        s_cbranch_scc0 {tag}
        s_load_dwordx2 s[96:97], s[0:1], 48
        s_waitcnt lgkmcnt(0)
        v_cmp_eq_u32 vcc, 0, v0
        s_and_saveexec_b64 s[92:93], vcc
        s_cbranch_execz {tag}x
        v_mov_b32 v4, 0
        """)
        for i in range(10):
            p(f"v_mov_b32 v2, s{60+2*i}")
            p(f"global_store_dword v4, v2, s[96:97] offset:{16+4*i}")
        p("v_mov_b32 v2, s90")
        p(f"global_store_dword v4, v2, s[96:97] offset:{16+40}")
        p.label(tag + 'x')
        p("s_mov_b64 exec, s[92:93]")
        p.label(tag)
        return
    p(f"""
    v_cmp_eq_u32 vcc, {o.stampwave*64}, v0
    s_and_saveexec_b64 s[92:93], vcc
    s_cbranch_execz {tag}
    s_lshl_b32 s94, s2, 7
    s_add_u32 s94, s94, {gen.WS_STAMP}
    s_add_u32 s96, s{sws}, s94
    s_addc_u32 s97, s{sws+1}, 0
    v_mov_b32 v4, 0
    """)
    for i in range(10):
        p(f"""
        v_mov_b32 v2, s{60+2*i}
        v_mov_b32 v3, s{61+2*i}
        global_store_dwordx2 v4, v[2:3], s[96:97] offset:{8*i}
        """)
    p(f"""
    v_mov_b32 v2, s90
    v_mov_b32 v3, s91
    global_store_dwordx2 v4, v[2:3], s[96:97] offset:80
    """)
    p.label(tag)
    p("s_mov_b64 exec, s[92:93]")

def emit(o):
    ks = [('standalone__gqa_block_cached__near_ridge_kernel' if o.fuse == 2 else 'gqa_main_kernel', gen_main(o), 256, 512, 163840)]
    if o.dbg == 2:
        ks = ks[:1]
    out = [HEADER.rstrip()]
    for name, _, g, b, lds in ks:
        if len(ks) == 1 and o.fuse == 2:
            out.append(f"; @launch grid=({g},1,1) block=({b},1,1) lds={lds}")
        else:
            out.append(f"; @launch kernel={name} grid=({g},1,1) block=({b},1,1) lds={lds}")
    out.append('.amdgcn_target "amdgcn-amd-amdhsa--gfx950"')
    out.append('.text')
    for name, p, g, b, lds in ks:
        n = p.fix_hazards()
        errs = p.lint_waits()
        for e in errs[:20]:
            print(f"LINT[{name}]: {e}", file=sys.stderr)
        nv, ns = p.max_regs()
        print(f"{name}: {len(p.ins)} instrs, vgpr {nv}, sgpr {ns}, nops inserted {n}", file=sys.stderr)
        out.append(f".globl {name}\n.p2align 8\n.type {name},@function\n{name}:")
        out.append(p.text())
        out.append(kd(name, max(nv, 8), max(ns, 16)))
    return '\n'.join(out) + '\n'

if __name__ == '__main__':
    ap = argparse.ArgumentParser()
    ap.add_argument('-o', default='standalone__gqa_block_cached__near_ridge.s')
    for k, d in OPTS.items():
        ap.add_argument('--' + k, type=int, default=d)
    a = ap.parse_args()
    o = Opt()
    for k in OPTS:
        setattr(o, k, getattr(a, k))
    open(a.o, 'w').write(emit(o))
```

```python
import sys, argparse
from asmlib import Prog
import gen
from gen import f32bits, SCALE_LOG2E, kd, HEADER
from gen import stamp as _stamp
import gen9
from gen9 import WS_O, WS_PART, WS_FLAG, WS_SIZE, MF, MF16, rg, SPIN, gen_flush_final

STSETS = {0: {0:0,1:1,2:2,3:3,4:4,5:5,6:6,7:7,8:8,9:9},
          1: {5:0, 'e1':1, 'e2':2, 'e3':3, 'e4':4, 6:5, 7:6, 'g0':7, 8:8, 9:9}}
def stamp(p, o, name):
    m = STSETS[getattr(o, 'stset', 0)]
    if name in m: _stamp(p, o, m[name])

class Opt(gen.Opt):
    pass
OPTS = dict(icpf=4, outsc=1, prepoll=1, fast=1, stset=0, nt=1, dbg=0, stamps=0, stampwave=0, wt=1, kdel=5, wotat=7, lead=8, nearly=12)

SLOT = 16384
NSLOT = 10

def gen_main(o):
    p = Prog()
    NT = ' nt' if o.nt else ''
    sX, sK, sV, sWq, sWs, sWo = 4, 6, 8, 10, 12, 14
    rK, rV, rW, rX, rO = 16, 20, 24, 28, 32
    sWave, sB, sH, sXc, sQh, sKh = 36, 37, 38, 39, 40, 41
    sRK, sRV, sKoff, sVoff, sCnt, sJj = 42, 43, 44, 45, 46, 47
    sC, sT0, sT1, sT2 = 48, 49, 50, 51
    sLw, sWg, sIss, sL4096, sGof = 53, 54, 55, 56, 57
    sOut, sDbg, sN, sTag = 80, 82, 84, 86
    vL = 1
    vLW = 10
    vLX = 12
    vLK = 13
    vVA = 14
    vTn = 18
    vNon = 20
    vLV = 24
    vKA = 28
    vM, vThr, vL0, vL1 = 36, 37, 38, 39
    vQ = 40
    vS = [72, 88]
    vP = 104
    vKf = 112
    vVf = 144
    vO = 176
    QB = [112, 176]
    vKo = 10; vVo = 14; vWo = 24; vXo = 28; vWoA, vWoB, vWoC = 30, 31, 32
    vDum = 249
    vOff = 240
    S_ = [i * SLOT for i in range(NSLOT)]
    QS = [139264, 65536, 90112, 114688]
    QX = S_[9]
    lab = [0]
    def nl(s):
        lab[0] += 1
        return f"K1_{s}{lab[0]}"
    nbar = {'c': 0, 'l': 0}
    def bar(who):
        nbar[who] += 1
        p("s_barrier")
    LEAD = o.lead
    assert LEAD == 8
    POS = []
    for n in range(33):
        if n == 0: POS.append((1, 0))
        elif n % 2 == 1: POS.append((1, (n + 1) // 2))
        else: POS.append((0, (n - 2) // 2))
    NEARLY = o.nearly
    def wo_addr(G): return (49152 + G * 9216) if G < 12 else (G - 12) * 9216
    EX, STAT, NONL = 0, 32768, 34816

    p(f"""
    s_cmp_ge_u32 s2, 256
    s_cbranch_scc1 K1_END
    s_load_dwordx4 s[4:7], s[0:1], 0
    s_load_dwordx4 s[8:11], s[0:1], 16
    s_load_dwordx2 s[12:13], s[0:1], 56
    s_load_dwordx2 s[14:15], s[0:1], 32
    s_load_dwordx4 s[80:83], s[0:1], 40
    """)
    if o.icpf:
        ICL = o.icpf
        p("s_getpc_b64 s[90:91]")
        p.label("K1_PCREF")
        p(f"""
        s_mov_b32 s93, K1_END-K1_PCREF
        v_cmp_gt_u32 vcc, {ICL}, v0
        s_and_saveexec_b64 s[58:59], vcc
        s_cbranch_execz K1_ICD
        s_lshr_b32 s92, s2, 3
        s_mul_i32 s92, s92, {ICL*128}
        v_lshlrev_b32 v2, 7, v0
        v_add_u32 v2, s92, v2
        v_min_u32 v2, s93, v2
        global_load_dword v{vDum}, v2, s[90:91]
        """)
        p.label("K1_ICD")
        p("s_mov_b64 exec, s[58:59]")
    p(f"""
    v_and_b32 v{vL}, 63, v0
    v_lshrrev_b32 v2, 6, v0
    s_and_b32 s{sXc}, s2, 7
    s_lshr_b32 s{sT1}, s2, 3
    v_readfirstlane_b32 s{sWave}, v2
    s_lshr_b32 s{sB}, s{sT1}, 2
    s_and_b32 s{sJj}, s{sT1}, 3
    s_lshl_b32 s{sH}, s{sXc}, 2
    s_add_u32 s{sH}, s{sH}, s{sJj}
    s_lshl_b32 s{sWg}, s{sB}, 5
    s_add_u32 s{sWg}, s{sWg}, s{sH}
    v_and_b32 v2, 15, v{vL}
    v_lshrrev_b32 v3, 4, v{vL}
    v_lshrrev_b32 v4, 2, v2
    v_and_b32 v5, 3, v2
    v_lshrrev_b32 v6, 5, v{vL}
    v_and_b32 v7, 31, v{vL}
    s_cmp_lt_u32 s{sWave}, 4
    s_cbranch_scc1 K1_COMPUTE
    """)

    vq = []
    def vissue(tag, n): vq.extend([tag] * n)
    def vneed(*tags):
        idx = [i for i, t in enumerate(vq) if t in tags]
        if not idx: return 63
        n = len(vq) - 1 - idx[-1]
        del vq[:idx[-1] + 1]
        return min(n, 63)
    p(f"""
    s_and_b32 s{sLw}, s{sWave}, 3
    s_lshl_b32 s{sL4096}, s{sLw}, 12
    v_lshlrev_b32 v8, 2, v3
    v_xor_b32 v8, v8, v2
    v_lshlrev_b32 v8, 4, v8
    v_lshl_add_u32 v{vVo}, v3, 8, v8
    v_lshl_add_u32 v{vWo}, v3, 13, v8
    """)
    for u in range(1, 4):
        p(f"v_add_u32 v{vWo+u}, {u*31744}, v{vWo}")
    p(f"""
    s_lshl_b32 s{sT0}, s{sLw}, 4
    s_movk_i32 s{sT1}, 1152
    """)
    for u in range(2):
        p(f"""
        v_lshrrev_b32 v8, 3, v{vL}
        v_add_u32 v8, s{sT0}, v8
        v_add_u32 v8, {8*u}, v8
        v_mul_lo_u32 v8, v8, s{sT1}
        v_add_u32 v9, {4*u}, v3
        v_and_b32 v9, 7, v9
        v_and_b32 v{vXo+u}, 7, v{vL}
        v_xor_b32 v9, v9, v{vXo+u}
        v_lshl_add_u32 v8, v9, 4, v8
        v_subrev_u32 v{vXo+u}, {u*1024}, v8
        """)
    p("s_waitcnt lgkmcnt(0)")
    stamp(p, o, 0)
    p(f"""
    s_lshl_b32 s{sT0}, s{sH}, 8
    s_add_u32 s{rW}, s{sWq}, s{sT0}
    s_addc_u32 s{rW+1}, s{sWq+1}, 0
    s_sub_u32 s{rW+2}, {576*8192}, s{sT0}
    s_mov_b32 s{rW+3}, 0x20000
    s_mul_i32 s{sT0}, s{sB}, {64*1152}
    s_add_u32 s{rX}, s{sX}, s{sT0}
    s_addc_u32 s{rX+1}, s{sX+1}, 0
    s_mov_b32 s{rX+2}, {64*1152}
    s_mov_b32 s{rX+3}, 0x20000
    """)
    def issue_chunk(c):
        qs = QS[c % 4]
        p(f"""
        s_lshl_b32 s{sT0}, s{sLw}, 17
        s_add_u32 s{sT0}, s{sT0}, {c*524288}
        s_add_u32 m0, s{sL4096}, {qs}
        """)
        for u in range(4):
            p(f"buffer_load_dwordx4 v{vWo+u}, s[{rW}:{rW+3}], s{sT0} offen offset:{u*1024} lds")
        p(f"""
        s_lshr_b32 s{sT1}, s{sL4096}, 1
        s_add_u32 m0, s{sT1}, {qs+16384}
        s_movk_i32 s{sT0}, {c*128}
        """)
        for u in range(2):
            p(f"buffer_load_dwordx4 v{vXo+u}, s[{rX}:{rX+3}], s{sT0} offen offset:{u*1024} lds")
        vissue(('C', c), 6)
    if o.wt:
        p(f"""
        s_cmp_eq_u32 s{sWave}, 4
        s_cbranch_scc0 K1_WT1
        v_lshrrev_b32 v8, 1, v{vL}
        v_and_b32 v9, 1, v{vL}
        v_lshlrev_b32 v8, 13, v8
        v_lshl_add_u32 v8, v9, 7, v8
        s_mul_i32 s{sT0}, s{sB}, {72*8192}
        buffer_load_dword v{vDum}, v8, s[{rW}:{rW+3}], s{sT0} offen
        s_add_u32 s{sT0}, s{sT0}, {32*8192}
        buffer_load_dword v{vDum}, v8, s[{rW}:{rW+3}], s{sT0} offen
        s_add_u32 s{sT0}, s{sT0}, {32*8192}
        v_cmp_gt_u32 vcc, 16, v{vL}
        s_and_saveexec_b64 s[58:59], vcc
        buffer_load_dword v{vDum}, v8, s[{rW}:{rW+3}], s{sT0} offen
        s_mov_b64 exec, s[58:59]
        """)
        p.label("K1_WT1")
        p(f"""
        s_cmp_eq_u32 s{sWave}, 5
        s_cbranch_scc0 K1_WT2
        v_lshlrev_b32 v9, 7, v{vL}
        s_mul_i32 s{sT0}, s{sJj}, 18432
        buffer_load_dword v{vDum}, v9, s[{rX}:{rX+3}], s{sT0} offen
        s_add_u32 s{sT0}, s{sT0}, 8192
        buffer_load_dword v{vDum}, v9, s[{rX}:{rX+3}], s{sT0} offen
        s_add_u32 s{sT0}, s{sT0}, 8192
        v_cmp_gt_u32 vcc, 16, v{vL}
        s_and_saveexec_b64 s[58:59], vcc
        buffer_load_dword v{vDum}, v9, s[{rX}:{rX+3}], s{sT0} offen
        s_mov_b64 exec, s[58:59]
        """)
        p.label("K1_WT2")
    for c in range(4):
        issue_chunk(c)
    p(f"""
    s_cmp_eq_u32 s2, 0
    s_cbranch_scc0 K1_NON
    s_cmp_eq_u32 s{sWave}, 7
    s_cbranch_scc0 K1_NON
    s_memrealtime s[{sN}:{sN+1}]
    s_waitcnt lgkmcnt(0)
    s_or_b32 s{sN}, s{sN}, 1
    v_mov_b32 v8, s{sN}
    v_mov_b32 v9, s{sN+1}
    v_mov_b32 v{vNon}, 0
    v_cmp_eq_u32 vcc, 0, v{vL}
    s_and_saveexec_b64 s[58:59], vcc
    global_store_dwordx2 v{vNon}, v[8:9], s[{sDbg}:{sDbg+1}] sc1
    s_mov_b64 exec, s[58:59]
    """)
    p.label("K1_NON")
    p(f"""
    s_lshl_b32 s{sT0}, s{sB}, 4
    s_lshr_b32 s{sT1}, s{sH}, 1
    s_add_u32 s{sT0}, s{sT0}, s{sT1}
    s_lshl_b32 s{sT0}, s{sT0}, 18
    s_add_u32 s{rK}, s{sK}, s{sT0}
    s_addc_u32 s{rK+1}, s{sK+1}, 0
    s_mov_b32 s{rK+2}, 0x40000
    s_mov_b32 s{rK+3}, 0x20000
    s_add_u32 s{rV}, s{sV}, s{sT0}
    s_addc_u32 s{rV+1}, s{sV+1}, 0
    s_mov_b32 s{rV+2}, 0x40000
    s_mov_b32 s{rV+3}, 0x20000
    s_lshr_b32 s{sT0}, s{sLw}, 1
    s_lshl_b32 s{sT0}, s{sT0}, 17
    s_and_b32 s{sT1}, s{sLw}, 1
    s_lshl_b32 s{sT1}, s{sT1}, 12
    s_add_u32 s{sGof}, s{sT0}, s{sT1}
    """)
    for u in range(4):
        p(f"""
        v_add_u32 v8, {4*u}, v3
        v_xor_b32 v8, v8, v2
        v_lshlrev_b32 v8, 4, v8
        v_lshl_add_u32 v{vKo+u}, v3, 8, v8
        """)
    p(f"""
    s_movk_i32 s{sT0}, 3641
    s_movk_i32 s{sT1}, 1152
    """)
    for k, (reg, addi) in enumerate(((vWoA, 0), (vWoB, 4), (vWoC, None))):
        if addi is None:
            p(f"v_add_u32 v8, {64*8}, v{vL}")
        else:
            p(f"""
            s_add_u32 s{sT2}, s{sLw}, {addi}
            s_lshl_b32 s{sT2}, s{sT2}, 6
            v_add_u32 v8, s{sT2}, v{vL}
            """)
        p(f"""
        v_mul_u32_u24 v9, s{sT0}, v8
        v_lshrrev_b32 v9, 16, v9
        v_mul_u32_u24 v{reg}, 18, v9
        v_sub_u32 v{reg}, v8, v{reg}
        v_mul_u32_u24 v9, s{sT1}, v9
        v_lshl_add_u32 v{reg}, v{reg}, 4, v9
        """)

    for i in range(9): p(f"v_mov_b32 v{vOff+i}, 0")
    def issue_pos(n):
        isK, t = POS[n]
        p(f"""
        s_add_u32 s{sT0}, s{sGof}, {t*8192}
        s_add_u32 m0, s{sL4096}, {S_[n % NSLOT]}
        """)
        for u in range(4):
            if isK: p(f"buffer_load_dwordx4 v{vKo+u}, s[{rK}:{rK+3}], s{sT0} offen offset:{u*1024}{NT} lds")
            else:   p(f"buffer_load_dwordx4 v{vVo}, s[{rV}:{rV+3}], s{sT0} offen offset:{u*1024}{NT} lds")
        vissue(('P', n), 4)
    def wo_srd():
        p(f"""
        s_mul_i32 s{sT0}, s{sXc}, {512*1152}
        s_mul_i32 s{sT1}, s{sJj}, 288
        s_add_u32 s{sT0}, s{sT0}, s{sT1}
        s_add_u32 s{rW}, s{sWo}, s{sT0}
        s_addc_u32 s{rW+1}, s{sWo+1}, 0
        s_sub_u32 s{rW+2}, {4096*1152}, s{sT0}
        s_mov_b32 s{rW+3}, 0x20000
        """)
    def early_group(G):
        base = wo_addr(G)
        p(f"""
        s_lshl_b32 s{sT1}, s{sLw}, 10
        s_add_u32 m0, s{sT1}, {base}
        s_mov_b32 s{sT0}, {G*36864}
        buffer_load_dwordx4 v{vWoA}, s[{rW}:{rW+3}], s{sT0} offen lds
        s_add_u32 m0, s{sT1}, {base+4096}
        s_cmp_eq_u32 s{sLw}, 0
        buffer_load_dwordx4 v{vWoB}, s[{rW}:{rW+3}], s{sT0} offen lds
        """)
        l = nl('EG')
        p(f"s_cbranch_scc0 {l}")
        p(f"s_mov_b32 m0, {base+8192}")
        p(f"buffer_load_dwordx4 v{vWoC}, s[{rW}:{rW+3}], s{sT0} offen lds")
        p.label(l)
        vissue(('G', G), 2)
    def wo_touch():
        l = nl('WOT')
        p(f"""
        s_cmp_eq_u32 s{sWave}, 6
        s_cbranch_scc0 {l}
        s_mul_i32 s{sT0}, s{sXc}, {512*1152}
        s_add_u32 s{rX}, s{sWo}, s{sT0}
        s_addc_u32 s{rX+1}, s{sWo+1}, 0
        s_mov_b32 s{rX+2}, {512*1152}
        s_mov_b32 s{rX+3}, 0x20000
        s_lshr_b32 s{sT0}, s2, 3
        s_mul_i32 s{sT0}, s{sT0}, 18432
        v_lshlrev_b32 v2, 7, v{vL}
        buffer_load_dword v{vDum}, v2, s[{rX}:{rX+3}], s{sT0} offen
        s_add_u32 s{sT0}, s{sT0}, 8192
        buffer_load_dword v{vDum}, v2, s[{rX}:{rX+3}], s{sT0} offen
        s_add_u32 s{sT0}, s{sT0}, 8192
        v_cmp_gt_u32 vcc, 16, v{vL}
        s_and_saveexec_b64 s[58:59], vcc
        buffer_load_dword v{vDum}, v2, s[{rX}:{rX+3}], s{sT0} offen
        s_mov_b64 exec, s[58:59]
        """)
        p.label(l)

    for c in range(9):
        p(f"s_waitcnt vmcnt({vneed(('C', c))})")
        bar('l')
        if c == 0: stamp(p, o, 1)
        if 1 <= c <= 5: issue_chunk(c + 3)
        if c == o.kdel: issue_pos(0); issue_pos(1)
        if c == o.kdel + 1: issue_pos(2); issue_pos(3)
    bar('l')
    for n in range(4, 8): issue_pos(n)
    bar('l')
    p(f"s_waitcnt vmcnt({vneed(('P', 0))})")
    bar('l')
    issue_pos(8)
    p(f"s_waitcnt vmcnt({vneed(('P', 1))})")
    bar('l')
    issue_pos(9)
    import copy
    sv = list(vq)
    Wa, Wb = [], []
    for i in range(10):
        Wa.append(vneed(('P', 2 * i + 2))); vissue(('P', 2 * i + 10), 4)
        Wb.append(vneed(('P', 2 * i + 3))); vissue(('P', 2 * i + 11), 4)
    if o.wotat < 10: pass
    wa, wb = min(Wa), min(Wb)
    print('loader loop waits', Wa, Wb, file=sys.stderr)
    p(f"""
    s_mov_b32 s{sIss}, {S_[0]}
    s_add_u32 s{sVoff}, s{sGof}, {4*8192}
    s_add_u32 s{sKoff}, s{sGof}, {6*8192}
    s_mov_b32 s{sCnt}, 0
    """)
    def adv_iss():
        p(f"""
        s_add_u32 s{sIss}, s{sIss}, {SLOT}
        s_cmp_eq_u32 s{sIss}, {NSLOT*SLOT}
        s_cselect_b32 s{sIss}, 0, s{sIss}
        """)
    p.label("K1_LLOOP")
    p(f"s_waitcnt vmcnt({wa})")
    p("s_barrier")
    p(f"s_add_u32 m0, s{sIss}, s{sL4096}")
    for u in range(4):
        p(f"buffer_load_dwordx4 v{vVo}, s[{rV}:{rV+3}], s{sVoff} offen offset:{u*1024}{NT} lds")
    adv_iss()
    p(f"s_add_u32 s{sVoff}, s{sVoff}, 8192")
    p(f"s_waitcnt vmcnt({wb})")
    p("s_barrier")
    p(f"s_add_u32 m0, s{sIss}, s{sL4096}")
    for u in range(4):
        p(f"buffer_load_dwordx4 v{vKo+u}, s[{rK}:{rK+3}], s{sKoff} offen offset:{u*1024}{NT} lds")
    adv_iss()
    p(f"s_add_u32 s{sKoff}, s{sKoff}, 8192")
    l = nl('WTT')
    p(f"s_cmp_eq_u32 s{sCnt}, {o.wotat}")
    p(f"s_cbranch_scc0 {l}")
    wo_touch()
    p.label(l)
    p(f"""
    s_add_u32 s{sCnt}, s{sCnt}, 1
    s_cmp_lt_u32 s{sCnt}, 10
    s_cbranch_scc1 K1_LLOOP
    """)
    nbar['l'] += 20
    wo_srd()
    p(f"""
    s_cmp_eq_u32 s{sWave}, 7
    s_cbranch_scc0 K1_NL
    v_mov_b32 v8, 0
    global_load_dwordx2 v[{vNon}:{vNon+1}], v8, s[{sDbg}:{sDbg+1}] sc1
    """)
    p.label("K1_NL")
    sched = {('a', 11): [0], ('b', 11): [1, 2], ('a', 12): [3, 4], ('b', 12): [5, 6], ('a', 13): [7], ('b', 13): [8, 9], ('a', 14): [10, 11]}
    for i in range(10, 16):
        p(f"s_waitcnt vmcnt({vneed(('P', 2 * i + 2))})")
        bar('l')
        if i <= 11: issue_pos(2 * i + 10)
        for G in sched.get(('a', i), []):
            if G < NEARLY: early_group(G)
        if i <= 13:
            p(f"s_waitcnt vmcnt({vneed(('P', 2 * i + 3))})")
            bar('l')
            for G in sched.get(('b', i), []):
                if G < NEARLY: early_group(G)
    p(f"""
    s_mov_b32 s{rO}, s{sWs}
    s_mov_b32 s{rO+1}, s{sWs+1}
    s_mov_b32 s{rO+2}, {WS_SIZE}
    s_mov_b32 s{rO+3}, 0x20000
    """)
    bar('l')
    p(f"""
    s_cmp_eq_u32 s{sWave}, 7
    s_cbranch_scc0 K1_NON2
    s_waitcnt vmcnt(0)
    s_mov_b32 s{sT2}, 0
    """)
    p.label("K1_NONP")
    p(f"""
    v_readfirstlane_b32 s{sT0}, v{vNon}
    s_add_u32 s{sT2}, s{sT2}, 1
    s_cmp_lg_u32 s{sT0}, 0
    s_cbranch_scc1 K1_NONOK
    s_cmp_lt_u32 s{sT2}, {SPIN}
    s_cbranch_scc0 K1_NONOK
    v_mov_b32 v8, 0
    global_load_dwordx2 v[{vNon}:{vNon+1}], v8, s[{sDbg}:{sDbg+1}] sc1
    s_waitcnt vmcnt(0)
    s_branch K1_NONP
    """)
    p.label("K1_NONOK")
    p(f"""
    v_mov_b32 v6, {NONL}
    ds_write_b64 v6, v[{vNon}:{vNon+1}]
    s_and_b32 s{sT0}, s{sWg}, 0xfc
    s_lshl_b32 s{sT0}, s{sT0}, 7
    s_add_u32 s{sT0}, s{sT0}, {WS_FLAG}
    v_and_b32 v12, 3, v{vL}
    v_lshlrev_b32 v13, 7, v12
    buffer_load_dword v11, v13, s[{rO}:{rO+3}], s{sT0} offen sc1
    s_waitcnt lgkmcnt(0)
    """)
    p.label("K1_NON2")
    bar('l')
    p(f"""
    v_mov_b32 v6, {NONL}
    ds_read_b64 v[8:9], v6
    s_cmp_eq_u32 s{sWave}, 7
    s_cbranch_scc0 K1_RDY
    s_waitcnt vmcnt(0)
    v_cmp_eq_u32 vcc, v11, v{vNon}
    v_cmp_eq_u32 s[58:59], s{sJj}, v12
    s_or_b64 vcc, vcc, s[58:59]
    s_cmp_eq_u64 vcc, -1
    s_cselect_b32 s{sT0}, {1 if o.fast else 0}, 0
    v_mov_b32 v12, s{sT0}
    v_mov_b32 v6, {NONL+8}
    ds_write_b32 v6, v12
    """)
    p.label("K1_RDY")
    p("s_branch K1_TAIL")

    p.label("K1_COMPUTE")
    p(f"""
    s_and_b32 s{sQh}, s{sWave}, 1
    s_lshr_b32 s{sKh}, s{sWave}, 1
    s_mov_b32 s{sC}, 0x{f32bits(SCALE_LOG2E):08x}
    v_lshl_add_u32 v8, v6, 3, v4
    v_lshlrev_b32 v8, 8, v8
    v_lshrrev_b32 v9, 1, v5
    v_lshl_add_u32 v8, v9, 3, v8
    v_and_b32 v9, 1, v3
    v_lshlrev_b32 v9, 1, v9
    v_and_b32 v2, 1, v5
    v_add_u32 v9, v9, v2
    v_lshlrev_b32 v2, 2, v4
    s_lshl_b32 s{sT0}, s{sKh}, 3
    """)
    for a in range(2):
        p(f"""
        v_add_u32 v19, s{sT0}, v9
        v_xor_b32 v19, v19, v2
        v_lshl_add_u32 v{vLW+a}, v19, 4, v8
        s_add_u32 s{sT0}, s{sT0}, 4
        """)
    p(f"""
    s_lshl_b32 s{sT0}, s{sQh}, 5
    v_add_u32 v8, s{sT0}, v7
    v_lshrrev_b32 v9, 1, v8
    v_and_b32 v9, 7, v9
    v_xor_b32 v9, v9, v6
    v_lshlrev_b32 v9, 4, v9
    v_lshl_add_u32 v{vLX}, v8, 7, v9
    s_lshl_b32 s{sT0}, s{sKh}, 5
    v_add_u32 v8, s{sT0}, v7
    v_and_b32 v9, 15, v8
    v_xor_b32 v9, v9, v6
    v_lshlrev_b32 v9, 4, v9
    v_lshl_add_u32 v{vLK}, v8, 8, v9
    v_lshl_add_u32 v8, v6, 2, v4
    v_add_u32 v8, s{sT0}, v8
    v_lshlrev_b32 v8, 8, v8
    v_and_b32 v9, 1, v5
    v_lshl_add_u32 v8, v9, 3, v8
    v_and_b32 v9, 1, v3
    v_lshlrev_b32 v9, 1, v9
    v_lshrrev_b32 v2, 1, v5
    v_add_u32 v9, v9, v2
    v_lshlrev_b32 v2, 2, v4
    """)
    for a in range(4):
        p(f"""
        s_lshl_b32 s{sT1}, s{sKh}, 1
        s_add_u32 s{sT1}, s{sT1}, {a}
        s_and_b32 s{sT1}, s{sT1}, 3
        s_lshl_b32 s{sT1}, s{sT1}, 2
        v_add_u32 v19, s{sT1}, v9
        v_xor_b32 v19, v19, v2
        v_lshl_add_u32 v{vLV+a}, v19, 4, v8
        """)
    for i in range(32):
        p(f"v_mov_b32 v{vS[0]+i}, 0")
    p(f"""
    v_mov_b32 v{vM}, 0xf149f2ca
    v_mov_b32 v{vThr}, 0xf149f2ca
    v_mov_b32 v{vL0}, 0
    v_mov_b32 v{vL1}, 0
    """)
    def wo_voffs():
        p(f"""
        s_movk_i32 s{sT0}, 3641
        s_movk_i32 s{sT1}, 1152
        """)
        for i in range(9):
            p(f"""
            v_add_u32 v2, {64*i}, v{vL}
            v_mul_u32_u24 v3, s{sT0}, v2
            v_lshrrev_b32 v3, 16, v3
            v_mul_u32_u24 v4, 18, v3
            v_sub_u32 v4, v2, v4
            v_mul_u32_u24 v3, s{sT1}, v3
            v_lshl_add_u32 v3, v4, 4, v3
            v_subrev_u32 v{vOff+i}, {(i%4)*1024}, v3
            """)
    wo_voffs()
    p("s_waitcnt lgkmcnt(0)")
    stamp(p, o, 0)
    A0 = vKA
    def q_phase(c, reads):
        f = QB[(c - 1) % 2]
        rd = list(reads)
        for ks in range(4):
            for a in range(2):
                if c >= 1:
                    p(f"{MF} {rg(vS[a],16)}, {rg(f+12*ks+4*a,4)}, {rg(f+12*ks+8,4)}, {rg(vS[a],16)}")
                for _ in range(3 if a == 0 else 2):
                    if rd: p(rd.pop(0))
        for r_ in rd: p(r_)
    for c in range(9):
        qs = QS[c % 4]
        f = QB[c % 2]
        p(f"""
        v_add_u32 v{A0}, {qs}, v{vLW}
        v_add_u32 v{A0+1}, {qs}, v{vLW+1}
        v_add_u32 v{A0+2}, {qs+16384}, v{vLX}
        v_xor_b32 v{A0+3}, 32, v{A0+2}
        v_xor_b32 v{A0+4}, 64, v{A0+2}
        v_xor_b32 v{A0+5}, 96, v{A0+2}
        s_waitcnt lgkmcnt(0)
        """)
        bar('c')
        if c == 0: stamp(p, o, 1)
        reads = []
        for ks in range(4):
            for a in range(2):
                reads.append(f"ds_read_b64_tr_b16 {rg(f+12*ks+4*a,2)}, v{A0+a} offset:{ks*4096}")
                reads.append(f"ds_read_b64_tr_b16 {rg(f+12*ks+4*a+2,2)}, v{A0+a} offset:{ks*4096+1024}")
            reads.append(f"ds_read_b128 {rg(f+12*ks+8,4)}, v{A0+2+ks}")
        q_phase(c, reads)
    p("s_waitcnt lgkmcnt(0)")
    bar('c')
    q_phase(9, [])
    stamp(p, o, 2)
    p(f"""
    s_lshl_b32 s{sT0}, s{sQh}, 13
    s_add_u32 s{sT0}, s{sT0}, {QX}
    s_lshl_b32 s{sT1}, s{sKh}, 12
    s_add_u32 s{sT1}, s{sT1}, s{sT0}
    v_lshlrev_b32 v2, 4, v{vL}
    v_add_u32 v3, s{sT1}, v2
    v_add_u32 v2, s{sT0}, v2
    """)
    p(f"v_mov_b32 v{vKA}, v{vLK}")
    for s in range(1, 8):
        p(f"v_xor_b32 v{vKA+s}, {s<<5}, v{vLK}")
    for i in range(64):
        p(f"v_mov_b32 v{vO+i}, 0")
    for a in range(2):
        for j in range(8):
            p(f"v_cvt_pk_bf16_f32 v{vVf+8*a+j}, v{vS[a]+2*j}, v{vS[a]+2*j+1}")
    for k in range(4):
        p(f"ds_write_b128 v3, {rg(vVf+4*k,4)} offset:{k*1024}")
    p("s_waitcnt lgkmcnt(0)")
    bar('c')
    for s in range(8):
        p(f"ds_read_b128 {rg(vQ+4*s,4)}, v2 offset:{s*1024}")

    def k_addrs(sreg):
        p(f"v_add_u32 v{vKA}, s{sreg}, v{vLK}")
        for s in range(1, 8):
            p(f"v_xor_b32 v{vKA+s}, {s<<5}, v{vKA}")
    def v_addrs(sreg):
        for a in range(4):
            p(f"v_add_u32 v{vVA+a}, s{sreg}, v{vLV+a}")
    def adv2(s):
        p(f"""
        s_add_u32 s{s}, s{s}, {2*SLOT}
        s_cmp_ge_u32 s{s}, {NSLOT*SLOT}
        s_cselect_b32 s{sT0}, {NSLOT*SLOT}, 0
        s_sub_u32 s{s}, s{s}, s{sT0}
        """)
    def tmax(S):
        p(f"""
        v_max3_f32 v2, v{S}, v{S+1}, v{S+2}
        v_max3_f32 v3, v{S+3}, v{S+4}, v{S+5}
        v_max3_f32 v2, v2, v{S+6}, v{S+7}
        v_max3_f32 v3, v3, v{S+8}, v{S+9}
        v_max3_f32 v2, v2, v{S+10}, v{S+11}
        v_max3_f32 v3, v3, v{S+12}, v{S+13}
        v_max3_f32 v2, v2, v{S+14}, v{S+15}
        v_max_f32 v2, v2, v3
        v_mov_b32 v3, v2
        s_nop 1
        v_permlane32_swap_b32 v2, v3
        v_max_f32 v2, v2, v3
        v_mul_f32 v{vTn}, s{sC}, v2
        """)
    p("s_waitcnt lgkmcnt(0)")
    bar('c')
    stamp(p, o, 3)
    for s in range(8):
        p(f"ds_read_b128 {rg(vKf+4*s,4)}, v{vKA+s}")
    p(f"s_mov_b32 s{sRK}, {S_[1]}")
    k_addrs(sRK)
    p("s_waitcnt lgkmcnt(0)")
    bar('c')
    for s in range(8):
        c = '0' if s == 0 else rg(vS[0], 16)
        p(f"{MF} {rg(vS[0],16)}, {rg(vKf+4*s,4)}, {rg(vQ+4*s,4)}, {c}")
    for s in range(8):
        p(f"ds_read_b128 {rg(vKf+4*s,4)}, v{vKA+s}")
    p(f"""
    s_mov_b32 s{sRV}, {S_[2]}
    s_mov_b32 s{sRK}, {S_[3]}
    s_mov_b32 s{sCnt}, 0
    """)
    v_addrs(sRV)
    k_addrs(sRK)
    tmax(vS[0])

    def alpha(tag, cur, do_qk):
        S, Sn = vS[cur], vS[1 - cur]
        p("s_waitcnt lgkmcnt(0)")
        p("s_barrier")
        p(f"""
        v_cmp_gt_f32 vcc, v{vTn}, v{vThr}
        s_cbranch_vccnz K1_RS{tag}
        """)
        p.label(f"K1_BK{tag}")
        reads = [(a, ks, h) for a in range(4) for ks in range(2) for h in range(2)]
        for j in range(8):
            if do_qk:
                c = '0' if j == 0 else rg(Sn, 16)
                p(f"{MF} {rg(Sn,16)}, {rg(vKf+4*j,4)}, {rg(vQ+4*j,4)}, {c}")
            for (a, ks, h) in reads[2*j:2*j+2]:
                f = vVf + (a * 2 + ks) * 4 + 2 * h
                p(f"ds_read_b64_tr_b16 {rg(f,2)}, v{vVA+a} offset:{ks*4096+h*2048}")
            p(f"v_fma_f32 v{S+2*j}, v{S+2*j}, s{sC}, -v{vM}")
            p(f"v_fma_f32 v{S+2*j+1}, v{S+2*j+1}, s{sC}, -v{vM}")
            p(f"v_exp_f32 v{S+2*j}, v{S+2*j}")
            p(f"v_exp_f32 v{S+2*j+1}, v{S+2*j+1}")
            if j >= 1:
                k = j - 1
                p(f"v_cvt_pk_bf16_f32 v{vP+k}, v{S+2*k}, v{S+2*k+1}")
                p(f"v_add_f32 v{vL0}, v{vL0}, v{S+2*k}")
                p(f"v_add_f32 v{vL1}, v{vL1}, v{S+2*k+1}")
        p(f"v_cvt_pk_bf16_f32 v{vP+7}, v{S+14}, v{S+15}")
        p(f"v_add_f32 v{vL0}, v{vL0}, v{S+14}")
        p(f"v_add_f32 v{vL1}, v{vL1}, v{S+15}")

    def beta(tag, cur, read_k, do_tmax, barrier=True):
        Sn = vS[1 - cur]
        p("s_waitcnt lgkmcnt(0)")
        if barrier: p("s_barrier")
        n = 0
        for a in range(4):
            for ks in range(2):
                f = vVf + (a * 2 + ks) * 4
                p(f"{MF} {rg(vO+16*a,16)}, {rg(f,4)}, {rg(vP+4*ks,4)}, {rg(vO+16*a,16)}")
                if read_k:
                    p(f"ds_read_b128 {rg(vKf+4*n,4)}, v{vKA+n}")
                if n == 0:
                    adv2(sRV); adv2(sRK)
                if n == 1 and do_tmax:
                    tmax(Sn)
                if n == 3: v_addrs(sRV)
                n += 1
        k_addrs(sRK)

    def rescale(tag):
        p.label(f"K1_RS{tag}")
        p(f"""
        v_max_f32 v3, v{vTn}, v{vM}
        v_sub_f32 v4, v{vM}, v3
        v_exp_f32 v4, v4
        v_mov_b32 v{vM}, v3
        v_add_f32 v{vThr}, 0x41000000, v3
        """)
        p(f"v_mul_f32 v{vL0}, v{vL0}, v4")
        p(f"v_mul_f32 v{vL1}, v{vL1}, v4")
        for i in range(64):
            p(f"v_mul_f32 v{vO+i}, v{vO+i}, v4")
        p(f"s_branch K1_BK{tag}")

    p.label("K1_LOOP")
    alpha('L0', 0, True)
    beta('L0', 0, True, True)
    alpha('L1', 1, True)
    beta('L1', 1, True, True)
    p(f"""
    s_add_u32 s{sCnt}, s{sCnt}, 1
    s_cmp_lt_u32 s{sCnt}, 7
    s_cbranch_scc1 K1_LOOP
    """)
    nbar['c'] += 28
    stamp(p, o, 4)
    alpha('A', 0, True); nbar['c'] += 1
    beta('A', 0, False, True, barrier=False)
    alpha('B', 1, False); nbar['c'] += 1
    p("s_waitcnt lgkmcnt(0)")
    for a in (2, 3, 0, 1):
        for ks in range(2):
            f = vVf + (a * 2 + ks) * 4
            p(f"{MF} {rg(vO+16*a,16)}, {rg(f,4)}, {rg(vP+4*ks,4)}, {rg(vO+16*a,16)}")
    stamp(p, o, 5)
    vS0 = vS[0]
    p(f"""
    v_add_f32 v{vL0}, v{vL0}, v{vL1}
    v_mov_b32 v{vL1}, v{vL0}
    s_nop 1
    v_permlane32_swap_b32 v{vL0}, v{vL1}
    v_add_f32 v{vThr}, v{vL0}, v{vL1}
    v_and_b32 v7, 31, v{vL}
    v_lshlrev_b32 v7, 3, v7
    s_lshl_b32 s{sT0}, s{sWave}, 8
    s_add_u32 s{sT0}, s{sT0}, {STAT}
    s_xor_b32 s{sT1}, s{sWave}, 2
    s_lshl_b32 s{sT1}, s{sT1}, 8
    s_add_u32 s{sT1}, s{sT1}, {STAT}
    v_add_u32 v2, s{sT0}, v7
    v_add_u32 v7, s{sT1}, v7
    v_lshlrev_b32 v3, 4, v{vL}
    s_xor_b32 s{sT1}, s{sWave}, 2
    s_lshl_b32 s{sT1}, s{sT1}, 13
    s_add_u32 s{sT1}, s{sT1}, {EX}
    s_lshl_b32 s{sT0}, s{sWave}, 13
    s_add_u32 s{sT0}, s{sT0}, {EX}
    v_add_u32 v4, s{sT1}, v3
    v_add_u32 v5, s{sT0}, v3
    s_mov_b32 s{rO}, s{sWs}
    s_mov_b32 s{rO+1}, s{sWs+1}
    s_mov_b32 s{rO+2}, {WS_SIZE}
    s_mov_b32 s{rO+3}, 0x20000
    """)
    wo_srd()
    bar('c')
    stamp(p, o, 'e1')
    p(f"ds_write_b64 v2, v[{vM}:{vM+1}]")
    for a in (2, 3):
        for g in range(4):
            p(f"ds_write_b128 v4, {rg(vO+16*a+4*g,4)} offset:{(a-2)*4096+g*1024}")
    p("s_waitcnt lgkmcnt(0)")
    stamp(p, o, 'e2')
    bar('c')
    stamp(p, o, 'e3')
    p(f"ds_read_b64 v[{vS0}:{vS0+1}], v7")
    for a in range(2):
        for g in range(4):
            p(f"ds_read_b128 {rg(vO+32+16*a+4*g,4)}, v5 offset:{a*4096+g*1024}")
    p(f"""
    v_mov_b32 v6, {NONL}
    ds_read_b64 v[8:9], v6
    s_waitcnt lgkmcnt(9)
    v_max_f32 v2, v{vM}, v{vS0}
    v_sub_f32 v3, v{vM}, v2
    v_sub_f32 v4, v{vS0}, v2
    v_exp_f32 v3, v3
    v_exp_f32 v4, v4
    v_mul_f32 v5, v3, v{vThr}
    v_fmac_f32 v5, v4, v{vS0+1}
    v_rcp_f32 v6, v5
    v_mul_f32 v3, v3, v6
    v_mul_f32 v4, v4, v6
    """)
    for i in range(32):
        p(f"v_mul_f32 v{vO+i}, v{vO+i}, v3")
    for a in range(2):
        p(f"s_waitcnt lgkmcnt({5-4*a})")
        for i in range(16):
            p(f"v_fmac_f32 v{vO+16*a+i}, v{vO+32+16*a+i}, v4")
    order = [0, 2, 1, 3]
    for a in range(2):
        for idx, g in enumerate(order):
            p(f"v_cvt_pk_bf16_f32 v{vKf+8*a+2*idx}, v{vO+16*a+4*g}, v{vO+16*a+4*g+1}")
            p(f"v_cvt_pk_bf16_f32 v{vKf+8*a+2*idx+1}, v{vO+16*a+4*g+2}, v{vO+16*a+4*g+3}")
    stamp(p, o, 'e4')
    p(f"""
    v_and_b32 v2, 15, v{vL}
    v_lshrrev_b32 v3, 5, v{vL}
    v_lshl_add_u32 v2, v3, 4, v2
    v_lshlrev_b32 v2, 4, v2
    v_bfe_u32 v3, v{vL}, 4, 1
    v_lshl_add_u32 v2, v3, 12, v2
    s_lshl_b32 s{sT0}, s{sWg}, 14
    s_lshl_b32 s{sT1}, s{sQh}, 13
    s_add_u32 s{sT0}, s{sT0}, s{sT1}
    s_lshl_b32 s{sT1}, s{sKh}, 11
    s_add_u32 s{sT0}, s{sT0}, s{sT1}
    """)
    for a in range(2):
        p(f"buffer_store_dwordx4 {rg(vKf+8*a,4)}, v2, s[{rO}:{rO+3}], s{sT0} offen offset:{a*1024} sc1")
        p(f"buffer_store_dwordx4 {rg(vKf+8*a+4,4)}, v2, s[{rO}:{rO+3}], s{sT0} offen offset:{a*1024+512} sc1")
    assert nbar['c'] == nbar['l'], nbar
    print('barriers', nbar, file=sys.stderr)
    p.label("K1_TAIL")
    tail(p, o, locals())
    for tag in ('L0', 'L1', 'A', 'B'):
        rescale(tag)
    p.label("K1_END")
    p("s_endpgm")
    return p

def tail(p, o, L):
    g = lambda n: L[n]
    sWave, sB, sXc, sJj, sWg, sT0, sT1, sT2 = g('sWave'), g('sB'), g('sXc'), g('sJj'), g('sWg'), g('sT0'), g('sT1'), g('sT2')
    rO, rW, rX, sN, sTag, sOut, sWs = g('rO'), g('rW'), g('rX'), g('sN'), g('sTag'), g('sOut'), g('sWs')
    vL, vOff, wo_addr, NEARLY, NONL, wo_voffs = g('vL'), g('vOff'), g('wo_addr'), g('NEARLY'), g('NONL'), g('wo_voffs')
    sQt, sKh2 = 40, 41
    vAcc, vB, vF, vLA, vAd = 28, 64, 96, 19, 20
    sFast = 52
    p(f"""
    s_cmp_lt_u32 s{sWave}, 4
    s_cbranch_scc0 T_E4L
    s_waitcnt vmcnt(0) lgkmcnt(0)
    s_branch T_E4
    """)
    p.label("T_E4L")
    p("s_waitcnt lgkmcnt(0)")
    p.label("T_E4")
    p(f"""
    v_readfirstlane_b32 s{sN}, v8
    v_readfirstlane_b32 s{sN+1}, v9
    s_barrier
    """)
    if o.stamps: stamp(p, o, 6)
    def b_loads():
        p(f"""
        s_and_b32 s{sT0}, s{sWg}, 0xfc
        s_lshl_b32 s{sT1}, s{sKh2}, 1
        s_add_u32 s{sT0}, s{sT0}, s{sT1}
        s_lshl_b32 s{sT0}, s{sT0}, 14
        s_lshl_b32 s{sT1}, s{sQt}, 12
        s_add_u32 s{sT0}, s{sT0}, s{sT1}
        s_add_u32 s{sT1}, s{sT0}, 16384
        """)
        for kk in range(8):
            p(f"buffer_load_dwordx4 {rg(vB+4*kk,4)}, v5, s[{rO}:{rO+3}], s{sT0 if kk < 4 else sT1} offen offset:{(kk&3)*1024} sc1")
    p(f"""
    s_and_b32 s{sQt}, s{sWave}, 3
    s_lshr_b32 s{sKh2}, s{sWave}, 2
    v_lshlrev_b32 v5, 4, v{vL}
    v_mov_b32 v6, {NONL+8}
    ds_read_b32 v12, v6
    s_cmp_eq_u32 s{sWave}, 7
    s_cbranch_scc0 T_F0
    v_mov_b32 v9, s{sN}
    s_lshl_b32 s{sT0}, s{sWg}, 7
    s_add_u32 s{sT0}, s{sT0}, {WS_FLAG}
    v_mov_b32 v3, 0
    v_cmp_eq_u32 vcc, 0, v{vL}
    s_and_saveexec_b64 s[58:59], vcc
    buffer_store_dword v9, v3, s[{rO}:{rO+3}], s{sT0} offen sc1
    s_mov_b64 exec, s[58:59]
    """)
    p.label("T_F0")
    p(f"""
    s_waitcnt lgkmcnt(0)
    v_readfirstlane_b32 s{sFast}, v12
    s_cmp_eq_u32 s{sFast}, 0
    s_cbranch_scc1 T_SLOW
    """)
    b_loads()
    p.label("T_SLOW")
    p(f"""
    s_cmp_eq_u32 s{sWave}, 7
    s_cbranch_scc0 T_NOFLAG
    s_cmp_eq_u32 s{sFast}, 0
    s_cbranch_scc0 T_SETUP
    s_and_b32 s{sT0}, s{sWg}, 0xfc
    s_lshl_b32 s{sT0}, s{sT0}, 7
    s_add_u32 s{sT0}, s{sT0}, {WS_FLAG}
    v_and_b32 v8, 3, v{vL}
    v_lshlrev_b32 v8, 7, v8
    s_mov_b32 s{sT1}, 0
    buffer_load_dword v10, v8, s[{rO}:{rO+3}], s{sT0} offen sc1
    buffer_load_dword v11, v8, s[{rO}:{rO+3}], s{sT0} offen sc1
    """)
    p("s_branch T_SETUP")
    p.label("T_NOFLAG")
    p.label("T_SETUP")
    p("s_barrier")
    nlate = 16 - NEARLY
    p(f"""
    s_cmp_lt_u32 s{sWave}, {min(nlate, 4)}
    s_cbranch_scc0 T_NOLATE
    """)
    for rep in range((nlate + 3) // 4):
        if rep > 0:
            p(f"s_cmp_lt_u32 s{sWave}, {nlate - 4*rep}")
            p("s_cbranch_scc0 T_NOLATE")
        p(f"s_add_u32 s{sT2}, s{sWave}, {NEARLY + 4*rep}")
        p(f"""
        s_mul_i32 s{sT1}, s{sT2}, 9216
        s_add_u32 s{sT0}, s{sT1}, 49152
        s_sub_u32 s{sT1}, s{sT1}, {12*9216}
        s_cmp_lt_u32 s{sT2}, 12
        s_cselect_b32 s{sT1}, s{sT0}, s{sT1}
        s_mul_i32 s{sT0}, s{sT2}, 36864
        """)
        for i in range(9):
            if i % 4 == 0:
                p(f"s_add_u32 m0, s{sT1}, {(i//4)*4096}")
            p(f"buffer_load_dwordx4 v{vOff+i}, s[{rW}:{rW+3}], s{sT0} offen offset:{(i%4)*1024} lds")
    p.label("T_NOLATE")
    p(f"""
    v_lshrrev_b32 v2, 4, v{vL}
    v_and_b32 v3, 15, v{vL}
    v_lshrrev_b32 v4, 2, v3
    v_and_b32 v6, 3, v3
    v_lshl_add_u32 v2, v2, 2, v4
    v_mul_u32_u24 v2, 288, v2
    v_lshl_add_u32 v{vLA}, v6, 3, v2
    s_and_b32 s{sTag}, s{sN}, 0xfff
    s_lshr_b32 s{sTag+1}, s{sN}, 12
    s_and_b32 s{sTag+1}, s{sTag+1}, 0xfff
    s_lshr_b32 s{sTag+2}, s{sN}, 24
    s_lshl_b32 s{sT2}, s{sN+1}, 8
    s_or_b32 s{sTag+2}, s{sTag+2}, s{sT2}
    s_and_b32 s{sTag+2}, s{sTag+2}, 0xfff
    s_lshr_b32 s{sTag+3}, s{sN+1}, 4
    s_and_b32 s{sTag+3}, s{sTag+3}, 0xfff
    v_mov_b32 v7, 0xfffff000
    """)
    for i in range(36):
        p(f"v_mov_b32 v{vAcc+i}, 0")
    p(f"""
    s_cmp_eq_u32 s{sWave}, 7
    s_cbranch_scc0 T_NOPOLL
    s_cmp_eq_u32 s{sFast}, 0
    s_cbranch_scc0 T_NOPOLL
    s_and_b32 s{sT0}, s{sWg}, 0xfc
    s_lshl_b32 s{sT0}, s{sT0}, 7
    s_add_u32 s{sT0}, s{sT0}, {WS_FLAG}
    s_mov_b32 s{sT1}, 0
    """)
    p.label("T_POLL1")
    p(f"""
    s_waitcnt vmcnt(1)
    v_cmp_ne_u32 vcc, v10, v9
    s_cbranch_vccz T_NOPOLL
    buffer_load_dword v10, v8, s[{rO}:{rO+3}], s{sT0} offen sc1
    s_add_u32 s{sT1}, s{sT1}, 1
    s_waitcnt vmcnt(1)
    v_cmp_ne_u32 vcc, v11, v9
    s_cbranch_vccz T_NOPOLL
    buffer_load_dword v11, v8, s[{rO}:{rO+3}], s{sT0} offen sc1
    s_cmp_lt_u32 s{sT1}, {SPIN}
    s_cbranch_scc1 T_POLL1
    """)
    p.label("T_NOPOLL")
    p(f"""
    s_waitcnt vmcnt(0)
    s_barrier
    """)
    if o.stamps: stamp(p, o, 7)
    p(f"s_cmp_eq_u32 s{sFast}, 0")
    p("s_cbranch_scc0 T_BDONE")
    b_loads()
    p.label("T_BDONE")
    gen9.gemm_body(p, vAcc, vB, vF, vAd, vLA, sKh2, sT2, wo_addr, [0, 1, 2, 3, 4], [5, 6, 7, 8], True)
    if o.stamps: stamp(p, o, 8)
    p(f"""
    s_barrier
    s_mul_i32 s{sT0}, s{sQt}, 9216
    v_add_u32 v2, s{sT0}, v5
    s_cmp_eq_u32 s{sKh2}, 0
    s_cbranch_scc0 T_H1
    """)
    for nt in range(5, 9):
        p(f"ds_write_b128 v2, {rg(vAcc+4*nt,4)} offset:{nt*1024}")
    p("s_branch T_H2")
    p.label("T_H1")
    for nt in range(0, 5):
        p(f"ds_write_b128 v2, {rg(vAcc+4*nt,4)} offset:{nt*1024}")
    p.label("T_H2")
    p(f"""
    s_lshl_b32 s{sT0}, s{sXc}, 3
    s_add_u32 s{sT0}, s{sT0}, s{sB}
    s_lshl_b32 s{sT0}, s{sT0}, 2
    s_add_u32 s{sT0}, s{sT0}, s{sJj}
    s_lshl_b32 s{sT0}, s{sT0}, 2
    s_add_u32 s{sT0}, s{sT0}, s{sQt}
    s_mul_i32 s{sT0}, s{sT0}, 9216
    s_add_u32 s{sT0}, s{sT0}, {WS_PART}
    s_waitcnt lgkmcnt(0)
    s_barrier
    s_cmp_eq_u32 s{sKh2}, 0
    s_cbranch_scc0 T_H3
    """)
    def fin(nts):
        for nt in nts:
            p(f"ds_read_b128 {rg(vF+4*nt,4)}, v2 offset:{nt*1024}")
        for idx, nt in enumerate(nts):
            p(f"s_waitcnt lgkmcnt({len(nts)-1-idx})")
            for e in range(4):
                p(f"v_add_f32 v{vAcc+4*nt+e}, v{vAcc+4*nt+e}, v{vF+4*nt+e}")
            for e in range(4):
                p(f"v_and_b32 v{vAcc+4*nt+e}, v7, v{vAcc+4*nt+e}")
                p(f"v_or_b32 v{vAcc+4*nt+e}, s{sTag+e}, v{vAcc+4*nt+e}")
            p(f"s_add_u32 s{sT1}, s{sT0}, {(nt//4)*4096}")
            p(f"buffer_store_dwordx4 {rg(vAcc+4*nt,4)}, v5, s[{rO}:{rO+3}], s{sT1} offen offset:{(nt%4)*1024} sc1")
    fin(list(range(0, 5)))
    p("s_branch T_H4")
    p.label("T_H3")
    fin(list(range(5, 9)))
    p.label("T_H4")
    if o.stamps: stamp(p, o, 9)
    vX = 100
    p(f"""
    s_cmp_ge_u32 s{sWave}, 5
    s_cbranch_scc1 T_DONE
    v_cmp_gt_u32 vcc, 288, v0
    s_and_saveexec_b64 s[58:59], vcc
    s_mul_i32 s{sT0}, s{sXc}, 288
    v_add_u32 v2, s{sT0}, v0
    v_lshlrev_b32 v3, 4, v2
    s_lshl_b32 s{sT0}, s{sB}, 2
    s_add_u32 s{sT0}, s{sT0}, s{sJj}
    s_mul_i32 s{sT0}, s{sT0}, 36864
    s_add_u32 s{sT0}, s{sT0}, {WS_PART}
    s_mov_b32 s{rX}, s{sOut}
    s_mov_b32 s{rX+1}, s{sOut+1}
    s_mov_b32 s{rX+2}, {512*576*2}
    s_mov_b32 s{rX+3}, 0x20000
    v_lshrrev_b32 v4, 6, v2
    v_mul_u32_u24 v5, 57, v4
    v_lshrrev_b32 v5, 9, v5
    v_mul_u32_u24 v6, 9, v5
    v_sub_u32 v6, v4, v6
    v_and_b32 v4, 15, v2
    v_lshl_add_u32 v4, v5, 4, v4
    s_lshl_b32 s{sT1}, s{sB}, 6
    v_add_u32 v4, s{sT1}, v4
    s_movk_i32 s{sT1}, 1152
    v_mul_u32_u24 v4, s{sT1}, v4
    v_lshlrev_b32 v6, 5, v6
    v_add_u32 v4, v4, v6
    v_bfe_u32 v6, v2, 4, 2
    v_lshl_add_u32 v4, v6, 3, v4
    s_mul_i32 s{sT1}, s{sJj}, 288
    v_add_u32 v4, s{sT1}, v4
    s_mov_b32 s{sT2}, 0
    """)
    if o.prepoll:
        p(f"""
        s_mov_b64 s[56:57], exec
        v_readfirstlane_b32 s{sT1}, v3
        v_mul_u32_u24 v6, {32*36864 // 1024}, v{vL}
        v_lshlrev_b32 v6, 10, v6
        v_add_u32 v6, s{sT1}, v6
        v_mov_b32 v9, s{sTag}
        s_mov_b64 exec, 0xff
        buffer_load_dword v10, v6, s[{rO}:{rO+3}], s{sT0} offen sc1
        buffer_load_dword v11, v6, s[{rO}:{rO+3}], s{sT0} offen sc1
        """)
        p.label("T_PP")
        p(f"""
        s_waitcnt vmcnt(1)
        v_xor_b32 v8, v10, v9
        v_and_b32 v8, 0xfff, v8
        v_cmp_ne_u32 vcc, 0, v8
        s_cbranch_vccz T_PPD
        buffer_load_dword v10, v6, s[{rO}:{rO+3}], s{sT0} offen sc1
        s_add_u32 s{sT2}, s{sT2}, 1
        s_waitcnt vmcnt(1)
        v_xor_b32 v8, v11, v9
        v_and_b32 v8, 0xfff, v8
        v_cmp_ne_u32 vcc, 0, v8
        s_cbranch_vccz T_PPD
        buffer_load_dword v11, v6, s[{rO}:{rO+3}], s{sT0} offen sc1
        s_cmp_lt_u32 s{sT2}, {SPIN}
        s_cbranch_scc1 T_PP
        """)
        p.label("T_PPD")
        p(f"""
        s_mov_b64 exec, s[56:57]
        s_mov_b32 s{sT2}, 0
        """)
    p.label("T_POLL2")
    p(f"s_mov_b32 s{sT1}, s{sT0}")
    for s in range(8):
        p(f"buffer_load_dwordx4 {rg(vX+4*s,4)}, v3, s[{rO}:{rO+3}], s{sT1} offen sc1")
        if s < 7: p(f"s_add_u32 s{sT1}, s{sT1}, {32*36864}")
    p(f"""
    s_add_u32 s{sT2}, s{sT2}, 1
    v_mov_b32 v6, 0
    """)
    for s in range(8):
        p(f"s_waitcnt vmcnt({7-s})")
        for e in range(4):
            p(f"v_xor_b32 v8, s{sTag+e}, v{vX+4*s+e}")
            p(f"v_or_b32 v6, v6, v8")
    p(f"""
    v_and_b32 v6, 0xfff, v6
    v_cmp_ne_u32 vcc, 0, v6
    s_cmp_lt_u32 s{sT2}, {SPIN}
    s_cbranch_scc0 T_SUM
    s_cbranch_vccnz T_POLL2
    """)
    p.label("T_SUM")
    for s in range(8):
        for e in range(4):
            p(f"v_and_b32 v{vX+4*s+e}, v7, v{vX+4*s+e}")
    for s in range(1, 8):
        for e in range(4):
            p(f"v_add_f32 v{vX+e}, v{vX+e}, v{vX+4*s+e}")
    p(f"""
    v_cvt_pk_bf16_f32 v8, v{vX}, v{vX+1}
    v_cvt_pk_bf16_f32 v9, v{vX+2}, v{vX+3}
    buffer_store_dwordx2 v[8:9], v4, s[{rX}:{rX+3}], 0 offen{' sc1' if o.outsc else ''}
    s_mov_b64 exec, s[58:59]
    """)
    p.label("T_DONE")
    if o.stamps:
        p("s_waitcnt vmcnt(0)")
        p("s_memrealtime s[90:91]" if o.stamps != 2 else "s_memtime s[90:91]")
        p("s_waitcnt lgkmcnt(0)")
        gen_flush_final(p, o, sWs)
    p("s_branch K1_END")

def emit(o):
    name = 'standalone__gqa_block_cached__near_ridge_kernel'
    p = gen_main(o)
    out = [HEADER.rstrip(), "; @launch grid=(256,1,1) block=(512,1,1) lds=163840",
           '.amdgcn_target "amdgcn-amd-amdhsa--gfx950"', '.text']
    n = p.fix_hazards()
    errs = p.lint_waits()
    for e in errs[:20]:
        print(f"LINT: {e}", file=sys.stderr)
    nv, ns = p.max_regs()
    print(f"{name}: {len(p.ins)} instrs, vgpr {nv}, sgpr {ns}, nops inserted {n}", file=sys.stderr)
    out.append(f".globl {name}\n.p2align 8\n.type {name},@function\n{name}:")
    out.append(p.text())
    out.append(kd(name, max(nv, 8), max(ns, 16)))
    return '\n'.join(out) + '\n'

if __name__ == '__main__':
    ap = argparse.ArgumentParser()
    ap.add_argument('-o', default='standalone__gqa_block_cached__near_ridge.s')
    for k, d in OPTS.items():
        ap.add_argument('--' + k, type=int, default=d)
    a = ap.parse_args()
    o = Opt()
    for k in OPTS:
        setattr(o, k, getattr(a, k))
    open(a.o, 'w').write(emit(o))
```

```python
import sys, argparse
from asmlib import Prog
import gen
from gen import f32bits, SCALE_LOG2E, kd, HEADER
from gen import stamp as _stamp
import gen9
from gen9 import WS_O, WS_PART, WS_FLAG, WS_SIZE, MF, MF16, rg, SPIN, gen_flush_final

STSETS = {0: {0:0,1:1,2:2,3:3,4:4,5:5,6:6,7:7,8:8,9:9},
          1: {5:0, 'e1':1, 'e2':2, 'e3':3, 'e4':4, 6:5, 7:6, 'g0':7, 8:8, 9:9}}
def stamp(p, o, name):
    m = STSETS[getattr(o, 'stset', 0)]
    if name in m: _stamp(p, o, m[name])

class Opt(gen.Opt):
    pass
OPTS = dict(skew=0, icpf=4, outsc=1, prepoll=1, fast=1, stset=0, nt=1, dbg=0, stamps=0, stampwave=0, wt=1, kdel=5, wotat=7, lead=8, nearly=12)

SLOT = 16384
NSLOT = 10

def gen_main(o):
    p = Prog()
    NT = ' nt' if o.nt else ''
    sX, sK, sV, sWq, sWs, sWo = 4, 6, 8, 10, 12, 14
    rK, rV, rW, rX, rO = 16, 20, 24, 28, 32
    sWave, sB, sH, sXc, sQh, sKh = 36, 37, 38, 39, 40, 41
    sRK, sRV, sKoff, sVoff, sCnt, sJj = 42, 43, 44, 45, 46, 47
    sC, sT0, sT1, sT2 = 48, 49, 50, 51
    sLw, sWg, sIss, sL4096, sGof = 53, 54, 55, 56, 57
    sPar, sIssB = 98, 99
    vOa, vOb = 40, 44
    sOut, sDbg, sN, sTag = 80, 82, 84, 86
    vL = 1
    vLW = 10
    vLX = 12
    vLK = 13
    vVA = 14
    vTn = 18
    vNon = 20
    vLV = 24
    vKA = 28
    vM, vThr, vL0, vL1 = 36, 37, 38, 39
    vQ = 40
    vS = [72, 88]
    vP = 104
    vKf = 112
    vVf = 144
    vO = 176
    QB = [112, 176]
    vKo = 10; vVo = 14; vWo = 24; vXo = 28; vWoA, vWoB, vWoC = 30, 31, 32
    vDum = 249
    vOff = 240
    S_ = [i * SLOT for i in range(NSLOT)]
    QS = [139264, 65536, 90112, 114688]
    QX = S_[9]
    lab = [0]
    def nl(s):
        lab[0] += 1
        return f"K1_{s}{lab[0]}"
    nbar = {'c': 0, 'l': 0}
    def bar(who):
        nbar[who] += 1
        p("s_barrier")
    LEAD = o.lead
    assert LEAD == 8
    POS = []
    for n in range(33):
        if n == 0: POS.append((1, 0))
        elif n % 2 == 1: POS.append((1, (n + 1) // 2))
        else: POS.append((0, (n - 2) // 2))
    NEARLY = o.nearly
    def wo_addr(G): return (49152 + G * 9216) if G < 12 else (G - 12) * 9216
    EX, STAT, NONL = 0, 32768, 34816

    p(f"""
    s_cmp_ge_u32 s2, 256
    s_cbranch_scc1 K1_END
    s_load_dwordx4 s[4:7], s[0:1], 0
    s_load_dwordx4 s[8:11], s[0:1], 16
    s_load_dwordx2 s[12:13], s[0:1], 56
    s_load_dwordx2 s[14:15], s[0:1], 32
    s_load_dwordx4 s[80:83], s[0:1], 40
    """)
    if o.icpf:
        ICL = o.icpf
        p("s_getpc_b64 s[90:91]")
        p.label("K1_PCREF")
        p(f"""
        s_mov_b32 s93, K1_END-K1_PCREF
        v_cmp_gt_u32 vcc, {ICL}, v0
        s_and_saveexec_b64 s[58:59], vcc
        s_cbranch_execz K1_ICD
        s_lshr_b32 s92, s2, 3
        s_mul_i32 s92, s92, {ICL*128}
        v_lshlrev_b32 v2, 7, v0
        v_add_u32 v2, s92, v2
        v_min_u32 v2, s93, v2
        global_load_dword v{vDum}, v2, s[90:91]
        """)
        p.label("K1_ICD")
        p("s_mov_b64 exec, s[58:59]")
    p(f"""
    v_and_b32 v{vL}, 63, v0
    v_lshrrev_b32 v2, 6, v0
    s_and_b32 s{sXc}, s2, 7
    s_lshr_b32 s{sT1}, s2, 3
    v_readfirstlane_b32 s{sWave}, v2
    s_lshr_b32 s{sB}, s{sT1}, 2
    s_and_b32 s{sJj}, s{sT1}, 3
    s_lshl_b32 s{sH}, s{sXc}, 2
    s_add_u32 s{sH}, s{sH}, s{sJj}
    s_lshl_b32 s{sWg}, s{sB}, 5
    s_add_u32 s{sWg}, s{sWg}, s{sH}
    v_and_b32 v2, 15, v{vL}
    v_lshrrev_b32 v3, 4, v{vL}
    v_lshrrev_b32 v4, 2, v2
    v_and_b32 v5, 3, v2
    v_lshrrev_b32 v6, 5, v{vL}
    v_and_b32 v7, 31, v{vL}
    s_cmp_lt_u32 s{sWave}, 4
    s_cbranch_scc1 K1_COMPUTE
    """)

    vq = []
    def vissue(tag, n): vq.extend([tag] * n)
    def vneed(*tags):
        idx = [i for i, t in enumerate(vq) if t in tags]
        if not idx: return 63
        n = len(vq) - 1 - idx[-1]
        del vq[:idx[-1] + 1]
        return min(n, 63)
    p(f"""
    s_and_b32 s{sLw}, s{sWave}, 3
    s_lshl_b32 s{sL4096}, s{sLw}, 12
    v_lshlrev_b32 v8, 2, v3
    v_xor_b32 v8, v8, v2
    v_lshlrev_b32 v8, 4, v8
    v_lshl_add_u32 v{vVo}, v3, 8, v8
    v_lshl_add_u32 v{vWo}, v3, 13, v8
    """)
    for u in range(1, 4):
        p(f"v_add_u32 v{vWo+u}, {u*31744}, v{vWo}")
    p(f"""
    s_lshl_b32 s{sT0}, s{sLw}, 4
    s_movk_i32 s{sT1}, 1152
    """)
    for u in range(2):
        p(f"""
        v_lshrrev_b32 v8, 3, v{vL}
        v_add_u32 v8, s{sT0}, v8
        v_add_u32 v8, {8*u}, v8
        v_mul_lo_u32 v8, v8, s{sT1}
        v_add_u32 v9, {4*u}, v3
        v_and_b32 v9, 7, v9
        v_and_b32 v{vXo+u}, 7, v{vL}
        v_xor_b32 v9, v9, v{vXo+u}
        v_lshl_add_u32 v8, v9, 4, v8
        v_subrev_u32 v{vXo+u}, {u*1024}, v8
        """)
    p("s_waitcnt lgkmcnt(0)")
    stamp(p, o, 0)
    p(f"""
    s_lshl_b32 s{sT0}, s{sH}, 8
    s_add_u32 s{rW}, s{sWq}, s{sT0}
    s_addc_u32 s{rW+1}, s{sWq+1}, 0
    s_sub_u32 s{rW+2}, {576*8192}, s{sT0}
    s_mov_b32 s{rW+3}, 0x20000
    s_mul_i32 s{sT0}, s{sB}, {64*1152}
    s_add_u32 s{rX}, s{sX}, s{sT0}
    s_addc_u32 s{rX+1}, s{sX+1}, 0
    s_mov_b32 s{rX+2}, {64*1152}
    s_mov_b32 s{rX+3}, 0x20000
    """)
    def issue_chunk(c):
        qs = QS[c % 4]
        p(f"""
        s_lshl_b32 s{sT0}, s{sLw}, 17
        s_add_u32 s{sT0}, s{sT0}, {c*524288}
        s_add_u32 m0, s{sL4096}, {qs}
        """)
        for u in range(4):
            p(f"buffer_load_dwordx4 v{vWo+u}, s[{rW}:{rW+3}], s{sT0} offen offset:{u*1024} lds")
        p(f"""
        s_lshr_b32 s{sT1}, s{sL4096}, 1
        s_add_u32 m0, s{sT1}, {qs+16384}
        s_movk_i32 s{sT0}, {c*128}
        """)
        for u in range(2):
            p(f"buffer_load_dwordx4 v{vXo+u}, s[{rX}:{rX+3}], s{sT0} offen offset:{u*1024} lds")
        vissue(('C', c), 6)
    if o.wt:
        p(f"""
        s_cmp_eq_u32 s{sWave}, 4
        s_cbranch_scc0 K1_WT1
        v_lshrrev_b32 v8, 1, v{vL}
        v_and_b32 v9, 1, v{vL}
        v_lshlrev_b32 v8, 13, v8
        v_lshl_add_u32 v8, v9, 7, v8
        s_mul_i32 s{sT0}, s{sB}, {72*8192}
        buffer_load_dword v{vDum}, v8, s[{rW}:{rW+3}], s{sT0} offen
        s_add_u32 s{sT0}, s{sT0}, {32*8192}
        buffer_load_dword v{vDum}, v8, s[{rW}:{rW+3}], s{sT0} offen
        s_add_u32 s{sT0}, s{sT0}, {32*8192}
        v_cmp_gt_u32 vcc, 16, v{vL}
        s_and_saveexec_b64 s[58:59], vcc
        buffer_load_dword v{vDum}, v8, s[{rW}:{rW+3}], s{sT0} offen
        s_mov_b64 exec, s[58:59]
        """)
        p.label("K1_WT1")
        p(f"""
        s_cmp_eq_u32 s{sWave}, 5
        s_cbranch_scc0 K1_WT2
        v_lshlrev_b32 v9, 7, v{vL}
        s_mul_i32 s{sT0}, s{sJj}, 18432
        buffer_load_dword v{vDum}, v9, s[{rX}:{rX+3}], s{sT0} offen
        s_add_u32 s{sT0}, s{sT0}, 8192
        buffer_load_dword v{vDum}, v9, s[{rX}:{rX+3}], s{sT0} offen
        s_add_u32 s{sT0}, s{sT0}, 8192
        v_cmp_gt_u32 vcc, 16, v{vL}
        s_and_saveexec_b64 s[58:59], vcc
        buffer_load_dword v{vDum}, v9, s[{rX}:{rX+3}], s{sT0} offen
        s_mov_b64 exec, s[58:59]
        """)
        p.label("K1_WT2")
    for c in range(4):
        issue_chunk(c)
    p(f"""
    s_cmp_eq_u32 s2, 0
    s_cbranch_scc0 K1_NON
    s_cmp_eq_u32 s{sWave}, 7
    s_cbranch_scc0 K1_NON
    s_memrealtime s[{sN}:{sN+1}]
    s_waitcnt lgkmcnt(0)
    s_or_b32 s{sN}, s{sN}, 1
    v_mov_b32 v8, s{sN}
    v_mov_b32 v9, s{sN+1}
    v_mov_b32 v{vNon}, 0
    v_cmp_eq_u32 vcc, 0, v{vL}
    s_and_saveexec_b64 s[58:59], vcc
    global_store_dwordx2 v{vNon}, v[8:9], s[{sDbg}:{sDbg+1}] sc1
    s_mov_b64 exec, s[58:59]
    """)
    p.label("K1_NON")
    p(f"""
    s_lshl_b32 s{sT0}, s{sB}, 4
    s_lshr_b32 s{sT1}, s{sH}, 1
    s_add_u32 s{sT0}, s{sT0}, s{sT1}
    s_lshl_b32 s{sT0}, s{sT0}, 18
    s_add_u32 s{rK}, s{sK}, s{sT0}
    s_addc_u32 s{rK+1}, s{sK+1}, 0
    s_mov_b32 s{rK+2}, 0x40000
    s_mov_b32 s{rK+3}, 0x20000
    s_add_u32 s{rV}, s{sV}, s{sT0}
    s_addc_u32 s{rV+1}, s{sV+1}, 0
    s_mov_b32 s{rV+2}, 0x40000
    s_mov_b32 s{rV+3}, 0x20000
    s_lshr_b32 s{sT0}, s{sLw}, 1
    s_lshl_b32 s{sT0}, s{sT0}, 17
    s_and_b32 s{sT1}, s{sLw}, 1
    s_lshl_b32 s{sT1}, s{sT1}, 12
    s_add_u32 s{sGof}, s{sT0}, s{sT1}
    """)
    for u in range(4):
        p(f"""
        v_add_u32 v8, {4*u}, v3
        v_xor_b32 v8, v8, v2
        v_lshlrev_b32 v8, 4, v8
        v_lshl_add_u32 v{vKo+u}, v3, 8, v8
        """)
    p(f"""
    s_movk_i32 s{sT0}, 3641
    s_movk_i32 s{sT1}, 1152
    """)
    for k, (reg, addi) in enumerate(((vWoA, 0), (vWoB, 4), (vWoC, None))):
        if addi is None:
            p(f"v_add_u32 v8, {64*8}, v{vL}")
        else:
            p(f"""
            s_add_u32 s{sT2}, s{sLw}, {addi}
            s_lshl_b32 s{sT2}, s{sT2}, 6
            v_add_u32 v8, s{sT2}, v{vL}
            """)
        p(f"""
        v_mul_u32_u24 v9, s{sT0}, v8
        v_lshrrev_b32 v9, 16, v9
        v_mul_u32_u24 v{reg}, 18, v9
        v_sub_u32 v{reg}, v8, v{reg}
        v_mul_u32_u24 v9, s{sT1}, v9
        v_lshl_add_u32 v{reg}, v{reg}, 4, v9
        """)

    for i in range(9): p(f"v_mov_b32 v{vOff+i}, 0")
    def issue_pos(n):
        isK, t = POS[n]
        p(f"""
        s_add_u32 s{sT0}, s{sGof}, {t*8192}
        s_add_u32 m0, s{sL4096}, {S_[n % NSLOT]}
        """)
        for u in range(4):
            if isK: p(f"buffer_load_dwordx4 v{vKo+u}, s[{rK}:{rK+3}], s{sT0} offen offset:{u*1024}{NT} lds")
            else:   p(f"buffer_load_dwordx4 v{vVo}, s[{rV}:{rV+3}], s{sT0} offen offset:{u*1024}{NT} lds")
        vissue(('P', n), 4)
    def wo_srd():
        p(f"""
        s_mul_i32 s{sT0}, s{sXc}, {512*1152}
        s_mul_i32 s{sT1}, s{sJj}, 288
        s_add_u32 s{sT0}, s{sT0}, s{sT1}
        s_add_u32 s{rW}, s{sWo}, s{sT0}
        s_addc_u32 s{rW+1}, s{sWo+1}, 0
        s_sub_u32 s{rW+2}, {4096*1152}, s{sT0}
        s_mov_b32 s{rW+3}, 0x20000
        """)
    def early_group(G):
        base = wo_addr(G)
        p(f"""
        s_lshl_b32 s{sT1}, s{sLw}, 10
        s_add_u32 m0, s{sT1}, {base}
        s_mov_b32 s{sT0}, {G*36864}
        buffer_load_dwordx4 v{vWoA}, s[{rW}:{rW+3}], s{sT0} offen lds
        s_add_u32 m0, s{sT1}, {base+4096}
        s_cmp_eq_u32 s{sLw}, 0
        buffer_load_dwordx4 v{vWoB}, s[{rW}:{rW+3}], s{sT0} offen lds
        """)
        l = nl('EG')
        p(f"s_cbranch_scc0 {l}")
        p(f"s_mov_b32 m0, {base+8192}")
        p(f"buffer_load_dwordx4 v{vWoC}, s[{rW}:{rW+3}], s{sT0} offen lds")
        p.label(l)
        vissue(('G', G), 2)
    def wo_touch():
        l = nl('WOT')
        p(f"""
        s_cmp_eq_u32 s{sWave}, 6
        s_cbranch_scc0 {l}
        s_mul_i32 s{sT0}, s{sXc}, {512*1152}
        s_add_u32 s{rX}, s{sWo}, s{sT0}
        s_addc_u32 s{rX+1}, s{sWo+1}, 0
        s_mov_b32 s{rX+2}, {512*1152}
        s_mov_b32 s{rX+3}, 0x20000
        s_lshr_b32 s{sT0}, s2, 3
        s_mul_i32 s{sT0}, s{sT0}, 18432
        v_lshlrev_b32 v2, 7, v{vL}
        buffer_load_dword v{vDum}, v2, s[{rX}:{rX+3}], s{sT0} offen
        s_add_u32 s{sT0}, s{sT0}, 8192
        buffer_load_dword v{vDum}, v2, s[{rX}:{rX+3}], s{sT0} offen
        s_add_u32 s{sT0}, s{sT0}, 8192
        v_cmp_gt_u32 vcc, 16, v{vL}
        s_and_saveexec_b64 s[58:59], vcc
        buffer_load_dword v{vDum}, v2, s[{rX}:{rX+3}], s{sT0} offen
        s_mov_b64 exec, s[58:59]
        """)
        p.label(l)

    for c in range(9):
        p(f"s_waitcnt vmcnt({vneed(('C', c))})")
        bar('l')
        if c == 0: stamp(p, o, 1)
        if 1 <= c <= 5: issue_chunk(c + 3)
        if c == o.kdel: issue_pos(0); issue_pos(1)
        if c == o.kdel + 1: issue_pos(2); issue_pos(3)
    bar('l')
    for n in range(4, 8): issue_pos(n)
    bar('l')
    p(f"s_waitcnt vmcnt({vneed(('P', 0))})")
    bar('l')
    issue_pos(8)
    p(f"s_waitcnt vmcnt({vneed(('P', 1))})")
    bar('l')
    issue_pos(9)
    VQ = {0: list(vq), 1: list(vq)}
    def need_in(q, tag):
        idx = [i for i, t in enumerate(q) if t == tag]
        if not idx: return 63
        n = len(q) - 1 - idx[-1]
        del q[:idx[-1] + 1]
        return min(n, 63)
    Wa, Wb = [], []
    pars = (0, 1) if o.skew else (0,)
    for i in range(10):
        Wa.append(min(need_in(VQ[q], ('P', 2 * i + 2)) for q in pars))
        for q in pars: VQ[q].extend([('P', 2 * i + 10 + q)] * 4)
        Wb.append(min(need_in(VQ[q], ('P', 2 * i + 3)) for q in pars))
        for q in pars: VQ[q].extend([('P', 2 * i + 11 - q)] * 4)
    wa, wb = min(Wa), min(Wb)
    print('loader loop waits', Wa, Wb, file=sys.stderr)
    p(f"""
    s_and_b32 s{sPar}, s{sH}, {1 if o.skew else 0}
    s_mov_b32 s{sIss}, {S_[0]}
    s_mov_b32 s{sIssB}, {S_[1]}
    s_add_u32 s{sVoff}, s{sGof}, {4*8192}
    s_add_u32 s{sKoff}, s{sGof}, {6*8192}
    s_mov_b32 s{sCnt}, 0
    """)
    for u in range(4):
        p(f"v_mov_b32 v{vOa+u}, v{vVo}")
        p(f"v_mov_b32 v{vOb+u}, v{vKo+u}")
    if o.skew:
        p(f"""
        s_cmp_eq_u32 s{sPar}, 0
        s_cbranch_scc1 K1_PAR0
        s_mov_b32 s{sIss}, {S_[1]}
        s_mov_b32 s{sIssB}, {S_[0]}
        s_add_u32 s{sVoff}, s{sGof}, {6*8192}
        s_add_u32 s{sKoff}, s{sGof}, {4*8192}
        s_mov_b32 s{sT0}, s{rK}
        s_mov_b32 s{sT1}, s{rK+1}
        s_mov_b32 s{rK}, s{rV}
        s_mov_b32 s{rK+1}, s{rV+1}
        s_mov_b32 s{rV}, s{sT0}
        s_mov_b32 s{rV+1}, s{sT1}
        """)
        for u in range(4):
            p(f"v_mov_b32 v{vOa+u}, v{vKo+u}")
            p(f"v_mov_b32 v{vOb+u}, v{vVo}")
        p.label("K1_PAR0")
    def adv_iss(sreg):
        p(f"""
        s_add_u32 s{sreg}, s{sreg}, {2*SLOT}
        s_cmp_ge_u32 s{sreg}, {NSLOT*SLOT}
        s_cselect_b32 s{sT0}, {NSLOT*SLOT}, 0
        s_sub_u32 s{sreg}, s{sreg}, s{sT0}
        """)
    p.label("K1_LLOOP")
    p(f"s_waitcnt vmcnt({wa})")
    p("s_barrier")
    p(f"s_add_u32 m0, s{sIss}, s{sL4096}")
    for u in range(4):
        p(f"buffer_load_dwordx4 v{vOa+u}, s[{rV}:{rV+3}], s{sVoff} offen offset:{u*1024}{NT} lds")
    adv_iss(sIss)
    p(f"s_add_u32 s{sVoff}, s{sVoff}, 8192")
    p(f"s_waitcnt vmcnt({wb})")
    p("s_barrier")
    p(f"s_add_u32 m0, s{sIssB}, s{sL4096}")
    for u in range(4):
        p(f"buffer_load_dwordx4 v{vOb+u}, s[{rK}:{rK+3}], s{sKoff} offen offset:{u*1024}{NT} lds")
    adv_iss(sIssB)
    p(f"s_add_u32 s{sKoff}, s{sKoff}, 8192")
    l = nl('WTT')
    p(f"s_cmp_eq_u32 s{sCnt}, {o.wotat}")
    p(f"s_cbranch_scc0 {l}")
    wo_touch()
    p.label(l)
    p(f"""
    s_add_u32 s{sCnt}, s{sCnt}, 1
    s_cmp_lt_u32 s{sCnt}, 10
    s_cbranch_scc1 K1_LLOOP
    """)
    nbar['l'] += 20
    if o.skew:
        p(f"""
        s_cmp_eq_u32 s{sPar}, 0
        s_cbranch_scc1 K1_PAR2
        s_mov_b32 s{sT0}, s{rK}
        s_mov_b32 s{sT1}, s{rK+1}
        s_mov_b32 s{rK}, s{rV}
        s_mov_b32 s{rK+1}, s{rV+1}
        s_mov_b32 s{rV}, s{sT0}
        s_mov_b32 s{rV+1}, s{sT1}
        """)
        p.label("K1_PAR2")
    wo_srd()
    p(f"""
    s_cmp_eq_u32 s{sWave}, 7
    s_cbranch_scc0 K1_NL
    v_mov_b32 v8, 0
    global_load_dwordx2 v[{vNon}:{vNon+1}], v8, s[{sDbg}:{sDbg+1}] sc1
    """)
    p.label("K1_NL")
    sched = {('a', 11): [0], ('b', 11): [1, 2], ('a', 12): [3, 4], ('b', 12): [5, 6], ('a', 13): [7], ('b', 13): [8, 9], ('a', 14): [10, 11]}
    def issue_pos_par(n, par):
        if par is None or not o.skew:
            sv = list(vq); issue_pos(n); del vq[:]; vq.extend(sv)
            for q in pars: VQ[q].extend([('P', n)] * 4)
            return
        l = nl('IP')
        p(f"s_cmp_eq_u32 s{sPar}, {par}")
        p(f"s_cbranch_scc0 {l}")
        sv = list(vq); issue_pos(n); del vq[:]; vq.extend(sv)
        p.label(l)
        VQ[par].extend([('P', n)] * 4)
    def eg(G):
        sv = list(vq); early_group(G); del vq[:]; vq.extend(sv)
        for q in pars: VQ[q].extend([('G', G)] * 2)
    for i in range(10, 16):
        p(f"s_waitcnt vmcnt({min(need_in(VQ[q], ('P', 2 * i + 2)) for q in pars)})")
        bar('l')
        if i <= 11: issue_pos_par(2 * i + 10, 0 if o.skew else None)
        if not (o.skew and i == 11):
            for G in sched.get(('a', i), []):
                if G < NEARLY: eg(G)
        if i <= 13:
            p(f"s_waitcnt vmcnt({min(need_in(VQ[q], ('P', 2 * i + 3)) for q in pars)})")
            bar('l')
            if o.skew and i <= 11: issue_pos_par(2 * i + 10, 1)
            if o.skew and i == 11:
                for G in sched.get(('a', i), []):
                    if G < NEARLY: eg(G)
            for G in sched.get(('b', i), []):
                if G < NEARLY: eg(G)
    p(f"""
    s_mov_b32 s{rO}, s{sWs}
    s_mov_b32 s{rO+1}, s{sWs+1}
    s_mov_b32 s{rO+2}, {WS_SIZE}
    s_mov_b32 s{rO+3}, 0x20000
    """)
    bar('l')
    p(f"""
    s_cmp_eq_u32 s{sWave}, 7
    s_cbranch_scc0 K1_NON2
    s_waitcnt vmcnt(0)
    s_mov_b32 s{sT2}, 0
    """)
    p.label("K1_NONP")
    p(f"""
    v_readfirstlane_b32 s{sT0}, v{vNon}
    s_add_u32 s{sT2}, s{sT2}, 1
    s_cmp_lg_u32 s{sT0}, 0
    s_cbranch_scc1 K1_NONOK
    s_cmp_lt_u32 s{sT2}, {SPIN}
    s_cbranch_scc0 K1_NONOK
    v_mov_b32 v8, 0
    global_load_dwordx2 v[{vNon}:{vNon+1}], v8, s[{sDbg}:{sDbg+1}] sc1
    s_waitcnt vmcnt(0)
    s_branch K1_NONP
    """)
    p.label("K1_NONOK")
    p(f"""
    v_mov_b32 v6, {NONL}
    ds_write_b64 v6, v[{vNon}:{vNon+1}]
    s_and_b32 s{sT0}, s{sWg}, 0xfc
    s_lshl_b32 s{sT0}, s{sT0}, 7
    s_add_u32 s{sT0}, s{sT0}, {WS_FLAG}
    v_and_b32 v12, 3, v{vL}
    v_lshlrev_b32 v13, 7, v12
    buffer_load_dword v11, v13, s[{rO}:{rO+3}], s{sT0} offen sc1
    s_waitcnt lgkmcnt(0)
    """)
    p.label("K1_NON2")
    bar('l')
    p(f"""
    v_mov_b32 v6, {NONL}
    ds_read_b64 v[8:9], v6
    s_cmp_eq_u32 s{sWave}, 7
    s_cbranch_scc0 K1_RDY
    s_waitcnt vmcnt(0)
    v_cmp_eq_u32 vcc, v11, v{vNon}
    v_cmp_eq_u32 s[58:59], s{sJj}, v12
    s_or_b64 vcc, vcc, s[58:59]
    s_cmp_eq_u64 vcc, -1
    s_cselect_b32 s{sT0}, {1 if o.fast else 0}, 0
    v_mov_b32 v12, s{sT0}
    v_mov_b32 v6, {NONL+8}
    ds_write_b32 v6, v12
    """)
    p.label("K1_RDY")
    p("s_branch K1_TAIL")

    p.label("K1_COMPUTE")
    p(f"""
    s_and_b32 s{sQh}, s{sWave}, 1
    s_lshr_b32 s{sKh}, s{sWave}, 1
    s_mov_b32 s{sC}, 0x{f32bits(SCALE_LOG2E):08x}
    v_lshl_add_u32 v8, v6, 3, v4
    v_lshlrev_b32 v8, 8, v8
    v_lshrrev_b32 v9, 1, v5
    v_lshl_add_u32 v8, v9, 3, v8
    v_and_b32 v9, 1, v3
    v_lshlrev_b32 v9, 1, v9
    v_and_b32 v2, 1, v5
    v_add_u32 v9, v9, v2
    v_lshlrev_b32 v2, 2, v4
    s_lshl_b32 s{sT0}, s{sKh}, 3
    """)
    for a in range(2):
        p(f"""
        v_add_u32 v19, s{sT0}, v9
        v_xor_b32 v19, v19, v2
        v_lshl_add_u32 v{vLW+a}, v19, 4, v8
        s_add_u32 s{sT0}, s{sT0}, 4
        """)
    p(f"""
    s_lshl_b32 s{sT0}, s{sQh}, 5
    v_add_u32 v8, s{sT0}, v7
    v_lshrrev_b32 v9, 1, v8
    v_and_b32 v9, 7, v9
    v_xor_b32 v9, v9, v6
    v_lshlrev_b32 v9, 4, v9
    v_lshl_add_u32 v{vLX}, v8, 7, v9
    s_lshl_b32 s{sT0}, s{sKh}, 5
    v_add_u32 v8, s{sT0}, v7
    v_and_b32 v9, 15, v8
    v_xor_b32 v9, v9, v6
    v_lshlrev_b32 v9, 4, v9
    v_lshl_add_u32 v{vLK}, v8, 8, v9
    v_lshl_add_u32 v8, v6, 2, v4
    v_add_u32 v8, s{sT0}, v8
    v_lshlrev_b32 v8, 8, v8
    v_and_b32 v9, 1, v5
    v_lshl_add_u32 v8, v9, 3, v8
    v_and_b32 v9, 1, v3
    v_lshlrev_b32 v9, 1, v9
    v_lshrrev_b32 v2, 1, v5
    v_add_u32 v9, v9, v2
    v_lshlrev_b32 v2, 2, v4
    """)
    for a in range(4):
        p(f"""
        s_lshl_b32 s{sT1}, s{sKh}, 1
        s_add_u32 s{sT1}, s{sT1}, {a}
        s_and_b32 s{sT1}, s{sT1}, 3
        s_lshl_b32 s{sT1}, s{sT1}, 2
        v_add_u32 v19, s{sT1}, v9
        v_xor_b32 v19, v19, v2
        v_lshl_add_u32 v{vLV+a}, v19, 4, v8
        """)
    for i in range(32):
        p(f"v_mov_b32 v{vS[0]+i}, 0")
    p(f"""
    v_mov_b32 v{vM}, 0xf149f2ca
    v_mov_b32 v{vThr}, 0xf149f2ca
    v_mov_b32 v{vL0}, 0
    v_mov_b32 v{vL1}, 0
    """)
    def wo_voffs():
        p(f"""
        s_movk_i32 s{sT0}, 3641
        s_movk_i32 s{sT1}, 1152
        """)
        for i in range(9):
            p(f"""
            v_add_u32 v2, {64*i}, v{vL}
            v_mul_u32_u24 v3, s{sT0}, v2
            v_lshrrev_b32 v3, 16, v3
            v_mul_u32_u24 v4, 18, v3
            v_sub_u32 v4, v2, v4
            v_mul_u32_u24 v3, s{sT1}, v3
            v_lshl_add_u32 v3, v4, 4, v3
            v_subrev_u32 v{vOff+i}, {(i%4)*1024}, v3
            """)
    wo_voffs()
    p("s_waitcnt lgkmcnt(0)")
    stamp(p, o, 0)
    A0 = vKA
    def q_phase(c, reads):
        f = QB[(c - 1) % 2]
        rd = list(reads)
        for ks in range(4):
            for a in range(2):
                if c >= 1:
                    p(f"{MF} {rg(vS[a],16)}, {rg(f+12*ks+4*a,4)}, {rg(f+12*ks+8,4)}, {rg(vS[a],16)}")
                for _ in range(3 if a == 0 else 2):
                    if rd: p(rd.pop(0))
        for r_ in rd: p(r_)
    for c in range(9):
        qs = QS[c % 4]
        f = QB[c % 2]
        p(f"""
        v_add_u32 v{A0}, {qs}, v{vLW}
        v_add_u32 v{A0+1}, {qs}, v{vLW+1}
        v_add_u32 v{A0+2}, {qs+16384}, v{vLX}
        v_xor_b32 v{A0+3}, 32, v{A0+2}
        v_xor_b32 v{A0+4}, 64, v{A0+2}
        v_xor_b32 v{A0+5}, 96, v{A0+2}
        s_waitcnt lgkmcnt(0)
        """)
        bar('c')
        if c == 0: stamp(p, o, 1)
        reads = []
        for ks in range(4):
            for a in range(2):
                reads.append(f"ds_read_b64_tr_b16 {rg(f+12*ks+4*a,2)}, v{A0+a} offset:{ks*4096}")
                reads.append(f"ds_read_b64_tr_b16 {rg(f+12*ks+4*a+2,2)}, v{A0+a} offset:{ks*4096+1024}")
            reads.append(f"ds_read_b128 {rg(f+12*ks+8,4)}, v{A0+2+ks}")
        q_phase(c, reads)
    p("s_waitcnt lgkmcnt(0)")
    bar('c')
    q_phase(9, [])
    stamp(p, o, 2)
    p(f"""
    s_lshl_b32 s{sT0}, s{sQh}, 13
    s_add_u32 s{sT0}, s{sT0}, {QX}
    s_lshl_b32 s{sT1}, s{sKh}, 12
    s_add_u32 s{sT1}, s{sT1}, s{sT0}
    v_lshlrev_b32 v2, 4, v{vL}
    v_add_u32 v3, s{sT1}, v2
    v_add_u32 v2, s{sT0}, v2
    """)
    p(f"v_mov_b32 v{vKA}, v{vLK}")
    for s in range(1, 8):
        p(f"v_xor_b32 v{vKA+s}, {s<<5}, v{vLK}")
    for i in range(64):
        p(f"v_mov_b32 v{vO+i}, 0")
    for a in range(2):
        for j in range(8):
            p(f"v_cvt_pk_bf16_f32 v{vVf+8*a+j}, v{vS[a]+2*j}, v{vS[a]+2*j+1}")
    for k in range(4):
        p(f"ds_write_b128 v3, {rg(vVf+4*k,4)} offset:{k*1024}")
    p("s_waitcnt lgkmcnt(0)")
    bar('c')
    for s in range(8):
        p(f"ds_read_b128 {rg(vQ+4*s,4)}, v2 offset:{s*1024}")

    def k_addrs(sreg):
        p(f"v_add_u32 v{vKA}, s{sreg}, v{vLK}")
        for s in range(1, 8):
            p(f"v_xor_b32 v{vKA+s}, {s<<5}, v{vKA}")
    def v_addrs(sreg):
        for a in range(4):
            p(f"v_add_u32 v{vVA+a}, s{sreg}, v{vLV+a}")
    def adv2(s):
        p(f"""
        s_add_u32 s{s}, s{s}, {2*SLOT}
        s_cmp_ge_u32 s{s}, {NSLOT*SLOT}
        s_cselect_b32 s{sT0}, {NSLOT*SLOT}, 0
        s_sub_u32 s{s}, s{s}, s{sT0}
        """)
    def tmax(S):
        p(f"""
        v_max3_f32 v2, v{S}, v{S+1}, v{S+2}
        v_max3_f32 v3, v{S+3}, v{S+4}, v{S+5}
        v_max3_f32 v2, v2, v{S+6}, v{S+7}
        v_max3_f32 v3, v3, v{S+8}, v{S+9}
        v_max3_f32 v2, v2, v{S+10}, v{S+11}
        v_max3_f32 v3, v3, v{S+12}, v{S+13}
        v_max3_f32 v2, v2, v{S+14}, v{S+15}
        v_max_f32 v2, v2, v3
        v_mov_b32 v3, v2
        s_nop 1
        v_permlane32_swap_b32 v2, v3
        v_max_f32 v2, v2, v3
        v_mul_f32 v{vTn}, s{sC}, v2
        """)
    p("s_waitcnt lgkmcnt(0)")
    bar('c')
    stamp(p, o, 3)
    for s in range(8):
        p(f"ds_read_b128 {rg(vKf+4*s,4)}, v{vKA+s}")
    p(f"s_mov_b32 s{sRK}, {S_[1]}")
    k_addrs(sRK)
    p("s_waitcnt lgkmcnt(0)")
    bar('c')
    for s in range(8):
        c = '0' if s == 0 else rg(vS[0], 16)
        p(f"{MF} {rg(vS[0],16)}, {rg(vKf+4*s,4)}, {rg(vQ+4*s,4)}, {c}")
    for s in range(8):
        p(f"ds_read_b128 {rg(vKf+4*s,4)}, v{vKA+s}")
    p(f"""
    s_mov_b32 s{sRV}, {S_[2]}
    s_mov_b32 s{sRK}, {S_[3]}
    s_mov_b32 s{sCnt}, 0
    """)
    v_addrs(sRV)
    k_addrs(sRK)
    tmax(vS[0])

    def alpha(tag, cur, do_qk):
        S, Sn = vS[cur], vS[1 - cur]
        p("s_waitcnt lgkmcnt(0)")
        p("s_barrier")
        p(f"""
        v_cmp_gt_f32 vcc, v{vTn}, v{vThr}
        s_cbranch_vccnz K1_RS{tag}
        """)
        p.label(f"K1_BK{tag}")
        reads = [(a, ks, h) for a in range(4) for ks in range(2) for h in range(2)]
        for j in range(8):
            if do_qk:
                c = '0' if j == 0 else rg(Sn, 16)
                p(f"{MF} {rg(Sn,16)}, {rg(vKf+4*j,4)}, {rg(vQ+4*j,4)}, {c}")
            for (a, ks, h) in reads[2*j:2*j+2]:
                f = vVf + (a * 2 + ks) * 4 + 2 * h
                p(f"ds_read_b64_tr_b16 {rg(f,2)}, v{vVA+a} offset:{ks*4096+h*2048}")
            p(f"v_fma_f32 v{S+2*j}, v{S+2*j}, s{sC}, -v{vM}")
            p(f"v_fma_f32 v{S+2*j+1}, v{S+2*j+1}, s{sC}, -v{vM}")
            p(f"v_exp_f32 v{S+2*j}, v{S+2*j}")
            p(f"v_exp_f32 v{S+2*j+1}, v{S+2*j+1}")
            if j >= 1:
                k = j - 1
                p(f"v_cvt_pk_bf16_f32 v{vP+k}, v{S+2*k}, v{S+2*k+1}")
                p(f"v_add_f32 v{vL0}, v{vL0}, v{S+2*k}")
                p(f"v_add_f32 v{vL1}, v{vL1}, v{S+2*k+1}")
        p(f"v_cvt_pk_bf16_f32 v{vP+7}, v{S+14}, v{S+15}")
        p(f"v_add_f32 v{vL0}, v{vL0}, v{S+14}")
        p(f"v_add_f32 v{vL1}, v{vL1}, v{S+15}")

    def beta(tag, cur, read_k, do_tmax, barrier=True):
        Sn = vS[1 - cur]
        p("s_waitcnt lgkmcnt(0)")
        if barrier: p("s_barrier")
        n = 0
        for a in range(4):
            for ks in range(2):
                f = vVf + (a * 2 + ks) * 4
                p(f"{MF} {rg(vO+16*a,16)}, {rg(f,4)}, {rg(vP+4*ks,4)}, {rg(vO+16*a,16)}")
                if read_k:
                    p(f"ds_read_b128 {rg(vKf+4*n,4)}, v{vKA+n}")
                if n == 0:
                    adv2(sRV); adv2(sRK)
                if n == 1 and do_tmax:
                    tmax(Sn)
                if n == 3: v_addrs(sRV)
                n += 1
        k_addrs(sRK)

    def rescale(tag):
        p.label(f"K1_RS{tag}")
        p(f"""
        v_max_f32 v3, v{vTn}, v{vM}
        v_sub_f32 v4, v{vM}, v3
        v_exp_f32 v4, v4
        v_mov_b32 v{vM}, v3
        v_add_f32 v{vThr}, 0x41000000, v3
        """)
        p(f"v_mul_f32 v{vL0}, v{vL0}, v4")
        p(f"v_mul_f32 v{vL1}, v{vL1}, v4")
        for i in range(64):
            p(f"v_mul_f32 v{vO+i}, v{vO+i}, v4")
        p(f"s_branch K1_BK{tag}")

    p.label("K1_LOOP")
    alpha('L0', 0, True)
    beta('L0', 0, True, True)
    alpha('L1', 1, True)
    beta('L1', 1, True, True)
    p(f"""
    s_add_u32 s{sCnt}, s{sCnt}, 1
    s_cmp_lt_u32 s{sCnt}, 7
    s_cbranch_scc1 K1_LOOP
    """)
    nbar['c'] += 28
    stamp(p, o, 4)
    alpha('A', 0, True); nbar['c'] += 1
    beta('A', 0, False, True, barrier=False)
    alpha('B', 1, False); nbar['c'] += 1
    p("s_waitcnt lgkmcnt(0)")
    for a in (2, 3, 0, 1):
        for ks in range(2):
            f = vVf + (a * 2 + ks) * 4
            p(f"{MF} {rg(vO+16*a,16)}, {rg(f,4)}, {rg(vP+4*ks,4)}, {rg(vO+16*a,16)}")
    stamp(p, o, 5)
    vS0 = vS[0]
    p(f"""
    v_add_f32 v{vL0}, v{vL0}, v{vL1}
    v_mov_b32 v{vL1}, v{vL0}
    s_nop 1
    v_permlane32_swap_b32 v{vL0}, v{vL1}
    v_add_f32 v{vThr}, v{vL0}, v{vL1}
    v_and_b32 v7, 31, v{vL}
    v_lshlrev_b32 v7, 3, v7
    s_lshl_b32 s{sT0}, s{sWave}, 8
    s_add_u32 s{sT0}, s{sT0}, {STAT}
    s_xor_b32 s{sT1}, s{sWave}, 2
    s_lshl_b32 s{sT1}, s{sT1}, 8
    s_add_u32 s{sT1}, s{sT1}, {STAT}
    v_add_u32 v2, s{sT0}, v7
    v_add_u32 v7, s{sT1}, v7
    v_lshlrev_b32 v3, 4, v{vL}
    s_xor_b32 s{sT1}, s{sWave}, 2
    s_lshl_b32 s{sT1}, s{sT1}, 13
    s_add_u32 s{sT1}, s{sT1}, {EX}
    s_lshl_b32 s{sT0}, s{sWave}, 13
    s_add_u32 s{sT0}, s{sT0}, {EX}
    v_add_u32 v4, s{sT1}, v3
    v_add_u32 v5, s{sT0}, v3
    s_mov_b32 s{rO}, s{sWs}
    s_mov_b32 s{rO+1}, s{sWs+1}
    s_mov_b32 s{rO+2}, {WS_SIZE}
    s_mov_b32 s{rO+3}, 0x20000
    """)
    wo_srd()
    bar('c')
    stamp(p, o, 'e1')
    p(f"ds_write_b64 v2, v[{vM}:{vM+1}]")
    for a in (2, 3):
        for g in range(4):
            p(f"ds_write_b128 v4, {rg(vO+16*a+4*g,4)} offset:{(a-2)*4096+g*1024}")
    p("s_waitcnt lgkmcnt(0)")
    stamp(p, o, 'e2')
    bar('c')
    stamp(p, o, 'e3')
    p(f"ds_read_b64 v[{vS0}:{vS0+1}], v7")
    for a in range(2):
        for g in range(4):
            p(f"ds_read_b128 {rg(vO+32+16*a+4*g,4)}, v5 offset:{a*4096+g*1024}")
    p(f"""
    v_mov_b32 v6, {NONL}
    ds_read_b64 v[8:9], v6
    s_waitcnt lgkmcnt(9)
    v_max_f32 v2, v{vM}, v{vS0}
    v_sub_f32 v3, v{vM}, v2
    v_sub_f32 v4, v{vS0}, v2
    v_exp_f32 v3, v3
    v_exp_f32 v4, v4
    v_mul_f32 v5, v3, v{vThr}
    v_fmac_f32 v5, v4, v{vS0+1}
    v_rcp_f32 v6, v5
    v_mul_f32 v3, v3, v6
    v_mul_f32 v4, v4, v6
    """)
    for i in range(32):
        p(f"v_mul_f32 v{vO+i}, v{vO+i}, v3")
    for a in range(2):
        p(f"s_waitcnt lgkmcnt({5-4*a})")
        for i in range(16):
            p(f"v_fmac_f32 v{vO+16*a+i}, v{vO+32+16*a+i}, v4")
    order = [0, 2, 1, 3]
    for a in range(2):
        for idx, g in enumerate(order):
            p(f"v_cvt_pk_bf16_f32 v{vKf+8*a+2*idx}, v{vO+16*a+4*g}, v{vO+16*a+4*g+1}")
            p(f"v_cvt_pk_bf16_f32 v{vKf+8*a+2*idx+1}, v{vO+16*a+4*g+2}, v{vO+16*a+4*g+3}")
    stamp(p, o, 'e4')
    p(f"""
    v_and_b32 v2, 15, v{vL}
    v_lshrrev_b32 v3, 5, v{vL}
    v_lshl_add_u32 v2, v3, 4, v2
    v_lshlrev_b32 v2, 4, v2
    v_bfe_u32 v3, v{vL}, 4, 1
    v_lshl_add_u32 v2, v3, 12, v2
    s_lshl_b32 s{sT0}, s{sWg}, 14
    s_lshl_b32 s{sT1}, s{sQh}, 13
    s_add_u32 s{sT0}, s{sT0}, s{sT1}
    s_lshl_b32 s{sT1}, s{sKh}, 11
    s_add_u32 s{sT0}, s{sT0}, s{sT1}
    """)
    for a in range(2):
        p(f"buffer_store_dwordx4 {rg(vKf+8*a,4)}, v2, s[{rO}:{rO+3}], s{sT0} offen offset:{a*1024} sc1")
        p(f"buffer_store_dwordx4 {rg(vKf+8*a+4,4)}, v2, s[{rO}:{rO+3}], s{sT0} offen offset:{a*1024+512} sc1")
    assert nbar['c'] == nbar['l'], nbar
    print('barriers', nbar, file=sys.stderr)
    p.label("K1_TAIL")
    tail(p, o, locals())
    for tag in ('L0', 'L1', 'A', 'B'):
        rescale(tag)
    p.label("K1_END")
    p("s_endpgm")
    return p

def tail(p, o, L):
    g = lambda n: L[n]
    sWave, sB, sXc, sJj, sWg, sT0, sT1, sT2 = g('sWave'), g('sB'), g('sXc'), g('sJj'), g('sWg'), g('sT0'), g('sT1'), g('sT2')
    rO, rW, rX, sN, sTag, sOut, sWs = g('rO'), g('rW'), g('rX'), g('sN'), g('sTag'), g('sOut'), g('sWs')
    vL, vOff, wo_addr, NEARLY, NONL, wo_voffs = g('vL'), g('vOff'), g('wo_addr'), g('NEARLY'), g('NONL'), g('wo_voffs')
    sQt, sKh2 = 40, 41
    vAcc, vB, vF, vLA, vAd = 28, 64, 96, 19, 20
    sFast = 52
    p(f"""
    s_cmp_lt_u32 s{sWave}, 4
    s_cbranch_scc0 T_E4L
    s_waitcnt vmcnt(0) lgkmcnt(0)
    s_branch T_E4
    """)
    p.label("T_E4L")
    p("s_waitcnt lgkmcnt(0)")
    p.label("T_E4")
    p(f"""
    v_readfirstlane_b32 s{sN}, v8
    v_readfirstlane_b32 s{sN+1}, v9
    s_barrier
    """)
    if o.stamps: stamp(p, o, 6)
    def b_loads():
        p(f"""
        s_and_b32 s{sT0}, s{sWg}, 0xfc
        s_lshl_b32 s{sT1}, s{sKh2}, 1
        s_add_u32 s{sT0}, s{sT0}, s{sT1}
        s_lshl_b32 s{sT0}, s{sT0}, 14
        s_lshl_b32 s{sT1}, s{sQt}, 12
        s_add_u32 s{sT0}, s{sT0}, s{sT1}
        s_add_u32 s{sT1}, s{sT0}, 16384
        """)
        for kk in range(8):
            p(f"buffer_load_dwordx4 {rg(vB+4*kk,4)}, v5, s[{rO}:{rO+3}], s{sT0 if kk < 4 else sT1} offen offset:{(kk&3)*1024} sc1")
    p(f"""
    s_and_b32 s{sQt}, s{sWave}, 3
    s_lshr_b32 s{sKh2}, s{sWave}, 2
    v_lshlrev_b32 v5, 4, v{vL}
    v_mov_b32 v6, {NONL+8}
    ds_read_b32 v12, v6
    s_cmp_eq_u32 s{sWave}, 7
    s_cbranch_scc0 T_F0
    v_mov_b32 v9, s{sN}
    s_lshl_b32 s{sT0}, s{sWg}, 7
    s_add_u32 s{sT0}, s{sT0}, {WS_FLAG}
    v_mov_b32 v3, 0
    v_cmp_eq_u32 vcc, 0, v{vL}
    s_and_saveexec_b64 s[58:59], vcc
    buffer_store_dword v9, v3, s[{rO}:{rO+3}], s{sT0} offen sc1
    s_mov_b64 exec, s[58:59]
    """)
    p.label("T_F0")
    p(f"""
    s_waitcnt lgkmcnt(0)
    v_readfirstlane_b32 s{sFast}, v12
    s_cmp_eq_u32 s{sFast}, 0
    s_cbranch_scc1 T_SLOW
    """)
    b_loads()
    p.label("T_SLOW")
    p(f"""
    s_cmp_eq_u32 s{sWave}, 7
    s_cbranch_scc0 T_NOFLAG
    s_cmp_eq_u32 s{sFast}, 0
    s_cbranch_scc0 T_SETUP
    s_and_b32 s{sT0}, s{sWg}, 0xfc
    s_lshl_b32 s{sT0}, s{sT0}, 7
    s_add_u32 s{sT0}, s{sT0}, {WS_FLAG}
    v_and_b32 v8, 3, v{vL}
    v_lshlrev_b32 v8, 7, v8
    s_mov_b32 s{sT1}, 0
    buffer_load_dword v10, v8, s[{rO}:{rO+3}], s{sT0} offen sc1
    buffer_load_dword v11, v8, s[{rO}:{rO+3}], s{sT0} offen sc1
    """)
    p("s_branch T_SETUP")
    p.label("T_NOFLAG")
    p.label("T_SETUP")
    p("s_barrier")
    nlate = 16 - NEARLY
    p(f"""
    s_cmp_lt_u32 s{sWave}, {min(nlate, 4)}
    s_cbranch_scc0 T_NOLATE
    """)
    for rep in range((nlate + 3) // 4):
        if rep > 0:
            p(f"s_cmp_lt_u32 s{sWave}, {nlate - 4*rep}")
            p("s_cbranch_scc0 T_NOLATE")
        p(f"s_add_u32 s{sT2}, s{sWave}, {NEARLY + 4*rep}")
        p(f"""
        s_mul_i32 s{sT1}, s{sT2}, 9216
        s_add_u32 s{sT0}, s{sT1}, 49152
        s_sub_u32 s{sT1}, s{sT1}, {12*9216}
        s_cmp_lt_u32 s{sT2}, 12
        s_cselect_b32 s{sT1}, s{sT0}, s{sT1}
        s_mul_i32 s{sT0}, s{sT2}, 36864
        """)
        for i in range(9):
            if i % 4 == 0:
                p(f"s_add_u32 m0, s{sT1}, {(i//4)*4096}")
            p(f"buffer_load_dwordx4 v{vOff+i}, s[{rW}:{rW+3}], s{sT0} offen offset:{(i%4)*1024} lds")
    p.label("T_NOLATE")
    p(f"""
    v_lshrrev_b32 v2, 4, v{vL}
    v_and_b32 v3, 15, v{vL}
    v_lshrrev_b32 v4, 2, v3
    v_and_b32 v6, 3, v3
    v_lshl_add_u32 v2, v2, 2, v4
    v_mul_u32_u24 v2, 288, v2
    v_lshl_add_u32 v{vLA}, v6, 3, v2
    s_and_b32 s{sTag}, s{sN}, 0xfff
    s_lshr_b32 s{sTag+1}, s{sN}, 12
    s_and_b32 s{sTag+1}, s{sTag+1}, 0xfff
    s_lshr_b32 s{sTag+2}, s{sN}, 24
    s_lshl_b32 s{sT2}, s{sN+1}, 8
    s_or_b32 s{sTag+2}, s{sTag+2}, s{sT2}
    s_and_b32 s{sTag+2}, s{sTag+2}, 0xfff
    s_lshr_b32 s{sTag+3}, s{sN+1}, 4
    s_and_b32 s{sTag+3}, s{sTag+3}, 0xfff
    v_mov_b32 v7, 0xfffff000
    """)
    for i in range(36):
        p(f"v_mov_b32 v{vAcc+i}, 0")
    p(f"""
    s_cmp_eq_u32 s{sWave}, 7
    s_cbranch_scc0 T_NOPOLL
    s_cmp_eq_u32 s{sFast}, 0
    s_cbranch_scc0 T_NOPOLL
    s_and_b32 s{sT0}, s{sWg}, 0xfc
    s_lshl_b32 s{sT0}, s{sT0}, 7
    s_add_u32 s{sT0}, s{sT0}, {WS_FLAG}
    s_mov_b32 s{sT1}, 0
    """)
    p.label("T_POLL1")
    p(f"""
    s_waitcnt vmcnt(1)
    v_cmp_ne_u32 vcc, v10, v9
    s_cbranch_vccz T_NOPOLL
    buffer_load_dword v10, v8, s[{rO}:{rO+3}], s{sT0} offen sc1
    s_add_u32 s{sT1}, s{sT1}, 1
    s_waitcnt vmcnt(1)
    v_cmp_ne_u32 vcc, v11, v9
    s_cbranch_vccz T_NOPOLL
    buffer_load_dword v11, v8, s[{rO}:{rO+3}], s{sT0} offen sc1
    s_cmp_lt_u32 s{sT1}, {SPIN}
    s_cbranch_scc1 T_POLL1
    """)
    p.label("T_NOPOLL")
    p(f"""
    s_waitcnt vmcnt(0)
    s_barrier
    """)
    if o.stamps: stamp(p, o, 7)
    p(f"s_cmp_eq_u32 s{sFast}, 0")
    p("s_cbranch_scc0 T_BDONE")
    b_loads()
    p.label("T_BDONE")
    gen9.gemm_body(p, vAcc, vB, vF, vAd, vLA, sKh2, sT2, wo_addr, [0, 1, 2, 3, 4], [5, 6, 7, 8], True)
    if o.stamps: stamp(p, o, 8)
    p(f"""
    s_barrier
    s_mul_i32 s{sT0}, s{sQt}, 9216
    v_add_u32 v2, s{sT0}, v5
    s_cmp_eq_u32 s{sKh2}, 0
    s_cbranch_scc0 T_H1
    """)
    for nt in range(5, 9):
        p(f"ds_write_b128 v2, {rg(vAcc+4*nt,4)} offset:{nt*1024}")
    p("s_branch T_H2")
    p.label("T_H1")
    for nt in range(0, 5):
        p(f"ds_write_b128 v2, {rg(vAcc+4*nt,4)} offset:{nt*1024}")
    p.label("T_H2")
    p(f"""
    s_lshl_b32 s{sT0}, s{sXc}, 3
    s_add_u32 s{sT0}, s{sT0}, s{sB}
    s_lshl_b32 s{sT0}, s{sT0}, 2
    s_add_u32 s{sT0}, s{sT0}, s{sJj}
    s_lshl_b32 s{sT0}, s{sT0}, 2
    s_add_u32 s{sT0}, s{sT0}, s{sQt}
    s_mul_i32 s{sT0}, s{sT0}, 9216
    s_add_u32 s{sT0}, s{sT0}, {WS_PART}
    s_waitcnt lgkmcnt(0)
    s_barrier
    s_cmp_eq_u32 s{sKh2}, 0
    s_cbranch_scc0 T_H3
    """)
    def fin(nts):
        for nt in nts:
            p(f"ds_read_b128 {rg(vF+4*nt,4)}, v2 offset:{nt*1024}")
        for idx, nt in enumerate(nts):
            p(f"s_waitcnt lgkmcnt({len(nts)-1-idx})")
            for e in range(4):
                p(f"v_add_f32 v{vAcc+4*nt+e}, v{vAcc+4*nt+e}, v{vF+4*nt+e}")
            for e in range(4):
                p(f"v_and_b32 v{vAcc+4*nt+e}, v7, v{vAcc+4*nt+e}")
                p(f"v_or_b32 v{vAcc+4*nt+e}, s{sTag+e}, v{vAcc+4*nt+e}")
            p(f"s_add_u32 s{sT1}, s{sT0}, {(nt//4)*4096}")
            p(f"buffer_store_dwordx4 {rg(vAcc+4*nt,4)}, v5, s[{rO}:{rO+3}], s{sT1} offen offset:{(nt%4)*1024} sc1")
    fin(list(range(0, 5)))
    p("s_branch T_H4")
    p.label("T_H3")
    fin(list(range(5, 9)))
    p.label("T_H4")
    if o.stamps: stamp(p, o, 9)
    vX = 100
    p(f"""
    s_cmp_ge_u32 s{sWave}, 5
    s_cbranch_scc1 T_DONE
    v_cmp_gt_u32 vcc, 288, v0
    s_and_saveexec_b64 s[58:59], vcc
    s_mul_i32 s{sT0}, s{sXc}, 288
    v_add_u32 v2, s{sT0}, v0
    v_lshlrev_b32 v3, 4, v2
    s_lshl_b32 s{sT0}, s{sB}, 2
    s_add_u32 s{sT0}, s{sT0}, s{sJj}
    s_mul_i32 s{sT0}, s{sT0}, 36864
    s_add_u32 s{sT0}, s{sT0}, {WS_PART}
    s_mov_b32 s{rX}, s{sOut}
    s_mov_b32 s{rX+1}, s{sOut+1}
    s_mov_b32 s{rX+2}, {512*576*2}
    s_mov_b32 s{rX+3}, 0x20000
    v_lshrrev_b32 v4, 6, v2
    v_mul_u32_u24 v5, 57, v4
    v_lshrrev_b32 v5, 9, v5
    v_mul_u32_u24 v6, 9, v5
    v_sub_u32 v6, v4, v6
    v_and_b32 v4, 15, v2
    v_lshl_add_u32 v4, v5, 4, v4
    s_lshl_b32 s{sT1}, s{sB}, 6
    v_add_u32 v4, s{sT1}, v4
    s_movk_i32 s{sT1}, 1152
    v_mul_u32_u24 v4, s{sT1}, v4
    v_lshlrev_b32 v6, 5, v6
    v_add_u32 v4, v4, v6
    v_bfe_u32 v6, v2, 4, 2
    v_lshl_add_u32 v4, v6, 3, v4
    s_mul_i32 s{sT1}, s{sJj}, 288
    v_add_u32 v4, s{sT1}, v4
    s_mov_b32 s{sT2}, 0
    """)
    if o.prepoll:
        p(f"""
        s_mov_b64 s[56:57], exec
        v_readfirstlane_b32 s{sT1}, v3
        v_mul_u32_u24 v6, {32*36864 // 1024}, v{vL}
        v_lshlrev_b32 v6, 10, v6
        v_add_u32 v6, s{sT1}, v6
        v_mov_b32 v9, s{sTag}
        s_mov_b64 exec, 0xff
        buffer_load_dword v10, v6, s[{rO}:{rO+3}], s{sT0} offen sc1
        buffer_load_dword v11, v6, s[{rO}:{rO+3}], s{sT0} offen sc1
        """)
        p.label("T_PP")
        p(f"""
        s_waitcnt vmcnt(1)
        v_xor_b32 v8, v10, v9
        v_and_b32 v8, 0xfff, v8
        v_cmp_ne_u32 vcc, 0, v8
        s_cbranch_vccz T_PPD
        buffer_load_dword v10, v6, s[{rO}:{rO+3}], s{sT0} offen sc1
        s_add_u32 s{sT2}, s{sT2}, 1
        s_waitcnt vmcnt(1)
        v_xor_b32 v8, v11, v9
        v_and_b32 v8, 0xfff, v8
        v_cmp_ne_u32 vcc, 0, v8
        s_cbranch_vccz T_PPD
        buffer_load_dword v11, v6, s[{rO}:{rO+3}], s{sT0} offen sc1
        s_cmp_lt_u32 s{sT2}, {SPIN}
        s_cbranch_scc1 T_PP
        """)
        p.label("T_PPD")
        p(f"""
        s_mov_b64 exec, s[56:57]
        s_mov_b32 s{sT2}, 0
        """)
    p.label("T_POLL2")
    p(f"s_mov_b32 s{sT1}, s{sT0}")
    for s in range(8):
        p(f"buffer_load_dwordx4 {rg(vX+4*s,4)}, v3, s[{rO}:{rO+3}], s{sT1} offen sc1")
        if s < 7: p(f"s_add_u32 s{sT1}, s{sT1}, {32*36864}")
    p(f"""
    s_add_u32 s{sT2}, s{sT2}, 1
    v_mov_b32 v6, 0
    """)
    for s in range(8):
        p(f"s_waitcnt vmcnt({7-s})")
        for e in range(4):
            p(f"v_xor_b32 v8, s{sTag+e}, v{vX+4*s+e}")
            p(f"v_or_b32 v6, v6, v8")
    p(f"""
    v_and_b32 v6, 0xfff, v6
    v_cmp_ne_u32 vcc, 0, v6
    s_cmp_lt_u32 s{sT2}, {SPIN}
    s_cbranch_scc0 T_SUM
    s_cbranch_vccnz T_POLL2
    """)
    p.label("T_SUM")
    for s in range(8):
        for e in range(4):
            p(f"v_and_b32 v{vX+4*s+e}, v7, v{vX+4*s+e}")
    for s in range(1, 8):
        for e in range(4):
            p(f"v_add_f32 v{vX+e}, v{vX+e}, v{vX+4*s+e}")
    p(f"""
    v_cvt_pk_bf16_f32 v8, v{vX}, v{vX+1}
    v_cvt_pk_bf16_f32 v9, v{vX+2}, v{vX+3}
    buffer_store_dwordx2 v[8:9], v4, s[{rX}:{rX+3}], 0 offen{' sc1' if o.outsc else ''}
    s_mov_b64 exec, s[58:59]
    """)
    p.label("T_DONE")
    if o.stamps:
        p("s_waitcnt vmcnt(0)")
        p("s_memrealtime s[90:91]" if o.stamps != 2 else "s_memtime s[90:91]")
        p("s_waitcnt lgkmcnt(0)")
        gen_flush_final(p, o, sWs)
    p("s_branch K1_END")

def emit(o):
    name = 'standalone__gqa_block_cached__near_ridge_kernel'
    p = gen_main(o)
    out = [HEADER.rstrip(), "; @launch grid=(256,1,1) block=(512,1,1) lds=163840",
           '.amdgcn_target "amdgcn-amd-amdhsa--gfx950"', '.text']
    n = p.fix_hazards()
    errs = p.lint_waits()
    for e in errs[:20]:
        print(f"LINT: {e}", file=sys.stderr)
    nv, ns = p.max_regs()
    print(f"{name}: {len(p.ins)} instrs, vgpr {nv}, sgpr {ns}, nops inserted {n}", file=sys.stderr)
    out.append(f".globl {name}\n.p2align 8\n.type {name},@function\n{name}:")
    out.append(p.text())
    out.append(kd(name, max(nv, 8), max(ns, 16)))
    return '\n'.join(out) + '\n'

if __name__ == '__main__':
    ap = argparse.ArgumentParser()
    ap.add_argument('-o', default='standalone__gqa_block_cached__near_ridge.s')
    for k, d in OPTS.items():
        ap.add_argument('--' + k, type=int, default=d)
    a = ap.parse_args()
    o = Opt()
    for k in OPTS:
        setattr(o, k, getattr(a, k))
    open(a.o, 'w').write(emit(o))
```

```python
import sys, argparse
from asmlib import Prog
import gen
from gen import f32bits, SCALE_LOG2E, kd, HEADER
from gen import stamp as _stamp
import gen9
from gen9 import WS_O, WS_PART, WS_FLAG, WS_SIZE, MF, MF16, rg, SPIN, gen_flush_final

STSETS = {0: {0:0,1:1,2:2,3:3,4:4,5:5,6:6,7:7,8:8,9:9},
          1: {5:0, 'e1':1, 'e2':2, 'e3':3, 'e4':4, 6:5, 7:6, 'g0':7, 8:8, 9:9}}
def stamp(p, o, name):
    m = STSETS[getattr(o, 'stset', 0)]
    if name in m: _stamp(p, o, m[name])

class Opt(gen.Opt):
    pass
OPTS = dict(gopt=1, e3=1, prio=0, skew=0, icpf=4, outsc=1, prepoll=1, fast=1, stset=0, nt=1, dbg=0, stamps=0, stampwave=0, wt=1, kdel=5, wotat=7, lead=8, nearly=12)

SLOT = 16384
NSLOT = 10

def gen_main(o):
    p = Prog()
    NT = ' nt' if o.nt else ''
    sX, sK, sV, sWq, sWs, sWo = 4, 6, 8, 10, 12, 14
    rK, rV, rW, rX, rO = 16, 20, 24, 28, 32
    sWave, sB, sH, sXc, sQh, sKh = 36, 37, 38, 39, 40, 41
    sRK, sRV, sKoff, sVoff, sCnt, sJj = 42, 43, 44, 45, 46, 47
    sC, sT0, sT1, sT2 = 48, 49, 50, 51
    sLw, sWg, sIss, sL4096, sGof = 53, 54, 55, 56, 57
    sPar, sIssB = 98, 99
    vOa, vOb = 40, 44
    sOut, sDbg, sN, sTag = 80, 82, 84, 86
    vL = 1
    vLW = 10
    vLX = 12
    vLK = 13
    vVA = 14
    vTn = 18
    vNon = 20
    vLV = 24
    vKA = 28
    vM, vThr, vL0, vL1 = 36, 37, 38, 39
    vQ = 40
    vS = [72, 88]
    vP = 104
    vKf = 112
    vVf = 144
    vO = 176
    QB = [112, 176]
    vKo = 10; vVo = 14; vWo = 24; vXo = 28; vWoA, vWoB, vWoC = 30, 31, 32
    vDum = 249
    vOff = 240
    S_ = [i * SLOT for i in range(NSLOT)]
    QS = [139264, 65536, 90112, 114688]
    QX = S_[9]
    lab = [0]
    def nl(s):
        lab[0] += 1
        return f"K1_{s}{lab[0]}"
    nbar = {'c': 0, 'l': 0}
    def bar(who):
        nbar[who] += 1
        p("s_barrier")
    LEAD = o.lead
    assert LEAD in (4, 6, 8) and not (o.skew and LEAD != 8)
    HL = LEAD // 2
    NR = 14 - HL
    POS = []
    for n in range(33):
        if n == 0: POS.append((1, 0))
        elif n % 2 == 1: POS.append((1, (n + 1) // 2))
        else: POS.append((0, (n - 2) // 2))
    NEARLY = o.nearly
    def wo_addr(G): return (49152 + G * 9216) if G < 12 else (G - 12) * 9216
    EX, STAT, NONL = 0, 36864, 38912

    p(f"""
    s_cmp_ge_u32 s2, 256
    s_cbranch_scc1 K1_END
    s_load_dwordx4 s[4:7], s[0:1], 0
    s_load_dwordx4 s[8:11], s[0:1], 16
    s_load_dwordx2 s[12:13], s[0:1], 56
    s_load_dwordx2 s[14:15], s[0:1], 32
    s_load_dwordx4 s[80:83], s[0:1], 40
    """)
    if o.icpf:
        ICL = o.icpf
        p("s_getpc_b64 s[90:91]")
        p.label("K1_PCREF")
        p(f"""
        s_mov_b32 s93, K1_END-K1_PCREF
        v_cmp_gt_u32 vcc, {ICL}, v0
        s_and_saveexec_b64 s[58:59], vcc
        s_cbranch_execz K1_ICD
        s_lshr_b32 s92, s2, 3
        s_mul_i32 s92, s92, {ICL*128}
        v_lshlrev_b32 v2, 7, v0
        v_add_u32 v2, s92, v2
        v_min_u32 v2, s93, v2
        global_load_dword v{vDum}, v2, s[90:91]
        """)
        p.label("K1_ICD")
        p("s_mov_b64 exec, s[58:59]")
    p(f"""
    v_and_b32 v{vL}, 63, v0
    v_lshrrev_b32 v2, 6, v0
    s_and_b32 s{sXc}, s2, 7
    s_lshr_b32 s{sT1}, s2, 3
    v_readfirstlane_b32 s{sWave}, v2
    s_lshr_b32 s{sB}, s{sT1}, 2
    s_and_b32 s{sJj}, s{sT1}, 3
    s_lshl_b32 s{sH}, s{sXc}, 2
    s_add_u32 s{sH}, s{sH}, s{sJj}
    s_lshl_b32 s{sWg}, s{sB}, 5
    s_add_u32 s{sWg}, s{sWg}, s{sH}
    v_and_b32 v2, 15, v{vL}
    v_lshrrev_b32 v3, 4, v{vL}
    v_lshrrev_b32 v4, 2, v2
    v_and_b32 v5, 3, v2
    v_lshrrev_b32 v6, 5, v{vL}
    v_and_b32 v7, 31, v{vL}
    s_cmp_lt_u32 s{sWave}, 4
    s_cbranch_scc1 K1_COMPUTE
    """)

    vq = []
    def vissue(tag, n): vq.extend([tag] * n)
    def vneed(*tags):
        idx = [i for i, t in enumerate(vq) if t in tags]
        if not idx: return 63
        n = len(vq) - 1 - idx[-1]
        del vq[:idx[-1] + 1]
        return min(n, 63)
    if o.prio: p(f"s_setprio {o.prio}")
    p(f"""
    s_and_b32 s{sLw}, s{sWave}, 3
    s_lshl_b32 s{sL4096}, s{sLw}, 12
    v_lshlrev_b32 v8, 2, v3
    v_xor_b32 v8, v8, v2
    v_lshlrev_b32 v8, 4, v8
    v_lshl_add_u32 v{vVo}, v3, 8, v8
    v_lshl_add_u32 v{vWo}, v3, 13, v8
    """)
    for u in range(1, 4):
        p(f"v_add_u32 v{vWo+u}, {u*31744}, v{vWo}")
    p(f"""
    s_lshl_b32 s{sT0}, s{sLw}, 4
    s_movk_i32 s{sT1}, 1152
    """)
    for u in range(2):
        p(f"""
        v_lshrrev_b32 v8, 3, v{vL}
        v_add_u32 v8, s{sT0}, v8
        v_add_u32 v8, {8*u}, v8
        v_mul_lo_u32 v8, v8, s{sT1}
        v_add_u32 v9, {4*u}, v3
        v_and_b32 v9, 7, v9
        v_and_b32 v{vXo+u}, 7, v{vL}
        v_xor_b32 v9, v9, v{vXo+u}
        v_lshl_add_u32 v8, v9, 4, v8
        v_subrev_u32 v{vXo+u}, {u*1024}, v8
        """)
    p("s_waitcnt lgkmcnt(0)")
    stamp(p, o, 0)
    p(f"""
    s_lshl_b32 s{sT0}, s{sH}, 8
    s_add_u32 s{rW}, s{sWq}, s{sT0}
    s_addc_u32 s{rW+1}, s{sWq+1}, 0
    s_sub_u32 s{rW+2}, {576*8192}, s{sT0}
    s_mov_b32 s{rW+3}, 0x20000
    s_mul_i32 s{sT0}, s{sB}, {64*1152}
    s_add_u32 s{rX}, s{sX}, s{sT0}
    s_addc_u32 s{rX+1}, s{sX+1}, 0
    s_mov_b32 s{rX+2}, {64*1152}
    s_mov_b32 s{rX+3}, 0x20000
    """)
    def issue_chunk(c):
        qs = QS[c % 4]
        p(f"""
        s_lshl_b32 s{sT0}, s{sLw}, 17
        s_add_u32 s{sT0}, s{sT0}, {c*524288}
        s_add_u32 m0, s{sL4096}, {qs}
        """)
        for u in range(4):
            p(f"buffer_load_dwordx4 v{vWo+u}, s[{rW}:{rW+3}], s{sT0} offen offset:{u*1024} lds")
        p(f"""
        s_lshr_b32 s{sT1}, s{sL4096}, 1
        s_add_u32 m0, s{sT1}, {qs+16384}
        s_movk_i32 s{sT0}, {c*128}
        """)
        for u in range(2):
            p(f"buffer_load_dwordx4 v{vXo+u}, s[{rX}:{rX+3}], s{sT0} offen offset:{u*1024} lds")
        vissue(('C', c), 6)
    if o.wt:
        p(f"""
        s_cmp_eq_u32 s{sWave}, 4
        s_cbranch_scc0 K1_WT1
        v_lshrrev_b32 v8, 1, v{vL}
        v_and_b32 v9, 1, v{vL}
        v_lshlrev_b32 v8, 13, v8
        v_lshl_add_u32 v8, v9, 7, v8
        s_mul_i32 s{sT0}, s{sB}, {72*8192}
        buffer_load_dword v{vDum}, v8, s[{rW}:{rW+3}], s{sT0} offen
        s_add_u32 s{sT0}, s{sT0}, {32*8192}
        buffer_load_dword v{vDum}, v8, s[{rW}:{rW+3}], s{sT0} offen
        s_add_u32 s{sT0}, s{sT0}, {32*8192}
        v_cmp_gt_u32 vcc, 16, v{vL}
        s_and_saveexec_b64 s[58:59], vcc
        buffer_load_dword v{vDum}, v8, s[{rW}:{rW+3}], s{sT0} offen
        s_mov_b64 exec, s[58:59]
        """)
        p.label("K1_WT1")
        p(f"""
        s_cmp_eq_u32 s{sWave}, 5
        s_cbranch_scc0 K1_WT2
        v_lshlrev_b32 v9, 7, v{vL}
        s_mul_i32 s{sT0}, s{sJj}, 18432
        buffer_load_dword v{vDum}, v9, s[{rX}:{rX+3}], s{sT0} offen
        s_add_u32 s{sT0}, s{sT0}, 8192
        buffer_load_dword v{vDum}, v9, s[{rX}:{rX+3}], s{sT0} offen
        s_add_u32 s{sT0}, s{sT0}, 8192
        v_cmp_gt_u32 vcc, 16, v{vL}
        s_and_saveexec_b64 s[58:59], vcc
        buffer_load_dword v{vDum}, v9, s[{rX}:{rX+3}], s{sT0} offen
        s_mov_b64 exec, s[58:59]
        """)
        p.label("K1_WT2")
    for c in range(4):
        issue_chunk(c)
    p(f"""
    s_cmp_eq_u32 s2, 0
    s_cbranch_scc0 K1_NON
    s_cmp_eq_u32 s{sWave}, 7
    s_cbranch_scc0 K1_NON
    s_memrealtime s[{sN}:{sN+1}]
    s_waitcnt lgkmcnt(0)
    s_or_b32 s{sN}, s{sN}, 1
    v_mov_b32 v8, s{sN}
    v_mov_b32 v9, s{sN+1}
    v_mov_b32 v{vNon}, 0
    v_cmp_eq_u32 vcc, 0, v{vL}
    s_and_saveexec_b64 s[58:59], vcc
    global_store_dwordx2 v{vNon}, v[8:9], s[{sDbg}:{sDbg+1}] sc1
    s_mov_b64 exec, s[58:59]
    """)
    p.label("K1_NON")
    p(f"""
    s_lshl_b32 s{sT0}, s{sB}, 4
    s_lshr_b32 s{sT1}, s{sH}, 1
    s_add_u32 s{sT0}, s{sT0}, s{sT1}
    s_lshl_b32 s{sT0}, s{sT0}, 18
    s_add_u32 s{rK}, s{sK}, s{sT0}
    s_addc_u32 s{rK+1}, s{sK+1}, 0
    s_mov_b32 s{rK+2}, 0x40000
    s_mov_b32 s{rK+3}, 0x20000
    s_add_u32 s{rV}, s{sV}, s{sT0}
    s_addc_u32 s{rV+1}, s{sV+1}, 0
    s_mov_b32 s{rV+2}, 0x40000
    s_mov_b32 s{rV+3}, 0x20000
    s_lshr_b32 s{sT0}, s{sLw}, 1
    s_lshl_b32 s{sT0}, s{sT0}, 17
    s_and_b32 s{sT1}, s{sLw}, 1
    s_lshl_b32 s{sT1}, s{sT1}, 12
    s_add_u32 s{sGof}, s{sT0}, s{sT1}
    """)
    for u in range(4):
        p(f"""
        v_add_u32 v8, {4*u}, v3
        v_xor_b32 v8, v8, v2
        v_lshlrev_b32 v8, 4, v8
        v_lshl_add_u32 v{vKo+u}, v3, 8, v8
        """)
    p(f"""
    s_movk_i32 s{sT0}, 3641
    s_movk_i32 s{sT1}, 1152
    """)
    for k, (reg, addi) in enumerate(((vWoA, 0), (vWoB, 4), (vWoC, None))):
        if addi is None:
            p(f"v_add_u32 v8, {64*8}, v{vL}")
        else:
            p(f"""
            s_add_u32 s{sT2}, s{sLw}, {addi}
            s_lshl_b32 s{sT2}, s{sT2}, 6
            v_add_u32 v8, s{sT2}, v{vL}
            """)
        p(f"""
        v_mul_u32_u24 v9, s{sT0}, v8
        v_lshrrev_b32 v9, 16, v9
        v_mul_u32_u24 v{reg}, 18, v9
        v_sub_u32 v{reg}, v8, v{reg}
        v_mul_u32_u24 v9, s{sT1}, v9
        v_lshl_add_u32 v{reg}, v{reg}, 4, v9
        """)

    for i in range(9): p(f"v_mov_b32 v{vOff+i}, 0")
    def issue_pos(n):
        isK, t = POS[n]
        p(f"""
        s_add_u32 s{sT0}, s{sGof}, {t*8192}
        s_add_u32 m0, s{sL4096}, {S_[n % NSLOT]}
        """)
        for u in range(4):
            if isK: p(f"buffer_load_dwordx4 v{vKo+u}, s[{rK}:{rK+3}], s{sT0} offen offset:{u*1024}{NT} lds")
            else:   p(f"buffer_load_dwordx4 v{vVo}, s[{rV}:{rV+3}], s{sT0} offen offset:{u*1024}{NT} lds")
        vissue(('P', n), 4)
    def wo_srd():
        p(f"""
        s_mul_i32 s{sT0}, s{sXc}, {512*1152}
        s_mul_i32 s{sT1}, s{sJj}, 288
        s_add_u32 s{sT0}, s{sT0}, s{sT1}
        s_add_u32 s{rW}, s{sWo}, s{sT0}
        s_addc_u32 s{rW+1}, s{sWo+1}, 0
        s_sub_u32 s{rW+2}, {4096*1152}, s{sT0}
        s_mov_b32 s{rW+3}, 0x20000
        """)
    def early_group(G):
        base = wo_addr(G)
        p(f"""
        s_lshl_b32 s{sT1}, s{sLw}, 10
        s_add_u32 m0, s{sT1}, {base}
        s_mov_b32 s{sT0}, {G*36864}
        buffer_load_dwordx4 v{vWoA}, s[{rW}:{rW+3}], s{sT0} offen lds
        s_add_u32 m0, s{sT1}, {base+4096}
        s_cmp_eq_u32 s{sLw}, 0
        buffer_load_dwordx4 v{vWoB}, s[{rW}:{rW+3}], s{sT0} offen lds
        """)
        l = nl('EG')
        p(f"s_cbranch_scc0 {l}")
        p(f"s_mov_b32 m0, {base+8192}")
        p(f"buffer_load_dwordx4 v{vWoC}, s[{rW}:{rW+3}], s{sT0} offen lds")
        p.label(l)
        vissue(('G', G), 2)
    def wo_touch():
        l = nl('WOT')
        p(f"""
        s_cmp_eq_u32 s{sWave}, 6
        s_cbranch_scc0 {l}
        s_mul_i32 s{sT0}, s{sXc}, {512*1152}
        s_add_u32 s{rX}, s{sWo}, s{sT0}
        s_addc_u32 s{rX+1}, s{sWo+1}, 0
        s_mov_b32 s{rX+2}, {512*1152}
        s_mov_b32 s{rX+3}, 0x20000
        s_lshr_b32 s{sT0}, s2, 3
        s_mul_i32 s{sT0}, s{sT0}, 18432
        v_lshlrev_b32 v2, 7, v{vL}
        buffer_load_dword v{vDum}, v2, s[{rX}:{rX+3}], s{sT0} offen
        s_add_u32 s{sT0}, s{sT0}, 8192
        buffer_load_dword v{vDum}, v2, s[{rX}:{rX+3}], s{sT0} offen
        s_add_u32 s{sT0}, s{sT0}, 8192
        v_cmp_gt_u32 vcc, 16, v{vL}
        s_and_saveexec_b64 s[58:59], vcc
        buffer_load_dword v{vDum}, v2, s[{rX}:{rX+3}], s{sT0} offen
        s_mov_b64 exec, s[58:59]
        """)
        p.label(l)

    for c in range(9):
        p(f"s_waitcnt vmcnt({vneed(('C', c))})")
        bar('l')
        if c == 0: stamp(p, o, 1)
        if 1 <= c <= 5: issue_chunk(c + 3)
        if c == o.kdel: issue_pos(0); issue_pos(1)
        if c == o.kdel + 1: issue_pos(2); issue_pos(3)
    bar('l')
    for n in range(4, LEAD): issue_pos(n)
    bar('l')
    p(f"s_waitcnt vmcnt({vneed(('P', 0))})")
    bar('l')
    issue_pos(LEAD)
    p(f"s_waitcnt vmcnt({vneed(('P', 1))})")
    bar('l')
    issue_pos(LEAD + 1)
    VQ = {0: list(vq), 1: list(vq)}
    def need_in(q, tag):
        idx = [i for i, t in enumerate(q) if t == tag]
        if not idx: return 63
        n = len(q) - 1 - idx[-1]
        del q[:idx[-1] + 1]
        return min(n, 63)
    Wa, Wb = [], []
    pars = (0, 1) if o.skew else (0,)
    for i in range(NR):
        Wa.append(min(need_in(VQ[q], ('P', 2 * i + 2)) for q in pars))
        for q in pars: VQ[q].extend([('P', 2 * i + 2 + LEAD + q)] * 4)
        Wb.append(min(need_in(VQ[q], ('P', 2 * i + 3)) for q in pars))
        for q in pars: VQ[q].extend([('P', 2 * i + 3 + LEAD - q)] * 4)
    wa, wb = min(Wa), min(Wb)
    print('loader loop waits', Wa, Wb, file=sys.stderr)
    p(f"""
    s_and_b32 s{sPar}, s{sH}, {1 if o.skew else 0}
    s_mov_b32 s{sIss}, {S_[(2+LEAD) % NSLOT]}
    s_mov_b32 s{sIssB}, {S_[(3+LEAD) % NSLOT]}
    s_add_u32 s{sVoff}, s{sGof}, {HL*8192}
    s_add_u32 s{sKoff}, s{sGof}, {(2+HL)*8192}
    s_mov_b32 s{sCnt}, 0
    """)
    for u in range(4):
        p(f"v_mov_b32 v{vOa+u}, v{vVo}")
        p(f"v_mov_b32 v{vOb+u}, v{vKo+u}")
    if o.skew:
        p(f"""
        s_cmp_eq_u32 s{sPar}, 0
        s_cbranch_scc1 K1_PAR0
        s_mov_b32 s{sIss}, {S_[1]}
        s_mov_b32 s{sIssB}, {S_[0]}
        s_add_u32 s{sVoff}, s{sGof}, {6*8192}
        s_add_u32 s{sKoff}, s{sGof}, {4*8192}
        s_mov_b32 s{sT0}, s{rK}
        s_mov_b32 s{sT1}, s{rK+1}
        s_mov_b32 s{rK}, s{rV}
        s_mov_b32 s{rK+1}, s{rV+1}
        s_mov_b32 s{rV}, s{sT0}
        s_mov_b32 s{rV+1}, s{sT1}
        """)
        for u in range(4):
            p(f"v_mov_b32 v{vOa+u}, v{vKo+u}")
            p(f"v_mov_b32 v{vOb+u}, v{vVo}")
        p.label("K1_PAR0")
    def adv_iss(sreg):
        p(f"""
        s_add_u32 s{sreg}, s{sreg}, {2*SLOT}
        s_cmp_ge_u32 s{sreg}, {NSLOT*SLOT}
        s_cselect_b32 s{sT0}, {NSLOT*SLOT}, 0
        s_sub_u32 s{sreg}, s{sreg}, s{sT0}
        """)
    p.label("K1_LLOOP")
    p(f"s_waitcnt vmcnt({wa})")
    p("s_barrier")
    p(f"s_add_u32 m0, s{sIss}, s{sL4096}")
    for u in range(4):
        p(f"buffer_load_dwordx4 v{vOa+u}, s[{rV}:{rV+3}], s{sVoff} offen offset:{u*1024}{NT} lds")
    adv_iss(sIss)
    p(f"s_add_u32 s{sVoff}, s{sVoff}, 8192")
    p(f"s_waitcnt vmcnt({wb})")
    p("s_barrier")
    p(f"s_add_u32 m0, s{sIssB}, s{sL4096}")
    for u in range(4):
        p(f"buffer_load_dwordx4 v{vOb+u}, s[{rK}:{rK+3}], s{sKoff} offen offset:{u*1024}{NT} lds")
    adv_iss(sIssB)
    p(f"s_add_u32 s{sKoff}, s{sKoff}, 8192")
    l = nl('WTT')
    p(f"s_cmp_eq_u32 s{sCnt}, {o.wotat}")
    p(f"s_cbranch_scc0 {l}")
    wo_touch()
    p.label(l)
    p(f"""
    s_add_u32 s{sCnt}, s{sCnt}, 1
    s_cmp_lt_u32 s{sCnt}, {NR}
    s_cbranch_scc1 K1_LLOOP
    """)
    nbar['l'] += 2 * NR
    if o.skew:
        p(f"""
        s_cmp_eq_u32 s{sPar}, 0
        s_cbranch_scc1 K1_PAR2
        s_mov_b32 s{sT0}, s{rK}
        s_mov_b32 s{sT1}, s{rK+1}
        s_mov_b32 s{rK}, s{rV}
        s_mov_b32 s{rK+1}, s{rV+1}
        s_mov_b32 s{rV}, s{sT0}
        s_mov_b32 s{rV+1}, s{sT1}
        """)
        p.label("K1_PAR2")
    wo_srd()
    p(f"""
    s_cmp_eq_u32 s{sWave}, 7
    s_cbranch_scc0 K1_NL
    v_mov_b32 v8, 0
    global_load_dwordx2 v[{vNon}:{vNon+1}], v8, s[{sDbg}:{sDbg+1}] sc1
    """)
    p.label("K1_NL")
    sched0 = {('a', 11): [0], ('b', 11): [1, 2], ('a', 12): [3, 4], ('b', 12): [5, 6], ('a', 13): [7], ('b', 13): [8, 9], ('a', 14): [10, 11]}
    lastv = 15 - HL
    order = [(t, i) for i in range(10, 15) for t in ('a', 'b')]
    sched = {}
    for key in order:
        for G in sched0.get(key, []):
            k2 = key
            if (key[1], key[0]) < (lastv, 'a'): k2 = ('a', lastv)
            sched.setdefault(k2, []).append(G)
    def issue_pos_par(n, par):
        if par is None or not o.skew:
            sv = list(vq); issue_pos(n); del vq[:]; vq.extend(sv)
            for q in pars: VQ[q].extend([('P', n)] * 4)
            return
        l = nl('IP')
        p(f"s_cmp_eq_u32 s{sPar}, {par}")
        p(f"s_cbranch_scc0 {l}")
        sv = list(vq); issue_pos(n); del vq[:]; vq.extend(sv)
        p.label(l)
        VQ[par].extend([('P', n)] * 4)
    def eg(G):
        sv = list(vq); early_group(G); del vq[:]; vq.extend(sv)
        for q in pars: VQ[q].extend([('G', G)] * 2)
    for i in range(NR, 16):
        p(f"s_waitcnt vmcnt({min(need_in(VQ[q], ('P', 2 * i + 2)) for q in pars)})")
        bar('l')
        if i + HL <= 15: issue_pos_par(2 * i + 2 + LEAD, 0 if o.skew else None)
        if not (o.skew and i == 11):
            for G in sched.get(('a', i), []):
                if G < NEARLY: eg(G)
        if i <= 13:
            p(f"s_waitcnt vmcnt({min(need_in(VQ[q], ('P', 2 * i + 3)) for q in pars)})")
            bar('l')
            if o.skew and i <= 11: issue_pos_par(2 * i + 10, 1)
            if o.skew and i == 11:
                for G in sched.get(('a', i), []):
                    if G < NEARLY: eg(G)
            for G in sched.get(('b', i), []):
                if G < NEARLY: eg(G)
    p(f"""
    s_mov_b32 s{rO}, s{sWs}
    s_mov_b32 s{rO+1}, s{sWs+1}
    s_mov_b32 s{rO+2}, {WS_SIZE}
    s_mov_b32 s{rO+3}, 0x20000
    """)
    bar('l')
    p(f"""
    s_cmp_eq_u32 s{sWave}, 7
    s_cbranch_scc0 K1_NON2
    s_waitcnt vmcnt(0)
    s_mov_b32 s{sT2}, 0
    """)
    p.label("K1_NONP")
    p(f"""
    v_readfirstlane_b32 s{sT0}, v{vNon}
    s_add_u32 s{sT2}, s{sT2}, 1
    s_cmp_lg_u32 s{sT0}, 0
    s_cbranch_scc1 K1_NONOK
    s_cmp_lt_u32 s{sT2}, {SPIN}
    s_cbranch_scc0 K1_NONOK
    v_mov_b32 v8, 0
    global_load_dwordx2 v[{vNon}:{vNon+1}], v8, s[{sDbg}:{sDbg+1}] sc1
    s_waitcnt vmcnt(0)
    s_branch K1_NONP
    """)
    p.label("K1_NONOK")
    p(f"""
    v_mov_b32 v6, {NONL}
    ds_write_b64 v6, v[{vNon}:{vNon+1}]
    s_and_b32 s{sT0}, s{sWg}, 0xfc
    s_lshl_b32 s{sT0}, s{sT0}, 7
    s_add_u32 s{sT0}, s{sT0}, {WS_FLAG}
    v_and_b32 v12, 3, v{vL}
    v_lshlrev_b32 v13, 7, v12
    buffer_load_dword v11, v13, s[{rO}:{rO+3}], s{sT0} offen sc1
    s_waitcnt lgkmcnt(0)
    """)
    p.label("K1_NON2")
    bar('l')
    p(f"""
    v_mov_b32 v6, {NONL}
    ds_read_b64 v[8:9], v6
    s_cmp_eq_u32 s{sWave}, 7
    s_cbranch_scc0 K1_RDY
    s_waitcnt vmcnt(0)
    v_cmp_eq_u32 vcc, v11, v{vNon}
    v_cmp_eq_u32 s[58:59], s{sJj}, v12
    s_or_b64 vcc, vcc, s[58:59]
    s_cmp_eq_u64 vcc, -1
    s_cselect_b32 s{sT0}, {1 if o.fast else 0}, 0
    v_mov_b32 v12, s{sT0}
    v_mov_b32 v6, {NONL+8}
    ds_write_b32 v6, v12
    """)
    p.label("K1_RDY")
    if o.e3:
        bar('l')
        for G in range(NEARLY, 16): early_group(G)
    p("s_branch K1_TAIL")

    p.label("K1_COMPUTE")
    p(f"""
    s_and_b32 s{sQh}, s{sWave}, 1
    s_lshr_b32 s{sKh}, s{sWave}, 1
    s_mov_b32 s{sC}, 0x{f32bits(SCALE_LOG2E):08x}
    v_lshl_add_u32 v8, v6, 3, v4
    v_lshlrev_b32 v8, 8, v8
    v_lshrrev_b32 v9, 1, v5
    v_lshl_add_u32 v8, v9, 3, v8
    v_and_b32 v9, 1, v3
    v_lshlrev_b32 v9, 1, v9
    v_and_b32 v2, 1, v5
    v_add_u32 v9, v9, v2
    v_lshlrev_b32 v2, 2, v4
    s_lshl_b32 s{sT0}, s{sKh}, 3
    """)
    for a in range(2):
        p(f"""
        v_add_u32 v19, s{sT0}, v9
        v_xor_b32 v19, v19, v2
        v_lshl_add_u32 v{vLW+a}, v19, 4, v8
        s_add_u32 s{sT0}, s{sT0}, 4
        """)
    p(f"""
    s_lshl_b32 s{sT0}, s{sQh}, 5
    v_add_u32 v8, s{sT0}, v7
    v_lshrrev_b32 v9, 1, v8
    v_and_b32 v9, 7, v9
    v_xor_b32 v9, v9, v6
    v_lshlrev_b32 v9, 4, v9
    v_lshl_add_u32 v{vLX}, v8, 7, v9
    s_lshl_b32 s{sT0}, s{sKh}, 5
    v_add_u32 v8, s{sT0}, v7
    v_and_b32 v9, 15, v8
    v_xor_b32 v9, v9, v6
    v_lshlrev_b32 v9, 4, v9
    v_lshl_add_u32 v{vLK}, v8, 8, v9
    v_lshl_add_u32 v8, v6, 2, v4
    v_add_u32 v8, s{sT0}, v8
    v_lshlrev_b32 v8, 8, v8
    v_and_b32 v9, 1, v5
    v_lshl_add_u32 v8, v9, 3, v8
    v_and_b32 v9, 1, v3
    v_lshlrev_b32 v9, 1, v9
    v_lshrrev_b32 v2, 1, v5
    v_add_u32 v9, v9, v2
    v_lshlrev_b32 v2, 2, v4
    """)
    for a in range(4):
        p(f"""
        s_lshl_b32 s{sT1}, s{sKh}, 1
        s_add_u32 s{sT1}, s{sT1}, {a}
        s_and_b32 s{sT1}, s{sT1}, 3
        s_lshl_b32 s{sT1}, s{sT1}, 2
        v_add_u32 v19, s{sT1}, v9
        v_xor_b32 v19, v19, v2
        v_lshl_add_u32 v{vLV+a}, v19, 4, v8
        """)
    for i in range(32):
        p(f"v_mov_b32 v{vS[0]+i}, 0")
    p(f"""
    v_mov_b32 v{vM}, 0xf149f2ca
    v_mov_b32 v{vThr}, 0xf149f2ca
    v_mov_b32 v{vL0}, 0
    v_mov_b32 v{vL1}, 0
    """)
    def wo_voffs():
        p(f"""
        s_movk_i32 s{sT0}, 3641
        s_movk_i32 s{sT1}, 1152
        """)
        for i in range(9):
            p(f"""
            v_add_u32 v2, {64*i}, v{vL}
            v_mul_u32_u24 v3, s{sT0}, v2
            v_lshrrev_b32 v3, 16, v3
            v_mul_u32_u24 v4, 18, v3
            v_sub_u32 v4, v2, v4
            v_mul_u32_u24 v3, s{sT1}, v3
            v_lshl_add_u32 v3, v4, 4, v3
            v_subrev_u32 v{vOff+i}, {(i%4)*1024}, v3
            """)
    wo_voffs()
    p("s_waitcnt lgkmcnt(0)")
    stamp(p, o, 0)
    A0 = vKA
    def q_phase(c, reads):
        f = QB[(c - 1) % 2]
        rd = list(reads)
        for ks in range(4):
            for a in range(2):
                if c >= 1:
                    p(f"{MF} {rg(vS[a],16)}, {rg(f+12*ks+4*a,4)}, {rg(f+12*ks+8,4)}, {rg(vS[a],16)}")
                for _ in range(3 if a == 0 else 2):
                    if rd: p(rd.pop(0))
        for r_ in rd: p(r_)
    for c in range(9):
        qs = QS[c % 4]
        f = QB[c % 2]
        p(f"""
        v_add_u32 v{A0}, {qs}, v{vLW}
        v_add_u32 v{A0+1}, {qs}, v{vLW+1}
        v_add_u32 v{A0+2}, {qs+16384}, v{vLX}
        v_xor_b32 v{A0+3}, 32, v{A0+2}
        v_xor_b32 v{A0+4}, 64, v{A0+2}
        v_xor_b32 v{A0+5}, 96, v{A0+2}
        s_waitcnt lgkmcnt(0)
        """)
        bar('c')
        if c == 0: stamp(p, o, 1)
        reads = []
        for ks in range(4):
            for a in range(2):
                reads.append(f"ds_read_b64_tr_b16 {rg(f+12*ks+4*a,2)}, v{A0+a} offset:{ks*4096}")
                reads.append(f"ds_read_b64_tr_b16 {rg(f+12*ks+4*a+2,2)}, v{A0+a} offset:{ks*4096+1024}")
            reads.append(f"ds_read_b128 {rg(f+12*ks+8,4)}, v{A0+2+ks}")
        q_phase(c, reads)
    p("s_waitcnt lgkmcnt(0)")
    bar('c')
    q_phase(9, [])
    stamp(p, o, 2)
    p(f"""
    s_lshl_b32 s{sT0}, s{sQh}, 13
    s_add_u32 s{sT0}, s{sT0}, {QX}
    s_lshl_b32 s{sT1}, s{sKh}, 12
    s_add_u32 s{sT1}, s{sT1}, s{sT0}
    v_lshlrev_b32 v2, 4, v{vL}
    v_add_u32 v3, s{sT1}, v2
    v_add_u32 v2, s{sT0}, v2
    """)
    p(f"v_mov_b32 v{vKA}, v{vLK}")
    for s in range(1, 8):
        p(f"v_xor_b32 v{vKA+s}, {s<<5}, v{vLK}")
    for i in range(64):
        p(f"v_mov_b32 v{vO+i}, 0")
    for a in range(2):
        for j in range(8):
            p(f"v_cvt_pk_bf16_f32 v{vVf+8*a+j}, v{vS[a]+2*j}, v{vS[a]+2*j+1}")
    for k in range(4):
        p(f"ds_write_b128 v3, {rg(vVf+4*k,4)} offset:{k*1024}")
    p("s_waitcnt lgkmcnt(0)")
    bar('c')
    for s in range(8):
        p(f"ds_read_b128 {rg(vQ+4*s,4)}, v2 offset:{s*1024}")

    def k_addrs(sreg):
        p(f"v_add_u32 v{vKA}, s{sreg}, v{vLK}")
        for s in range(1, 8):
            p(f"v_xor_b32 v{vKA+s}, {s<<5}, v{vKA}")
    def v_addrs(sreg):
        for a in range(4):
            p(f"v_add_u32 v{vVA+a}, s{sreg}, v{vLV+a}")
    def adv2(s):
        p(f"""
        s_add_u32 s{s}, s{s}, {2*SLOT}
        s_cmp_ge_u32 s{s}, {NSLOT*SLOT}
        s_cselect_b32 s{sT0}, {NSLOT*SLOT}, 0
        s_sub_u32 s{s}, s{s}, s{sT0}
        """)
    def tmax(S):
        p(f"""
        v_max3_f32 v2, v{S}, v{S+1}, v{S+2}
        v_max3_f32 v3, v{S+3}, v{S+4}, v{S+5}
        v_max3_f32 v2, v2, v{S+6}, v{S+7}
        v_max3_f32 v3, v3, v{S+8}, v{S+9}
        v_max3_f32 v2, v2, v{S+10}, v{S+11}
        v_max3_f32 v3, v3, v{S+12}, v{S+13}
        v_max3_f32 v2, v2, v{S+14}, v{S+15}
        v_max_f32 v2, v2, v3
        v_mov_b32 v3, v2
        s_nop 1
        v_permlane32_swap_b32 v2, v3
        v_max_f32 v2, v2, v3
        v_mul_f32 v{vTn}, s{sC}, v2
        """)
    p("s_waitcnt lgkmcnt(0)")
    bar('c')
    stamp(p, o, 3)
    for s in range(8):
        p(f"ds_read_b128 {rg(vKf+4*s,4)}, v{vKA+s}")
    p(f"s_mov_b32 s{sRK}, {S_[1]}")
    k_addrs(sRK)
    p("s_waitcnt lgkmcnt(0)")
    bar('c')
    for s in range(8):
        c = '0' if s == 0 else rg(vS[0], 16)
        p(f"{MF} {rg(vS[0],16)}, {rg(vKf+4*s,4)}, {rg(vQ+4*s,4)}, {c}")
    for s in range(8):
        p(f"ds_read_b128 {rg(vKf+4*s,4)}, v{vKA+s}")
    p(f"""
    s_mov_b32 s{sRV}, {S_[2]}
    s_mov_b32 s{sRK}, {S_[3]}
    s_mov_b32 s{sCnt}, 0
    """)
    v_addrs(sRV)
    k_addrs(sRK)
    tmax(vS[0])

    def alpha(tag, cur, do_qk):
        S, Sn = vS[cur], vS[1 - cur]
        p("s_waitcnt lgkmcnt(0)")
        p("s_barrier")
        p(f"""
        v_cmp_gt_f32 vcc, v{vTn}, v{vThr}
        s_cbranch_vccnz K1_RS{tag}
        """)
        p.label(f"K1_BK{tag}")
        reads = [(a, ks, h) for a in range(4) for ks in range(2) for h in range(2)]
        for j in range(8):
            if do_qk:
                c = '0' if j == 0 else rg(Sn, 16)
                p(f"{MF} {rg(Sn,16)}, {rg(vKf+4*j,4)}, {rg(vQ+4*j,4)}, {c}")
            for (a, ks, h) in reads[2*j:2*j+2]:
                f = vVf + (a * 2 + ks) * 4 + 2 * h
                p(f"ds_read_b64_tr_b16 {rg(f,2)}, v{vVA+a} offset:{ks*4096+h*2048}")
            p(f"v_fma_f32 v{S+2*j}, v{S+2*j}, s{sC}, -v{vM}")
            p(f"v_fma_f32 v{S+2*j+1}, v{S+2*j+1}, s{sC}, -v{vM}")
            p(f"v_exp_f32 v{S+2*j}, v{S+2*j}")
            p(f"v_exp_f32 v{S+2*j+1}, v{S+2*j+1}")
            if j >= 1:
                k = j - 1
                p(f"v_cvt_pk_bf16_f32 v{vP+k}, v{S+2*k}, v{S+2*k+1}")
                p(f"v_add_f32 v{vL0}, v{vL0}, v{S+2*k}")
                p(f"v_add_f32 v{vL1}, v{vL1}, v{S+2*k+1}")
        p(f"v_cvt_pk_bf16_f32 v{vP+7}, v{S+14}, v{S+15}")
        p(f"v_add_f32 v{vL0}, v{vL0}, v{S+14}")
        p(f"v_add_f32 v{vL1}, v{vL1}, v{S+15}")

    def beta(tag, cur, read_k, do_tmax, barrier=True):
        Sn = vS[1 - cur]
        p("s_waitcnt lgkmcnt(0)")
        if barrier: p("s_barrier")
        n = 0
        for a in range(4):
            for ks in range(2):
                f = vVf + (a * 2 + ks) * 4
                p(f"{MF} {rg(vO+16*a,16)}, {rg(f,4)}, {rg(vP+4*ks,4)}, {rg(vO+16*a,16)}")
                if read_k:
                    p(f"ds_read_b128 {rg(vKf+4*n,4)}, v{vKA+n}")
                if n == 0:
                    adv2(sRV); adv2(sRK)
                if n == 1 and do_tmax:
                    tmax(Sn)
                if n == 3: v_addrs(sRV)
                n += 1
        k_addrs(sRK)

    def rescale(tag):
        p.label(f"K1_RS{tag}")
        p(f"""
        v_max_f32 v3, v{vTn}, v{vM}
        v_sub_f32 v4, v{vM}, v3
        v_exp_f32 v4, v4
        v_mov_b32 v{vM}, v3
        v_add_f32 v{vThr}, 0x41000000, v3
        """)
        p(f"v_mul_f32 v{vL0}, v{vL0}, v4")
        p(f"v_mul_f32 v{vL1}, v{vL1}, v4")
        for i in range(64):
            p(f"v_mul_f32 v{vO+i}, v{vO+i}, v4")
        p(f"s_branch K1_BK{tag}")

    p.label("K1_LOOP")
    alpha('L0', 0, True)
    beta('L0', 0, True, True)
    alpha('L1', 1, True)
    beta('L1', 1, True, True)
    p(f"""
    s_add_u32 s{sCnt}, s{sCnt}, 1
    s_cmp_lt_u32 s{sCnt}, 7
    s_cbranch_scc1 K1_LOOP
    """)
    nbar['c'] += 28
    stamp(p, o, 4)
    alpha('A', 0, True); nbar['c'] += 1
    beta('A', 0, False, True, barrier=False)
    alpha('B', 1, False); nbar['c'] += 1
    p("s_waitcnt lgkmcnt(0)")
    for a in (2, 3, 0, 1):
        for ks in range(2):
            f = vVf + (a * 2 + ks) * 4
            p(f"{MF} {rg(vO+16*a,16)}, {rg(f,4)}, {rg(vP+4*ks,4)}, {rg(vO+16*a,16)}")
    stamp(p, o, 5)
    vS0 = vS[0]
    p(f"""
    v_add_f32 v{vL0}, v{vL0}, v{vL1}
    v_mov_b32 v{vL1}, v{vL0}
    s_nop 1
    v_permlane32_swap_b32 v{vL0}, v{vL1}
    v_add_f32 v{vThr}, v{vL0}, v{vL1}
    v_and_b32 v7, 31, v{vL}
    v_lshlrev_b32 v7, 3, v7
    s_lshl_b32 s{sT0}, s{sWave}, 8
    s_add_u32 s{sT0}, s{sT0}, {STAT}
    s_xor_b32 s{sT1}, s{sWave}, 2
    s_lshl_b32 s{sT1}, s{sT1}, 8
    s_add_u32 s{sT1}, s{sT1}, {STAT}
    v_add_u32 v2, s{sT0}, v7
    v_add_u32 v7, s{sT1}, v7
    v_lshlrev_b32 v3, 4, v{vL}
    s_xor_b32 s{sT1}, s{sWave}, 2
    s_lshl_b32 s{sT1}, s{sT1}, 13
    s_add_u32 s{sT1}, s{sT1}, {EX}
    s_lshl_b32 s{sT0}, s{sWave}, 13
    s_add_u32 s{sT0}, s{sT0}, {EX}
    v_add_u32 v4, s{sT1}, v3
    v_add_u32 v5, s{sT0}, v3
    s_mov_b32 s{rO}, s{sWs}
    s_mov_b32 s{rO+1}, s{sWs+1}
    s_mov_b32 s{rO+2}, {WS_SIZE}
    s_mov_b32 s{rO+3}, 0x20000
    """)
    wo_srd()
    bar('c')
    stamp(p, o, 'e1')
    p(f"ds_write_b64 v2, v[{vM}:{vM+1}]")
    for a in (2, 3):
        for g in range(4):
            p(f"ds_write_b128 v4, {rg(vO+16*a+4*g,4)} offset:{(a-2)*4096+g*1024}")
    p("s_waitcnt lgkmcnt(0)")
    stamp(p, o, 'e2')
    bar('c')
    stamp(p, o, 'e3')
    p(f"ds_read_b64 v[{vS0}:{vS0+1}], v7")
    for a in range(2):
        for g in range(4):
            p(f"ds_read_b128 {rg(vO+32+16*a+4*g,4)}, v5 offset:{a*4096+g*1024}")
    p(f"""
    v_mov_b32 v6, {NONL}
    ds_read_b64 v[8:9], v6
    s_waitcnt lgkmcnt(9)
    v_max_f32 v2, v{vM}, v{vS0}
    v_sub_f32 v3, v{vM}, v2
    v_sub_f32 v4, v{vS0}, v2
    v_exp_f32 v3, v3
    v_exp_f32 v4, v4
    v_mul_f32 v5, v3, v{vThr}
    v_fmac_f32 v5, v4, v{vS0+1}
    v_rcp_f32 v6, v5
    v_mul_f32 v3, v3, v6
    v_mul_f32 v4, v4, v6
    """)
    for i in range(32):
        p(f"v_mul_f32 v{vO+i}, v{vO+i}, v3")
    for a in range(2):
        p(f"s_waitcnt lgkmcnt({5-4*a})")
        for i in range(16):
            p(f"v_fmac_f32 v{vO+16*a+i}, v{vO+32+16*a+i}, v4")
    if o.e3:
        bar('c')
    order = [0, 2, 1, 3]
    for a in range(2):
        for idx, g in enumerate(order):
            p(f"v_cvt_pk_bf16_f32 v{vKf+8*a+2*idx}, v{vO+16*a+4*g}, v{vO+16*a+4*g+1}")
            p(f"v_cvt_pk_bf16_f32 v{vKf+8*a+2*idx+1}, v{vO+16*a+4*g+2}, v{vO+16*a+4*g+3}")
    stamp(p, o, 'e4')
    p(f"""
    v_and_b32 v2, 15, v{vL}
    v_lshrrev_b32 v3, 5, v{vL}
    v_lshl_add_u32 v2, v3, 4, v2
    v_lshlrev_b32 v2, 4, v2
    v_bfe_u32 v3, v{vL}, 4, 1
    v_lshl_add_u32 v2, v3, 12, v2
    s_lshl_b32 s{sT0}, s{sWg}, 14
    s_lshl_b32 s{sT1}, s{sQh}, 13
    s_add_u32 s{sT0}, s{sT0}, s{sT1}
    s_lshl_b32 s{sT1}, s{sKh}, 11
    s_add_u32 s{sT0}, s{sT0}, s{sT1}
    """)
    for a in range(2):
        p(f"buffer_store_dwordx4 {rg(vKf+8*a,4)}, v2, s[{rO}:{rO+3}], s{sT0} offen offset:{a*1024} sc1")
        p(f"buffer_store_dwordx4 {rg(vKf+8*a+4,4)}, v2, s[{rO}:{rO+3}], s{sT0} offen offset:{a*1024+512} sc1")
    assert nbar['c'] == nbar['l'], nbar
    print('barriers', nbar, file=sys.stderr)
    p.label("K1_TAIL")
    if o.prio: p("s_setprio 0")
    tail(p, o, locals())
    for tag in ('L0', 'L1', 'A', 'B'):
        rescale(tag)
    p.label("K1_END")
    p("s_endpgm")
    return p

def tail(p, o, L):
    g = lambda n: L[n]
    sWave, sB, sXc, sJj, sWg, sT0, sT1, sT2 = g('sWave'), g('sB'), g('sXc'), g('sJj'), g('sWg'), g('sT0'), g('sT1'), g('sT2')
    rO, rW, rX, sN, sTag, sOut, sWs = g('rO'), g('rW'), g('rX'), g('sN'), g('sTag'), g('sOut'), g('sWs')
    vL, vOff, wo_addr, NEARLY, NONL, wo_voffs = g('vL'), g('vOff'), g('wo_addr'), g('NEARLY'), g('NONL'), g('wo_voffs')
    sQt, sKh2 = 40, 41
    vAcc, vB, vF, vLA, vAd = 28, 64, 96, 19, 20
    sFast = 52
    p(f"""
    s_cmp_lt_u32 s{sWave}, 4
    s_cbranch_scc0 T_E4L
    s_waitcnt vmcnt(0) lgkmcnt(0)
    s_branch T_E4
    """)
    p.label("T_E4L")
    p("s_waitcnt lgkmcnt(0)")
    p.label("T_E4")
    p(f"""
    v_readfirstlane_b32 s{sN}, v8
    v_readfirstlane_b32 s{sN+1}, v9
    s_barrier
    """)
    if o.stamps: stamp(p, o, 6)
    def b_loads():
        p(f"""
        s_and_b32 s{sT0}, s{sWg}, 0xfc
        s_lshl_b32 s{sT1}, s{sKh2}, 1
        s_add_u32 s{sT0}, s{sT0}, s{sT1}
        s_lshl_b32 s{sT0}, s{sT0}, 14
        s_lshl_b32 s{sT1}, s{sQt}, 12
        s_add_u32 s{sT0}, s{sT0}, s{sT1}
        s_add_u32 s{sT1}, s{sT0}, 16384
        """)
        for kk in range(8):
            p(f"buffer_load_dwordx4 {rg(vB+4*kk,4)}, v5, s[{rO}:{rO+3}], s{sT0 if kk < 4 else sT1} offen offset:{(kk&3)*1024} sc1")
    p(f"""
    s_and_b32 s{sQt}, s{sWave}, 3
    s_lshr_b32 s{sKh2}, s{sWave}, 2
    v_lshlrev_b32 v5, 4, v{vL}
    v_mov_b32 v6, {NONL+8}
    ds_read_b32 v12, v6
    s_cmp_eq_u32 s{sWave}, 7
    s_cbranch_scc0 T_F0
    v_mov_b32 v9, s{sN}
    s_lshl_b32 s{sT0}, s{sWg}, 7
    s_add_u32 s{sT0}, s{sT0}, {WS_FLAG}
    v_mov_b32 v3, 0
    v_cmp_eq_u32 vcc, 0, v{vL}
    s_and_saveexec_b64 s[58:59], vcc
    buffer_store_dword v9, v3, s[{rO}:{rO+3}], s{sT0} offen sc1
    s_mov_b64 exec, s[58:59]
    """)
    p.label("T_F0")
    p(f"""
    s_waitcnt lgkmcnt(0)
    v_readfirstlane_b32 s{sFast}, v12
    s_cmp_eq_u32 s{sFast}, 0
    s_cbranch_scc1 T_SLOW
    """)
    b_loads()
    p.label("T_SLOW")
    p(f"""
    s_cmp_eq_u32 s{sWave}, 7
    s_cbranch_scc0 T_NOFLAG
    s_cmp_eq_u32 s{sFast}, 0
    s_cbranch_scc0 T_SETUP
    s_and_b32 s{sT0}, s{sWg}, 0xfc
    s_lshl_b32 s{sT0}, s{sT0}, 7
    s_add_u32 s{sT0}, s{sT0}, {WS_FLAG}
    v_and_b32 v8, 3, v{vL}
    v_lshlrev_b32 v8, 7, v8
    s_mov_b32 s{sT1}, 0
    buffer_load_dword v10, v8, s[{rO}:{rO+3}], s{sT0} offen sc1
    buffer_load_dword v11, v8, s[{rO}:{rO+3}], s{sT0} offen sc1
    """)
    p("s_branch T_SETUP")
    p.label("T_NOFLAG")
    p.label("T_SETUP")
    if not o.e3:
        p("s_barrier")
        nlate = 16 - NEARLY
        p(f"""
        s_cmp_lt_u32 s{sWave}, {min(nlate, 4)}
        s_cbranch_scc0 T_NOLATE
        """)
        for rep in range((nlate + 3) // 4):
            if rep > 0:
                p(f"s_cmp_lt_u32 s{sWave}, {nlate - 4*rep}")
                p("s_cbranch_scc0 T_NOLATE")
            p(f"s_add_u32 s{sT2}, s{sWave}, {NEARLY + 4*rep}")
            p(f"""
            s_mul_i32 s{sT1}, s{sT2}, 9216
            s_add_u32 s{sT0}, s{sT1}, 49152
            s_sub_u32 s{sT1}, s{sT1}, {12*9216}
            s_cmp_lt_u32 s{sT2}, 12
            s_cselect_b32 s{sT1}, s{sT0}, s{sT1}
            s_mul_i32 s{sT0}, s{sT2}, 36864
            """)
            for i in range(9):
                if i % 4 == 0:
                    p(f"s_add_u32 m0, s{sT1}, {(i//4)*4096}")
                p(f"buffer_load_dwordx4 v{vOff+i}, s[{rW}:{rW+3}], s{sT0} offen offset:{(i%4)*1024} lds")
    p.label("T_NOLATE")
    p(f"""
    v_lshrrev_b32 v2, 4, v{vL}
    v_and_b32 v3, 15, v{vL}
    v_lshrrev_b32 v4, 2, v3
    v_and_b32 v6, 3, v3
    v_lshl_add_u32 v2, v2, 2, v4
    v_mul_u32_u24 v2, 288, v2
    v_lshl_add_u32 v{vLA}, v6, 3, v2
    s_and_b32 s{sTag}, s{sN}, 0xfff
    s_lshr_b32 s{sTag+1}, s{sN}, 12
    s_and_b32 s{sTag+1}, s{sTag+1}, 0xfff
    s_lshr_b32 s{sTag+2}, s{sN}, 24
    s_lshl_b32 s{sT2}, s{sN+1}, 8
    s_or_b32 s{sTag+2}, s{sTag+2}, s{sT2}
    s_and_b32 s{sTag+2}, s{sTag+2}, 0xfff
    s_lshr_b32 s{sTag+3}, s{sN+1}, 4
    s_and_b32 s{sTag+3}, s{sTag+3}, 0xfff
    v_mov_b32 v7, 0xfffff000
    """)
    for i in range(36):
        p(f"v_mov_b32 v{vAcc+i}, 0")
    p(f"""
    s_cmp_eq_u32 s{sWave}, 7
    s_cbranch_scc0 T_NOPOLL
    s_cmp_eq_u32 s{sFast}, 0
    s_cbranch_scc0 T_NOPOLL
    s_and_b32 s{sT0}, s{sWg}, 0xfc
    s_lshl_b32 s{sT0}, s{sT0}, 7
    s_add_u32 s{sT0}, s{sT0}, {WS_FLAG}
    s_mov_b32 s{sT1}, 0
    """)
    p.label("T_POLL1")
    p(f"""
    s_waitcnt vmcnt(1)
    v_cmp_ne_u32 vcc, v10, v9
    s_cbranch_vccz T_NOPOLL
    buffer_load_dword v10, v8, s[{rO}:{rO+3}], s{sT0} offen sc1
    s_add_u32 s{sT1}, s{sT1}, 1
    s_waitcnt vmcnt(1)
    v_cmp_ne_u32 vcc, v11, v9
    s_cbranch_vccz T_NOPOLL
    buffer_load_dword v11, v8, s[{rO}:{rO+3}], s{sT0} offen sc1
    s_cmp_lt_u32 s{sT1}, {SPIN}
    s_cbranch_scc1 T_POLL1
    """)
    p.label("T_NOPOLL")
    p(f"""
    s_waitcnt vmcnt(0)
    s_barrier
    """)
    if o.stamps: stamp(p, o, 7)
    p(f"s_cmp_eq_u32 s{sFast}, 0")
    p("s_cbranch_scc0 T_BDONE")
    b_loads()
    p.label("T_BDONE")
    if o.gopt: gemm_opt(p, vAcc, vB, vF, vAd, vLA, sKh2, sT2, wo_addr)
    else: gen9.gemm_body(p, vAcc, vB, vF, vAd, vLA, sKh2, sT2, wo_addr, [0, 1, 2, 3, 4], [5, 6, 7, 8], True)
    if o.stamps: stamp(p, o, 8)
    p(f"""
    s_barrier
    s_mul_i32 s{sT0}, s{sQt}, 9216
    v_add_u32 v2, s{sT0}, v5
    s_cmp_eq_u32 s{sKh2}, 0
    s_cbranch_scc0 T_H1
    """)
    for nt in range(5, 9):
        p(f"ds_write_b128 v2, {rg(vAcc+4*nt,4)} offset:{nt*1024}")
    p("s_branch T_H2")
    p.label("T_H1")
    for nt in range(0, 5):
        p(f"ds_write_b128 v2, {rg(vAcc+4*nt,4)} offset:{nt*1024}")
    p.label("T_H2")
    p(f"""
    s_lshl_b32 s{sT0}, s{sXc}, 3
    s_add_u32 s{sT0}, s{sT0}, s{sB}
    s_lshl_b32 s{sT0}, s{sT0}, 2
    s_add_u32 s{sT0}, s{sT0}, s{sJj}
    s_lshl_b32 s{sT0}, s{sT0}, 2
    s_add_u32 s{sT0}, s{sT0}, s{sQt}
    s_mul_i32 s{sT0}, s{sT0}, 9216
    s_add_u32 s{sT0}, s{sT0}, {WS_PART}
    s_waitcnt lgkmcnt(0)
    s_barrier
    s_cmp_eq_u32 s{sKh2}, 0
    s_cbranch_scc0 T_H3
    """)
    def fin(nts):
        for nt in nts:
            p(f"ds_read_b128 {rg(vF+4*nt,4)}, v2 offset:{nt*1024}")
        for idx, nt in enumerate(nts):
            p(f"s_waitcnt lgkmcnt({len(nts)-1-idx})")
            for e in range(4):
                p(f"v_add_f32 v{vAcc+4*nt+e}, v{vAcc+4*nt+e}, v{vF+4*nt+e}")
            for e in range(4):
                p(f"v_and_or_b32 v{vAcc+4*nt+e}, v{vAcc+4*nt+e}, v7, s{sTag+e}")
            p(f"s_add_u32 s{sT1}, s{sT0}, {(nt//4)*4096}")
            p(f"buffer_store_dwordx4 {rg(vAcc+4*nt,4)}, v5, s[{rO}:{rO+3}], s{sT1} offen offset:{(nt%4)*1024} sc1")
    fin(list(range(0, 5)))
    p("s_branch T_H4")
    p.label("T_H3")
    fin(list(range(5, 9)))
    p.label("T_H4")
    if o.stamps: stamp(p, o, 9)
    vX = 100
    p(f"""
    s_cmp_ge_u32 s{sWave}, 5
    s_cbranch_scc1 T_DONE
    v_cmp_gt_u32 vcc, 288, v0
    s_and_saveexec_b64 s[58:59], vcc
    s_mul_i32 s{sT0}, s{sXc}, 288
    v_add_u32 v2, s{sT0}, v0
    v_lshlrev_b32 v3, 4, v2
    s_lshl_b32 s{sT0}, s{sB}, 2
    s_add_u32 s{sT0}, s{sT0}, s{sJj}
    s_mul_i32 s{sT0}, s{sT0}, 36864
    s_add_u32 s{sT0}, s{sT0}, {WS_PART}
    s_mov_b32 s{rX}, s{sOut}
    s_mov_b32 s{rX+1}, s{sOut+1}
    s_mov_b32 s{rX+2}, {512*576*2}
    s_mov_b32 s{rX+3}, 0x20000
    v_lshrrev_b32 v4, 6, v2
    v_mul_u32_u24 v5, 57, v4
    v_lshrrev_b32 v5, 9, v5
    v_mul_u32_u24 v6, 9, v5
    v_sub_u32 v6, v4, v6
    v_and_b32 v4, 15, v2
    v_lshl_add_u32 v4, v5, 4, v4
    s_lshl_b32 s{sT1}, s{sB}, 6
    v_add_u32 v4, s{sT1}, v4
    s_movk_i32 s{sT1}, 1152
    v_mul_u32_u24 v4, s{sT1}, v4
    v_lshlrev_b32 v6, 5, v6
    v_add_u32 v4, v4, v6
    v_bfe_u32 v6, v2, 4, 2
    v_lshl_add_u32 v4, v6, 3, v4
    s_mul_i32 s{sT1}, s{sJj}, 288
    v_add_u32 v4, s{sT1}, v4
    s_mov_b32 s{sT2}, 0
    """)
    if o.prepoll == 1:
            p(f"""
            s_mov_b64 s[56:57], exec
            v_readfirstlane_b32 s{sT1}, v3
            v_mul_u32_u24 v6, {32*36864 // 1024}, v{vL}
            v_lshlrev_b32 v6, 10, v6
            v_add_u32 v6, s{sT1}, v6
            v_mov_b32 v9, s{sTag}
            s_mov_b64 exec, 0xff
            buffer_load_dword v10, v6, s[{rO}:{rO+3}], s{sT0} offen sc1
            buffer_load_dword v11, v6, s[{rO}:{rO+3}], s{sT0} offen sc1
            """)
            p.label("T_PP")
            p(f"""
            s_waitcnt vmcnt(1)
            v_xor_b32 v8, v10, v9
            v_and_b32 v8, 0xfff, v8
            v_cmp_ne_u32 vcc, 0, v8
            s_cbranch_vccz T_PPD
            buffer_load_dword v10, v6, s[{rO}:{rO+3}], s{sT0} offen sc1
            s_add_u32 s{sT2}, s{sT2}, 1
            s_waitcnt vmcnt(1)
            v_xor_b32 v8, v11, v9
            v_and_b32 v8, 0xfff, v8
            v_cmp_ne_u32 vcc, 0, v8
            s_cbranch_vccz T_PPD
            buffer_load_dword v11, v6, s[{rO}:{rO+3}], s{sT0} offen sc1
            s_cmp_lt_u32 s{sT2}, {SPIN}
            s_cbranch_scc1 T_PP
            """)
            p.label("T_PPD")
            p(f"""
            s_mov_b64 exec, s[56:57]
            s_mov_b32 s{sT2}, 0
            """)
    elif o.prepoll == 2:
        p(f"""
        s_cmp_eq_u32 s{sWave}, 0
        s_cbranch_scc0 T_PPD
        s_mov_b64 s[56:57], exec
        s_mul_i32 s{sT1}, s{sXc}, {288*16}
        v_and_b32 v6, 7, v{vL}
        v_mul_u32_u24 v6, {32*36864 // 1024}, v6
        v_lshlrev_b32 v6, 10, v6
        v_add_u32 v6, s{sT1}, v6
        v_lshrrev_b32 v8, 3, v{vL}
        v_mul_u32_u24 v8, {287*16}, v8
        v_add_u32 v6, v6, v8
        v_mov_b32 v9, s{sTag}
        s_mov_b64 exec, 0xffff
        buffer_load_dword v10, v6, s[{rO}:{rO+3}], s{sT0} offen sc1
        """)
        p.label("T_PP")
        p(f"""
        s_waitcnt vmcnt(0)
        v_xor_b32 v8, v10, v9
        v_and_b32 v8, 0xfff, v8
        v_cmp_ne_u32 vcc, 0, v8
        s_cbranch_vccz T_PPE
        buffer_load_dword v10, v6, s[{rO}:{rO+3}], s{sT0} offen sc1
        s_add_u32 s{sT2}, s{sT2}, 1
        s_cmp_lt_u32 s{sT2}, {SPIN}
        s_cbranch_scc1 T_PP
        """)
        p.label("T_PPE")
        p(f"""
        s_mov_b64 exec, s[56:57]
        s_mov_b32 s{sT2}, 0
        """)
        p.label("T_PPD")
        p("s_barrier")
    p.label("T_POLL2")
    p(f"s_mov_b32 s{sT1}, s{sT0}")
    for s in range(8):
        p(f"buffer_load_dwordx4 {rg(vX+4*s,4)}, v3, s[{rO}:{rO+3}], s{sT1} offen sc1")
        if s < 7: p(f"s_add_u32 s{sT1}, s{sT1}, {32*36864}")
    p(f"""
    s_add_u32 s{sT2}, s{sT2}, 1
    v_mov_b32 v6, 0
    """)
    for s in range(8):
        p(f"s_waitcnt vmcnt({7-s})")
        for e in range(0, 4, 2):
            p(f"v_xor_b32 v8, s{sTag+e}, v{vX+4*s+e}")
            p(f"v_xor_b32 v9, s{sTag+e+1}, v{vX+4*s+e+1}")
            p(f"v_or3_b32 v6, v6, v8, v9")
    p(f"""
    v_and_b32 v6, 0xfff, v6
    v_cmp_ne_u32 vcc, 0, v6
    s_cmp_lt_u32 s{sT2}, {SPIN}
    s_cbranch_scc0 T_SUM
    s_cbranch_vccnz T_POLL2
    """)
    p.label("T_SUM")
    for s in range(8):
        for e in range(4):
            p(f"v_and_b32 v{vX+4*s+e}, v7, v{vX+4*s+e}")
    for s in range(1, 8):
        for e in range(4):
            p(f"v_add_f32 v{vX+e}, v{vX+e}, v{vX+4*s+e}")
    p(f"""
    v_cvt_pk_bf16_f32 v8, v{vX}, v{vX+1}
    v_cvt_pk_bf16_f32 v9, v{vX+2}, v{vX+3}
    buffer_store_dwordx2 v[8:9], v4, s[{rX}:{rX+3}], 0 offen{' sc1' if o.outsc else ''}
    s_mov_b64 exec, s[58:59]
    """)
    p.label("T_DONE")
    if o.stamps:
        p("s_waitcnt vmcnt(0)")
        p("s_memrealtime s[90:91]" if o.stamps != 2 else "s_memtime s[90:91]")
        p("s_waitcnt lgkmcnt(0)")
        gen_flush_final(p, o, sWs)
    p("s_branch K1_END")

def gemm_opt(p, vAcc, vB, vF, vAd, vLA, sKh2, sT, wo_addr):
    HA, HB = [0, 1, 2, 3, 4], [5, 6, 7, 8]
    for half in range(2):
        c0, c1 = wo_addr(4 * half), wo_addr(8 + 4 * half)
        for kk in range(4):
            assert wo_addr(4 * half + kk) == c0 + kk * 9216 and wo_addr(8 + 4 * half + kk) == c1 + kk * 9216
        p(f"""
        s_mov_b32 s{sT}, {c1}
        s_cmp_eq_u32 s{sKh2}, 0
        s_cselect_b32 s{sT}, {c0}, s{sT}
        v_add_u32 v{vAd + half}, s{sT}, v{vLA}
        """)
    def reads(kk, half):
        ad = vAd + (kk // 4); off = (kk % 4) * 9216
        for nt in half:
            f = vF + 4 * nt
            p(f"ds_read_b64_tr_b16 {rg(f,2)}, v{ad} offset:{off+nt*32}")
            p(f"ds_read_b64_tr_b16 {rg(f+2,2)}, v{ad} offset:{off+4608+nt*32}")
    def mfmas(kk, half, wait):
        p(wait)
        for nt in half:
            f = vF + 4 * nt
            p(f"{MF16} {rg(vAcc+4*nt,4)}, {rg(f,4)}, {rg(vB+4*kk,4)}, {rg(vAcc+4*nt,4)}")
    reads(0, HA)
    for kk in range(8):
        reads(kk, HB)
        mfmas(kk, HA, f"s_waitcnt vmcnt({7-kk}) lgkmcnt({2*len(HB)})")
        if kk < 7:
            reads(kk + 1, HA)
            mfmas(kk, HB, f"s_waitcnt lgkmcnt({2*len(HA)})")
        else:
            mfmas(kk, HB, "s_waitcnt lgkmcnt(0)")

def emit(o):
    name = 'standalone__gqa_block_cached__near_ridge_kernel'
    p = gen_main(o)
    out = [HEADER.rstrip(), "; @launch grid=(256,1,1) block=(512,1,1) lds=163840",
           '.amdgcn_target "amdgcn-amd-amdhsa--gfx950"', '.text']
    n = p.fix_hazards()
    errs = p.lint_waits()
    for e in errs[:20]:
        print(f"LINT: {e}", file=sys.stderr)
    nv, ns = p.max_regs()
    print(f"{name}: {len(p.ins)} instrs, vgpr {nv}, sgpr {ns}, nops inserted {n}", file=sys.stderr)
    out.append(f".globl {name}\n.p2align 8\n.type {name},@function\n{name}:")
    out.append(p.text())
    out.append(kd(name, max(nv, 8), max(ns, 16)))
    return '\n'.join(out) + '\n'

if __name__ == '__main__':
    ap = argparse.ArgumentParser()
    ap.add_argument('-o', default='standalone__gqa_block_cached__near_ridge.s')
    for k, d in OPTS.items():
        ap.add_argument('--' + k, type=int, default=d)
    a = ap.parse_args()
    o = Opt()
    for k in OPTS:
        setattr(o, k, getattr(a, k))
    open(a.o, 'w').write(emit(o))
```

```python
import sys, argparse
from asmlib import Prog
import gen
from gen import f32bits, SCALE_LOG2E, kd, HEADER
from gen import stamp as _stamp
import gen9
from gen9 import WS_O, WS_PART, WS_FLAG, WS_SIZE, MF, MF16, rg, SPIN, gen_flush_final

STSETS = {0: {0:0,1:1,2:2,3:3,4:4,5:5,6:6,7:7,8:8,9:9},
          1: {5:0, 'e1':1, 'e2':2, 'e3':3, 'e4':4, 6:5, 7:6, 'g0':7, 8:8, 9:9}}
def stamp(p, o, name):
    m = STSETS[getattr(o, 'stset', 0)]
    if name in m: _stamp(p, o, m[name])

class Opt(gen.Opt):
    pass
OPTS = dict(gopt=1, e3=1, prio=0, skew=0, icpf=6, outsc=1, prepoll=1, fast=1, stset=0, nt=1, dbg=0, stamps=0, stampwave=0, wt=1, kdel=5, wotat=7, lead=8, nearly=12)

HDR = """; GQA block: q = x@wq ; softmax(q k^T / sqrt(128)) v ; out = o@wo   (B=8, Sq=64, Hq=32, Hkv=16, Sk=1024, Dh=128, D=576)
;   The launch nonce is published by workgroup 0 in d_debug[0:1] (zero at launch); all cross-workgroup data uses sc1 stores and loads."""

SLOT = 16384
NSLOT = 10

def gen_main(o):
    p = Prog()
    NT = ' nt' if o.nt else ''
    sX, sK, sV, sWq, sWs, sWo = 4, 6, 8, 10, 12, 14
    rK, rV, rW, rX, rO = 16, 20, 24, 28, 32
    sWave, sB, sH, sXc, sQh, sKh = 36, 37, 38, 39, 40, 41
    sRK, sRV, sKoff, sVoff, sCnt, sJj = 42, 43, 44, 45, 46, 47
    sC, sT0, sT1, sT2 = 48, 49, 50, 51
    sLw, sWg, sIss, sL4096, sGof = 53, 54, 55, 56, 57
    sPar, sIssB = 98, 99
    vOa, vOb = 40, 44
    sOut, sDbg, sN, sTag = 80, 82, 84, 86
    vL = 1
    vLW = 10
    vLX = 12
    vLK = 13
    vVA = 14
    vTn = 18
    vNon = 20
    vLV = 24
    vKA = 28
    vM, vThr, vL0, vL1 = 36, 37, 38, 39
    vQ = 40
    vS = [72, 88]
    vP = 104
    vKf = 112
    vVf = 144
    vO = 176
    QB = [112, 176]
    vKo = 10; vVo = 14; vWo = 24; vXo = 28; vWoA, vWoB, vWoC = 30, 31, 32
    vDum = 249
    vOff = 240
    S_ = [i * SLOT for i in range(NSLOT)]
    QS = [139264, 65536, 90112, 114688]
    QX = S_[9]
    lab = [0]
    def nl(s):
        lab[0] += 1
        return f"K1_{s}{lab[0]}"
    nbar = {'c': 0, 'l': 0}
    def bar(who):
        nbar[who] += 1
        p("s_barrier")
    LEAD = o.lead
    assert LEAD in (4, 6, 8) and not (o.skew and LEAD != 8)
    HL = LEAD // 2
    NR = 14 - HL
    POS = []
    for n in range(33):
        if n == 0: POS.append((1, 0))
        elif n % 2 == 1: POS.append((1, (n + 1) // 2))
        else: POS.append((0, (n - 2) // 2))
    NEARLY = o.nearly
    def wo_addr(G): return (49152 + G * 9216) if G < 12 else (G - 12) * 9216
    EX, STAT, NONL = 0, 36864, 38912

    p(f"""
    s_cmp_ge_u32 s2, 256
    s_cbranch_scc1 K1_END
    s_load_dwordx4 s[4:7], s[0:1], 0
    s_load_dwordx4 s[8:11], s[0:1], 16
    s_load_dwordx2 s[12:13], s[0:1], 56
    s_load_dwordx2 s[14:15], s[0:1], 32
    s_load_dwordx4 s[80:83], s[0:1], 40
    """)
    if o.icpf:
        ICL = o.icpf
        p("s_getpc_b64 s[90:91]")
        p.label("K1_PCREF")
        p(f"""
        s_mov_b32 s93, K1_END-K1_PCREF
        v_cmp_gt_u32 vcc, {ICL}, v0
        s_and_saveexec_b64 s[58:59], vcc
        s_cbranch_execz K1_ICD
        s_lshr_b32 s92, s2, 3
        s_mul_i32 s92, s92, {ICL*128}
        v_lshlrev_b32 v2, 7, v0
        v_add_u32 v2, s92, v2
        v_min_u32 v2, s93, v2
        global_load_dword v{vDum}, v2, s[90:91]
        """)
        p.label("K1_ICD")
        p("s_mov_b64 exec, s[58:59]")
    p(f"""
    v_and_b32 v{vL}, 63, v0
    v_lshrrev_b32 v2, 6, v0
    s_and_b32 s{sXc}, s2, 7
    s_lshr_b32 s{sT1}, s2, 3
    v_readfirstlane_b32 s{sWave}, v2
    s_lshr_b32 s{sB}, s{sT1}, 2
    s_and_b32 s{sJj}, s{sT1}, 3
    s_lshl_b32 s{sH}, s{sXc}, 2
    s_add_u32 s{sH}, s{sH}, s{sJj}
    s_lshl_b32 s{sWg}, s{sB}, 5
    s_add_u32 s{sWg}, s{sWg}, s{sH}
    v_and_b32 v2, 15, v{vL}
    v_lshrrev_b32 v3, 4, v{vL}
    v_lshrrev_b32 v4, 2, v2
    v_and_b32 v5, 3, v2
    v_lshrrev_b32 v6, 5, v{vL}
    v_and_b32 v7, 31, v{vL}
    s_cmp_lt_u32 s{sWave}, 4
    s_cbranch_scc1 K1_COMPUTE
    """)

    vq = []
    def vissue(tag, n): vq.extend([tag] * n)
    def vneed(*tags):
        idx = [i for i, t in enumerate(vq) if t in tags]
        if not idx: return 63
        n = len(vq) - 1 - idx[-1]
        del vq[:idx[-1] + 1]
        return min(n, 63)
    if o.prio: p(f"s_setprio {o.prio}")
    p(f"""
    s_and_b32 s{sLw}, s{sWave}, 3
    s_lshl_b32 s{sL4096}, s{sLw}, 12
    v_lshlrev_b32 v8, 2, v3
    v_xor_b32 v8, v8, v2
    v_lshlrev_b32 v8, 4, v8
    v_lshl_add_u32 v{vVo}, v3, 8, v8
    v_lshl_add_u32 v{vWo}, v3, 13, v8
    """)
    for u in range(1, 4):
        p(f"v_add_u32 v{vWo+u}, {u*31744}, v{vWo}")
    p(f"""
    s_lshl_b32 s{sT0}, s{sLw}, 4
    s_movk_i32 s{sT1}, 1152
    """)
    for u in range(2):
        p(f"""
        v_lshrrev_b32 v8, 3, v{vL}
        v_add_u32 v8, s{sT0}, v8
        v_add_u32 v8, {8*u}, v8
        v_mul_lo_u32 v8, v8, s{sT1}
        v_add_u32 v9, {4*u}, v3
        v_and_b32 v9, 7, v9
        v_and_b32 v{vXo+u}, 7, v{vL}
        v_xor_b32 v9, v9, v{vXo+u}
        v_lshl_add_u32 v8, v9, 4, v8
        v_subrev_u32 v{vXo+u}, {u*1024}, v8
        """)
    p("s_waitcnt lgkmcnt(0)")
    stamp(p, o, 0)
    p(f"""
    s_lshl_b32 s{sT0}, s{sH}, 8
    s_add_u32 s{rW}, s{sWq}, s{sT0}
    s_addc_u32 s{rW+1}, s{sWq+1}, 0
    s_sub_u32 s{rW+2}, {576*8192}, s{sT0}
    s_mov_b32 s{rW+3}, 0x20000
    s_mul_i32 s{sT0}, s{sB}, {64*1152}
    s_add_u32 s{rX}, s{sX}, s{sT0}
    s_addc_u32 s{rX+1}, s{sX+1}, 0
    s_mov_b32 s{rX+2}, {64*1152}
    s_mov_b32 s{rX+3}, 0x20000
    """)
    def issue_chunk(c):
        qs = QS[c % 4]
        p(f"""
        s_lshl_b32 s{sT0}, s{sLw}, 17
        s_add_u32 s{sT0}, s{sT0}, {c*524288}
        s_add_u32 m0, s{sL4096}, {qs}
        """)
        for u in range(4):
            p(f"buffer_load_dwordx4 v{vWo+u}, s[{rW}:{rW+3}], s{sT0} offen offset:{u*1024} lds")
        p(f"""
        s_lshr_b32 s{sT1}, s{sL4096}, 1
        s_add_u32 m0, s{sT1}, {qs+16384}
        s_movk_i32 s{sT0}, {c*128}
        """)
        for u in range(2):
            p(f"buffer_load_dwordx4 v{vXo+u}, s[{rX}:{rX+3}], s{sT0} offen offset:{u*1024} lds")
        vissue(('C', c), 6)
    if o.wt:
        p(f"""
        s_cmp_eq_u32 s{sWave}, 4
        s_cbranch_scc0 K1_WT1
        v_lshrrev_b32 v8, 1, v{vL}
        v_and_b32 v9, 1, v{vL}
        v_lshlrev_b32 v8, 13, v8
        v_lshl_add_u32 v8, v9, 7, v8
        s_mul_i32 s{sT0}, s{sB}, {72*8192}
        buffer_load_dword v{vDum}, v8, s[{rW}:{rW+3}], s{sT0} offen
        s_add_u32 s{sT0}, s{sT0}, {32*8192}
        buffer_load_dword v{vDum}, v8, s[{rW}:{rW+3}], s{sT0} offen
        s_add_u32 s{sT0}, s{sT0}, {32*8192}
        v_cmp_gt_u32 vcc, 16, v{vL}
        s_and_saveexec_b64 s[58:59], vcc
        buffer_load_dword v{vDum}, v8, s[{rW}:{rW+3}], s{sT0} offen
        s_mov_b64 exec, s[58:59]
        """)
        p.label("K1_WT1")
        p(f"""
        s_cmp_eq_u32 s{sWave}, 5
        s_cbranch_scc0 K1_WT2
        v_lshlrev_b32 v9, 7, v{vL}
        s_mul_i32 s{sT0}, s{sJj}, 18432
        buffer_load_dword v{vDum}, v9, s[{rX}:{rX+3}], s{sT0} offen
        s_add_u32 s{sT0}, s{sT0}, 8192
        buffer_load_dword v{vDum}, v9, s[{rX}:{rX+3}], s{sT0} offen
        s_add_u32 s{sT0}, s{sT0}, 8192
        v_cmp_gt_u32 vcc, 16, v{vL}
        s_and_saveexec_b64 s[58:59], vcc
        buffer_load_dword v{vDum}, v9, s[{rX}:{rX+3}], s{sT0} offen
        s_mov_b64 exec, s[58:59]
        """)
        p.label("K1_WT2")
    for c in range(4):
        issue_chunk(c)
    p(f"""
    s_cmp_eq_u32 s2, 0
    s_cbranch_scc0 K1_NON
    s_cmp_eq_u32 s{sWave}, 7
    s_cbranch_scc0 K1_NON
    s_memrealtime s[{sN}:{sN+1}]
    s_waitcnt lgkmcnt(0)
    s_or_b32 s{sN}, s{sN}, 1
    v_mov_b32 v8, s{sN}
    v_mov_b32 v9, s{sN+1}
    v_mov_b32 v{vNon}, 0
    v_cmp_eq_u32 vcc, 0, v{vL}
    s_and_saveexec_b64 s[58:59], vcc
    global_store_dwordx2 v{vNon}, v[8:9], s[{sDbg}:{sDbg+1}] sc1
    s_mov_b64 exec, s[58:59]
    """)
    p.label("K1_NON")
    p(f"""
    s_lshl_b32 s{sT0}, s{sB}, 4
    s_lshr_b32 s{sT1}, s{sH}, 1
    s_add_u32 s{sT0}, s{sT0}, s{sT1}
    s_lshl_b32 s{sT0}, s{sT0}, 18
    s_add_u32 s{rK}, s{sK}, s{sT0}
    s_addc_u32 s{rK+1}, s{sK+1}, 0
    s_mov_b32 s{rK+2}, 0x40000
    s_mov_b32 s{rK+3}, 0x20000
    s_add_u32 s{rV}, s{sV}, s{sT0}
    s_addc_u32 s{rV+1}, s{sV+1}, 0
    s_mov_b32 s{rV+2}, 0x40000
    s_mov_b32 s{rV+3}, 0x20000
    s_lshr_b32 s{sT0}, s{sLw}, 1
    s_lshl_b32 s{sT0}, s{sT0}, 17
    s_and_b32 s{sT1}, s{sLw}, 1
    s_lshl_b32 s{sT1}, s{sT1}, 12
    s_add_u32 s{sGof}, s{sT0}, s{sT1}
    """)
    for u in range(4):
        p(f"""
        v_add_u32 v8, {4*u}, v3
        v_xor_b32 v8, v8, v2
        v_lshlrev_b32 v8, 4, v8
        v_lshl_add_u32 v{vKo+u}, v3, 8, v8
        """)
    p(f"""
    s_movk_i32 s{sT0}, 3641
    s_movk_i32 s{sT1}, 1152
    """)
    for k, (reg, addi) in enumerate(((vWoA, 0), (vWoB, 4), (vWoC, None))):
        if addi is None:
            p(f"v_add_u32 v8, {64*8}, v{vL}")
        else:
            p(f"""
            s_add_u32 s{sT2}, s{sLw}, {addi}
            s_lshl_b32 s{sT2}, s{sT2}, 6
            v_add_u32 v8, s{sT2}, v{vL}
            """)
        p(f"""
        v_mul_u32_u24 v9, s{sT0}, v8
        v_lshrrev_b32 v9, 16, v9
        v_mul_u32_u24 v{reg}, 18, v9
        v_sub_u32 v{reg}, v8, v{reg}
        v_mul_u32_u24 v9, s{sT1}, v9
        v_lshl_add_u32 v{reg}, v{reg}, 4, v9
        """)

    for i in range(9): p(f"v_mov_b32 v{vOff+i}, 0")
    def issue_pos(n):
        isK, t = POS[n]
        p(f"""
        s_add_u32 s{sT0}, s{sGof}, {t*8192}
        s_add_u32 m0, s{sL4096}, {S_[n % NSLOT]}
        """)
        for u in range(4):
            if isK: p(f"buffer_load_dwordx4 v{vKo+u}, s[{rK}:{rK+3}], s{sT0} offen offset:{u*1024}{NT} lds")
            else:   p(f"buffer_load_dwordx4 v{vVo}, s[{rV}:{rV+3}], s{sT0} offen offset:{u*1024}{NT} lds")
        vissue(('P', n), 4)
    def wo_srd():
        p(f"""
        s_mul_i32 s{sT0}, s{sXc}, {512*1152}
        s_mul_i32 s{sT1}, s{sJj}, 288
        s_add_u32 s{sT0}, s{sT0}, s{sT1}
        s_add_u32 s{rW}, s{sWo}, s{sT0}
        s_addc_u32 s{rW+1}, s{sWo+1}, 0
        s_sub_u32 s{rW+2}, {4096*1152}, s{sT0}
        s_mov_b32 s{rW+3}, 0x20000
        """)
    def early_group(G):
        base = wo_addr(G)
        p(f"""
        s_lshl_b32 s{sT1}, s{sLw}, 10
        s_add_u32 m0, s{sT1}, {base}
        s_mov_b32 s{sT0}, {G*36864}
        buffer_load_dwordx4 v{vWoA}, s[{rW}:{rW+3}], s{sT0} offen lds
        s_add_u32 m0, s{sT1}, {base+4096}
        s_cmp_eq_u32 s{sLw}, 0
        buffer_load_dwordx4 v{vWoB}, s[{rW}:{rW+3}], s{sT0} offen lds
        """)
        l = nl('EG')
        p(f"s_cbranch_scc0 {l}")
        p(f"s_mov_b32 m0, {base+8192}")
        p(f"buffer_load_dwordx4 v{vWoC}, s[{rW}:{rW+3}], s{sT0} offen lds")
        p.label(l)
        vissue(('G', G), 2)
    def wo_touch():
        l = nl('WOT')
        p(f"""
        s_cmp_eq_u32 s{sWave}, 6
        s_cbranch_scc0 {l}
        s_mul_i32 s{sT0}, s{sXc}, {512*1152}
        s_add_u32 s{rX}, s{sWo}, s{sT0}
        s_addc_u32 s{rX+1}, s{sWo+1}, 0
        s_mov_b32 s{rX+2}, {512*1152}
        s_mov_b32 s{rX+3}, 0x20000
        s_lshr_b32 s{sT0}, s2, 3
        s_mul_i32 s{sT0}, s{sT0}, 18432
        v_lshlrev_b32 v2, 7, v{vL}
        buffer_load_dword v{vDum}, v2, s[{rX}:{rX+3}], s{sT0} offen
        s_add_u32 s{sT0}, s{sT0}, 8192
        buffer_load_dword v{vDum}, v2, s[{rX}:{rX+3}], s{sT0} offen
        s_add_u32 s{sT0}, s{sT0}, 8192
        v_cmp_gt_u32 vcc, 16, v{vL}
        s_and_saveexec_b64 s[58:59], vcc
        buffer_load_dword v{vDum}, v2, s[{rX}:{rX+3}], s{sT0} offen
        s_mov_b64 exec, s[58:59]
        """)
        p.label(l)

    for c in range(9):
        p(f"s_waitcnt vmcnt({vneed(('C', c))})")
        bar('l')
        if c == 0: stamp(p, o, 1)
        if 1 <= c <= 5: issue_chunk(c + 3)
        if c == o.kdel: issue_pos(0); issue_pos(1)
        if c == o.kdel + 1: issue_pos(2); issue_pos(3)
    bar('l')
    for n in range(4, LEAD): issue_pos(n)
    bar('l')
    p(f"s_waitcnt vmcnt({vneed(('P', 0))})")
    bar('l')
    issue_pos(LEAD)
    p(f"s_waitcnt vmcnt({vneed(('P', 1))})")
    bar('l')
    issue_pos(LEAD + 1)
    VQ = {0: list(vq), 1: list(vq)}
    def need_in(q, tag):
        idx = [i for i, t in enumerate(q) if t == tag]
        if not idx: return 63
        n = len(q) - 1 - idx[-1]
        del q[:idx[-1] + 1]
        return min(n, 63)
    Wa, Wb = [], []
    pars = (0, 1) if o.skew else (0,)
    for i in range(NR):
        Wa.append(min(need_in(VQ[q], ('P', 2 * i + 2)) for q in pars))
        for q in pars: VQ[q].extend([('P', 2 * i + 2 + LEAD + q)] * 4)
        Wb.append(min(need_in(VQ[q], ('P', 2 * i + 3)) for q in pars))
        for q in pars: VQ[q].extend([('P', 2 * i + 3 + LEAD - q)] * 4)
    wa, wb = min(Wa), min(Wb)
    print('loader loop waits', Wa, Wb, file=sys.stderr)
    p(f"""
    s_and_b32 s{sPar}, s{sH}, {1 if o.skew else 0}
    s_mov_b32 s{sIss}, {S_[(2+LEAD) % NSLOT]}
    s_mov_b32 s{sIssB}, {S_[(3+LEAD) % NSLOT]}
    s_add_u32 s{sVoff}, s{sGof}, {HL*8192}
    s_add_u32 s{sKoff}, s{sGof}, {(2+HL)*8192}
    s_mov_b32 s{sCnt}, 0
    """)
    for u in range(4):
        p(f"v_mov_b32 v{vOa+u}, v{vVo}")
        p(f"v_mov_b32 v{vOb+u}, v{vKo+u}")
    if o.skew:
        p(f"""
        s_cmp_eq_u32 s{sPar}, 0
        s_cbranch_scc1 K1_PAR0
        s_mov_b32 s{sIss}, {S_[1]}
        s_mov_b32 s{sIssB}, {S_[0]}
        s_add_u32 s{sVoff}, s{sGof}, {6*8192}
        s_add_u32 s{sKoff}, s{sGof}, {4*8192}
        s_mov_b32 s{sT0}, s{rK}
        s_mov_b32 s{sT1}, s{rK+1}
        s_mov_b32 s{rK}, s{rV}
        s_mov_b32 s{rK+1}, s{rV+1}
        s_mov_b32 s{rV}, s{sT0}
        s_mov_b32 s{rV+1}, s{sT1}
        """)
        for u in range(4):
            p(f"v_mov_b32 v{vOa+u}, v{vKo+u}")
            p(f"v_mov_b32 v{vOb+u}, v{vVo}")
        p.label("K1_PAR0")
    def adv_iss(sreg):
        p(f"""
        s_add_u32 s{sreg}, s{sreg}, {2*SLOT}
        s_cmp_ge_u32 s{sreg}, {NSLOT*SLOT}
        s_cselect_b32 s{sT0}, {NSLOT*SLOT}, 0
        s_sub_u32 s{sreg}, s{sreg}, s{sT0}
        """)
    p.label("K1_LLOOP")
    p(f"s_waitcnt vmcnt({wa})")
    p("s_barrier")
    p(f"s_add_u32 m0, s{sIss}, s{sL4096}")
    for u in range(4):
        p(f"buffer_load_dwordx4 v{vOa+u}, s[{rV}:{rV+3}], s{sVoff} offen offset:{u*1024}{NT} lds")
    adv_iss(sIss)
    p(f"s_add_u32 s{sVoff}, s{sVoff}, 8192")
    p(f"s_waitcnt vmcnt({wb})")
    p("s_barrier")
    p(f"s_add_u32 m0, s{sIssB}, s{sL4096}")
    for u in range(4):
        p(f"buffer_load_dwordx4 v{vOb+u}, s[{rK}:{rK+3}], s{sKoff} offen offset:{u*1024}{NT} lds")
    adv_iss(sIssB)
    p(f"s_add_u32 s{sKoff}, s{sKoff}, 8192")
    l = nl('WTT')
    p(f"s_cmp_eq_u32 s{sCnt}, {o.wotat}")
    p(f"s_cbranch_scc0 {l}")
    wo_touch()
    p.label(l)
    p(f"""
    s_add_u32 s{sCnt}, s{sCnt}, 1
    s_cmp_lt_u32 s{sCnt}, {NR}
    s_cbranch_scc1 K1_LLOOP
    """)
    nbar['l'] += 2 * NR
    if o.skew:
        p(f"""
        s_cmp_eq_u32 s{sPar}, 0
        s_cbranch_scc1 K1_PAR2
        s_mov_b32 s{sT0}, s{rK}
        s_mov_b32 s{sT1}, s{rK+1}
        s_mov_b32 s{rK}, s{rV}
        s_mov_b32 s{rK+1}, s{rV+1}
        s_mov_b32 s{rV}, s{sT0}
        s_mov_b32 s{rV+1}, s{sT1}
        """)
        p.label("K1_PAR2")
    wo_srd()
    p(f"""
    s_cmp_eq_u32 s{sWave}, 7
    s_cbranch_scc0 K1_NL
    v_mov_b32 v8, 0
    global_load_dwordx2 v[{vNon}:{vNon+1}], v8, s[{sDbg}:{sDbg+1}] sc1
    """)
    p.label("K1_NL")
    sched0 = {('a', 11): [0], ('b', 11): [1, 2], ('a', 12): [3, 4], ('b', 12): [5, 6], ('a', 13): [7], ('b', 13): [8, 9], ('a', 14): [10, 11]}
    lastv = 15 - HL
    order = [(t, i) for i in range(10, 15) for t in ('a', 'b')]
    sched = {}
    for key in order:
        for G in sched0.get(key, []):
            k2 = key
            if (key[1], key[0]) < (lastv, 'a'): k2 = ('a', lastv)
            sched.setdefault(k2, []).append(G)
    def issue_pos_par(n, par):
        if par is None or not o.skew:
            sv = list(vq); issue_pos(n); del vq[:]; vq.extend(sv)
            for q in pars: VQ[q].extend([('P', n)] * 4)
            return
        l = nl('IP')
        p(f"s_cmp_eq_u32 s{sPar}, {par}")
        p(f"s_cbranch_scc0 {l}")
        sv = list(vq); issue_pos(n); del vq[:]; vq.extend(sv)
        p.label(l)
        VQ[par].extend([('P', n)] * 4)
    def eg(G):
        sv = list(vq); early_group(G); del vq[:]; vq.extend(sv)
        for q in pars: VQ[q].extend([('G', G)] * 2)
    for i in range(NR, 16):
        p(f"s_waitcnt vmcnt({min(need_in(VQ[q], ('P', 2 * i + 2)) for q in pars)})")
        bar('l')
        if i + HL <= 15: issue_pos_par(2 * i + 2 + LEAD, 0 if o.skew else None)
        if not (o.skew and i == 11):
            for G in sched.get(('a', i), []):
                if G < NEARLY: eg(G)
        if i <= 13:
            p(f"s_waitcnt vmcnt({min(need_in(VQ[q], ('P', 2 * i + 3)) for q in pars)})")
            bar('l')
            if o.skew and i <= 11: issue_pos_par(2 * i + 10, 1)
            if o.skew and i == 11:
                for G in sched.get(('a', i), []):
                    if G < NEARLY: eg(G)
            for G in sched.get(('b', i), []):
                if G < NEARLY: eg(G)
    p(f"""
    s_mov_b32 s{rO}, s{sWs}
    s_mov_b32 s{rO+1}, s{sWs+1}
    s_mov_b32 s{rO+2}, {WS_SIZE}
    s_mov_b32 s{rO+3}, 0x20000
    """)
    bar('l')
    p(f"""
    s_cmp_eq_u32 s{sWave}, 7
    s_cbranch_scc0 K1_NON2
    s_waitcnt vmcnt(0)
    s_mov_b32 s{sT2}, 0
    """)
    p.label("K1_NONP")
    p(f"""
    v_readfirstlane_b32 s{sT0}, v{vNon}
    s_add_u32 s{sT2}, s{sT2}, 1
    s_cmp_lg_u32 s{sT0}, 0
    s_cbranch_scc1 K1_NONOK
    s_cmp_lt_u32 s{sT2}, {SPIN}
    s_cbranch_scc0 K1_NONOK
    v_mov_b32 v8, 0
    global_load_dwordx2 v[{vNon}:{vNon+1}], v8, s[{sDbg}:{sDbg+1}] sc1
    s_waitcnt vmcnt(0)
    s_branch K1_NONP
    """)
    p.label("K1_NONOK")
    p(f"""
    v_mov_b32 v6, {NONL}
    ds_write_b64 v6, v[{vNon}:{vNon+1}]
    s_and_b32 s{sT0}, s{sWg}, 0xfc
    s_lshl_b32 s{sT0}, s{sT0}, 7
    s_add_u32 s{sT0}, s{sT0}, {WS_FLAG}
    v_and_b32 v12, 3, v{vL}
    v_lshlrev_b32 v13, 7, v12
    buffer_load_dword v11, v13, s[{rO}:{rO+3}], s{sT0} offen sc1
    s_waitcnt lgkmcnt(0)
    """)
    p.label("K1_NON2")
    bar('l')
    p(f"""
    v_mov_b32 v6, {NONL}
    ds_read_b64 v[8:9], v6
    s_cmp_eq_u32 s{sWave}, 7
    s_cbranch_scc0 K1_RDY
    s_waitcnt vmcnt(0)
    v_cmp_eq_u32 vcc, v11, v{vNon}
    v_cmp_eq_u32 s[58:59], s{sJj}, v12
    s_or_b64 vcc, vcc, s[58:59]
    s_cmp_eq_u64 vcc, -1
    s_cselect_b32 s{sT0}, {1 if o.fast else 0}, 0
    v_mov_b32 v12, s{sT0}
    v_mov_b32 v6, {NONL+8}
    ds_write_b32 v6, v12
    """)
    p.label("K1_RDY")
    if o.e3:
        bar('l')
        for G in range(NEARLY, 16): early_group(G)
    p("s_branch K1_TAIL")

    p.label("K1_COMPUTE")
    p(f"""
    s_and_b32 s{sQh}, s{sWave}, 1
    s_lshr_b32 s{sKh}, s{sWave}, 1
    s_mov_b32 s{sC}, 0x{f32bits(SCALE_LOG2E):08x}
    v_lshl_add_u32 v8, v6, 3, v4
    v_lshlrev_b32 v8, 8, v8
    v_lshrrev_b32 v9, 1, v5
    v_lshl_add_u32 v8, v9, 3, v8
    v_and_b32 v9, 1, v3
    v_lshlrev_b32 v9, 1, v9
    v_and_b32 v2, 1, v5
    v_add_u32 v9, v9, v2
    v_lshlrev_b32 v2, 2, v4
    s_lshl_b32 s{sT0}, s{sKh}, 3
    """)
    for a in range(2):
        p(f"""
        v_add_u32 v19, s{sT0}, v9
        v_xor_b32 v19, v19, v2
        v_lshl_add_u32 v{vLW+a}, v19, 4, v8
        s_add_u32 s{sT0}, s{sT0}, 4
        """)
    p(f"""
    s_lshl_b32 s{sT0}, s{sQh}, 5
    v_add_u32 v8, s{sT0}, v7
    v_lshrrev_b32 v9, 1, v8
    v_and_b32 v9, 7, v9
    v_xor_b32 v9, v9, v6
    v_lshlrev_b32 v9, 4, v9
    v_lshl_add_u32 v{vLX}, v8, 7, v9
    s_lshl_b32 s{sT0}, s{sKh}, 5
    v_add_u32 v8, s{sT0}, v7
    v_and_b32 v9, 15, v8
    v_xor_b32 v9, v9, v6
    v_lshlrev_b32 v9, 4, v9
    v_lshl_add_u32 v{vLK}, v8, 8, v9
    v_lshl_add_u32 v8, v6, 2, v4
    v_add_u32 v8, s{sT0}, v8
    v_lshlrev_b32 v8, 8, v8
    v_and_b32 v9, 1, v5
    v_lshl_add_u32 v8, v9, 3, v8
    v_and_b32 v9, 1, v3
    v_lshlrev_b32 v9, 1, v9
    v_lshrrev_b32 v2, 1, v5
    v_add_u32 v9, v9, v2
    v_lshlrev_b32 v2, 2, v4
    """)
    for a in range(4):
        p(f"""
        s_lshl_b32 s{sT1}, s{sKh}, 1
        s_add_u32 s{sT1}, s{sT1}, {a}
        s_and_b32 s{sT1}, s{sT1}, 3
        s_lshl_b32 s{sT1}, s{sT1}, 2
        v_add_u32 v19, s{sT1}, v9
        v_xor_b32 v19, v19, v2
        v_lshl_add_u32 v{vLV+a}, v19, 4, v8
        """)
    for i in range(32):
        p(f"v_mov_b32 v{vS[0]+i}, 0")
    p(f"""
    v_mov_b32 v{vM}, 0xf149f2ca
    v_mov_b32 v{vThr}, 0xf149f2ca
    v_mov_b32 v{vL0}, 0
    v_mov_b32 v{vL1}, 0
    """)
    def wo_voffs():
        p(f"""
        s_movk_i32 s{sT0}, 3641
        s_movk_i32 s{sT1}, 1152
        """)
        for i in range(9):
            p(f"""
            v_add_u32 v2, {64*i}, v{vL}
            v_mul_u32_u24 v3, s{sT0}, v2
            v_lshrrev_b32 v3, 16, v3
            v_mul_u32_u24 v4, 18, v3
            v_sub_u32 v4, v2, v4
            v_mul_u32_u24 v3, s{sT1}, v3
            v_lshl_add_u32 v3, v4, 4, v3
            v_subrev_u32 v{vOff+i}, {(i%4)*1024}, v3
            """)
    wo_voffs()
    p("s_waitcnt lgkmcnt(0)")
    stamp(p, o, 0)
    A0 = vKA
    def q_phase(c, reads):
        f = QB[(c - 1) % 2]
        rd = list(reads)
        for ks in range(4):
            for a in range(2):
                if c >= 1:
                    p(f"{MF} {rg(vS[a],16)}, {rg(f+12*ks+4*a,4)}, {rg(f+12*ks+8,4)}, {rg(vS[a],16)}")
                for _ in range(3 if a == 0 else 2):
                    if rd: p(rd.pop(0))
        for r_ in rd: p(r_)
    for c in range(9):
        qs = QS[c % 4]
        f = QB[c % 2]
        p(f"""
        v_add_u32 v{A0}, {qs}, v{vLW}
        v_add_u32 v{A0+1}, {qs}, v{vLW+1}
        v_add_u32 v{A0+2}, {qs+16384}, v{vLX}
        v_xor_b32 v{A0+3}, 32, v{A0+2}
        v_xor_b32 v{A0+4}, 64, v{A0+2}
        v_xor_b32 v{A0+5}, 96, v{A0+2}
        s_waitcnt lgkmcnt(0)
        """)
        bar('c')
        if c == 0: stamp(p, o, 1)
        reads = []
        for ks in range(4):
            for a in range(2):
                reads.append(f"ds_read_b64_tr_b16 {rg(f+12*ks+4*a,2)}, v{A0+a} offset:{ks*4096}")
                reads.append(f"ds_read_b64_tr_b16 {rg(f+12*ks+4*a+2,2)}, v{A0+a} offset:{ks*4096+1024}")
            reads.append(f"ds_read_b128 {rg(f+12*ks+8,4)}, v{A0+2+ks}")
        q_phase(c, reads)
    p("s_waitcnt lgkmcnt(0)")
    bar('c')
    q_phase(9, [])
    stamp(p, o, 2)
    p(f"""
    s_lshl_b32 s{sT0}, s{sQh}, 13
    s_add_u32 s{sT0}, s{sT0}, {QX}
    s_lshl_b32 s{sT1}, s{sKh}, 12
    s_add_u32 s{sT1}, s{sT1}, s{sT0}
    v_lshlrev_b32 v2, 4, v{vL}
    v_add_u32 v3, s{sT1}, v2
    v_add_u32 v2, s{sT0}, v2
    """)
    p(f"v_mov_b32 v{vKA}, v{vLK}")
    for s in range(1, 8):
        p(f"v_xor_b32 v{vKA+s}, {s<<5}, v{vLK}")
    for i in range(64):
        p(f"v_mov_b32 v{vO+i}, 0")
    for a in range(2):
        for j in range(8):
            p(f"v_cvt_pk_bf16_f32 v{vVf+8*a+j}, v{vS[a]+2*j}, v{vS[a]+2*j+1}")
    for k in range(4):
        p(f"ds_write_b128 v3, {rg(vVf+4*k,4)} offset:{k*1024}")
    p("s_waitcnt lgkmcnt(0)")
    bar('c')
    for s in range(8):
        p(f"ds_read_b128 {rg(vQ+4*s,4)}, v2 offset:{s*1024}")

    def k_addrs(sreg):
        p(f"v_add_u32 v{vKA}, s{sreg}, v{vLK}")
        for s in range(1, 8):
            p(f"v_xor_b32 v{vKA+s}, {s<<5}, v{vKA}")
    def v_addrs(sreg):
        for a in range(4):
            p(f"v_add_u32 v{vVA+a}, s{sreg}, v{vLV+a}")
    def adv2(s):
        p(f"""
        s_add_u32 s{s}, s{s}, {2*SLOT}
        s_cmp_ge_u32 s{s}, {NSLOT*SLOT}
        s_cselect_b32 s{sT0}, {NSLOT*SLOT}, 0
        s_sub_u32 s{s}, s{s}, s{sT0}
        """)
    def tmax(S):
        p(f"""
        v_max3_f32 v2, v{S}, v{S+1}, v{S+2}
        v_max3_f32 v3, v{S+3}, v{S+4}, v{S+5}
        v_max3_f32 v2, v2, v{S+6}, v{S+7}
        v_max3_f32 v3, v3, v{S+8}, v{S+9}
        v_max3_f32 v2, v2, v{S+10}, v{S+11}
        v_max3_f32 v3, v3, v{S+12}, v{S+13}
        v_max3_f32 v2, v2, v{S+14}, v{S+15}
        v_max_f32 v2, v2, v3
        v_mov_b32 v3, v2
        s_nop 1
        v_permlane32_swap_b32 v2, v3
        v_max_f32 v2, v2, v3
        v_mul_f32 v{vTn}, s{sC}, v2
        """)
    p("s_waitcnt lgkmcnt(0)")
    bar('c')
    stamp(p, o, 3)
    for s in range(8):
        p(f"ds_read_b128 {rg(vKf+4*s,4)}, v{vKA+s}")
    p(f"s_mov_b32 s{sRK}, {S_[1]}")
    k_addrs(sRK)
    p("s_waitcnt lgkmcnt(0)")
    bar('c')
    for s in range(8):
        c = '0' if s == 0 else rg(vS[0], 16)
        p(f"{MF} {rg(vS[0],16)}, {rg(vKf+4*s,4)}, {rg(vQ+4*s,4)}, {c}")
    for s in range(8):
        p(f"ds_read_b128 {rg(vKf+4*s,4)}, v{vKA+s}")
    p(f"""
    s_mov_b32 s{sRV}, {S_[2]}
    s_mov_b32 s{sRK}, {S_[3]}
    s_mov_b32 s{sCnt}, 0
    """)
    v_addrs(sRV)
    k_addrs(sRK)
    tmax(vS[0])

    def alpha(tag, cur, do_qk):
        S, Sn = vS[cur], vS[1 - cur]
        p("s_waitcnt lgkmcnt(0)")
        p("s_barrier")
        p(f"""
        v_cmp_gt_f32 vcc, v{vTn}, v{vThr}
        s_cbranch_vccnz K1_RS{tag}
        """)
        p.label(f"K1_BK{tag}")
        reads = [(a, ks, h) for a in range(4) for ks in range(2) for h in range(2)]
        for j in range(8):
            if do_qk:
                c = '0' if j == 0 else rg(Sn, 16)
                p(f"{MF} {rg(Sn,16)}, {rg(vKf+4*j,4)}, {rg(vQ+4*j,4)}, {c}")
            for (a, ks, h) in reads[2*j:2*j+2]:
                f = vVf + (a * 2 + ks) * 4 + 2 * h
                p(f"ds_read_b64_tr_b16 {rg(f,2)}, v{vVA+a} offset:{ks*4096+h*2048}")
            p(f"v_fma_f32 v{S+2*j}, v{S+2*j}, s{sC}, -v{vM}")
            p(f"v_fma_f32 v{S+2*j+1}, v{S+2*j+1}, s{sC}, -v{vM}")
            p(f"v_exp_f32 v{S+2*j}, v{S+2*j}")
            p(f"v_exp_f32 v{S+2*j+1}, v{S+2*j+1}")
            if j >= 1:
                k = j - 1
                p(f"v_cvt_pk_bf16_f32 v{vP+k}, v{S+2*k}, v{S+2*k+1}")
                p(f"v_add_f32 v{vL0}, v{vL0}, v{S+2*k}")
                p(f"v_add_f32 v{vL1}, v{vL1}, v{S+2*k+1}")
        p(f"v_cvt_pk_bf16_f32 v{vP+7}, v{S+14}, v{S+15}")
        p(f"v_add_f32 v{vL0}, v{vL0}, v{S+14}")
        p(f"v_add_f32 v{vL1}, v{vL1}, v{S+15}")

    def beta(tag, cur, read_k, do_tmax, barrier=True):
        Sn = vS[1 - cur]
        p("s_waitcnt lgkmcnt(0)")
        if barrier: p("s_barrier")
        n = 0
        for a in range(4):
            for ks in range(2):
                f = vVf + (a * 2 + ks) * 4
                p(f"{MF} {rg(vO+16*a,16)}, {rg(f,4)}, {rg(vP+4*ks,4)}, {rg(vO+16*a,16)}")
                if read_k:
                    p(f"ds_read_b128 {rg(vKf+4*n,4)}, v{vKA+n}")
                if n == 0:
                    adv2(sRV); adv2(sRK)
                if n == 1 and do_tmax:
                    tmax(Sn)
                if n == 3: v_addrs(sRV)
                n += 1
        k_addrs(sRK)

    def rescale(tag):
        p.label(f"K1_RS{tag}")
        p(f"""
        v_max_f32 v3, v{vTn}, v{vM}
        v_sub_f32 v4, v{vM}, v3
        v_exp_f32 v4, v4
        v_mov_b32 v{vM}, v3
        v_add_f32 v{vThr}, 0x41000000, v3
        """)
        p(f"v_mul_f32 v{vL0}, v{vL0}, v4")
        p(f"v_mul_f32 v{vL1}, v{vL1}, v4")
        for i in range(64):
            p(f"v_mul_f32 v{vO+i}, v{vO+i}, v4")
        p(f"s_branch K1_BK{tag}")

    p.label("K1_LOOP")
    alpha('L0', 0, True)
    beta('L0', 0, True, True)
    alpha('L1', 1, True)
    beta('L1', 1, True, True)
    p(f"""
    s_add_u32 s{sCnt}, s{sCnt}, 1
    s_cmp_lt_u32 s{sCnt}, 7
    s_cbranch_scc1 K1_LOOP
    """)
    nbar['c'] += 28
    stamp(p, o, 4)
    alpha('A', 0, True); nbar['c'] += 1
    beta('A', 0, False, True, barrier=False)
    alpha('B', 1, False); nbar['c'] += 1
    p("s_waitcnt lgkmcnt(0)")
    for a in (2, 3, 0, 1):
        for ks in range(2):
            f = vVf + (a * 2 + ks) * 4
            p(f"{MF} {rg(vO+16*a,16)}, {rg(f,4)}, {rg(vP+4*ks,4)}, {rg(vO+16*a,16)}")
    stamp(p, o, 5)
    vS0 = vS[0]
    p(f"""
    v_add_f32 v{vL0}, v{vL0}, v{vL1}
    v_mov_b32 v{vL1}, v{vL0}
    s_nop 1
    v_permlane32_swap_b32 v{vL0}, v{vL1}
    v_add_f32 v{vThr}, v{vL0}, v{vL1}
    v_and_b32 v7, 31, v{vL}
    v_lshlrev_b32 v7, 3, v7
    s_lshl_b32 s{sT0}, s{sWave}, 8
    s_add_u32 s{sT0}, s{sT0}, {STAT}
    s_xor_b32 s{sT1}, s{sWave}, 2
    s_lshl_b32 s{sT1}, s{sT1}, 8
    s_add_u32 s{sT1}, s{sT1}, {STAT}
    v_add_u32 v2, s{sT0}, v7
    v_add_u32 v7, s{sT1}, v7
    v_lshlrev_b32 v3, 4, v{vL}
    s_xor_b32 s{sT1}, s{sWave}, 2
    s_lshl_b32 s{sT1}, s{sT1}, 13
    s_add_u32 s{sT1}, s{sT1}, {EX}
    s_lshl_b32 s{sT0}, s{sWave}, 13
    s_add_u32 s{sT0}, s{sT0}, {EX}
    v_add_u32 v4, s{sT1}, v3
    v_add_u32 v5, s{sT0}, v3
    s_mov_b32 s{rO}, s{sWs}
    s_mov_b32 s{rO+1}, s{sWs+1}
    s_mov_b32 s{rO+2}, {WS_SIZE}
    s_mov_b32 s{rO+3}, 0x20000
    """)
    wo_srd()
    bar('c')
    stamp(p, o, 'e1')
    p(f"ds_write_b64 v2, v[{vM}:{vM+1}]")
    for a in (2, 3):
        for g in range(4):
            p(f"ds_write_b128 v4, {rg(vO+16*a+4*g,4)} offset:{(a-2)*4096+g*1024}")
    p("s_waitcnt lgkmcnt(0)")
    stamp(p, o, 'e2')
    bar('c')
    stamp(p, o, 'e3')
    p(f"ds_read_b64 v[{vS0}:{vS0+1}], v7")
    for a in range(2):
        for g in range(4):
            p(f"ds_read_b128 {rg(vO+32+16*a+4*g,4)}, v5 offset:{a*4096+g*1024}")
    p(f"""
    v_mov_b32 v6, {NONL}
    ds_read_b64 v[8:9], v6
    s_waitcnt lgkmcnt(9)
    v_max_f32 v2, v{vM}, v{vS0}
    v_sub_f32 v3, v{vM}, v2
    v_sub_f32 v4, v{vS0}, v2
    v_exp_f32 v3, v3
    v_exp_f32 v4, v4
    v_mul_f32 v5, v3, v{vThr}
    v_fmac_f32 v5, v4, v{vS0+1}
    v_rcp_f32 v6, v5
    v_mul_f32 v3, v3, v6
    v_mul_f32 v4, v4, v6
    """)
    for i in range(32):
        p(f"v_mul_f32 v{vO+i}, v{vO+i}, v3")
    for a in range(2):
        p(f"s_waitcnt lgkmcnt({5-4*a})")
        for i in range(16):
            p(f"v_fmac_f32 v{vO+16*a+i}, v{vO+32+16*a+i}, v4")
    if o.e3:
        bar('c')
    order = [0, 2, 1, 3]
    for a in range(2):
        for idx, g in enumerate(order):
            p(f"v_cvt_pk_bf16_f32 v{vKf+8*a+2*idx}, v{vO+16*a+4*g}, v{vO+16*a+4*g+1}")
            p(f"v_cvt_pk_bf16_f32 v{vKf+8*a+2*idx+1}, v{vO+16*a+4*g+2}, v{vO+16*a+4*g+3}")
    stamp(p, o, 'e4')
    p(f"""
    v_and_b32 v2, 15, v{vL}
    v_lshrrev_b32 v3, 5, v{vL}
    v_lshl_add_u32 v2, v3, 4, v2
    v_lshlrev_b32 v2, 4, v2
    v_bfe_u32 v3, v{vL}, 4, 1
    v_lshl_add_u32 v2, v3, 12, v2
    s_lshl_b32 s{sT0}, s{sWg}, 14
    s_lshl_b32 s{sT1}, s{sQh}, 13
    s_add_u32 s{sT0}, s{sT0}, s{sT1}
    s_lshl_b32 s{sT1}, s{sKh}, 11
    s_add_u32 s{sT0}, s{sT0}, s{sT1}
    """)
    for a in range(2):
        p(f"buffer_store_dwordx4 {rg(vKf+8*a,4)}, v2, s[{rO}:{rO+3}], s{sT0} offen offset:{a*1024} sc1")
        p(f"buffer_store_dwordx4 {rg(vKf+8*a+4,4)}, v2, s[{rO}:{rO+3}], s{sT0} offen offset:{a*1024+512} sc1")
    assert nbar['c'] == nbar['l'], nbar
    print('barriers', nbar, file=sys.stderr)
    p.label("K1_TAIL")
    if o.prio: p("s_setprio 0")
    tail(p, o, locals())
    for tag in ('L0', 'L1', 'A', 'B'):
        rescale(tag)
    p.label("K1_END")
    p("s_endpgm")
    return p

def tail(p, o, L):
    g = lambda n: L[n]
    sWave, sB, sXc, sJj, sWg, sT0, sT1, sT2 = g('sWave'), g('sB'), g('sXc'), g('sJj'), g('sWg'), g('sT0'), g('sT1'), g('sT2')
    rO, rW, rX, sN, sTag, sOut, sWs = g('rO'), g('rW'), g('rX'), g('sN'), g('sTag'), g('sOut'), g('sWs')
    vL, vOff, wo_addr, NEARLY, NONL, wo_voffs = g('vL'), g('vOff'), g('wo_addr'), g('NEARLY'), g('NONL'), g('wo_voffs')
    sQt, sKh2 = 40, 41
    vAcc, vB, vF, vLA, vAd = 28, 64, 96, 19, 20
    sFast = 52
    p(f"""
    s_cmp_lt_u32 s{sWave}, 4
    s_cbranch_scc0 T_E4L
    s_waitcnt vmcnt(0) lgkmcnt(0)
    s_branch T_E4
    """)
    p.label("T_E4L")
    p("s_waitcnt lgkmcnt(0)")
    p.label("T_E4")
    p(f"""
    v_readfirstlane_b32 s{sN}, v8
    v_readfirstlane_b32 s{sN+1}, v9
    s_barrier
    """)
    if o.stamps: stamp(p, o, 6)
    def b_loads():
        p(f"""
        s_and_b32 s{sT0}, s{sWg}, 0xfc
        s_lshl_b32 s{sT1}, s{sKh2}, 1
        s_add_u32 s{sT0}, s{sT0}, s{sT1}
        s_lshl_b32 s{sT0}, s{sT0}, 14
        s_lshl_b32 s{sT1}, s{sQt}, 12
        s_add_u32 s{sT0}, s{sT0}, s{sT1}
        s_add_u32 s{sT1}, s{sT0}, 16384
        """)
        for kk in range(8):
            p(f"buffer_load_dwordx4 {rg(vB+4*kk,4)}, v5, s[{rO}:{rO+3}], s{sT0 if kk < 4 else sT1} offen offset:{(kk&3)*1024} sc1")
    p(f"""
    s_and_b32 s{sQt}, s{sWave}, 3
    s_lshr_b32 s{sKh2}, s{sWave}, 2
    v_lshlrev_b32 v5, 4, v{vL}
    v_mov_b32 v6, {NONL+8}
    ds_read_b32 v12, v6
    s_cmp_eq_u32 s{sWave}, 7
    s_cbranch_scc0 T_F0
    v_mov_b32 v9, s{sN}
    s_lshl_b32 s{sT0}, s{sWg}, 7
    s_add_u32 s{sT0}, s{sT0}, {WS_FLAG}
    v_mov_b32 v3, 0
    v_cmp_eq_u32 vcc, 0, v{vL}
    s_and_saveexec_b64 s[58:59], vcc
    buffer_store_dword v9, v3, s[{rO}:{rO+3}], s{sT0} offen sc1
    s_mov_b64 exec, s[58:59]
    """)
    p.label("T_F0")
    p(f"""
    s_waitcnt lgkmcnt(0)
    v_readfirstlane_b32 s{sFast}, v12
    s_cmp_eq_u32 s{sFast}, 0
    s_cbranch_scc1 T_SLOW
    """)
    b_loads()
    p.label("T_SLOW")
    p(f"""
    s_cmp_eq_u32 s{sWave}, 7
    s_cbranch_scc0 T_NOFLAG
    s_cmp_eq_u32 s{sFast}, 0
    s_cbranch_scc0 T_SETUP
    s_and_b32 s{sT0}, s{sWg}, 0xfc
    s_lshl_b32 s{sT0}, s{sT0}, 7
    s_add_u32 s{sT0}, s{sT0}, {WS_FLAG}
    v_and_b32 v8, 3, v{vL}
    v_lshlrev_b32 v8, 7, v8
    s_mov_b32 s{sT1}, 0
    buffer_load_dword v10, v8, s[{rO}:{rO+3}], s{sT0} offen sc1
    buffer_load_dword v11, v8, s[{rO}:{rO+3}], s{sT0} offen sc1
    """)
    p("s_branch T_SETUP")
    p.label("T_NOFLAG")
    p.label("T_SETUP")
    if not o.e3:
        p("s_barrier")
        nlate = 16 - NEARLY
        p(f"""
        s_cmp_lt_u32 s{sWave}, {min(nlate, 4)}
        s_cbranch_scc0 T_NOLATE
        """)
        for rep in range((nlate + 3) // 4):
            if rep > 0:
                p(f"s_cmp_lt_u32 s{sWave}, {nlate - 4*rep}")
                p("s_cbranch_scc0 T_NOLATE")
            p(f"s_add_u32 s{sT2}, s{sWave}, {NEARLY + 4*rep}")
            p(f"""
            s_mul_i32 s{sT1}, s{sT2}, 9216
            s_add_u32 s{sT0}, s{sT1}, 49152
            s_sub_u32 s{sT1}, s{sT1}, {12*9216}
            s_cmp_lt_u32 s{sT2}, 12
            s_cselect_b32 s{sT1}, s{sT0}, s{sT1}
            s_mul_i32 s{sT0}, s{sT2}, 36864
            """)
            for i in range(9):
                if i % 4 == 0:
                    p(f"s_add_u32 m0, s{sT1}, {(i//4)*4096}")
                p(f"buffer_load_dwordx4 v{vOff+i}, s[{rW}:{rW+3}], s{sT0} offen offset:{(i%4)*1024} lds")
    p.label("T_NOLATE")
    p(f"""
    v_lshrrev_b32 v2, 4, v{vL}
    v_and_b32 v3, 15, v{vL}
    v_lshrrev_b32 v4, 2, v3
    v_and_b32 v6, 3, v3
    v_lshl_add_u32 v2, v2, 2, v4
    v_mul_u32_u24 v2, 288, v2
    v_lshl_add_u32 v{vLA}, v6, 3, v2
    s_and_b32 s{sTag}, s{sN}, 0xfff
    s_lshr_b32 s{sTag+1}, s{sN}, 12
    s_and_b32 s{sTag+1}, s{sTag+1}, 0xfff
    s_lshr_b32 s{sTag+2}, s{sN}, 24
    s_lshl_b32 s{sT2}, s{sN+1}, 8
    s_or_b32 s{sTag+2}, s{sTag+2}, s{sT2}
    s_and_b32 s{sTag+2}, s{sTag+2}, 0xfff
    s_lshr_b32 s{sTag+3}, s{sN+1}, 4
    s_and_b32 s{sTag+3}, s{sTag+3}, 0xfff
    v_mov_b32 v7, 0xfffff000
    """)
    for i in range(36):
        p(f"v_mov_b32 v{vAcc+i}, 0")
    p(f"""
    s_cmp_eq_u32 s{sWave}, 7
    s_cbranch_scc0 T_NOPOLL
    s_cmp_eq_u32 s{sFast}, 0
    s_cbranch_scc0 T_NOPOLL
    s_and_b32 s{sT0}, s{sWg}, 0xfc
    s_lshl_b32 s{sT0}, s{sT0}, 7
    s_add_u32 s{sT0}, s{sT0}, {WS_FLAG}
    s_mov_b32 s{sT1}, 0
    """)
    p.label("T_POLL1")
    p(f"""
    s_waitcnt vmcnt(1)
    v_cmp_ne_u32 vcc, v10, v9
    s_cbranch_vccz T_NOPOLL
    buffer_load_dword v10, v8, s[{rO}:{rO+3}], s{sT0} offen sc1
    s_add_u32 s{sT1}, s{sT1}, 1
    s_waitcnt vmcnt(1)
    v_cmp_ne_u32 vcc, v11, v9
    s_cbranch_vccz T_NOPOLL
    buffer_load_dword v11, v8, s[{rO}:{rO+3}], s{sT0} offen sc1
    s_cmp_lt_u32 s{sT1}, {SPIN}
    s_cbranch_scc1 T_POLL1
    """)
    p.label("T_NOPOLL")
    p(f"""
    s_waitcnt vmcnt(0)
    s_barrier
    """)
    if o.stamps: stamp(p, o, 7)
    p(f"s_cmp_eq_u32 s{sFast}, 0")
    p("s_cbranch_scc0 T_BDONE")
    b_loads()
    p.label("T_BDONE")
    if o.gopt: gemm_opt(p, vAcc, vB, vF, vAd, vLA, sKh2, sT2, wo_addr)
    else: gen9.gemm_body(p, vAcc, vB, vF, vAd, vLA, sKh2, sT2, wo_addr, [0, 1, 2, 3, 4], [5, 6, 7, 8], True)
    if o.stamps: stamp(p, o, 8)
    p(f"""
    s_barrier
    s_mul_i32 s{sT0}, s{sQt}, 9216
    v_add_u32 v2, s{sT0}, v5
    s_cmp_eq_u32 s{sKh2}, 0
    s_cbranch_scc0 T_H1
    """)
    for nt in range(5, 9):
        p(f"ds_write_b128 v2, {rg(vAcc+4*nt,4)} offset:{nt*1024}")
    p("s_branch T_H2")
    p.label("T_H1")
    for nt in range(0, 5):
        p(f"ds_write_b128 v2, {rg(vAcc+4*nt,4)} offset:{nt*1024}")
    p.label("T_H2")
    p(f"""
    s_lshl_b32 s{sT0}, s{sXc}, 3
    s_add_u32 s{sT0}, s{sT0}, s{sB}
    s_lshl_b32 s{sT0}, s{sT0}, 2
    s_add_u32 s{sT0}, s{sT0}, s{sJj}
    s_lshl_b32 s{sT0}, s{sT0}, 2
    s_add_u32 s{sT0}, s{sT0}, s{sQt}
    s_mul_i32 s{sT0}, s{sT0}, 9216
    s_add_u32 s{sT0}, s{sT0}, {WS_PART}
    s_waitcnt lgkmcnt(0)
    s_barrier
    s_cmp_eq_u32 s{sKh2}, 0
    s_cbranch_scc0 T_H3
    """)
    def fin(nts):
        for nt in nts:
            p(f"ds_read_b128 {rg(vF+4*nt,4)}, v2 offset:{nt*1024}")
        for idx, nt in enumerate(nts):
            p(f"s_waitcnt lgkmcnt({len(nts)-1-idx})")
            for e in range(4):
                p(f"v_add_f32 v{vAcc+4*nt+e}, v{vAcc+4*nt+e}, v{vF+4*nt+e}")
            for e in range(4):
                p(f"v_and_or_b32 v{vAcc+4*nt+e}, v{vAcc+4*nt+e}, v7, s{sTag+e}")
            p(f"s_add_u32 s{sT1}, s{sT0}, {(nt//4)*4096}")
            p(f"buffer_store_dwordx4 {rg(vAcc+4*nt,4)}, v5, s[{rO}:{rO+3}], s{sT1} offen offset:{(nt%4)*1024} sc1")
    fin(list(range(0, 5)))
    p("s_branch T_H4")
    p.label("T_H3")
    fin(list(range(5, 9)))
    p.label("T_H4")
    if o.stamps: stamp(p, o, 9)
    vX = 100
    p(f"""
    s_cmp_ge_u32 s{sWave}, 5
    s_cbranch_scc1 T_DONE
    v_cmp_gt_u32 vcc, 288, v0
    s_and_saveexec_b64 s[58:59], vcc
    s_mul_i32 s{sT0}, s{sXc}, 288
    v_add_u32 v2, s{sT0}, v0
    v_lshlrev_b32 v3, 4, v2
    s_lshl_b32 s{sT0}, s{sB}, 2
    s_add_u32 s{sT0}, s{sT0}, s{sJj}
    s_mul_i32 s{sT0}, s{sT0}, 36864
    s_add_u32 s{sT0}, s{sT0}, {WS_PART}
    s_mov_b32 s{rX}, s{sOut}
    s_mov_b32 s{rX+1}, s{sOut+1}
    s_mov_b32 s{rX+2}, {512*576*2}
    s_mov_b32 s{rX+3}, 0x20000
    v_lshrrev_b32 v4, 6, v2
    v_mul_u32_u24 v5, 57, v4
    v_lshrrev_b32 v5, 9, v5
    v_mul_u32_u24 v6, 9, v5
    v_sub_u32 v6, v4, v6
    v_and_b32 v4, 15, v2
    v_lshl_add_u32 v4, v5, 4, v4
    s_lshl_b32 s{sT1}, s{sB}, 6
    v_add_u32 v4, s{sT1}, v4
    s_movk_i32 s{sT1}, 1152
    v_mul_u32_u24 v4, s{sT1}, v4
    v_lshlrev_b32 v6, 5, v6
    v_add_u32 v4, v4, v6
    v_bfe_u32 v6, v2, 4, 2
    v_lshl_add_u32 v4, v6, 3, v4
    s_mul_i32 s{sT1}, s{sJj}, 288
    v_add_u32 v4, s{sT1}, v4
    s_mov_b32 s{sT2}, 0
    """)
    if o.prepoll == 1:
            p(f"""
            s_mov_b64 s[56:57], exec
            v_readfirstlane_b32 s{sT1}, v3
            v_mul_u32_u24 v6, {32*36864 // 1024}, v{vL}
            v_lshlrev_b32 v6, 10, v6
            v_add_u32 v6, s{sT1}, v6
            v_mov_b32 v9, s{sTag}
            s_mov_b64 exec, 0xff
            buffer_load_dword v10, v6, s[{rO}:{rO+3}], s{sT0} offen sc1
            buffer_load_dword v11, v6, s[{rO}:{rO+3}], s{sT0} offen sc1
            """)
            p.label("T_PP")
            p(f"""
            s_waitcnt vmcnt(1)
            v_xor_b32 v8, v10, v9
            v_and_b32 v8, 0xfff, v8
            v_cmp_ne_u32 vcc, 0, v8
            s_cbranch_vccz T_PPD
            buffer_load_dword v10, v6, s[{rO}:{rO+3}], s{sT0} offen sc1
            s_add_u32 s{sT2}, s{sT2}, 1
            s_waitcnt vmcnt(1)
            v_xor_b32 v8, v11, v9
            v_and_b32 v8, 0xfff, v8
            v_cmp_ne_u32 vcc, 0, v8
            s_cbranch_vccz T_PPD
            buffer_load_dword v11, v6, s[{rO}:{rO+3}], s{sT0} offen sc1
            s_cmp_lt_u32 s{sT2}, {SPIN}
            s_cbranch_scc1 T_PP
            """)
            p.label("T_PPD")
            p(f"""
            s_mov_b64 exec, s[56:57]
            s_mov_b32 s{sT2}, 0
            """)
    elif o.prepoll == 2:
        p(f"""
        s_cmp_eq_u32 s{sWave}, 0
        s_cbranch_scc0 T_PPD
        s_mov_b64 s[56:57], exec
        s_mul_i32 s{sT1}, s{sXc}, {288*16}
        v_and_b32 v6, 7, v{vL}
        v_mul_u32_u24 v6, {32*36864 // 1024}, v6
        v_lshlrev_b32 v6, 10, v6
        v_add_u32 v6, s{sT1}, v6
        v_lshrrev_b32 v8, 3, v{vL}
        v_mul_u32_u24 v8, {287*16}, v8
        v_add_u32 v6, v6, v8
        v_mov_b32 v9, s{sTag}
        s_mov_b64 exec, 0xffff
        buffer_load_dword v10, v6, s[{rO}:{rO+3}], s{sT0} offen sc1
        """)
        p.label("T_PP")
        p(f"""
        s_waitcnt vmcnt(0)
        v_xor_b32 v8, v10, v9
        v_and_b32 v8, 0xfff, v8
        v_cmp_ne_u32 vcc, 0, v8
        s_cbranch_vccz T_PPE
        buffer_load_dword v10, v6, s[{rO}:{rO+3}], s{sT0} offen sc1
        s_add_u32 s{sT2}, s{sT2}, 1
        s_cmp_lt_u32 s{sT2}, {SPIN}
        s_cbranch_scc1 T_PP
        """)
        p.label("T_PPE")
        p(f"""
        s_mov_b64 exec, s[56:57]
        s_mov_b32 s{sT2}, 0
        """)
        p.label("T_PPD")
        p("s_barrier")
    p.label("T_POLL2")
    p(f"s_mov_b32 s{sT1}, s{sT0}")
    for s in range(8):
        p(f"buffer_load_dwordx4 {rg(vX+4*s,4)}, v3, s[{rO}:{rO+3}], s{sT1} offen sc1")
        if s < 7: p(f"s_add_u32 s{sT1}, s{sT1}, {32*36864}")
    p(f"""
    s_add_u32 s{sT2}, s{sT2}, 1
    v_mov_b32 v6, 0
    """)
    for s in range(8):
        p(f"s_waitcnt vmcnt({7-s})")
        for e in range(0, 4, 2):
            p(f"v_xor_b32 v8, s{sTag+e}, v{vX+4*s+e}")
            p(f"v_xor_b32 v9, s{sTag+e+1}, v{vX+4*s+e+1}")
            p(f"v_or3_b32 v6, v6, v8, v9")
    p(f"""
    v_and_b32 v6, 0xfff, v6
    v_cmp_ne_u32 vcc, 0, v6
    s_cmp_lt_u32 s{sT2}, {SPIN}
    s_cbranch_scc0 T_SUM
    s_cbranch_vccnz T_POLL2
    """)
    p.label("T_SUM")
    for s in range(8):
        for e in range(4):
            p(f"v_and_b32 v{vX+4*s+e}, v7, v{vX+4*s+e}")
    for s in range(1, 8):
        for e in range(4):
            p(f"v_add_f32 v{vX+e}, v{vX+e}, v{vX+4*s+e}")
    p(f"""
    v_cvt_pk_bf16_f32 v8, v{vX}, v{vX+1}
    v_cvt_pk_bf16_f32 v9, v{vX+2}, v{vX+3}
    buffer_store_dwordx2 v[8:9], v4, s[{rX}:{rX+3}], 0 offen{' sc1' if o.outsc else ''}
    s_mov_b64 exec, s[58:59]
    """)
    p.label("T_DONE")
    if o.stamps:
        p("s_waitcnt vmcnt(0)")
        p("s_memrealtime s[90:91]" if o.stamps != 2 else "s_memtime s[90:91]")
        p("s_waitcnt lgkmcnt(0)")
        gen_flush_final(p, o, sWs)
    p("s_branch K1_END")

def gemm_opt(p, vAcc, vB, vF, vAd, vLA, sKh2, sT, wo_addr):
    HA, HB = [0, 1, 2, 3, 4], [5, 6, 7, 8]
    for half in range(2):
        c0, c1 = wo_addr(4 * half), wo_addr(8 + 4 * half)
        for kk in range(4):
            assert wo_addr(4 * half + kk) == c0 + kk * 9216 and wo_addr(8 + 4 * half + kk) == c1 + kk * 9216
        p(f"""
        s_mov_b32 s{sT}, {c1}
        s_cmp_eq_u32 s{sKh2}, 0
        s_cselect_b32 s{sT}, {c0}, s{sT}
        v_add_u32 v{vAd + half}, s{sT}, v{vLA}
        """)
    def reads(kk, half):
        ad = vAd + (kk // 4); off = (kk % 4) * 9216
        for nt in half:
            f = vF + 4 * nt
            p(f"ds_read_b64_tr_b16 {rg(f,2)}, v{ad} offset:{off+nt*32}")
            p(f"ds_read_b64_tr_b16 {rg(f+2,2)}, v{ad} offset:{off+4608+nt*32}")
    def mfmas(kk, half, wait):
        p(wait)
        for nt in half:
            f = vF + 4 * nt
            p(f"{MF16} {rg(vAcc+4*nt,4)}, {rg(f,4)}, {rg(vB+4*kk,4)}, {rg(vAcc+4*nt,4)}")
    reads(0, HA)
    for kk in range(8):
        reads(kk, HB)
        mfmas(kk, HA, f"s_waitcnt vmcnt({7-kk}) lgkmcnt({2*len(HB)})")
        if kk < 7:
            reads(kk + 1, HA)
            mfmas(kk, HB, f"s_waitcnt lgkmcnt({2*len(HA)})")
        else:
            mfmas(kk, HB, "s_waitcnt lgkmcnt(0)")

def emit(o):
    name = 'standalone__gqa_block_cached__near_ridge_kernel'
    p = gen_main(o)
    out = [HDR, "; @launch grid=(256,1,1) block=(512,1,1) lds=163840",
           '.amdgcn_target "amdgcn-amd-amdhsa--gfx950"', '.text']
    n = p.fix_hazards()
    errs = p.lint_waits()
    for e in errs[:20]:
        print(f"LINT: {e}", file=sys.stderr)
    nv, ns = p.max_regs()
    print(f"{name}: {len(p.ins)} instrs, vgpr {nv}, sgpr {ns}, nops inserted {n}", file=sys.stderr)
    out.append(f".globl {name}\n.p2align 8\n.type {name},@function\n{name}:")
    out.append(p.text())
    out.append(kd(name, max(nv, 8), max(ns, 16)))
    return '\n'.join(out) + '\n'

if __name__ == '__main__':
    ap = argparse.ArgumentParser()
    ap.add_argument('-o', default='standalone__gqa_block_cached__near_ridge.s')
    for k, d in OPTS.items():
        ap.add_argument('--' + k, type=int, default=d)
    a = ap.parse_args()
    o = Opt()
    for k in OPTS:
        setattr(o, k, getattr(a, k))
    open(a.o, 'w').write(emit(o))
```

```python
import sys, argparse
from asmlib import Prog
import gen
from gen import f32bits, SCALE_LOG2E, kd, HEADER
from gen import stamp as _stamp
import gen9
from gen9 import WS_O, WS_PART, WS_FLAG, WS_SIZE, MF, MF16, rg, SPIN, gen_flush_final

STSETS = {0: {0:0,1:1,2:2,3:3,4:4,5:5,6:6,7:7,8:8,9:9},
          1: {5:0, 'e1':1, 'e2':2, 'e3':3, 'e4':4, 6:5, 7:6, 'g0':7, 8:8, 9:9}}
def stamp(p, o, name):
    m = STSETS[getattr(o, 'stset', 0)]
    if name in m: _stamp(p, o, m[name])

class Opt(gen.Opt):
    pass
OPTS = dict(pk=1, gopt=1, e3=1, prio=0, skew=0, icpf=6, outsc=1, prepoll=1, fast=1, stset=0, nt=1, dbg=0, stamps=0, stampwave=0, wt=1, kdel=5, wotat=7, lead=8, nearly=12)

HDR = """; GQA block: q = x@wq ; softmax(q k^T / sqrt(128)) v ; out = o@wo   (B=8, Sq=64, Hq=32, Hkv=16, Sk=1024, Dh=128, D=576)
;   The launch nonce is published by workgroup 0 in d_debug[0:1] (zero at launch); all cross-workgroup data uses sc1 stores and loads."""

SLOT = 16384
NSLOT = 10

def gen_main(o):
    p = Prog()
    NT = ' nt' if o.nt else ''
    sX, sK, sV, sWq, sWs, sWo = 4, 6, 8, 10, 12, 14
    rK, rV, rW, rX, rO = 16, 20, 24, 28, 32
    sWave, sB, sH, sXc, sQh, sKh = 36, 37, 38, 39, 40, 41
    sRK, sRV, sKoff, sVoff, sCnt, sJj = 42, 43, 44, 45, 46, 47
    sC, sT0, sT1, sT2 = 48, 49, 50, 51
    sLw, sWg, sIss, sL4096, sGof = 53, 54, 55, 56, 57
    sPar, sIssB = 98, 99
    vOa, vOb = 40, 44
    sOut, sDbg, sN, sTag = 80, 82, 84, 86
    vL = 1
    vLW = 10
    vLX = 12
    vLK = 13
    vVA = 14
    vTn = 18
    vNon = 20
    vLV = 24
    vKA = 28
    vM, vThr, vL0, vL1 = 36, 37, 38, 39
    vQ = 40
    vS = [72, 88]
    vP = 104
    vKf = 112
    vVf = 144
    vO = 176
    QB = [112, 176]
    vKo = 10; vVo = 14; vWo = 24; vXo = 28; vWoA, vWoB, vWoC = 30, 31, 32
    vDum = 249
    vOff = 240
    S_ = [i * SLOT for i in range(NSLOT)]
    QS = [139264, 65536, 90112, 114688]
    QX = S_[9]
    lab = [0]
    def nl(s):
        lab[0] += 1
        return f"K1_{s}{lab[0]}"
    nbar = {'c': 0, 'l': 0}
    def bar(who):
        nbar[who] += 1
        p("s_barrier")
    LEAD = o.lead
    assert LEAD in (4, 6, 8) and not (o.skew and LEAD != 8)
    HL = LEAD // 2
    NR = 14 - HL
    POS = []
    for n in range(33):
        if n == 0: POS.append((1, 0))
        elif n % 2 == 1: POS.append((1, (n + 1) // 2))
        else: POS.append((0, (n - 2) // 2))
    NEARLY = o.nearly
    def wo_addr(G): return (49152 + G * 9216) if G < 12 else (G - 12) * 9216
    EX, STAT, NONL = 0, 36864, 38912

    p(f"""
    s_cmp_ge_u32 s2, 256
    s_cbranch_scc1 K1_END
    s_load_dwordx4 s[4:7], s[0:1], 0
    s_load_dwordx4 s[8:11], s[0:1], 16
    s_load_dwordx2 s[12:13], s[0:1], 56
    s_load_dwordx2 s[14:15], s[0:1], 32
    s_load_dwordx4 s[80:83], s[0:1], 40
    """)
    if o.icpf:
        ICL = o.icpf
        p("s_getpc_b64 s[90:91]")
        p.label("K1_PCREF")
        p(f"""
        s_mov_b32 s93, K1_END-K1_PCREF
        v_cmp_gt_u32 vcc, {ICL}, v0
        s_and_saveexec_b64 s[58:59], vcc
        s_cbranch_execz K1_ICD
        s_lshr_b32 s92, s2, 3
        s_mul_i32 s92, s92, {ICL*128}
        v_lshlrev_b32 v2, 7, v0
        v_add_u32 v2, s92, v2
        v_min_u32 v2, s93, v2
        global_load_dword v{vDum}, v2, s[90:91]
        """)
        p.label("K1_ICD")
        p("s_mov_b64 exec, s[58:59]")
    p(f"""
    v_and_b32 v{vL}, 63, v0
    v_lshrrev_b32 v2, 6, v0
    s_and_b32 s{sXc}, s2, 7
    s_lshr_b32 s{sT1}, s2, 3
    v_readfirstlane_b32 s{sWave}, v2
    s_lshr_b32 s{sB}, s{sT1}, 2
    s_and_b32 s{sJj}, s{sT1}, 3
    s_lshl_b32 s{sH}, s{sXc}, 2
    s_add_u32 s{sH}, s{sH}, s{sJj}
    s_lshl_b32 s{sWg}, s{sB}, 5
    s_add_u32 s{sWg}, s{sWg}, s{sH}
    v_and_b32 v2, 15, v{vL}
    v_lshrrev_b32 v3, 4, v{vL}
    v_lshrrev_b32 v4, 2, v2
    v_and_b32 v5, 3, v2
    v_lshrrev_b32 v6, 5, v{vL}
    v_and_b32 v7, 31, v{vL}
    s_cmp_lt_u32 s{sWave}, 4
    s_cbranch_scc1 K1_COMPUTE
    """)

    vq = []
    def vissue(tag, n): vq.extend([tag] * n)
    def vneed(*tags):
        idx = [i for i, t in enumerate(vq) if t in tags]
        if not idx: return 63
        n = len(vq) - 1 - idx[-1]
        del vq[:idx[-1] + 1]
        return min(n, 63)
    if o.prio: p(f"s_setprio {o.prio}")
    p(f"""
    s_and_b32 s{sLw}, s{sWave}, 3
    s_lshl_b32 s{sL4096}, s{sLw}, 12
    v_lshlrev_b32 v8, 2, v3
    v_xor_b32 v8, v8, v2
    v_lshlrev_b32 v8, 4, v8
    v_lshl_add_u32 v{vVo}, v3, 8, v8
    v_lshl_add_u32 v{vWo}, v3, 13, v8
    """)
    for u in range(1, 4):
        p(f"v_add_u32 v{vWo+u}, {u*31744}, v{vWo}")
    p(f"""
    s_lshl_b32 s{sT0}, s{sLw}, 4
    s_movk_i32 s{sT1}, 1152
    """)
    for u in range(2):
        p(f"""
        v_lshrrev_b32 v8, 3, v{vL}
        v_add_u32 v8, s{sT0}, v8
        v_add_u32 v8, {8*u}, v8
        v_mul_lo_u32 v8, v8, s{sT1}
        v_add_u32 v9, {4*u}, v3
        v_and_b32 v9, 7, v9
        v_and_b32 v{vXo+u}, 7, v{vL}
        v_xor_b32 v9, v9, v{vXo+u}
        v_lshl_add_u32 v8, v9, 4, v8
        v_subrev_u32 v{vXo+u}, {u*1024}, v8
        """)
    p("s_waitcnt lgkmcnt(0)")
    stamp(p, o, 0)
    p(f"""
    s_lshl_b32 s{sT0}, s{sH}, 8
    s_add_u32 s{rW}, s{sWq}, s{sT0}
    s_addc_u32 s{rW+1}, s{sWq+1}, 0
    s_sub_u32 s{rW+2}, {576*8192}, s{sT0}
    s_mov_b32 s{rW+3}, 0x20000
    s_mul_i32 s{sT0}, s{sB}, {64*1152}
    s_add_u32 s{rX}, s{sX}, s{sT0}
    s_addc_u32 s{rX+1}, s{sX+1}, 0
    s_mov_b32 s{rX+2}, {64*1152}
    s_mov_b32 s{rX+3}, 0x20000
    """)
    def issue_chunk(c):
        qs = QS[c % 4]
        p(f"""
        s_lshl_b32 s{sT0}, s{sLw}, 17
        s_add_u32 s{sT0}, s{sT0}, {c*524288}
        s_add_u32 m0, s{sL4096}, {qs}
        """)
        for u in range(4):
            p(f"buffer_load_dwordx4 v{vWo+u}, s[{rW}:{rW+3}], s{sT0} offen offset:{u*1024} lds")
        p(f"""
        s_lshr_b32 s{sT1}, s{sL4096}, 1
        s_add_u32 m0, s{sT1}, {qs+16384}
        s_movk_i32 s{sT0}, {c*128}
        """)
        for u in range(2):
            p(f"buffer_load_dwordx4 v{vXo+u}, s[{rX}:{rX+3}], s{sT0} offen offset:{u*1024} lds")
        vissue(('C', c), 6)
    if o.wt:
        p(f"""
        s_cmp_eq_u32 s{sWave}, 4
        s_cbranch_scc0 K1_WT1
        v_lshrrev_b32 v8, 1, v{vL}
        v_and_b32 v9, 1, v{vL}
        v_lshlrev_b32 v8, 13, v8
        v_lshl_add_u32 v8, v9, 7, v8
        s_mul_i32 s{sT0}, s{sB}, {72*8192}
        buffer_load_dword v{vDum}, v8, s[{rW}:{rW+3}], s{sT0} offen
        s_add_u32 s{sT0}, s{sT0}, {32*8192}
        buffer_load_dword v{vDum}, v8, s[{rW}:{rW+3}], s{sT0} offen
        s_add_u32 s{sT0}, s{sT0}, {32*8192}
        v_cmp_gt_u32 vcc, 16, v{vL}
        s_and_saveexec_b64 s[58:59], vcc
        buffer_load_dword v{vDum}, v8, s[{rW}:{rW+3}], s{sT0} offen
        s_mov_b64 exec, s[58:59]
        """)
        p.label("K1_WT1")
        p(f"""
        s_cmp_eq_u32 s{sWave}, 5
        s_cbranch_scc0 K1_WT2
        v_lshlrev_b32 v9, 7, v{vL}
        s_mul_i32 s{sT0}, s{sJj}, 18432
        buffer_load_dword v{vDum}, v9, s[{rX}:{rX+3}], s{sT0} offen
        s_add_u32 s{sT0}, s{sT0}, 8192
        buffer_load_dword v{vDum}, v9, s[{rX}:{rX+3}], s{sT0} offen
        s_add_u32 s{sT0}, s{sT0}, 8192
        v_cmp_gt_u32 vcc, 16, v{vL}
        s_and_saveexec_b64 s[58:59], vcc
        buffer_load_dword v{vDum}, v9, s[{rX}:{rX+3}], s{sT0} offen
        s_mov_b64 exec, s[58:59]
        """)
        p.label("K1_WT2")
    for c in range(4):
        issue_chunk(c)
    p(f"""
    s_cmp_eq_u32 s2, 0
    s_cbranch_scc0 K1_NON
    s_cmp_eq_u32 s{sWave}, 7
    s_cbranch_scc0 K1_NON
    s_memrealtime s[{sN}:{sN+1}]
    s_waitcnt lgkmcnt(0)
    s_or_b32 s{sN}, s{sN}, 1
    v_mov_b32 v8, s{sN}
    v_mov_b32 v9, s{sN+1}
    v_mov_b32 v{vNon}, 0
    v_cmp_eq_u32 vcc, 0, v{vL}
    s_and_saveexec_b64 s[58:59], vcc
    global_store_dwordx2 v{vNon}, v[8:9], s[{sDbg}:{sDbg+1}] sc1
    s_mov_b64 exec, s[58:59]
    """)
    p.label("K1_NON")
    p(f"""
    s_lshl_b32 s{sT0}, s{sB}, 4
    s_lshr_b32 s{sT1}, s{sH}, 1
    s_add_u32 s{sT0}, s{sT0}, s{sT1}
    s_lshl_b32 s{sT0}, s{sT0}, 18
    s_add_u32 s{rK}, s{sK}, s{sT0}
    s_addc_u32 s{rK+1}, s{sK+1}, 0
    s_mov_b32 s{rK+2}, 0x40000
    s_mov_b32 s{rK+3}, 0x20000
    s_add_u32 s{rV}, s{sV}, s{sT0}
    s_addc_u32 s{rV+1}, s{sV+1}, 0
    s_mov_b32 s{rV+2}, 0x40000
    s_mov_b32 s{rV+3}, 0x20000
    s_lshr_b32 s{sT0}, s{sLw}, 1
    s_lshl_b32 s{sT0}, s{sT0}, 17
    s_and_b32 s{sT1}, s{sLw}, 1
    s_lshl_b32 s{sT1}, s{sT1}, 12
    s_add_u32 s{sGof}, s{sT0}, s{sT1}
    """)
    for u in range(4):
        p(f"""
        v_add_u32 v8, {4*u}, v3
        v_xor_b32 v8, v8, v2
        v_lshlrev_b32 v8, 4, v8
        v_lshl_add_u32 v{vKo+u}, v3, 8, v8
        """)
    p(f"""
    s_movk_i32 s{sT0}, 3641
    s_movk_i32 s{sT1}, 1152
    """)
    for k, (reg, addi) in enumerate(((vWoA, 0), (vWoB, 4), (vWoC, None))):
        if addi is None:
            p(f"v_add_u32 v8, {64*8}, v{vL}")
        else:
            p(f"""
            s_add_u32 s{sT2}, s{sLw}, {addi}
            s_lshl_b32 s{sT2}, s{sT2}, 6
            v_add_u32 v8, s{sT2}, v{vL}
            """)
        p(f"""
        v_mul_u32_u24 v9, s{sT0}, v8
        v_lshrrev_b32 v9, 16, v9
        v_mul_u32_u24 v{reg}, 18, v9
        v_sub_u32 v{reg}, v8, v{reg}
        v_mul_u32_u24 v9, s{sT1}, v9
        v_lshl_add_u32 v{reg}, v{reg}, 4, v9
        """)

    for i in range(9): p(f"v_mov_b32 v{vOff+i}, 0")
    def issue_pos(n):
        isK, t = POS[n]
        p(f"""
        s_add_u32 s{sT0}, s{sGof}, {t*8192}
        s_add_u32 m0, s{sL4096}, {S_[n % NSLOT]}
        """)
        for u in range(4):
            if isK: p(f"buffer_load_dwordx4 v{vKo+u}, s[{rK}:{rK+3}], s{sT0} offen offset:{u*1024}{NT} lds")
            else:   p(f"buffer_load_dwordx4 v{vVo}, s[{rV}:{rV+3}], s{sT0} offen offset:{u*1024}{NT} lds")
        vissue(('P', n), 4)
    def wo_srd():
        p(f"""
        s_mul_i32 s{sT0}, s{sXc}, {512*1152}
        s_mul_i32 s{sT1}, s{sJj}, 288
        s_add_u32 s{sT0}, s{sT0}, s{sT1}
        s_add_u32 s{rW}, s{sWo}, s{sT0}
        s_addc_u32 s{rW+1}, s{sWo+1}, 0
        s_sub_u32 s{rW+2}, {4096*1152}, s{sT0}
        s_mov_b32 s{rW+3}, 0x20000
        """)
    def early_group(G):
        base = wo_addr(G)
        p(f"""
        s_lshl_b32 s{sT1}, s{sLw}, 10
        s_add_u32 m0, s{sT1}, {base}
        s_mov_b32 s{sT0}, {G*36864}
        buffer_load_dwordx4 v{vWoA}, s[{rW}:{rW+3}], s{sT0} offen lds
        s_add_u32 m0, s{sT1}, {base+4096}
        s_cmp_eq_u32 s{sLw}, 0
        buffer_load_dwordx4 v{vWoB}, s[{rW}:{rW+3}], s{sT0} offen lds
        """)
        l = nl('EG')
        p(f"s_cbranch_scc0 {l}")
        p(f"s_mov_b32 m0, {base+8192}")
        p(f"buffer_load_dwordx4 v{vWoC}, s[{rW}:{rW+3}], s{sT0} offen lds")
        p.label(l)
        vissue(('G', G), 2)
    def wo_touch():
        l = nl('WOT')
        p(f"""
        s_cmp_eq_u32 s{sWave}, 6
        s_cbranch_scc0 {l}
        s_mul_i32 s{sT0}, s{sXc}, {512*1152}
        s_add_u32 s{rX}, s{sWo}, s{sT0}
        s_addc_u32 s{rX+1}, s{sWo+1}, 0
        s_mov_b32 s{rX+2}, {512*1152}
        s_mov_b32 s{rX+3}, 0x20000
        s_lshr_b32 s{sT0}, s2, 3
        s_mul_i32 s{sT0}, s{sT0}, 18432
        v_lshlrev_b32 v2, 7, v{vL}
        buffer_load_dword v{vDum}, v2, s[{rX}:{rX+3}], s{sT0} offen
        s_add_u32 s{sT0}, s{sT0}, 8192
        buffer_load_dword v{vDum}, v2, s[{rX}:{rX+3}], s{sT0} offen
        s_add_u32 s{sT0}, s{sT0}, 8192
        v_cmp_gt_u32 vcc, 16, v{vL}
        s_and_saveexec_b64 s[58:59], vcc
        buffer_load_dword v{vDum}, v2, s[{rX}:{rX+3}], s{sT0} offen
        s_mov_b64 exec, s[58:59]
        """)
        p.label(l)

    for c in range(9):
        p(f"s_waitcnt vmcnt({vneed(('C', c))})")
        bar('l')
        if c == 0: stamp(p, o, 1)
        if 1 <= c <= 5: issue_chunk(c + 3)
        if c == o.kdel: issue_pos(0); issue_pos(1)
        if c == o.kdel + 1: issue_pos(2); issue_pos(3)
    bar('l')
    for n in range(4, LEAD): issue_pos(n)
    bar('l')
    p(f"s_waitcnt vmcnt({vneed(('P', 0))})")
    bar('l')
    issue_pos(LEAD)
    p(f"s_waitcnt vmcnt({vneed(('P', 1))})")
    bar('l')
    issue_pos(LEAD + 1)
    VQ = {0: list(vq), 1: list(vq)}
    def need_in(q, tag):
        idx = [i for i, t in enumerate(q) if t == tag]
        if not idx: return 63
        n = len(q) - 1 - idx[-1]
        del q[:idx[-1] + 1]
        return min(n, 63)
    Wa, Wb = [], []
    pars = (0, 1) if o.skew else (0,)
    for i in range(NR):
        Wa.append(min(need_in(VQ[q], ('P', 2 * i + 2)) for q in pars))
        for q in pars: VQ[q].extend([('P', 2 * i + 2 + LEAD + q)] * 4)
        Wb.append(min(need_in(VQ[q], ('P', 2 * i + 3)) for q in pars))
        for q in pars: VQ[q].extend([('P', 2 * i + 3 + LEAD - q)] * 4)
    wa, wb = min(Wa), min(Wb)
    print('loader loop waits', Wa, Wb, file=sys.stderr)
    p(f"""
    s_and_b32 s{sPar}, s{sH}, {1 if o.skew else 0}
    s_mov_b32 s{sIss}, {S_[(2+LEAD) % NSLOT]}
    s_mov_b32 s{sIssB}, {S_[(3+LEAD) % NSLOT]}
    s_add_u32 s{sVoff}, s{sGof}, {HL*8192}
    s_add_u32 s{sKoff}, s{sGof}, {(2+HL)*8192}
    s_mov_b32 s{sCnt}, 0
    """)
    for u in range(4):
        p(f"v_mov_b32 v{vOa+u}, v{vVo}")
        p(f"v_mov_b32 v{vOb+u}, v{vKo+u}")
    if o.skew:
        p(f"""
        s_cmp_eq_u32 s{sPar}, 0
        s_cbranch_scc1 K1_PAR0
        s_mov_b32 s{sIss}, {S_[1]}
        s_mov_b32 s{sIssB}, {S_[0]}
        s_add_u32 s{sVoff}, s{sGof}, {6*8192}
        s_add_u32 s{sKoff}, s{sGof}, {4*8192}
        s_mov_b32 s{sT0}, s{rK}
        s_mov_b32 s{sT1}, s{rK+1}
        s_mov_b32 s{rK}, s{rV}
        s_mov_b32 s{rK+1}, s{rV+1}
        s_mov_b32 s{rV}, s{sT0}
        s_mov_b32 s{rV+1}, s{sT1}
        """)
        for u in range(4):
            p(f"v_mov_b32 v{vOa+u}, v{vKo+u}")
            p(f"v_mov_b32 v{vOb+u}, v{vVo}")
        p.label("K1_PAR0")
    def adv_iss(sreg):
        p(f"""
        s_add_u32 s{sreg}, s{sreg}, {2*SLOT}
        s_cmp_ge_u32 s{sreg}, {NSLOT*SLOT}
        s_cselect_b32 s{sT0}, {NSLOT*SLOT}, 0
        s_sub_u32 s{sreg}, s{sreg}, s{sT0}
        """)
    p.label("K1_LLOOP")
    p(f"s_waitcnt vmcnt({wa})")
    p("s_barrier")
    p(f"s_add_u32 m0, s{sIss}, s{sL4096}")
    for u in range(4):
        p(f"buffer_load_dwordx4 v{vOa+u}, s[{rV}:{rV+3}], s{sVoff} offen offset:{u*1024}{NT} lds")
    adv_iss(sIss)
    p(f"s_add_u32 s{sVoff}, s{sVoff}, 8192")
    p(f"s_waitcnt vmcnt({wb})")
    p("s_barrier")
    p(f"s_add_u32 m0, s{sIssB}, s{sL4096}")
    for u in range(4):
        p(f"buffer_load_dwordx4 v{vOb+u}, s[{rK}:{rK+3}], s{sKoff} offen offset:{u*1024}{NT} lds")
    adv_iss(sIssB)
    p(f"s_add_u32 s{sKoff}, s{sKoff}, 8192")
    l = nl('WTT')
    p(f"s_cmp_eq_u32 s{sCnt}, {o.wotat}")
    p(f"s_cbranch_scc0 {l}")
    wo_touch()
    p.label(l)
    p(f"""
    s_add_u32 s{sCnt}, s{sCnt}, 1
    s_cmp_lt_u32 s{sCnt}, {NR}
    s_cbranch_scc1 K1_LLOOP
    """)
    nbar['l'] += 2 * NR
    if o.skew:
        p(f"""
        s_cmp_eq_u32 s{sPar}, 0
        s_cbranch_scc1 K1_PAR2
        s_mov_b32 s{sT0}, s{rK}
        s_mov_b32 s{sT1}, s{rK+1}
        s_mov_b32 s{rK}, s{rV}
        s_mov_b32 s{rK+1}, s{rV+1}
        s_mov_b32 s{rV}, s{sT0}
        s_mov_b32 s{rV+1}, s{sT1}
        """)
        p.label("K1_PAR2")
    wo_srd()
    p(f"""
    s_cmp_eq_u32 s{sWave}, 7
    s_cbranch_scc0 K1_NL
    v_mov_b32 v8, 0
    global_load_dwordx2 v[{vNon}:{vNon+1}], v8, s[{sDbg}:{sDbg+1}] sc1
    """)
    p.label("K1_NL")
    sched0 = {('a', 11): [0], ('b', 11): [1, 2], ('a', 12): [3, 4], ('b', 12): [5, 6], ('a', 13): [7], ('b', 13): [8, 9], ('a', 14): [10, 11]}
    lastv = 15 - HL
    order = [(t, i) for i in range(10, 15) for t in ('a', 'b')]
    sched = {}
    for key in order:
        for G in sched0.get(key, []):
            k2 = key
            if (key[1], key[0]) < (lastv, 'a'): k2 = ('a', lastv)
            sched.setdefault(k2, []).append(G)
    def issue_pos_par(n, par):
        if par is None or not o.skew:
            sv = list(vq); issue_pos(n); del vq[:]; vq.extend(sv)
            for q in pars: VQ[q].extend([('P', n)] * 4)
            return
        l = nl('IP')
        p(f"s_cmp_eq_u32 s{sPar}, {par}")
        p(f"s_cbranch_scc0 {l}")
        sv = list(vq); issue_pos(n); del vq[:]; vq.extend(sv)
        p.label(l)
        VQ[par].extend([('P', n)] * 4)
    def eg(G):
        sv = list(vq); early_group(G); del vq[:]; vq.extend(sv)
        for q in pars: VQ[q].extend([('G', G)] * 2)
    for i in range(NR, 16):
        p(f"s_waitcnt vmcnt({min(need_in(VQ[q], ('P', 2 * i + 2)) for q in pars)})")
        bar('l')
        if i + HL <= 15: issue_pos_par(2 * i + 2 + LEAD, 0 if o.skew else None)
        if not (o.skew and i == 11):
            for G in sched.get(('a', i), []):
                if G < NEARLY: eg(G)
        if i <= 13:
            p(f"s_waitcnt vmcnt({min(need_in(VQ[q], ('P', 2 * i + 3)) for q in pars)})")
            bar('l')
            if o.skew and i <= 11: issue_pos_par(2 * i + 10, 1)
            if o.skew and i == 11:
                for G in sched.get(('a', i), []):
                    if G < NEARLY: eg(G)
            for G in sched.get(('b', i), []):
                if G < NEARLY: eg(G)
    p(f"""
    s_mov_b32 s{rO}, s{sWs}
    s_mov_b32 s{rO+1}, s{sWs+1}
    s_mov_b32 s{rO+2}, {WS_SIZE}
    s_mov_b32 s{rO+3}, 0x20000
    """)
    bar('l')
    p(f"""
    s_cmp_eq_u32 s{sWave}, 7
    s_cbranch_scc0 K1_NON2
    s_waitcnt vmcnt(0)
    s_mov_b32 s{sT2}, 0
    """)
    p.label("K1_NONP")
    p(f"""
    v_readfirstlane_b32 s{sT0}, v{vNon}
    s_add_u32 s{sT2}, s{sT2}, 1
    s_cmp_lg_u32 s{sT0}, 0
    s_cbranch_scc1 K1_NONOK
    s_cmp_lt_u32 s{sT2}, {SPIN}
    s_cbranch_scc0 K1_NONOK
    v_mov_b32 v8, 0
    global_load_dwordx2 v[{vNon}:{vNon+1}], v8, s[{sDbg}:{sDbg+1}] sc1
    s_waitcnt vmcnt(0)
    s_branch K1_NONP
    """)
    p.label("K1_NONOK")
    p(f"""
    v_mov_b32 v6, {NONL}
    ds_write_b64 v6, v[{vNon}:{vNon+1}]
    s_and_b32 s{sT0}, s{sWg}, 0xfc
    s_lshl_b32 s{sT0}, s{sT0}, 7
    s_add_u32 s{sT0}, s{sT0}, {WS_FLAG}
    v_and_b32 v12, 3, v{vL}
    v_lshlrev_b32 v13, 7, v12
    buffer_load_dword v11, v13, s[{rO}:{rO+3}], s{sT0} offen sc1
    s_waitcnt lgkmcnt(0)
    """)
    p.label("K1_NON2")
    bar('l')
    p(f"""
    v_mov_b32 v6, {NONL}
    ds_read_b64 v[8:9], v6
    s_cmp_eq_u32 s{sWave}, 7
    s_cbranch_scc0 K1_RDY
    s_waitcnt vmcnt(0)
    v_cmp_eq_u32 vcc, v11, v{vNon}
    v_cmp_eq_u32 s[58:59], s{sJj}, v12
    s_or_b64 vcc, vcc, s[58:59]
    s_cmp_eq_u64 vcc, -1
    s_cselect_b32 s{sT0}, {1 if o.fast else 0}, 0
    v_mov_b32 v12, s{sT0}
    v_mov_b32 v6, {NONL+8}
    ds_write_b32 v6, v12
    """)
    p.label("K1_RDY")
    if o.e3:
        bar('l')
        for G in range(NEARLY, 16): early_group(G)
    p("s_branch K1_TAIL")

    p.label("K1_COMPUTE")
    p(f"""
    s_and_b32 s{sQh}, s{sWave}, 1
    s_lshr_b32 s{sKh}, s{sWave}, 1
    s_mov_b32 s{sC}, 0x{f32bits(SCALE_LOG2E):08x}
    v_lshl_add_u32 v8, v6, 3, v4
    v_lshlrev_b32 v8, 8, v8
    v_lshrrev_b32 v9, 1, v5
    v_lshl_add_u32 v8, v9, 3, v8
    v_and_b32 v9, 1, v3
    v_lshlrev_b32 v9, 1, v9
    v_and_b32 v2, 1, v5
    v_add_u32 v9, v9, v2
    v_lshlrev_b32 v2, 2, v4
    s_lshl_b32 s{sT0}, s{sKh}, 3
    """)
    for a in range(2):
        p(f"""
        v_add_u32 v19, s{sT0}, v9
        v_xor_b32 v19, v19, v2
        v_lshl_add_u32 v{vLW+a}, v19, 4, v8
        s_add_u32 s{sT0}, s{sT0}, 4
        """)
    p(f"""
    s_lshl_b32 s{sT0}, s{sQh}, 5
    v_add_u32 v8, s{sT0}, v7
    v_lshrrev_b32 v9, 1, v8
    v_and_b32 v9, 7, v9
    v_xor_b32 v9, v9, v6
    v_lshlrev_b32 v9, 4, v9
    v_lshl_add_u32 v{vLX}, v8, 7, v9
    s_lshl_b32 s{sT0}, s{sKh}, 5
    v_add_u32 v8, s{sT0}, v7
    v_and_b32 v9, 15, v8
    v_xor_b32 v9, v9, v6
    v_lshlrev_b32 v9, 4, v9
    v_lshl_add_u32 v{vLK}, v8, 8, v9
    v_lshl_add_u32 v8, v6, 2, v4
    v_add_u32 v8, s{sT0}, v8
    v_lshlrev_b32 v8, 8, v8
    v_and_b32 v9, 1, v5
    v_lshl_add_u32 v8, v9, 3, v8
    v_and_b32 v9, 1, v3
    v_lshlrev_b32 v9, 1, v9
    v_lshrrev_b32 v2, 1, v5
    v_add_u32 v9, v9, v2
    v_lshlrev_b32 v2, 2, v4
    """)
    for a in range(4):
        p(f"""
        s_lshl_b32 s{sT1}, s{sKh}, 1
        s_add_u32 s{sT1}, s{sT1}, {a}
        s_and_b32 s{sT1}, s{sT1}, 3
        s_lshl_b32 s{sT1}, s{sT1}, 2
        v_add_u32 v19, s{sT1}, v9
        v_xor_b32 v19, v19, v2
        v_lshl_add_u32 v{vLV+a}, v19, 4, v8
        """)
    for i in range(32):
        p(f"v_mov_b32 v{vS[0]+i}, 0")
    p(f"""
    v_mov_b32 v{vM}, 0xf149f2ca
    v_mov_b32 v{vThr}, 0xf149f2ca
    v_mov_b32 v{vL0}, 0
    v_mov_b32 v{vL1}, 0
    """)
    def wo_voffs():
        p(f"""
        s_movk_i32 s{sT0}, 3641
        s_movk_i32 s{sT1}, 1152
        """)
        for i in range(9):
            p(f"""
            v_add_u32 v2, {64*i}, v{vL}
            v_mul_u32_u24 v3, s{sT0}, v2
            v_lshrrev_b32 v3, 16, v3
            v_mul_u32_u24 v4, 18, v3
            v_sub_u32 v4, v2, v4
            v_mul_u32_u24 v3, s{sT1}, v3
            v_lshl_add_u32 v3, v4, 4, v3
            v_subrev_u32 v{vOff+i}, {(i%4)*1024}, v3
            """)
    wo_voffs()
    p("s_waitcnt lgkmcnt(0)")
    stamp(p, o, 0)
    A0 = vKA
    def q_phase(c, reads):
        f = QB[(c - 1) % 2]
        rd = list(reads)
        for ks in range(4):
            for a in range(2):
                if c >= 1:
                    p(f"{MF} {rg(vS[a],16)}, {rg(f+12*ks+4*a,4)}, {rg(f+12*ks+8,4)}, {rg(vS[a],16)}")
                for _ in range(3 if a == 0 else 2):
                    if rd: p(rd.pop(0))
        for r_ in rd: p(r_)
    for c in range(9):
        qs = QS[c % 4]
        f = QB[c % 2]
        p(f"""
        v_add_u32 v{A0}, {qs}, v{vLW}
        v_add_u32 v{A0+1}, {qs}, v{vLW+1}
        v_add_u32 v{A0+2}, {qs+16384}, v{vLX}
        v_xor_b32 v{A0+3}, 32, v{A0+2}
        v_xor_b32 v{A0+4}, 64, v{A0+2}
        v_xor_b32 v{A0+5}, 96, v{A0+2}
        s_waitcnt lgkmcnt(0)
        """)
        bar('c')
        if c == 0: stamp(p, o, 1)
        reads = []
        for ks in range(4):
            for a in range(2):
                reads.append(f"ds_read_b64_tr_b16 {rg(f+12*ks+4*a,2)}, v{A0+a} offset:{ks*4096}")
                reads.append(f"ds_read_b64_tr_b16 {rg(f+12*ks+4*a+2,2)}, v{A0+a} offset:{ks*4096+1024}")
            reads.append(f"ds_read_b128 {rg(f+12*ks+8,4)}, v{A0+2+ks}")
        q_phase(c, reads)
    p("s_waitcnt lgkmcnt(0)")
    bar('c')
    q_phase(9, [])
    stamp(p, o, 2)
    p(f"""
    s_lshl_b32 s{sT0}, s{sQh}, 13
    s_add_u32 s{sT0}, s{sT0}, {QX}
    s_lshl_b32 s{sT1}, s{sKh}, 12
    s_add_u32 s{sT1}, s{sT1}, s{sT0}
    v_lshlrev_b32 v2, 4, v{vL}
    v_add_u32 v3, s{sT1}, v2
    v_add_u32 v2, s{sT0}, v2
    """)
    p(f"v_mov_b32 v{vKA}, v{vLK}")
    for s in range(1, 8):
        p(f"v_xor_b32 v{vKA+s}, {s<<5}, v{vLK}")
    for i in range(64):
        p(f"v_mov_b32 v{vO+i}, 0")
    for a in range(2):
        for j in range(8):
            p(f"v_cvt_pk_bf16_f32 v{vVf+8*a+j}, v{vS[a]+2*j}, v{vS[a]+2*j+1}")
    for k in range(4):
        p(f"ds_write_b128 v3, {rg(vVf+4*k,4)} offset:{k*1024}")
    p("s_waitcnt lgkmcnt(0)")
    bar('c')
    for s in range(8):
        p(f"ds_read_b128 {rg(vQ+4*s,4)}, v2 offset:{s*1024}")

    def k_addrs(sreg):
        p(f"v_add_u32 v{vKA}, s{sreg}, v{vLK}")
        for s in range(1, 8):
            p(f"v_xor_b32 v{vKA+s}, {s<<5}, v{vKA}")
    def v_addrs(sreg):
        for a in range(4):
            p(f"v_add_u32 v{vVA+a}, s{sreg}, v{vLV+a}")
    def adv2(s):
        p(f"""
        s_add_u32 s{s}, s{s}, {2*SLOT}
        s_cmp_ge_u32 s{s}, {NSLOT*SLOT}
        s_cselect_b32 s{sT0}, {NSLOT*SLOT}, 0
        s_sub_u32 s{s}, s{s}, s{sT0}
        """)
    def tmax(S):
        p(f"""
        v_max3_f32 v2, v{S}, v{S+1}, v{S+2}
        v_max3_f32 v3, v{S+3}, v{S+4}, v{S+5}
        v_max3_f32 v2, v2, v{S+6}, v{S+7}
        v_max3_f32 v3, v3, v{S+8}, v{S+9}
        v_max3_f32 v2, v2, v{S+10}, v{S+11}
        v_max3_f32 v3, v3, v{S+12}, v{S+13}
        v_max3_f32 v2, v2, v{S+14}, v{S+15}
        v_max_f32 v2, v2, v3
        v_mov_b32 v3, v2
        s_nop 1
        v_permlane32_swap_b32 v2, v3
        v_max_f32 v2, v2, v3
        v_mul_f32 v{vTn}, s{sC}, v2
        """)
    p("s_waitcnt lgkmcnt(0)")
    bar('c')
    stamp(p, o, 3)
    for s in range(8):
        p(f"ds_read_b128 {rg(vKf+4*s,4)}, v{vKA+s}")
    p(f"s_mov_b32 s{sRK}, {S_[1]}")
    k_addrs(sRK)
    p("s_waitcnt lgkmcnt(0)")
    bar('c')
    for s in range(8):
        c = '0' if s == 0 else rg(vS[0], 16)
        p(f"{MF} {rg(vS[0],16)}, {rg(vKf+4*s,4)}, {rg(vQ+4*s,4)}, {c}")
    for s in range(8):
        p(f"ds_read_b128 {rg(vKf+4*s,4)}, v{vKA+s}")
    p(f"""
    s_mov_b32 s{sRV}, {S_[2]}
    s_mov_b32 s{sRK}, {S_[3]}
    s_mov_b32 s{sCnt}, 0
    """)
    v_addrs(sRV)
    k_addrs(sRK)
    tmax(vS[0])

    def alpha(tag, cur, do_qk):
        S, Sn = vS[cur], vS[1 - cur]
        p("s_waitcnt lgkmcnt(0)")
        p("s_barrier")
        p(f"""
        v_cmp_gt_f32 vcc, v{vTn}, v{vThr}
        s_cbranch_vccnz K1_RS{tag}
        """)
        p.label(f"K1_BK{tag}")
        reads = [(a, ks, h) for a in range(4) for ks in range(2) for h in range(2)]
        for j in range(8):
            if do_qk:
                c = '0' if j == 0 else rg(Sn, 16)
                p(f"{MF} {rg(Sn,16)}, {rg(vKf+4*j,4)}, {rg(vQ+4*j,4)}, {c}")
            for (a, ks, h) in reads[2*j:2*j+2]:
                f = vVf + (a * 2 + ks) * 4 + 2 * h
                p(f"ds_read_b64_tr_b16 {rg(f,2)}, v{vVA+a} offset:{ks*4096+h*2048}")
            p(f"v_fma_f32 v{S+2*j}, v{S+2*j}, s{sC}, -v{vM}")
            p(f"v_fma_f32 v{S+2*j+1}, v{S+2*j+1}, s{sC}, -v{vM}")
            p(f"v_exp_f32 v{S+2*j}, v{S+2*j}")
            p(f"v_exp_f32 v{S+2*j+1}, v{S+2*j+1}")
            if j >= 1:
                k = j - 1
                p(f"v_cvt_pk_bf16_f32 v{vP+k}, v{S+2*k}, v{S+2*k+1}")
                p(f"v_add_f32 v{vL0}, v{vL0}, v{S+2*k}")
                p(f"v_add_f32 v{vL1}, v{vL1}, v{S+2*k+1}")
        p(f"v_cvt_pk_bf16_f32 v{vP+7}, v{S+14}, v{S+15}")
        p(f"v_add_f32 v{vL0}, v{vL0}, v{S+14}")
        p(f"v_add_f32 v{vL1}, v{vL1}, v{S+15}")

    def beta(tag, cur, read_k, do_tmax, barrier=True):
        Sn = vS[1 - cur]
        p("s_waitcnt lgkmcnt(0)")
        if barrier: p("s_barrier")
        n = 0
        for a in range(4):
            for ks in range(2):
                f = vVf + (a * 2 + ks) * 4
                p(f"{MF} {rg(vO+16*a,16)}, {rg(f,4)}, {rg(vP+4*ks,4)}, {rg(vO+16*a,16)}")
                if read_k:
                    p(f"ds_read_b128 {rg(vKf+4*n,4)}, v{vKA+n}")
                if n == 0:
                    adv2(sRV); adv2(sRK)
                if n == 1 and do_tmax:
                    tmax(Sn)
                if n == 3: v_addrs(sRV)
                n += 1
        k_addrs(sRK)

    def rescale(tag):
        p.label(f"K1_RS{tag}")
        p(f"""
        v_max_f32 v3, v{vTn}, v{vM}
        v_sub_f32 v4, v{vM}, v3
        v_exp_f32 v4, v4
        v_mov_b32 v{vM}, v3
        v_add_f32 v{vThr}, 0x41000000, v3
        """)
        p(f"v_mul_f32 v{vL0}, v{vL0}, v4")
        p(f"v_mul_f32 v{vL1}, v{vL1}, v4")
        for i in range(64):
            p(f"v_mul_f32 v{vO+i}, v{vO+i}, v4")
        p(f"s_branch K1_BK{tag}")

    p.label("K1_LOOP")
    alpha('L0', 0, True)
    beta('L0', 0, True, True)
    alpha('L1', 1, True)
    beta('L1', 1, True, True)
    p(f"""
    s_add_u32 s{sCnt}, s{sCnt}, 1
    s_cmp_lt_u32 s{sCnt}, 7
    s_cbranch_scc1 K1_LOOP
    """)
    nbar['c'] += 28
    stamp(p, o, 4)
    alpha('A', 0, True); nbar['c'] += 1
    beta('A', 0, False, True, barrier=False)
    alpha('B', 1, False); nbar['c'] += 1
    p("s_waitcnt lgkmcnt(0)")
    for a in (2, 3, 0, 1):
        for ks in range(2):
            f = vVf + (a * 2 + ks) * 4
            p(f"{MF} {rg(vO+16*a,16)}, {rg(f,4)}, {rg(vP+4*ks,4)}, {rg(vO+16*a,16)}")
    stamp(p, o, 5)
    vS0 = vS[0]
    p(f"""
    v_add_f32 v{vL0}, v{vL0}, v{vL1}
    v_mov_b32 v{vL1}, v{vL0}
    s_nop 1
    v_permlane32_swap_b32 v{vL0}, v{vL1}
    v_add_f32 v{vThr}, v{vL0}, v{vL1}
    v_and_b32 v7, 31, v{vL}
    v_lshlrev_b32 v7, 3, v7
    s_lshl_b32 s{sT0}, s{sWave}, 8
    s_add_u32 s{sT0}, s{sT0}, {STAT}
    s_xor_b32 s{sT1}, s{sWave}, 2
    s_lshl_b32 s{sT1}, s{sT1}, 8
    s_add_u32 s{sT1}, s{sT1}, {STAT}
    v_add_u32 v2, s{sT0}, v7
    v_add_u32 v7, s{sT1}, v7
    v_lshlrev_b32 v3, 4, v{vL}
    s_xor_b32 s{sT1}, s{sWave}, 2
    s_lshl_b32 s{sT1}, s{sT1}, 13
    s_add_u32 s{sT1}, s{sT1}, {EX}
    s_lshl_b32 s{sT0}, s{sWave}, 13
    s_add_u32 s{sT0}, s{sT0}, {EX}
    v_add_u32 v4, s{sT1}, v3
    v_add_u32 v5, s{sT0}, v3
    s_mov_b32 s{rO}, s{sWs}
    s_mov_b32 s{rO+1}, s{sWs+1}
    s_mov_b32 s{rO+2}, {WS_SIZE}
    s_mov_b32 s{rO+3}, 0x20000
    """)
    wo_srd()
    bar('c')
    stamp(p, o, 'e1')
    p(f"ds_write_b64 v2, v[{vM}:{vM+1}]")
    for a in (2, 3):
        for g in range(4):
            p(f"ds_write_b128 v4, {rg(vO+16*a+4*g,4)} offset:{(a-2)*4096+g*1024}")
    p("s_waitcnt lgkmcnt(0)")
    stamp(p, o, 'e2')
    bar('c')
    stamp(p, o, 'e3')
    p(f"ds_read_b64 v[{vS0}:{vS0+1}], v7")
    for a in range(2):
        for g in range(4):
            p(f"ds_read_b128 {rg(vO+32+16*a+4*g,4)}, v5 offset:{a*4096+g*1024}")
    p(f"""
    v_mov_b32 v6, {NONL}
    ds_read_b64 v[8:9], v6
    s_waitcnt lgkmcnt(9)
    v_max_f32 v2, v{vM}, v{vS0}
    v_sub_f32 v3, v{vM}, v2
    v_sub_f32 v4, v{vS0}, v2
    v_exp_f32 v3, v3
    v_exp_f32 v4, v4
    v_mul_f32 v5, v3, v{vThr}
    v_fmac_f32 v5, v4, v{vS0+1}
    v_rcp_f32 v6, v5
    v_mul_f32 v3, v3, v6
    v_mul_f32 v4, v4, v6
    """)
    for i in range(32):
        p(f"v_mul_f32 v{vO+i}, v{vO+i}, v3")
    for a in range(2):
        p(f"s_waitcnt lgkmcnt({5-4*a})")
        for i in range(16):
            p(f"v_fmac_f32 v{vO+16*a+i}, v{vO+32+16*a+i}, v4")
    if o.e3:
        bar('c')
    order = [0, 2, 1, 3]
    for a in range(2):
        for idx, g in enumerate(order):
            p(f"v_cvt_pk_bf16_f32 v{vKf+8*a+2*idx}, v{vO+16*a+4*g}, v{vO+16*a+4*g+1}")
            p(f"v_cvt_pk_bf16_f32 v{vKf+8*a+2*idx+1}, v{vO+16*a+4*g+2}, v{vO+16*a+4*g+3}")
    stamp(p, o, 'e4')
    p(f"""
    v_and_b32 v2, 15, v{vL}
    v_lshrrev_b32 v3, 5, v{vL}
    v_lshl_add_u32 v2, v3, 4, v2
    v_lshlrev_b32 v2, 4, v2
    v_bfe_u32 v3, v{vL}, 4, 1
    v_lshl_add_u32 v2, v3, 12, v2
    s_lshl_b32 s{sT0}, s{sWg}, 14
    s_lshl_b32 s{sT1}, s{sQh}, 13
    s_add_u32 s{sT0}, s{sT0}, s{sT1}
    s_lshl_b32 s{sT1}, s{sKh}, 11
    s_add_u32 s{sT0}, s{sT0}, s{sT1}
    """)
    for a in range(2):
        p(f"buffer_store_dwordx4 {rg(vKf+8*a,4)}, v2, s[{rO}:{rO+3}], s{sT0} offen offset:{a*1024} sc1")
        p(f"buffer_store_dwordx4 {rg(vKf+8*a+4,4)}, v2, s[{rO}:{rO+3}], s{sT0} offen offset:{a*1024+512} sc1")
    assert nbar['c'] == nbar['l'], nbar
    print('barriers', nbar, file=sys.stderr)
    p.label("K1_TAIL")
    if o.prio: p("s_setprio 0")
    tail(p, o, locals())
    for tag in ('L0', 'L1', 'A', 'B'):
        rescale(tag)
    p.label("K1_END")
    p("s_endpgm")
    return p

def tail(p, o, L):
    g = lambda n: L[n]
    sWave, sB, sXc, sJj, sWg, sT0, sT1, sT2 = g('sWave'), g('sB'), g('sXc'), g('sJj'), g('sWg'), g('sT0'), g('sT1'), g('sT2')
    rO, rW, rX, sN, sTag, sOut, sWs = g('rO'), g('rW'), g('rX'), g('sN'), g('sTag'), g('sOut'), g('sWs')
    vL, vOff, wo_addr, NEARLY, NONL, wo_voffs = g('vL'), g('vOff'), g('wo_addr'), g('NEARLY'), g('NONL'), g('wo_voffs')
    sQt, sKh2 = 40, 41
    vAcc, vB, vF, vLA, vAd = 28, 64, 96, 19, 20
    sFast = 52
    p(f"""
    s_cmp_lt_u32 s{sWave}, 4
    s_cbranch_scc0 T_E4L
    s_waitcnt vmcnt(0) lgkmcnt(0)
    s_branch T_E4
    """)
    p.label("T_E4L")
    p("s_waitcnt lgkmcnt(0)")
    p.label("T_E4")
    p(f"""
    v_readfirstlane_b32 s{sN}, v8
    v_readfirstlane_b32 s{sN+1}, v9
    s_barrier
    """)
    if o.stamps: stamp(p, o, 6)
    def b_loads():
        p(f"""
        s_and_b32 s{sT0}, s{sWg}, 0xfc
        s_lshl_b32 s{sT1}, s{sKh2}, 1
        s_add_u32 s{sT0}, s{sT0}, s{sT1}
        s_lshl_b32 s{sT0}, s{sT0}, 14
        s_lshl_b32 s{sT1}, s{sQt}, 12
        s_add_u32 s{sT0}, s{sT0}, s{sT1}
        s_add_u32 s{sT1}, s{sT0}, 16384
        """)
        for kk in range(8):
            p(f"buffer_load_dwordx4 {rg(vB+4*kk,4)}, v5, s[{rO}:{rO+3}], s{sT0 if kk < 4 else sT1} offen offset:{(kk&3)*1024} sc1")
    p(f"""
    s_and_b32 s{sQt}, s{sWave}, 3
    s_lshr_b32 s{sKh2}, s{sWave}, 2
    v_lshlrev_b32 v5, 4, v{vL}
    v_mov_b32 v6, {NONL+8}
    ds_read_b32 v12, v6
    s_cmp_eq_u32 s{sWave}, 7
    s_cbranch_scc0 T_F0
    v_mov_b32 v9, s{sN}
    s_lshl_b32 s{sT0}, s{sWg}, 7
    s_add_u32 s{sT0}, s{sT0}, {WS_FLAG}
    v_mov_b32 v3, 0
    v_cmp_eq_u32 vcc, 0, v{vL}
    s_and_saveexec_b64 s[58:59], vcc
    buffer_store_dword v9, v3, s[{rO}:{rO+3}], s{sT0} offen sc1
    s_mov_b64 exec, s[58:59]
    """)
    p.label("T_F0")
    p(f"""
    s_waitcnt lgkmcnt(0)
    v_readfirstlane_b32 s{sFast}, v12
    s_cmp_eq_u32 s{sFast}, 0
    s_cbranch_scc1 T_SLOW
    """)
    b_loads()
    p.label("T_SLOW")
    p(f"""
    s_cmp_eq_u32 s{sWave}, 7
    s_cbranch_scc0 T_NOFLAG
    s_cmp_eq_u32 s{sFast}, 0
    s_cbranch_scc0 T_SETUP
    s_and_b32 s{sT0}, s{sWg}, 0xfc
    s_lshl_b32 s{sT0}, s{sT0}, 7
    s_add_u32 s{sT0}, s{sT0}, {WS_FLAG}
    v_and_b32 v8, 3, v{vL}
    v_lshlrev_b32 v8, 7, v8
    s_mov_b32 s{sT1}, 0
    buffer_load_dword v10, v8, s[{rO}:{rO+3}], s{sT0} offen sc1
    buffer_load_dword v11, v8, s[{rO}:{rO+3}], s{sT0} offen sc1
    """)
    p("s_branch T_SETUP")
    p.label("T_NOFLAG")
    p.label("T_SETUP")
    if not o.e3:
        p("s_barrier")
        nlate = 16 - NEARLY
        p(f"""
        s_cmp_lt_u32 s{sWave}, {min(nlate, 4)}
        s_cbranch_scc0 T_NOLATE
        """)
        for rep in range((nlate + 3) // 4):
            if rep > 0:
                p(f"s_cmp_lt_u32 s{sWave}, {nlate - 4*rep}")
                p("s_cbranch_scc0 T_NOLATE")
            p(f"s_add_u32 s{sT2}, s{sWave}, {NEARLY + 4*rep}")
            p(f"""
            s_mul_i32 s{sT1}, s{sT2}, 9216
            s_add_u32 s{sT0}, s{sT1}, 49152
            s_sub_u32 s{sT1}, s{sT1}, {12*9216}
            s_cmp_lt_u32 s{sT2}, 12
            s_cselect_b32 s{sT1}, s{sT0}, s{sT1}
            s_mul_i32 s{sT0}, s{sT2}, 36864
            """)
            for i in range(9):
                if i % 4 == 0:
                    p(f"s_add_u32 m0, s{sT1}, {(i//4)*4096}")
                p(f"buffer_load_dwordx4 v{vOff+i}, s[{rW}:{rW+3}], s{sT0} offen offset:{(i%4)*1024} lds")
    p.label("T_NOLATE")
    p(f"""
    v_lshrrev_b32 v2, 4, v{vL}
    v_and_b32 v3, 15, v{vL}
    v_lshrrev_b32 v4, 2, v3
    v_and_b32 v6, 3, v3
    v_lshl_add_u32 v2, v2, 2, v4
    v_mul_u32_u24 v2, 288, v2
    v_lshl_add_u32 v{vLA}, v6, 3, v2
    s_and_b32 s{sTag}, s{sN}, 0xfff
    s_lshr_b32 s{sTag+1}, s{sN}, 12
    s_and_b32 s{sTag+1}, s{sTag+1}, 0xfff
    s_lshr_b32 s{sTag+2}, s{sN}, 24
    s_lshl_b32 s{sT2}, s{sN+1}, 8
    s_or_b32 s{sTag+2}, s{sTag+2}, s{sT2}
    s_and_b32 s{sTag+2}, s{sTag+2}, 0xfff
    s_lshr_b32 s{sTag+3}, s{sN+1}, 4
    s_and_b32 s{sTag+3}, s{sTag+3}, 0xfff
    v_mov_b32 v7, 0xfffff000
    """)
    vTagHi = 22
    if o.pk:
        p(f"""
        s_lshl_b32 s{sTag}, s{sN}, 16
        s_and_b32 s{sTag+1}, s{sN}, 0xffff0000
        s_lshl_b32 s{sT2}, s{sN+1}, 16
        s_xor_b32 s{sTag+2}, s{sTag}, s{sT2}
        s_xor_b32 s{sTag+2}, s{sTag+2}, 0x5a5a0000
        s_xor_b32 s{sTag+3}, s{sTag+1}, s{sT2}
        s_xor_b32 s{sTag+3}, s{sTag+3}, 0xa5c30000
        v_and_b32 v3, 3, v{vL}
        v_mov_b32 v{vTagHi}, s{sTag}
        v_mov_b32 v4, s{sTag+1}
        v_cmp_eq_u32 vcc, 1, v3
        v_cndmask_b32 v{vTagHi}, v{vTagHi}, v4, vcc
        v_mov_b32 v4, s{sTag+2}
        v_cmp_eq_u32 vcc, 2, v3
        v_cndmask_b32 v{vTagHi}, v{vTagHi}, v4, vcc
        v_mov_b32 v4, s{sTag+3}
        v_cmp_eq_u32 vcc, 3, v3
        v_cndmask_b32 v{vTagHi}, v{vTagHi}, v4, vcc
        """)
    for i in range(36):
        p(f"v_mov_b32 v{vAcc+i}, 0")
    p(f"""
    s_cmp_eq_u32 s{sWave}, 7
    s_cbranch_scc0 T_NOPOLL
    s_cmp_eq_u32 s{sFast}, 0
    s_cbranch_scc0 T_NOPOLL
    s_and_b32 s{sT0}, s{sWg}, 0xfc
    s_lshl_b32 s{sT0}, s{sT0}, 7
    s_add_u32 s{sT0}, s{sT0}, {WS_FLAG}
    s_mov_b32 s{sT1}, 0
    """)
    p.label("T_POLL1")
    p(f"""
    s_waitcnt vmcnt(1)
    v_cmp_ne_u32 vcc, v10, v9
    s_cbranch_vccz T_NOPOLL
    buffer_load_dword v10, v8, s[{rO}:{rO+3}], s{sT0} offen sc1
    s_add_u32 s{sT1}, s{sT1}, 1
    s_waitcnt vmcnt(1)
    v_cmp_ne_u32 vcc, v11, v9
    s_cbranch_vccz T_NOPOLL
    buffer_load_dword v11, v8, s[{rO}:{rO+3}], s{sT0} offen sc1
    s_cmp_lt_u32 s{sT1}, {SPIN}
    s_cbranch_scc1 T_POLL1
    """)
    p.label("T_NOPOLL")
    p(f"""
    s_waitcnt vmcnt(0)
    s_barrier
    """)
    if o.stamps: stamp(p, o, 7)
    p(f"s_cmp_eq_u32 s{sFast}, 0")
    p("s_cbranch_scc0 T_BDONE")
    b_loads()
    p.label("T_BDONE")
    if o.gopt: gemm_opt(p, vAcc, vB, vF, vAd, vLA, sKh2, sT2, wo_addr)
    else: gen9.gemm_body(p, vAcc, vB, vF, vAd, vLA, sKh2, sT2, wo_addr, [0, 1, 2, 3, 4], [5, 6, 7, 8], True)
    if o.stamps: stamp(p, o, 8)
    p(f"""
    s_barrier
    s_mul_i32 s{sT0}, s{sQt}, 9216
    v_add_u32 v2, s{sT0}, v5
    s_cmp_eq_u32 s{sKh2}, 0
    s_cbranch_scc0 T_H1
    """)
    for nt in range(5, 9):
        p(f"ds_write_b128 v2, {rg(vAcc+4*nt,4)} offset:{nt*1024}")
    p("s_branch T_H2")
    p.label("T_H1")
    for nt in range(0, 5):
        p(f"ds_write_b128 v2, {rg(vAcc+4*nt,4)} offset:{nt*1024}")
    p.label("T_H2")
    p(f"""
    s_lshl_b32 s{sT0}, s{sXc}, 3
    s_add_u32 s{sT0}, s{sT0}, s{sB}
    s_lshl_b32 s{sT0}, s{sT0}, 2
    s_add_u32 s{sT0}, s{sT0}, s{sJj}
    s_lshl_b32 s{sT0}, s{sT0}, 2
    s_add_u32 s{sT0}, s{sT0}, s{sQt}
    """)
    if o.pk:
        p(f"""
        s_lshl_b32 s{sT0}, s{sT0}, 1
        s_add_u32 s{sT0}, s{sT0}, s{sKh2}
        s_mul_i32 s{sT0}, s{sT0}, 3072
        """)
    else:
        p(f"s_mul_i32 s{sT0}, s{sT0}, 9216")
    p(f"""
    s_add_u32 s{sT0}, s{sT0}, {WS_PART}
    s_waitcnt lgkmcnt(0)
    s_barrier
    s_cmp_eq_u32 s{sKh2}, 0
    s_cbranch_scc0 T_H3
    """)
    def fin(nts):
        for nt in nts:
            p(f"ds_read_b128 {rg(vF+4*nt,4)}, v2 offset:{nt*1024}")
        for idx, nt in enumerate(nts):
            p(f"s_waitcnt lgkmcnt({len(nts)-1-idx})")
            for e in range(4):
                p(f"v_add_f32 v{vAcc+4*nt+e}, v{vAcc+4*nt+e}, v{vF+4*nt+e}")
            if not o.pk:
                for e in range(4):
                    p(f"v_and_or_b32 v{vAcc+4*nt+e}, v{vAcc+4*nt+e}, v7, s{sTag+e}")
                p(f"s_add_u32 s{sT1}, s{sT0}, {(nt//4)*4096}")
                p(f"buffer_store_dwordx4 {rg(vAcc+4*nt,4)}, v5, s[{rO}:{rO+3}], s{sT1} offen offset:{(nt%4)*1024} sc1")
        if o.pk:
            V = [vAcc + 4 * nt + e for nt in nts for e in range(4)]
            vG = 140
            for gi in range(3):
                vals = V[7 * gi: 7 * gi + 7]
                vals += [None] * (7 - len(vals))
                for d in range(3):
                    a, b = vals[2 * d], vals[2 * d + 1]
                    dst = vG + 4 * gi + d
                    if a is None: p(f"v_mov_b32 v{dst}, 0")
                    else: p(f"v_cvt_pk_bf16_f32 v{dst}, v{a}, {'v%d' % b if b is not None else '0'}")
                dst = vG + 4 * gi + 3
                if vals[6] is None:
                    p(f"v_mov_b32 v{dst}, v{vTagHi}")
                else:
                    p(f"v_cvt_pk_bf16_f32 v{dst}, v{vals[6]}, 0")
                    p(f"v_or_b32 v{dst}, v{dst}, v{vTagHi}")
                p(f"buffer_store_dwordx4 {rg(vG+4*gi,4)}, v5, s[{rO}:{rO+3}], s{sT0} offen offset:{gi*1024} sc1")
    fin(list(range(0, 5)))
    p("s_branch T_H4")
    p.label("T_H3")
    fin(list(range(5, 9)))
    p.label("T_H4")
    if o.stamps: stamp(p, o, 9)
    vX = 100
    if o.pk:
        vA = 140
        p(f"""
        s_cmp_ge_u32 s{sWave}, 3
        s_cbranch_scc1 T_DONE
        s_lshl_b32 s{sT0}, s{sB}, 2
        s_add_u32 s{sT0}, s{sT0}, s{sJj}
        s_lshl_b32 s{sT0}, s{sT0}, 3
        s_add_u32 s{sT0}, s{sT0}, s{sXc}
        s_mul_i32 s{sT0}, s{sT0}, 3072
        s_lshl_b32 s{sT1}, s{sWave}, 10
        s_add_u32 s{sT0}, s{sT0}, s{sT1}
        s_add_u32 s{sT0}, s{sT0}, {WS_PART}
        s_mov_b32 s{rX}, s{sOut}
        s_mov_b32 s{rX+1}, s{sOut+1}
        s_mov_b32 s{rX+2}, {512*576*2}
        s_mov_b32 s{rX+3}, 0x20000
        v_lshlrev_b32 v3, 4, v{vL}
        s_lshr_b32 s{sT1}, s{sXc}, 1
        s_lshl_b32 s{sT1}, s{sT1}, 4
        s_lshl_b32 s{sT2}, s{sB}, 6
        s_add_u32 s{sT1}, s{sT1}, s{sT2}
        v_and_b32 v4, 15, v{vL}
        v_add_u32 v4, s{sT1}, v4
        s_movk_i32 s{sT1}, 1152
        v_mul_u32_u24 v4, s{sT1}, v4
        v_lshrrev_b32 v6, 4, v{vL}
        v_lshl_add_u32 v4, v6, 3, v4
        s_mul_i32 s{sT1}, s{sJj}, 288
        s_and_b32 s{sT2}, s{sXc}, 1
        s_mul_i32 s{sT2}, s{sT2}, 160
        s_add_u32 s{sT1}, s{sT1}, s{sT2}
        v_add_u32 v4, s{sT1}, v4
        s_mov_b32 s{sT2}, 0
        s_mov_b64 s[56:57], exec
        v_mul_u32_u24 v6, {32*8*3}, v{vL}
        v_lshlrev_b32 v6, 10, v6
        v_add_u32 v6, 12, v6
        v_mov_b32 v9, s{sTag}
        s_mov_b64 exec, 0xff
        buffer_load_dword v10, v6, s[{rO}:{rO+3}], s{sT0} offen sc1
        buffer_load_dword v11, v6, s[{rO}:{rO+3}], s{sT0} offen sc1
        """)
        p.label("T_PP")
        p(f"""
        s_waitcnt vmcnt(1)
        v_xor_b32 v8, v10, v9
        v_lshrrev_b32 v8, 16, v8
        v_cmp_ne_u32 vcc, 0, v8
        s_cbranch_vccz T_PPD
        buffer_load_dword v10, v6, s[{rO}:{rO+3}], s{sT0} offen sc1
        s_add_u32 s{sT2}, s{sT2}, 1
        s_waitcnt vmcnt(1)
        v_xor_b32 v8, v11, v9
        v_lshrrev_b32 v8, 16, v8
        v_cmp_ne_u32 vcc, 0, v8
        s_cbranch_vccz T_PPD
        buffer_load_dword v11, v6, s[{rO}:{rO+3}], s{sT0} offen sc1
        s_cmp_lt_u32 s{sT2}, {SPIN}
        s_cbranch_scc1 T_PP
        """)
        p.label("T_PPD")
        p(f"""
        s_mov_b64 exec, s[56:57]
        s_mov_b32 s{sT2}, 0
        """)
        p.label("T_POLL2")
        p(f"s_mov_b32 s{sT1}, s{sT0}")
        for s_ in range(8):
            p(f"buffer_load_dwordx4 {rg(vX+4*s_,4)}, v3, s[{rO}:{rO+3}], s{sT1} offen sc1")
            if s_ < 7: p(f"s_add_u32 s{sT1}, s{sT1}, {32*8*3072}")
        p(f"""
        s_add_u32 s{sT2}, s{sT2}, 1
        v_mov_b32 v6, 0
        """)
        for s_ in range(8):
            p(f"s_waitcnt vmcnt({7-s_})")
            p(f"v_xor_b32 v8, v{vX+4*s_+3}, v{vTagHi}")
            p(f"v_or_b32 v6, v6, v8")
        p(f"""
        v_lshrrev_b32 v6, 16, v6
        v_cmp_ne_u32 vcc, 0, v6
        s_cmp_lt_u32 s{sT2}, {SPIN}
        s_cbranch_scc0 T_SUM
        s_cbranch_vccnz T_POLL2
        """)
        p.label("T_SUM")
        p("v_mov_b32 v7, 0xffff0000")
        for s_ in range(8):
            for j in range(7):
                src = vX + 4 * s_ + j // 2
                if s_ == 0:
                    if j % 2 == 0: p(f"v_lshlrev_b32 v{vA+j}, 16, v{src}")
                    else: p(f"v_and_b32 v{vA+j}, v7, v{src}")
                else:
                    if j % 2 == 0: p(f"v_lshlrev_b32 v8, 16, v{src}")
                    else: p(f"v_and_b32 v8, v7, v{src}")
                    p(f"v_add_f32 v{vA+j}, v{vA+j}, v8")
        p(f"""
        s_cmp_eq_u32 s{sWave}, 1
        s_cbranch_scc1 T_O1
        s_cmp_eq_u32 s{sWave}, 2
        s_cbranch_scc1 T_O2
        """)
        SCO = ' sc1' if o.outsc else ''
        p(f"""
        v_cvt_pk_bf16_f32 v8, v{vA}, v{vA+1}
        v_cvt_pk_bf16_f32 v9, v{vA+2}, v{vA+3}
        v_cvt_pk_bf16_f32 v10, v{vA+4}, v{vA+5}
        v_cvt_pk_bf16_f32 v11, v{vA+6}, v{vA+6}
        buffer_store_dwordx2 v[8:9], v4, s[{rX}:{rX+3}], 0 offen{SCO}
        buffer_store_dword v10, v4, s[{rX}:{rX+3}], 0 offen offset:32{SCO}
        buffer_store_short v11, v4, s[{rX}:{rX+3}], 0 offen offset:36{SCO}
        s_branch T_DONE
        """)
        p.label("T_O1")
        p(f"""
        v_cvt_pk_bf16_f32 v11, v{vA}, v{vA}
        v_cvt_pk_bf16_f32 v8, v{vA+1}, v{vA+2}
        v_cvt_pk_bf16_f32 v9, v{vA+3}, v{vA+4}
        v_cvt_pk_bf16_f32 v10, v{vA+5}, v{vA+6}
        buffer_store_short v11, v4, s[{rX}:{rX+3}], 0 offen offset:38{SCO}
        buffer_store_dwordx2 v[8:9], v4, s[{rX}:{rX+3}], 0 offen offset:64{SCO}
        buffer_store_dword v10, v4, s[{rX}:{rX+3}], 0 offen offset:96{SCO}
        s_branch T_DONE
        """)
        p.label("T_O2")
        p(f"""
        v_cvt_pk_bf16_f32 v10, v{vA}, v{vA+1}
        v_cvt_pk_bf16_f32 v8, v{vA+2}, v{vA+3}
        v_cvt_pk_bf16_f32 v9, v{vA+4}, v{vA+5}
        buffer_store_dword v10, v4, s[{rX}:{rX+3}], 0 offen offset:100{SCO}
        s_and_b32 s{sT0}, s{sXc}, 1
        s_cmp_eq_u32 s{sT0}, 0
        s_cbranch_scc0 T_DONE
        buffer_store_dwordx2 v[8:9], v4, s[{rX}:{rX+3}], 0 offen offset:128{SCO}
        """)
    else:
        p(f"""
        s_cmp_ge_u32 s{sWave}, 5
        s_cbranch_scc1 T_DONE
        v_cmp_gt_u32 vcc, 288, v0
        s_and_saveexec_b64 s[58:59], vcc
        s_mul_i32 s{sT0}, s{sXc}, 288
        v_add_u32 v2, s{sT0}, v0
        v_lshlrev_b32 v3, 4, v2
        s_lshl_b32 s{sT0}, s{sB}, 2
        s_add_u32 s{sT0}, s{sT0}, s{sJj}
        s_mul_i32 s{sT0}, s{sT0}, 36864
        s_add_u32 s{sT0}, s{sT0}, {WS_PART}
        s_mov_b32 s{rX}, s{sOut}
        s_mov_b32 s{rX+1}, s{sOut+1}
        s_mov_b32 s{rX+2}, {512*576*2}
        s_mov_b32 s{rX+3}, 0x20000
        v_lshrrev_b32 v4, 6, v2
        v_mul_u32_u24 v5, 57, v4
        v_lshrrev_b32 v5, 9, v5
        v_mul_u32_u24 v6, 9, v5
        v_sub_u32 v6, v4, v6
        v_and_b32 v4, 15, v2
        v_lshl_add_u32 v4, v5, 4, v4
        s_lshl_b32 s{sT1}, s{sB}, 6
        v_add_u32 v4, s{sT1}, v4
        s_movk_i32 s{sT1}, 1152
        v_mul_u32_u24 v4, s{sT1}, v4
        v_lshlrev_b32 v6, 5, v6
        v_add_u32 v4, v4, v6
        v_bfe_u32 v6, v2, 4, 2
        v_lshl_add_u32 v4, v6, 3, v4
        s_mul_i32 s{sT1}, s{sJj}, 288
        v_add_u32 v4, s{sT1}, v4
        s_mov_b32 s{sT2}, 0
        """)
        if o.prepoll == 1:
                p(f"""
                s_mov_b64 s[56:57], exec
                v_readfirstlane_b32 s{sT1}, v3
                v_mul_u32_u24 v6, {32*36864 // 1024}, v{vL}
                v_lshlrev_b32 v6, 10, v6
                v_add_u32 v6, s{sT1}, v6
                v_mov_b32 v9, s{sTag}
                s_mov_b64 exec, 0xff
                buffer_load_dword v10, v6, s[{rO}:{rO+3}], s{sT0} offen sc1
                buffer_load_dword v11, v6, s[{rO}:{rO+3}], s{sT0} offen sc1
                """)
                p.label("T_PP")
                p(f"""
                s_waitcnt vmcnt(1)
                v_xor_b32 v8, v10, v9
                v_and_b32 v8, 0xfff, v8
                v_cmp_ne_u32 vcc, 0, v8
                s_cbranch_vccz T_PPD
                buffer_load_dword v10, v6, s[{rO}:{rO+3}], s{sT0} offen sc1
                s_add_u32 s{sT2}, s{sT2}, 1
                s_waitcnt vmcnt(1)
                v_xor_b32 v8, v11, v9
                v_and_b32 v8, 0xfff, v8
                v_cmp_ne_u32 vcc, 0, v8
                s_cbranch_vccz T_PPD
                buffer_load_dword v11, v6, s[{rO}:{rO+3}], s{sT0} offen sc1
                s_cmp_lt_u32 s{sT2}, {SPIN}
                s_cbranch_scc1 T_PP
                """)
                p.label("T_PPD")
                p(f"""
                s_mov_b64 exec, s[56:57]
                s_mov_b32 s{sT2}, 0
                """)
        elif o.prepoll == 2:
            p(f"""
            s_cmp_eq_u32 s{sWave}, 0
            s_cbranch_scc0 T_PPD
            s_mov_b64 s[56:57], exec
            s_mul_i32 s{sT1}, s{sXc}, {288*16}
            v_and_b32 v6, 7, v{vL}
            v_mul_u32_u24 v6, {32*36864 // 1024}, v6
            v_lshlrev_b32 v6, 10, v6
            v_add_u32 v6, s{sT1}, v6
            v_lshrrev_b32 v8, 3, v{vL}
            v_mul_u32_u24 v8, {287*16}, v8
            v_add_u32 v6, v6, v8
            v_mov_b32 v9, s{sTag}
            s_mov_b64 exec, 0xffff
            buffer_load_dword v10, v6, s[{rO}:{rO+3}], s{sT0} offen sc1
            """)
            p.label("T_PP")
            p(f"""
            s_waitcnt vmcnt(0)
            v_xor_b32 v8, v10, v9
            v_and_b32 v8, 0xfff, v8
            v_cmp_ne_u32 vcc, 0, v8
            s_cbranch_vccz T_PPE
            buffer_load_dword v10, v6, s[{rO}:{rO+3}], s{sT0} offen sc1
            s_add_u32 s{sT2}, s{sT2}, 1
            s_cmp_lt_u32 s{sT2}, {SPIN}
            s_cbranch_scc1 T_PP
            """)
            p.label("T_PPE")
            p(f"""
            s_mov_b64 exec, s[56:57]
            s_mov_b32 s{sT2}, 0
            """)
            p.label("T_PPD")
            p("s_barrier")
        p.label("T_POLL2")
        p(f"s_mov_b32 s{sT1}, s{sT0}")
        for s in range(8):
            p(f"buffer_load_dwordx4 {rg(vX+4*s,4)}, v3, s[{rO}:{rO+3}], s{sT1} offen sc1")
            if s < 7: p(f"s_add_u32 s{sT1}, s{sT1}, {32*36864}")
        p(f"""
        s_add_u32 s{sT2}, s{sT2}, 1
        v_mov_b32 v6, 0
        """)
        for s in range(8):
            p(f"s_waitcnt vmcnt({7-s})")
            for e in range(0, 4, 2):
                p(f"v_xor_b32 v8, s{sTag+e}, v{vX+4*s+e}")
                p(f"v_xor_b32 v9, s{sTag+e+1}, v{vX+4*s+e+1}")
                p(f"v_or3_b32 v6, v6, v8, v9")
        p(f"""
        v_and_b32 v6, 0xfff, v6
        v_cmp_ne_u32 vcc, 0, v6
        s_cmp_lt_u32 s{sT2}, {SPIN}
        s_cbranch_scc0 T_SUM
        s_cbranch_vccnz T_POLL2
        """)
        p.label("T_SUM")
        for s in range(8):
            for e in range(4):
                p(f"v_and_b32 v{vX+4*s+e}, v7, v{vX+4*s+e}")
        for s in range(1, 8):
            for e in range(4):
                p(f"v_add_f32 v{vX+e}, v{vX+e}, v{vX+4*s+e}")
        p(f"""
        v_cvt_pk_bf16_f32 v8, v{vX}, v{vX+1}
        v_cvt_pk_bf16_f32 v9, v{vX+2}, v{vX+3}
        buffer_store_dwordx2 v[8:9], v4, s[{rX}:{rX+3}], 0 offen{' sc1' if o.outsc else ''}
        s_mov_b64 exec, s[58:59]
        """)
    p.label("T_DONE")
    if o.stamps:
        p("s_waitcnt vmcnt(0)")
        p("s_memrealtime s[90:91]" if o.stamps != 2 else "s_memtime s[90:91]")
        p("s_waitcnt lgkmcnt(0)")
        gen_flush_final(p, o, sWs)
    p("s_branch K1_END")

def gemm_opt(p, vAcc, vB, vF, vAd, vLA, sKh2, sT, wo_addr):
    HA, HB = [0, 1, 2, 3, 4], [5, 6, 7, 8]
    for half in range(2):
        c0, c1 = wo_addr(4 * half), wo_addr(8 + 4 * half)
        for kk in range(4):
            assert wo_addr(4 * half + kk) == c0 + kk * 9216 and wo_addr(8 + 4 * half + kk) == c1 + kk * 9216
        p(f"""
        s_mov_b32 s{sT}, {c1}
        s_cmp_eq_u32 s{sKh2}, 0
        s_cselect_b32 s{sT}, {c0}, s{sT}
        v_add_u32 v{vAd + half}, s{sT}, v{vLA}
        """)
    def reads(kk, half):
        ad = vAd + (kk // 4); off = (kk % 4) * 9216
        for nt in half:
            f = vF + 4 * nt
            p(f"ds_read_b64_tr_b16 {rg(f,2)}, v{ad} offset:{off+nt*32}")
            p(f"ds_read_b64_tr_b16 {rg(f+2,2)}, v{ad} offset:{off+4608+nt*32}")
    def mfmas(kk, half, wait):
        p(wait)
        for nt in half:
            f = vF + 4 * nt
            p(f"{MF16} {rg(vAcc+4*nt,4)}, {rg(f,4)}, {rg(vB+4*kk,4)}, {rg(vAcc+4*nt,4)}")
    reads(0, HA)
    for kk in range(8):
        reads(kk, HB)
        mfmas(kk, HA, f"s_waitcnt vmcnt({7-kk}) lgkmcnt({2*len(HB)})")
        if kk < 7:
            reads(kk + 1, HA)
            mfmas(kk, HB, f"s_waitcnt lgkmcnt({2*len(HA)})")
        else:
            mfmas(kk, HB, "s_waitcnt lgkmcnt(0)")

def emit(o):
    name = 'standalone__gqa_block_cached__near_ridge_kernel'
    p = gen_main(o)
    out = [HDR, "; @launch grid=(256,1,1) block=(512,1,1) lds=163840",
           '.amdgcn_target "amdgcn-amd-amdhsa--gfx950"', '.text']
    n = p.fix_hazards()
    errs = p.lint_waits()
    for e in errs[:20]:
        print(f"LINT: {e}", file=sys.stderr)
    nv, ns = p.max_regs()
    print(f"{name}: {len(p.ins)} instrs, vgpr {nv}, sgpr {ns}, nops inserted {n}", file=sys.stderr)
    out.append(f".globl {name}\n.p2align 8\n.type {name},@function\n{name}:")
    out.append(p.text())
    out.append(kd(name, max(nv, 8), max(ns, 16)))
    return '\n'.join(out) + '\n'

if __name__ == '__main__':
    ap = argparse.ArgumentParser()
    ap.add_argument('-o', default='standalone__gqa_block_cached__near_ridge.s')
    for k, d in OPTS.items():
        ap.add_argument('--' + k, type=int, default=d)
    a = ap.parse_args()
    o = Opt()
    for k in OPTS:
        setattr(o, k, getattr(a, k))
    open(a.o, 'w').write(emit(o))
```

```python
import sys, argparse
from asmlib import Prog
import gen
from gen import f32bits, SCALE_LOG2E, kd, HEADER
from gen import stamp as _stamp
import gen9
from gen9 import WS_O, WS_PART, WS_FLAG, WS_SIZE, MF, MF16, rg, SPIN, gen_flush_final

STSETS = {0: {0:0,1:1,2:2,3:3,4:4,5:5,6:6,7:7,8:8,9:9},
          1: {5:0, 'e1':1, 'e2':2, 'e3':3, 'e4':4, 6:5, 7:6, 'g0':7, 8:8, 9:9}}
def stamp(p, o, name):
    m = STSETS[getattr(o, 'stset', 0)]
    if name in m: _stamp(p, o, m[name])

class Opt(gen.Opt):
    pass
OPTS = dict(wide=1, pk=1, gopt=1, e3=1, prio=0, skew=0, icpf=6, outsc=1, prepoll=1, fast=1, stset=0, nt=1, dbg=0, stamps=0, stampwave=0, wt=1, kdel=5, wotat=7, lead=8, nearly=12)

HDR = """; GQA block: q = x@wq ; softmax(q k^T / sqrt(128)) v ; out = o@wo   (B=8, Sq=64, Hq=32, Hkv=16, Sk=1024, Dh=128, D=576)
;   The launch nonce is published by workgroup 0 in d_debug[0:1] (zero at launch); all cross-workgroup data uses sc1 stores and loads."""

SLOT = 16384
NSLOT = 10

def gen_main(o):
    p = Prog()
    NT = ' nt' if o.nt else ''
    sX, sK, sV, sWq, sWs, sWo = 4, 6, 8, 10, 12, 14
    rK, rV, rW, rX, rO = 16, 20, 24, 28, 32
    sWave, sB, sH, sXc, sQh, sKh = 36, 37, 38, 39, 40, 41
    sRK, sRV, sKoff, sVoff, sCnt, sJj = 42, 43, 44, 45, 46, 47
    sC, sT0, sT1, sT2 = 48, 49, 50, 51
    sLw, sWg, sIss, sL4096, sGof = 53, 54, 55, 56, 57
    sPar, sIssB = 98, 99
    vOa, vOb = 40, 44
    sOut, sDbg, sN, sTag = 80, 82, 84, 86
    vL = 1
    vLW = 10
    vLX = 12
    vLK = 13
    vVA = 14
    vTn = 18
    vNon = 20
    vLV = 24
    vKA = 28
    vM, vThr, vL0, vL1 = 36, 37, 38, 39
    vQ = 40
    vS = [72, 88]
    vP = 104
    vKf = 112
    vVf = 144
    vO = 176
    QB = [112, 176]
    vKo = 10; vVo = 14; vWo = 24; vXo = 28; vWoA, vWoB, vWoC = 30, 31, 32
    vDum = 249
    vOff = 240
    S_ = [i * SLOT for i in range(NSLOT)]
    QS = [139264, 65536, 90112, 114688]
    QX = S_[9]
    lab = [0]
    def nl(s):
        lab[0] += 1
        return f"K1_{s}{lab[0]}"
    nbar = {'c': 0, 'l': 0}
    def bar(who):
        nbar[who] += 1
        p("s_barrier")
    LEAD = o.lead
    assert LEAD in (4, 6, 8) and not (o.skew and LEAD != 8)
    HL = LEAD // 2
    NR = 14 - HL
    POS = []
    for n in range(33):
        if n == 0: POS.append((1, 0))
        elif n % 2 == 1: POS.append((1, (n + 1) // 2))
        else: POS.append((0, (n - 2) // 2))
    NEARLY = o.nearly
    def wo_addr(G): return (49152 + G * 9216) if G < 12 else (G - 12) * 9216
    EX, STAT, NONL = 0, 36864, 38912

    p(f"""
    s_cmp_ge_u32 s2, 256
    s_cbranch_scc1 K1_END
    s_load_dwordx4 s[4:7], s[0:1], 0
    s_load_dwordx4 s[8:11], s[0:1], 16
    s_load_dwordx2 s[12:13], s[0:1], 56
    s_load_dwordx2 s[14:15], s[0:1], 32
    s_load_dwordx4 s[80:83], s[0:1], 40
    """)
    if o.icpf:
        ICL = o.icpf
        p("s_getpc_b64 s[90:91]")
        p.label("K1_PCREF")
        p(f"""
        s_mov_b32 s93, K1_END-K1_PCREF
        v_cmp_gt_u32 vcc, {ICL}, v0
        s_and_saveexec_b64 s[58:59], vcc
        s_cbranch_execz K1_ICD
        s_lshr_b32 s92, s2, 3
        s_mul_i32 s92, s92, {ICL*128}
        v_lshlrev_b32 v2, 7, v0
        v_add_u32 v2, s92, v2
        v_min_u32 v2, s93, v2
        global_load_dword v{vDum}, v2, s[90:91]
        """)
        p.label("K1_ICD")
        p("s_mov_b64 exec, s[58:59]")
    p(f"""
    v_and_b32 v{vL}, 63, v0
    v_lshrrev_b32 v2, 6, v0
    s_and_b32 s{sXc}, s2, 7
    s_lshr_b32 s{sT1}, s2, 3
    v_readfirstlane_b32 s{sWave}, v2
    s_lshr_b32 s{sB}, s{sT1}, 2
    s_and_b32 s{sJj}, s{sT1}, 3
    s_lshl_b32 s{sH}, s{sXc}, 2
    s_add_u32 s{sH}, s{sH}, s{sJj}
    s_lshl_b32 s{sWg}, s{sB}, 5
    s_add_u32 s{sWg}, s{sWg}, s{sH}
    v_and_b32 v2, 15, v{vL}
    v_lshrrev_b32 v3, 4, v{vL}
    v_lshrrev_b32 v4, 2, v2
    v_and_b32 v5, 3, v2
    v_lshrrev_b32 v6, 5, v{vL}
    v_and_b32 v7, 31, v{vL}
    s_cmp_lt_u32 s{sWave}, 4
    s_cbranch_scc1 K1_COMPUTE
    """)

    vq = []
    def vissue(tag, n): vq.extend([tag] * n)
    def vneed(*tags):
        idx = [i for i, t in enumerate(vq) if t in tags]
        if not idx: return 63
        n = len(vq) - 1 - idx[-1]
        del vq[:idx[-1] + 1]
        return min(n, 63)
    if o.prio: p(f"s_setprio {o.prio}")
    p(f"""
    s_and_b32 s{sLw}, s{sWave}, 3
    s_lshl_b32 s{sL4096}, s{sLw}, 12
    v_lshlrev_b32 v8, 2, v3
    v_xor_b32 v8, v8, v2
    v_lshlrev_b32 v8, 4, v8
    v_lshl_add_u32 v{vVo}, v3, 8, v8
    v_lshl_add_u32 v{vWo}, v3, 13, v8
    """)
    for u in range(1, 4):
        p(f"v_add_u32 v{vWo+u}, {u*31744}, v{vWo}")
    p(f"""
    s_lshl_b32 s{sT0}, s{sLw}, 4
    s_movk_i32 s{sT1}, 1152
    """)
    for u in range(2):
        p(f"""
        v_lshrrev_b32 v8, 3, v{vL}
        v_add_u32 v8, s{sT0}, v8
        v_add_u32 v8, {8*u}, v8
        v_mul_lo_u32 v8, v8, s{sT1}
        v_add_u32 v9, {4*u}, v3
        v_and_b32 v9, 7, v9
        v_and_b32 v{vXo+u}, 7, v{vL}
        v_xor_b32 v9, v9, v{vXo+u}
        v_lshl_add_u32 v8, v9, 4, v8
        v_subrev_u32 v{vXo+u}, {u*1024}, v8
        """)
    p("s_waitcnt lgkmcnt(0)")
    stamp(p, o, 0)
    p(f"""
    s_lshl_b32 s{sT0}, s{sH}, 8
    s_add_u32 s{rW}, s{sWq}, s{sT0}
    s_addc_u32 s{rW+1}, s{sWq+1}, 0
    s_sub_u32 s{rW+2}, {576*8192}, s{sT0}
    s_mov_b32 s{rW+3}, 0x20000
    s_mul_i32 s{sT0}, s{sB}, {64*1152}
    s_add_u32 s{rX}, s{sX}, s{sT0}
    s_addc_u32 s{rX+1}, s{sX+1}, 0
    s_mov_b32 s{rX+2}, {64*1152}
    s_mov_b32 s{rX+3}, 0x20000
    """)
    def issue_chunk(c):
        qs = QS[c % 4]
        p(f"""
        s_lshl_b32 s{sT0}, s{sLw}, 17
        s_add_u32 s{sT0}, s{sT0}, {c*524288}
        s_add_u32 m0, s{sL4096}, {qs}
        """)
        for u in range(4):
            p(f"buffer_load_dwordx4 v{vWo+u}, s[{rW}:{rW+3}], s{sT0} offen offset:{u*1024} lds")
        p(f"""
        s_lshr_b32 s{sT1}, s{sL4096}, 1
        s_add_u32 m0, s{sT1}, {qs+16384}
        s_movk_i32 s{sT0}, {c*128}
        """)
        for u in range(2):
            p(f"buffer_load_dwordx4 v{vXo+u}, s[{rX}:{rX+3}], s{sT0} offen offset:{u*1024} lds")
        vissue(('C', c), 6)
    if o.wt:
        p(f"""
        s_cmp_eq_u32 s{sWave}, 4
        s_cbranch_scc0 K1_WT1
        v_lshrrev_b32 v8, 1, v{vL}
        v_and_b32 v9, 1, v{vL}
        v_lshlrev_b32 v8, 13, v8
        v_lshl_add_u32 v8, v9, 7, v8
        s_mul_i32 s{sT0}, s{sB}, {72*8192}
        buffer_load_dword v{vDum}, v8, s[{rW}:{rW+3}], s{sT0} offen
        s_add_u32 s{sT0}, s{sT0}, {32*8192}
        buffer_load_dword v{vDum}, v8, s[{rW}:{rW+3}], s{sT0} offen
        s_add_u32 s{sT0}, s{sT0}, {32*8192}
        v_cmp_gt_u32 vcc, 16, v{vL}
        s_and_saveexec_b64 s[58:59], vcc
        buffer_load_dword v{vDum}, v8, s[{rW}:{rW+3}], s{sT0} offen
        s_mov_b64 exec, s[58:59]
        """)
        p.label("K1_WT1")
        p(f"""
        s_cmp_eq_u32 s{sWave}, 5
        s_cbranch_scc0 K1_WT2
        v_lshlrev_b32 v9, 7, v{vL}
        s_mul_i32 s{sT0}, s{sJj}, 18432
        buffer_load_dword v{vDum}, v9, s[{rX}:{rX+3}], s{sT0} offen
        s_add_u32 s{sT0}, s{sT0}, 8192
        buffer_load_dword v{vDum}, v9, s[{rX}:{rX+3}], s{sT0} offen
        s_add_u32 s{sT0}, s{sT0}, 8192
        v_cmp_gt_u32 vcc, 16, v{vL}
        s_and_saveexec_b64 s[58:59], vcc
        buffer_load_dword v{vDum}, v9, s[{rX}:{rX+3}], s{sT0} offen
        s_mov_b64 exec, s[58:59]
        """)
        p.label("K1_WT2")
    for c in range(4):
        issue_chunk(c)
    p(f"""
    s_cmp_eq_u32 s2, 0
    s_cbranch_scc0 K1_NON
    s_cmp_eq_u32 s{sWave}, 7
    s_cbranch_scc0 K1_NON
    s_memrealtime s[{sN}:{sN+1}]
    s_waitcnt lgkmcnt(0)
    s_or_b32 s{sN}, s{sN}, 1
    v_mov_b32 v8, s{sN}
    v_mov_b32 v9, s{sN+1}
    v_mov_b32 v{vNon}, 0
    v_cmp_eq_u32 vcc, 0, v{vL}
    s_and_saveexec_b64 s[58:59], vcc
    global_store_dwordx2 v{vNon}, v[8:9], s[{sDbg}:{sDbg+1}] sc1
    s_mov_b64 exec, s[58:59]
    """)
    p.label("K1_NON")
    p(f"""
    s_lshl_b32 s{sT0}, s{sB}, 4
    s_lshr_b32 s{sT1}, s{sH}, 1
    s_add_u32 s{sT0}, s{sT0}, s{sT1}
    s_lshl_b32 s{sT0}, s{sT0}, 18
    s_add_u32 s{rK}, s{sK}, s{sT0}
    s_addc_u32 s{rK+1}, s{sK+1}, 0
    s_mov_b32 s{rK+2}, 0x40000
    s_mov_b32 s{rK+3}, 0x20000
    s_add_u32 s{rV}, s{sV}, s{sT0}
    s_addc_u32 s{rV+1}, s{sV+1}, 0
    s_mov_b32 s{rV+2}, 0x40000
    s_mov_b32 s{rV+3}, 0x20000
    s_lshr_b32 s{sT0}, s{sLw}, 1
    s_lshl_b32 s{sT0}, s{sT0}, 17
    s_and_b32 s{sT1}, s{sLw}, 1
    s_lshl_b32 s{sT1}, s{sT1}, 12
    s_add_u32 s{sGof}, s{sT0}, s{sT1}
    """)
    for u in range(4):
        p(f"""
        v_add_u32 v8, {4*u}, v3
        v_xor_b32 v8, v8, v2
        v_lshlrev_b32 v8, 4, v8
        v_lshl_add_u32 v{vKo+u}, v3, 8, v8
        """)
    p(f"""
    s_movk_i32 s{sT0}, 3641
    s_movk_i32 s{sT1}, 1152
    """)
    for k, (reg, addi) in enumerate(((vWoA, 0), (vWoB, 4), (vWoC, None))):
        if addi is None:
            p(f"v_add_u32 v8, {64*8}, v{vL}")
        else:
            p(f"""
            s_add_u32 s{sT2}, s{sLw}, {addi}
            s_lshl_b32 s{sT2}, s{sT2}, 6
            v_add_u32 v8, s{sT2}, v{vL}
            """)
        p(f"""
        v_mul_u32_u24 v9, s{sT0}, v8
        v_lshrrev_b32 v9, 16, v9
        v_mul_u32_u24 v{reg}, 18, v9
        v_sub_u32 v{reg}, v8, v{reg}
        v_mul_u32_u24 v9, s{sT1}, v9
        v_lshl_add_u32 v{reg}, v{reg}, 4, v9
        """)

    for i in range(9): p(f"v_mov_b32 v{vOff+i}, 0")
    def issue_pos(n):
        isK, t = POS[n]
        p(f"""
        s_add_u32 s{sT0}, s{sGof}, {t*8192}
        s_add_u32 m0, s{sL4096}, {S_[n % NSLOT]}
        """)
        for u in range(4):
            if isK: p(f"buffer_load_dwordx4 v{vKo+u}, s[{rK}:{rK+3}], s{sT0} offen offset:{u*1024}{NT} lds")
            else:   p(f"buffer_load_dwordx4 v{vVo}, s[{rV}:{rV+3}], s{sT0} offen offset:{u*1024}{NT} lds")
        vissue(('P', n), 4)
    def wo_srd():
        p(f"""
        s_mul_i32 s{sT0}, s{sXc}, {512*1152}
        s_mul_i32 s{sT1}, s{sJj}, 288
        s_add_u32 s{sT0}, s{sT0}, s{sT1}
        s_add_u32 s{rW}, s{sWo}, s{sT0}
        s_addc_u32 s{rW+1}, s{sWo+1}, 0
        s_sub_u32 s{rW+2}, {4096*1152}, s{sT0}
        s_mov_b32 s{rW+3}, 0x20000
        """)
    def early_group(G):
        base = wo_addr(G)
        p(f"""
        s_lshl_b32 s{sT1}, s{sLw}, 10
        s_add_u32 m0, s{sT1}, {base}
        s_mov_b32 s{sT0}, {G*36864}
        buffer_load_dwordx4 v{vWoA}, s[{rW}:{rW+3}], s{sT0} offen lds
        s_add_u32 m0, s{sT1}, {base+4096}
        s_cmp_eq_u32 s{sLw}, 0
        buffer_load_dwordx4 v{vWoB}, s[{rW}:{rW+3}], s{sT0} offen lds
        """)
        l = nl('EG')
        p(f"s_cbranch_scc0 {l}")
        p(f"s_mov_b32 m0, {base+8192}")
        p(f"buffer_load_dwordx4 v{vWoC}, s[{rW}:{rW+3}], s{sT0} offen lds")
        p.label(l)
        vissue(('G', G), 2)
    def wo_touch():
        l = nl('WOT')
        p(f"""
        s_cmp_eq_u32 s{sWave}, 6
        s_cbranch_scc0 {l}
        s_mul_i32 s{sT0}, s{sXc}, {512*1152}
        s_add_u32 s{rX}, s{sWo}, s{sT0}
        s_addc_u32 s{rX+1}, s{sWo+1}, 0
        s_mov_b32 s{rX+2}, {512*1152}
        s_mov_b32 s{rX+3}, 0x20000
        s_lshr_b32 s{sT0}, s2, 3
        s_mul_i32 s{sT0}, s{sT0}, 18432
        v_lshlrev_b32 v2, 7, v{vL}
        buffer_load_dword v{vDum}, v2, s[{rX}:{rX+3}], s{sT0} offen
        s_add_u32 s{sT0}, s{sT0}, 8192
        buffer_load_dword v{vDum}, v2, s[{rX}:{rX+3}], s{sT0} offen
        s_add_u32 s{sT0}, s{sT0}, 8192
        v_cmp_gt_u32 vcc, 16, v{vL}
        s_and_saveexec_b64 s[58:59], vcc
        buffer_load_dword v{vDum}, v2, s[{rX}:{rX+3}], s{sT0} offen
        s_mov_b64 exec, s[58:59]
        """)
        p.label(l)

    for c in range(9):
        p(f"s_waitcnt vmcnt({vneed(('C', c))})")
        bar('l')
        if c == 0: stamp(p, o, 1)
        if 1 <= c <= 5: issue_chunk(c + 3)
        if c == o.kdel: issue_pos(0); issue_pos(1)
        if c == o.kdel + 1: issue_pos(2); issue_pos(3)
    bar('l')
    for n in range(4, LEAD): issue_pos(n)
    bar('l')
    p(f"s_waitcnt vmcnt({vneed(('P', 0))})")
    bar('l')
    issue_pos(LEAD)
    p(f"s_waitcnt vmcnt({vneed(('P', 1))})")
    bar('l')
    issue_pos(LEAD + 1)
    VQ = {0: list(vq), 1: list(vq)}
    def need_in(q, tag):
        idx = [i for i, t in enumerate(q) if t == tag]
        if not idx: return 63
        n = len(q) - 1 - idx[-1]
        del q[:idx[-1] + 1]
        return min(n, 63)
    Wa, Wb = [], []
    pars = (0, 1) if o.skew else (0,)
    for i in range(NR):
        Wa.append(min(need_in(VQ[q], ('P', 2 * i + 2)) for q in pars))
        for q in pars: VQ[q].extend([('P', 2 * i + 2 + LEAD + q)] * 4)
        Wb.append(min(need_in(VQ[q], ('P', 2 * i + 3)) for q in pars))
        for q in pars: VQ[q].extend([('P', 2 * i + 3 + LEAD - q)] * 4)
    wa, wb = min(Wa), min(Wb)
    print('loader loop waits', Wa, Wb, file=sys.stderr)
    p(f"""
    s_and_b32 s{sPar}, s{sH}, {1 if o.skew else 0}
    s_mov_b32 s{sIss}, {S_[(2+LEAD) % NSLOT]}
    s_mov_b32 s{sIssB}, {S_[(3+LEAD) % NSLOT]}
    s_add_u32 s{sVoff}, s{sGof}, {HL*8192}
    s_add_u32 s{sKoff}, s{sGof}, {(2+HL)*8192}
    s_mov_b32 s{sCnt}, 0
    """)
    for u in range(4):
        p(f"v_mov_b32 v{vOa+u}, v{vVo}")
        p(f"v_mov_b32 v{vOb+u}, v{vKo+u}")
    if o.skew:
        p(f"""
        s_cmp_eq_u32 s{sPar}, 0
        s_cbranch_scc1 K1_PAR0
        s_mov_b32 s{sIss}, {S_[1]}
        s_mov_b32 s{sIssB}, {S_[0]}
        s_add_u32 s{sVoff}, s{sGof}, {6*8192}
        s_add_u32 s{sKoff}, s{sGof}, {4*8192}
        s_mov_b32 s{sT0}, s{rK}
        s_mov_b32 s{sT1}, s{rK+1}
        s_mov_b32 s{rK}, s{rV}
        s_mov_b32 s{rK+1}, s{rV+1}
        s_mov_b32 s{rV}, s{sT0}
        s_mov_b32 s{rV+1}, s{sT1}
        """)
        for u in range(4):
            p(f"v_mov_b32 v{vOa+u}, v{vKo+u}")
            p(f"v_mov_b32 v{vOb+u}, v{vVo}")
        p.label("K1_PAR0")
    def adv_iss(sreg):
        p(f"""
        s_add_u32 s{sreg}, s{sreg}, {2*SLOT}
        s_cmp_ge_u32 s{sreg}, {NSLOT*SLOT}
        s_cselect_b32 s{sT0}, {NSLOT*SLOT}, 0
        s_sub_u32 s{sreg}, s{sreg}, s{sT0}
        """)
    p.label("K1_LLOOP")
    p(f"s_waitcnt vmcnt({wa})")
    p("s_barrier")
    p(f"s_add_u32 m0, s{sIss}, s{sL4096}")
    for u in range(4):
        p(f"buffer_load_dwordx4 v{vOa+u}, s[{rV}:{rV+3}], s{sVoff} offen offset:{u*1024}{NT} lds")
    adv_iss(sIss)
    p(f"s_add_u32 s{sVoff}, s{sVoff}, 8192")
    p(f"s_waitcnt vmcnt({wb})")
    p("s_barrier")
    p(f"s_add_u32 m0, s{sIssB}, s{sL4096}")
    for u in range(4):
        p(f"buffer_load_dwordx4 v{vOb+u}, s[{rK}:{rK+3}], s{sKoff} offen offset:{u*1024}{NT} lds")
    adv_iss(sIssB)
    p(f"s_add_u32 s{sKoff}, s{sKoff}, 8192")
    l = nl('WTT')
    p(f"s_cmp_eq_u32 s{sCnt}, {o.wotat}")
    p(f"s_cbranch_scc0 {l}")
    wo_touch()
    p.label(l)
    p(f"""
    s_add_u32 s{sCnt}, s{sCnt}, 1
    s_cmp_lt_u32 s{sCnt}, {NR}
    s_cbranch_scc1 K1_LLOOP
    """)
    nbar['l'] += 2 * NR
    if o.skew:
        p(f"""
        s_cmp_eq_u32 s{sPar}, 0
        s_cbranch_scc1 K1_PAR2
        s_mov_b32 s{sT0}, s{rK}
        s_mov_b32 s{sT1}, s{rK+1}
        s_mov_b32 s{rK}, s{rV}
        s_mov_b32 s{rK+1}, s{rV+1}
        s_mov_b32 s{rV}, s{sT0}
        s_mov_b32 s{rV+1}, s{sT1}
        """)
        p.label("K1_PAR2")
    wo_srd()
    p(f"""
    s_cmp_eq_u32 s{sWave}, 7
    s_cbranch_scc0 K1_NL
    v_mov_b32 v8, 0
    global_load_dwordx2 v[{vNon}:{vNon+1}], v8, s[{sDbg}:{sDbg+1}] sc1
    """)
    p.label("K1_NL")
    sched0 = {('a', 11): [0], ('b', 11): [1, 2], ('a', 12): [3, 4], ('b', 12): [5, 6], ('a', 13): [7], ('b', 13): [8, 9], ('a', 14): [10, 11]}
    lastv = 15 - HL
    order = [(t, i) for i in range(10, 15) for t in ('a', 'b')]
    sched = {}
    for key in order:
        for G in sched0.get(key, []):
            k2 = key
            if (key[1], key[0]) < (lastv, 'a'): k2 = ('a', lastv)
            sched.setdefault(k2, []).append(G)
    def issue_pos_par(n, par):
        if par is None or not o.skew:
            sv = list(vq); issue_pos(n); del vq[:]; vq.extend(sv)
            for q in pars: VQ[q].extend([('P', n)] * 4)
            return
        l = nl('IP')
        p(f"s_cmp_eq_u32 s{sPar}, {par}")
        p(f"s_cbranch_scc0 {l}")
        sv = list(vq); issue_pos(n); del vq[:]; vq.extend(sv)
        p.label(l)
        VQ[par].extend([('P', n)] * 4)
    def eg(G):
        sv = list(vq); early_group(G); del vq[:]; vq.extend(sv)
        for q in pars: VQ[q].extend([('G', G)] * 2)
    for i in range(NR, 16):
        p(f"s_waitcnt vmcnt({min(need_in(VQ[q], ('P', 2 * i + 2)) for q in pars)})")
        bar('l')
        if i + HL <= 15: issue_pos_par(2 * i + 2 + LEAD, 0 if o.skew else None)
        if not (o.skew and i == 11):
            for G in sched.get(('a', i), []):
                if G < NEARLY: eg(G)
        if i <= 13:
            p(f"s_waitcnt vmcnt({min(need_in(VQ[q], ('P', 2 * i + 3)) for q in pars)})")
            bar('l')
            if o.skew and i <= 11: issue_pos_par(2 * i + 10, 1)
            if o.skew and i == 11:
                for G in sched.get(('a', i), []):
                    if G < NEARLY: eg(G)
            for G in sched.get(('b', i), []):
                if G < NEARLY: eg(G)
    p(f"""
    s_mov_b32 s{rO}, s{sWs}
    s_mov_b32 s{rO+1}, s{sWs+1}
    s_mov_b32 s{rO+2}, {WS_SIZE}
    s_mov_b32 s{rO+3}, 0x20000
    """)
    bar('l')
    p(f"""
    s_cmp_eq_u32 s{sWave}, 7
    s_cbranch_scc0 K1_NON2
    s_waitcnt vmcnt(0)
    s_mov_b32 s{sT2}, 0
    """)
    p.label("K1_NONP")
    p(f"""
    v_readfirstlane_b32 s{sT0}, v{vNon}
    s_add_u32 s{sT2}, s{sT2}, 1
    s_cmp_lg_u32 s{sT0}, 0
    s_cbranch_scc1 K1_NONOK
    s_cmp_lt_u32 s{sT2}, {SPIN}
    s_cbranch_scc0 K1_NONOK
    v_mov_b32 v8, 0
    global_load_dwordx2 v[{vNon}:{vNon+1}], v8, s[{sDbg}:{sDbg+1}] sc1
    s_waitcnt vmcnt(0)
    s_branch K1_NONP
    """)
    p.label("K1_NONOK")
    p(f"""
    v_mov_b32 v6, {NONL}
    ds_write_b64 v6, v[{vNon}:{vNon+1}]
    s_and_b32 s{sT0}, s{sWg}, 0xfc
    s_lshl_b32 s{sT0}, s{sT0}, 7
    s_add_u32 s{sT0}, s{sT0}, {WS_FLAG}
    v_and_b32 v12, 3, v{vL}
    v_lshlrev_b32 v13, 7, v12
    buffer_load_dword v11, v13, s[{rO}:{rO+3}], s{sT0} offen sc1
    s_waitcnt lgkmcnt(0)
    """)
    p.label("K1_NON2")
    bar('l')
    p(f"""
    v_mov_b32 v6, {NONL}
    ds_read_b64 v[8:9], v6
    s_cmp_eq_u32 s{sWave}, 7
    s_cbranch_scc0 K1_RDY
    s_waitcnt vmcnt(0)
    v_cmp_eq_u32 vcc, v11, v{vNon}
    v_cmp_eq_u32 s[58:59], s{sJj}, v12
    s_or_b64 vcc, vcc, s[58:59]
    s_cmp_eq_u64 vcc, -1
    s_cselect_b32 s{sT0}, {1 if o.fast else 0}, 0
    v_mov_b32 v12, s{sT0}
    v_mov_b32 v6, {NONL+8}
    ds_write_b32 v6, v12
    """)
    p.label("K1_RDY")
    if o.e3:
        bar('l')
        for G in range(NEARLY, 16): early_group(G)
    p("s_branch K1_TAIL")

    p.label("K1_COMPUTE")
    p(f"""
    s_and_b32 s{sQh}, s{sWave}, 1
    s_lshr_b32 s{sKh}, s{sWave}, 1
    s_mov_b32 s{sC}, 0x{f32bits(SCALE_LOG2E):08x}
    v_lshl_add_u32 v8, v6, 3, v4
    v_lshlrev_b32 v8, 8, v8
    v_lshrrev_b32 v9, 1, v5
    v_lshl_add_u32 v8, v9, 3, v8
    v_and_b32 v9, 1, v3
    v_lshlrev_b32 v9, 1, v9
    v_and_b32 v2, 1, v5
    v_add_u32 v9, v9, v2
    v_lshlrev_b32 v2, 2, v4
    s_lshl_b32 s{sT0}, s{sKh}, 3
    """)
    for a in range(2):
        p(f"""
        v_add_u32 v19, s{sT0}, v9
        v_xor_b32 v19, v19, v2
        v_lshl_add_u32 v{vLW+a}, v19, 4, v8
        s_add_u32 s{sT0}, s{sT0}, 4
        """)
    p(f"""
    s_lshl_b32 s{sT0}, s{sQh}, 5
    v_add_u32 v8, s{sT0}, v7
    v_lshrrev_b32 v9, 1, v8
    v_and_b32 v9, 7, v9
    v_xor_b32 v9, v9, v6
    v_lshlrev_b32 v9, 4, v9
    v_lshl_add_u32 v{vLX}, v8, 7, v9
    s_lshl_b32 s{sT0}, s{sKh}, 5
    v_add_u32 v8, s{sT0}, v7
    v_and_b32 v9, 15, v8
    v_xor_b32 v9, v9, v6
    v_lshlrev_b32 v9, 4, v9
    v_lshl_add_u32 v{vLK}, v8, 8, v9
    v_lshl_add_u32 v8, v6, 2, v4
    v_add_u32 v8, s{sT0}, v8
    v_lshlrev_b32 v8, 8, v8
    v_and_b32 v9, 1, v5
    v_lshl_add_u32 v8, v9, 3, v8
    v_and_b32 v9, 1, v3
    v_lshlrev_b32 v9, 1, v9
    v_lshrrev_b32 v2, 1, v5
    v_add_u32 v9, v9, v2
    v_lshlrev_b32 v2, 2, v4
    """)
    for a in range(4):
        p(f"""
        s_lshl_b32 s{sT1}, s{sKh}, 1
        s_add_u32 s{sT1}, s{sT1}, {a}
        s_and_b32 s{sT1}, s{sT1}, 3
        s_lshl_b32 s{sT1}, s{sT1}, 2
        v_add_u32 v19, s{sT1}, v9
        v_xor_b32 v19, v19, v2
        v_lshl_add_u32 v{vLV+a}, v19, 4, v8
        """)
    for i in range(32):
        p(f"v_mov_b32 v{vS[0]+i}, 0")
    p(f"""
    v_mov_b32 v{vM}, 0xf149f2ca
    v_mov_b32 v{vThr}, 0xf149f2ca
    v_mov_b32 v{vL0}, 0
    v_mov_b32 v{vL1}, 0
    """)
    def wo_voffs():
        p(f"""
        s_movk_i32 s{sT0}, 3641
        s_movk_i32 s{sT1}, 1152
        """)
        for i in range(9):
            p(f"""
            v_add_u32 v2, {64*i}, v{vL}
            v_mul_u32_u24 v3, s{sT0}, v2
            v_lshrrev_b32 v3, 16, v3
            v_mul_u32_u24 v4, 18, v3
            v_sub_u32 v4, v2, v4
            v_mul_u32_u24 v3, s{sT1}, v3
            v_lshl_add_u32 v3, v4, 4, v3
            v_subrev_u32 v{vOff+i}, {(i%4)*1024}, v3
            """)
    wo_voffs()
    p("s_waitcnt lgkmcnt(0)")
    stamp(p, o, 0)
    A0 = vKA
    def q_phase(c, reads):
        f = QB[(c - 1) % 2]
        rd = list(reads)
        for ks in range(4):
            for a in range(2):
                if c >= 1:
                    p(f"{MF} {rg(vS[a],16)}, {rg(f+12*ks+4*a,4)}, {rg(f+12*ks+8,4)}, {rg(vS[a],16)}")
                for _ in range(3 if a == 0 else 2):
                    if rd: p(rd.pop(0))
        for r_ in rd: p(r_)
    for c in range(9):
        qs = QS[c % 4]
        f = QB[c % 2]
        p(f"""
        v_add_u32 v{A0}, {qs}, v{vLW}
        v_add_u32 v{A0+1}, {qs}, v{vLW+1}
        v_add_u32 v{A0+2}, {qs+16384}, v{vLX}
        v_xor_b32 v{A0+3}, 32, v{A0+2}
        v_xor_b32 v{A0+4}, 64, v{A0+2}
        v_xor_b32 v{A0+5}, 96, v{A0+2}
        s_waitcnt lgkmcnt(0)
        """)
        bar('c')
        if c == 0: stamp(p, o, 1)
        reads = []
        for ks in range(4):
            for a in range(2):
                reads.append(f"ds_read_b64_tr_b16 {rg(f+12*ks+4*a,2)}, v{A0+a} offset:{ks*4096}")
                reads.append(f"ds_read_b64_tr_b16 {rg(f+12*ks+4*a+2,2)}, v{A0+a} offset:{ks*4096+1024}")
            reads.append(f"ds_read_b128 {rg(f+12*ks+8,4)}, v{A0+2+ks}")
        q_phase(c, reads)
    p("s_waitcnt lgkmcnt(0)")
    bar('c')
    q_phase(9, [])
    stamp(p, o, 2)
    p(f"""
    s_lshl_b32 s{sT0}, s{sQh}, 13
    s_add_u32 s{sT0}, s{sT0}, {QX}
    s_lshl_b32 s{sT1}, s{sKh}, 12
    s_add_u32 s{sT1}, s{sT1}, s{sT0}
    v_lshlrev_b32 v2, 4, v{vL}
    v_add_u32 v3, s{sT1}, v2
    v_add_u32 v2, s{sT0}, v2
    """)
    p(f"v_mov_b32 v{vKA}, v{vLK}")
    for s in range(1, 8):
        p(f"v_xor_b32 v{vKA+s}, {s<<5}, v{vLK}")
    for i in range(64):
        p(f"v_mov_b32 v{vO+i}, 0")
    for a in range(2):
        for j in range(8):
            p(f"v_cvt_pk_bf16_f32 v{vVf+8*a+j}, v{vS[a]+2*j}, v{vS[a]+2*j+1}")
    for k in range(4):
        p(f"ds_write_b128 v3, {rg(vVf+4*k,4)} offset:{k*1024}")
    p("s_waitcnt lgkmcnt(0)")
    bar('c')
    for s in range(8):
        p(f"ds_read_b128 {rg(vQ+4*s,4)}, v2 offset:{s*1024}")

    def k_addrs(sreg):
        p(f"v_add_u32 v{vKA}, s{sreg}, v{vLK}")
        for s in range(1, 8):
            p(f"v_xor_b32 v{vKA+s}, {s<<5}, v{vKA}")
    def v_addrs(sreg):
        for a in range(4):
            p(f"v_add_u32 v{vVA+a}, s{sreg}, v{vLV+a}")
    def adv2(s):
        p(f"""
        s_add_u32 s{s}, s{s}, {2*SLOT}
        s_cmp_ge_u32 s{s}, {NSLOT*SLOT}
        s_cselect_b32 s{sT0}, {NSLOT*SLOT}, 0
        s_sub_u32 s{s}, s{s}, s{sT0}
        """)
    def tmax(S):
        p(f"""
        v_max3_f32 v2, v{S}, v{S+1}, v{S+2}
        v_max3_f32 v3, v{S+3}, v{S+4}, v{S+5}
        v_max3_f32 v2, v2, v{S+6}, v{S+7}
        v_max3_f32 v3, v3, v{S+8}, v{S+9}
        v_max3_f32 v2, v2, v{S+10}, v{S+11}
        v_max3_f32 v3, v3, v{S+12}, v{S+13}
        v_max3_f32 v2, v2, v{S+14}, v{S+15}
        v_max_f32 v2, v2, v3
        v_mov_b32 v3, v2
        s_nop 1
        v_permlane32_swap_b32 v2, v3
        v_max_f32 v2, v2, v3
        v_mul_f32 v{vTn}, s{sC}, v2
        """)
    p("s_waitcnt lgkmcnt(0)")
    bar('c')
    stamp(p, o, 3)
    for s in range(8):
        p(f"ds_read_b128 {rg(vKf+4*s,4)}, v{vKA+s}")
    p(f"s_mov_b32 s{sRK}, {S_[1]}")
    k_addrs(sRK)
    p("s_waitcnt lgkmcnt(0)")
    bar('c')
    for s in range(8):
        c = '0' if s == 0 else rg(vS[0], 16)
        p(f"{MF} {rg(vS[0],16)}, {rg(vKf+4*s,4)}, {rg(vQ+4*s,4)}, {c}")
    for s in range(8):
        p(f"ds_read_b128 {rg(vKf+4*s,4)}, v{vKA+s}")
    p(f"""
    s_mov_b32 s{sRV}, {S_[2]}
    s_mov_b32 s{sRK}, {S_[3]}
    s_mov_b32 s{sCnt}, 0
    """)
    v_addrs(sRV)
    k_addrs(sRK)
    tmax(vS[0])

    def alpha(tag, cur, do_qk):
        S, Sn = vS[cur], vS[1 - cur]
        p("s_waitcnt lgkmcnt(0)")
        p("s_barrier")
        p(f"""
        v_cmp_gt_f32 vcc, v{vTn}, v{vThr}
        s_cbranch_vccnz K1_RS{tag}
        """)
        p.label(f"K1_BK{tag}")
        reads = [(a, ks, h) for a in range(4) for ks in range(2) for h in range(2)]
        for j in range(8):
            if do_qk:
                c = '0' if j == 0 else rg(Sn, 16)
                p(f"{MF} {rg(Sn,16)}, {rg(vKf+4*j,4)}, {rg(vQ+4*j,4)}, {c}")
            for (a, ks, h) in reads[2*j:2*j+2]:
                f = vVf + (a * 2 + ks) * 4 + 2 * h
                p(f"ds_read_b64_tr_b16 {rg(f,2)}, v{vVA+a} offset:{ks*4096+h*2048}")
            p(f"v_fma_f32 v{S+2*j}, v{S+2*j}, s{sC}, -v{vM}")
            p(f"v_fma_f32 v{S+2*j+1}, v{S+2*j+1}, s{sC}, -v{vM}")
            p(f"v_exp_f32 v{S+2*j}, v{S+2*j}")
            p(f"v_exp_f32 v{S+2*j+1}, v{S+2*j+1}")
            if j >= 1:
                k = j - 1
                p(f"v_cvt_pk_bf16_f32 v{vP+k}, v{S+2*k}, v{S+2*k+1}")
                p(f"v_add_f32 v{vL0}, v{vL0}, v{S+2*k}")
                p(f"v_add_f32 v{vL1}, v{vL1}, v{S+2*k+1}")
        p(f"v_cvt_pk_bf16_f32 v{vP+7}, v{S+14}, v{S+15}")
        p(f"v_add_f32 v{vL0}, v{vL0}, v{S+14}")
        p(f"v_add_f32 v{vL1}, v{vL1}, v{S+15}")

    def beta(tag, cur, read_k, do_tmax, barrier=True):
        Sn = vS[1 - cur]
        p("s_waitcnt lgkmcnt(0)")
        if barrier: p("s_barrier")
        n = 0
        for a in range(4):
            for ks in range(2):
                f = vVf + (a * 2 + ks) * 4
                p(f"{MF} {rg(vO+16*a,16)}, {rg(f,4)}, {rg(vP+4*ks,4)}, {rg(vO+16*a,16)}")
                if read_k:
                    p(f"ds_read_b128 {rg(vKf+4*n,4)}, v{vKA+n}")
                if n == 0:
                    adv2(sRV); adv2(sRK)
                if n == 1 and do_tmax:
                    tmax(Sn)
                if n == 3: v_addrs(sRV)
                n += 1
        k_addrs(sRK)

    def rescale(tag):
        p.label(f"K1_RS{tag}")
        p(f"""
        v_max_f32 v3, v{vTn}, v{vM}
        v_sub_f32 v4, v{vM}, v3
        v_exp_f32 v4, v4
        v_mov_b32 v{vM}, v3
        v_add_f32 v{vThr}, 0x41000000, v3
        """)
        p(f"v_mul_f32 v{vL0}, v{vL0}, v4")
        p(f"v_mul_f32 v{vL1}, v{vL1}, v4")
        for i in range(64):
            p(f"v_mul_f32 v{vO+i}, v{vO+i}, v4")
        p(f"s_branch K1_BK{tag}")

    p.label("K1_LOOP")
    alpha('L0', 0, True)
    beta('L0', 0, True, True)
    alpha('L1', 1, True)
    beta('L1', 1, True, True)
    p(f"""
    s_add_u32 s{sCnt}, s{sCnt}, 1
    s_cmp_lt_u32 s{sCnt}, 7
    s_cbranch_scc1 K1_LOOP
    """)
    nbar['c'] += 28
    stamp(p, o, 4)
    alpha('A', 0, True); nbar['c'] += 1
    beta('A', 0, False, True, barrier=False)
    alpha('B', 1, False); nbar['c'] += 1
    p("s_waitcnt lgkmcnt(0)")
    for a in (2, 3, 0, 1):
        for ks in range(2):
            f = vVf + (a * 2 + ks) * 4
            p(f"{MF} {rg(vO+16*a,16)}, {rg(f,4)}, {rg(vP+4*ks,4)}, {rg(vO+16*a,16)}")
    stamp(p, o, 5)
    vS0 = vS[0]
    p(f"""
    v_add_f32 v{vL0}, v{vL0}, v{vL1}
    v_mov_b32 v{vL1}, v{vL0}
    s_nop 1
    v_permlane32_swap_b32 v{vL0}, v{vL1}
    v_add_f32 v{vThr}, v{vL0}, v{vL1}
    v_and_b32 v7, 31, v{vL}
    v_lshlrev_b32 v7, 3, v7
    s_lshl_b32 s{sT0}, s{sWave}, 8
    s_add_u32 s{sT0}, s{sT0}, {STAT}
    s_xor_b32 s{sT1}, s{sWave}, 2
    s_lshl_b32 s{sT1}, s{sT1}, 8
    s_add_u32 s{sT1}, s{sT1}, {STAT}
    v_add_u32 v2, s{sT0}, v7
    v_add_u32 v7, s{sT1}, v7
    v_lshlrev_b32 v3, 4, v{vL}
    s_xor_b32 s{sT1}, s{sWave}, 2
    s_lshl_b32 s{sT1}, s{sT1}, 13
    s_add_u32 s{sT1}, s{sT1}, {EX}
    s_lshl_b32 s{sT0}, s{sWave}, 13
    s_add_u32 s{sT0}, s{sT0}, {EX}
    v_add_u32 v4, s{sT1}, v3
    v_add_u32 v5, s{sT0}, v3
    s_mov_b32 s{rO}, s{sWs}
    s_mov_b32 s{rO+1}, s{sWs+1}
    s_mov_b32 s{rO+2}, {WS_SIZE}
    s_mov_b32 s{rO+3}, 0x20000
    """)
    wo_srd()
    bar('c')
    stamp(p, o, 'e1')
    p(f"ds_write_b64 v2, v[{vM}:{vM+1}]")
    for a in (2, 3):
        for g in range(4):
            p(f"ds_write_b128 v4, {rg(vO+16*a+4*g,4)} offset:{(a-2)*4096+g*1024}")
    p("s_waitcnt lgkmcnt(0)")
    stamp(p, o, 'e2')
    bar('c')
    stamp(p, o, 'e3')
    p(f"ds_read_b64 v[{vS0}:{vS0+1}], v7")
    for a in range(2):
        for g in range(4):
            p(f"ds_read_b128 {rg(vO+32+16*a+4*g,4)}, v5 offset:{a*4096+g*1024}")
    p(f"""
    v_mov_b32 v6, {NONL}
    ds_read_b64 v[8:9], v6
    s_waitcnt lgkmcnt(9)
    v_max_f32 v2, v{vM}, v{vS0}
    v_sub_f32 v3, v{vM}, v2
    v_sub_f32 v4, v{vS0}, v2
    v_exp_f32 v3, v3
    v_exp_f32 v4, v4
    v_mul_f32 v5, v3, v{vThr}
    v_fmac_f32 v5, v4, v{vS0+1}
    v_rcp_f32 v6, v5
    v_mul_f32 v3, v3, v6
    v_mul_f32 v4, v4, v6
    """)
    for i in range(32):
        p(f"v_mul_f32 v{vO+i}, v{vO+i}, v3")
    for a in range(2):
        p(f"s_waitcnt lgkmcnt({5-4*a})")
        for i in range(16):
            p(f"v_fmac_f32 v{vO+16*a+i}, v{vO+32+16*a+i}, v4")
    if o.e3:
        bar('c')
    order = [0, 2, 1, 3]
    for a in range(2):
        for idx, g in enumerate(order):
            p(f"v_cvt_pk_bf16_f32 v{vKf+8*a+2*idx}, v{vO+16*a+4*g}, v{vO+16*a+4*g+1}")
            p(f"v_cvt_pk_bf16_f32 v{vKf+8*a+2*idx+1}, v{vO+16*a+4*g+2}, v{vO+16*a+4*g+3}")
    stamp(p, o, 'e4')
    p(f"""
    v_and_b32 v2, 15, v{vL}
    v_lshrrev_b32 v3, 5, v{vL}
    v_lshl_add_u32 v2, v3, 4, v2
    v_lshlrev_b32 v2, 4, v2
    v_bfe_u32 v3, v{vL}, 4, 1
    v_lshl_add_u32 v2, v3, 12, v2
    s_lshl_b32 s{sT0}, s{sWg}, 14
    s_lshl_b32 s{sT1}, s{sQh}, 13
    s_add_u32 s{sT0}, s{sT0}, s{sT1}
    s_lshl_b32 s{sT1}, s{sKh}, 11
    s_add_u32 s{sT0}, s{sT0}, s{sT1}
    """)
    for a in range(2):
        p(f"buffer_store_dwordx4 {rg(vKf+8*a,4)}, v2, s[{rO}:{rO+3}], s{sT0} offen offset:{a*1024} sc1")
        p(f"buffer_store_dwordx4 {rg(vKf+8*a+4,4)}, v2, s[{rO}:{rO+3}], s{sT0} offen offset:{a*1024+512} sc1")
    assert nbar['c'] == nbar['l'], nbar
    print('barriers', nbar, file=sys.stderr)
    p.label("K1_TAIL")
    if o.prio: p("s_setprio 0")
    tail(p, o, locals())
    for tag in ('L0', 'L1', 'A', 'B'):
        rescale(tag)
    p.label("K1_END")
    p("s_endpgm")
    return p

def tail(p, o, L):
    g = lambda n: L[n]
    sWave, sB, sXc, sJj, sWg, sT0, sT1, sT2 = g('sWave'), g('sB'), g('sXc'), g('sJj'), g('sWg'), g('sT0'), g('sT1'), g('sT2')
    rO, rW, rX, sN, sTag, sOut, sWs = g('rO'), g('rW'), g('rX'), g('sN'), g('sTag'), g('sOut'), g('sWs')
    vL, vOff, wo_addr, NEARLY, NONL, wo_voffs = g('vL'), g('vOff'), g('wo_addr'), g('NEARLY'), g('NONL'), g('wo_voffs')
    sQt, sKh2 = 40, 41
    vAcc, vB, vF, vLA, vAd = 28, 64, 96, 19, 20
    sFast = 52
    p(f"""
    s_cmp_lt_u32 s{sWave}, 4
    s_cbranch_scc0 T_E4L
    s_waitcnt vmcnt(0) lgkmcnt(0)
    s_branch T_E4
    """)
    p.label("T_E4L")
    p("s_waitcnt lgkmcnt(0)")
    p.label("T_E4")
    p(f"""
    v_readfirstlane_b32 s{sN}, v8
    v_readfirstlane_b32 s{sN+1}, v9
    s_barrier
    """)
    if o.stamps: stamp(p, o, 6)
    def b_loads():
        p(f"""
        s_and_b32 s{sT0}, s{sWg}, 0xfc
        s_lshl_b32 s{sT1}, s{sKh2}, 1
        s_add_u32 s{sT0}, s{sT0}, s{sT1}
        s_lshl_b32 s{sT0}, s{sT0}, 14
        s_lshl_b32 s{sT1}, s{sQt}, 12
        s_add_u32 s{sT0}, s{sT0}, s{sT1}
        s_add_u32 s{sT1}, s{sT0}, 16384
        """)
        for kk in range(8):
            p(f"buffer_load_dwordx4 {rg(vB+4*kk,4)}, v5, s[{rO}:{rO+3}], s{sT0 if kk < 4 else sT1} offen offset:{(kk&3)*1024} sc1")
    p(f"""
    s_and_b32 s{sQt}, s{sWave}, 3
    s_lshr_b32 s{sKh2}, s{sWave}, 2
    v_lshlrev_b32 v5, 4, v{vL}
    v_mov_b32 v6, {NONL+8}
    ds_read_b32 v12, v6
    s_cmp_eq_u32 s{sWave}, 7
    s_cbranch_scc0 T_F0
    v_mov_b32 v9, s{sN}
    s_lshl_b32 s{sT0}, s{sWg}, 7
    s_add_u32 s{sT0}, s{sT0}, {WS_FLAG}
    v_mov_b32 v3, 0
    v_cmp_eq_u32 vcc, 0, v{vL}
    s_and_saveexec_b64 s[58:59], vcc
    buffer_store_dword v9, v3, s[{rO}:{rO+3}], s{sT0} offen sc1
    s_mov_b64 exec, s[58:59]
    """)
    p.label("T_F0")
    p(f"""
    s_waitcnt lgkmcnt(0)
    v_readfirstlane_b32 s{sFast}, v12
    s_cmp_eq_u32 s{sFast}, 0
    s_cbranch_scc1 T_SLOW
    """)
    b_loads()
    p.label("T_SLOW")
    p(f"""
    s_cmp_eq_u32 s{sWave}, 7
    s_cbranch_scc0 T_NOFLAG
    s_cmp_eq_u32 s{sFast}, 0
    s_cbranch_scc0 T_SETUP
    s_and_b32 s{sT0}, s{sWg}, 0xfc
    s_lshl_b32 s{sT0}, s{sT0}, 7
    s_add_u32 s{sT0}, s{sT0}, {WS_FLAG}
    v_and_b32 v8, 3, v{vL}
    v_lshlrev_b32 v8, 7, v8
    s_mov_b32 s{sT1}, 0
    buffer_load_dword v10, v8, s[{rO}:{rO+3}], s{sT0} offen sc1
    buffer_load_dword v11, v8, s[{rO}:{rO+3}], s{sT0} offen sc1
    """)
    p("s_branch T_SETUP")
    p.label("T_NOFLAG")
    p.label("T_SETUP")
    if not o.e3:
        p("s_barrier")
        nlate = 16 - NEARLY
        p(f"""
        s_cmp_lt_u32 s{sWave}, {min(nlate, 4)}
        s_cbranch_scc0 T_NOLATE
        """)
        for rep in range((nlate + 3) // 4):
            if rep > 0:
                p(f"s_cmp_lt_u32 s{sWave}, {nlate - 4*rep}")
                p("s_cbranch_scc0 T_NOLATE")
            p(f"s_add_u32 s{sT2}, s{sWave}, {NEARLY + 4*rep}")
            p(f"""
            s_mul_i32 s{sT1}, s{sT2}, 9216
            s_add_u32 s{sT0}, s{sT1}, 49152
            s_sub_u32 s{sT1}, s{sT1}, {12*9216}
            s_cmp_lt_u32 s{sT2}, 12
            s_cselect_b32 s{sT1}, s{sT0}, s{sT1}
            s_mul_i32 s{sT0}, s{sT2}, 36864
            """)
            for i in range(9):
                if i % 4 == 0:
                    p(f"s_add_u32 m0, s{sT1}, {(i//4)*4096}")
                p(f"buffer_load_dwordx4 v{vOff+i}, s[{rW}:{rW+3}], s{sT0} offen offset:{(i%4)*1024} lds")
    p.label("T_NOLATE")
    p(f"""
    v_lshrrev_b32 v2, 4, v{vL}
    v_and_b32 v3, 15, v{vL}
    v_lshrrev_b32 v4, 2, v3
    v_and_b32 v6, 3, v3
    v_lshl_add_u32 v2, v2, 2, v4
    v_mul_u32_u24 v2, 288, v2
    v_lshl_add_u32 v{vLA}, v6, 3, v2
    s_and_b32 s{sTag}, s{sN}, 0xfff
    s_lshr_b32 s{sTag+1}, s{sN}, 12
    s_and_b32 s{sTag+1}, s{sTag+1}, 0xfff
    s_lshr_b32 s{sTag+2}, s{sN}, 24
    s_lshl_b32 s{sT2}, s{sN+1}, 8
    s_or_b32 s{sTag+2}, s{sTag+2}, s{sT2}
    s_and_b32 s{sTag+2}, s{sTag+2}, 0xfff
    s_lshr_b32 s{sTag+3}, s{sN+1}, 4
    s_and_b32 s{sTag+3}, s{sTag+3}, 0xfff
    v_mov_b32 v7, 0xfffff000
    """)
    vTagHi = 22
    if o.pk:
        p(f"""
        s_lshl_b32 s{sTag}, s{sN}, 16
        s_and_b32 s{sTag+1}, s{sN}, 0xffff0000
        s_lshl_b32 s{sT2}, s{sN+1}, 16
        s_xor_b32 s{sTag+2}, s{sTag}, s{sT2}
        s_xor_b32 s{sTag+2}, s{sTag+2}, 0x5a5a0000
        s_xor_b32 s{sTag+3}, s{sTag+1}, s{sT2}
        s_xor_b32 s{sTag+3}, s{sTag+3}, 0xa5c30000
        v_and_b32 v3, 3, v{vL}
        v_mov_b32 v{vTagHi}, s{sTag}
        v_mov_b32 v4, s{sTag+1}
        v_cmp_eq_u32 vcc, 1, v3
        v_cndmask_b32 v{vTagHi}, v{vTagHi}, v4, vcc
        v_mov_b32 v4, s{sTag+2}
        v_cmp_eq_u32 vcc, 2, v3
        v_cndmask_b32 v{vTagHi}, v{vTagHi}, v4, vcc
        v_mov_b32 v4, s{sTag+3}
        v_cmp_eq_u32 vcc, 3, v3
        v_cndmask_b32 v{vTagHi}, v{vTagHi}, v4, vcc
        """)
    for i in range(36):
        p(f"v_mov_b32 v{vAcc+i}, 0")
    p(f"""
    s_cmp_eq_u32 s{sWave}, 7
    s_cbranch_scc0 T_NOPOLL
    s_cmp_eq_u32 s{sFast}, 0
    s_cbranch_scc0 T_NOPOLL
    s_and_b32 s{sT0}, s{sWg}, 0xfc
    s_lshl_b32 s{sT0}, s{sT0}, 7
    s_add_u32 s{sT0}, s{sT0}, {WS_FLAG}
    s_mov_b32 s{sT1}, 0
    """)
    p.label("T_POLL1")
    p(f"""
    s_waitcnt vmcnt(1)
    v_cmp_ne_u32 vcc, v10, v9
    s_cbranch_vccz T_NOPOLL
    buffer_load_dword v10, v8, s[{rO}:{rO+3}], s{sT0} offen sc1
    s_add_u32 s{sT1}, s{sT1}, 1
    s_waitcnt vmcnt(1)
    v_cmp_ne_u32 vcc, v11, v9
    s_cbranch_vccz T_NOPOLL
    buffer_load_dword v11, v8, s[{rO}:{rO+3}], s{sT0} offen sc1
    s_cmp_lt_u32 s{sT1}, {SPIN}
    s_cbranch_scc1 T_POLL1
    """)
    p.label("T_NOPOLL")
    p(f"""
    s_waitcnt vmcnt(0)
    s_barrier
    """)
    if o.stamps: stamp(p, o, 7)
    p(f"s_cmp_eq_u32 s{sFast}, 0")
    p("s_cbranch_scc0 T_BDONE")
    b_loads()
    p.label("T_BDONE")
    if o.gopt: gemm_opt(p, vAcc, vB, vF, vAd, vLA, sKh2, sT2, wo_addr)
    else: gen9.gemm_body(p, vAcc, vB, vF, vAd, vLA, sKh2, sT2, wo_addr, [0, 1, 2, 3, 4], [5, 6, 7, 8], True)
    if o.stamps: stamp(p, o, 8)
    p(f"""
    s_barrier
    s_mul_i32 s{sT0}, s{sQt}, 9216
    v_add_u32 v2, s{sT0}, v5
    s_cmp_eq_u32 s{sKh2}, 0
    s_cbranch_scc0 T_H1
    """)
    for nt in range(5, 9):
        p(f"ds_write_b128 v2, {rg(vAcc+4*nt,4)} offset:{nt*1024}")
    p("s_branch T_H2")
    p.label("T_H1")
    for nt in range(0, 5):
        p(f"ds_write_b128 v2, {rg(vAcc+4*nt,4)} offset:{nt*1024}")
    p.label("T_H2")
    p(f"""
    s_lshl_b32 s{sT0}, s{sXc}, 3
    s_add_u32 s{sT0}, s{sT0}, s{sB}
    s_lshl_b32 s{sT0}, s{sT0}, 2
    s_add_u32 s{sT0}, s{sT0}, s{sJj}
    s_lshl_b32 s{sT0}, s{sT0}, 2
    s_add_u32 s{sT0}, s{sT0}, s{sQt}
    """)
    if o.pk:
        p(f"""
        s_lshl_b32 s{sT0}, s{sT0}, 1
        s_add_u32 s{sT0}, s{sT0}, s{sKh2}
        s_mul_i32 s{sT0}, s{sT0}, 3072
        """)
    else:
        p(f"s_mul_i32 s{sT0}, s{sT0}, 9216")
    p(f"""
    s_add_u32 s{sT0}, s{sT0}, {WS_PART}
    s_waitcnt lgkmcnt(0)
    s_barrier
    s_cmp_eq_u32 s{sKh2}, 0
    s_cbranch_scc0 T_H3
    """)
    def fin(nts):
        for nt in nts:
            p(f"ds_read_b128 {rg(vF+4*nt,4)}, v2 offset:{nt*1024}")
        for idx, nt in enumerate(nts):
            p(f"s_waitcnt lgkmcnt({len(nts)-1-idx})")
            for e in range(4):
                p(f"v_add_f32 v{vAcc+4*nt+e}, v{vAcc+4*nt+e}, v{vF+4*nt+e}")
            if not o.pk:
                for e in range(4):
                    p(f"v_and_or_b32 v{vAcc+4*nt+e}, v{vAcc+4*nt+e}, v7, s{sTag+e}")
                p(f"s_add_u32 s{sT1}, s{sT0}, {(nt//4)*4096}")
                p(f"buffer_store_dwordx4 {rg(vAcc+4*nt,4)}, v5, s[{rO}:{rO+3}], s{sT1} offen offset:{(nt%4)*1024} sc1")
        if o.pk:
            V = [vAcc + 4 * nt + e for nt in nts for e in range(4)]
            vG = 140
            for gi in range(3):
                vals = V[7 * gi: 7 * gi + 7]
                vals += [None] * (7 - len(vals))
                for d in range(3):
                    a, b = vals[2 * d], vals[2 * d + 1]
                    dst = vG + 4 * gi + d
                    if a is None: p(f"v_mov_b32 v{dst}, 0")
                    else: p(f"v_cvt_pk_bf16_f32 v{dst}, v{a}, {'v%d' % b if b is not None else '0'}")
                dst = vG + 4 * gi + 3
                if vals[6] is None:
                    p(f"v_mov_b32 v{dst}, v{vTagHi}")
                else:
                    p(f"v_cvt_pk_bf16_f32 v{dst}, v{vals[6]}, 0")
                    p(f"v_or_b32 v{dst}, v{dst}, v{vTagHi}")
                p(f"buffer_store_dwordx4 {rg(vG+4*gi,4)}, v5, s[{rO}:{rO+3}], s{sT0} offen offset:{gi*1024} sc1")
    fin(list(range(0, 5)))
    p("s_branch T_H4")
    p.label("T_H3")
    fin(list(range(5, 9)))
    p.label("T_H4")
    if o.stamps: stamp(p, o, 9)
    vX = 100
    if o.pk:
        vA = 140
        p(f"""
        s_cmp_ge_u32 s{sWave}, 3
        s_cbranch_scc1 T_DONE
        s_lshl_b32 s{sT0}, s{sB}, 2
        s_add_u32 s{sT0}, s{sT0}, s{sJj}
        s_lshl_b32 s{sT0}, s{sT0}, 3
        s_add_u32 s{sT0}, s{sT0}, s{sXc}
        s_mul_i32 s{sT0}, s{sT0}, 3072
        s_lshl_b32 s{sT1}, s{sWave}, 10
        s_add_u32 s{sT0}, s{sT0}, s{sT1}
        s_add_u32 s{sT0}, s{sT0}, {WS_PART}
        s_mov_b32 s{rX}, s{sOut}
        s_mov_b32 s{rX+1}, s{sOut+1}
        s_mov_b32 s{rX+2}, {512*576*2}
        s_mov_b32 s{rX+3}, 0x20000
        v_lshlrev_b32 v3, 4, v{vL}
        s_lshr_b32 s{sT1}, s{sXc}, 1
        s_lshl_b32 s{sT1}, s{sT1}, 4
        s_lshl_b32 s{sT2}, s{sB}, 6
        s_add_u32 s{sT1}, s{sT1}, s{sT2}
        v_and_b32 v4, 15, v{vL}
        v_add_u32 v4, s{sT1}, v4
        s_movk_i32 s{sT1}, 1152
        v_mul_u32_u24 v4, s{sT1}, v4
        v_lshrrev_b32 v6, 4, v{vL}
        v_lshl_add_u32 v4, v6, 3, v4
        s_mul_i32 s{sT1}, s{sJj}, 288
        s_and_b32 s{sT2}, s{sXc}, 1
        s_mul_i32 s{sT2}, s{sT2}, 160
        s_add_u32 s{sT1}, s{sT1}, s{sT2}
        v_add_u32 v4, s{sT1}, v4
        s_mov_b32 s{sT2}, 0
        s_mov_b64 s[56:57], exec
        v_mul_u32_u24 v6, {32*8*3}, v{vL}
        v_lshlrev_b32 v6, 10, v6
        v_add_u32 v6, 12, v6
        v_mov_b32 v9, s{sTag}
        s_mov_b64 exec, 0xff
        buffer_load_dword v10, v6, s[{rO}:{rO+3}], s{sT0} offen sc1
        buffer_load_dword v11, v6, s[{rO}:{rO+3}], s{sT0} offen sc1
        """)
        p.label("T_PP")
        p(f"""
        s_waitcnt vmcnt(1)
        v_xor_b32 v8, v10, v9
        v_lshrrev_b32 v8, 16, v8
        v_cmp_ne_u32 vcc, 0, v8
        s_cbranch_vccz T_PPD
        buffer_load_dword v10, v6, s[{rO}:{rO+3}], s{sT0} offen sc1
        s_add_u32 s{sT2}, s{sT2}, 1
        s_waitcnt vmcnt(1)
        v_xor_b32 v8, v11, v9
        v_lshrrev_b32 v8, 16, v8
        v_cmp_ne_u32 vcc, 0, v8
        s_cbranch_vccz T_PPD
        buffer_load_dword v11, v6, s[{rO}:{rO+3}], s{sT0} offen sc1
        s_cmp_lt_u32 s{sT2}, {SPIN}
        s_cbranch_scc1 T_PP
        """)
        p.label("T_PPD")
        p(f"""
        s_mov_b64 exec, s[56:57]
        s_mov_b32 s{sT2}, 0
        """)
        p.label("T_POLL2")
        p(f"s_mov_b32 s{sT1}, s{sT0}")
        for s_ in range(8):
            p(f"buffer_load_dwordx4 {rg(vX+4*s_,4)}, v3, s[{rO}:{rO+3}], s{sT1} offen sc1")
            if s_ < 7: p(f"s_add_u32 s{sT1}, s{sT1}, {32*8*3072}")
        p(f"""
        s_add_u32 s{sT2}, s{sT2}, 1
        v_mov_b32 v6, 0
        """)
        for s_ in range(8):
            p(f"s_waitcnt vmcnt({7-s_})")
            p(f"v_xor_b32 v8, v{vX+4*s_+3}, v{vTagHi}")
            p(f"v_or_b32 v6, v6, v8")
        p(f"""
        v_lshrrev_b32 v6, 16, v6
        v_cmp_ne_u32 vcc, 0, v6
        s_cmp_lt_u32 s{sT2}, {SPIN}
        s_cbranch_scc0 T_SUM
        s_cbranch_vccnz T_POLL2
        """)
        p.label("T_SUM")
        p("v_mov_b32 v7, 0xffff0000")
        for s_ in range(8):
            for j in range(7):
                src = vX + 4 * s_ + j // 2
                if s_ == 0:
                    if j % 2 == 0: p(f"v_lshlrev_b32 v{vA+j}, 16, v{src}")
                    else: p(f"v_and_b32 v{vA+j}, v7, v{src}")
                else:
                    if j % 2 == 0: p(f"v_lshlrev_b32 v8, 16, v{src}")
                    else: p(f"v_and_b32 v8, v7, v{src}")
                    p(f"v_add_f32 v{vA+j}, v{vA+j}, v8")
        SCO = ' sc1' if o.outsc else ''
        if o.wide:
            p(f"""
            v_and_b32 v12, 15, v{vL}
            v_mul_u32_u24 v12, 176, v12
            v_lshrrev_b32 v13, 4, v{vL}
            v_lshl_add_u32 v12, v13, 3, v12
            v_add_u32 v12, 40960, v12
            """)
            def st(width, reg, off):
                if not o.wide:
                    op = {8: 'buffer_store_dwordx2', 4: 'buffer_store_dword', 2: 'buffer_store_short'}[width]
                    r = rg(reg, 2) if width == 8 else f"v{reg}"
                    p(f"{op} {r}, v4, s[{rX}:{rX+3}], 0 offen offset:{off}{SCO}")
                else:
                    op = {8: 'ds_write_b64', 4: 'ds_write_b32', 2: 'ds_write_b16'}[width]
                    r = rg(reg, 2) if width == 8 else f"v{reg}"
                    p(f"{op} v12, {r} offset:{off}")
        else:
            def st(width, reg, off):
                op = {8: 'buffer_store_dwordx2', 4: 'buffer_store_dword', 2: 'buffer_store_short'}[width]
                r = rg(reg, 2) if width == 8 else f"v{reg}"
                p(f"{op} {r}, v4, s[{rX}:{rX+3}], 0 offen offset:{off}{SCO}")
        FIN = 'T_OW' if o.wide else 'T_DONE'
        p(f"""
        s_cmp_eq_u32 s{sWave}, 1
        s_cbranch_scc1 T_O1
        s_cmp_eq_u32 s{sWave}, 2
        s_cbranch_scc1 T_O2
        v_cvt_pk_bf16_f32 v8, v{vA}, v{vA+1}
        v_cvt_pk_bf16_f32 v9, v{vA+2}, v{vA+3}
        v_cvt_pk_bf16_f32 v10, v{vA+4}, v{vA+5}
        v_cvt_pk_bf16_f32 v11, v{vA+6}, v{vA+6}
        """)
        st(8, 8, 0); st(4, 10, 32); st(2, 11, 36)
        p(f"s_branch {FIN}")
        p.label("T_O1")
        p(f"""
        v_cvt_pk_bf16_f32 v11, v{vA}, v{vA}
        v_cvt_pk_bf16_f32 v8, v{vA+1}, v{vA+2}
        v_cvt_pk_bf16_f32 v9, v{vA+3}, v{vA+4}
        v_cvt_pk_bf16_f32 v10, v{vA+5}, v{vA+6}
        """)
        st(2, 11, 38); st(8, 8, 64); st(4, 10, 96)
        p(f"s_branch {FIN}")
        p.label("T_O2")
        p(f"""
        v_cvt_pk_bf16_f32 v10, v{vA}, v{vA+1}
        v_cvt_pk_bf16_f32 v8, v{vA+2}, v{vA+3}
        v_cvt_pk_bf16_f32 v9, v{vA+4}, v{vA+5}
        """)
        st(4, 10, 100)
        if o.wide:
            st(8, 8, 128)
            p.label("T_OW")
            p(f"""
            s_waitcnt lgkmcnt(0)
            s_barrier
            s_and_b32 s{sT0}, s{sXc}, 1
            s_cmp_eq_u32 s{sT0}, 0
            s_cselect_b32 s{sT1}, 10, 8
            s_mov_b32 s{sT2}, 8192
            s_cselect_b32 s{sT2}, 6554, s{sT2}
            v_mul_u32_u24 v12, s{sT2}, v0
            v_lshrrev_b32 v12, 16, v12
            v_mul_u32_u24 v13, s{sT1}, v12
            v_sub_u32 v13, v0, v13
            v_cmp_gt_u32 vcc, 16, v12
            s_and_saveexec_b64 s[58:59], vcc
            s_cbranch_execz T_OWX
            v_mul_u32_u24 v14, 176, v12
            v_lshl_add_u32 v14, v13, 4, v14
            ds_read_b128 v[8:11], v14 offset:40960
            s_lshr_b32 s{sT1}, s{sXc}, 1
            s_lshl_b32 s{sT1}, s{sT1}, 4
            s_lshl_b32 s{sT2}, s{sB}, 6
            s_add_u32 s{sT1}, s{sT1}, s{sT2}
            v_add_u32 v12, s{sT1}, v12
            s_movk_i32 s{sT1}, 1152
            v_mul_u32_u24 v12, s{sT1}, v12
            v_lshl_add_u32 v12, v13, 4, v12
            s_mul_i32 s{sT1}, s{sJj}, 288
            s_mul_i32 s{sT0}, s{sT0}, 160
            s_add_u32 s{sT1}, s{sT1}, s{sT0}
            s_waitcnt lgkmcnt(0)
            buffer_store_dwordx4 v[8:11], v12, s[{rX}:{rX+3}], s{sT1} offen{SCO}
            """)
            p.label("T_OWX")
            p("s_mov_b64 exec, s[58:59]")
        else:
            p(f"""
            s_and_b32 s{sT0}, s{sXc}, 1
            s_cmp_eq_u32 s{sT0}, 0
            s_cbranch_scc0 T_DONE
            """)
            st(8, 8, 128)
    else:
        p(f"""
        s_cmp_ge_u32 s{sWave}, 5
        s_cbranch_scc1 T_DONE
        v_cmp_gt_u32 vcc, 288, v0
        s_and_saveexec_b64 s[58:59], vcc
        s_mul_i32 s{sT0}, s{sXc}, 288
        v_add_u32 v2, s{sT0}, v0
        v_lshlrev_b32 v3, 4, v2
        s_lshl_b32 s{sT0}, s{sB}, 2
        s_add_u32 s{sT0}, s{sT0}, s{sJj}
        s_mul_i32 s{sT0}, s{sT0}, 36864
        s_add_u32 s{sT0}, s{sT0}, {WS_PART}
        s_mov_b32 s{rX}, s{sOut}
        s_mov_b32 s{rX+1}, s{sOut+1}
        s_mov_b32 s{rX+2}, {512*576*2}
        s_mov_b32 s{rX+3}, 0x20000
        v_lshrrev_b32 v4, 6, v2
        v_mul_u32_u24 v5, 57, v4
        v_lshrrev_b32 v5, 9, v5
        v_mul_u32_u24 v6, 9, v5
        v_sub_u32 v6, v4, v6
        v_and_b32 v4, 15, v2
        v_lshl_add_u32 v4, v5, 4, v4
        s_lshl_b32 s{sT1}, s{sB}, 6
        v_add_u32 v4, s{sT1}, v4
        s_movk_i32 s{sT1}, 1152
        v_mul_u32_u24 v4, s{sT1}, v4
        v_lshlrev_b32 v6, 5, v6
        v_add_u32 v4, v4, v6
        v_bfe_u32 v6, v2, 4, 2
        v_lshl_add_u32 v4, v6, 3, v4
        s_mul_i32 s{sT1}, s{sJj}, 288
        v_add_u32 v4, s{sT1}, v4
        s_mov_b32 s{sT2}, 0
        """)
        if o.prepoll == 1:
                p(f"""
                s_mov_b64 s[56:57], exec
                v_readfirstlane_b32 s{sT1}, v3
                v_mul_u32_u24 v6, {32*36864 // 1024}, v{vL}
                v_lshlrev_b32 v6, 10, v6
                v_add_u32 v6, s{sT1}, v6
                v_mov_b32 v9, s{sTag}
                s_mov_b64 exec, 0xff
                buffer_load_dword v10, v6, s[{rO}:{rO+3}], s{sT0} offen sc1
                buffer_load_dword v11, v6, s[{rO}:{rO+3}], s{sT0} offen sc1
                """)
                p.label("T_PP")
                p(f"""
                s_waitcnt vmcnt(1)
                v_xor_b32 v8, v10, v9
                v_and_b32 v8, 0xfff, v8
                v_cmp_ne_u32 vcc, 0, v8
                s_cbranch_vccz T_PPD
                buffer_load_dword v10, v6, s[{rO}:{rO+3}], s{sT0} offen sc1
                s_add_u32 s{sT2}, s{sT2}, 1
                s_waitcnt vmcnt(1)
                v_xor_b32 v8, v11, v9
                v_and_b32 v8, 0xfff, v8
                v_cmp_ne_u32 vcc, 0, v8
                s_cbranch_vccz T_PPD
                buffer_load_dword v11, v6, s[{rO}:{rO+3}], s{sT0} offen sc1
                s_cmp_lt_u32 s{sT2}, {SPIN}
                s_cbranch_scc1 T_PP
                """)
                p.label("T_PPD")
                p(f"""
                s_mov_b64 exec, s[56:57]
                s_mov_b32 s{sT2}, 0
                """)
        elif o.prepoll == 2:
            p(f"""
            s_cmp_eq_u32 s{sWave}, 0
            s_cbranch_scc0 T_PPD
            s_mov_b64 s[56:57], exec
            s_mul_i32 s{sT1}, s{sXc}, {288*16}
            v_and_b32 v6, 7, v{vL}
            v_mul_u32_u24 v6, {32*36864 // 1024}, v6
            v_lshlrev_b32 v6, 10, v6
            v_add_u32 v6, s{sT1}, v6
            v_lshrrev_b32 v8, 3, v{vL}
            v_mul_u32_u24 v8, {287*16}, v8
            v_add_u32 v6, v6, v8
            v_mov_b32 v9, s{sTag}
            s_mov_b64 exec, 0xffff
            buffer_load_dword v10, v6, s[{rO}:{rO+3}], s{sT0} offen sc1
            """)
            p.label("T_PP")
            p(f"""
            s_waitcnt vmcnt(0)
            v_xor_b32 v8, v10, v9
            v_and_b32 v8, 0xfff, v8
            v_cmp_ne_u32 vcc, 0, v8
            s_cbranch_vccz T_PPE
            buffer_load_dword v10, v6, s[{rO}:{rO+3}], s{sT0} offen sc1
            s_add_u32 s{sT2}, s{sT2}, 1
            s_cmp_lt_u32 s{sT2}, {SPIN}
            s_cbranch_scc1 T_PP
            """)
            p.label("T_PPE")
            p(f"""
            s_mov_b64 exec, s[56:57]
            s_mov_b32 s{sT2}, 0
            """)
            p.label("T_PPD")
            p("s_barrier")
        p.label("T_POLL2")
        p(f"s_mov_b32 s{sT1}, s{sT0}")
        for s in range(8):
            p(f"buffer_load_dwordx4 {rg(vX+4*s,4)}, v3, s[{rO}:{rO+3}], s{sT1} offen sc1")
            if s < 7: p(f"s_add_u32 s{sT1}, s{sT1}, {32*36864}")
        p(f"""
        s_add_u32 s{sT2}, s{sT2}, 1
        v_mov_b32 v6, 0
        """)
        for s in range(8):
            p(f"s_waitcnt vmcnt({7-s})")
            for e in range(0, 4, 2):
                p(f"v_xor_b32 v8, s{sTag+e}, v{vX+4*s+e}")
                p(f"v_xor_b32 v9, s{sTag+e+1}, v{vX+4*s+e+1}")
                p(f"v_or3_b32 v6, v6, v8, v9")
        p(f"""
        v_and_b32 v6, 0xfff, v6
        v_cmp_ne_u32 vcc, 0, v6
        s_cmp_lt_u32 s{sT2}, {SPIN}
        s_cbranch_scc0 T_SUM
        s_cbranch_vccnz T_POLL2
        """)
        p.label("T_SUM")
        for s in range(8):
            for e in range(4):
                p(f"v_and_b32 v{vX+4*s+e}, v7, v{vX+4*s+e}")
        for s in range(1, 8):
            for e in range(4):
                p(f"v_add_f32 v{vX+e}, v{vX+e}, v{vX+4*s+e}")
        p(f"""
        v_cvt_pk_bf16_f32 v8, v{vX}, v{vX+1}
        v_cvt_pk_bf16_f32 v9, v{vX+2}, v{vX+3}
        buffer_store_dwordx2 v[8:9], v4, s[{rX}:{rX+3}], 0 offen{' sc1' if o.outsc else ''}
        s_mov_b64 exec, s[58:59]
        """)
    p.label("T_DONE")
    if o.stamps:
        p("s_waitcnt vmcnt(0)")
        p("s_memrealtime s[90:91]" if o.stamps != 2 else "s_memtime s[90:91]")
        p("s_waitcnt lgkmcnt(0)")
        gen_flush_final(p, o, sWs)
    p("s_branch K1_END")

def gemm_opt(p, vAcc, vB, vF, vAd, vLA, sKh2, sT, wo_addr):
    HA, HB = [0, 1, 2, 3, 4], [5, 6, 7, 8]
    for half in range(2):
        c0, c1 = wo_addr(4 * half), wo_addr(8 + 4 * half)
        for kk in range(4):
            assert wo_addr(4 * half + kk) == c0 + kk * 9216 and wo_addr(8 + 4 * half + kk) == c1 + kk * 9216
        p(f"""
        s_mov_b32 s{sT}, {c1}
        s_cmp_eq_u32 s{sKh2}, 0
        s_cselect_b32 s{sT}, {c0}, s{sT}
        v_add_u32 v{vAd + half}, s{sT}, v{vLA}
        """)
    def reads(kk, half):
        ad = vAd + (kk // 4); off = (kk % 4) * 9216
        for nt in half:
            f = vF + 4 * nt
            p(f"ds_read_b64_tr_b16 {rg(f,2)}, v{ad} offset:{off+nt*32}")
            p(f"ds_read_b64_tr_b16 {rg(f+2,2)}, v{ad} offset:{off+4608+nt*32}")
    def mfmas(kk, half, wait):
        p(wait)
        for nt in half:
            f = vF + 4 * nt
            p(f"{MF16} {rg(vAcc+4*nt,4)}, {rg(f,4)}, {rg(vB+4*kk,4)}, {rg(vAcc+4*nt,4)}")
    reads(0, HA)
    for kk in range(8):
        reads(kk, HB)
        mfmas(kk, HA, f"s_waitcnt vmcnt({7-kk}) lgkmcnt({2*len(HB)})")
        if kk < 7:
            reads(kk + 1, HA)
            mfmas(kk, HB, f"s_waitcnt lgkmcnt({2*len(HA)})")
        else:
            mfmas(kk, HB, "s_waitcnt lgkmcnt(0)")

def emit(o):
    name = 'standalone__gqa_block_cached__near_ridge_kernel'
    p = gen_main(o)
    out = [HDR, "; @launch grid=(256,1,1) block=(512,1,1) lds=163840",
           '.amdgcn_target "amdgcn-amd-amdhsa--gfx950"', '.text']
    n = p.fix_hazards()
    errs = p.lint_waits()
    for e in errs[:20]:
        print(f"LINT: {e}", file=sys.stderr)
    nv, ns = p.max_regs()
    print(f"{name}: {len(p.ins)} instrs, vgpr {nv}, sgpr {ns}, nops inserted {n}", file=sys.stderr)
    out.append(f".globl {name}\n.p2align 8\n.type {name},@function\n{name}:")
    out.append(p.text())
    out.append(kd(name, max(nv, 8), max(ns, 16)))
    return '\n'.join(out) + '\n'

if __name__ == '__main__':
    ap = argparse.ArgumentParser()
    ap.add_argument('-o', default='standalone__gqa_block_cached__near_ridge.s')
    for k, d in OPTS.items():
        ap.add_argument('--' + k, type=int, default=d)
    a = ap.parse_args()
    o = Opt()
    for k in OPTS:
        setattr(o, k, getattr(a, k))
    open(a.o, 'w').write(emit(o))
```

```python
import sys, argparse
from asmlib import Prog
import gen
from gen import f32bits, SCALE_LOG2E, kd, HEADER
from gen import stamp as _stamp
import gen9
from gen9 import WS_O, WS_PART, WS_FLAG, WS_SIZE, MF, MF16, rg, SPIN, gen_flush_final

STSETS = {0: {0:0,1:1,2:2,3:3,4:4,5:5,6:6,7:7,8:8,9:9},
          1: {5:0, 'e1':1, 'e2':2, 'e3':3, 'e4':4, 6:5, 7:6, 'g0':7, 8:8, 9:9}}
def stamp(p, o, name):
    m = STSETS[getattr(o, 'stset', 0)]
    if name in m: _stamp(p, o, m[name])

class Opt(gen.Opt):
    pass
OPTS = dict(prog=1, wide=1, pk=1, gopt=1, e3=1, prio=0, skew=0, icpf=6, outsc=1, prepoll=1, fast=1, stset=0, nt=1, dbg=0, stamps=0, stampwave=0, wt=1, kdel=5, wotat=7, lead=8, nearly=12)

HDR = """; GQA block: q = x@wq ; softmax(q k^T / sqrt(128)) v ; out = o@wo   (B=8, Sq=64, Hq=32, Hkv=16, Sk=1024, Dh=128, D=576)
;   The launch nonce is published by workgroup 0 in d_debug[0:1] (zero at launch); all cross-workgroup data uses sc1 stores and loads."""

SLOT = 16384
NSLOT = 10

def gen_main(o):
    p = Prog()
    NT = ' nt' if o.nt else ''
    sX, sK, sV, sWq, sWs, sWo = 4, 6, 8, 10, 12, 14
    rK, rV, rW, rX, rO = 16, 20, 24, 28, 32
    sWave, sB, sH, sXc, sQh, sKh = 36, 37, 38, 39, 40, 41
    sRK, sRV, sKoff, sVoff, sCnt, sJj = 42, 43, 44, 45, 46, 47
    sC, sT0, sT1, sT2 = 48, 49, 50, 51
    sLw, sWg, sIss, sL4096, sGof = 53, 54, 55, 56, 57
    sPar, sIssB = 98, 99
    vOa, vOb = 40, 44
    sOut, sDbg, sN, sTag = 80, 82, 84, 86
    vL = 1
    vLW = 10
    vLX = 12
    vLK = 13
    vVA = 14
    vTn = 18
    vNon = 20
    vLV = 24
    vKA = 28
    vM, vThr, vL0, vL1 = 36, 37, 38, 39
    vQ = 40
    vS = [72, 88]
    vP = 104
    vKf = 112
    vVf = 144
    vO = 176
    QB = [112, 176]
    vKo = 10; vVo = 14; vWo = 24; vXo = 28; vWoA, vWoB, vWoC = 30, 31, 32
    vDum = 249
    vOff = 240
    S_ = [i * SLOT for i in range(NSLOT)]
    QS = [139264, 65536, 90112, 114688]
    QX = S_[9]
    lab = [0]
    def nl(s):
        lab[0] += 1
        return f"K1_{s}{lab[0]}"
    nbar = {'c': 0, 'l': 0}
    def bar(who):
        nbar[who] += 1
        p("s_barrier")
    LEAD = o.lead
    assert LEAD in (4, 6, 8) and not (o.skew and LEAD != 8)
    HL = LEAD // 2
    NR = 14 - HL
    POS = []
    for n in range(33):
        if n == 0: POS.append((1, 0))
        elif n % 2 == 1: POS.append((1, (n + 1) // 2))
        else: POS.append((0, (n - 2) // 2))
    NEARLY = o.nearly
    def wo_addr(G): return (49152 + G * 9216) if G < 12 else (G - 12) * 9216
    EX, STAT, NONL = 0, 36864, 38912
    sQt, sKh2, sF, sS2, sPend, sNA = 40, 41, 94, 95, 96, 97
    vB = 64
    def head_loads(sreg, dst):
        p(f"""
        s_and_b32 s{sT0}, s{sWg}, 0xfc
        s_add_u32 s{sT0}, s{sT0}, s{sreg}
        s_lshl_b32 s{sT0}, s{sT0}, 14
        s_lshl_b32 s{sT1}, s{sQt}, 12
        s_add_u32 s{sT0}, s{sT0}, s{sT1}
        """)
        for t in range(4):
            p(f"buffer_load_dwordx4 {rg(vB+dst+4*t,4)}, v5, s[{rO}:{rO+3}], s{sT0} offen offset:{t*1024} sc1")
    def stage_a(tag):
        p(f"""
        s_and_b32 s{sQt}, s{sWave}, 3
        s_lshr_b32 s{sKh2}, s{sWave}, 2
        v_lshlrev_b32 v5, 4, v{vL}
        s_waitcnt lgkmcnt(0)
        v_readfirstlane_b32 s{sT2}, v12
        s_lshl_b32 s{sF}, s{sKh2}, 1
        s_lshr_b32 s{sT2}, s{sT2}, s{sF}
        s_and_b32 s{sT2}, s{sT2}, 3
        """)
        p(f"""
        s_add_u32 s{sT0}, s{sF}, 1
        s_cmp_eq_u32 s{sT2}, 2
        s_cselect_b32 s{sS2}, s{sT0}, s{sF}
        s_cmp_eq_u32 s{sT2}, 0
        s_cbranch_scc0 K1_SA0{tag}
        s_cmp_eq_u32 s{sJj}, s{sT0}
        s_cselect_b32 s{sS2}, s{sT0}, s{sF}
        """)
        p.label(f"K1_SA0{tag}")
        p(f"""
        s_mov_b32 s{sF}, s{sS2}
        s_xor_b32 s{sS2}, s{sF}, 1
        s_mov_b32 s{sPend}, 3
        s_mov_b32 s{sNA}, 0
        s_cmp_eq_u32 s{sT2}, 0
        s_cbranch_scc1 K1_SA1{tag}
        s_mov_b32 s{sPend}, 2
        s_mov_b32 s{sNA}, 4
        s_cmp_eq_u32 s{sT2}, 3
        s_cselect_b32 s{sPend}, 0, s{sPend}
        s_cselect_b32 s{sNA}, 8, s{sNA}
        """)
        head_loads(sF, 0)
        p(f"""
        s_cmp_eq_u32 s{sPend}, 0
        s_cbranch_scc0 K1_SA1{tag}
        """)
        head_loads(sS2, 16)
        p.label(f"K1_SA1{tag}")

    p(f"""
    s_cmp_ge_u32 s2, 256
    s_cbranch_scc1 K1_END
    s_load_dwordx4 s[4:7], s[0:1], 0
    s_load_dwordx4 s[8:11], s[0:1], 16
    s_load_dwordx2 s[12:13], s[0:1], 56
    s_load_dwordx2 s[14:15], s[0:1], 32
    s_load_dwordx4 s[80:83], s[0:1], 40
    """)
    if o.icpf:
        ICL = o.icpf
        p("s_getpc_b64 s[90:91]")
        p.label("K1_PCREF")
        p(f"""
        s_mov_b32 s93, K1_END-K1_PCREF
        v_cmp_gt_u32 vcc, {ICL}, v0
        s_and_saveexec_b64 s[58:59], vcc
        s_cbranch_execz K1_ICD
        s_lshr_b32 s92, s2, 3
        s_mul_i32 s92, s92, {ICL*128}
        v_lshlrev_b32 v2, 7, v0
        v_add_u32 v2, s92, v2
        v_min_u32 v2, s93, v2
        global_load_dword v{vDum}, v2, s[90:91]
        """)
        p.label("K1_ICD")
        p("s_mov_b64 exec, s[58:59]")
    p(f"""
    v_and_b32 v{vL}, 63, v0
    v_lshrrev_b32 v2, 6, v0
    s_and_b32 s{sXc}, s2, 7
    s_lshr_b32 s{sT1}, s2, 3
    v_readfirstlane_b32 s{sWave}, v2
    s_lshr_b32 s{sB}, s{sT1}, 2
    s_and_b32 s{sJj}, s{sT1}, 3
    s_lshl_b32 s{sH}, s{sXc}, 2
    s_add_u32 s{sH}, s{sH}, s{sJj}
    s_lshl_b32 s{sWg}, s{sB}, 5
    s_add_u32 s{sWg}, s{sWg}, s{sH}
    v_and_b32 v2, 15, v{vL}
    v_lshrrev_b32 v3, 4, v{vL}
    v_lshrrev_b32 v4, 2, v2
    v_and_b32 v5, 3, v2
    v_lshrrev_b32 v6, 5, v{vL}
    v_and_b32 v7, 31, v{vL}
    s_cmp_lt_u32 s{sWave}, 4
    s_cbranch_scc1 K1_COMPUTE
    """)

    vq = []
    def vissue(tag, n): vq.extend([tag] * n)
    def vneed(*tags):
        idx = [i for i, t in enumerate(vq) if t in tags]
        if not idx: return 63
        n = len(vq) - 1 - idx[-1]
        del vq[:idx[-1] + 1]
        return min(n, 63)
    if o.prio: p(f"s_setprio {o.prio}")
    p(f"""
    s_and_b32 s{sLw}, s{sWave}, 3
    s_lshl_b32 s{sL4096}, s{sLw}, 12
    v_lshlrev_b32 v8, 2, v3
    v_xor_b32 v8, v8, v2
    v_lshlrev_b32 v8, 4, v8
    v_lshl_add_u32 v{vVo}, v3, 8, v8
    v_lshl_add_u32 v{vWo}, v3, 13, v8
    """)
    for u in range(1, 4):
        p(f"v_add_u32 v{vWo+u}, {u*31744}, v{vWo}")
    p(f"""
    s_lshl_b32 s{sT0}, s{sLw}, 4
    s_movk_i32 s{sT1}, 1152
    """)
    for u in range(2):
        p(f"""
        v_lshrrev_b32 v8, 3, v{vL}
        v_add_u32 v8, s{sT0}, v8
        v_add_u32 v8, {8*u}, v8
        v_mul_lo_u32 v8, v8, s{sT1}
        v_add_u32 v9, {4*u}, v3
        v_and_b32 v9, 7, v9
        v_and_b32 v{vXo+u}, 7, v{vL}
        v_xor_b32 v9, v9, v{vXo+u}
        v_lshl_add_u32 v8, v9, 4, v8
        v_subrev_u32 v{vXo+u}, {u*1024}, v8
        """)
    p("s_waitcnt lgkmcnt(0)")
    stamp(p, o, 0)
    p(f"""
    s_lshl_b32 s{sT0}, s{sH}, 8
    s_add_u32 s{rW}, s{sWq}, s{sT0}
    s_addc_u32 s{rW+1}, s{sWq+1}, 0
    s_sub_u32 s{rW+2}, {576*8192}, s{sT0}
    s_mov_b32 s{rW+3}, 0x20000
    s_mul_i32 s{sT0}, s{sB}, {64*1152}
    s_add_u32 s{rX}, s{sX}, s{sT0}
    s_addc_u32 s{rX+1}, s{sX+1}, 0
    s_mov_b32 s{rX+2}, {64*1152}
    s_mov_b32 s{rX+3}, 0x20000
    """)
    def issue_chunk(c):
        qs = QS[c % 4]
        p(f"""
        s_lshl_b32 s{sT0}, s{sLw}, 17
        s_add_u32 s{sT0}, s{sT0}, {c*524288}
        s_add_u32 m0, s{sL4096}, {qs}
        """)
        for u in range(4):
            p(f"buffer_load_dwordx4 v{vWo+u}, s[{rW}:{rW+3}], s{sT0} offen offset:{u*1024} lds")
        p(f"""
        s_lshr_b32 s{sT1}, s{sL4096}, 1
        s_add_u32 m0, s{sT1}, {qs+16384}
        s_movk_i32 s{sT0}, {c*128}
        """)
        for u in range(2):
            p(f"buffer_load_dwordx4 v{vXo+u}, s[{rX}:{rX+3}], s{sT0} offen offset:{u*1024} lds")
        vissue(('C', c), 6)
    if o.wt:
        p(f"""
        s_cmp_eq_u32 s{sWave}, 4
        s_cbranch_scc0 K1_WT1
        v_lshrrev_b32 v8, 1, v{vL}
        v_and_b32 v9, 1, v{vL}
        v_lshlrev_b32 v8, 13, v8
        v_lshl_add_u32 v8, v9, 7, v8
        s_mul_i32 s{sT0}, s{sB}, {72*8192}
        buffer_load_dword v{vDum}, v8, s[{rW}:{rW+3}], s{sT0} offen
        s_add_u32 s{sT0}, s{sT0}, {32*8192}
        buffer_load_dword v{vDum}, v8, s[{rW}:{rW+3}], s{sT0} offen
        s_add_u32 s{sT0}, s{sT0}, {32*8192}
        v_cmp_gt_u32 vcc, 16, v{vL}
        s_and_saveexec_b64 s[58:59], vcc
        buffer_load_dword v{vDum}, v8, s[{rW}:{rW+3}], s{sT0} offen
        s_mov_b64 exec, s[58:59]
        """)
        p.label("K1_WT1")
        p(f"""
        s_cmp_eq_u32 s{sWave}, 5
        s_cbranch_scc0 K1_WT2
        v_lshlrev_b32 v9, 7, v{vL}
        s_mul_i32 s{sT0}, s{sJj}, 18432
        buffer_load_dword v{vDum}, v9, s[{rX}:{rX+3}], s{sT0} offen
        s_add_u32 s{sT0}, s{sT0}, 8192
        buffer_load_dword v{vDum}, v9, s[{rX}:{rX+3}], s{sT0} offen
        s_add_u32 s{sT0}, s{sT0}, 8192
        v_cmp_gt_u32 vcc, 16, v{vL}
        s_and_saveexec_b64 s[58:59], vcc
        buffer_load_dword v{vDum}, v9, s[{rX}:{rX+3}], s{sT0} offen
        s_mov_b64 exec, s[58:59]
        """)
        p.label("K1_WT2")
    for c in range(4):
        issue_chunk(c)
    p(f"""
    s_cmp_eq_u32 s2, 0
    s_cbranch_scc0 K1_NON
    s_cmp_eq_u32 s{sWave}, 7
    s_cbranch_scc0 K1_NON
    s_memrealtime s[{sN}:{sN+1}]
    s_waitcnt lgkmcnt(0)
    s_or_b32 s{sN}, s{sN}, 1
    v_mov_b32 v8, s{sN}
    v_mov_b32 v9, s{sN+1}
    v_mov_b32 v{vNon}, 0
    v_cmp_eq_u32 vcc, 0, v{vL}
    s_and_saveexec_b64 s[58:59], vcc
    global_store_dwordx2 v{vNon}, v[8:9], s[{sDbg}:{sDbg+1}] sc1
    s_mov_b64 exec, s[58:59]
    """)
    p.label("K1_NON")
    p(f"""
    s_lshl_b32 s{sT0}, s{sB}, 4
    s_lshr_b32 s{sT1}, s{sH}, 1
    s_add_u32 s{sT0}, s{sT0}, s{sT1}
    s_lshl_b32 s{sT0}, s{sT0}, 18
    s_add_u32 s{rK}, s{sK}, s{sT0}
    s_addc_u32 s{rK+1}, s{sK+1}, 0
    s_mov_b32 s{rK+2}, 0x40000
    s_mov_b32 s{rK+3}, 0x20000
    s_add_u32 s{rV}, s{sV}, s{sT0}
    s_addc_u32 s{rV+1}, s{sV+1}, 0
    s_mov_b32 s{rV+2}, 0x40000
    s_mov_b32 s{rV+3}, 0x20000
    s_lshr_b32 s{sT0}, s{sLw}, 1
    s_lshl_b32 s{sT0}, s{sT0}, 17
    s_and_b32 s{sT1}, s{sLw}, 1
    s_lshl_b32 s{sT1}, s{sT1}, 12
    s_add_u32 s{sGof}, s{sT0}, s{sT1}
    """)
    for u in range(4):
        p(f"""
        v_add_u32 v8, {4*u}, v3
        v_xor_b32 v8, v8, v2
        v_lshlrev_b32 v8, 4, v8
        v_lshl_add_u32 v{vKo+u}, v3, 8, v8
        """)
    p(f"""
    s_movk_i32 s{sT0}, 3641
    s_movk_i32 s{sT1}, 1152
    """)
    for k, (reg, addi) in enumerate(((vWoA, 0), (vWoB, 4), (vWoC, None))):
        if addi is None:
            p(f"v_add_u32 v8, {64*8}, v{vL}")
        else:
            p(f"""
            s_add_u32 s{sT2}, s{sLw}, {addi}
            s_lshl_b32 s{sT2}, s{sT2}, 6
            v_add_u32 v8, s{sT2}, v{vL}
            """)
        p(f"""
        v_mul_u32_u24 v9, s{sT0}, v8
        v_lshrrev_b32 v9, 16, v9
        v_mul_u32_u24 v{reg}, 18, v9
        v_sub_u32 v{reg}, v8, v{reg}
        v_mul_u32_u24 v9, s{sT1}, v9
        v_lshl_add_u32 v{reg}, v{reg}, 4, v9
        """)

    for i in range(9): p(f"v_mov_b32 v{vOff+i}, 0")
    def issue_pos(n):
        isK, t = POS[n]
        p(f"""
        s_add_u32 s{sT0}, s{sGof}, {t*8192}
        s_add_u32 m0, s{sL4096}, {S_[n % NSLOT]}
        """)
        for u in range(4):
            if isK: p(f"buffer_load_dwordx4 v{vKo+u}, s[{rK}:{rK+3}], s{sT0} offen offset:{u*1024}{NT} lds")
            else:   p(f"buffer_load_dwordx4 v{vVo}, s[{rV}:{rV+3}], s{sT0} offen offset:{u*1024}{NT} lds")
        vissue(('P', n), 4)
    def wo_srd():
        p(f"""
        s_mul_i32 s{sT0}, s{sXc}, {512*1152}
        s_mul_i32 s{sT1}, s{sJj}, 288
        s_add_u32 s{sT0}, s{sT0}, s{sT1}
        s_add_u32 s{rW}, s{sWo}, s{sT0}
        s_addc_u32 s{rW+1}, s{sWo+1}, 0
        s_sub_u32 s{rW+2}, {4096*1152}, s{sT0}
        s_mov_b32 s{rW+3}, 0x20000
        """)
    def early_group(G):
        base = wo_addr(G)
        p(f"""
        s_lshl_b32 s{sT1}, s{sLw}, 10
        s_add_u32 m0, s{sT1}, {base}
        s_mov_b32 s{sT0}, {G*36864}
        buffer_load_dwordx4 v{vWoA}, s[{rW}:{rW+3}], s{sT0} offen lds
        s_add_u32 m0, s{sT1}, {base+4096}
        s_cmp_eq_u32 s{sLw}, 0
        buffer_load_dwordx4 v{vWoB}, s[{rW}:{rW+3}], s{sT0} offen lds
        """)
        l = nl('EG')
        p(f"s_cbranch_scc0 {l}")
        p(f"s_mov_b32 m0, {base+8192}")
        p(f"buffer_load_dwordx4 v{vWoC}, s[{rW}:{rW+3}], s{sT0} offen lds")
        p.label(l)
        vissue(('G', G), 2)
    def wo_touch():
        l = nl('WOT')
        p(f"""
        s_cmp_eq_u32 s{sWave}, 6
        s_cbranch_scc0 {l}
        s_mul_i32 s{sT0}, s{sXc}, {512*1152}
        s_add_u32 s{rX}, s{sWo}, s{sT0}
        s_addc_u32 s{rX+1}, s{sWo+1}, 0
        s_mov_b32 s{rX+2}, {512*1152}
        s_mov_b32 s{rX+3}, 0x20000
        s_lshr_b32 s{sT0}, s2, 3
        s_mul_i32 s{sT0}, s{sT0}, 18432
        v_lshlrev_b32 v2, 7, v{vL}
        buffer_load_dword v{vDum}, v2, s[{rX}:{rX+3}], s{sT0} offen
        s_add_u32 s{sT0}, s{sT0}, 8192
        buffer_load_dword v{vDum}, v2, s[{rX}:{rX+3}], s{sT0} offen
        s_add_u32 s{sT0}, s{sT0}, 8192
        v_cmp_gt_u32 vcc, 16, v{vL}
        s_and_saveexec_b64 s[58:59], vcc
        buffer_load_dword v{vDum}, v2, s[{rX}:{rX+3}], s{sT0} offen
        s_mov_b64 exec, s[58:59]
        """)
        p.label(l)

    for c in range(9):
        p(f"s_waitcnt vmcnt({vneed(('C', c))})")
        bar('l')
        if c == 0: stamp(p, o, 1)
        if 1 <= c <= 5: issue_chunk(c + 3)
        if c == o.kdel: issue_pos(0); issue_pos(1)
        if c == o.kdel + 1: issue_pos(2); issue_pos(3)
    bar('l')
    for n in range(4, LEAD): issue_pos(n)
    bar('l')
    p(f"s_waitcnt vmcnt({vneed(('P', 0))})")
    bar('l')
    issue_pos(LEAD)
    p(f"s_waitcnt vmcnt({vneed(('P', 1))})")
    bar('l')
    issue_pos(LEAD + 1)
    VQ = {0: list(vq), 1: list(vq)}
    def need_in(q, tag):
        idx = [i for i, t in enumerate(q) if t == tag]
        if not idx: return 63
        n = len(q) - 1 - idx[-1]
        del q[:idx[-1] + 1]
        return min(n, 63)
    Wa, Wb = [], []
    pars = (0, 1) if o.skew else (0,)
    for i in range(NR):
        Wa.append(min(need_in(VQ[q], ('P', 2 * i + 2)) for q in pars))
        for q in pars: VQ[q].extend([('P', 2 * i + 2 + LEAD + q)] * 4)
        Wb.append(min(need_in(VQ[q], ('P', 2 * i + 3)) for q in pars))
        for q in pars: VQ[q].extend([('P', 2 * i + 3 + LEAD - q)] * 4)
    wa, wb = min(Wa), min(Wb)
    print('loader loop waits', Wa, Wb, file=sys.stderr)
    p(f"""
    s_and_b32 s{sPar}, s{sH}, {1 if o.skew else 0}
    s_mov_b32 s{sIss}, {S_[(2+LEAD) % NSLOT]}
    s_mov_b32 s{sIssB}, {S_[(3+LEAD) % NSLOT]}
    s_add_u32 s{sVoff}, s{sGof}, {HL*8192}
    s_add_u32 s{sKoff}, s{sGof}, {(2+HL)*8192}
    s_mov_b32 s{sCnt}, 0
    """)
    for u in range(4):
        p(f"v_mov_b32 v{vOa+u}, v{vVo}")
        p(f"v_mov_b32 v{vOb+u}, v{vKo+u}")
    if o.skew:
        p(f"""
        s_cmp_eq_u32 s{sPar}, 0
        s_cbranch_scc1 K1_PAR0
        s_mov_b32 s{sIss}, {S_[1]}
        s_mov_b32 s{sIssB}, {S_[0]}
        s_add_u32 s{sVoff}, s{sGof}, {6*8192}
        s_add_u32 s{sKoff}, s{sGof}, {4*8192}
        s_mov_b32 s{sT0}, s{rK}
        s_mov_b32 s{sT1}, s{rK+1}
        s_mov_b32 s{rK}, s{rV}
        s_mov_b32 s{rK+1}, s{rV+1}
        s_mov_b32 s{rV}, s{sT0}
        s_mov_b32 s{rV+1}, s{sT1}
        """)
        for u in range(4):
            p(f"v_mov_b32 v{vOa+u}, v{vKo+u}")
            p(f"v_mov_b32 v{vOb+u}, v{vVo}")
        p.label("K1_PAR0")
    def adv_iss(sreg):
        p(f"""
        s_add_u32 s{sreg}, s{sreg}, {2*SLOT}
        s_cmp_ge_u32 s{sreg}, {NSLOT*SLOT}
        s_cselect_b32 s{sT0}, {NSLOT*SLOT}, 0
        s_sub_u32 s{sreg}, s{sreg}, s{sT0}
        """)
    p.label("K1_LLOOP")
    p(f"s_waitcnt vmcnt({wa})")
    p("s_barrier")
    p(f"s_add_u32 m0, s{sIss}, s{sL4096}")
    for u in range(4):
        p(f"buffer_load_dwordx4 v{vOa+u}, s[{rV}:{rV+3}], s{sVoff} offen offset:{u*1024}{NT} lds")
    adv_iss(sIss)
    p(f"s_add_u32 s{sVoff}, s{sVoff}, 8192")
    p(f"s_waitcnt vmcnt({wb})")
    p("s_barrier")
    p(f"s_add_u32 m0, s{sIssB}, s{sL4096}")
    for u in range(4):
        p(f"buffer_load_dwordx4 v{vOb+u}, s[{rK}:{rK+3}], s{sKoff} offen offset:{u*1024}{NT} lds")
    adv_iss(sIssB)
    p(f"s_add_u32 s{sKoff}, s{sKoff}, 8192")
    l = nl('WTT')
    p(f"s_cmp_eq_u32 s{sCnt}, {o.wotat}")
    p(f"s_cbranch_scc0 {l}")
    wo_touch()
    p.label(l)
    p(f"""
    s_add_u32 s{sCnt}, s{sCnt}, 1
    s_cmp_lt_u32 s{sCnt}, {NR}
    s_cbranch_scc1 K1_LLOOP
    """)
    nbar['l'] += 2 * NR
    if o.skew:
        p(f"""
        s_cmp_eq_u32 s{sPar}, 0
        s_cbranch_scc1 K1_PAR2
        s_mov_b32 s{sT0}, s{rK}
        s_mov_b32 s{sT1}, s{rK+1}
        s_mov_b32 s{rK}, s{rV}
        s_mov_b32 s{rK+1}, s{rV+1}
        s_mov_b32 s{rV}, s{sT0}
        s_mov_b32 s{rV+1}, s{sT1}
        """)
        p.label("K1_PAR2")
    wo_srd()
    p(f"""
    s_cmp_eq_u32 s{sWave}, 7
    s_cbranch_scc0 K1_NL
    v_mov_b32 v8, 0
    global_load_dwordx2 v[{vNon}:{vNon+1}], v8, s[{sDbg}:{sDbg+1}] sc1
    """)
    p.label("K1_NL")
    sched0 = {('a', 11): [0], ('b', 11): [1, 2], ('a', 12): [3, 4], ('b', 12): [5, 6], ('a', 13): [7], ('b', 13): [8, 9], ('a', 14): [10, 11]}
    lastv = 15 - HL
    order = [(t, i) for i in range(10, 15) for t in ('a', 'b')]
    sched = {}
    for key in order:
        for G in sched0.get(key, []):
            k2 = key
            if (key[1], key[0]) < (lastv, 'a'): k2 = ('a', lastv)
            sched.setdefault(k2, []).append(G)
    def issue_pos_par(n, par):
        if par is None or not o.skew:
            sv = list(vq); issue_pos(n); del vq[:]; vq.extend(sv)
            for q in pars: VQ[q].extend([('P', n)] * 4)
            return
        l = nl('IP')
        p(f"s_cmp_eq_u32 s{sPar}, {par}")
        p(f"s_cbranch_scc0 {l}")
        sv = list(vq); issue_pos(n); del vq[:]; vq.extend(sv)
        p.label(l)
        VQ[par].extend([('P', n)] * 4)
    def eg(G):
        sv = list(vq); early_group(G); del vq[:]; vq.extend(sv)
        for q in pars: VQ[q].extend([('G', G)] * 2)
    for i in range(NR, 16):
        p(f"s_waitcnt vmcnt({min(need_in(VQ[q], ('P', 2 * i + 2)) for q in pars)})")
        bar('l')
        if i + HL <= 15: issue_pos_par(2 * i + 2 + LEAD, 0 if o.skew else None)
        if not (o.skew and i == 11):
            for G in sched.get(('a', i), []):
                if G < NEARLY: eg(G)
        if i <= 13:
            p(f"s_waitcnt vmcnt({min(need_in(VQ[q], ('P', 2 * i + 3)) for q in pars)})")
            bar('l')
            if o.skew and i <= 11: issue_pos_par(2 * i + 10, 1)
            if o.skew and i == 11:
                for G in sched.get(('a', i), []):
                    if G < NEARLY: eg(G)
            for G in sched.get(('b', i), []):
                if G < NEARLY: eg(G)
    p(f"""
    s_mov_b32 s{rO}, s{sWs}
    s_mov_b32 s{rO+1}, s{sWs+1}
    s_mov_b32 s{rO+2}, {WS_SIZE}
    s_mov_b32 s{rO+3}, 0x20000
    """)
    bar('l')
    p(f"""
    s_cmp_eq_u32 s{sWave}, 7
    s_cbranch_scc0 K1_NON2
    s_waitcnt vmcnt(0)
    s_mov_b32 s{sT2}, 0
    """)
    p.label("K1_NONP")
    p(f"""
    v_readfirstlane_b32 s{sT0}, v{vNon}
    s_add_u32 s{sT2}, s{sT2}, 1
    s_cmp_lg_u32 s{sT0}, 0
    s_cbranch_scc1 K1_NONOK
    s_cmp_lt_u32 s{sT2}, {SPIN}
    s_cbranch_scc0 K1_NONOK
    v_mov_b32 v8, 0
    global_load_dwordx2 v[{vNon}:{vNon+1}], v8, s[{sDbg}:{sDbg+1}] sc1
    s_waitcnt vmcnt(0)
    s_branch K1_NONP
    """)
    p.label("K1_NONOK")
    p(f"""
    v_mov_b32 v6, {NONL}
    ds_write_b64 v6, v[{vNon}:{vNon+1}]
    s_and_b32 s{sT0}, s{sWg}, 0xfc
    s_lshl_b32 s{sT0}, s{sT0}, 7
    s_add_u32 s{sT0}, s{sT0}, {WS_FLAG}
    v_and_b32 v12, 3, v{vL}
    v_lshlrev_b32 v13, 7, v12
    buffer_load_dword v11, v13, s[{rO}:{rO+3}], s{sT0} offen sc1
    s_waitcnt lgkmcnt(0)
    """)
    p.label("K1_NON2")
    bar('l')
    p(f"""
    v_mov_b32 v6, {NONL}
    ds_read_b64 v[8:9], v6
    s_cmp_eq_u32 s{sWave}, 7
    s_cbranch_scc0 K1_RDY
    s_waitcnt vmcnt(0)
    v_cmp_eq_u32 vcc, v11, v{vNon}
    s_and_b32 s{sT0}, vcc_lo, {15 if o.fast else 0}
    v_mov_b32 v12, s{sT0}
    v_mov_b32 v6, {NONL+8}
    ds_write_b32 v6, v12
    """)
    p.label("K1_RDY")
    p("s_waitcnt lgkmcnt(0)")
    bar('l')
    p(f"""
    v_mov_b32 v6, {NONL+8}
    ds_read_b32 v12, v6
    """)
    for G in range(NEARLY, 16): early_group(G)
    stage_a('l')
    p("s_branch K1_TAIL")

    p.label("K1_COMPUTE")
    p(f"""
    s_and_b32 s{sQh}, s{sWave}, 1
    s_lshr_b32 s{sKh}, s{sWave}, 1
    s_mov_b32 s{sC}, 0x{f32bits(SCALE_LOG2E):08x}
    v_lshl_add_u32 v8, v6, 3, v4
    v_lshlrev_b32 v8, 8, v8
    v_lshrrev_b32 v9, 1, v5
    v_lshl_add_u32 v8, v9, 3, v8
    v_and_b32 v9, 1, v3
    v_lshlrev_b32 v9, 1, v9
    v_and_b32 v2, 1, v5
    v_add_u32 v9, v9, v2
    v_lshlrev_b32 v2, 2, v4
    s_lshl_b32 s{sT0}, s{sKh}, 3
    """)
    for a in range(2):
        p(f"""
        v_add_u32 v19, s{sT0}, v9
        v_xor_b32 v19, v19, v2
        v_lshl_add_u32 v{vLW+a}, v19, 4, v8
        s_add_u32 s{sT0}, s{sT0}, 4
        """)
    p(f"""
    s_lshl_b32 s{sT0}, s{sQh}, 5
    v_add_u32 v8, s{sT0}, v7
    v_lshrrev_b32 v9, 1, v8
    v_and_b32 v9, 7, v9
    v_xor_b32 v9, v9, v6
    v_lshlrev_b32 v9, 4, v9
    v_lshl_add_u32 v{vLX}, v8, 7, v9
    s_lshl_b32 s{sT0}, s{sKh}, 5
    v_add_u32 v8, s{sT0}, v7
    v_and_b32 v9, 15, v8
    v_xor_b32 v9, v9, v6
    v_lshlrev_b32 v9, 4, v9
    v_lshl_add_u32 v{vLK}, v8, 8, v9
    v_lshl_add_u32 v8, v6, 2, v4
    v_add_u32 v8, s{sT0}, v8
    v_lshlrev_b32 v8, 8, v8
    v_and_b32 v9, 1, v5
    v_lshl_add_u32 v8, v9, 3, v8
    v_and_b32 v9, 1, v3
    v_lshlrev_b32 v9, 1, v9
    v_lshrrev_b32 v2, 1, v5
    v_add_u32 v9, v9, v2
    v_lshlrev_b32 v2, 2, v4
    """)
    for a in range(4):
        p(f"""
        s_lshl_b32 s{sT1}, s{sKh}, 1
        s_add_u32 s{sT1}, s{sT1}, {a}
        s_and_b32 s{sT1}, s{sT1}, 3
        s_lshl_b32 s{sT1}, s{sT1}, 2
        v_add_u32 v19, s{sT1}, v9
        v_xor_b32 v19, v19, v2
        v_lshl_add_u32 v{vLV+a}, v19, 4, v8
        """)
    for i in range(32):
        p(f"v_mov_b32 v{vS[0]+i}, 0")
    p(f"""
    v_mov_b32 v{vM}, 0xf149f2ca
    v_mov_b32 v{vThr}, 0xf149f2ca
    v_mov_b32 v{vL0}, 0
    v_mov_b32 v{vL1}, 0
    """)
    def wo_voffs():
        p(f"""
        s_movk_i32 s{sT0}, 3641
        s_movk_i32 s{sT1}, 1152
        """)
        for i in range(9):
            p(f"""
            v_add_u32 v2, {64*i}, v{vL}
            v_mul_u32_u24 v3, s{sT0}, v2
            v_lshrrev_b32 v3, 16, v3
            v_mul_u32_u24 v4, 18, v3
            v_sub_u32 v4, v2, v4
            v_mul_u32_u24 v3, s{sT1}, v3
            v_lshl_add_u32 v3, v4, 4, v3
            v_subrev_u32 v{vOff+i}, {(i%4)*1024}, v3
            """)
    wo_voffs()
    p("s_waitcnt lgkmcnt(0)")
    stamp(p, o, 0)
    A0 = vKA
    def q_phase(c, reads):
        f = QB[(c - 1) % 2]
        rd = list(reads)
        for ks in range(4):
            for a in range(2):
                if c >= 1:
                    p(f"{MF} {rg(vS[a],16)}, {rg(f+12*ks+4*a,4)}, {rg(f+12*ks+8,4)}, {rg(vS[a],16)}")
                for _ in range(3 if a == 0 else 2):
                    if rd: p(rd.pop(0))
        for r_ in rd: p(r_)
    for c in range(9):
        qs = QS[c % 4]
        f = QB[c % 2]
        p(f"""
        v_add_u32 v{A0}, {qs}, v{vLW}
        v_add_u32 v{A0+1}, {qs}, v{vLW+1}
        v_add_u32 v{A0+2}, {qs+16384}, v{vLX}
        v_xor_b32 v{A0+3}, 32, v{A0+2}
        v_xor_b32 v{A0+4}, 64, v{A0+2}
        v_xor_b32 v{A0+5}, 96, v{A0+2}
        s_waitcnt lgkmcnt(0)
        """)
        bar('c')
        if c == 0: stamp(p, o, 1)
        reads = []
        for ks in range(4):
            for a in range(2):
                reads.append(f"ds_read_b64_tr_b16 {rg(f+12*ks+4*a,2)}, v{A0+a} offset:{ks*4096}")
                reads.append(f"ds_read_b64_tr_b16 {rg(f+12*ks+4*a+2,2)}, v{A0+a} offset:{ks*4096+1024}")
            reads.append(f"ds_read_b128 {rg(f+12*ks+8,4)}, v{A0+2+ks}")
        q_phase(c, reads)
    p("s_waitcnt lgkmcnt(0)")
    bar('c')
    q_phase(9, [])
    stamp(p, o, 2)
    p(f"""
    s_lshl_b32 s{sT0}, s{sQh}, 13
    s_add_u32 s{sT0}, s{sT0}, {QX}
    s_lshl_b32 s{sT1}, s{sKh}, 12
    s_add_u32 s{sT1}, s{sT1}, s{sT0}
    v_lshlrev_b32 v2, 4, v{vL}
    v_add_u32 v3, s{sT1}, v2
    v_add_u32 v2, s{sT0}, v2
    """)
    p(f"v_mov_b32 v{vKA}, v{vLK}")
    for s in range(1, 8):
        p(f"v_xor_b32 v{vKA+s}, {s<<5}, v{vLK}")
    for i in range(64):
        p(f"v_mov_b32 v{vO+i}, 0")
    for a in range(2):
        for j in range(8):
            p(f"v_cvt_pk_bf16_f32 v{vVf+8*a+j}, v{vS[a]+2*j}, v{vS[a]+2*j+1}")
    for k in range(4):
        p(f"ds_write_b128 v3, {rg(vVf+4*k,4)} offset:{k*1024}")
    p("s_waitcnt lgkmcnt(0)")
    bar('c')
    for s in range(8):
        p(f"ds_read_b128 {rg(vQ+4*s,4)}, v2 offset:{s*1024}")

    def k_addrs(sreg):
        p(f"v_add_u32 v{vKA}, s{sreg}, v{vLK}")
        for s in range(1, 8):
            p(f"v_xor_b32 v{vKA+s}, {s<<5}, v{vKA}")
    def v_addrs(sreg):
        for a in range(4):
            p(f"v_add_u32 v{vVA+a}, s{sreg}, v{vLV+a}")
    def adv2(s):
        p(f"""
        s_add_u32 s{s}, s{s}, {2*SLOT}
        s_cmp_ge_u32 s{s}, {NSLOT*SLOT}
        s_cselect_b32 s{sT0}, {NSLOT*SLOT}, 0
        s_sub_u32 s{s}, s{s}, s{sT0}
        """)
    def tmax(S):
        p(f"""
        v_max3_f32 v2, v{S}, v{S+1}, v{S+2}
        v_max3_f32 v3, v{S+3}, v{S+4}, v{S+5}
        v_max3_f32 v2, v2, v{S+6}, v{S+7}
        v_max3_f32 v3, v3, v{S+8}, v{S+9}
        v_max3_f32 v2, v2, v{S+10}, v{S+11}
        v_max3_f32 v3, v3, v{S+12}, v{S+13}
        v_max3_f32 v2, v2, v{S+14}, v{S+15}
        v_max_f32 v2, v2, v3
        v_mov_b32 v3, v2
        s_nop 1
        v_permlane32_swap_b32 v2, v3
        v_max_f32 v2, v2, v3
        v_mul_f32 v{vTn}, s{sC}, v2
        """)
    p("s_waitcnt lgkmcnt(0)")
    bar('c')
    stamp(p, o, 3)
    for s in range(8):
        p(f"ds_read_b128 {rg(vKf+4*s,4)}, v{vKA+s}")
    p(f"s_mov_b32 s{sRK}, {S_[1]}")
    k_addrs(sRK)
    p("s_waitcnt lgkmcnt(0)")
    bar('c')
    for s in range(8):
        c = '0' if s == 0 else rg(vS[0], 16)
        p(f"{MF} {rg(vS[0],16)}, {rg(vKf+4*s,4)}, {rg(vQ+4*s,4)}, {c}")
    for s in range(8):
        p(f"ds_read_b128 {rg(vKf+4*s,4)}, v{vKA+s}")
    p(f"""
    s_mov_b32 s{sRV}, {S_[2]}
    s_mov_b32 s{sRK}, {S_[3]}
    s_mov_b32 s{sCnt}, 0
    """)
    v_addrs(sRV)
    k_addrs(sRK)
    tmax(vS[0])

    def alpha(tag, cur, do_qk):
        S, Sn = vS[cur], vS[1 - cur]
        p("s_waitcnt lgkmcnt(0)")
        p("s_barrier")
        p(f"""
        v_cmp_gt_f32 vcc, v{vTn}, v{vThr}
        s_cbranch_vccnz K1_RS{tag}
        """)
        p.label(f"K1_BK{tag}")
        reads = [(a, ks, h) for a in range(4) for ks in range(2) for h in range(2)]
        for j in range(8):
            if do_qk:
                c = '0' if j == 0 else rg(Sn, 16)
                p(f"{MF} {rg(Sn,16)}, {rg(vKf+4*j,4)}, {rg(vQ+4*j,4)}, {c}")
            for (a, ks, h) in reads[2*j:2*j+2]:
                f = vVf + (a * 2 + ks) * 4 + 2 * h
                p(f"ds_read_b64_tr_b16 {rg(f,2)}, v{vVA+a} offset:{ks*4096+h*2048}")
            p(f"v_fma_f32 v{S+2*j}, v{S+2*j}, s{sC}, -v{vM}")
            p(f"v_fma_f32 v{S+2*j+1}, v{S+2*j+1}, s{sC}, -v{vM}")
            p(f"v_exp_f32 v{S+2*j}, v{S+2*j}")
            p(f"v_exp_f32 v{S+2*j+1}, v{S+2*j+1}")
            if j >= 1:
                k = j - 1
                p(f"v_cvt_pk_bf16_f32 v{vP+k}, v{S+2*k}, v{S+2*k+1}")
                p(f"v_add_f32 v{vL0}, v{vL0}, v{S+2*k}")
                p(f"v_add_f32 v{vL1}, v{vL1}, v{S+2*k+1}")
        p(f"v_cvt_pk_bf16_f32 v{vP+7}, v{S+14}, v{S+15}")
        p(f"v_add_f32 v{vL0}, v{vL0}, v{S+14}")
        p(f"v_add_f32 v{vL1}, v{vL1}, v{S+15}")

    def beta(tag, cur, read_k, do_tmax, barrier=True):
        Sn = vS[1 - cur]
        p("s_waitcnt lgkmcnt(0)")
        if barrier: p("s_barrier")
        n = 0
        for a in range(4):
            for ks in range(2):
                f = vVf + (a * 2 + ks) * 4
                p(f"{MF} {rg(vO+16*a,16)}, {rg(f,4)}, {rg(vP+4*ks,4)}, {rg(vO+16*a,16)}")
                if read_k:
                    p(f"ds_read_b128 {rg(vKf+4*n,4)}, v{vKA+n}")
                if n == 0:
                    adv2(sRV); adv2(sRK)
                if n == 1 and do_tmax:
                    tmax(Sn)
                if n == 3: v_addrs(sRV)
                n += 1
        k_addrs(sRK)

    def rescale(tag):
        p.label(f"K1_RS{tag}")
        p(f"""
        v_max_f32 v3, v{vTn}, v{vM}
        v_sub_f32 v4, v{vM}, v3
        v_exp_f32 v4, v4
        v_mov_b32 v{vM}, v3
        v_add_f32 v{vThr}, 0x41000000, v3
        """)
        p(f"v_mul_f32 v{vL0}, v{vL0}, v4")
        p(f"v_mul_f32 v{vL1}, v{vL1}, v4")
        for i in range(64):
            p(f"v_mul_f32 v{vO+i}, v{vO+i}, v4")
        p(f"s_branch K1_BK{tag}")

    p.label("K1_LOOP")
    alpha('L0', 0, True)
    beta('L0', 0, True, True)
    alpha('L1', 1, True)
    beta('L1', 1, True, True)
    p(f"""
    s_add_u32 s{sCnt}, s{sCnt}, 1
    s_cmp_lt_u32 s{sCnt}, 7
    s_cbranch_scc1 K1_LOOP
    """)
    nbar['c'] += 28
    stamp(p, o, 4)
    alpha('A', 0, True); nbar['c'] += 1
    beta('A', 0, False, True, barrier=False)
    alpha('B', 1, False); nbar['c'] += 1
    p("s_waitcnt lgkmcnt(0)")
    for a in (2, 3, 0, 1):
        for ks in range(2):
            f = vVf + (a * 2 + ks) * 4
            p(f"{MF} {rg(vO+16*a,16)}, {rg(f,4)}, {rg(vP+4*ks,4)}, {rg(vO+16*a,16)}")
    stamp(p, o, 5)
    vS0 = vS[0]
    p(f"""
    v_add_f32 v{vL0}, v{vL0}, v{vL1}
    v_mov_b32 v{vL1}, v{vL0}
    s_nop 1
    v_permlane32_swap_b32 v{vL0}, v{vL1}
    v_add_f32 v{vThr}, v{vL0}, v{vL1}
    v_and_b32 v7, 31, v{vL}
    v_lshlrev_b32 v7, 3, v7
    s_lshl_b32 s{sT0}, s{sWave}, 8
    s_add_u32 s{sT0}, s{sT0}, {STAT}
    s_xor_b32 s{sT1}, s{sWave}, 2
    s_lshl_b32 s{sT1}, s{sT1}, 8
    s_add_u32 s{sT1}, s{sT1}, {STAT}
    v_add_u32 v2, s{sT0}, v7
    v_add_u32 v7, s{sT1}, v7
    v_lshlrev_b32 v3, 4, v{vL}
    s_xor_b32 s{sT1}, s{sWave}, 2
    s_lshl_b32 s{sT1}, s{sT1}, 13
    s_add_u32 s{sT1}, s{sT1}, {EX}
    s_lshl_b32 s{sT0}, s{sWave}, 13
    s_add_u32 s{sT0}, s{sT0}, {EX}
    v_add_u32 v4, s{sT1}, v3
    v_add_u32 v5, s{sT0}, v3
    s_mov_b32 s{rO}, s{sWs}
    s_mov_b32 s{rO+1}, s{sWs+1}
    s_mov_b32 s{rO+2}, {WS_SIZE}
    s_mov_b32 s{rO+3}, 0x20000
    """)
    wo_srd()
    bar('c')
    stamp(p, o, 'e1')
    p(f"ds_write_b64 v2, v[{vM}:{vM+1}]")
    for a in (2, 3):
        for g in range(4):
            p(f"ds_write_b128 v4, {rg(vO+16*a+4*g,4)} offset:{(a-2)*4096+g*1024}")
    p("s_waitcnt lgkmcnt(0)")
    stamp(p, o, 'e2')
    bar('c')
    stamp(p, o, 'e3')
    p(f"ds_read_b64 v[{vS0}:{vS0+1}], v7")
    for a in range(2):
        for g in range(4):
            p(f"ds_read_b128 {rg(vO+32+16*a+4*g,4)}, v5 offset:{a*4096+g*1024}")
    p(f"""
    v_mov_b32 v6, {NONL}
    ds_read_b64 v[8:9], v6
    s_waitcnt lgkmcnt(9)
    v_max_f32 v2, v{vM}, v{vS0}
    v_sub_f32 v3, v{vM}, v2
    v_sub_f32 v4, v{vS0}, v2
    v_exp_f32 v3, v3
    v_exp_f32 v4, v4
    v_mul_f32 v5, v3, v{vThr}
    v_fmac_f32 v5, v4, v{vS0+1}
    v_rcp_f32 v6, v5
    v_mul_f32 v3, v3, v6
    v_mul_f32 v4, v4, v6
    """)
    for i in range(32):
        p(f"v_mul_f32 v{vO+i}, v{vO+i}, v3")
    for a in range(2):
        p(f"s_waitcnt lgkmcnt({5-4*a})")
        for i in range(16):
            p(f"v_fmac_f32 v{vO+16*a+i}, v{vO+32+16*a+i}, v4")
    bar('c')
    p(f"""
    v_mov_b32 v6, {NONL+8}
    ds_read_b32 v12, v6
    """)
    order = [0, 2, 1, 3]
    for a in range(2):
        for idx, g in enumerate(order):
            p(f"v_cvt_pk_bf16_f32 v{vKf+8*a+2*idx}, v{vO+16*a+4*g}, v{vO+16*a+4*g+1}")
            p(f"v_cvt_pk_bf16_f32 v{vKf+8*a+2*idx+1}, v{vO+16*a+4*g+2}, v{vO+16*a+4*g+3}")
    stamp(p, o, 'e4')
    p(f"""
    v_and_b32 v2, 15, v{vL}
    v_lshrrev_b32 v3, 5, v{vL}
    v_lshl_add_u32 v2, v3, 4, v2
    v_lshlrev_b32 v2, 4, v2
    v_bfe_u32 v3, v{vL}, 4, 1
    v_lshl_add_u32 v2, v3, 12, v2
    s_lshl_b32 s{sT0}, s{sWg}, 14
    s_lshl_b32 s{sT1}, s{sQh}, 13
    s_add_u32 s{sT0}, s{sT0}, s{sT1}
    s_lshl_b32 s{sT1}, s{sKh}, 11
    s_add_u32 s{sT0}, s{sT0}, s{sT1}
    """)
    for a in range(2):
        p(f"buffer_store_dwordx4 {rg(vKf+8*a,4)}, v2, s[{rO}:{rO+3}], s{sT0} offen offset:{a*1024} sc1")
        p(f"buffer_store_dwordx4 {rg(vKf+8*a+4,4)}, v2, s[{rO}:{rO+3}], s{sT0} offen offset:{a*1024+512} sc1")
    stage_a('c')
    assert nbar['c'] == nbar['l'], nbar
    print('barriers', nbar, file=sys.stderr)
    p.label("K1_TAIL")
    if o.prio: p("s_setprio 0")
    tail(p, o, locals())
    for tag in ('L0', 'L1', 'A', 'B'):
        rescale(tag)
    p.label("K1_END")
    p("s_endpgm")
    return p

def tail(p, o, L):
    g = lambda n: L[n]
    sWave, sB, sXc, sJj, sWg, sT0, sT1, sT2 = g('sWave'), g('sB'), g('sXc'), g('sJj'), g('sWg'), g('sT0'), g('sT1'), g('sT2')
    rO, rW, rX, sN, sTag, sOut, sWs = g('rO'), g('rW'), g('rX'), g('sN'), g('sTag'), g('sOut'), g('sWs')
    vL, vOff, wo_addr, NEARLY, NONL, wo_voffs = g('vL'), g('vOff'), g('wo_addr'), g('NEARLY'), g('NONL'), g('wo_voffs')
    sQt, sKh2, sF, sS2, sPend, sNA = g('sQt'), g('sKh2'), g('sF'), g('sS2'), g('sPend'), g('sNA')
    head_loads = g('head_loads')
    vAcc, vB, vF, vLA, vAd = 28, 64, 96, 19, 20
    p(f"""
    s_cmp_lt_u32 s{sWave}, 4
    s_cbranch_scc0 T_E4L
    s_cmp_eq_u32 s{sNA}, 0
    s_cbranch_scc0 T_E4a
    s_waitcnt vmcnt(0) lgkmcnt(0)
    s_branch T_E4
    """)
    p.label("T_E4a")
    p(f"""
    s_cmp_eq_u32 s{sNA}, 4
    s_cbranch_scc0 T_E4b
    s_waitcnt vmcnt(4) lgkmcnt(0)
    s_branch T_E4
    """)
    p.label("T_E4b")
    p("s_waitcnt vmcnt(8) lgkmcnt(0)")
    p("s_branch T_E4")
    p.label("T_E4L")
    p("s_waitcnt lgkmcnt(0)")
    p.label("T_E4")
    p(f"""
    v_readfirstlane_b32 s{sN}, v8
    v_readfirstlane_b32 s{sN+1}, v9
    s_barrier
    """)
    if o.stamps: stamp(p, o, 6)
    p(f"""
    s_cmp_eq_u32 s{sWave}, 7
    s_cbranch_scc0 T_F0
    v_mov_b32 v9, s{sN}
    s_lshl_b32 s{sT0}, s{sWg}, 7
    s_add_u32 s{sT0}, s{sT0}, {WS_FLAG}
    v_mov_b32 v3, 0
    v_cmp_eq_u32 vcc, 0, v{vL}
    s_and_saveexec_b64 s[58:59], vcc
    buffer_store_dword v9, v3, s[{rO}:{rO+3}], s{sT0} offen sc1
    s_mov_b64 exec, s[58:59]
    """)
    p.label("T_F0")
    p.label("T_NOLATE")
    p(f"""
    v_lshrrev_b32 v2, 4, v{vL}
    v_and_b32 v3, 15, v{vL}
    v_lshrrev_b32 v4, 2, v3
    v_and_b32 v6, 3, v3
    v_lshl_add_u32 v2, v2, 2, v4
    v_mul_u32_u24 v2, 288, v2
    v_lshl_add_u32 v{vLA}, v6, 3, v2
    s_and_b32 s{sTag}, s{sN}, 0xfff
    s_lshr_b32 s{sTag+1}, s{sN}, 12
    s_and_b32 s{sTag+1}, s{sTag+1}, 0xfff
    s_lshr_b32 s{sTag+2}, s{sN}, 24
    s_lshl_b32 s{sT2}, s{sN+1}, 8
    s_or_b32 s{sTag+2}, s{sTag+2}, s{sT2}
    s_and_b32 s{sTag+2}, s{sTag+2}, 0xfff
    s_lshr_b32 s{sTag+3}, s{sN+1}, 4
    s_and_b32 s{sTag+3}, s{sTag+3}, 0xfff
    v_mov_b32 v7, 0xfffff000
    """)
    vTagHi = 22
    if o.pk:
        p(f"""
        s_lshl_b32 s{sTag}, s{sN}, 16
        s_and_b32 s{sTag+1}, s{sN}, 0xffff0000
        s_lshl_b32 s{sT2}, s{sN+1}, 16
        s_xor_b32 s{sTag+2}, s{sTag}, s{sT2}
        s_xor_b32 s{sTag+2}, s{sTag+2}, 0x5a5a0000
        s_xor_b32 s{sTag+3}, s{sTag+1}, s{sT2}
        s_xor_b32 s{sTag+3}, s{sTag+3}, 0xa5c30000
        v_and_b32 v3, 3, v{vL}
        v_mov_b32 v{vTagHi}, s{sTag}
        v_mov_b32 v4, s{sTag+1}
        v_cmp_eq_u32 vcc, 1, v3
        v_cndmask_b32 v{vTagHi}, v{vTagHi}, v4, vcc
        v_mov_b32 v4, s{sTag+2}
        v_cmp_eq_u32 vcc, 2, v3
        v_cndmask_b32 v{vTagHi}, v{vTagHi}, v4, vcc
        v_mov_b32 v4, s{sTag+3}
        v_cmp_eq_u32 vcc, 3, v3
        v_cndmask_b32 v{vTagHi}, v{vTagHi}, v4, vcc
        """)
    for i in range(36):
        p(f"v_mov_b32 v{vAcc+i}, 0")
        p(f"v_mov_b32 v{160+i}, 0")
    for k, sh in enumerate((sF, sS2)):
        assert wo_addr(0) == 49152 and wo_addr(4) == 49152 + 36864 and wo_addr(8) == 49152 + 2 * 36864 and wo_addr(12) == 0
        p(f"""
        s_mul_i32 s{sT2}, s{sh}, 36864
        s_add_u32 s{sT2}, s{sT2}, 49152
        s_cmp_eq_u32 s{sh}, 3
        s_cselect_b32 s{sT2}, 0, s{sT2}
        v_add_u32 v{vAd+k}, s{sT2}, v{vLA}
        """)
    p(f"""
    s_waitcnt vmcnt(0)
    s_barrier
    """)
    if o.stamps: stamp(p, o, 7)
    pc = [0]
    def wait_ready(sh):
        pc[0] += 1; k = pc[0]
        p(f"""
        s_cmp_eq_u32 s{sh}, s{sJj}
        s_cbranch_scc1 T_WR{k}d
        s_and_b32 s{sT0}, s{sWg}, 0xfc
        s_add_u32 s{sT0}, s{sT0}, s{sh}
        s_lshl_b32 s{sT0}, s{sT0}, 7
        s_add_u32 s{sT0}, s{sT0}, {WS_FLAG}
        v_mov_b32 v8, 0
        v_mov_b32 v9, s{sN}
        s_mov_b32 s{sT1}, 0
        buffer_load_dword v10, v8, s[{rO}:{rO+3}], s{sT0} offen sc1
        buffer_load_dword v11, v8, s[{rO}:{rO+3}], s{sT0} offen sc1
        """)
        p.label(f"T_WR{k}p")
        p(f"""
        s_waitcnt vmcnt(1)
        v_cmp_ne_u32 vcc, v10, v9
        s_cbranch_vccz T_WR{k}e
        buffer_load_dword v10, v8, s[{rO}:{rO+3}], s{sT0} offen sc1
        s_add_u32 s{sT1}, s{sT1}, 1
        s_waitcnt vmcnt(1)
        v_cmp_ne_u32 vcc, v11, v9
        s_cbranch_vccz T_WR{k}e
        buffer_load_dword v11, v8, s[{rO}:{rO+3}], s{sT0} offen sc1
        s_cmp_lt_u32 s{sT1}, {SPIN}
        s_cbranch_scc1 T_WR{k}p
        """)
        p.label(f"T_WR{k}e")
        p("s_waitcnt vmcnt(0)")
        p.label(f"T_WR{k}d")
    p(f"""
    s_and_b32 s{sT2}, s{sPend}, 1
    s_cmp_eq_u32 s{sT2}, 0
    s_cbranch_scc1 T_G1
    """)
    wait_ready(sF)
    head_loads(sF, 0)
    p.label("T_G1")
    p(f"""
    s_and_b32 s{sT2}, s{sPend}, 2
    s_cmp_eq_u32 s{sT2}, 0
    s_cbranch_scc1 T_G2
    s_cmp_eq_u32 s{sS2}, s{sJj}
    s_cbranch_scc0 T_G2
    """)
    head_loads(sS2, 16)
    p(f"""
    s_mov_b32 s{sPend}, 0
    s_waitcnt vmcnt(4)
    s_branch T_G3
    """)
    p.label("T_G2")
    p("s_waitcnt vmcnt(0)")
    p.label("T_G3")
    gemm_half(p, vAcc, vB, vF, vAd)
    p(f"""
    s_and_b32 s{sT2}, s{sPend}, 2
    s_cmp_eq_u32 s{sT2}, 0
    s_cbranch_scc1 T_G4
    """)
    wait_ready(sS2)
    head_loads(sS2, 16)
    p.label("T_G4")
    p("s_waitcnt vmcnt(0)")
    vAcc2 = 160
    gemm_half(p, vAcc2, vB + 16, vF, vAd + 1)
    for i in range(36):
        p(f"v_add_f32 v{vAcc+i}, v{vAcc+i}, v{vAcc2+i}")
    if o.stamps: stamp(p, o, 8)
    p(f"""
    s_barrier
    s_mul_i32 s{sT0}, s{sQt}, 9216
    v_add_u32 v2, s{sT0}, v5
    s_cmp_eq_u32 s{sKh2}, 0
    s_cbranch_scc0 T_H1
    """)
    for nt in range(5, 9):
        p(f"ds_write_b128 v2, {rg(vAcc+4*nt,4)} offset:{nt*1024}")
    p("s_branch T_H2")
    p.label("T_H1")
    for nt in range(0, 5):
        p(f"ds_write_b128 v2, {rg(vAcc+4*nt,4)} offset:{nt*1024}")
    p.label("T_H2")
    p(f"""
    s_lshl_b32 s{sT0}, s{sXc}, 3
    s_add_u32 s{sT0}, s{sT0}, s{sB}
    s_lshl_b32 s{sT0}, s{sT0}, 2
    s_add_u32 s{sT0}, s{sT0}, s{sJj}
    s_lshl_b32 s{sT0}, s{sT0}, 2
    s_add_u32 s{sT0}, s{sT0}, s{sQt}
    """)
    if o.pk:
        p(f"""
        s_lshl_b32 s{sT0}, s{sT0}, 1
        s_add_u32 s{sT0}, s{sT0}, s{sKh2}
        s_mul_i32 s{sT0}, s{sT0}, 3072
        """)
    else:
        p(f"s_mul_i32 s{sT0}, s{sT0}, 9216")
    p(f"""
    s_add_u32 s{sT0}, s{sT0}, {WS_PART}
    s_waitcnt lgkmcnt(0)
    s_barrier
    s_cmp_eq_u32 s{sKh2}, 0
    s_cbranch_scc0 T_H3
    """)
    def fin(nts):
        for nt in nts:
            p(f"ds_read_b128 {rg(vF+4*nt,4)}, v2 offset:{nt*1024}")
        for idx, nt in enumerate(nts):
            p(f"s_waitcnt lgkmcnt({len(nts)-1-idx})")
            for e in range(4):
                p(f"v_add_f32 v{vAcc+4*nt+e}, v{vAcc+4*nt+e}, v{vF+4*nt+e}")
            if not o.pk:
                for e in range(4):
                    p(f"v_and_or_b32 v{vAcc+4*nt+e}, v{vAcc+4*nt+e}, v7, s{sTag+e}")
                p(f"s_add_u32 s{sT1}, s{sT0}, {(nt//4)*4096}")
                p(f"buffer_store_dwordx4 {rg(vAcc+4*nt,4)}, v5, s[{rO}:{rO+3}], s{sT1} offen offset:{(nt%4)*1024} sc1")
        if o.pk:
            V = [vAcc + 4 * nt + e for nt in nts for e in range(4)]
            vG = 140
            for gi in range(3):
                vals = V[7 * gi: 7 * gi + 7]
                vals += [None] * (7 - len(vals))
                for d in range(3):
                    a, b = vals[2 * d], vals[2 * d + 1]
                    dst = vG + 4 * gi + d
                    if a is None: p(f"v_mov_b32 v{dst}, 0")
                    else: p(f"v_cvt_pk_bf16_f32 v{dst}, v{a}, {'v%d' % b if b is not None else '0'}")
                dst = vG + 4 * gi + 3
                if vals[6] is None:
                    p(f"v_mov_b32 v{dst}, v{vTagHi}")
                else:
                    p(f"v_cvt_pk_bf16_f32 v{dst}, v{vals[6]}, 0")
                    p(f"v_or_b32 v{dst}, v{dst}, v{vTagHi}")
                p(f"buffer_store_dwordx4 {rg(vG+4*gi,4)}, v5, s[{rO}:{rO+3}], s{sT0} offen offset:{gi*1024} sc1")
    fin(list(range(0, 5)))
    p("s_branch T_H4")
    p.label("T_H3")
    fin(list(range(5, 9)))
    p.label("T_H4")
    if o.stamps: stamp(p, o, 9)
    vX = 100
    if o.pk:
        vA = 140
        p(f"""
        s_cmp_ge_u32 s{sWave}, 3
        s_cbranch_scc1 T_DONE
        s_lshl_b32 s{sT0}, s{sB}, 2
        s_add_u32 s{sT0}, s{sT0}, s{sJj}
        s_lshl_b32 s{sT0}, s{sT0}, 3
        s_add_u32 s{sT0}, s{sT0}, s{sXc}
        s_mul_i32 s{sT0}, s{sT0}, 3072
        s_lshl_b32 s{sT1}, s{sWave}, 10
        s_add_u32 s{sT0}, s{sT0}, s{sT1}
        s_add_u32 s{sT0}, s{sT0}, {WS_PART}
        s_mov_b32 s{rX}, s{sOut}
        s_mov_b32 s{rX+1}, s{sOut+1}
        s_mov_b32 s{rX+2}, {512*576*2}
        s_mov_b32 s{rX+3}, 0x20000
        v_lshlrev_b32 v3, 4, v{vL}
        s_lshr_b32 s{sT1}, s{sXc}, 1
        s_lshl_b32 s{sT1}, s{sT1}, 4
        s_lshl_b32 s{sT2}, s{sB}, 6
        s_add_u32 s{sT1}, s{sT1}, s{sT2}
        v_and_b32 v4, 15, v{vL}
        v_add_u32 v4, s{sT1}, v4
        s_movk_i32 s{sT1}, 1152
        v_mul_u32_u24 v4, s{sT1}, v4
        v_lshrrev_b32 v6, 4, v{vL}
        v_lshl_add_u32 v4, v6, 3, v4
        s_mul_i32 s{sT1}, s{sJj}, 288
        s_and_b32 s{sT2}, s{sXc}, 1
        s_mul_i32 s{sT2}, s{sT2}, 160
        s_add_u32 s{sT1}, s{sT1}, s{sT2}
        v_add_u32 v4, s{sT1}, v4
        s_mov_b32 s{sT2}, 0
        s_mov_b64 s[56:57], exec
        v_mul_u32_u24 v6, {32*8*3}, v{vL}
        v_lshlrev_b32 v6, 10, v6
        v_add_u32 v6, 12, v6
        v_mov_b32 v9, s{sTag}
        s_mov_b64 exec, 0xff
        buffer_load_dword v10, v6, s[{rO}:{rO+3}], s{sT0} offen sc1
        buffer_load_dword v11, v6, s[{rO}:{rO+3}], s{sT0} offen sc1
        """)
        p.label("T_PP")
        p(f"""
        s_waitcnt vmcnt(1)
        v_xor_b32 v8, v10, v9
        v_lshrrev_b32 v8, 16, v8
        v_cmp_ne_u32 vcc, 0, v8
        s_cbranch_vccz T_PPD
        buffer_load_dword v10, v6, s[{rO}:{rO+3}], s{sT0} offen sc1
        s_add_u32 s{sT2}, s{sT2}, 1
        s_waitcnt vmcnt(1)
        v_xor_b32 v8, v11, v9
        v_lshrrev_b32 v8, 16, v8
        v_cmp_ne_u32 vcc, 0, v8
        s_cbranch_vccz T_PPD
        buffer_load_dword v11, v6, s[{rO}:{rO+3}], s{sT0} offen sc1
        s_cmp_lt_u32 s{sT2}, {SPIN}
        s_cbranch_scc1 T_PP
        """)
        p.label("T_PPD")
        p(f"""
        s_mov_b64 exec, s[56:57]
        s_mov_b32 s{sT2}, 0
        """)
        p.label("T_POLL2")
        p(f"s_mov_b32 s{sT1}, s{sT0}")
        for s_ in range(8):
            p(f"buffer_load_dwordx4 {rg(vX+4*s_,4)}, v3, s[{rO}:{rO+3}], s{sT1} offen sc1")
            if s_ < 7: p(f"s_add_u32 s{sT1}, s{sT1}, {32*8*3072}")
        p(f"""
        s_add_u32 s{sT2}, s{sT2}, 1
        v_mov_b32 v6, 0
        """)
        for s_ in range(8):
            p(f"s_waitcnt vmcnt({7-s_})")
            p(f"v_xor_b32 v8, v{vX+4*s_+3}, v{vTagHi}")
            p(f"v_or_b32 v6, v6, v8")
        p(f"""
        v_lshrrev_b32 v6, 16, v6
        v_cmp_ne_u32 vcc, 0, v6
        s_cmp_lt_u32 s{sT2}, {SPIN}
        s_cbranch_scc0 T_SUM
        s_cbranch_vccnz T_POLL2
        """)
        p.label("T_SUM")
        p("v_mov_b32 v7, 0xffff0000")
        for s_ in range(8):
            for j in range(7):
                src = vX + 4 * s_ + j // 2
                if s_ == 0:
                    if j % 2 == 0: p(f"v_lshlrev_b32 v{vA+j}, 16, v{src}")
                    else: p(f"v_and_b32 v{vA+j}, v7, v{src}")
                else:
                    if j % 2 == 0: p(f"v_lshlrev_b32 v8, 16, v{src}")
                    else: p(f"v_and_b32 v8, v7, v{src}")
                    p(f"v_add_f32 v{vA+j}, v{vA+j}, v8")
        SCO = ' sc1' if o.outsc else ''
        if o.wide:
            p(f"""
            v_and_b32 v12, 15, v{vL}
            v_mul_u32_u24 v12, 176, v12
            v_lshrrev_b32 v13, 4, v{vL}
            v_lshl_add_u32 v12, v13, 3, v12
            v_add_u32 v12, 40960, v12
            """)
            def st(width, reg, off):
                if not o.wide:
                    op = {8: 'buffer_store_dwordx2', 4: 'buffer_store_dword', 2: 'buffer_store_short'}[width]
                    r = rg(reg, 2) if width == 8 else f"v{reg}"
                    p(f"{op} {r}, v4, s[{rX}:{rX+3}], 0 offen offset:{off}{SCO}")
                else:
                    op = {8: 'ds_write_b64', 4: 'ds_write_b32', 2: 'ds_write_b16'}[width]
                    r = rg(reg, 2) if width == 8 else f"v{reg}"
                    p(f"{op} v12, {r} offset:{off}")
        else:
            def st(width, reg, off):
                op = {8: 'buffer_store_dwordx2', 4: 'buffer_store_dword', 2: 'buffer_store_short'}[width]
                r = rg(reg, 2) if width == 8 else f"v{reg}"
                p(f"{op} {r}, v4, s[{rX}:{rX+3}], 0 offen offset:{off}{SCO}")
        FIN = 'T_OW' if o.wide else 'T_DONE'
        p(f"""
        s_cmp_eq_u32 s{sWave}, 1
        s_cbranch_scc1 T_O1
        s_cmp_eq_u32 s{sWave}, 2
        s_cbranch_scc1 T_O2
        v_cvt_pk_bf16_f32 v8, v{vA}, v{vA+1}
        v_cvt_pk_bf16_f32 v9, v{vA+2}, v{vA+3}
        v_cvt_pk_bf16_f32 v10, v{vA+4}, v{vA+5}
        v_cvt_pk_bf16_f32 v11, v{vA+6}, v{vA+6}
        """)
        st(8, 8, 0); st(4, 10, 32); st(2, 11, 36)
        p(f"s_branch {FIN}")
        p.label("T_O1")
        p(f"""
        v_cvt_pk_bf16_f32 v11, v{vA}, v{vA}
        v_cvt_pk_bf16_f32 v8, v{vA+1}, v{vA+2}
        v_cvt_pk_bf16_f32 v9, v{vA+3}, v{vA+4}
        v_cvt_pk_bf16_f32 v10, v{vA+5}, v{vA+6}
        """)
        st(2, 11, 38); st(8, 8, 64); st(4, 10, 96)
        p(f"s_branch {FIN}")
        p.label("T_O2")
        p(f"""
        v_cvt_pk_bf16_f32 v10, v{vA}, v{vA+1}
        v_cvt_pk_bf16_f32 v8, v{vA+2}, v{vA+3}
        v_cvt_pk_bf16_f32 v9, v{vA+4}, v{vA+5}
        """)
        st(4, 10, 100)
        if o.wide:
            st(8, 8, 128)
            p.label("T_OW")
            p(f"""
            s_waitcnt lgkmcnt(0)
            s_barrier
            s_and_b32 s{sT0}, s{sXc}, 1
            s_cmp_eq_u32 s{sT0}, 0
            s_cselect_b32 s{sT1}, 10, 8
            s_mov_b32 s{sT2}, 8192
            s_cselect_b32 s{sT2}, 6554, s{sT2}
            v_mul_u32_u24 v12, s{sT2}, v0
            v_lshrrev_b32 v12, 16, v12
            v_mul_u32_u24 v13, s{sT1}, v12
            v_sub_u32 v13, v0, v13
            v_cmp_gt_u32 vcc, 16, v12
            s_and_saveexec_b64 s[58:59], vcc
            s_cbranch_execz T_OWX
            v_mul_u32_u24 v14, 176, v12
            v_lshl_add_u32 v14, v13, 4, v14
            ds_read_b128 v[8:11], v14 offset:40960
            s_lshr_b32 s{sT1}, s{sXc}, 1
            s_lshl_b32 s{sT1}, s{sT1}, 4
            s_lshl_b32 s{sT2}, s{sB}, 6
            s_add_u32 s{sT1}, s{sT1}, s{sT2}
            v_add_u32 v12, s{sT1}, v12
            s_movk_i32 s{sT1}, 1152
            v_mul_u32_u24 v12, s{sT1}, v12
            v_lshl_add_u32 v12, v13, 4, v12
            s_mul_i32 s{sT1}, s{sJj}, 288
            s_mul_i32 s{sT0}, s{sT0}, 160
            s_add_u32 s{sT1}, s{sT1}, s{sT0}
            s_waitcnt lgkmcnt(0)
            buffer_store_dwordx4 v[8:11], v12, s[{rX}:{rX+3}], s{sT1} offen{SCO}
            """)
            p.label("T_OWX")
            p("s_mov_b64 exec, s[58:59]")
        else:
            p(f"""
            s_and_b32 s{sT0}, s{sXc}, 1
            s_cmp_eq_u32 s{sT0}, 0
            s_cbranch_scc0 T_DONE
            """)
            st(8, 8, 128)
    else:
        p(f"""
        s_cmp_ge_u32 s{sWave}, 5
        s_cbranch_scc1 T_DONE
        v_cmp_gt_u32 vcc, 288, v0
        s_and_saveexec_b64 s[58:59], vcc
        s_mul_i32 s{sT0}, s{sXc}, 288
        v_add_u32 v2, s{sT0}, v0
        v_lshlrev_b32 v3, 4, v2
        s_lshl_b32 s{sT0}, s{sB}, 2
        s_add_u32 s{sT0}, s{sT0}, s{sJj}
        s_mul_i32 s{sT0}, s{sT0}, 36864
        s_add_u32 s{sT0}, s{sT0}, {WS_PART}
        s_mov_b32 s{rX}, s{sOut}
        s_mov_b32 s{rX+1}, s{sOut+1}
        s_mov_b32 s{rX+2}, {512*576*2}
        s_mov_b32 s{rX+3}, 0x20000
        v_lshrrev_b32 v4, 6, v2
        v_mul_u32_u24 v5, 57, v4
        v_lshrrev_b32 v5, 9, v5
        v_mul_u32_u24 v6, 9, v5
        v_sub_u32 v6, v4, v6
        v_and_b32 v4, 15, v2
        v_lshl_add_u32 v4, v5, 4, v4
        s_lshl_b32 s{sT1}, s{sB}, 6
        v_add_u32 v4, s{sT1}, v4
        s_movk_i32 s{sT1}, 1152
        v_mul_u32_u24 v4, s{sT1}, v4
        v_lshlrev_b32 v6, 5, v6
        v_add_u32 v4, v4, v6
        v_bfe_u32 v6, v2, 4, 2
        v_lshl_add_u32 v4, v6, 3, v4
        s_mul_i32 s{sT1}, s{sJj}, 288
        v_add_u32 v4, s{sT1}, v4
        s_mov_b32 s{sT2}, 0
        """)
        if o.prepoll == 1:
                p(f"""
                s_mov_b64 s[56:57], exec
                v_readfirstlane_b32 s{sT1}, v3
                v_mul_u32_u24 v6, {32*36864 // 1024}, v{vL}
                v_lshlrev_b32 v6, 10, v6
                v_add_u32 v6, s{sT1}, v6
                v_mov_b32 v9, s{sTag}
                s_mov_b64 exec, 0xff
                buffer_load_dword v10, v6, s[{rO}:{rO+3}], s{sT0} offen sc1
                buffer_load_dword v11, v6, s[{rO}:{rO+3}], s{sT0} offen sc1
                """)
                p.label("T_PP")
                p(f"""
                s_waitcnt vmcnt(1)
                v_xor_b32 v8, v10, v9
                v_and_b32 v8, 0xfff, v8
                v_cmp_ne_u32 vcc, 0, v8
                s_cbranch_vccz T_PPD
                buffer_load_dword v10, v6, s[{rO}:{rO+3}], s{sT0} offen sc1
                s_add_u32 s{sT2}, s{sT2}, 1
                s_waitcnt vmcnt(1)
                v_xor_b32 v8, v11, v9
                v_and_b32 v8, 0xfff, v8
                v_cmp_ne_u32 vcc, 0, v8
                s_cbranch_vccz T_PPD
                buffer_load_dword v11, v6, s[{rO}:{rO+3}], s{sT0} offen sc1
                s_cmp_lt_u32 s{sT2}, {SPIN}
                s_cbranch_scc1 T_PP
                """)
                p.label("T_PPD")
                p(f"""
                s_mov_b64 exec, s[56:57]
                s_mov_b32 s{sT2}, 0
                """)
        elif o.prepoll == 2:
            p(f"""
            s_cmp_eq_u32 s{sWave}, 0
            s_cbranch_scc0 T_PPD
            s_mov_b64 s[56:57], exec
            s_mul_i32 s{sT1}, s{sXc}, {288*16}
            v_and_b32 v6, 7, v{vL}
            v_mul_u32_u24 v6, {32*36864 // 1024}, v6
            v_lshlrev_b32 v6, 10, v6
            v_add_u32 v6, s{sT1}, v6
            v_lshrrev_b32 v8, 3, v{vL}
            v_mul_u32_u24 v8, {287*16}, v8
            v_add_u32 v6, v6, v8
            v_mov_b32 v9, s{sTag}
            s_mov_b64 exec, 0xffff
            buffer_load_dword v10, v6, s[{rO}:{rO+3}], s{sT0} offen sc1
            """)
            p.label("T_PP")
            p(f"""
            s_waitcnt vmcnt(0)
            v_xor_b32 v8, v10, v9
            v_and_b32 v8, 0xfff, v8
            v_cmp_ne_u32 vcc, 0, v8
            s_cbranch_vccz T_PPE
            buffer_load_dword v10, v6, s[{rO}:{rO+3}], s{sT0} offen sc1
            s_add_u32 s{sT2}, s{sT2}, 1
            s_cmp_lt_u32 s{sT2}, {SPIN}
            s_cbranch_scc1 T_PP
            """)
            p.label("T_PPE")
            p(f"""
            s_mov_b64 exec, s[56:57]
            s_mov_b32 s{sT2}, 0
            """)
            p.label("T_PPD")
            p("s_barrier")
        p.label("T_POLL2")
        p(f"s_mov_b32 s{sT1}, s{sT0}")
        for s in range(8):
            p(f"buffer_load_dwordx4 {rg(vX+4*s,4)}, v3, s[{rO}:{rO+3}], s{sT1} offen sc1")
            if s < 7: p(f"s_add_u32 s{sT1}, s{sT1}, {32*36864}")
        p(f"""
        s_add_u32 s{sT2}, s{sT2}, 1
        v_mov_b32 v6, 0
        """)
        for s in range(8):
            p(f"s_waitcnt vmcnt({7-s})")
            for e in range(0, 4, 2):
                p(f"v_xor_b32 v8, s{sTag+e}, v{vX+4*s+e}")
                p(f"v_xor_b32 v9, s{sTag+e+1}, v{vX+4*s+e+1}")
                p(f"v_or3_b32 v6, v6, v8, v9")
        p(f"""
        v_and_b32 v6, 0xfff, v6
        v_cmp_ne_u32 vcc, 0, v6
        s_cmp_lt_u32 s{sT2}, {SPIN}
        s_cbranch_scc0 T_SUM
        s_cbranch_vccnz T_POLL2
        """)
        p.label("T_SUM")
        for s in range(8):
            for e in range(4):
                p(f"v_and_b32 v{vX+4*s+e}, v7, v{vX+4*s+e}")
        for s in range(1, 8):
            for e in range(4):
                p(f"v_add_f32 v{vX+e}, v{vX+e}, v{vX+4*s+e}")
        p(f"""
        v_cvt_pk_bf16_f32 v8, v{vX}, v{vX+1}
        v_cvt_pk_bf16_f32 v9, v{vX+2}, v{vX+3}
        buffer_store_dwordx2 v[8:9], v4, s[{rX}:{rX+3}], 0 offen{' sc1' if o.outsc else ''}
        s_mov_b64 exec, s[58:59]
        """)
    p.label("T_DONE")
    if o.stamps:
        p("s_waitcnt vmcnt(0)")
        p("s_memrealtime s[90:91]" if o.stamps != 2 else "s_memtime s[90:91]")
        p("s_waitcnt lgkmcnt(0)")
        gen_flush_final(p, o, sWs)
    p("s_branch K1_END")

def gemm_half(p, vAcc, vB, vF, ad):
    HA, HB = [0, 1, 2, 3, 4], [5, 6, 7, 8]
    def reads(kk, half):
        for nt in half:
            f = vF + 4 * nt
            p(f"ds_read_b64_tr_b16 {rg(f,2)}, v{ad} offset:{kk*9216+nt*32}")
            p(f"ds_read_b64_tr_b16 {rg(f+2,2)}, v{ad} offset:{kk*9216+4608+nt*32}")
    def mfmas(kk, half, wait):
        p(wait)
        for nt in half:
            f = vF + 4 * nt
            p(f"{MF16} {rg(vAcc+4*nt,4)}, {rg(f,4)}, {rg(vB+4*kk,4)}, {rg(vAcc+4*nt,4)}")
    reads(0, HA)
    for kk in range(4):
        reads(kk, HB)
        mfmas(kk, HA, f"s_waitcnt lgkmcnt({2*len(HB)})")
        if kk < 3:
            reads(kk + 1, HA)
            mfmas(kk, HB, f"s_waitcnt lgkmcnt({2*len(HA)})")
        else:
            mfmas(kk, HB, "s_waitcnt lgkmcnt(0)")

def gemm_opt(p, vAcc, vB, vF, vAd, vLA, sKh2, sT, wo_addr):
    HA, HB = [0, 1, 2, 3, 4], [5, 6, 7, 8]
    for half in range(2):
        c0, c1 = wo_addr(4 * half), wo_addr(8 + 4 * half)
        for kk in range(4):
            assert wo_addr(4 * half + kk) == c0 + kk * 9216 and wo_addr(8 + 4 * half + kk) == c1 + kk * 9216
        p(f"""
        s_mov_b32 s{sT}, {c1}
        s_cmp_eq_u32 s{sKh2}, 0
        s_cselect_b32 s{sT}, {c0}, s{sT}
        v_add_u32 v{vAd + half}, s{sT}, v{vLA}
        """)
    def reads(kk, half):
        ad = vAd + (kk // 4); off = (kk % 4) * 9216
        for nt in half:
            f = vF + 4 * nt
            p(f"ds_read_b64_tr_b16 {rg(f,2)}, v{ad} offset:{off+nt*32}")
            p(f"ds_read_b64_tr_b16 {rg(f+2,2)}, v{ad} offset:{off+4608+nt*32}")
    def mfmas(kk, half, wait):
        p(wait)
        for nt in half:
            f = vF + 4 * nt
            p(f"{MF16} {rg(vAcc+4*nt,4)}, {rg(f,4)}, {rg(vB+4*kk,4)}, {rg(vAcc+4*nt,4)}")
    reads(0, HA)
    for kk in range(8):
        reads(kk, HB)
        mfmas(kk, HA, f"s_waitcnt vmcnt({7-kk}) lgkmcnt({2*len(HB)})")
        if kk < 7:
            reads(kk + 1, HA)
            mfmas(kk, HB, f"s_waitcnt lgkmcnt({2*len(HA)})")
        else:
            mfmas(kk, HB, "s_waitcnt lgkmcnt(0)")

def emit(o):
    name = 'standalone__gqa_block_cached__near_ridge_kernel'
    p = gen_main(o)
    out = [HDR, "; @launch grid=(256,1,1) block=(512,1,1) lds=163840",
           '.amdgcn_target "amdgcn-amd-amdhsa--gfx950"', '.text']
    n = p.fix_hazards()
    errs = p.lint_waits()
    for e in errs[:20]:
        print(f"LINT: {e}", file=sys.stderr)
    nv, ns = p.max_regs()
    print(f"{name}: {len(p.ins)} instrs, vgpr {nv}, sgpr {ns}, nops inserted {n}", file=sys.stderr)
    out.append(f".globl {name}\n.p2align 8\n.type {name},@function\n{name}:")
    out.append(p.text())
    out.append(kd(name, max(nv, 8), max(ns, 16)))
    return '\n'.join(out) + '\n'

if __name__ == '__main__':
    ap = argparse.ArgumentParser()
    ap.add_argument('-o', default='standalone__gqa_block_cached__near_ridge.s')
    for k, d in OPTS.items():
        ap.add_argument('--' + k, type=int, default=d)
    a = ap.parse_args()
    o = Opt()
    for k in OPTS:
        setattr(o, k, getattr(a, k))
    open(a.o, 'w').write(emit(o))
```

```python
import sys, argparse
from asmlib import Prog
import gen
from gen import f32bits, SCALE_LOG2E, kd, HEADER
from gen import stamp as _stamp
import gen9
from gen9 import WS_O, WS_PART, WS_FLAG, WS_SIZE, MF, MF16, rg, SPIN, gen_flush_final

STSETS = {0: {0:0,1:1,2:2,3:3,4:4,5:5,6:6,7:7,8:8,9:9},
          1: {5:0, 'e1':1, 'e2':2, 'e3':3, 'e4':4, 6:5, 7:6, 'g0':7, 8:8, 9:9}}
def stamp(p, o, name):
    m = STSETS[getattr(o, 'stset', 0)]
    if name in m: _stamp(p, o, m[name])

class Opt(gen.Opt):
    pass
OPTS = dict(roth=0, rotk=5, rot=1, wide=1, pk=1, gopt=1, e3=1, prio=0, skew=0, icpf=6, outsc=1, prepoll=1, fast=1, stset=0, nt=1, dbg=0, stamps=0, stampwave=0, wt=1, kdel=5, wotat=7, lead=8, nearly=12)

HDR = """; GQA block: q = x@wq ; softmax(q k^T / sqrt(128)) v ; out = o@wo   (B=8, Sq=64, Hq=32, Hkv=16, Sk=1024, Dh=128, D=576)
;   The launch nonce is published by workgroup 0 in d_debug[0:1] (zero at launch); all cross-workgroup data uses sc1 stores and loads."""

SLOT = 16384
NSLOT = 10

def gen_main(o):
    p = Prog()
    NT = ' nt' if o.nt else ''
    sX, sK, sV, sWq, sWs, sWo = 4, 6, 8, 10, 12, 14
    rK, rV, rW, rX, rO = 16, 20, 24, 28, 32
    sWave, sB, sH, sXc, sQh, sKh = 36, 37, 38, 39, 40, 41
    sRK, sRV, sKoff, sVoff, sCnt, sJj = 42, 43, 44, 45, 46, 47
    sC, sT0, sT1, sT2 = 48, 49, 50, 51
    sLw, sWg, sIss, sL4096, sGof = 53, 54, 55, 56, 57
    sHalf = 94
    sPar, sIssB = 98, 99
    vOa, vOb = 40, 44
    sOut, sDbg, sN, sTag = 80, 82, 84, 86
    vL = 1
    vLW = 10
    vLX = 12
    vLK = 13
    vVA = 14
    vTn = 18
    vNon = 20
    vLV = 24
    vKA = 28
    vM, vThr, vL0, vL1 = 36, 37, 38, 39
    vQ = 40
    vS = [72, 88]
    vP = 104
    vKf = 112
    vVf = 144
    vO = 176
    QB = [112, 176]
    vKo = 10; vVo = 14; vWo = 24; vXo = 28; vWoA, vWoB, vWoC = 30, 31, 32
    vDum = 249
    vOff = 240
    S_ = [i * SLOT for i in range(NSLOT)]
    QS = [139264, 65536, 90112, 114688]
    QX = S_[9]
    lab = [0]
    def nl(s):
        lab[0] += 1
        return f"K1_{s}{lab[0]}"
    nbar = {'c': 0, 'l': 0}
    def bar(who):
        nbar[who] += 1
        p("s_barrier")
    LEAD = o.lead
    assert LEAD in (4, 6, 8) and not o.skew
    HL = LEAD // 2
    NR = 14 - HL
    POS = []
    for n in range(33):
        if n == 0: POS.append((1, 0))
        elif n % 2 == 1: POS.append((1, (n + 1) // 2))
        else: POS.append((0, (n - 2) // 2))
    NEARLY = o.nearly
    def wo_addr(G): return (49152 + G * 9216) if G < 12 else (G - 12) * 9216
    EX, STAT, NONL = 0, 36864, 38912

    p(f"""
    s_cmp_ge_u32 s2, 256
    s_cbranch_scc1 K1_END
    s_load_dwordx4 s[4:7], s[0:1], 0
    s_load_dwordx4 s[8:11], s[0:1], 16
    s_load_dwordx2 s[12:13], s[0:1], 56
    s_load_dwordx2 s[14:15], s[0:1], 32
    s_load_dwordx4 s[80:83], s[0:1], 40
    """)
    if o.icpf:
        ICL = o.icpf
        p("s_getpc_b64 s[90:91]")
        p.label("K1_PCREF")
        p(f"""
        s_mov_b32 s93, K1_END-K1_PCREF
        v_cmp_gt_u32 vcc, {ICL}, v0
        s_and_saveexec_b64 s[58:59], vcc
        s_cbranch_execz K1_ICD
        s_lshr_b32 s92, s2, 3
        s_mul_i32 s92, s92, {ICL*128}
        v_lshlrev_b32 v2, 7, v0
        v_add_u32 v2, s92, v2
        v_min_u32 v2, s93, v2
        global_load_dword v{vDum}, v2, s[90:91]
        """)
        p.label("K1_ICD")
        p("s_mov_b64 exec, s[58:59]")
    p(f"""
    v_and_b32 v{vL}, 63, v0
    v_lshrrev_b32 v2, 6, v0
    s_and_b32 s{sXc}, s2, 7
    s_lshr_b32 s{sT1}, s2, 3
    v_readfirstlane_b32 s{sWave}, v2
    s_lshr_b32 s{sB}, s{sT1}, 2
    s_and_b32 s{sJj}, s{sT1}, 3
    s_lshl_b32 s{sH}, s{sXc}, 2
    s_add_u32 s{sH}, s{sH}, s{sJj}
    s_lshl_b32 s{sWg}, s{sB}, 5
    s_add_u32 s{sWg}, s{sWg}, s{sH}
    v_and_b32 v2, 15, v{vL}
    v_lshrrev_b32 v3, 4, v{vL}
    v_lshrrev_b32 v4, 2, v2
    v_and_b32 v5, 3, v2
    v_lshrrev_b32 v6, 5, v{vL}
    v_and_b32 v7, 31, v{vL}
    s_cmp_lt_u32 s{sWave}, 4
    s_cbranch_scc1 K1_COMPUTE
    """)

    vq = []
    def vissue(tag, n): vq.extend([tag] * n)
    def vneed(*tags):
        idx = [i for i, t in enumerate(vq) if t in tags]
        if not idx: return 63
        n = len(vq) - 1 - idx[-1]
        del vq[:idx[-1] + 1]
        return min(n, 63)
    if o.prio: p(f"s_setprio {o.prio}")
    p(f"""
    s_and_b32 s{sLw}, s{sWave}, 3
    s_lshl_b32 s{sL4096}, s{sLw}, 12
    v_lshlrev_b32 v8, 2, v3
    v_xor_b32 v8, v8, v2
    v_lshlrev_b32 v8, 4, v8
    v_lshl_add_u32 v{vVo}, v3, 8, v8
    v_lshl_add_u32 v{vWo}, v3, 13, v8
    """)
    for u in range(1, 4):
        p(f"v_add_u32 v{vWo+u}, {u*31744}, v{vWo}")
    p(f"""
    s_lshl_b32 s{sT0}, s{sLw}, 4
    s_movk_i32 s{sT1}, 1152
    """)
    for u in range(2):
        p(f"""
        v_lshrrev_b32 v8, 3, v{vL}
        v_add_u32 v8, s{sT0}, v8
        v_add_u32 v8, {8*u}, v8
        v_mul_lo_u32 v8, v8, s{sT1}
        v_add_u32 v9, {4*u}, v3
        v_and_b32 v9, 7, v9
        v_and_b32 v{vXo+u}, 7, v{vL}
        v_xor_b32 v9, v9, v{vXo+u}
        v_lshl_add_u32 v8, v9, 4, v8
        v_subrev_u32 v{vXo+u}, {u*1024}, v8
        """)
    p("s_waitcnt lgkmcnt(0)")
    stamp(p, o, 0)
    p(f"""
    s_lshl_b32 s{sT0}, s{sH}, 8
    s_add_u32 s{rW}, s{sWq}, s{sT0}
    s_addc_u32 s{rW+1}, s{sWq+1}, 0
    s_sub_u32 s{rW+2}, {576*8192}, s{sT0}
    s_mov_b32 s{rW+3}, 0x20000
    s_mul_i32 s{sT0}, s{sB}, {64*1152}
    s_add_u32 s{rX}, s{sX}, s{sT0}
    s_addc_u32 s{rX+1}, s{sX+1}, 0
    s_mov_b32 s{rX+2}, {64*1152}
    s_mov_b32 s{rX+3}, 0x20000
    """)
    def issue_chunk(c):
        qs = QS[c % 4]
        p(f"""
        s_lshl_b32 s{sT0}, s{sLw}, 17
        s_add_u32 s{sT0}, s{sT0}, {c*524288}
        s_add_u32 m0, s{sL4096}, {qs}
        """)
        for u in range(4):
            p(f"buffer_load_dwordx4 v{vWo+u}, s[{rW}:{rW+3}], s{sT0} offen offset:{u*1024} lds")
        p(f"""
        s_lshr_b32 s{sT1}, s{sL4096}, 1
        s_add_u32 m0, s{sT1}, {qs+16384}
        s_movk_i32 s{sT0}, {c*128}
        """)
        for u in range(2):
            p(f"buffer_load_dwordx4 v{vXo+u}, s[{rX}:{rX+3}], s{sT0} offen offset:{u*1024} lds")
        vissue(('C', c), 6)
    if o.wt:
        p(f"""
        s_cmp_eq_u32 s{sWave}, 4
        s_cbranch_scc0 K1_WT1
        v_lshrrev_b32 v8, 1, v{vL}
        v_and_b32 v9, 1, v{vL}
        v_lshlrev_b32 v8, 13, v8
        v_lshl_add_u32 v8, v9, 7, v8
        s_mul_i32 s{sT0}, s{sB}, {72*8192}
        buffer_load_dword v{vDum}, v8, s[{rW}:{rW+3}], s{sT0} offen
        s_add_u32 s{sT0}, s{sT0}, {32*8192}
        buffer_load_dword v{vDum}, v8, s[{rW}:{rW+3}], s{sT0} offen
        s_add_u32 s{sT0}, s{sT0}, {32*8192}
        v_cmp_gt_u32 vcc, 16, v{vL}
        s_and_saveexec_b64 s[58:59], vcc
        buffer_load_dword v{vDum}, v8, s[{rW}:{rW+3}], s{sT0} offen
        s_mov_b64 exec, s[58:59]
        """)
        p.label("K1_WT1")
        p(f"""
        s_cmp_eq_u32 s{sWave}, 5
        s_cbranch_scc0 K1_WT2
        v_lshlrev_b32 v9, 7, v{vL}
        s_mul_i32 s{sT0}, s{sJj}, 18432
        buffer_load_dword v{vDum}, v9, s[{rX}:{rX+3}], s{sT0} offen
        s_add_u32 s{sT0}, s{sT0}, 8192
        buffer_load_dword v{vDum}, v9, s[{rX}:{rX+3}], s{sT0} offen
        s_add_u32 s{sT0}, s{sT0}, 8192
        v_cmp_gt_u32 vcc, 16, v{vL}
        s_and_saveexec_b64 s[58:59], vcc
        buffer_load_dword v{vDum}, v9, s[{rX}:{rX+3}], s{sT0} offen
        s_mov_b64 exec, s[58:59]
        """)
        p.label("K1_WT2")
    for c in range(4):
        issue_chunk(c)
    p(f"""
    s_cmp_eq_u32 s2, 0
    s_cbranch_scc0 K1_NON
    s_cmp_eq_u32 s{sWave}, 7
    s_cbranch_scc0 K1_NON
    s_memrealtime s[{sN}:{sN+1}]
    s_waitcnt lgkmcnt(0)
    s_or_b32 s{sN}, s{sN}, 1
    v_mov_b32 v8, s{sN}
    v_mov_b32 v9, s{sN+1}
    v_mov_b32 v{vNon}, 0
    v_cmp_eq_u32 vcc, 0, v{vL}
    s_and_saveexec_b64 s[58:59], vcc
    global_store_dwordx2 v{vNon}, v[8:9], s[{sDbg}:{sDbg+1}] sc1
    s_mov_b64 exec, s[58:59]
    """)
    p.label("K1_NON")
    p(f"""
    s_lshl_b32 s{sT0}, s{sB}, 4
    s_lshr_b32 s{sT1}, s{sH}, 1
    s_add_u32 s{sT0}, s{sT0}, s{sT1}
    s_lshl_b32 s{sT0}, s{sT0}, 18
    s_add_u32 s{rK}, s{sK}, s{sT0}
    s_addc_u32 s{rK+1}, s{sK+1}, 0
    s_mov_b32 s{rK+2}, 0x40000
    s_mov_b32 s{rK+3}, 0x20000
    s_add_u32 s{rV}, s{sV}, s{sT0}
    s_addc_u32 s{rV+1}, s{sV+1}, 0
    s_mov_b32 s{rV+2}, 0x40000
    s_mov_b32 s{rV+3}, 0x20000
    s_lshr_b32 s{sT0}, s{sLw}, 1
    s_lshl_b32 s{sHalf}, s{sT0}, 17
    s_and_b32 s{sT1}, s{sLw}, 1
    s_lshl_b32 s{sGof}, s{sT1}, 12
    """)
    if o.rot:
        p(f"""
        s_lshr_b32 s{sT0}, s{sH}, 1
        s_mul_i32 s{sT1}, s{sB}, {o.rot}
        s_mul_i32 s{sT0}, s{sT0}, {o.rotk}
        s_add_u32 s{sT0}, s{sT0}, s{sT1}
        s_lshr_b32 s{sT1}, s{sLw}, 1
        s_mul_i32 s{sT1}, s{sT1}, {o.roth}
        s_add_u32 s{sT0}, s{sT0}, s{sT1}
        s_and_b32 s{sT0}, s{sT0}, 15
        s_lshl_b32 s{sT0}, s{sT0}, 13
        s_add_u32 s{sGof}, s{sGof}, s{sT0}
        """)
    for u in range(4):
        p(f"""
        v_add_u32 v8, {4*u}, v3
        v_xor_b32 v8, v8, v2
        v_lshlrev_b32 v8, 4, v8
        v_lshl_add_u32 v{vKo+u}, v3, 8, v8
        """)
    p(f"""
    s_movk_i32 s{sT0}, 3641
    s_movk_i32 s{sT1}, 1152
    """)
    for k, (reg, addi) in enumerate(((vWoA, 0), (vWoB, 4), (vWoC, None))):
        if addi is None:
            p(f"v_add_u32 v8, {64*8}, v{vL}")
        else:
            p(f"""
            s_add_u32 s{sT2}, s{sLw}, {addi}
            s_lshl_b32 s{sT2}, s{sT2}, 6
            v_add_u32 v8, s{sT2}, v{vL}
            """)
        p(f"""
        v_mul_u32_u24 v9, s{sT0}, v8
        v_lshrrev_b32 v9, 16, v9
        v_mul_u32_u24 v{reg}, 18, v9
        v_sub_u32 v{reg}, v8, v{reg}
        v_mul_u32_u24 v9, s{sT1}, v9
        v_lshl_add_u32 v{reg}, v{reg}, 4, v9
        """)

    for i in range(9): p(f"v_mov_b32 v{vOff+i}, 0")
    def issue_pos(n):
        isK, t = POS[n]
        p(f"""
        s_add_u32 s{sT0}, s{sGof}, {t*8192}
        s_and_b32 s{sT0}, s{sT0}, 0x1ffff
        s_or_b32 s{sT0}, s{sT0}, s{sHalf}
        s_add_u32 m0, s{sL4096}, {S_[n % NSLOT]}
        """)
        for u in range(4):
            if isK: p(f"buffer_load_dwordx4 v{vKo+u}, s[{rK}:{rK+3}], s{sT0} offen offset:{u*1024}{NT} lds")
            else:   p(f"buffer_load_dwordx4 v{vVo}, s[{rV}:{rV+3}], s{sT0} offen offset:{u*1024}{NT} lds")
        vissue(('P', n), 4)
    def wo_srd():
        p(f"""
        s_mul_i32 s{sT0}, s{sXc}, {512*1152}
        s_mul_i32 s{sT1}, s{sJj}, 288
        s_add_u32 s{sT0}, s{sT0}, s{sT1}
        s_add_u32 s{rW}, s{sWo}, s{sT0}
        s_addc_u32 s{rW+1}, s{sWo+1}, 0
        s_sub_u32 s{rW+2}, {4096*1152}, s{sT0}
        s_mov_b32 s{rW+3}, 0x20000
        """)
    def early_group(G):
        base = wo_addr(G)
        p(f"""
        s_lshl_b32 s{sT1}, s{sLw}, 10
        s_add_u32 m0, s{sT1}, {base}
        s_mov_b32 s{sT0}, {G*36864}
        buffer_load_dwordx4 v{vWoA}, s[{rW}:{rW+3}], s{sT0} offen lds
        s_add_u32 m0, s{sT1}, {base+4096}
        s_cmp_eq_u32 s{sLw}, 0
        buffer_load_dwordx4 v{vWoB}, s[{rW}:{rW+3}], s{sT0} offen lds
        """)
        l = nl('EG')
        p(f"s_cbranch_scc0 {l}")
        p(f"s_mov_b32 m0, {base+8192}")
        p(f"buffer_load_dwordx4 v{vWoC}, s[{rW}:{rW+3}], s{sT0} offen lds")
        p.label(l)
        vissue(('G', G), 2)
    def wo_touch():
        l = nl('WOT')
        p(f"""
        s_cmp_eq_u32 s{sWave}, 6
        s_cbranch_scc0 {l}
        s_mul_i32 s{sT0}, s{sXc}, {512*1152}
        s_add_u32 s{rX}, s{sWo}, s{sT0}
        s_addc_u32 s{rX+1}, s{sWo+1}, 0
        s_mov_b32 s{rX+2}, {512*1152}
        s_mov_b32 s{rX+3}, 0x20000
        s_lshr_b32 s{sT0}, s2, 3
        s_mul_i32 s{sT0}, s{sT0}, 18432
        v_lshlrev_b32 v2, 7, v{vL}
        buffer_load_dword v{vDum}, v2, s[{rX}:{rX+3}], s{sT0} offen
        s_add_u32 s{sT0}, s{sT0}, 8192
        buffer_load_dword v{vDum}, v2, s[{rX}:{rX+3}], s{sT0} offen
        s_add_u32 s{sT0}, s{sT0}, 8192
        v_cmp_gt_u32 vcc, 16, v{vL}
        s_and_saveexec_b64 s[58:59], vcc
        buffer_load_dword v{vDum}, v2, s[{rX}:{rX+3}], s{sT0} offen
        s_mov_b64 exec, s[58:59]
        """)
        p.label(l)

    for c in range(9):
        p(f"s_waitcnt vmcnt({vneed(('C', c))})")
        bar('l')
        if c == 0: stamp(p, o, 1)
        if 1 <= c <= 5: issue_chunk(c + 3)
        if c == o.kdel: issue_pos(0); issue_pos(1)
        if c == o.kdel + 1: issue_pos(2); issue_pos(3)
    bar('l')
    for n in range(4, LEAD): issue_pos(n)
    bar('l')
    p(f"s_waitcnt vmcnt({vneed(('P', 0))})")
    bar('l')
    issue_pos(LEAD)
    p(f"s_waitcnt vmcnt({vneed(('P', 1))})")
    bar('l')
    issue_pos(LEAD + 1)
    VQ = {0: list(vq), 1: list(vq)}
    def need_in(q, tag):
        idx = [i for i, t in enumerate(q) if t == tag]
        if not idx: return 63
        n = len(q) - 1 - idx[-1]
        del q[:idx[-1] + 1]
        return min(n, 63)
    Wa, Wb = [], []
    pars = (0, 1) if o.skew else (0,)
    for i in range(NR):
        Wa.append(min(need_in(VQ[q], ('P', 2 * i + 2)) for q in pars))
        for q in pars: VQ[q].extend([('P', 2 * i + 2 + LEAD + q)] * 4)
        Wb.append(min(need_in(VQ[q], ('P', 2 * i + 3)) for q in pars))
        for q in pars: VQ[q].extend([('P', 2 * i + 3 + LEAD - q)] * 4)
    wa, wb = min(Wa), min(Wb)
    print('loader loop waits', Wa, Wb, file=sys.stderr)
    p(f"""
    s_and_b32 s{sPar}, s{sH}, {1 if o.skew else 0}
    s_mov_b32 s{sIss}, {S_[(2+LEAD) % NSLOT]}
    s_mov_b32 s{sIssB}, {S_[(3+LEAD) % NSLOT]}
    s_add_u32 s{sVoff}, s{sGof}, {HL*8192}
    s_and_b32 s{sVoff}, s{sVoff}, 0x1ffff
    s_or_b32 s{sVoff}, s{sVoff}, s{sHalf}
    s_add_u32 s{sKoff}, s{sGof}, {(2+HL)*8192}
    s_and_b32 s{sKoff}, s{sKoff}, 0x1ffff
    s_or_b32 s{sKoff}, s{sKoff}, s{sHalf}
    s_mov_b32 s{sCnt}, 0
    """)
    for u in range(4):
        p(f"v_mov_b32 v{vOa+u}, v{vVo}")
        p(f"v_mov_b32 v{vOb+u}, v{vKo+u}")
    if o.skew:
        p(f"""
        s_cmp_eq_u32 s{sPar}, 0
        s_cbranch_scc1 K1_PAR0
        s_mov_b32 s{sIss}, {S_[1]}
        s_mov_b32 s{sIssB}, {S_[0]}
        s_add_u32 s{sVoff}, s{sGof}, {6*8192}
        s_add_u32 s{sKoff}, s{sGof}, {4*8192}
        s_mov_b32 s{sT0}, s{rK}
        s_mov_b32 s{sT1}, s{rK+1}
        s_mov_b32 s{rK}, s{rV}
        s_mov_b32 s{rK+1}, s{rV+1}
        s_mov_b32 s{rV}, s{sT0}
        s_mov_b32 s{rV+1}, s{sT1}
        """)
        for u in range(4):
            p(f"v_mov_b32 v{vOa+u}, v{vKo+u}")
            p(f"v_mov_b32 v{vOb+u}, v{vVo}")
        p.label("K1_PAR0")
    def adv_iss(sreg):
        p(f"""
        s_add_u32 s{sreg}, s{sreg}, {2*SLOT}
        s_cmp_ge_u32 s{sreg}, {NSLOT*SLOT}
        s_cselect_b32 s{sT0}, {NSLOT*SLOT}, 0
        s_sub_u32 s{sreg}, s{sreg}, s{sT0}
        """)
    p.label("K1_LLOOP")
    p(f"s_waitcnt vmcnt({wa})")
    p("s_barrier")
    p(f"s_add_u32 m0, s{sIss}, s{sL4096}")
    for u in range(4):
        p(f"buffer_load_dwordx4 v{vOa+u}, s[{rV}:{rV+3}], s{sVoff} offen offset:{u*1024}{NT} lds")
    adv_iss(sIss)
    p(f"s_add_u32 s{sVoff}, s{sVoff}, 8192")
    p(f"s_and_b32 s{sVoff}, s{sVoff}, 0x1ffff")
    p(f"s_or_b32 s{sVoff}, s{sVoff}, s{sHalf}")
    p(f"s_waitcnt vmcnt({wb})")
    p("s_barrier")
    p(f"s_add_u32 m0, s{sIssB}, s{sL4096}")
    for u in range(4):
        p(f"buffer_load_dwordx4 v{vOb+u}, s[{rK}:{rK+3}], s{sKoff} offen offset:{u*1024}{NT} lds")
    adv_iss(sIssB)
    p(f"s_add_u32 s{sKoff}, s{sKoff}, 8192")
    p(f"s_and_b32 s{sKoff}, s{sKoff}, 0x1ffff")
    p(f"s_or_b32 s{sKoff}, s{sKoff}, s{sHalf}")
    l = nl('WTT')
    p(f"s_cmp_eq_u32 s{sCnt}, {o.wotat}")
    p(f"s_cbranch_scc0 {l}")
    wo_touch()
    p.label(l)
    p(f"""
    s_add_u32 s{sCnt}, s{sCnt}, 1
    s_cmp_lt_u32 s{sCnt}, {NR}
    s_cbranch_scc1 K1_LLOOP
    """)
    nbar['l'] += 2 * NR
    if o.skew:
        p(f"""
        s_cmp_eq_u32 s{sPar}, 0
        s_cbranch_scc1 K1_PAR2
        s_mov_b32 s{sT0}, s{rK}
        s_mov_b32 s{sT1}, s{rK+1}
        s_mov_b32 s{rK}, s{rV}
        s_mov_b32 s{rK+1}, s{rV+1}
        s_mov_b32 s{rV}, s{sT0}
        s_mov_b32 s{rV+1}, s{sT1}
        """)
        p.label("K1_PAR2")
    wo_srd()
    p(f"""
    s_cmp_eq_u32 s{sWave}, 7
    s_cbranch_scc0 K1_NL
    v_mov_b32 v8, 0
    global_load_dwordx2 v[{vNon}:{vNon+1}], v8, s[{sDbg}:{sDbg+1}] sc1
    """)
    p.label("K1_NL")
    sched0 = {('a', 11): [0], ('b', 11): [1, 2], ('a', 12): [3, 4], ('b', 12): [5, 6], ('a', 13): [7], ('b', 13): [8, 9], ('a', 14): [10, 11]}
    lastv = 15 - HL
    order = [(t, i) for i in range(10, 15) for t in ('a', 'b')]
    sched = {}
    for key in order:
        for G in sched0.get(key, []):
            k2 = key
            if (key[1], key[0]) < (lastv, 'a'): k2 = ('a', lastv)
            sched.setdefault(k2, []).append(G)
    def issue_pos_par(n, par):
        if par is None or not o.skew:
            sv = list(vq); issue_pos(n); del vq[:]; vq.extend(sv)
            for q in pars: VQ[q].extend([('P', n)] * 4)
            return
        l = nl('IP')
        p(f"s_cmp_eq_u32 s{sPar}, {par}")
        p(f"s_cbranch_scc0 {l}")
        sv = list(vq); issue_pos(n); del vq[:]; vq.extend(sv)
        p.label(l)
        VQ[par].extend([('P', n)] * 4)
    def eg(G):
        sv = list(vq); early_group(G); del vq[:]; vq.extend(sv)
        for q in pars: VQ[q].extend([('G', G)] * 2)
    for i in range(NR, 16):
        p(f"s_waitcnt vmcnt({min(need_in(VQ[q], ('P', 2 * i + 2)) for q in pars)})")
        bar('l')
        if i + HL <= 15: issue_pos_par(2 * i + 2 + LEAD, 0 if o.skew else None)
        if not (o.skew and i == 11):
            for G in sched.get(('a', i), []):
                if G < NEARLY: eg(G)
        if i <= 13:
            p(f"s_waitcnt vmcnt({min(need_in(VQ[q], ('P', 2 * i + 3)) for q in pars)})")
            bar('l')
            if o.skew and i <= 11: issue_pos_par(2 * i + 10, 1)
            if o.skew and i == 11:
                for G in sched.get(('a', i), []):
                    if G < NEARLY: eg(G)
            for G in sched.get(('b', i), []):
                if G < NEARLY: eg(G)
    p(f"""
    s_mov_b32 s{rO}, s{sWs}
    s_mov_b32 s{rO+1}, s{sWs+1}
    s_mov_b32 s{rO+2}, {WS_SIZE}
    s_mov_b32 s{rO+3}, 0x20000
    """)
    bar('l')
    p(f"""
    s_cmp_eq_u32 s{sWave}, 7
    s_cbranch_scc0 K1_NON2
    s_waitcnt vmcnt(0)
    s_mov_b32 s{sT2}, 0
    """)
    p.label("K1_NONP")
    p(f"""
    v_readfirstlane_b32 s{sT0}, v{vNon}
    s_add_u32 s{sT2}, s{sT2}, 1
    s_cmp_lg_u32 s{sT0}, 0
    s_cbranch_scc1 K1_NONOK
    s_cmp_lt_u32 s{sT2}, {SPIN}
    s_cbranch_scc0 K1_NONOK
    v_mov_b32 v8, 0
    global_load_dwordx2 v[{vNon}:{vNon+1}], v8, s[{sDbg}:{sDbg+1}] sc1
    s_waitcnt vmcnt(0)
    s_branch K1_NONP
    """)
    p.label("K1_NONOK")
    p(f"""
    v_mov_b32 v6, {NONL}
    ds_write_b64 v6, v[{vNon}:{vNon+1}]
    s_and_b32 s{sT0}, s{sWg}, 0xfc
    s_lshl_b32 s{sT0}, s{sT0}, 7
    s_add_u32 s{sT0}, s{sT0}, {WS_FLAG}
    v_and_b32 v12, 3, v{vL}
    v_lshlrev_b32 v13, 7, v12
    buffer_load_dword v11, v13, s[{rO}:{rO+3}], s{sT0} offen sc1
    s_waitcnt lgkmcnt(0)
    """)
    p.label("K1_NON2")
    bar('l')
    p(f"""
    v_mov_b32 v6, {NONL}
    ds_read_b64 v[8:9], v6
    s_cmp_eq_u32 s{sWave}, 7
    s_cbranch_scc0 K1_RDY
    s_waitcnt vmcnt(0)
    v_cmp_eq_u32 vcc, v11, v{vNon}
    v_cmp_eq_u32 s[58:59], s{sJj}, v12
    s_or_b64 vcc, vcc, s[58:59]
    s_cmp_eq_u64 vcc, -1
    s_cselect_b32 s{sT0}, {1 if o.fast else 0}, 0
    v_mov_b32 v12, s{sT0}
    v_mov_b32 v6, {NONL+8}
    ds_write_b32 v6, v12
    """)
    p.label("K1_RDY")
    if o.e3:
        bar('l')
        for G in range(NEARLY, 16): early_group(G)
    p("s_branch K1_TAIL")

    p.label("K1_COMPUTE")
    p(f"""
    s_and_b32 s{sQh}, s{sWave}, 1
    s_lshr_b32 s{sKh}, s{sWave}, 1
    s_mov_b32 s{sC}, 0x{f32bits(SCALE_LOG2E):08x}
    v_lshl_add_u32 v8, v6, 3, v4
    v_lshlrev_b32 v8, 8, v8
    v_lshrrev_b32 v9, 1, v5
    v_lshl_add_u32 v8, v9, 3, v8
    v_and_b32 v9, 1, v3
    v_lshlrev_b32 v9, 1, v9
    v_and_b32 v2, 1, v5
    v_add_u32 v9, v9, v2
    v_lshlrev_b32 v2, 2, v4
    s_lshl_b32 s{sT0}, s{sKh}, 3
    """)
    for a in range(2):
        p(f"""
        v_add_u32 v19, s{sT0}, v9
        v_xor_b32 v19, v19, v2
        v_lshl_add_u32 v{vLW+a}, v19, 4, v8
        s_add_u32 s{sT0}, s{sT0}, 4
        """)
    p(f"""
    s_lshl_b32 s{sT0}, s{sQh}, 5
    v_add_u32 v8, s{sT0}, v7
    v_lshrrev_b32 v9, 1, v8
    v_and_b32 v9, 7, v9
    v_xor_b32 v9, v9, v6
    v_lshlrev_b32 v9, 4, v9
    v_lshl_add_u32 v{vLX}, v8, 7, v9
    s_lshl_b32 s{sT0}, s{sKh}, 5
    v_add_u32 v8, s{sT0}, v7
    v_and_b32 v9, 15, v8
    v_xor_b32 v9, v9, v6
    v_lshlrev_b32 v9, 4, v9
    v_lshl_add_u32 v{vLK}, v8, 8, v9
    v_lshl_add_u32 v8, v6, 2, v4
    v_add_u32 v8, s{sT0}, v8
    v_lshlrev_b32 v8, 8, v8
    v_and_b32 v9, 1, v5
    v_lshl_add_u32 v8, v9, 3, v8
    v_and_b32 v9, 1, v3
    v_lshlrev_b32 v9, 1, v9
    v_lshrrev_b32 v2, 1, v5
    v_add_u32 v9, v9, v2
    v_lshlrev_b32 v2, 2, v4
    """)
    for a in range(4):
        p(f"""
        s_lshl_b32 s{sT1}, s{sKh}, 1
        s_add_u32 s{sT1}, s{sT1}, {a}
        s_and_b32 s{sT1}, s{sT1}, 3
        s_lshl_b32 s{sT1}, s{sT1}, 2
        v_add_u32 v19, s{sT1}, v9
        v_xor_b32 v19, v19, v2
        v_lshl_add_u32 v{vLV+a}, v19, 4, v8
        """)
    for i in range(32):
        p(f"v_mov_b32 v{vS[0]+i}, 0")
    p(f"""
    v_mov_b32 v{vM}, 0xf149f2ca
    v_mov_b32 v{vThr}, 0xf149f2ca
    v_mov_b32 v{vL0}, 0
    v_mov_b32 v{vL1}, 0
    """)
    def wo_voffs():
        p(f"""
        s_movk_i32 s{sT0}, 3641
        s_movk_i32 s{sT1}, 1152
        """)
        for i in range(9):
            p(f"""
            v_add_u32 v2, {64*i}, v{vL}
            v_mul_u32_u24 v3, s{sT0}, v2
            v_lshrrev_b32 v3, 16, v3
            v_mul_u32_u24 v4, 18, v3
            v_sub_u32 v4, v2, v4
            v_mul_u32_u24 v3, s{sT1}, v3
            v_lshl_add_u32 v3, v4, 4, v3
            v_subrev_u32 v{vOff+i}, {(i%4)*1024}, v3
            """)
    wo_voffs()
    p("s_waitcnt lgkmcnt(0)")
    stamp(p, o, 0)
    A0 = vKA
    def q_phase(c, reads):
        f = QB[(c - 1) % 2]
        rd = list(reads)
        for ks in range(4):
            for a in range(2):
                if c >= 1:
                    p(f"{MF} {rg(vS[a],16)}, {rg(f+12*ks+4*a,4)}, {rg(f+12*ks+8,4)}, {rg(vS[a],16)}")
                for _ in range(3 if a == 0 else 2):
                    if rd: p(rd.pop(0))
        for r_ in rd: p(r_)
    for c in range(9):
        qs = QS[c % 4]
        f = QB[c % 2]
        p(f"""
        v_add_u32 v{A0}, {qs}, v{vLW}
        v_add_u32 v{A0+1}, {qs}, v{vLW+1}
        v_add_u32 v{A0+2}, {qs+16384}, v{vLX}
        v_xor_b32 v{A0+3}, 32, v{A0+2}
        v_xor_b32 v{A0+4}, 64, v{A0+2}
        v_xor_b32 v{A0+5}, 96, v{A0+2}
        s_waitcnt lgkmcnt(0)
        """)
        bar('c')
        if c == 0: stamp(p, o, 1)
        reads = []
        for ks in range(4):
            for a in range(2):
                reads.append(f"ds_read_b64_tr_b16 {rg(f+12*ks+4*a,2)}, v{A0+a} offset:{ks*4096}")
                reads.append(f"ds_read_b64_tr_b16 {rg(f+12*ks+4*a+2,2)}, v{A0+a} offset:{ks*4096+1024}")
            reads.append(f"ds_read_b128 {rg(f+12*ks+8,4)}, v{A0+2+ks}")
        q_phase(c, reads)
    p("s_waitcnt lgkmcnt(0)")
    bar('c')
    q_phase(9, [])
    stamp(p, o, 2)
    p(f"""
    s_lshl_b32 s{sT0}, s{sQh}, 13
    s_add_u32 s{sT0}, s{sT0}, {QX}
    s_lshl_b32 s{sT1}, s{sKh}, 12
    s_add_u32 s{sT1}, s{sT1}, s{sT0}
    v_lshlrev_b32 v2, 4, v{vL}
    v_add_u32 v3, s{sT1}, v2
    v_add_u32 v2, s{sT0}, v2
    """)
    p(f"v_mov_b32 v{vKA}, v{vLK}")
    for s in range(1, 8):
        p(f"v_xor_b32 v{vKA+s}, {s<<5}, v{vLK}")
    for i in range(64):
        p(f"v_mov_b32 v{vO+i}, 0")
    for a in range(2):
        for j in range(8):
            p(f"v_cvt_pk_bf16_f32 v{vVf+8*a+j}, v{vS[a]+2*j}, v{vS[a]+2*j+1}")
    for k in range(4):
        p(f"ds_write_b128 v3, {rg(vVf+4*k,4)} offset:{k*1024}")
    p("s_waitcnt lgkmcnt(0)")
    bar('c')
    for s in range(8):
        p(f"ds_read_b128 {rg(vQ+4*s,4)}, v2 offset:{s*1024}")

    def k_addrs(sreg):
        p(f"v_add_u32 v{vKA}, s{sreg}, v{vLK}")
        for s in range(1, 8):
            p(f"v_xor_b32 v{vKA+s}, {s<<5}, v{vKA}")
    def v_addrs(sreg):
        for a in range(4):
            p(f"v_add_u32 v{vVA+a}, s{sreg}, v{vLV+a}")
    def adv2(s):
        p(f"""
        s_add_u32 s{s}, s{s}, {2*SLOT}
        s_cmp_ge_u32 s{s}, {NSLOT*SLOT}
        s_cselect_b32 s{sT0}, {NSLOT*SLOT}, 0
        s_sub_u32 s{s}, s{s}, s{sT0}
        """)
    def tmax(S):
        p(f"""
        v_max3_f32 v2, v{S}, v{S+1}, v{S+2}
        v_max3_f32 v3, v{S+3}, v{S+4}, v{S+5}
        v_max3_f32 v2, v2, v{S+6}, v{S+7}
        v_max3_f32 v3, v3, v{S+8}, v{S+9}
        v_max3_f32 v2, v2, v{S+10}, v{S+11}
        v_max3_f32 v3, v3, v{S+12}, v{S+13}
        v_max3_f32 v2, v2, v{S+14}, v{S+15}
        v_max_f32 v2, v2, v3
        v_mov_b32 v3, v2
        s_nop 1
        v_permlane32_swap_b32 v2, v3
        v_max_f32 v2, v2, v3
        v_mul_f32 v{vTn}, s{sC}, v2
        """)
    p("s_waitcnt lgkmcnt(0)")
    bar('c')
    stamp(p, o, 3)
    for s in range(8):
        p(f"ds_read_b128 {rg(vKf+4*s,4)}, v{vKA+s}")
    p(f"s_mov_b32 s{sRK}, {S_[1]}")
    k_addrs(sRK)
    p("s_waitcnt lgkmcnt(0)")
    bar('c')
    for s in range(8):
        c = '0' if s == 0 else rg(vS[0], 16)
        p(f"{MF} {rg(vS[0],16)}, {rg(vKf+4*s,4)}, {rg(vQ+4*s,4)}, {c}")
    for s in range(8):
        p(f"ds_read_b128 {rg(vKf+4*s,4)}, v{vKA+s}")
    p(f"""
    s_mov_b32 s{sRV}, {S_[2]}
    s_mov_b32 s{sRK}, {S_[3]}
    s_mov_b32 s{sCnt}, 0
    """)
    v_addrs(sRV)
    k_addrs(sRK)
    tmax(vS[0])

    def alpha(tag, cur, do_qk):
        S, Sn = vS[cur], vS[1 - cur]
        p("s_waitcnt lgkmcnt(0)")
        p("s_barrier")
        p(f"""
        v_cmp_gt_f32 vcc, v{vTn}, v{vThr}
        s_cbranch_vccnz K1_RS{tag}
        """)
        p.label(f"K1_BK{tag}")
        reads = [(a, ks, h) for a in range(4) for ks in range(2) for h in range(2)]
        for j in range(8):
            if do_qk:
                c = '0' if j == 0 else rg(Sn, 16)
                p(f"{MF} {rg(Sn,16)}, {rg(vKf+4*j,4)}, {rg(vQ+4*j,4)}, {c}")
            for (a, ks, h) in reads[2*j:2*j+2]:
                f = vVf + (a * 2 + ks) * 4 + 2 * h
                p(f"ds_read_b64_tr_b16 {rg(f,2)}, v{vVA+a} offset:{ks*4096+h*2048}")
            p(f"v_fma_f32 v{S+2*j}, v{S+2*j}, s{sC}, -v{vM}")
            p(f"v_fma_f32 v{S+2*j+1}, v{S+2*j+1}, s{sC}, -v{vM}")
            p(f"v_exp_f32 v{S+2*j}, v{S+2*j}")
            p(f"v_exp_f32 v{S+2*j+1}, v{S+2*j+1}")
            if j >= 1:
                k = j - 1
                p(f"v_cvt_pk_bf16_f32 v{vP+k}, v{S+2*k}, v{S+2*k+1}")
                p(f"v_add_f32 v{vL0}, v{vL0}, v{S+2*k}")
                p(f"v_add_f32 v{vL1}, v{vL1}, v{S+2*k+1}")
        p(f"v_cvt_pk_bf16_f32 v{vP+7}, v{S+14}, v{S+15}")
        p(f"v_add_f32 v{vL0}, v{vL0}, v{S+14}")
        p(f"v_add_f32 v{vL1}, v{vL1}, v{S+15}")

    def beta(tag, cur, read_k, do_tmax, barrier=True):
        Sn = vS[1 - cur]
        p("s_waitcnt lgkmcnt(0)")
        if barrier: p("s_barrier")
        n = 0
        for a in range(4):
            for ks in range(2):
                f = vVf + (a * 2 + ks) * 4
                p(f"{MF} {rg(vO+16*a,16)}, {rg(f,4)}, {rg(vP+4*ks,4)}, {rg(vO+16*a,16)}")
                if read_k:
                    p(f"ds_read_b128 {rg(vKf+4*n,4)}, v{vKA+n}")
                if n == 0:
                    adv2(sRV); adv2(sRK)
                if n == 1 and do_tmax:
                    tmax(Sn)
                if n == 3: v_addrs(sRV)
                n += 1
        k_addrs(sRK)

    def rescale(tag):
        p.label(f"K1_RS{tag}")
        p(f"""
        v_max_f32 v3, v{vTn}, v{vM}
        v_sub_f32 v4, v{vM}, v3
        v_exp_f32 v4, v4
        v_mov_b32 v{vM}, v3
        v_add_f32 v{vThr}, 0x41000000, v3
        """)
        p(f"v_mul_f32 v{vL0}, v{vL0}, v4")
        p(f"v_mul_f32 v{vL1}, v{vL1}, v4")
        for i in range(64):
            p(f"v_mul_f32 v{vO+i}, v{vO+i}, v4")
        p(f"s_branch K1_BK{tag}")

    p.label("K1_LOOP")
    alpha('L0', 0, True)
    beta('L0', 0, True, True)
    alpha('L1', 1, True)
    beta('L1', 1, True, True)
    p(f"""
    s_add_u32 s{sCnt}, s{sCnt}, 1
    s_cmp_lt_u32 s{sCnt}, 7
    s_cbranch_scc1 K1_LOOP
    """)
    nbar['c'] += 28
    stamp(p, o, 4)
    alpha('A', 0, True); nbar['c'] += 1
    beta('A', 0, False, True, barrier=False)
    alpha('B', 1, False); nbar['c'] += 1
    p("s_waitcnt lgkmcnt(0)")
    for a in (2, 3, 0, 1):
        for ks in range(2):
            f = vVf + (a * 2 + ks) * 4
            p(f"{MF} {rg(vO+16*a,16)}, {rg(f,4)}, {rg(vP+4*ks,4)}, {rg(vO+16*a,16)}")
    stamp(p, o, 5)
    vS0 = vS[0]
    p(f"""
    v_add_f32 v{vL0}, v{vL0}, v{vL1}
    v_mov_b32 v{vL1}, v{vL0}
    s_nop 1
    v_permlane32_swap_b32 v{vL0}, v{vL1}
    v_add_f32 v{vThr}, v{vL0}, v{vL1}
    v_and_b32 v7, 31, v{vL}
    v_lshlrev_b32 v7, 3, v7
    s_lshl_b32 s{sT0}, s{sWave}, 8
    s_add_u32 s{sT0}, s{sT0}, {STAT}
    s_xor_b32 s{sT1}, s{sWave}, 2
    s_lshl_b32 s{sT1}, s{sT1}, 8
    s_add_u32 s{sT1}, s{sT1}, {STAT}
    v_add_u32 v2, s{sT0}, v7
    v_add_u32 v7, s{sT1}, v7
    v_lshlrev_b32 v3, 4, v{vL}
    s_xor_b32 s{sT1}, s{sWave}, 2
    s_lshl_b32 s{sT1}, s{sT1}, 13
    s_add_u32 s{sT1}, s{sT1}, {EX}
    s_lshl_b32 s{sT0}, s{sWave}, 13
    s_add_u32 s{sT0}, s{sT0}, {EX}
    v_add_u32 v4, s{sT1}, v3
    v_add_u32 v5, s{sT0}, v3
    s_mov_b32 s{rO}, s{sWs}
    s_mov_b32 s{rO+1}, s{sWs+1}
    s_mov_b32 s{rO+2}, {WS_SIZE}
    s_mov_b32 s{rO+3}, 0x20000
    """)
    wo_srd()
    bar('c')
    stamp(p, o, 'e1')
    p(f"ds_write_b64 v2, v[{vM}:{vM+1}]")
    for a in (2, 3):
        for g in range(4):
            p(f"ds_write_b128 v4, {rg(vO+16*a+4*g,4)} offset:{(a-2)*4096+g*1024}")
    p("s_waitcnt lgkmcnt(0)")
    stamp(p, o, 'e2')
    bar('c')
    stamp(p, o, 'e3')
    p(f"ds_read_b64 v[{vS0}:{vS0+1}], v7")
    for a in range(2):
        for g in range(4):
            p(f"ds_read_b128 {rg(vO+32+16*a+4*g,4)}, v5 offset:{a*4096+g*1024}")
    p(f"""
    v_mov_b32 v6, {NONL}
    ds_read_b64 v[8:9], v6
    s_waitcnt lgkmcnt(9)
    v_max_f32 v2, v{vM}, v{vS0}
    v_sub_f32 v3, v{vM}, v2
    v_sub_f32 v4, v{vS0}, v2
    v_exp_f32 v3, v3
    v_exp_f32 v4, v4
    v_mul_f32 v5, v3, v{vThr}
    v_fmac_f32 v5, v4, v{vS0+1}
    v_rcp_f32 v6, v5
    v_mul_f32 v3, v3, v6
    v_mul_f32 v4, v4, v6
    """)
    for i in range(32):
        p(f"v_mul_f32 v{vO+i}, v{vO+i}, v3")
    for a in range(2):
        p(f"s_waitcnt lgkmcnt({5-4*a})")
        for i in range(16):
            p(f"v_fmac_f32 v{vO+16*a+i}, v{vO+32+16*a+i}, v4")
    if o.e3:
        bar('c')
    order = [0, 2, 1, 3]
    for a in range(2):
        for idx, g in enumerate(order):
            p(f"v_cvt_pk_bf16_f32 v{vKf+8*a+2*idx}, v{vO+16*a+4*g}, v{vO+16*a+4*g+1}")
            p(f"v_cvt_pk_bf16_f32 v{vKf+8*a+2*idx+1}, v{vO+16*a+4*g+2}, v{vO+16*a+4*g+3}")
    stamp(p, o, 'e4')
    p(f"""
    v_and_b32 v2, 15, v{vL}
    v_lshrrev_b32 v3, 5, v{vL}
    v_lshl_add_u32 v2, v3, 4, v2
    v_lshlrev_b32 v2, 4, v2
    v_bfe_u32 v3, v{vL}, 4, 1
    v_lshl_add_u32 v2, v3, 12, v2
    s_lshl_b32 s{sT0}, s{sWg}, 14
    s_lshl_b32 s{sT1}, s{sQh}, 13
    s_add_u32 s{sT0}, s{sT0}, s{sT1}
    s_lshl_b32 s{sT1}, s{sKh}, 11
    s_add_u32 s{sT0}, s{sT0}, s{sT1}
    """)
    for a in range(2):
        p(f"buffer_store_dwordx4 {rg(vKf+8*a,4)}, v2, s[{rO}:{rO+3}], s{sT0} offen offset:{a*1024} sc1")
        p(f"buffer_store_dwordx4 {rg(vKf+8*a+4,4)}, v2, s[{rO}:{rO+3}], s{sT0} offen offset:{a*1024+512} sc1")
    assert nbar['c'] == nbar['l'], nbar
    print('barriers', nbar, file=sys.stderr)
    p.label("K1_TAIL")
    if o.prio: p("s_setprio 0")
    tail(p, o, locals())
    for tag in ('L0', 'L1', 'A', 'B'):
        rescale(tag)
    p.label("K1_END")
    p("s_endpgm")
    return p

def tail(p, o, L):
    g = lambda n: L[n]
    sWave, sB, sXc, sJj, sWg, sT0, sT1, sT2 = g('sWave'), g('sB'), g('sXc'), g('sJj'), g('sWg'), g('sT0'), g('sT1'), g('sT2')
    rO, rW, rX, sN, sTag, sOut, sWs = g('rO'), g('rW'), g('rX'), g('sN'), g('sTag'), g('sOut'), g('sWs')
    vL, vOff, wo_addr, NEARLY, NONL, wo_voffs = g('vL'), g('vOff'), g('wo_addr'), g('NEARLY'), g('NONL'), g('wo_voffs')
    sQt, sKh2 = 40, 41
    vAcc, vB, vF, vLA, vAd = 28, 64, 96, 19, 20
    sFast = 52
    p(f"""
    s_cmp_lt_u32 s{sWave}, 4
    s_cbranch_scc0 T_E4L
    s_waitcnt vmcnt(0) lgkmcnt(0)
    s_branch T_E4
    """)
    p.label("T_E4L")
    p("s_waitcnt lgkmcnt(0)")
    p.label("T_E4")
    p(f"""
    v_readfirstlane_b32 s{sN}, v8
    v_readfirstlane_b32 s{sN+1}, v9
    s_barrier
    """)
    if o.stamps: stamp(p, o, 6)
    def b_loads():
        p(f"""
        s_and_b32 s{sT0}, s{sWg}, 0xfc
        s_lshl_b32 s{sT1}, s{sKh2}, 1
        s_add_u32 s{sT0}, s{sT0}, s{sT1}
        s_lshl_b32 s{sT0}, s{sT0}, 14
        s_lshl_b32 s{sT1}, s{sQt}, 12
        s_add_u32 s{sT0}, s{sT0}, s{sT1}
        s_add_u32 s{sT1}, s{sT0}, 16384
        """)
        for kk in range(8):
            p(f"buffer_load_dwordx4 {rg(vB+4*kk,4)}, v5, s[{rO}:{rO+3}], s{sT0 if kk < 4 else sT1} offen offset:{(kk&3)*1024} sc1")
    p(f"""
    s_and_b32 s{sQt}, s{sWave}, 3
    s_lshr_b32 s{sKh2}, s{sWave}, 2
    v_lshlrev_b32 v5, 4, v{vL}
    v_mov_b32 v6, {NONL+8}
    ds_read_b32 v12, v6
    s_cmp_eq_u32 s{sWave}, 7
    s_cbranch_scc0 T_F0
    v_mov_b32 v9, s{sN}
    s_lshl_b32 s{sT0}, s{sWg}, 7
    s_add_u32 s{sT0}, s{sT0}, {WS_FLAG}
    v_mov_b32 v3, 0
    v_cmp_eq_u32 vcc, 0, v{vL}
    s_and_saveexec_b64 s[58:59], vcc
    buffer_store_dword v9, v3, s[{rO}:{rO+3}], s{sT0} offen sc1
    s_mov_b64 exec, s[58:59]
    """)
    p.label("T_F0")
    p(f"""
    s_waitcnt lgkmcnt(0)
    v_readfirstlane_b32 s{sFast}, v12
    s_cmp_eq_u32 s{sFast}, 0
    s_cbranch_scc1 T_SLOW
    """)
    b_loads()
    p.label("T_SLOW")
    p(f"""
    s_cmp_eq_u32 s{sWave}, 7
    s_cbranch_scc0 T_NOFLAG
    s_cmp_eq_u32 s{sFast}, 0
    s_cbranch_scc0 T_SETUP
    s_and_b32 s{sT0}, s{sWg}, 0xfc
    s_lshl_b32 s{sT0}, s{sT0}, 7
    s_add_u32 s{sT0}, s{sT0}, {WS_FLAG}
    v_and_b32 v8, 3, v{vL}
    v_lshlrev_b32 v8, 7, v8
    s_mov_b32 s{sT1}, 0
    buffer_load_dword v10, v8, s[{rO}:{rO+3}], s{sT0} offen sc1
    buffer_load_dword v11, v8, s[{rO}:{rO+3}], s{sT0} offen sc1
    """)
    p("s_branch T_SETUP")
    p.label("T_NOFLAG")
    p.label("T_SETUP")
    if not o.e3:
        p("s_barrier")
        nlate = 16 - NEARLY
        p(f"""
        s_cmp_lt_u32 s{sWave}, {min(nlate, 4)}
        s_cbranch_scc0 T_NOLATE
        """)
        for rep in range((nlate + 3) // 4):
            if rep > 0:
                p(f"s_cmp_lt_u32 s{sWave}, {nlate - 4*rep}")
                p("s_cbranch_scc0 T_NOLATE")
            p(f"s_add_u32 s{sT2}, s{sWave}, {NEARLY + 4*rep}")
            p(f"""
            s_mul_i32 s{sT1}, s{sT2}, 9216
            s_add_u32 s{sT0}, s{sT1}, 49152
            s_sub_u32 s{sT1}, s{sT1}, {12*9216}
            s_cmp_lt_u32 s{sT2}, 12
            s_cselect_b32 s{sT1}, s{sT0}, s{sT1}
            s_mul_i32 s{sT0}, s{sT2}, 36864
            """)
            for i in range(9):
                if i % 4 == 0:
                    p(f"s_add_u32 m0, s{sT1}, {(i//4)*4096}")
                p(f"buffer_load_dwordx4 v{vOff+i}, s[{rW}:{rW+3}], s{sT0} offen offset:{(i%4)*1024} lds")
    p.label("T_NOLATE")
    p(f"""
    v_lshrrev_b32 v2, 4, v{vL}
    v_and_b32 v3, 15, v{vL}
    v_lshrrev_b32 v4, 2, v3
    v_and_b32 v6, 3, v3
    v_lshl_add_u32 v2, v2, 2, v4
    v_mul_u32_u24 v2, 288, v2
    v_lshl_add_u32 v{vLA}, v6, 3, v2
    s_and_b32 s{sTag}, s{sN}, 0xfff
    s_lshr_b32 s{sTag+1}, s{sN}, 12
    s_and_b32 s{sTag+1}, s{sTag+1}, 0xfff
    s_lshr_b32 s{sTag+2}, s{sN}, 24
    s_lshl_b32 s{sT2}, s{sN+1}, 8
    s_or_b32 s{sTag+2}, s{sTag+2}, s{sT2}
    s_and_b32 s{sTag+2}, s{sTag+2}, 0xfff
    s_lshr_b32 s{sTag+3}, s{sN+1}, 4
    s_and_b32 s{sTag+3}, s{sTag+3}, 0xfff
    v_mov_b32 v7, 0xfffff000
    """)
    vTagHi = 22
    if o.pk:
        p(f"""
        s_lshl_b32 s{sTag}, s{sN}, 16
        s_and_b32 s{sTag+1}, s{sN}, 0xffff0000
        s_lshl_b32 s{sT2}, s{sN+1}, 16
        s_xor_b32 s{sTag+2}, s{sTag}, s{sT2}
        s_xor_b32 s{sTag+2}, s{sTag+2}, 0x5a5a0000
        s_xor_b32 s{sTag+3}, s{sTag+1}, s{sT2}
        s_xor_b32 s{sTag+3}, s{sTag+3}, 0xa5c30000
        v_and_b32 v3, 3, v{vL}
        v_mov_b32 v{vTagHi}, s{sTag}
        v_mov_b32 v4, s{sTag+1}
        v_cmp_eq_u32 vcc, 1, v3
        v_cndmask_b32 v{vTagHi}, v{vTagHi}, v4, vcc
        v_mov_b32 v4, s{sTag+2}
        v_cmp_eq_u32 vcc, 2, v3
        v_cndmask_b32 v{vTagHi}, v{vTagHi}, v4, vcc
        v_mov_b32 v4, s{sTag+3}
        v_cmp_eq_u32 vcc, 3, v3
        v_cndmask_b32 v{vTagHi}, v{vTagHi}, v4, vcc
        """)
    for i in range(36):
        p(f"v_mov_b32 v{vAcc+i}, 0")
    p(f"""
    s_cmp_eq_u32 s{sWave}, 7
    s_cbranch_scc0 T_NOPOLL
    s_cmp_eq_u32 s{sFast}, 0
    s_cbranch_scc0 T_NOPOLL
    s_and_b32 s{sT0}, s{sWg}, 0xfc
    s_lshl_b32 s{sT0}, s{sT0}, 7
    s_add_u32 s{sT0}, s{sT0}, {WS_FLAG}
    s_mov_b32 s{sT1}, 0
    """)
    p.label("T_POLL1")
    p(f"""
    s_waitcnt vmcnt(1)
    v_cmp_ne_u32 vcc, v10, v9
    s_cbranch_vccz T_NOPOLL
    buffer_load_dword v10, v8, s[{rO}:{rO+3}], s{sT0} offen sc1
    s_add_u32 s{sT1}, s{sT1}, 1
    s_waitcnt vmcnt(1)
    v_cmp_ne_u32 vcc, v11, v9
    s_cbranch_vccz T_NOPOLL
    buffer_load_dword v11, v8, s[{rO}:{rO+3}], s{sT0} offen sc1
    s_cmp_lt_u32 s{sT1}, {SPIN}
    s_cbranch_scc1 T_POLL1
    """)
    p.label("T_NOPOLL")
    p(f"""
    s_waitcnt vmcnt(0)
    s_barrier
    """)
    if o.stamps: stamp(p, o, 7)
    p(f"s_cmp_eq_u32 s{sFast}, 0")
    p("s_cbranch_scc0 T_BDONE")
    b_loads()
    p.label("T_BDONE")
    if o.gopt: gemm_opt(p, vAcc, vB, vF, vAd, vLA, sKh2, sT2, wo_addr)
    else: gen9.gemm_body(p, vAcc, vB, vF, vAd, vLA, sKh2, sT2, wo_addr, [0, 1, 2, 3, 4], [5, 6, 7, 8], True)
    if o.stamps: stamp(p, o, 8)
    p(f"""
    s_barrier
    s_mul_i32 s{sT0}, s{sQt}, 9216
    v_add_u32 v2, s{sT0}, v5
    s_cmp_eq_u32 s{sKh2}, 0
    s_cbranch_scc0 T_H1
    """)
    for nt in range(5, 9):
        p(f"ds_write_b128 v2, {rg(vAcc+4*nt,4)} offset:{nt*1024}")
    p("s_branch T_H2")
    p.label("T_H1")
    for nt in range(0, 5):
        p(f"ds_write_b128 v2, {rg(vAcc+4*nt,4)} offset:{nt*1024}")
    p.label("T_H2")
    p(f"""
    s_lshl_b32 s{sT0}, s{sXc}, 3
    s_add_u32 s{sT0}, s{sT0}, s{sB}
    s_lshl_b32 s{sT0}, s{sT0}, 2
    s_add_u32 s{sT0}, s{sT0}, s{sJj}
    s_lshl_b32 s{sT0}, s{sT0}, 2
    s_add_u32 s{sT0}, s{sT0}, s{sQt}
    """)
    if o.pk:
        p(f"""
        s_lshl_b32 s{sT0}, s{sT0}, 1
        s_add_u32 s{sT0}, s{sT0}, s{sKh2}
        s_mul_i32 s{sT0}, s{sT0}, 3072
        """)
    else:
        p(f"s_mul_i32 s{sT0}, s{sT0}, 9216")
    p(f"""
    s_add_u32 s{sT0}, s{sT0}, {WS_PART}
    s_waitcnt lgkmcnt(0)
    s_barrier
    s_cmp_eq_u32 s{sKh2}, 0
    s_cbranch_scc0 T_H3
    """)
    def fin(nts):
        for nt in nts:
            p(f"ds_read_b128 {rg(vF+4*nt,4)}, v2 offset:{nt*1024}")
        for idx, nt in enumerate(nts):
            p(f"s_waitcnt lgkmcnt({len(nts)-1-idx})")
            for e in range(4):
                p(f"v_add_f32 v{vAcc+4*nt+e}, v{vAcc+4*nt+e}, v{vF+4*nt+e}")
            if not o.pk:
                for e in range(4):
                    p(f"v_and_or_b32 v{vAcc+4*nt+e}, v{vAcc+4*nt+e}, v7, s{sTag+e}")
                p(f"s_add_u32 s{sT1}, s{sT0}, {(nt//4)*4096}")
                p(f"buffer_store_dwordx4 {rg(vAcc+4*nt,4)}, v5, s[{rO}:{rO+3}], s{sT1} offen offset:{(nt%4)*1024} sc1")
        if o.pk:
            V = [vAcc + 4 * nt + e for nt in nts for e in range(4)]
            vG = 140
            for gi in range(3):
                vals = V[7 * gi: 7 * gi + 7]
                vals += [None] * (7 - len(vals))
                for d in range(3):
                    a, b = vals[2 * d], vals[2 * d + 1]
                    dst = vG + 4 * gi + d
                    if a is None: p(f"v_mov_b32 v{dst}, 0")
                    else: p(f"v_cvt_pk_bf16_f32 v{dst}, v{a}, {'v%d' % b if b is not None else '0'}")
                dst = vG + 4 * gi + 3
                if vals[6] is None:
                    p(f"v_mov_b32 v{dst}, v{vTagHi}")
                else:
                    p(f"v_cvt_pk_bf16_f32 v{dst}, v{vals[6]}, 0")
                    p(f"v_or_b32 v{dst}, v{dst}, v{vTagHi}")
                p(f"buffer_store_dwordx4 {rg(vG+4*gi,4)}, v5, s[{rO}:{rO+3}], s{sT0} offen offset:{gi*1024} sc1")
    fin(list(range(0, 5)))
    p("s_branch T_H4")
    p.label("T_H3")
    fin(list(range(5, 9)))
    p.label("T_H4")
    if o.stamps: stamp(p, o, 9)
    vX = 100
    if o.pk:
        vA = 140
        p(f"""
        s_cmp_ge_u32 s{sWave}, 3
        s_cbranch_scc1 T_DONE
        s_lshl_b32 s{sT0}, s{sB}, 2
        s_add_u32 s{sT0}, s{sT0}, s{sJj}
        s_lshl_b32 s{sT0}, s{sT0}, 3
        s_add_u32 s{sT0}, s{sT0}, s{sXc}
        s_mul_i32 s{sT0}, s{sT0}, 3072
        s_lshl_b32 s{sT1}, s{sWave}, 10
        s_add_u32 s{sT0}, s{sT0}, s{sT1}
        s_add_u32 s{sT0}, s{sT0}, {WS_PART}
        s_mov_b32 s{rX}, s{sOut}
        s_mov_b32 s{rX+1}, s{sOut+1}
        s_mov_b32 s{rX+2}, {512*576*2}
        s_mov_b32 s{rX+3}, 0x20000
        v_lshlrev_b32 v3, 4, v{vL}
        s_lshr_b32 s{sT1}, s{sXc}, 1
        s_lshl_b32 s{sT1}, s{sT1}, 4
        s_lshl_b32 s{sT2}, s{sB}, 6
        s_add_u32 s{sT1}, s{sT1}, s{sT2}
        v_and_b32 v4, 15, v{vL}
        v_add_u32 v4, s{sT1}, v4
        s_movk_i32 s{sT1}, 1152
        v_mul_u32_u24 v4, s{sT1}, v4
        v_lshrrev_b32 v6, 4, v{vL}
        v_lshl_add_u32 v4, v6, 3, v4
        s_mul_i32 s{sT1}, s{sJj}, 288
        s_and_b32 s{sT2}, s{sXc}, 1
        s_mul_i32 s{sT2}, s{sT2}, 160
        s_add_u32 s{sT1}, s{sT1}, s{sT2}
        v_add_u32 v4, s{sT1}, v4
        s_mov_b32 s{sT2}, 0
        s_mov_b64 s[56:57], exec
        v_mul_u32_u24 v6, {32*8*3}, v{vL}
        v_lshlrev_b32 v6, 10, v6
        v_add_u32 v6, 12, v6
        v_mov_b32 v9, s{sTag}
        s_mov_b64 exec, 0xff
        buffer_load_dword v10, v6, s[{rO}:{rO+3}], s{sT0} offen sc1
        buffer_load_dword v11, v6, s[{rO}:{rO+3}], s{sT0} offen sc1
        """)
        p.label("T_PP")
        p(f"""
        s_waitcnt vmcnt(1)
        v_xor_b32 v8, v10, v9
        v_lshrrev_b32 v8, 16, v8
        v_cmp_ne_u32 vcc, 0, v8
        s_cbranch_vccz T_PPD
        buffer_load_dword v10, v6, s[{rO}:{rO+3}], s{sT0} offen sc1
        s_add_u32 s{sT2}, s{sT2}, 1
        s_waitcnt vmcnt(1)
        v_xor_b32 v8, v11, v9
        v_lshrrev_b32 v8, 16, v8
        v_cmp_ne_u32 vcc, 0, v8
        s_cbranch_vccz T_PPD
        buffer_load_dword v11, v6, s[{rO}:{rO+3}], s{sT0} offen sc1
        s_cmp_lt_u32 s{sT2}, {SPIN}
        s_cbranch_scc1 T_PP
        """)
        p.label("T_PPD")
        p(f"""
        s_mov_b64 exec, s[56:57]
        s_mov_b32 s{sT2}, 0
        """)
        p.label("T_POLL2")
        p(f"s_mov_b32 s{sT1}, s{sT0}")
        for s_ in range(8):
            p(f"buffer_load_dwordx4 {rg(vX+4*s_,4)}, v3, s[{rO}:{rO+3}], s{sT1} offen sc1")
            if s_ < 7: p(f"s_add_u32 s{sT1}, s{sT1}, {32*8*3072}")
        p(f"""
        s_add_u32 s{sT2}, s{sT2}, 1
        v_mov_b32 v6, 0
        """)
        for s_ in range(8):
            p(f"s_waitcnt vmcnt({7-s_})")
            p(f"v_xor_b32 v8, v{vX+4*s_+3}, v{vTagHi}")
            p(f"v_or_b32 v6, v6, v8")
        p(f"""
        v_lshrrev_b32 v6, 16, v6
        v_cmp_ne_u32 vcc, 0, v6
        s_cmp_lt_u32 s{sT2}, {SPIN}
        s_cbranch_scc0 T_SUM
        s_cbranch_vccnz T_POLL2
        """)
        p.label("T_SUM")
        p("v_mov_b32 v7, 0xffff0000")
        for s_ in range(8):
            for j in range(7):
                src = vX + 4 * s_ + j // 2
                if s_ == 0:
                    if j % 2 == 0: p(f"v_lshlrev_b32 v{vA+j}, 16, v{src}")
                    else: p(f"v_and_b32 v{vA+j}, v7, v{src}")
                else:
                    if j % 2 == 0: p(f"v_lshlrev_b32 v8, 16, v{src}")
                    else: p(f"v_and_b32 v8, v7, v{src}")
                    p(f"v_add_f32 v{vA+j}, v{vA+j}, v8")
        SCO = ' sc1' if o.outsc else ''
        if o.wide:
            p(f"""
            v_and_b32 v12, 15, v{vL}
            v_mul_u32_u24 v12, 176, v12
            v_lshrrev_b32 v13, 4, v{vL}
            v_lshl_add_u32 v12, v13, 3, v12
            v_add_u32 v12, 40960, v12
            """)
            def st(width, reg, off):
                if not o.wide:
                    op = {8: 'buffer_store_dwordx2', 4: 'buffer_store_dword', 2: 'buffer_store_short'}[width]
                    r = rg(reg, 2) if width == 8 else f"v{reg}"
                    p(f"{op} {r}, v4, s[{rX}:{rX+3}], 0 offen offset:{off}{SCO}")
                else:
                    op = {8: 'ds_write_b64', 4: 'ds_write_b32', 2: 'ds_write_b16'}[width]
                    r = rg(reg, 2) if width == 8 else f"v{reg}"
                    p(f"{op} v12, {r} offset:{off}")
        else:
            def st(width, reg, off):
                op = {8: 'buffer_store_dwordx2', 4: 'buffer_store_dword', 2: 'buffer_store_short'}[width]
                r = rg(reg, 2) if width == 8 else f"v{reg}"
                p(f"{op} {r}, v4, s[{rX}:{rX+3}], 0 offen offset:{off}{SCO}")
        FIN = 'T_OW' if o.wide else 'T_DONE'
        p(f"""
        s_cmp_eq_u32 s{sWave}, 1
        s_cbranch_scc1 T_O1
        s_cmp_eq_u32 s{sWave}, 2
        s_cbranch_scc1 T_O2
        v_cvt_pk_bf16_f32 v8, v{vA}, v{vA+1}
        v_cvt_pk_bf16_f32 v9, v{vA+2}, v{vA+3}
        v_cvt_pk_bf16_f32 v10, v{vA+4}, v{vA+5}
        v_cvt_pk_bf16_f32 v11, v{vA+6}, v{vA+6}
        """)
        st(8, 8, 0); st(4, 10, 32); st(2, 11, 36)
        p(f"s_branch {FIN}")
        p.label("T_O1")
        p(f"""
        v_cvt_pk_bf16_f32 v11, v{vA}, v{vA}
        v_cvt_pk_bf16_f32 v8, v{vA+1}, v{vA+2}
        v_cvt_pk_bf16_f32 v9, v{vA+3}, v{vA+4}
        v_cvt_pk_bf16_f32 v10, v{vA+5}, v{vA+6}
        """)
        st(2, 11, 38); st(8, 8, 64); st(4, 10, 96)
        p(f"s_branch {FIN}")
        p.label("T_O2")
        p(f"""
        v_cvt_pk_bf16_f32 v10, v{vA}, v{vA+1}
        v_cvt_pk_bf16_f32 v8, v{vA+2}, v{vA+3}
        v_cvt_pk_bf16_f32 v9, v{vA+4}, v{vA+5}
        """)
        st(4, 10, 100)
        if o.wide:
            st(8, 8, 128)
            p.label("T_OW")
            p(f"""
            s_waitcnt lgkmcnt(0)
            s_barrier
            s_and_b32 s{sT0}, s{sXc}, 1
            s_cmp_eq_u32 s{sT0}, 0
            s_cselect_b32 s{sT1}, 10, 8
            s_mov_b32 s{sT2}, 8192
            s_cselect_b32 s{sT2}, 6554, s{sT2}
            v_mul_u32_u24 v12, s{sT2}, v0
            v_lshrrev_b32 v12, 16, v12
            v_mul_u32_u24 v13, s{sT1}, v12
            v_sub_u32 v13, v0, v13
            v_cmp_gt_u32 vcc, 16, v12
            s_and_saveexec_b64 s[58:59], vcc
            s_cbranch_execz T_OWX
            v_mul_u32_u24 v14, 176, v12
            v_lshl_add_u32 v14, v13, 4, v14
            ds_read_b128 v[8:11], v14 offset:40960
            s_lshr_b32 s{sT1}, s{sXc}, 1
            s_lshl_b32 s{sT1}, s{sT1}, 4
            s_lshl_b32 s{sT2}, s{sB}, 6
            s_add_u32 s{sT1}, s{sT1}, s{sT2}
            v_add_u32 v12, s{sT1}, v12
            s_movk_i32 s{sT1}, 1152
            v_mul_u32_u24 v12, s{sT1}, v12
            v_lshl_add_u32 v12, v13, 4, v12
            s_mul_i32 s{sT1}, s{sJj}, 288
            s_mul_i32 s{sT0}, s{sT0}, 160
            s_add_u32 s{sT1}, s{sT1}, s{sT0}
            s_waitcnt lgkmcnt(0)
            buffer_store_dwordx4 v[8:11], v12, s[{rX}:{rX+3}], s{sT1} offen{SCO}
            """)
            p.label("T_OWX")
            p("s_mov_b64 exec, s[58:59]")
        else:
            p(f"""
            s_and_b32 s{sT0}, s{sXc}, 1
            s_cmp_eq_u32 s{sT0}, 0
            s_cbranch_scc0 T_DONE
            """)
            st(8, 8, 128)
    else:
        p(f"""
        s_cmp_ge_u32 s{sWave}, 5
        s_cbranch_scc1 T_DONE
        v_cmp_gt_u32 vcc, 288, v0
        s_and_saveexec_b64 s[58:59], vcc
        s_mul_i32 s{sT0}, s{sXc}, 288
        v_add_u32 v2, s{sT0}, v0
        v_lshlrev_b32 v3, 4, v2
        s_lshl_b32 s{sT0}, s{sB}, 2
        s_add_u32 s{sT0}, s{sT0}, s{sJj}
        s_mul_i32 s{sT0}, s{sT0}, 36864
        s_add_u32 s{sT0}, s{sT0}, {WS_PART}
        s_mov_b32 s{rX}, s{sOut}
        s_mov_b32 s{rX+1}, s{sOut+1}
        s_mov_b32 s{rX+2}, {512*576*2}
        s_mov_b32 s{rX+3}, 0x20000
        v_lshrrev_b32 v4, 6, v2
        v_mul_u32_u24 v5, 57, v4
        v_lshrrev_b32 v5, 9, v5
        v_mul_u32_u24 v6, 9, v5
        v_sub_u32 v6, v4, v6
        v_and_b32 v4, 15, v2
        v_lshl_add_u32 v4, v5, 4, v4
        s_lshl_b32 s{sT1}, s{sB}, 6
        v_add_u32 v4, s{sT1}, v4
        s_movk_i32 s{sT1}, 1152
        v_mul_u32_u24 v4, s{sT1}, v4
        v_lshlrev_b32 v6, 5, v6
        v_add_u32 v4, v4, v6
        v_bfe_u32 v6, v2, 4, 2
        v_lshl_add_u32 v4, v6, 3, v4
        s_mul_i32 s{sT1}, s{sJj}, 288
        v_add_u32 v4, s{sT1}, v4
        s_mov_b32 s{sT2}, 0
        """)
        if o.prepoll == 1:
                p(f"""
                s_mov_b64 s[56:57], exec
                v_readfirstlane_b32 s{sT1}, v3
                v_mul_u32_u24 v6, {32*36864 // 1024}, v{vL}
                v_lshlrev_b32 v6, 10, v6
                v_add_u32 v6, s{sT1}, v6
                v_mov_b32 v9, s{sTag}
                s_mov_b64 exec, 0xff
                buffer_load_dword v10, v6, s[{rO}:{rO+3}], s{sT0} offen sc1
                buffer_load_dword v11, v6, s[{rO}:{rO+3}], s{sT0} offen sc1
                """)
                p.label("T_PP")
                p(f"""
                s_waitcnt vmcnt(1)
                v_xor_b32 v8, v10, v9
                v_and_b32 v8, 0xfff, v8
                v_cmp_ne_u32 vcc, 0, v8
                s_cbranch_vccz T_PPD
                buffer_load_dword v10, v6, s[{rO}:{rO+3}], s{sT0} offen sc1
                s_add_u32 s{sT2}, s{sT2}, 1
                s_waitcnt vmcnt(1)
                v_xor_b32 v8, v11, v9
                v_and_b32 v8, 0xfff, v8
                v_cmp_ne_u32 vcc, 0, v8
                s_cbranch_vccz T_PPD
                buffer_load_dword v11, v6, s[{rO}:{rO+3}], s{sT0} offen sc1
                s_cmp_lt_u32 s{sT2}, {SPIN}
                s_cbranch_scc1 T_PP
                """)
                p.label("T_PPD")
                p(f"""
                s_mov_b64 exec, s[56:57]
                s_mov_b32 s{sT2}, 0
                """)
        elif o.prepoll == 2:
            p(f"""
            s_cmp_eq_u32 s{sWave}, 0
            s_cbranch_scc0 T_PPD
            s_mov_b64 s[56:57], exec
            s_mul_i32 s{sT1}, s{sXc}, {288*16}
            v_and_b32 v6, 7, v{vL}
            v_mul_u32_u24 v6, {32*36864 // 1024}, v6
            v_lshlrev_b32 v6, 10, v6
            v_add_u32 v6, s{sT1}, v6
            v_lshrrev_b32 v8, 3, v{vL}
            v_mul_u32_u24 v8, {287*16}, v8
            v_add_u32 v6, v6, v8
            v_mov_b32 v9, s{sTag}
            s_mov_b64 exec, 0xffff
            buffer_load_dword v10, v6, s[{rO}:{rO+3}], s{sT0} offen sc1
            """)
            p.label("T_PP")
            p(f"""
            s_waitcnt vmcnt(0)
            v_xor_b32 v8, v10, v9
            v_and_b32 v8, 0xfff, v8
            v_cmp_ne_u32 vcc, 0, v8
            s_cbranch_vccz T_PPE
            buffer_load_dword v10, v6, s[{rO}:{rO+3}], s{sT0} offen sc1
            s_add_u32 s{sT2}, s{sT2}, 1
            s_cmp_lt_u32 s{sT2}, {SPIN}
            s_cbranch_scc1 T_PP
            """)
            p.label("T_PPE")
            p(f"""
            s_mov_b64 exec, s[56:57]
            s_mov_b32 s{sT2}, 0
            """)
            p.label("T_PPD")
            p("s_barrier")
        p.label("T_POLL2")
        p(f"s_mov_b32 s{sT1}, s{sT0}")
        for s in range(8):
            p(f"buffer_load_dwordx4 {rg(vX+4*s,4)}, v3, s[{rO}:{rO+3}], s{sT1} offen sc1")
            if s < 7: p(f"s_add_u32 s{sT1}, s{sT1}, {32*36864}")
        p(f"""
        s_add_u32 s{sT2}, s{sT2}, 1
        v_mov_b32 v6, 0
        """)
        for s in range(8):
            p(f"s_waitcnt vmcnt({7-s})")
            for e in range(0, 4, 2):
                p(f"v_xor_b32 v8, s{sTag+e}, v{vX+4*s+e}")
                p(f"v_xor_b32 v9, s{sTag+e+1}, v{vX+4*s+e+1}")
                p(f"v_or3_b32 v6, v6, v8, v9")
        p(f"""
        v_and_b32 v6, 0xfff, v6
        v_cmp_ne_u32 vcc, 0, v6
        s_cmp_lt_u32 s{sT2}, {SPIN}
        s_cbranch_scc0 T_SUM
        s_cbranch_vccnz T_POLL2
        """)
        p.label("T_SUM")
        for s in range(8):
            for e in range(4):
                p(f"v_and_b32 v{vX+4*s+e}, v7, v{vX+4*s+e}")
        for s in range(1, 8):
            for e in range(4):
                p(f"v_add_f32 v{vX+e}, v{vX+e}, v{vX+4*s+e}")
        p(f"""
        v_cvt_pk_bf16_f32 v8, v{vX}, v{vX+1}
        v_cvt_pk_bf16_f32 v9, v{vX+2}, v{vX+3}
        buffer_store_dwordx2 v[8:9], v4, s[{rX}:{rX+3}], 0 offen{' sc1' if o.outsc else ''}
        s_mov_b64 exec, s[58:59]
        """)
    p.label("T_DONE")
    if o.stamps:
        p("s_waitcnt vmcnt(0)")
        p("s_memrealtime s[90:91]" if o.stamps != 2 else "s_memtime s[90:91]")
        p("s_waitcnt lgkmcnt(0)")
        gen_flush_final(p, o, sWs)
    p("s_branch K1_END")

def gemm_opt(p, vAcc, vB, vF, vAd, vLA, sKh2, sT, wo_addr):
    HA, HB = [0, 1, 2, 3, 4], [5, 6, 7, 8]
    for half in range(2):
        c0, c1 = wo_addr(4 * half), wo_addr(8 + 4 * half)
        for kk in range(4):
            assert wo_addr(4 * half + kk) == c0 + kk * 9216 and wo_addr(8 + 4 * half + kk) == c1 + kk * 9216
        p(f"""
        s_mov_b32 s{sT}, {c1}
        s_cmp_eq_u32 s{sKh2}, 0
        s_cselect_b32 s{sT}, {c0}, s{sT}
        v_add_u32 v{vAd + half}, s{sT}, v{vLA}
        """)
    def reads(kk, half):
        ad = vAd + (kk // 4); off = (kk % 4) * 9216
        for nt in half:
            f = vF + 4 * nt
            p(f"ds_read_b64_tr_b16 {rg(f,2)}, v{ad} offset:{off+nt*32}")
            p(f"ds_read_b64_tr_b16 {rg(f+2,2)}, v{ad} offset:{off+4608+nt*32}")
    def mfmas(kk, half, wait):
        p(wait)
        for nt in half:
            f = vF + 4 * nt
            p(f"{MF16} {rg(vAcc+4*nt,4)}, {rg(f,4)}, {rg(vB+4*kk,4)}, {rg(vAcc+4*nt,4)}")
    reads(0, HA)
    for kk in range(8):
        reads(kk, HB)
        mfmas(kk, HA, f"s_waitcnt vmcnt({7-kk}) lgkmcnt({2*len(HB)})")
        if kk < 7:
            reads(kk + 1, HA)
            mfmas(kk, HB, f"s_waitcnt lgkmcnt({2*len(HA)})")
        else:
            mfmas(kk, HB, "s_waitcnt lgkmcnt(0)")

def emit(o):
    name = 'standalone__gqa_block_cached__near_ridge_kernel'
    p = gen_main(o)
    out = [HDR, "; @launch grid=(256,1,1) block=(512,1,1) lds=163840",
           '.amdgcn_target "amdgcn-amd-amdhsa--gfx950"', '.text']
    n = p.fix_hazards()
    errs = p.lint_waits()
    for e in errs[:20]:
        print(f"LINT: {e}", file=sys.stderr)
    nv, ns = p.max_regs()
    print(f"{name}: {len(p.ins)} instrs, vgpr {nv}, sgpr {ns}, nops inserted {n}", file=sys.stderr)
    out.append(f".globl {name}\n.p2align 8\n.type {name},@function\n{name}:")
    out.append(p.text())
    out.append(kd(name, max(nv, 8), max(ns, 16)))
    return '\n'.join(out) + '\n'

if __name__ == '__main__':
    ap = argparse.ArgumentParser()
    ap.add_argument('-o', default='standalone__gqa_block_cached__near_ridge.s')
    for k, d in OPTS.items():
        ap.add_argument('--' + k, type=int, default=d)
    a = ap.parse_args()
    o = Opt()
    for k in OPTS:
        setattr(o, k, getattr(a, k))
    open(a.o, 'w').write(emit(o))
```

```python
import sys, argparse
from asmlib import Prog
import gen
from gen import f32bits, SCALE_LOG2E, kd, HEADER
from gen import stamp as _stamp
import gen9
from gen9 import WS_O, WS_PART, WS_FLAG, WS_SIZE, MF, MF16, rg, SPIN, gen_flush_final

STSETS = {0: {0:0,1:1,2:2,3:3,4:4,5:5,6:6,7:7,8:8,9:9},
          1: {5:0, 'e1':1, 'e2':2, 'e3':3, 'e4':4, 6:5, 7:6, 'g0':7, 8:8, 9:9}}
def stamp(p, o, name):
    m = STSETS[getattr(o, 'stset', 0)]
    if name in m: _stamp(p, o, m[name])

class Opt(gen.Opt):
    pass
OPTS = dict(contig=0, fine=1, roth=0, rotk=11, rot=1, wide=1, pk=1, gopt=1, e3=1, prio=0, skew=0, icpf=6, outsc=1, prepoll=1, fast=1, stset=0, nt=1, dbg=0, stamps=0, stampwave=0, wt=1, kdel=5, wotat=7, lead=8, nearly=12)

HDR = """; GQA block: q = x@wq ; softmax(q k^T / sqrt(128)) v ; out = o@wo   (B=8, Sq=64, Hq=32, Hkv=16, Sk=1024, Dh=128, D=576)
;   The launch nonce is published by workgroup 0 in d_debug[0:1] (zero at launch); all cross-workgroup data uses sc1 stores and loads."""

SLOT = 16384
NSLOT = 10

def gen_main(o):
    p = Prog()
    NT = ' nt' if o.nt else ''
    sX, sK, sV, sWq, sWs, sWo = 4, 6, 8, 10, 12, 14
    rK, rV, rW, rX, rO = 16, 20, 24, 28, 32
    sWave, sB, sH, sXc, sQh, sKh = 36, 37, 38, 39, 40, 41
    sRK, sRV, sKoff, sVoff, sCnt, sJj = 42, 43, 44, 45, 46, 47
    sC, sT0, sT1, sT2 = 48, 49, 50, 51
    sLw, sWg, sIss, sL4096, sGof = 53, 54, 55, 56, 57
    sHalf = 94
    sPar, sIssB = 98, 99
    vOa, vOb = 40, 44
    sOut, sDbg, sN, sTag = 80, 82, 84, 86
    vL = 1
    vLW = 10
    vLX = 12
    vLK = 13
    vVA = 14
    vTn = 18
    vNon = 20
    vLV = 24
    vKA = 28
    vM, vThr, vL0, vL1 = 36, 37, 38, 39
    vQ = 40
    vS = [72, 88]
    vP = 104
    vKf = 112
    vVf = 144
    vO = 176
    QB = [112, 176]
    vKo = 10; vVo = 14; vWo = 24; vXo = 28; vWoA, vWoB, vWoC = 30, 31, 32
    vDum = 249
    vOff = 240
    S_ = [i * SLOT for i in range(NSLOT)]
    QS = [139264, 65536, 90112, 114688]
    QX = S_[9]
    lab = [0]
    def nl(s):
        lab[0] += 1
        return f"K1_{s}{lab[0]}"
    nbar = {'c': 0, 'l': 0}
    def bar(who):
        nbar[who] += 1
        p("s_barrier")
    LEAD = o.lead
    TS = 16384 if o.contig else 8192
    MASK = 0x3ffff if o.contig else 0x1ffff
    assert LEAD in (4, 6, 8) and not o.skew
    HL = LEAD // 2
    NR = 14 - HL
    POS = []
    for n in range(33):
        if n == 0: POS.append((1, 0))
        elif n % 2 == 1: POS.append((1, (n + 1) // 2))
        else: POS.append((0, (n - 2) // 2))
    NEARLY = o.nearly
    def wo_addr(G): return (49152 + G * 9216) if G < 12 else (G - 12) * 9216
    EX, STAT, NONL = 0, 36864, 38912

    p(f"""
    s_cmp_ge_u32 s2, 256
    s_cbranch_scc1 K1_END
    s_load_dwordx4 s[4:7], s[0:1], 0
    s_load_dwordx4 s[8:11], s[0:1], 16
    s_load_dwordx2 s[12:13], s[0:1], 56
    s_load_dwordx2 s[14:15], s[0:1], 32
    s_load_dwordx4 s[80:83], s[0:1], 40
    """)
    if o.icpf:
        ICL = o.icpf
        p("s_getpc_b64 s[90:91]")
        p.label("K1_PCREF")
        p(f"""
        s_mov_b32 s93, K1_END-K1_PCREF
        v_cmp_gt_u32 vcc, {ICL}, v0
        s_and_saveexec_b64 s[58:59], vcc
        s_cbranch_execz K1_ICD
        s_lshr_b32 s92, s2, 3
        s_mul_i32 s92, s92, {ICL*128}
        v_lshlrev_b32 v2, 7, v0
        v_add_u32 v2, s92, v2
        v_min_u32 v2, s93, v2
        global_load_dword v{vDum}, v2, s[90:91]
        """)
        p.label("K1_ICD")
        p("s_mov_b64 exec, s[58:59]")
    p(f"""
    v_and_b32 v{vL}, 63, v0
    v_lshrrev_b32 v2, 6, v0
    s_and_b32 s{sXc}, s2, 7
    s_lshr_b32 s{sT1}, s2, 3
    v_readfirstlane_b32 s{sWave}, v2
    s_lshr_b32 s{sB}, s{sT1}, 2
    s_and_b32 s{sJj}, s{sT1}, 3
    s_lshl_b32 s{sH}, s{sXc}, 2
    s_add_u32 s{sH}, s{sH}, s{sJj}
    s_lshl_b32 s{sWg}, s{sB}, 5
    s_add_u32 s{sWg}, s{sWg}, s{sH}
    v_and_b32 v2, 15, v{vL}
    v_lshrrev_b32 v3, 4, v{vL}
    v_lshrrev_b32 v4, 2, v2
    v_and_b32 v5, 3, v2
    v_lshrrev_b32 v6, 5, v{vL}
    v_and_b32 v7, 31, v{vL}
    s_cmp_lt_u32 s{sWave}, 4
    s_cbranch_scc1 K1_COMPUTE
    """)

    vq = []
    def vissue(tag, n): vq.extend([tag] * n)
    def vneed(*tags):
        idx = [i for i, t in enumerate(vq) if t in tags]
        if not idx: return 63
        n = len(vq) - 1 - idx[-1]
        del vq[:idx[-1] + 1]
        return min(n, 63)
    if o.prio: p(f"s_setprio {o.prio}")
    p(f"""
    s_and_b32 s{sLw}, s{sWave}, 3
    s_lshl_b32 s{sL4096}, s{sLw}, 12
    v_lshlrev_b32 v8, 2, v3
    v_xor_b32 v8, v8, v2
    v_lshlrev_b32 v8, 4, v8
    v_lshl_add_u32 v{vVo}, v3, 8, v8
    v_lshl_add_u32 v{vWo}, v3, 13, v8
    """)
    for u in range(1, 4):
        p(f"v_add_u32 v{vWo+u}, {u*31744}, v{vWo}")
    p(f"""
    s_lshl_b32 s{sT0}, s{sLw}, 4
    s_movk_i32 s{sT1}, 1152
    """)
    for u in range(2):
        p(f"""
        v_lshrrev_b32 v8, 3, v{vL}
        v_add_u32 v8, s{sT0}, v8
        v_add_u32 v8, {8*u}, v8
        v_mul_lo_u32 v8, v8, s{sT1}
        v_add_u32 v9, {4*u}, v3
        v_and_b32 v9, 7, v9
        v_and_b32 v{vXo+u}, 7, v{vL}
        v_xor_b32 v9, v9, v{vXo+u}
        v_lshl_add_u32 v8, v9, 4, v8
        v_subrev_u32 v{vXo+u}, {u*1024}, v8
        """)
    p("s_waitcnt lgkmcnt(0)")
    stamp(p, o, 0)
    p(f"""
    s_lshl_b32 s{sT0}, s{sH}, 8
    s_add_u32 s{rW}, s{sWq}, s{sT0}
    s_addc_u32 s{rW+1}, s{sWq+1}, 0
    s_sub_u32 s{rW+2}, {576*8192}, s{sT0}
    s_mov_b32 s{rW+3}, 0x20000
    s_mul_i32 s{sT0}, s{sB}, {64*1152}
    s_add_u32 s{rX}, s{sX}, s{sT0}
    s_addc_u32 s{rX+1}, s{sX+1}, 0
    s_mov_b32 s{rX+2}, {64*1152}
    s_mov_b32 s{rX+3}, 0x20000
    """)
    def issue_chunk(c):
        qs = QS[c % 4]
        p(f"""
        s_lshl_b32 s{sT0}, s{sLw}, 17
        s_add_u32 s{sT0}, s{sT0}, {c*524288}
        s_add_u32 m0, s{sL4096}, {qs}
        """)
        for u in range(4):
            p(f"buffer_load_dwordx4 v{vWo+u}, s[{rW}:{rW+3}], s{sT0} offen offset:{u*1024} lds")
        p(f"""
        s_lshr_b32 s{sT1}, s{sL4096}, 1
        s_add_u32 m0, s{sT1}, {qs+16384}
        s_movk_i32 s{sT0}, {c*128}
        """)
        for u in range(2):
            p(f"buffer_load_dwordx4 v{vXo+u}, s[{rX}:{rX+3}], s{sT0} offen offset:{u*1024} lds")
        vissue(('C', c), 6)
    if o.wt:
        p(f"""
        s_cmp_eq_u32 s{sWave}, 4
        s_cbranch_scc0 K1_WT1
        v_lshrrev_b32 v8, 1, v{vL}
        v_and_b32 v9, 1, v{vL}
        v_lshlrev_b32 v8, 13, v8
        v_lshl_add_u32 v8, v9, 7, v8
        s_mul_i32 s{sT0}, s{sB}, {72*8192}
        buffer_load_dword v{vDum}, v8, s[{rW}:{rW+3}], s{sT0} offen
        s_add_u32 s{sT0}, s{sT0}, {32*8192}
        buffer_load_dword v{vDum}, v8, s[{rW}:{rW+3}], s{sT0} offen
        s_add_u32 s{sT0}, s{sT0}, {32*8192}
        v_cmp_gt_u32 vcc, 16, v{vL}
        s_and_saveexec_b64 s[58:59], vcc
        buffer_load_dword v{vDum}, v8, s[{rW}:{rW+3}], s{sT0} offen
        s_mov_b64 exec, s[58:59]
        """)
        p.label("K1_WT1")
        p(f"""
        s_cmp_eq_u32 s{sWave}, 5
        s_cbranch_scc0 K1_WT2
        v_lshlrev_b32 v9, 7, v{vL}
        s_mul_i32 s{sT0}, s{sJj}, 18432
        buffer_load_dword v{vDum}, v9, s[{rX}:{rX+3}], s{sT0} offen
        s_add_u32 s{sT0}, s{sT0}, 8192
        buffer_load_dword v{vDum}, v9, s[{rX}:{rX+3}], s{sT0} offen
        s_add_u32 s{sT0}, s{sT0}, 8192
        v_cmp_gt_u32 vcc, 16, v{vL}
        s_and_saveexec_b64 s[58:59], vcc
        buffer_load_dword v{vDum}, v9, s[{rX}:{rX+3}], s{sT0} offen
        s_mov_b64 exec, s[58:59]
        """)
        p.label("K1_WT2")
    for c in range(4):
        issue_chunk(c)
    p(f"""
    s_cmp_eq_u32 s2, 0
    s_cbranch_scc0 K1_NON
    s_cmp_eq_u32 s{sWave}, 7
    s_cbranch_scc0 K1_NON
    s_memrealtime s[{sN}:{sN+1}]
    s_waitcnt lgkmcnt(0)
    s_or_b32 s{sN}, s{sN}, 1
    v_mov_b32 v8, s{sN}
    v_mov_b32 v9, s{sN+1}
    v_mov_b32 v{vNon}, 0
    v_cmp_eq_u32 vcc, 0, v{vL}
    s_and_saveexec_b64 s[58:59], vcc
    global_store_dwordx2 v{vNon}, v[8:9], s[{sDbg}:{sDbg+1}] sc1
    s_mov_b64 exec, s[58:59]
    """)
    p.label("K1_NON")
    p(f"""
    s_lshl_b32 s{sT0}, s{sB}, 4
    s_lshr_b32 s{sT1}, s{sH}, 1
    s_add_u32 s{sT0}, s{sT0}, s{sT1}
    s_lshl_b32 s{sT0}, s{sT0}, 18
    s_add_u32 s{rK}, s{sK}, s{sT0}
    s_addc_u32 s{rK+1}, s{sK+1}, 0
    s_mov_b32 s{rK+2}, 0x40000
    s_mov_b32 s{rK+3}, 0x20000
    s_add_u32 s{rV}, s{sV}, s{sT0}
    s_addc_u32 s{rV+1}, s{sV+1}, 0
    s_mov_b32 s{rV+2}, 0x40000
    s_mov_b32 s{rV+3}, 0x20000
    """)
    if o.contig:
        p(f"""
        s_mov_b32 s{sHalf}, 0
        s_lshl_b32 s{sGof}, s{sLw}, 12
        """)
    else:
        p(f"""
        s_lshr_b32 s{sT0}, s{sLw}, 1
        s_lshl_b32 s{sHalf}, s{sT0}, 17
        s_and_b32 s{sT1}, s{sLw}, 1
        s_lshl_b32 s{sGof}, s{sT1}, 12
        """)
    if o.rot:
        p(f"""
        s_lshr_b32 s{sT0}, s{sH}, 1
        s_mul_i32 s{sT1}, s{sB}, {o.rot}
        s_mul_i32 s{sT0}, s{sT0}, {o.rotk}
        s_add_u32 s{sT0}, s{sT0}, s{sT1}
        s_lshr_b32 s{sT1}, s{sLw}, 1
        s_mul_i32 s{sT1}, s{sT1}, {o.roth}
        s_add_u32 s{sT0}, s{sT0}, s{sT1}
        s_and_b32 s{sT0}, s{sT0}, {31 if o.fine else 15}
        s_lshl_b32 s{sT0}, s{sT0}, {(12 if o.fine else 13) + (1 if o.contig else 0)}
        s_add_u32 s{sGof}, s{sGof}, s{sT0}
        """)
    for u in range(4):
        p(f"""
        v_add_u32 v8, {4*u}, v3
        v_xor_b32 v8, v8, v2
        v_lshlrev_b32 v8, 4, v8
        v_lshl_add_u32 v{vKo+u}, v3, 8, v8
        """)
    p(f"""
    s_movk_i32 s{sT0}, 3641
    s_movk_i32 s{sT1}, 1152
    """)
    for k, (reg, addi) in enumerate(((vWoA, 0), (vWoB, 4), (vWoC, None))):
        if addi is None:
            p(f"v_add_u32 v8, {64*8}, v{vL}")
        else:
            p(f"""
            s_add_u32 s{sT2}, s{sLw}, {addi}
            s_lshl_b32 s{sT2}, s{sT2}, 6
            v_add_u32 v8, s{sT2}, v{vL}
            """)
        p(f"""
        v_mul_u32_u24 v9, s{sT0}, v8
        v_lshrrev_b32 v9, 16, v9
        v_mul_u32_u24 v{reg}, 18, v9
        v_sub_u32 v{reg}, v8, v{reg}
        v_mul_u32_u24 v9, s{sT1}, v9
        v_lshl_add_u32 v{reg}, v{reg}, 4, v9
        """)

    for i in range(9): p(f"v_mov_b32 v{vOff+i}, 0")
    def issue_pos(n):
        isK, t = POS[n]
        p(f"""
        s_add_u32 s{sT0}, s{sGof}, {t*TS}
        s_and_b32 s{sT0}, s{sT0}, {MASK}
        s_or_b32 s{sT0}, s{sT0}, s{sHalf}
        s_add_u32 m0, s{sL4096}, {S_[n % NSLOT]}
        """)
        for u in range(4):
            if isK: p(f"buffer_load_dwordx4 v{vKo+u}, s[{rK}:{rK+3}], s{sT0} offen offset:{u*1024}{NT} lds")
            else:   p(f"buffer_load_dwordx4 v{vVo}, s[{rV}:{rV+3}], s{sT0} offen offset:{u*1024}{NT} lds")
        vissue(('P', n), 4)
    def wo_srd():
        p(f"""
        s_mul_i32 s{sT0}, s{sXc}, {512*1152}
        s_mul_i32 s{sT1}, s{sJj}, 288
        s_add_u32 s{sT0}, s{sT0}, s{sT1}
        s_add_u32 s{rW}, s{sWo}, s{sT0}
        s_addc_u32 s{rW+1}, s{sWo+1}, 0
        s_sub_u32 s{rW+2}, {4096*1152}, s{sT0}
        s_mov_b32 s{rW+3}, 0x20000
        """)
    def early_group(G):
        base = wo_addr(G)
        p(f"""
        s_lshl_b32 s{sT1}, s{sLw}, 10
        s_add_u32 m0, s{sT1}, {base}
        s_mov_b32 s{sT0}, {G*36864}
        buffer_load_dwordx4 v{vWoA}, s[{rW}:{rW+3}], s{sT0} offen lds
        s_add_u32 m0, s{sT1}, {base+4096}
        s_cmp_eq_u32 s{sLw}, 0
        buffer_load_dwordx4 v{vWoB}, s[{rW}:{rW+3}], s{sT0} offen lds
        """)
        l = nl('EG')
        p(f"s_cbranch_scc0 {l}")
        p(f"s_mov_b32 m0, {base+8192}")
        p(f"buffer_load_dwordx4 v{vWoC}, s[{rW}:{rW+3}], s{sT0} offen lds")
        p.label(l)
        vissue(('G', G), 2)
    def wo_touch():
        l = nl('WOT')
        p(f"""
        s_cmp_eq_u32 s{sWave}, 6
        s_cbranch_scc0 {l}
        s_mul_i32 s{sT0}, s{sXc}, {512*1152}
        s_add_u32 s{rX}, s{sWo}, s{sT0}
        s_addc_u32 s{rX+1}, s{sWo+1}, 0
        s_mov_b32 s{rX+2}, {512*1152}
        s_mov_b32 s{rX+3}, 0x20000
        s_lshr_b32 s{sT0}, s2, 3
        s_mul_i32 s{sT0}, s{sT0}, 18432
        v_lshlrev_b32 v2, 7, v{vL}
        buffer_load_dword v{vDum}, v2, s[{rX}:{rX+3}], s{sT0} offen
        s_add_u32 s{sT0}, s{sT0}, 8192
        buffer_load_dword v{vDum}, v2, s[{rX}:{rX+3}], s{sT0} offen
        s_add_u32 s{sT0}, s{sT0}, 8192
        v_cmp_gt_u32 vcc, 16, v{vL}
        s_and_saveexec_b64 s[58:59], vcc
        buffer_load_dword v{vDum}, v2, s[{rX}:{rX+3}], s{sT0} offen
        s_mov_b64 exec, s[58:59]
        """)
        p.label(l)

    for c in range(9):
        p(f"s_waitcnt vmcnt({vneed(('C', c))})")
        bar('l')
        if c == 0: stamp(p, o, 1)
        if 1 <= c <= 5: issue_chunk(c + 3)
        if c == o.kdel: issue_pos(0); issue_pos(1)
        if c == o.kdel + 1: issue_pos(2); issue_pos(3)
    bar('l')
    for n in range(4, LEAD): issue_pos(n)
    bar('l')
    p(f"s_waitcnt vmcnt({vneed(('P', 0))})")
    bar('l')
    issue_pos(LEAD)
    p(f"s_waitcnt vmcnt({vneed(('P', 1))})")
    bar('l')
    issue_pos(LEAD + 1)
    VQ = {0: list(vq), 1: list(vq)}
    def need_in(q, tag):
        idx = [i for i, t in enumerate(q) if t == tag]
        if not idx: return 63
        n = len(q) - 1 - idx[-1]
        del q[:idx[-1] + 1]
        return min(n, 63)
    Wa, Wb = [], []
    pars = (0, 1) if o.skew else (0,)
    for i in range(NR):
        Wa.append(min(need_in(VQ[q], ('P', 2 * i + 2)) for q in pars))
        for q in pars: VQ[q].extend([('P', 2 * i + 2 + LEAD + q)] * 4)
        Wb.append(min(need_in(VQ[q], ('P', 2 * i + 3)) for q in pars))
        for q in pars: VQ[q].extend([('P', 2 * i + 3 + LEAD - q)] * 4)
    wa, wb = min(Wa), min(Wb)
    print('loader loop waits', Wa, Wb, file=sys.stderr)
    p(f"""
    s_and_b32 s{sPar}, s{sH}, {1 if o.skew else 0}
    s_mov_b32 s{sIss}, {S_[(2+LEAD) % NSLOT]}
    s_mov_b32 s{sIssB}, {S_[(3+LEAD) % NSLOT]}
    s_add_u32 s{sVoff}, s{sGof}, {HL*TS}
    s_and_b32 s{sVoff}, s{sVoff}, {MASK}
    s_or_b32 s{sVoff}, s{sVoff}, s{sHalf}
    s_add_u32 s{sKoff}, s{sGof}, {(2+HL)*TS}
    s_and_b32 s{sKoff}, s{sKoff}, {MASK}
    s_or_b32 s{sKoff}, s{sKoff}, s{sHalf}
    s_mov_b32 s{sCnt}, 0
    """)
    for u in range(4):
        p(f"v_mov_b32 v{vOa+u}, v{vVo}")
        p(f"v_mov_b32 v{vOb+u}, v{vKo+u}")
    if o.skew:
        p(f"""
        s_cmp_eq_u32 s{sPar}, 0
        s_cbranch_scc1 K1_PAR0
        s_mov_b32 s{sIss}, {S_[1]}
        s_mov_b32 s{sIssB}, {S_[0]}
        s_add_u32 s{sVoff}, s{sGof}, {6*8192}
        s_add_u32 s{sKoff}, s{sGof}, {4*8192}
        s_mov_b32 s{sT0}, s{rK}
        s_mov_b32 s{sT1}, s{rK+1}
        s_mov_b32 s{rK}, s{rV}
        s_mov_b32 s{rK+1}, s{rV+1}
        s_mov_b32 s{rV}, s{sT0}
        s_mov_b32 s{rV+1}, s{sT1}
        """)
        for u in range(4):
            p(f"v_mov_b32 v{vOa+u}, v{vKo+u}")
            p(f"v_mov_b32 v{vOb+u}, v{vVo}")
        p.label("K1_PAR0")
    def adv_iss(sreg):
        p(f"""
        s_add_u32 s{sreg}, s{sreg}, {2*SLOT}
        s_cmp_ge_u32 s{sreg}, {NSLOT*SLOT}
        s_cselect_b32 s{sT0}, {NSLOT*SLOT}, 0
        s_sub_u32 s{sreg}, s{sreg}, s{sT0}
        """)
    p.label("K1_LLOOP")
    p(f"s_waitcnt vmcnt({wa})")
    p("s_barrier")
    p(f"s_add_u32 m0, s{sIss}, s{sL4096}")
    for u in range(4):
        p(f"buffer_load_dwordx4 v{vOa+u}, s[{rV}:{rV+3}], s{sVoff} offen offset:{u*1024}{NT} lds")
    adv_iss(sIss)
    p(f"s_add_u32 s{sVoff}, s{sVoff}, {TS}")
    p(f"s_and_b32 s{sVoff}, s{sVoff}, {MASK}")
    p(f"s_or_b32 s{sVoff}, s{sVoff}, s{sHalf}")
    p(f"s_waitcnt vmcnt({wb})")
    p("s_barrier")
    p(f"s_add_u32 m0, s{sIssB}, s{sL4096}")
    for u in range(4):
        p(f"buffer_load_dwordx4 v{vOb+u}, s[{rK}:{rK+3}], s{sKoff} offen offset:{u*1024}{NT} lds")
    adv_iss(sIssB)
    p(f"s_add_u32 s{sKoff}, s{sKoff}, {TS}")
    p(f"s_and_b32 s{sKoff}, s{sKoff}, {MASK}")
    p(f"s_or_b32 s{sKoff}, s{sKoff}, s{sHalf}")
    l = nl('WTT')
    p(f"s_cmp_eq_u32 s{sCnt}, {o.wotat}")
    p(f"s_cbranch_scc0 {l}")
    wo_touch()
    p.label(l)
    p(f"""
    s_add_u32 s{sCnt}, s{sCnt}, 1
    s_cmp_lt_u32 s{sCnt}, {NR}
    s_cbranch_scc1 K1_LLOOP
    """)
    nbar['l'] += 2 * NR
    if o.skew:
        p(f"""
        s_cmp_eq_u32 s{sPar}, 0
        s_cbranch_scc1 K1_PAR2
        s_mov_b32 s{sT0}, s{rK}
        s_mov_b32 s{sT1}, s{rK+1}
        s_mov_b32 s{rK}, s{rV}
        s_mov_b32 s{rK+1}, s{rV+1}
        s_mov_b32 s{rV}, s{sT0}
        s_mov_b32 s{rV+1}, s{sT1}
        """)
        p.label("K1_PAR2")
    wo_srd()
    p(f"""
    s_cmp_eq_u32 s{sWave}, 7
    s_cbranch_scc0 K1_NL
    v_mov_b32 v8, 0
    global_load_dwordx2 v[{vNon}:{vNon+1}], v8, s[{sDbg}:{sDbg+1}] sc1
    """)
    p.label("K1_NL")
    sched0 = {('a', 11): [0], ('b', 11): [1, 2], ('a', 12): [3, 4], ('b', 12): [5, 6], ('a', 13): [7], ('b', 13): [8, 9], ('a', 14): [10, 11]}
    lastv = 15 - HL
    order = [(t, i) for i in range(10, 15) for t in ('a', 'b')]
    sched = {}
    for key in order:
        for G in sched0.get(key, []):
            k2 = key
            if (key[1], key[0]) < (lastv, 'a'): k2 = ('a', lastv)
            sched.setdefault(k2, []).append(G)
    def issue_pos_par(n, par):
        if par is None or not o.skew:
            sv = list(vq); issue_pos(n); del vq[:]; vq.extend(sv)
            for q in pars: VQ[q].extend([('P', n)] * 4)
            return
        l = nl('IP')
        p(f"s_cmp_eq_u32 s{sPar}, {par}")
        p(f"s_cbranch_scc0 {l}")
        sv = list(vq); issue_pos(n); del vq[:]; vq.extend(sv)
        p.label(l)
        VQ[par].extend([('P', n)] * 4)
    def eg(G):
        sv = list(vq); early_group(G); del vq[:]; vq.extend(sv)
        for q in pars: VQ[q].extend([('G', G)] * 2)
    for i in range(NR, 16):
        p(f"s_waitcnt vmcnt({min(need_in(VQ[q], ('P', 2 * i + 2)) for q in pars)})")
        bar('l')
        if i + HL <= 15: issue_pos_par(2 * i + 2 + LEAD, 0 if o.skew else None)
        if not (o.skew and i == 11):
            for G in sched.get(('a', i), []):
                if G < NEARLY: eg(G)
        if i <= 13:
            p(f"s_waitcnt vmcnt({min(need_in(VQ[q], ('P', 2 * i + 3)) for q in pars)})")
            bar('l')
            if o.skew and i <= 11: issue_pos_par(2 * i + 10, 1)
            if o.skew and i == 11:
                for G in sched.get(('a', i), []):
                    if G < NEARLY: eg(G)
            for G in sched.get(('b', i), []):
                if G < NEARLY: eg(G)
    p(f"""
    s_mov_b32 s{rO}, s{sWs}
    s_mov_b32 s{rO+1}, s{sWs+1}
    s_mov_b32 s{rO+2}, {WS_SIZE}
    s_mov_b32 s{rO+3}, 0x20000
    """)
    bar('l')
    p(f"""
    s_cmp_eq_u32 s{sWave}, 7
    s_cbranch_scc0 K1_NON2
    s_waitcnt vmcnt(0)
    s_mov_b32 s{sT2}, 0
    """)
    p.label("K1_NONP")
    p(f"""
    v_readfirstlane_b32 s{sT0}, v{vNon}
    s_add_u32 s{sT2}, s{sT2}, 1
    s_cmp_lg_u32 s{sT0}, 0
    s_cbranch_scc1 K1_NONOK
    s_cmp_lt_u32 s{sT2}, {SPIN}
    s_cbranch_scc0 K1_NONOK
    v_mov_b32 v8, 0
    global_load_dwordx2 v[{vNon}:{vNon+1}], v8, s[{sDbg}:{sDbg+1}] sc1
    s_waitcnt vmcnt(0)
    s_branch K1_NONP
    """)
    p.label("K1_NONOK")
    p(f"""
    v_mov_b32 v6, {NONL}
    ds_write_b64 v6, v[{vNon}:{vNon+1}]
    s_and_b32 s{sT0}, s{sWg}, 0xfc
    s_lshl_b32 s{sT0}, s{sT0}, 7
    s_add_u32 s{sT0}, s{sT0}, {WS_FLAG}
    v_and_b32 v12, 3, v{vL}
    v_lshlrev_b32 v13, 7, v12
    buffer_load_dword v11, v13, s[{rO}:{rO+3}], s{sT0} offen sc1
    s_waitcnt lgkmcnt(0)
    """)
    p.label("K1_NON2")
    bar('l')
    p(f"""
    v_mov_b32 v6, {NONL}
    ds_read_b64 v[8:9], v6
    s_cmp_eq_u32 s{sWave}, 7
    s_cbranch_scc0 K1_RDY
    s_waitcnt vmcnt(0)
    v_cmp_eq_u32 vcc, v11, v{vNon}
    v_cmp_eq_u32 s[58:59], s{sJj}, v12
    s_or_b64 vcc, vcc, s[58:59]
    s_cmp_eq_u64 vcc, -1
    s_cselect_b32 s{sT0}, {1 if o.fast else 0}, 0
    v_mov_b32 v12, s{sT0}
    v_mov_b32 v6, {NONL+8}
    ds_write_b32 v6, v12
    """)
    p.label("K1_RDY")
    if o.e3:
        bar('l')
        for G in range(NEARLY, 16): early_group(G)
    p("s_branch K1_TAIL")

    p.label("K1_COMPUTE")
    p(f"""
    s_and_b32 s{sQh}, s{sWave}, 1
    s_lshr_b32 s{sKh}, s{sWave}, 1
    s_mov_b32 s{sC}, 0x{f32bits(SCALE_LOG2E):08x}
    v_lshl_add_u32 v8, v6, 3, v4
    v_lshlrev_b32 v8, 8, v8
    v_lshrrev_b32 v9, 1, v5
    v_lshl_add_u32 v8, v9, 3, v8
    v_and_b32 v9, 1, v3
    v_lshlrev_b32 v9, 1, v9
    v_and_b32 v2, 1, v5
    v_add_u32 v9, v9, v2
    v_lshlrev_b32 v2, 2, v4
    s_lshl_b32 s{sT0}, s{sKh}, 3
    """)
    for a in range(2):
        p(f"""
        v_add_u32 v19, s{sT0}, v9
        v_xor_b32 v19, v19, v2
        v_lshl_add_u32 v{vLW+a}, v19, 4, v8
        s_add_u32 s{sT0}, s{sT0}, 4
        """)
    p(f"""
    s_lshl_b32 s{sT0}, s{sQh}, 5
    v_add_u32 v8, s{sT0}, v7
    v_lshrrev_b32 v9, 1, v8
    v_and_b32 v9, 7, v9
    v_xor_b32 v9, v9, v6
    v_lshlrev_b32 v9, 4, v9
    v_lshl_add_u32 v{vLX}, v8, 7, v9
    s_lshl_b32 s{sT0}, s{sKh}, 5
    v_add_u32 v8, s{sT0}, v7
    v_and_b32 v9, 15, v8
    v_xor_b32 v9, v9, v6
    v_lshlrev_b32 v9, 4, v9
    v_lshl_add_u32 v{vLK}, v8, 8, v9
    v_lshl_add_u32 v8, v6, 2, v4
    v_add_u32 v8, s{sT0}, v8
    v_lshlrev_b32 v8, 8, v8
    v_and_b32 v9, 1, v5
    v_lshl_add_u32 v8, v9, 3, v8
    v_and_b32 v9, 1, v3
    v_lshlrev_b32 v9, 1, v9
    v_lshrrev_b32 v2, 1, v5
    v_add_u32 v9, v9, v2
    v_lshlrev_b32 v2, 2, v4
    """)
    for a in range(4):
        p(f"""
        s_lshl_b32 s{sT1}, s{sKh}, 1
        s_add_u32 s{sT1}, s{sT1}, {a}
        s_and_b32 s{sT1}, s{sT1}, 3
        s_lshl_b32 s{sT1}, s{sT1}, 2
        v_add_u32 v19, s{sT1}, v9
        v_xor_b32 v19, v19, v2
        v_lshl_add_u32 v{vLV+a}, v19, 4, v8
        """)
    for i in range(32):
        p(f"v_mov_b32 v{vS[0]+i}, 0")
    p(f"""
    v_mov_b32 v{vM}, 0xf149f2ca
    v_mov_b32 v{vThr}, 0xf149f2ca
    v_mov_b32 v{vL0}, 0
    v_mov_b32 v{vL1}, 0
    """)
    def wo_voffs():
        p(f"""
        s_movk_i32 s{sT0}, 3641
        s_movk_i32 s{sT1}, 1152
        """)
        for i in range(9):
            p(f"""
            v_add_u32 v2, {64*i}, v{vL}
            v_mul_u32_u24 v3, s{sT0}, v2
            v_lshrrev_b32 v3, 16, v3
            v_mul_u32_u24 v4, 18, v3
            v_sub_u32 v4, v2, v4
            v_mul_u32_u24 v3, s{sT1}, v3
            v_lshl_add_u32 v3, v4, 4, v3
            v_subrev_u32 v{vOff+i}, {(i%4)*1024}, v3
            """)
    wo_voffs()
    p("s_waitcnt lgkmcnt(0)")
    stamp(p, o, 0)
    A0 = vKA
    def q_phase(c, reads):
        f = QB[(c - 1) % 2]
        rd = list(reads)
        for ks in range(4):
            for a in range(2):
                if c >= 1:
                    p(f"{MF} {rg(vS[a],16)}, {rg(f+12*ks+4*a,4)}, {rg(f+12*ks+8,4)}, {rg(vS[a],16)}")
                for _ in range(3 if a == 0 else 2):
                    if rd: p(rd.pop(0))
        for r_ in rd: p(r_)
    for c in range(9):
        qs = QS[c % 4]
        f = QB[c % 2]
        p(f"""
        v_add_u32 v{A0}, {qs}, v{vLW}
        v_add_u32 v{A0+1}, {qs}, v{vLW+1}
        v_add_u32 v{A0+2}, {qs+16384}, v{vLX}
        v_xor_b32 v{A0+3}, 32, v{A0+2}
        v_xor_b32 v{A0+4}, 64, v{A0+2}
        v_xor_b32 v{A0+5}, 96, v{A0+2}
        s_waitcnt lgkmcnt(0)
        """)
        bar('c')
        if c == 0: stamp(p, o, 1)
        reads = []
        for ks in range(4):
            for a in range(2):
                reads.append(f"ds_read_b64_tr_b16 {rg(f+12*ks+4*a,2)}, v{A0+a} offset:{ks*4096}")
                reads.append(f"ds_read_b64_tr_b16 {rg(f+12*ks+4*a+2,2)}, v{A0+a} offset:{ks*4096+1024}")
            reads.append(f"ds_read_b128 {rg(f+12*ks+8,4)}, v{A0+2+ks}")
        q_phase(c, reads)
    p("s_waitcnt lgkmcnt(0)")
    bar('c')
    q_phase(9, [])
    stamp(p, o, 2)
    p(f"""
    s_lshl_b32 s{sT0}, s{sQh}, 13
    s_add_u32 s{sT0}, s{sT0}, {QX}
    s_lshl_b32 s{sT1}, s{sKh}, 12
    s_add_u32 s{sT1}, s{sT1}, s{sT0}
    v_lshlrev_b32 v2, 4, v{vL}
    v_add_u32 v3, s{sT1}, v2
    v_add_u32 v2, s{sT0}, v2
    """)
    p(f"v_mov_b32 v{vKA}, v{vLK}")
    for s in range(1, 8):
        p(f"v_xor_b32 v{vKA+s}, {s<<5}, v{vLK}")
    for i in range(64):
        p(f"v_mov_b32 v{vO+i}, 0")
    for a in range(2):
        for j in range(8):
            p(f"v_cvt_pk_bf16_f32 v{vVf+8*a+j}, v{vS[a]+2*j}, v{vS[a]+2*j+1}")
    for k in range(4):
        p(f"ds_write_b128 v3, {rg(vVf+4*k,4)} offset:{k*1024}")
    p("s_waitcnt lgkmcnt(0)")
    bar('c')
    for s in range(8):
        p(f"ds_read_b128 {rg(vQ+4*s,4)}, v2 offset:{s*1024}")

    def k_addrs(sreg):
        p(f"v_add_u32 v{vKA}, s{sreg}, v{vLK}")
        for s in range(1, 8):
            p(f"v_xor_b32 v{vKA+s}, {s<<5}, v{vKA}")
    def v_addrs(sreg):
        for a in range(4):
            p(f"v_add_u32 v{vVA+a}, s{sreg}, v{vLV+a}")
    def adv2(s):
        p(f"""
        s_add_u32 s{s}, s{s}, {2*SLOT}
        s_cmp_ge_u32 s{s}, {NSLOT*SLOT}
        s_cselect_b32 s{sT0}, {NSLOT*SLOT}, 0
        s_sub_u32 s{s}, s{s}, s{sT0}
        """)
    def tmax(S):
        p(f"""
        v_max3_f32 v2, v{S}, v{S+1}, v{S+2}
        v_max3_f32 v3, v{S+3}, v{S+4}, v{S+5}
        v_max3_f32 v2, v2, v{S+6}, v{S+7}
        v_max3_f32 v3, v3, v{S+8}, v{S+9}
        v_max3_f32 v2, v2, v{S+10}, v{S+11}
        v_max3_f32 v3, v3, v{S+12}, v{S+13}
        v_max3_f32 v2, v2, v{S+14}, v{S+15}
        v_max_f32 v2, v2, v3
        v_mov_b32 v3, v2
        s_nop 1
        v_permlane32_swap_b32 v2, v3
        v_max_f32 v2, v2, v3
        v_mul_f32 v{vTn}, s{sC}, v2
        """)
    p("s_waitcnt lgkmcnt(0)")
    bar('c')
    stamp(p, o, 3)
    for s in range(8):
        p(f"ds_read_b128 {rg(vKf+4*s,4)}, v{vKA+s}")
    p(f"s_mov_b32 s{sRK}, {S_[1]}")
    k_addrs(sRK)
    p("s_waitcnt lgkmcnt(0)")
    bar('c')
    for s in range(8):
        c = '0' if s == 0 else rg(vS[0], 16)
        p(f"{MF} {rg(vS[0],16)}, {rg(vKf+4*s,4)}, {rg(vQ+4*s,4)}, {c}")
    for s in range(8):
        p(f"ds_read_b128 {rg(vKf+4*s,4)}, v{vKA+s}")
    p(f"""
    s_mov_b32 s{sRV}, {S_[2]}
    s_mov_b32 s{sRK}, {S_[3]}
    s_mov_b32 s{sCnt}, 0
    """)
    v_addrs(sRV)
    k_addrs(sRK)
    tmax(vS[0])

    def alpha(tag, cur, do_qk):
        S, Sn = vS[cur], vS[1 - cur]
        p("s_waitcnt lgkmcnt(0)")
        p("s_barrier")
        p(f"""
        v_cmp_gt_f32 vcc, v{vTn}, v{vThr}
        s_cbranch_vccnz K1_RS{tag}
        """)
        p.label(f"K1_BK{tag}")
        reads = [(a, ks, h) for a in range(4) for ks in range(2) for h in range(2)]
        for j in range(8):
            if do_qk:
                c = '0' if j == 0 else rg(Sn, 16)
                p(f"{MF} {rg(Sn,16)}, {rg(vKf+4*j,4)}, {rg(vQ+4*j,4)}, {c}")
            for (a, ks, h) in reads[2*j:2*j+2]:
                f = vVf + (a * 2 + ks) * 4 + 2 * h
                p(f"ds_read_b64_tr_b16 {rg(f,2)}, v{vVA+a} offset:{ks*4096+h*2048}")
            p(f"v_fma_f32 v{S+2*j}, v{S+2*j}, s{sC}, -v{vM}")
            p(f"v_fma_f32 v{S+2*j+1}, v{S+2*j+1}, s{sC}, -v{vM}")
            p(f"v_exp_f32 v{S+2*j}, v{S+2*j}")
            p(f"v_exp_f32 v{S+2*j+1}, v{S+2*j+1}")
            if j >= 1:
                k = j - 1
                p(f"v_cvt_pk_bf16_f32 v{vP+k}, v{S+2*k}, v{S+2*k+1}")
                p(f"v_add_f32 v{vL0}, v{vL0}, v{S+2*k}")
                p(f"v_add_f32 v{vL1}, v{vL1}, v{S+2*k+1}")
        p(f"v_cvt_pk_bf16_f32 v{vP+7}, v{S+14}, v{S+15}")
        p(f"v_add_f32 v{vL0}, v{vL0}, v{S+14}")
        p(f"v_add_f32 v{vL1}, v{vL1}, v{S+15}")

    def beta(tag, cur, read_k, do_tmax, barrier=True):
        Sn = vS[1 - cur]
        p("s_waitcnt lgkmcnt(0)")
        if barrier: p("s_barrier")
        n = 0
        for a in range(4):
            for ks in range(2):
                f = vVf + (a * 2 + ks) * 4
                p(f"{MF} {rg(vO+16*a,16)}, {rg(f,4)}, {rg(vP+4*ks,4)}, {rg(vO+16*a,16)}")
                if read_k:
                    p(f"ds_read_b128 {rg(vKf+4*n,4)}, v{vKA+n}")
                if n == 0:
                    adv2(sRV); adv2(sRK)
                if n == 1 and do_tmax:
                    tmax(Sn)
                if n == 3: v_addrs(sRV)
                n += 1
        k_addrs(sRK)

    def rescale(tag):
        p.label(f"K1_RS{tag}")
        p(f"""
        v_max_f32 v3, v{vTn}, v{vM}
        v_sub_f32 v4, v{vM}, v3
        v_exp_f32 v4, v4
        v_mov_b32 v{vM}, v3
        v_add_f32 v{vThr}, 0x41000000, v3
        """)
        p(f"v_mul_f32 v{vL0}, v{vL0}, v4")
        p(f"v_mul_f32 v{vL1}, v{vL1}, v4")
        for i in range(64):
            p(f"v_mul_f32 v{vO+i}, v{vO+i}, v4")
        p(f"s_branch K1_BK{tag}")

    p.label("K1_LOOP")
    alpha('L0', 0, True)
    beta('L0', 0, True, True)
    alpha('L1', 1, True)
    beta('L1', 1, True, True)
    p(f"""
    s_add_u32 s{sCnt}, s{sCnt}, 1
    s_cmp_lt_u32 s{sCnt}, 7
    s_cbranch_scc1 K1_LOOP
    """)
    nbar['c'] += 28
    stamp(p, o, 4)
    alpha('A', 0, True); nbar['c'] += 1
    beta('A', 0, False, True, barrier=False)
    alpha('B', 1, False); nbar['c'] += 1
    p("s_waitcnt lgkmcnt(0)")
    for a in (2, 3, 0, 1):
        for ks in range(2):
            f = vVf + (a * 2 + ks) * 4
            p(f"{MF} {rg(vO+16*a,16)}, {rg(f,4)}, {rg(vP+4*ks,4)}, {rg(vO+16*a,16)}")
    stamp(p, o, 5)
    vS0 = vS[0]
    p(f"""
    v_add_f32 v{vL0}, v{vL0}, v{vL1}
    v_mov_b32 v{vL1}, v{vL0}
    s_nop 1
    v_permlane32_swap_b32 v{vL0}, v{vL1}
    v_add_f32 v{vThr}, v{vL0}, v{vL1}
    v_and_b32 v7, 31, v{vL}
    v_lshlrev_b32 v7, 3, v7
    s_lshl_b32 s{sT0}, s{sWave}, 8
    s_add_u32 s{sT0}, s{sT0}, {STAT}
    s_xor_b32 s{sT1}, s{sWave}, 2
    s_lshl_b32 s{sT1}, s{sT1}, 8
    s_add_u32 s{sT1}, s{sT1}, {STAT}
    v_add_u32 v2, s{sT0}, v7
    v_add_u32 v7, s{sT1}, v7
    v_lshlrev_b32 v3, 4, v{vL}
    s_xor_b32 s{sT1}, s{sWave}, 2
    s_lshl_b32 s{sT1}, s{sT1}, 13
    s_add_u32 s{sT1}, s{sT1}, {EX}
    s_lshl_b32 s{sT0}, s{sWave}, 13
    s_add_u32 s{sT0}, s{sT0}, {EX}
    v_add_u32 v4, s{sT1}, v3
    v_add_u32 v5, s{sT0}, v3
    s_mov_b32 s{rO}, s{sWs}
    s_mov_b32 s{rO+1}, s{sWs+1}
    s_mov_b32 s{rO+2}, {WS_SIZE}
    s_mov_b32 s{rO+3}, 0x20000
    """)
    wo_srd()
    bar('c')
    stamp(p, o, 'e1')
    p(f"ds_write_b64 v2, v[{vM}:{vM+1}]")
    for a in (2, 3):
        for g in range(4):
            p(f"ds_write_b128 v4, {rg(vO+16*a+4*g,4)} offset:{(a-2)*4096+g*1024}")
    p("s_waitcnt lgkmcnt(0)")
    stamp(p, o, 'e2')
    bar('c')
    stamp(p, o, 'e3')
    p(f"ds_read_b64 v[{vS0}:{vS0+1}], v7")
    for a in range(2):
        for g in range(4):
            p(f"ds_read_b128 {rg(vO+32+16*a+4*g,4)}, v5 offset:{a*4096+g*1024}")
    p(f"""
    v_mov_b32 v6, {NONL}
    ds_read_b64 v[8:9], v6
    s_waitcnt lgkmcnt(9)
    v_max_f32 v2, v{vM}, v{vS0}
    v_sub_f32 v3, v{vM}, v2
    v_sub_f32 v4, v{vS0}, v2
    v_exp_f32 v3, v3
    v_exp_f32 v4, v4
    v_mul_f32 v5, v3, v{vThr}
    v_fmac_f32 v5, v4, v{vS0+1}
    v_rcp_f32 v6, v5
    v_mul_f32 v3, v3, v6
    v_mul_f32 v4, v4, v6
    """)
    for i in range(32):
        p(f"v_mul_f32 v{vO+i}, v{vO+i}, v3")
    for a in range(2):
        p(f"s_waitcnt lgkmcnt({5-4*a})")
        for i in range(16):
            p(f"v_fmac_f32 v{vO+16*a+i}, v{vO+32+16*a+i}, v4")
    if o.e3:
        bar('c')
    order = [0, 2, 1, 3]
    for a in range(2):
        for idx, g in enumerate(order):
            p(f"v_cvt_pk_bf16_f32 v{vKf+8*a+2*idx}, v{vO+16*a+4*g}, v{vO+16*a+4*g+1}")
            p(f"v_cvt_pk_bf16_f32 v{vKf+8*a+2*idx+1}, v{vO+16*a+4*g+2}, v{vO+16*a+4*g+3}")
    stamp(p, o, 'e4')
    p(f"""
    v_and_b32 v2, 15, v{vL}
    v_lshrrev_b32 v3, 5, v{vL}
    v_lshl_add_u32 v2, v3, 4, v2
    v_lshlrev_b32 v2, 4, v2
    v_bfe_u32 v3, v{vL}, 4, 1
    v_lshl_add_u32 v2, v3, 12, v2
    s_lshl_b32 s{sT0}, s{sWg}, 14
    s_lshl_b32 s{sT1}, s{sQh}, 13
    s_add_u32 s{sT0}, s{sT0}, s{sT1}
    s_lshl_b32 s{sT1}, s{sKh}, 11
    s_add_u32 s{sT0}, s{sT0}, s{sT1}
    """)
    for a in range(2):
        p(f"buffer_store_dwordx4 {rg(vKf+8*a,4)}, v2, s[{rO}:{rO+3}], s{sT0} offen offset:{a*1024} sc1")
        p(f"buffer_store_dwordx4 {rg(vKf+8*a+4,4)}, v2, s[{rO}:{rO+3}], s{sT0} offen offset:{a*1024+512} sc1")
    assert nbar['c'] == nbar['l'], nbar
    print('barriers', nbar, file=sys.stderr)
    p.label("K1_TAIL")
    if o.prio: p("s_setprio 0")
    tail(p, o, locals())
    for tag in ('L0', 'L1', 'A', 'B'):
        rescale(tag)
    p.label("K1_END")
    p("s_endpgm")
    return p

def tail(p, o, L):
    g = lambda n: L[n]
    sWave, sB, sXc, sJj, sWg, sT0, sT1, sT2 = g('sWave'), g('sB'), g('sXc'), g('sJj'), g('sWg'), g('sT0'), g('sT1'), g('sT2')
    rO, rW, rX, sN, sTag, sOut, sWs = g('rO'), g('rW'), g('rX'), g('sN'), g('sTag'), g('sOut'), g('sWs')
    vL, vOff, wo_addr, NEARLY, NONL, wo_voffs = g('vL'), g('vOff'), g('wo_addr'), g('NEARLY'), g('NONL'), g('wo_voffs')
    sQt, sKh2 = 40, 41
    vAcc, vB, vF, vLA, vAd = 28, 64, 96, 19, 20
    sFast = 52
    p(f"""
    s_cmp_lt_u32 s{sWave}, 4
    s_cbranch_scc0 T_E4L
    s_waitcnt vmcnt(0) lgkmcnt(0)
    s_branch T_E4
    """)
    p.label("T_E4L")
    p("s_waitcnt lgkmcnt(0)")
    p.label("T_E4")
    p(f"""
    v_readfirstlane_b32 s{sN}, v8
    v_readfirstlane_b32 s{sN+1}, v9
    s_barrier
    """)
    if o.stamps: stamp(p, o, 6)
    def b_loads():
        p(f"""
        s_and_b32 s{sT0}, s{sWg}, 0xfc
        s_lshl_b32 s{sT1}, s{sKh2}, 1
        s_add_u32 s{sT0}, s{sT0}, s{sT1}
        s_lshl_b32 s{sT0}, s{sT0}, 14
        s_lshl_b32 s{sT1}, s{sQt}, 12
        s_add_u32 s{sT0}, s{sT0}, s{sT1}
        s_add_u32 s{sT1}, s{sT0}, 16384
        """)
        for kk in range(8):
            p(f"buffer_load_dwordx4 {rg(vB+4*kk,4)}, v5, s[{rO}:{rO+3}], s{sT0 if kk < 4 else sT1} offen offset:{(kk&3)*1024} sc1")
    p(f"""
    s_and_b32 s{sQt}, s{sWave}, 3
    s_lshr_b32 s{sKh2}, s{sWave}, 2
    v_lshlrev_b32 v5, 4, v{vL}
    v_mov_b32 v6, {NONL+8}
    ds_read_b32 v12, v6
    s_cmp_eq_u32 s{sWave}, 7
    s_cbranch_scc0 T_F0
    v_mov_b32 v9, s{sN}
    s_lshl_b32 s{sT0}, s{sWg}, 7
    s_add_u32 s{sT0}, s{sT0}, {WS_FLAG}
    v_mov_b32 v3, 0
    v_cmp_eq_u32 vcc, 0, v{vL}
    s_and_saveexec_b64 s[58:59], vcc
    buffer_store_dword v9, v3, s[{rO}:{rO+3}], s{sT0} offen sc1
    s_mov_b64 exec, s[58:59]
    """)
    p.label("T_F0")
    p(f"""
    s_waitcnt lgkmcnt(0)
    v_readfirstlane_b32 s{sFast}, v12
    s_cmp_eq_u32 s{sFast}, 0
    s_cbranch_scc1 T_SLOW
    """)
    b_loads()
    p.label("T_SLOW")
    p(f"""
    s_cmp_eq_u32 s{sWave}, 7
    s_cbranch_scc0 T_NOFLAG
    s_cmp_eq_u32 s{sFast}, 0
    s_cbranch_scc0 T_SETUP
    s_and_b32 s{sT0}, s{sWg}, 0xfc
    s_lshl_b32 s{sT0}, s{sT0}, 7
    s_add_u32 s{sT0}, s{sT0}, {WS_FLAG}
    v_and_b32 v8, 3, v{vL}
    v_lshlrev_b32 v8, 7, v8
    s_mov_b32 s{sT1}, 0
    buffer_load_dword v10, v8, s[{rO}:{rO+3}], s{sT0} offen sc1
    buffer_load_dword v11, v8, s[{rO}:{rO+3}], s{sT0} offen sc1
    """)
    p("s_branch T_SETUP")
    p.label("T_NOFLAG")
    p.label("T_SETUP")
    if not o.e3:
        p("s_barrier")
        nlate = 16 - NEARLY
        p(f"""
        s_cmp_lt_u32 s{sWave}, {min(nlate, 4)}
        s_cbranch_scc0 T_NOLATE
        """)
        for rep in range((nlate + 3) // 4):
            if rep > 0:
                p(f"s_cmp_lt_u32 s{sWave}, {nlate - 4*rep}")
                p("s_cbranch_scc0 T_NOLATE")
            p(f"s_add_u32 s{sT2}, s{sWave}, {NEARLY + 4*rep}")
            p(f"""
            s_mul_i32 s{sT1}, s{sT2}, 9216
            s_add_u32 s{sT0}, s{sT1}, 49152
            s_sub_u32 s{sT1}, s{sT1}, {12*9216}
            s_cmp_lt_u32 s{sT2}, 12
            s_cselect_b32 s{sT1}, s{sT0}, s{sT1}
            s_mul_i32 s{sT0}, s{sT2}, 36864
            """)
            for i in range(9):
                if i % 4 == 0:
                    p(f"s_add_u32 m0, s{sT1}, {(i//4)*4096}")
                p(f"buffer_load_dwordx4 v{vOff+i}, s[{rW}:{rW+3}], s{sT0} offen offset:{(i%4)*1024} lds")
    p.label("T_NOLATE")
    p(f"""
    v_lshrrev_b32 v2, 4, v{vL}
    v_and_b32 v3, 15, v{vL}
    v_lshrrev_b32 v4, 2, v3
    v_and_b32 v6, 3, v3
    v_lshl_add_u32 v2, v2, 2, v4
    v_mul_u32_u24 v2, 288, v2
    v_lshl_add_u32 v{vLA}, v6, 3, v2
    s_and_b32 s{sTag}, s{sN}, 0xfff
    s_lshr_b32 s{sTag+1}, s{sN}, 12
    s_and_b32 s{sTag+1}, s{sTag+1}, 0xfff
    s_lshr_b32 s{sTag+2}, s{sN}, 24
    s_lshl_b32 s{sT2}, s{sN+1}, 8
    s_or_b32 s{sTag+2}, s{sTag+2}, s{sT2}
    s_and_b32 s{sTag+2}, s{sTag+2}, 0xfff
    s_lshr_b32 s{sTag+3}, s{sN+1}, 4
    s_and_b32 s{sTag+3}, s{sTag+3}, 0xfff
    v_mov_b32 v7, 0xfffff000
    """)
    vTagHi = 22
    if o.pk:
        p(f"""
        s_lshl_b32 s{sTag}, s{sN}, 16
        s_and_b32 s{sTag+1}, s{sN}, 0xffff0000
        s_lshl_b32 s{sT2}, s{sN+1}, 16
        s_xor_b32 s{sTag+2}, s{sTag}, s{sT2}
        s_xor_b32 s{sTag+2}, s{sTag+2}, 0x5a5a0000
        s_xor_b32 s{sTag+3}, s{sTag+1}, s{sT2}
        s_xor_b32 s{sTag+3}, s{sTag+3}, 0xa5c30000
        v_and_b32 v3, 3, v{vL}
        v_mov_b32 v{vTagHi}, s{sTag}
        v_mov_b32 v4, s{sTag+1}
        v_cmp_eq_u32 vcc, 1, v3
        v_cndmask_b32 v{vTagHi}, v{vTagHi}, v4, vcc
        v_mov_b32 v4, s{sTag+2}
        v_cmp_eq_u32 vcc, 2, v3
        v_cndmask_b32 v{vTagHi}, v{vTagHi}, v4, vcc
        v_mov_b32 v4, s{sTag+3}
        v_cmp_eq_u32 vcc, 3, v3
        v_cndmask_b32 v{vTagHi}, v{vTagHi}, v4, vcc
        """)
    for i in range(36):
        p(f"v_mov_b32 v{vAcc+i}, 0")
    p(f"""
    s_cmp_eq_u32 s{sWave}, 7
    s_cbranch_scc0 T_NOPOLL
    s_cmp_eq_u32 s{sFast}, 0
    s_cbranch_scc0 T_NOPOLL
    s_and_b32 s{sT0}, s{sWg}, 0xfc
    s_lshl_b32 s{sT0}, s{sT0}, 7
    s_add_u32 s{sT0}, s{sT0}, {WS_FLAG}
    s_mov_b32 s{sT1}, 0
    """)
    p.label("T_POLL1")
    p(f"""
    s_waitcnt vmcnt(1)
    v_cmp_ne_u32 vcc, v10, v9
    s_cbranch_vccz T_NOPOLL
    buffer_load_dword v10, v8, s[{rO}:{rO+3}], s{sT0} offen sc1
    s_add_u32 s{sT1}, s{sT1}, 1
    s_waitcnt vmcnt(1)
    v_cmp_ne_u32 vcc, v11, v9
    s_cbranch_vccz T_NOPOLL
    buffer_load_dword v11, v8, s[{rO}:{rO+3}], s{sT0} offen sc1
    s_cmp_lt_u32 s{sT1}, {SPIN}
    s_cbranch_scc1 T_POLL1
    """)
    p.label("T_NOPOLL")
    p(f"""
    s_waitcnt vmcnt(0)
    s_barrier
    """)
    if o.stamps: stamp(p, o, 7)
    p(f"s_cmp_eq_u32 s{sFast}, 0")
    p("s_cbranch_scc0 T_BDONE")
    b_loads()
    p.label("T_BDONE")
    if o.gopt: gemm_opt(p, vAcc, vB, vF, vAd, vLA, sKh2, sT2, wo_addr)
    else: gen9.gemm_body(p, vAcc, vB, vF, vAd, vLA, sKh2, sT2, wo_addr, [0, 1, 2, 3, 4], [5, 6, 7, 8], True)
    if o.stamps: stamp(p, o, 8)
    p(f"""
    s_barrier
    s_mul_i32 s{sT0}, s{sQt}, 9216
    v_add_u32 v2, s{sT0}, v5
    s_cmp_eq_u32 s{sKh2}, 0
    s_cbranch_scc0 T_H1
    """)
    for nt in range(5, 9):
        p(f"ds_write_b128 v2, {rg(vAcc+4*nt,4)} offset:{nt*1024}")
    p("s_branch T_H2")
    p.label("T_H1")
    for nt in range(0, 5):
        p(f"ds_write_b128 v2, {rg(vAcc+4*nt,4)} offset:{nt*1024}")
    p.label("T_H2")
    p(f"""
    s_lshl_b32 s{sT0}, s{sXc}, 3
    s_add_u32 s{sT0}, s{sT0}, s{sB}
    s_lshl_b32 s{sT0}, s{sT0}, 2
    s_add_u32 s{sT0}, s{sT0}, s{sJj}
    s_lshl_b32 s{sT0}, s{sT0}, 2
    s_add_u32 s{sT0}, s{sT0}, s{sQt}
    """)
    if o.pk:
        p(f"""
        s_lshl_b32 s{sT0}, s{sT0}, 1
        s_add_u32 s{sT0}, s{sT0}, s{sKh2}
        s_mul_i32 s{sT0}, s{sT0}, 3072
        """)
    else:
        p(f"s_mul_i32 s{sT0}, s{sT0}, 9216")
    p(f"""
    s_add_u32 s{sT0}, s{sT0}, {WS_PART}
    s_waitcnt lgkmcnt(0)
    s_barrier
    s_cmp_eq_u32 s{sKh2}, 0
    s_cbranch_scc0 T_H3
    """)
    def fin(nts):
        for nt in nts:
            p(f"ds_read_b128 {rg(vF+4*nt,4)}, v2 offset:{nt*1024}")
        for idx, nt in enumerate(nts):
            p(f"s_waitcnt lgkmcnt({len(nts)-1-idx})")
            for e in range(4):
                p(f"v_add_f32 v{vAcc+4*nt+e}, v{vAcc+4*nt+e}, v{vF+4*nt+e}")
            if not o.pk:
                for e in range(4):
                    p(f"v_and_or_b32 v{vAcc+4*nt+e}, v{vAcc+4*nt+e}, v7, s{sTag+e}")
                p(f"s_add_u32 s{sT1}, s{sT0}, {(nt//4)*4096}")
                p(f"buffer_store_dwordx4 {rg(vAcc+4*nt,4)}, v5, s[{rO}:{rO+3}], s{sT1} offen offset:{(nt%4)*1024} sc1")
        if o.pk:
            V = [vAcc + 4 * nt + e for nt in nts for e in range(4)]
            vG = 140
            for gi in range(3):
                vals = V[7 * gi: 7 * gi + 7]
                vals += [None] * (7 - len(vals))
                for d in range(3):
                    a, b = vals[2 * d], vals[2 * d + 1]
                    dst = vG + 4 * gi + d
                    if a is None: p(f"v_mov_b32 v{dst}, 0")
                    else: p(f"v_cvt_pk_bf16_f32 v{dst}, v{a}, {'v%d' % b if b is not None else '0'}")
                dst = vG + 4 * gi + 3
                if vals[6] is None:
                    p(f"v_mov_b32 v{dst}, v{vTagHi}")
                else:
                    p(f"v_cvt_pk_bf16_f32 v{dst}, v{vals[6]}, 0")
                    p(f"v_or_b32 v{dst}, v{dst}, v{vTagHi}")
                p(f"buffer_store_dwordx4 {rg(vG+4*gi,4)}, v5, s[{rO}:{rO+3}], s{sT0} offen offset:{gi*1024} sc1")
    fin(list(range(0, 5)))
    p("s_branch T_H4")
    p.label("T_H3")
    fin(list(range(5, 9)))
    p.label("T_H4")
    if o.stamps: stamp(p, o, 9)
    vX = 100
    if o.pk:
        vA = 140
        p(f"""
        s_cmp_ge_u32 s{sWave}, 3
        s_cbranch_scc1 T_DONE
        s_lshl_b32 s{sT0}, s{sB}, 2
        s_add_u32 s{sT0}, s{sT0}, s{sJj}
        s_lshl_b32 s{sT0}, s{sT0}, 3
        s_add_u32 s{sT0}, s{sT0}, s{sXc}
        s_mul_i32 s{sT0}, s{sT0}, 3072
        s_lshl_b32 s{sT1}, s{sWave}, 10
        s_add_u32 s{sT0}, s{sT0}, s{sT1}
        s_add_u32 s{sT0}, s{sT0}, {WS_PART}
        s_mov_b32 s{rX}, s{sOut}
        s_mov_b32 s{rX+1}, s{sOut+1}
        s_mov_b32 s{rX+2}, {512*576*2}
        s_mov_b32 s{rX+3}, 0x20000
        v_lshlrev_b32 v3, 4, v{vL}
        s_lshr_b32 s{sT1}, s{sXc}, 1
        s_lshl_b32 s{sT1}, s{sT1}, 4
        s_lshl_b32 s{sT2}, s{sB}, 6
        s_add_u32 s{sT1}, s{sT1}, s{sT2}
        v_and_b32 v4, 15, v{vL}
        v_add_u32 v4, s{sT1}, v4
        s_movk_i32 s{sT1}, 1152
        v_mul_u32_u24 v4, s{sT1}, v4
        v_lshrrev_b32 v6, 4, v{vL}
        v_lshl_add_u32 v4, v6, 3, v4
        s_mul_i32 s{sT1}, s{sJj}, 288
        s_and_b32 s{sT2}, s{sXc}, 1
        s_mul_i32 s{sT2}, s{sT2}, 160
        s_add_u32 s{sT1}, s{sT1}, s{sT2}
        v_add_u32 v4, s{sT1}, v4
        s_mov_b32 s{sT2}, 0
        s_mov_b64 s[56:57], exec
        v_mul_u32_u24 v6, {32*8*3}, v{vL}
        v_lshlrev_b32 v6, 10, v6
        v_add_u32 v6, 12, v6
        v_mov_b32 v9, s{sTag}
        s_mov_b64 exec, 0xff
        buffer_load_dword v10, v6, s[{rO}:{rO+3}], s{sT0} offen sc1
        buffer_load_dword v11, v6, s[{rO}:{rO+3}], s{sT0} offen sc1
        """)
        p.label("T_PP")
        p(f"""
        s_waitcnt vmcnt(1)
        v_xor_b32 v8, v10, v9
        v_lshrrev_b32 v8, 16, v8
        v_cmp_ne_u32 vcc, 0, v8
        s_cbranch_vccz T_PPD
        buffer_load_dword v10, v6, s[{rO}:{rO+3}], s{sT0} offen sc1
        s_add_u32 s{sT2}, s{sT2}, 1
        s_waitcnt vmcnt(1)
        v_xor_b32 v8, v11, v9
        v_lshrrev_b32 v8, 16, v8
        v_cmp_ne_u32 vcc, 0, v8
        s_cbranch_vccz T_PPD
        buffer_load_dword v11, v6, s[{rO}:{rO+3}], s{sT0} offen sc1
        s_cmp_lt_u32 s{sT2}, {SPIN}
        s_cbranch_scc1 T_PP
        """)
        p.label("T_PPD")
        p(f"""
        s_mov_b64 exec, s[56:57]
        s_mov_b32 s{sT2}, 0
        """)
        p.label("T_POLL2")
        p(f"s_mov_b32 s{sT1}, s{sT0}")
        for s_ in range(8):
            p(f"buffer_load_dwordx4 {rg(vX+4*s_,4)}, v3, s[{rO}:{rO+3}], s{sT1} offen sc1")
            if s_ < 7: p(f"s_add_u32 s{sT1}, s{sT1}, {32*8*3072}")
        p(f"""
        s_add_u32 s{sT2}, s{sT2}, 1
        v_mov_b32 v6, 0
        """)
        for s_ in range(8):
            p(f"s_waitcnt vmcnt({7-s_})")
            p(f"v_xor_b32 v8, v{vX+4*s_+3}, v{vTagHi}")
            p(f"v_or_b32 v6, v6, v8")
        p(f"""
        v_lshrrev_b32 v6, 16, v6
        v_cmp_ne_u32 vcc, 0, v6
        s_cmp_lt_u32 s{sT2}, {SPIN}
        s_cbranch_scc0 T_SUM
        s_cbranch_vccnz T_POLL2
        """)
        p.label("T_SUM")
        p("v_mov_b32 v7, 0xffff0000")
        for s_ in range(8):
            for j in range(7):
                src = vX + 4 * s_ + j // 2
                if s_ == 0:
                    if j % 2 == 0: p(f"v_lshlrev_b32 v{vA+j}, 16, v{src}")
                    else: p(f"v_and_b32 v{vA+j}, v7, v{src}")
                else:
                    if j % 2 == 0: p(f"v_lshlrev_b32 v8, 16, v{src}")
                    else: p(f"v_and_b32 v8, v7, v{src}")
                    p(f"v_add_f32 v{vA+j}, v{vA+j}, v8")
        SCO = ' sc1' if o.outsc else ''
        if o.wide:
            p(f"""
            v_and_b32 v12, 15, v{vL}
            v_mul_u32_u24 v12, 176, v12
            v_lshrrev_b32 v13, 4, v{vL}
            v_lshl_add_u32 v12, v13, 3, v12
            v_add_u32 v12, 40960, v12
            """)
            def st(width, reg, off):
                if not o.wide:
                    op = {8: 'buffer_store_dwordx2', 4: 'buffer_store_dword', 2: 'buffer_store_short'}[width]
                    r = rg(reg, 2) if width == 8 else f"v{reg}"
                    p(f"{op} {r}, v4, s[{rX}:{rX+3}], 0 offen offset:{off}{SCO}")
                else:
                    op = {8: 'ds_write_b64', 4: 'ds_write_b32', 2: 'ds_write_b16'}[width]
                    r = rg(reg, 2) if width == 8 else f"v{reg}"
                    p(f"{op} v12, {r} offset:{off}")
        else:
            def st(width, reg, off):
                op = {8: 'buffer_store_dwordx2', 4: 'buffer_store_dword', 2: 'buffer_store_short'}[width]
                r = rg(reg, 2) if width == 8 else f"v{reg}"
                p(f"{op} {r}, v4, s[{rX}:{rX+3}], 0 offen offset:{off}{SCO}")
        FIN = 'T_OW' if o.wide else 'T_DONE'
        p(f"""
        s_cmp_eq_u32 s{sWave}, 1
        s_cbranch_scc1 T_O1
        s_cmp_eq_u32 s{sWave}, 2
        s_cbranch_scc1 T_O2
        v_cvt_pk_bf16_f32 v8, v{vA}, v{vA+1}
        v_cvt_pk_bf16_f32 v9, v{vA+2}, v{vA+3}
        v_cvt_pk_bf16_f32 v10, v{vA+4}, v{vA+5}
        v_cvt_pk_bf16_f32 v11, v{vA+6}, v{vA+6}
        """)
        st(8, 8, 0); st(4, 10, 32); st(2, 11, 36)
        p(f"s_branch {FIN}")
        p.label("T_O1")
        p(f"""
        v_cvt_pk_bf16_f32 v11, v{vA}, v{vA}
        v_cvt_pk_bf16_f32 v8, v{vA+1}, v{vA+2}
        v_cvt_pk_bf16_f32 v9, v{vA+3}, v{vA+4}
        v_cvt_pk_bf16_f32 v10, v{vA+5}, v{vA+6}
        """)
        st(2, 11, 38); st(8, 8, 64); st(4, 10, 96)
        p(f"s_branch {FIN}")
        p.label("T_O2")
        p(f"""
        v_cvt_pk_bf16_f32 v10, v{vA}, v{vA+1}
        v_cvt_pk_bf16_f32 v8, v{vA+2}, v{vA+3}
        v_cvt_pk_bf16_f32 v9, v{vA+4}, v{vA+5}
        """)
        st(4, 10, 100)
        if o.wide:
            st(8, 8, 128)
            p.label("T_OW")
            p(f"""
            s_waitcnt lgkmcnt(0)
            s_barrier
            s_and_b32 s{sT0}, s{sXc}, 1
            s_cmp_eq_u32 s{sT0}, 0
            s_cselect_b32 s{sT1}, 10, 8
            s_mov_b32 s{sT2}, 8192
            s_cselect_b32 s{sT2}, 6554, s{sT2}
            v_mul_u32_u24 v12, s{sT2}, v0
            v_lshrrev_b32 v12, 16, v12
            v_mul_u32_u24 v13, s{sT1}, v12
            v_sub_u32 v13, v0, v13
            v_cmp_gt_u32 vcc, 16, v12
            s_and_saveexec_b64 s[58:59], vcc
            s_cbranch_execz T_OWX
            v_mul_u32_u24 v14, 176, v12
            v_lshl_add_u32 v14, v13, 4, v14
            ds_read_b128 v[8:11], v14 offset:40960
            s_lshr_b32 s{sT1}, s{sXc}, 1
            s_lshl_b32 s{sT1}, s{sT1}, 4
            s_lshl_b32 s{sT2}, s{sB}, 6
            s_add_u32 s{sT1}, s{sT1}, s{sT2}
            v_add_u32 v12, s{sT1}, v12
            s_movk_i32 s{sT1}, 1152
            v_mul_u32_u24 v12, s{sT1}, v12
            v_lshl_add_u32 v12, v13, 4, v12
            s_mul_i32 s{sT1}, s{sJj}, 288
            s_mul_i32 s{sT0}, s{sT0}, 160
            s_add_u32 s{sT1}, s{sT1}, s{sT0}
            s_waitcnt lgkmcnt(0)
            buffer_store_dwordx4 v[8:11], v12, s[{rX}:{rX+3}], s{sT1} offen{SCO}
            """)
            p.label("T_OWX")
            p("s_mov_b64 exec, s[58:59]")
        else:
            p(f"""
            s_and_b32 s{sT0}, s{sXc}, 1
            s_cmp_eq_u32 s{sT0}, 0
            s_cbranch_scc0 T_DONE
            """)
            st(8, 8, 128)
    else:
        p(f"""
        s_cmp_ge_u32 s{sWave}, 5
        s_cbranch_scc1 T_DONE
        v_cmp_gt_u32 vcc, 288, v0
        s_and_saveexec_b64 s[58:59], vcc
        s_mul_i32 s{sT0}, s{sXc}, 288
        v_add_u32 v2, s{sT0}, v0
        v_lshlrev_b32 v3, 4, v2
        s_lshl_b32 s{sT0}, s{sB}, 2
        s_add_u32 s{sT0}, s{sT0}, s{sJj}
        s_mul_i32 s{sT0}, s{sT0}, 36864
        s_add_u32 s{sT0}, s{sT0}, {WS_PART}
        s_mov_b32 s{rX}, s{sOut}
        s_mov_b32 s{rX+1}, s{sOut+1}
        s_mov_b32 s{rX+2}, {512*576*2}
        s_mov_b32 s{rX+3}, 0x20000
        v_lshrrev_b32 v4, 6, v2
        v_mul_u32_u24 v5, 57, v4
        v_lshrrev_b32 v5, 9, v5
        v_mul_u32_u24 v6, 9, v5
        v_sub_u32 v6, v4, v6
        v_and_b32 v4, 15, v2
        v_lshl_add_u32 v4, v5, 4, v4
        s_lshl_b32 s{sT1}, s{sB}, 6
        v_add_u32 v4, s{sT1}, v4
        s_movk_i32 s{sT1}, 1152
        v_mul_u32_u24 v4, s{sT1}, v4
        v_lshlrev_b32 v6, 5, v6
        v_add_u32 v4, v4, v6
        v_bfe_u32 v6, v2, 4, 2
        v_lshl_add_u32 v4, v6, 3, v4
        s_mul_i32 s{sT1}, s{sJj}, 288
        v_add_u32 v4, s{sT1}, v4
        s_mov_b32 s{sT2}, 0
        """)
        if o.prepoll == 1:
                p(f"""
                s_mov_b64 s[56:57], exec
                v_readfirstlane_b32 s{sT1}, v3
                v_mul_u32_u24 v6, {32*36864 // 1024}, v{vL}
                v_lshlrev_b32 v6, 10, v6
                v_add_u32 v6, s{sT1}, v6
                v_mov_b32 v9, s{sTag}
                s_mov_b64 exec, 0xff
                buffer_load_dword v10, v6, s[{rO}:{rO+3}], s{sT0} offen sc1
                buffer_load_dword v11, v6, s[{rO}:{rO+3}], s{sT0} offen sc1
                """)
                p.label("T_PP")
                p(f"""
                s_waitcnt vmcnt(1)
                v_xor_b32 v8, v10, v9
                v_and_b32 v8, 0xfff, v8
                v_cmp_ne_u32 vcc, 0, v8
                s_cbranch_vccz T_PPD
                buffer_load_dword v10, v6, s[{rO}:{rO+3}], s{sT0} offen sc1
                s_add_u32 s{sT2}, s{sT2}, 1
                s_waitcnt vmcnt(1)
                v_xor_b32 v8, v11, v9
                v_and_b32 v8, 0xfff, v8
                v_cmp_ne_u32 vcc, 0, v8
                s_cbranch_vccz T_PPD
                buffer_load_dword v11, v6, s[{rO}:{rO+3}], s{sT0} offen sc1
                s_cmp_lt_u32 s{sT2}, {SPIN}
                s_cbranch_scc1 T_PP
                """)
                p.label("T_PPD")
                p(f"""
                s_mov_b64 exec, s[56:57]
                s_mov_b32 s{sT2}, 0
                """)
        elif o.prepoll == 2:
            p(f"""
            s_cmp_eq_u32 s{sWave}, 0
            s_cbranch_scc0 T_PPD
            s_mov_b64 s[56:57], exec
            s_mul_i32 s{sT1}, s{sXc}, {288*16}
            v_and_b32 v6, 7, v{vL}
            v_mul_u32_u24 v6, {32*36864 // 1024}, v6
            v_lshlrev_b32 v6, 10, v6
            v_add_u32 v6, s{sT1}, v6
            v_lshrrev_b32 v8, 3, v{vL}
            v_mul_u32_u24 v8, {287*16}, v8
            v_add_u32 v6, v6, v8
            v_mov_b32 v9, s{sTag}
            s_mov_b64 exec, 0xffff
            buffer_load_dword v10, v6, s[{rO}:{rO+3}], s{sT0} offen sc1
            """)
            p.label("T_PP")
            p(f"""
            s_waitcnt vmcnt(0)
            v_xor_b32 v8, v10, v9
            v_and_b32 v8, 0xfff, v8
            v_cmp_ne_u32 vcc, 0, v8
            s_cbranch_vccz T_PPE
            buffer_load_dword v10, v6, s[{rO}:{rO+3}], s{sT0} offen sc1
            s_add_u32 s{sT2}, s{sT2}, 1
            s_cmp_lt_u32 s{sT2}, {SPIN}
            s_cbranch_scc1 T_PP
            """)
            p.label("T_PPE")
            p(f"""
            s_mov_b64 exec, s[56:57]
            s_mov_b32 s{sT2}, 0
            """)
            p.label("T_PPD")
            p("s_barrier")
        p.label("T_POLL2")
        p(f"s_mov_b32 s{sT1}, s{sT0}")
        for s in range(8):
            p(f"buffer_load_dwordx4 {rg(vX+4*s,4)}, v3, s[{rO}:{rO+3}], s{sT1} offen sc1")
            if s < 7: p(f"s_add_u32 s{sT1}, s{sT1}, {32*36864}")
        p(f"""
        s_add_u32 s{sT2}, s{sT2}, 1
        v_mov_b32 v6, 0
        """)
        for s in range(8):
            p(f"s_waitcnt vmcnt({7-s})")
            for e in range(0, 4, 2):
                p(f"v_xor_b32 v8, s{sTag+e}, v{vX+4*s+e}")
                p(f"v_xor_b32 v9, s{sTag+e+1}, v{vX+4*s+e+1}")
                p(f"v_or3_b32 v6, v6, v8, v9")
        p(f"""
        v_and_b32 v6, 0xfff, v6
        v_cmp_ne_u32 vcc, 0, v6
        s_cmp_lt_u32 s{sT2}, {SPIN}
        s_cbranch_scc0 T_SUM
        s_cbranch_vccnz T_POLL2
        """)
        p.label("T_SUM")
        for s in range(8):
            for e in range(4):
                p(f"v_and_b32 v{vX+4*s+e}, v7, v{vX+4*s+e}")
        for s in range(1, 8):
            for e in range(4):
                p(f"v_add_f32 v{vX+e}, v{vX+e}, v{vX+4*s+e}")
        p(f"""
        v_cvt_pk_bf16_f32 v8, v{vX}, v{vX+1}
        v_cvt_pk_bf16_f32 v9, v{vX+2}, v{vX+3}
        buffer_store_dwordx2 v[8:9], v4, s[{rX}:{rX+3}], 0 offen{' sc1' if o.outsc else ''}
        s_mov_b64 exec, s[58:59]
        """)
    p.label("T_DONE")
    if o.stamps:
        p("s_waitcnt vmcnt(0)")
        p("s_memrealtime s[90:91]" if o.stamps != 2 else "s_memtime s[90:91]")
        p("s_waitcnt lgkmcnt(0)")
        gen_flush_final(p, o, sWs)
    p("s_branch K1_END")

def gemm_opt(p, vAcc, vB, vF, vAd, vLA, sKh2, sT, wo_addr):
    HA, HB = [0, 1, 2, 3, 4], [5, 6, 7, 8]
    for half in range(2):
        c0, c1 = wo_addr(4 * half), wo_addr(8 + 4 * half)
        for kk in range(4):
            assert wo_addr(4 * half + kk) == c0 + kk * 9216 and wo_addr(8 + 4 * half + kk) == c1 + kk * 9216
        p(f"""
        s_mov_b32 s{sT}, {c1}
        s_cmp_eq_u32 s{sKh2}, 0
        s_cselect_b32 s{sT}, {c0}, s{sT}
        v_add_u32 v{vAd + half}, s{sT}, v{vLA}
        """)
    def reads(kk, half):
        ad = vAd + (kk // 4); off = (kk % 4) * 9216
        for nt in half:
            f = vF + 4 * nt
            p(f"ds_read_b64_tr_b16 {rg(f,2)}, v{ad} offset:{off+nt*32}")
            p(f"ds_read_b64_tr_b16 {rg(f+2,2)}, v{ad} offset:{off+4608+nt*32}")
    def mfmas(kk, half, wait):
        p(wait)
        for nt in half:
            f = vF + 4 * nt
            p(f"{MF16} {rg(vAcc+4*nt,4)}, {rg(f,4)}, {rg(vB+4*kk,4)}, {rg(vAcc+4*nt,4)}")
    reads(0, HA)
    for kk in range(8):
        reads(kk, HB)
        mfmas(kk, HA, f"s_waitcnt vmcnt({7-kk}) lgkmcnt({2*len(HB)})")
        if kk < 7:
            reads(kk + 1, HA)
            mfmas(kk, HB, f"s_waitcnt lgkmcnt({2*len(HA)})")
        else:
            mfmas(kk, HB, "s_waitcnt lgkmcnt(0)")

def emit(o):
    name = 'standalone__gqa_block_cached__near_ridge_kernel'
    p = gen_main(o)
    out = [HDR, "; @launch grid=(256,1,1) block=(512,1,1) lds=163840",
           '.amdgcn_target "amdgcn-amd-amdhsa--gfx950"', '.text']
    n = p.fix_hazards()
    errs = p.lint_waits()
    for e in errs[:20]:
        print(f"LINT: {e}", file=sys.stderr)
    nv, ns = p.max_regs()
    print(f"{name}: {len(p.ins)} instrs, vgpr {nv}, sgpr {ns}, nops inserted {n}", file=sys.stderr)
    out.append(f".globl {name}\n.p2align 8\n.type {name},@function\n{name}:")
    out.append(p.text())
    out.append(kd(name, max(nv, 8), max(ns, 16)))
    return '\n'.join(out) + '\n'

if __name__ == '__main__':
    ap = argparse.ArgumentParser()
    ap.add_argument('-o', default='standalone__gqa_block_cached__near_ridge.s')
    for k, d in OPTS.items():
        ap.add_argument('--' + k, type=int, default=d)
    a = ap.parse_args()
    o = Opt()
    for k in OPTS:
        setattr(o, k, getattr(a, k))
    open(a.o, 'w').write(emit(o))
```

```python
import sys, argparse
from asmlib import Prog
import gen
from gen import f32bits, SCALE_LOG2E, kd, HEADER
from gen import stamp as _stamp
import gen9
from gen9 import WS_O, WS_PART, WS_FLAG, WS_SIZE, MF, MF16, rg, SPIN, gen_flush_final

STSETS = {0: {0:0,1:1,2:2,3:3,4:4,5:5,6:6,7:7,8:8,9:9},
          1: {5:0, 'e1':1, 'e2':2, 'e3':3, 'e4':4, 6:5, 7:6, 'g0':7, 8:8, 9:9}}
def stamp(p, o, name):
    m = STSETS[getattr(o, 'stset', 0)]
    if name in m: _stamp(p, o, m[name])

class Opt(gen.Opt):
    pass
OPTS = dict(qrot=0, kv=3, wnt=0, contig=0, fine=1, roth=0, rotk=11, rot=1, wide=1, pk=1, gopt=1, e3=1, prio=0, skew=0, icpf=6, outsc=1, prepoll=1, fast=1, stset=0, nt=1, dbg=0, stamps=0, stampwave=0, wt=1, kdel=5, wotat=7, lead=8, nearly=12)

HDR = """; GQA block: q = x@wq ; softmax(q k^T / sqrt(128)) v ; out = o@wo   (B=8, Sq=64, Hq=32, Hkv=16, Sk=1024, Dh=128, D=576)
;   The launch nonce is published by workgroup 0 in d_debug[0:1] (zero at launch); all cross-workgroup data uses sc1 stores and loads."""

SLOT = 16384
NSLOT = 10

def gen_main(o):
    p = Prog()
    NT = ' nt' if o.nt else ''
    NTK = ' nt' if (o.nt and o.kv & 1) else ''
    NTV = ' nt' if (o.nt and o.kv & 2) else ''
    sX, sK, sV, sWq, sWs, sWo = 4, 6, 8, 10, 12, 14
    rK, rV, rW, rX, rO = 16, 20, 24, 28, 32
    sWave, sB, sH, sXc, sQh, sKh = 36, 37, 38, 39, 40, 41
    sRK, sRV, sKoff, sVoff, sCnt, sJj = 42, 43, 44, 45, 46, 47
    sC, sT0, sT1, sT2 = 48, 49, 50, 51
    sLw, sWg, sIss, sL4096, sGof = 53, 54, 55, 56, 57
    sHalf = 94
    sPar, sIssB = 98, 99
    vOa, vOb = 40, 44
    sOut, sDbg, sN, sTag = 80, 82, 84, 86
    vL = 1
    vLW = 10
    vLX = 12
    vLK = 13
    vVA = 14
    vTn = 18
    vNon = 20
    vLV = 24
    vKA = 28
    vM, vThr, vL0, vL1 = 36, 37, 38, 39
    vQ = 40
    vS = [72, 88]
    vP = 104
    vKf = 112
    vVf = 144
    vO = 176
    QB = [112, 176]
    vKo = 10; vVo = 14; vWo = 24; vXo = 28; vWoA, vWoB, vWoC = 30, 31, 32
    vDum = 249
    vOff = 240
    S_ = [i * SLOT for i in range(NSLOT)]
    QS = [139264, 65536, 90112, 114688]
    QX = S_[9]
    lab = [0]
    def nl(s):
        lab[0] += 1
        return f"K1_{s}{lab[0]}"
    nbar = {'c': 0, 'l': 0}
    def bar(who):
        nbar[who] += 1
        p("s_barrier")
    LEAD = o.lead
    TS = 16384 if o.contig else 8192
    MASK = 0x3ffff if o.contig else 0x1ffff
    assert LEAD in (4, 6, 8) and not o.skew
    HL = LEAD // 2
    NR = 14 - HL
    POS = []
    for n in range(33):
        if n == 0: POS.append((1, 0))
        elif n % 2 == 1: POS.append((1, (n + 1) // 2))
        else: POS.append((0, (n - 2) // 2))
    NEARLY = o.nearly
    def wo_addr(G): return (49152 + G * 9216) if G < 12 else (G - 12) * 9216
    EX, STAT, NONL = 0, 36864, 38912

    p(f"""
    s_cmp_ge_u32 s2, 256
    s_cbranch_scc1 K1_END
    s_load_dwordx4 s[4:7], s[0:1], 0
    s_load_dwordx4 s[8:11], s[0:1], 16
    s_load_dwordx2 s[12:13], s[0:1], 56
    s_load_dwordx2 s[14:15], s[0:1], 32
    s_load_dwordx4 s[80:83], s[0:1], 40
    """)
    if o.icpf:
        ICL = o.icpf
        p("s_getpc_b64 s[90:91]")
        p.label("K1_PCREF")
        p(f"""
        s_mov_b32 s93, K1_END-K1_PCREF
        v_cmp_gt_u32 vcc, {ICL}, v0
        s_and_saveexec_b64 s[58:59], vcc
        s_cbranch_execz K1_ICD
        s_lshr_b32 s92, s2, 3
        s_mul_i32 s92, s92, {ICL*128}
        v_lshlrev_b32 v2, 7, v0
        v_add_u32 v2, s92, v2
        v_min_u32 v2, s93, v2
        global_load_dword v{vDum}, v2, s[90:91]
        """)
        p.label("K1_ICD")
        p("s_mov_b64 exec, s[58:59]")
    p(f"""
    v_and_b32 v{vL}, 63, v0
    v_lshrrev_b32 v2, 6, v0
    s_and_b32 s{sXc}, s2, 7
    s_lshr_b32 s{sT1}, s2, 3
    v_readfirstlane_b32 s{sWave}, v2
    s_lshr_b32 s{sB}, s{sT1}, 2
    s_and_b32 s{sJj}, s{sT1}, 3
    s_lshl_b32 s{sH}, s{sXc}, 2
    s_add_u32 s{sH}, s{sH}, s{sJj}
    s_lshl_b32 s{sWg}, s{sB}, 5
    s_add_u32 s{sWg}, s{sWg}, s{sH}
    v_and_b32 v2, 15, v{vL}
    v_lshrrev_b32 v3, 4, v{vL}
    v_lshrrev_b32 v4, 2, v2
    v_and_b32 v5, 3, v2
    v_lshrrev_b32 v6, 5, v{vL}
    v_and_b32 v7, 31, v{vL}
    s_cmp_lt_u32 s{sWave}, 4
    s_cbranch_scc1 K1_COMPUTE
    """)

    vq = []
    def vissue(tag, n): vq.extend([tag] * n)
    def vneed(*tags):
        idx = [i for i, t in enumerate(vq) if t in tags]
        if not idx: return 63
        n = len(vq) - 1 - idx[-1]
        del vq[:idx[-1] + 1]
        return min(n, 63)
    if o.prio: p(f"s_setprio {o.prio}")
    p(f"""
    s_and_b32 s{sLw}, s{sWave}, 3
    s_lshl_b32 s{sL4096}, s{sLw}, 12
    v_lshlrev_b32 v8, 2, v3
    v_xor_b32 v8, v8, v2
    v_lshlrev_b32 v8, 4, v8
    v_lshl_add_u32 v{vVo}, v3, 8, v8
    v_lshl_add_u32 v{vWo}, v3, 13, v8
    """)
    for u in range(1, 4):
        p(f"v_add_u32 v{vWo+u}, {u*31744}, v{vWo}")
    p(f"""
    s_lshl_b32 s{sT0}, s{sLw}, 4
    s_movk_i32 s{sT1}, 1152
    """)
    for u in range(2):
        p(f"""
        v_lshrrev_b32 v8, 3, v{vL}
        v_add_u32 v8, s{sT0}, v8
        v_add_u32 v8, {8*u}, v8
        v_mul_lo_u32 v8, v8, s{sT1}
        v_add_u32 v9, {4*u}, v3
        v_and_b32 v9, 7, v9
        v_and_b32 v{vXo+u}, 7, v{vL}
        v_xor_b32 v9, v9, v{vXo+u}
        v_lshl_add_u32 v8, v9, 4, v8
        v_subrev_u32 v{vXo+u}, {u*1024}, v8
        """)
    p("s_waitcnt lgkmcnt(0)")
    stamp(p, o, 0)
    p(f"""
    s_lshl_b32 s{sT0}, s{sH}, 8
    s_add_u32 s{rW}, s{sWq}, s{sT0}
    s_addc_u32 s{rW+1}, s{sWq+1}, 0
    s_sub_u32 s{rW+2}, {576*8192}, s{sT0}
    s_mov_b32 s{rW+3}, 0x20000
    s_mul_i32 s{sT0}, s{sB}, {64*1152}
    s_add_u32 s{rX}, s{sX}, s{sT0}
    s_addc_u32 s{rX+1}, s{sX+1}, 0
    s_mov_b32 s{rX+2}, {64*1152}
    s_mov_b32 s{rX+3}, 0x20000
    """)
    sQr = 95
    if o.qrot:
        p(f"s_mul_i32 s{sQr}, s{sB}, {o.qrot}")
        p(f"s_and_b32 s{sQr}, s{sQr}, 7")
    def issue_chunk(c):
        qs = QS[c % 4]
        if o.qrot:
            p(f"""
            s_add_u32 s{sT2}, s{sQr}, {c}
            s_sub_u32 s{sT1}, s{sT2}, 9
            s_cmp_ge_u32 s{sT2}, 9
            s_cselect_b32 s{sT2}, s{sT1}, s{sT2}
            s_lshl_b32 s{sT0}, s{sLw}, 17
            s_lshl_b32 s{sT1}, s{sT2}, 19
            s_add_u32 s{sT0}, s{sT0}, s{sT1}
            s_add_u32 m0, s{sL4096}, {qs}
            """)
        else:
            p(f"""
            s_lshl_b32 s{sT0}, s{sLw}, 17
            s_add_u32 s{sT0}, s{sT0}, {c*524288}
            s_add_u32 m0, s{sL4096}, {qs}
            """)
        for u in range(4):
            p(f"buffer_load_dwordx4 v{vWo+u}, s[{rW}:{rW+3}], s{sT0} offen offset:{u*1024}{' nt' if o.wnt & 2 else ''} lds")
        p(f"""
        s_lshr_b32 s{sT1}, s{sL4096}, 1
        s_add_u32 m0, s{sT1}, {qs+16384}
        """)
        if o.qrot: p(f"s_lshl_b32 s{sT0}, s{sT2}, 7")
        else: p(f"s_movk_i32 s{sT0}, {c*128}")
        for u in range(2):
            p(f"buffer_load_dwordx4 v{vXo+u}, s[{rX}:{rX+3}], s{sT0} offen offset:{u*1024}{' nt' if o.wnt & 2 else ''} lds")
        vissue(('C', c), 6)
    if o.wt:
        p(f"""
        s_cmp_eq_u32 s{sWave}, 4
        s_cbranch_scc0 K1_WT1
        v_lshrrev_b32 v8, 1, v{vL}
        v_and_b32 v9, 1, v{vL}
        v_lshlrev_b32 v8, 13, v8
        v_lshl_add_u32 v8, v9, 7, v8
        s_mul_i32 s{sT0}, s{sB}, {72*8192}
        buffer_load_dword v{vDum}, v8, s[{rW}:{rW+3}], s{sT0} offen{' nt' if o.wnt & 1 else ''}
        s_add_u32 s{sT0}, s{sT0}, {32*8192}
        buffer_load_dword v{vDum}, v8, s[{rW}:{rW+3}], s{sT0} offen{' nt' if o.wnt & 1 else ''}
        s_add_u32 s{sT0}, s{sT0}, {32*8192}
        v_cmp_gt_u32 vcc, 16, v{vL}
        s_and_saveexec_b64 s[58:59], vcc
        buffer_load_dword v{vDum}, v8, s[{rW}:{rW+3}], s{sT0} offen{' nt' if o.wnt & 1 else ''}
        s_mov_b64 exec, s[58:59]
        """)
        p.label("K1_WT1")
        p(f"""
        s_cmp_eq_u32 s{sWave}, 5
        s_cbranch_scc0 K1_WT2
        v_lshlrev_b32 v9, 7, v{vL}
        s_mul_i32 s{sT0}, s{sJj}, 18432
        buffer_load_dword v{vDum}, v9, s[{rX}:{rX+3}], s{sT0} offen{' nt' if o.wnt & 1 else ''}
        s_add_u32 s{sT0}, s{sT0}, 8192
        buffer_load_dword v{vDum}, v9, s[{rX}:{rX+3}], s{sT0} offen{' nt' if o.wnt & 1 else ''}
        s_add_u32 s{sT0}, s{sT0}, 8192
        v_cmp_gt_u32 vcc, 16, v{vL}
        s_and_saveexec_b64 s[58:59], vcc
        buffer_load_dword v{vDum}, v9, s[{rX}:{rX+3}], s{sT0} offen{' nt' if o.wnt & 1 else ''}
        s_mov_b64 exec, s[58:59]
        """)
        p.label("K1_WT2")
    for c in range(4):
        issue_chunk(c)
    p(f"""
    s_cmp_eq_u32 s2, 0
    s_cbranch_scc0 K1_NON
    s_cmp_eq_u32 s{sWave}, 7
    s_cbranch_scc0 K1_NON
    s_memrealtime s[{sN}:{sN+1}]
    s_waitcnt lgkmcnt(0)
    s_or_b32 s{sN}, s{sN}, 1
    v_mov_b32 v8, s{sN}
    v_mov_b32 v9, s{sN+1}
    v_mov_b32 v{vNon}, 0
    v_cmp_eq_u32 vcc, 0, v{vL}
    s_and_saveexec_b64 s[58:59], vcc
    global_store_dwordx2 v{vNon}, v[8:9], s[{sDbg}:{sDbg+1}] sc1
    s_mov_b64 exec, s[58:59]
    """)
    p.label("K1_NON")
    p(f"""
    s_lshl_b32 s{sT0}, s{sB}, 4
    s_lshr_b32 s{sT1}, s{sH}, 1
    s_add_u32 s{sT0}, s{sT0}, s{sT1}
    s_lshl_b32 s{sT0}, s{sT0}, 18
    s_add_u32 s{rK}, s{sK}, s{sT0}
    s_addc_u32 s{rK+1}, s{sK+1}, 0
    s_mov_b32 s{rK+2}, 0x40000
    s_mov_b32 s{rK+3}, 0x20000
    s_add_u32 s{rV}, s{sV}, s{sT0}
    s_addc_u32 s{rV+1}, s{sV+1}, 0
    s_mov_b32 s{rV+2}, 0x40000
    s_mov_b32 s{rV+3}, 0x20000
    """)
    if o.contig:
        p(f"""
        s_mov_b32 s{sHalf}, 0
        s_lshl_b32 s{sGof}, s{sLw}, 12
        """)
    else:
        p(f"""
        s_lshr_b32 s{sT0}, s{sLw}, 1
        s_lshl_b32 s{sHalf}, s{sT0}, 17
        s_and_b32 s{sT1}, s{sLw}, 1
        s_lshl_b32 s{sGof}, s{sT1}, 12
        """)
    if o.rot:
        p(f"""
        s_lshr_b32 s{sT0}, s{sH}, 1
        s_mul_i32 s{sT1}, s{sB}, {o.rot}
        s_mul_i32 s{sT0}, s{sT0}, {o.rotk}
        s_add_u32 s{sT0}, s{sT0}, s{sT1}
        s_lshr_b32 s{sT1}, s{sLw}, 1
        s_mul_i32 s{sT1}, s{sT1}, {o.roth}
        s_add_u32 s{sT0}, s{sT0}, s{sT1}
        s_and_b32 s{sT0}, s{sT0}, {31 if o.fine else 15}
        s_lshl_b32 s{sT0}, s{sT0}, {(12 if o.fine else 13) + (1 if o.contig else 0)}
        s_add_u32 s{sGof}, s{sGof}, s{sT0}
        """)
    for u in range(4):
        p(f"""
        v_add_u32 v8, {4*u}, v3
        v_xor_b32 v8, v8, v2
        v_lshlrev_b32 v8, 4, v8
        v_lshl_add_u32 v{vKo+u}, v3, 8, v8
        """)
    p(f"""
    s_movk_i32 s{sT0}, 3641
    s_movk_i32 s{sT1}, 1152
    """)
    for k, (reg, addi) in enumerate(((vWoA, 0), (vWoB, 4), (vWoC, None))):
        if addi is None:
            p(f"v_add_u32 v8, {64*8}, v{vL}")
        else:
            p(f"""
            s_add_u32 s{sT2}, s{sLw}, {addi}
            s_lshl_b32 s{sT2}, s{sT2}, 6
            v_add_u32 v8, s{sT2}, v{vL}
            """)
        p(f"""
        v_mul_u32_u24 v9, s{sT0}, v8
        v_lshrrev_b32 v9, 16, v9
        v_mul_u32_u24 v{reg}, 18, v9
        v_sub_u32 v{reg}, v8, v{reg}
        v_mul_u32_u24 v9, s{sT1}, v9
        v_lshl_add_u32 v{reg}, v{reg}, 4, v9
        """)

    for i in range(9): p(f"v_mov_b32 v{vOff+i}, 0")
    def issue_pos(n):
        isK, t = POS[n]
        p(f"""
        s_add_u32 s{sT0}, s{sGof}, {t*TS}
        s_and_b32 s{sT0}, s{sT0}, {MASK}
        s_or_b32 s{sT0}, s{sT0}, s{sHalf}
        s_add_u32 m0, s{sL4096}, {S_[n % NSLOT]}
        """)
        for u in range(4):
            if isK: p(f"buffer_load_dwordx4 v{vKo+u}, s[{rK}:{rK+3}], s{sT0} offen offset:{u*1024}{NTK} lds")
            else:   p(f"buffer_load_dwordx4 v{vVo}, s[{rV}:{rV+3}], s{sT0} offen offset:{u*1024}{NTV} lds")
        vissue(('P', n), 4)
    def wo_srd():
        p(f"""
        s_mul_i32 s{sT0}, s{sXc}, {512*1152}
        s_mul_i32 s{sT1}, s{sJj}, 288
        s_add_u32 s{sT0}, s{sT0}, s{sT1}
        s_add_u32 s{rW}, s{sWo}, s{sT0}
        s_addc_u32 s{rW+1}, s{sWo+1}, 0
        s_sub_u32 s{rW+2}, {4096*1152}, s{sT0}
        s_mov_b32 s{rW+3}, 0x20000
        """)
    def early_group(G):
        base = wo_addr(G)
        p(f"""
        s_lshl_b32 s{sT1}, s{sLw}, 10
        s_add_u32 m0, s{sT1}, {base}
        s_mov_b32 s{sT0}, {G*36864}
        buffer_load_dwordx4 v{vWoA}, s[{rW}:{rW+3}], s{sT0} offen lds
        s_add_u32 m0, s{sT1}, {base+4096}
        s_cmp_eq_u32 s{sLw}, 0
        buffer_load_dwordx4 v{vWoB}, s[{rW}:{rW+3}], s{sT0} offen lds
        """)
        l = nl('EG')
        p(f"s_cbranch_scc0 {l}")
        p(f"s_mov_b32 m0, {base+8192}")
        p(f"buffer_load_dwordx4 v{vWoC}, s[{rW}:{rW+3}], s{sT0} offen lds")
        p.label(l)
        vissue(('G', G), 2)
    def wo_touch():
        l = nl('WOT')
        p(f"""
        s_cmp_eq_u32 s{sWave}, 6
        s_cbranch_scc0 {l}
        s_mul_i32 s{sT0}, s{sXc}, {512*1152}
        s_add_u32 s{rX}, s{sWo}, s{sT0}
        s_addc_u32 s{rX+1}, s{sWo+1}, 0
        s_mov_b32 s{rX+2}, {512*1152}
        s_mov_b32 s{rX+3}, 0x20000
        s_lshr_b32 s{sT0}, s2, 3
        s_mul_i32 s{sT0}, s{sT0}, 18432
        v_lshlrev_b32 v2, 7, v{vL}
        buffer_load_dword v{vDum}, v2, s[{rX}:{rX+3}], s{sT0} offen
        s_add_u32 s{sT0}, s{sT0}, 8192
        buffer_load_dword v{vDum}, v2, s[{rX}:{rX+3}], s{sT0} offen
        s_add_u32 s{sT0}, s{sT0}, 8192
        v_cmp_gt_u32 vcc, 16, v{vL}
        s_and_saveexec_b64 s[58:59], vcc
        buffer_load_dword v{vDum}, v2, s[{rX}:{rX+3}], s{sT0} offen
        s_mov_b64 exec, s[58:59]
        """)
        p.label(l)

    for c in range(9):
        p(f"s_waitcnt vmcnt({vneed(('C', c))})")
        bar('l')
        if c == 0: stamp(p, o, 1)
        if 1 <= c <= 5: issue_chunk(c + 3)
        if c == o.kdel: issue_pos(0); issue_pos(1)
        if c == o.kdel + 1: issue_pos(2); issue_pos(3)
    bar('l')
    for n in range(4, LEAD): issue_pos(n)
    bar('l')
    p(f"s_waitcnt vmcnt({vneed(('P', 0))})")
    bar('l')
    issue_pos(LEAD)
    p(f"s_waitcnt vmcnt({vneed(('P', 1))})")
    bar('l')
    issue_pos(LEAD + 1)
    VQ = {0: list(vq), 1: list(vq)}
    def need_in(q, tag):
        idx = [i for i, t in enumerate(q) if t == tag]
        if not idx: return 63
        n = len(q) - 1 - idx[-1]
        del q[:idx[-1] + 1]
        return min(n, 63)
    Wa, Wb = [], []
    pars = (0, 1) if o.skew else (0,)
    for i in range(NR):
        Wa.append(min(need_in(VQ[q], ('P', 2 * i + 2)) for q in pars))
        for q in pars: VQ[q].extend([('P', 2 * i + 2 + LEAD + q)] * 4)
        Wb.append(min(need_in(VQ[q], ('P', 2 * i + 3)) for q in pars))
        for q in pars: VQ[q].extend([('P', 2 * i + 3 + LEAD - q)] * 4)
    wa, wb = min(Wa), min(Wb)
    print('loader loop waits', Wa, Wb, file=sys.stderr)
    p(f"""
    s_and_b32 s{sPar}, s{sH}, {1 if o.skew else 0}
    s_mov_b32 s{sIss}, {S_[(2+LEAD) % NSLOT]}
    s_mov_b32 s{sIssB}, {S_[(3+LEAD) % NSLOT]}
    s_add_u32 s{sVoff}, s{sGof}, {HL*TS}
    s_and_b32 s{sVoff}, s{sVoff}, {MASK}
    s_or_b32 s{sVoff}, s{sVoff}, s{sHalf}
    s_add_u32 s{sKoff}, s{sGof}, {(2+HL)*TS}
    s_and_b32 s{sKoff}, s{sKoff}, {MASK}
    s_or_b32 s{sKoff}, s{sKoff}, s{sHalf}
    s_mov_b32 s{sCnt}, 0
    """)
    for u in range(4):
        p(f"v_mov_b32 v{vOa+u}, v{vVo}")
        p(f"v_mov_b32 v{vOb+u}, v{vKo+u}")
    if o.skew:
        p(f"""
        s_cmp_eq_u32 s{sPar}, 0
        s_cbranch_scc1 K1_PAR0
        s_mov_b32 s{sIss}, {S_[1]}
        s_mov_b32 s{sIssB}, {S_[0]}
        s_add_u32 s{sVoff}, s{sGof}, {6*8192}
        s_add_u32 s{sKoff}, s{sGof}, {4*8192}
        s_mov_b32 s{sT0}, s{rK}
        s_mov_b32 s{sT1}, s{rK+1}
        s_mov_b32 s{rK}, s{rV}
        s_mov_b32 s{rK+1}, s{rV+1}
        s_mov_b32 s{rV}, s{sT0}
        s_mov_b32 s{rV+1}, s{sT1}
        """)
        for u in range(4):
            p(f"v_mov_b32 v{vOa+u}, v{vKo+u}")
            p(f"v_mov_b32 v{vOb+u}, v{vVo}")
        p.label("K1_PAR0")
    def adv_iss(sreg):
        p(f"""
        s_add_u32 s{sreg}, s{sreg}, {2*SLOT}
        s_cmp_ge_u32 s{sreg}, {NSLOT*SLOT}
        s_cselect_b32 s{sT0}, {NSLOT*SLOT}, 0
        s_sub_u32 s{sreg}, s{sreg}, s{sT0}
        """)
    p.label("K1_LLOOP")
    p(f"s_waitcnt vmcnt({wa})")
    p("s_barrier")
    p(f"s_add_u32 m0, s{sIss}, s{sL4096}")
    for u in range(4):
        p(f"buffer_load_dwordx4 v{vOa+u}, s[{rV}:{rV+3}], s{sVoff} offen offset:{u*1024}{NTV} lds")
    adv_iss(sIss)
    p(f"s_add_u32 s{sVoff}, s{sVoff}, {TS}")
    p(f"s_and_b32 s{sVoff}, s{sVoff}, {MASK}")
    p(f"s_or_b32 s{sVoff}, s{sVoff}, s{sHalf}")
    p(f"s_waitcnt vmcnt({wb})")
    p("s_barrier")
    p(f"s_add_u32 m0, s{sIssB}, s{sL4096}")
    for u in range(4):
        p(f"buffer_load_dwordx4 v{vOb+u}, s[{rK}:{rK+3}], s{sKoff} offen offset:{u*1024}{NTK} lds")
    adv_iss(sIssB)
    p(f"s_add_u32 s{sKoff}, s{sKoff}, {TS}")
    p(f"s_and_b32 s{sKoff}, s{sKoff}, {MASK}")
    p(f"s_or_b32 s{sKoff}, s{sKoff}, s{sHalf}")
    l = nl('WTT')
    p(f"s_cmp_eq_u32 s{sCnt}, {o.wotat}")
    p(f"s_cbranch_scc0 {l}")
    wo_touch()
    p.label(l)
    p(f"""
    s_add_u32 s{sCnt}, s{sCnt}, 1
    s_cmp_lt_u32 s{sCnt}, {NR}
    s_cbranch_scc1 K1_LLOOP
    """)
    nbar['l'] += 2 * NR
    if o.skew:
        p(f"""
        s_cmp_eq_u32 s{sPar}, 0
        s_cbranch_scc1 K1_PAR2
        s_mov_b32 s{sT0}, s{rK}
        s_mov_b32 s{sT1}, s{rK+1}
        s_mov_b32 s{rK}, s{rV}
        s_mov_b32 s{rK+1}, s{rV+1}
        s_mov_b32 s{rV}, s{sT0}
        s_mov_b32 s{rV+1}, s{sT1}
        """)
        p.label("K1_PAR2")
    wo_srd()
    p(f"""
    s_cmp_eq_u32 s{sWave}, 7
    s_cbranch_scc0 K1_NL
    v_mov_b32 v8, 0
    global_load_dwordx2 v[{vNon}:{vNon+1}], v8, s[{sDbg}:{sDbg+1}] sc1
    """)
    p.label("K1_NL")
    sched0 = {('a', 11): [0], ('b', 11): [1, 2], ('a', 12): [3, 4], ('b', 12): [5, 6], ('a', 13): [7], ('b', 13): [8, 9], ('a', 14): [10, 11]}
    lastv = 15 - HL
    order = [(t, i) for i in range(10, 15) for t in ('a', 'b')]
    sched = {}
    for key in order:
        for G in sched0.get(key, []):
            k2 = key
            if (key[1], key[0]) < (lastv, 'a'): k2 = ('a', lastv)
            sched.setdefault(k2, []).append(G)
    def issue_pos_par(n, par):
        if par is None or not o.skew:
            sv = list(vq); issue_pos(n); del vq[:]; vq.extend(sv)
            for q in pars: VQ[q].extend([('P', n)] * 4)
            return
        l = nl('IP')
        p(f"s_cmp_eq_u32 s{sPar}, {par}")
        p(f"s_cbranch_scc0 {l}")
        sv = list(vq); issue_pos(n); del vq[:]; vq.extend(sv)
        p.label(l)
        VQ[par].extend([('P', n)] * 4)
    def eg(G):
        sv = list(vq); early_group(G); del vq[:]; vq.extend(sv)
        for q in pars: VQ[q].extend([('G', G)] * 2)
    for i in range(NR, 16):
        p(f"s_waitcnt vmcnt({min(need_in(VQ[q], ('P', 2 * i + 2)) for q in pars)})")
        bar('l')
        if i + HL <= 15: issue_pos_par(2 * i + 2 + LEAD, 0 if o.skew else None)
        if not (o.skew and i == 11):
            for G in sched.get(('a', i), []):
                if G < NEARLY: eg(G)
        if i <= 13:
            p(f"s_waitcnt vmcnt({min(need_in(VQ[q], ('P', 2 * i + 3)) for q in pars)})")
            bar('l')
            if o.skew and i <= 11: issue_pos_par(2 * i + 10, 1)
            if o.skew and i == 11:
                for G in sched.get(('a', i), []):
                    if G < NEARLY: eg(G)
            for G in sched.get(('b', i), []):
                if G < NEARLY: eg(G)
    p(f"""
    s_mov_b32 s{rO}, s{sWs}
    s_mov_b32 s{rO+1}, s{sWs+1}
    s_mov_b32 s{rO+2}, {WS_SIZE}
    s_mov_b32 s{rO+3}, 0x20000
    """)
    bar('l')
    p(f"""
    s_cmp_eq_u32 s{sWave}, 7
    s_cbranch_scc0 K1_NON2
    s_waitcnt vmcnt(0)
    s_mov_b32 s{sT2}, 0
    """)
    p.label("K1_NONP")
    p(f"""
    v_readfirstlane_b32 s{sT0}, v{vNon}
    s_add_u32 s{sT2}, s{sT2}, 1
    s_cmp_lg_u32 s{sT0}, 0
    s_cbranch_scc1 K1_NONOK
    s_cmp_lt_u32 s{sT2}, {SPIN}
    s_cbranch_scc0 K1_NONOK
    v_mov_b32 v8, 0
    global_load_dwordx2 v[{vNon}:{vNon+1}], v8, s[{sDbg}:{sDbg+1}] sc1
    s_waitcnt vmcnt(0)
    s_branch K1_NONP
    """)
    p.label("K1_NONOK")
    p(f"""
    v_mov_b32 v6, {NONL}
    ds_write_b64 v6, v[{vNon}:{vNon+1}]
    s_and_b32 s{sT0}, s{sWg}, 0xfc
    s_lshl_b32 s{sT0}, s{sT0}, 7
    s_add_u32 s{sT0}, s{sT0}, {WS_FLAG}
    v_and_b32 v12, 3, v{vL}
    v_lshlrev_b32 v13, 7, v12
    buffer_load_dword v11, v13, s[{rO}:{rO+3}], s{sT0} offen sc1
    s_waitcnt lgkmcnt(0)
    """)
    p.label("K1_NON2")
    bar('l')
    p(f"""
    v_mov_b32 v6, {NONL}
    ds_read_b64 v[8:9], v6
    s_cmp_eq_u32 s{sWave}, 7
    s_cbranch_scc0 K1_RDY
    s_waitcnt vmcnt(0)
    v_cmp_eq_u32 vcc, v11, v{vNon}
    v_cmp_eq_u32 s[58:59], s{sJj}, v12
    s_or_b64 vcc, vcc, s[58:59]
    s_cmp_eq_u64 vcc, -1
    s_cselect_b32 s{sT0}, {1 if o.fast else 0}, 0
    v_mov_b32 v12, s{sT0}
    v_mov_b32 v6, {NONL+8}
    ds_write_b32 v6, v12
    """)
    p.label("K1_RDY")
    if o.e3:
        bar('l')
        for G in range(NEARLY, 16): early_group(G)
    p("s_branch K1_TAIL")

    p.label("K1_COMPUTE")
    p(f"""
    s_and_b32 s{sQh}, s{sWave}, 1
    s_lshr_b32 s{sKh}, s{sWave}, 1
    s_mov_b32 s{sC}, 0x{f32bits(SCALE_LOG2E):08x}
    v_lshl_add_u32 v8, v6, 3, v4
    v_lshlrev_b32 v8, 8, v8
    v_lshrrev_b32 v9, 1, v5
    v_lshl_add_u32 v8, v9, 3, v8
    v_and_b32 v9, 1, v3
    v_lshlrev_b32 v9, 1, v9
    v_and_b32 v2, 1, v5
    v_add_u32 v9, v9, v2
    v_lshlrev_b32 v2, 2, v4
    s_lshl_b32 s{sT0}, s{sKh}, 3
    """)
    for a in range(2):
        p(f"""
        v_add_u32 v19, s{sT0}, v9
        v_xor_b32 v19, v19, v2
        v_lshl_add_u32 v{vLW+a}, v19, 4, v8
        s_add_u32 s{sT0}, s{sT0}, 4
        """)
    p(f"""
    s_lshl_b32 s{sT0}, s{sQh}, 5
    v_add_u32 v8, s{sT0}, v7
    v_lshrrev_b32 v9, 1, v8
    v_and_b32 v9, 7, v9
    v_xor_b32 v9, v9, v6
    v_lshlrev_b32 v9, 4, v9
    v_lshl_add_u32 v{vLX}, v8, 7, v9
    s_lshl_b32 s{sT0}, s{sKh}, 5
    v_add_u32 v8, s{sT0}, v7
    v_and_b32 v9, 15, v8
    v_xor_b32 v9, v9, v6
    v_lshlrev_b32 v9, 4, v9
    v_lshl_add_u32 v{vLK}, v8, 8, v9
    v_lshl_add_u32 v8, v6, 2, v4
    v_add_u32 v8, s{sT0}, v8
    v_lshlrev_b32 v8, 8, v8
    v_and_b32 v9, 1, v5
    v_lshl_add_u32 v8, v9, 3, v8
    v_and_b32 v9, 1, v3
    v_lshlrev_b32 v9, 1, v9
    v_lshrrev_b32 v2, 1, v5
    v_add_u32 v9, v9, v2
    v_lshlrev_b32 v2, 2, v4
    """)
    for a in range(4):
        p(f"""
        s_lshl_b32 s{sT1}, s{sKh}, 1
        s_add_u32 s{sT1}, s{sT1}, {a}
        s_and_b32 s{sT1}, s{sT1}, 3
        s_lshl_b32 s{sT1}, s{sT1}, 2
        v_add_u32 v19, s{sT1}, v9
        v_xor_b32 v19, v19, v2
        v_lshl_add_u32 v{vLV+a}, v19, 4, v8
        """)
    for i in range(32):
        p(f"v_mov_b32 v{vS[0]+i}, 0")
    p(f"""
    v_mov_b32 v{vM}, 0xf149f2ca
    v_mov_b32 v{vThr}, 0xf149f2ca
    v_mov_b32 v{vL0}, 0
    v_mov_b32 v{vL1}, 0
    """)
    def wo_voffs():
        p(f"""
        s_movk_i32 s{sT0}, 3641
        s_movk_i32 s{sT1}, 1152
        """)
        for i in range(9):
            p(f"""
            v_add_u32 v2, {64*i}, v{vL}
            v_mul_u32_u24 v3, s{sT0}, v2
            v_lshrrev_b32 v3, 16, v3
            v_mul_u32_u24 v4, 18, v3
            v_sub_u32 v4, v2, v4
            v_mul_u32_u24 v3, s{sT1}, v3
            v_lshl_add_u32 v3, v4, 4, v3
            v_subrev_u32 v{vOff+i}, {(i%4)*1024}, v3
            """)
    wo_voffs()
    p("s_waitcnt lgkmcnt(0)")
    stamp(p, o, 0)
    A0 = vKA
    def q_phase(c, reads):
        f = QB[(c - 1) % 2]
        rd = list(reads)
        for ks in range(4):
            for a in range(2):
                if c >= 1:
                    p(f"{MF} {rg(vS[a],16)}, {rg(f+12*ks+4*a,4)}, {rg(f+12*ks+8,4)}, {rg(vS[a],16)}")
                for _ in range(3 if a == 0 else 2):
                    if rd: p(rd.pop(0))
        for r_ in rd: p(r_)
    for c in range(9):
        qs = QS[c % 4]
        f = QB[c % 2]
        p(f"""
        v_add_u32 v{A0}, {qs}, v{vLW}
        v_add_u32 v{A0+1}, {qs}, v{vLW+1}
        v_add_u32 v{A0+2}, {qs+16384}, v{vLX}
        v_xor_b32 v{A0+3}, 32, v{A0+2}
        v_xor_b32 v{A0+4}, 64, v{A0+2}
        v_xor_b32 v{A0+5}, 96, v{A0+2}
        s_waitcnt lgkmcnt(0)
        """)
        bar('c')
        if c == 0: stamp(p, o, 1)
        reads = []
        for ks in range(4):
            for a in range(2):
                reads.append(f"ds_read_b64_tr_b16 {rg(f+12*ks+4*a,2)}, v{A0+a} offset:{ks*4096}")
                reads.append(f"ds_read_b64_tr_b16 {rg(f+12*ks+4*a+2,2)}, v{A0+a} offset:{ks*4096+1024}")
            reads.append(f"ds_read_b128 {rg(f+12*ks+8,4)}, v{A0+2+ks}")
        q_phase(c, reads)
    p("s_waitcnt lgkmcnt(0)")
    bar('c')
    q_phase(9, [])
    stamp(p, o, 2)
    p(f"""
    s_lshl_b32 s{sT0}, s{sQh}, 13
    s_add_u32 s{sT0}, s{sT0}, {QX}
    s_lshl_b32 s{sT1}, s{sKh}, 12
    s_add_u32 s{sT1}, s{sT1}, s{sT0}
    v_lshlrev_b32 v2, 4, v{vL}
    v_add_u32 v3, s{sT1}, v2
    v_add_u32 v2, s{sT0}, v2
    """)
    p(f"v_mov_b32 v{vKA}, v{vLK}")
    for s in range(1, 8):
        p(f"v_xor_b32 v{vKA+s}, {s<<5}, v{vLK}")
    for i in range(64):
        p(f"v_mov_b32 v{vO+i}, 0")
    for a in range(2):
        for j in range(8):
            p(f"v_cvt_pk_bf16_f32 v{vVf+8*a+j}, v{vS[a]+2*j}, v{vS[a]+2*j+1}")
    for k in range(4):
        p(f"ds_write_b128 v3, {rg(vVf+4*k,4)} offset:{k*1024}")
    p("s_waitcnt lgkmcnt(0)")
    bar('c')
    for s in range(8):
        p(f"ds_read_b128 {rg(vQ+4*s,4)}, v2 offset:{s*1024}")

    def k_addrs(sreg):
        p(f"v_add_u32 v{vKA}, s{sreg}, v{vLK}")
        for s in range(1, 8):
            p(f"v_xor_b32 v{vKA+s}, {s<<5}, v{vKA}")
    def v_addrs(sreg):
        for a in range(4):
            p(f"v_add_u32 v{vVA+a}, s{sreg}, v{vLV+a}")
    def adv2(s):
        p(f"""
        s_add_u32 s{s}, s{s}, {2*SLOT}
        s_cmp_ge_u32 s{s}, {NSLOT*SLOT}
        s_cselect_b32 s{sT0}, {NSLOT*SLOT}, 0
        s_sub_u32 s{s}, s{s}, s{sT0}
        """)
    def tmax(S):
        p(f"""
        v_max3_f32 v2, v{S}, v{S+1}, v{S+2}
        v_max3_f32 v3, v{S+3}, v{S+4}, v{S+5}
        v_max3_f32 v2, v2, v{S+6}, v{S+7}
        v_max3_f32 v3, v3, v{S+8}, v{S+9}
        v_max3_f32 v2, v2, v{S+10}, v{S+11}
        v_max3_f32 v3, v3, v{S+12}, v{S+13}
        v_max3_f32 v2, v2, v{S+14}, v{S+15}
        v_max_f32 v2, v2, v3
        v_mov_b32 v3, v2
        s_nop 1
        v_permlane32_swap_b32 v2, v3
        v_max_f32 v2, v2, v3
        v_mul_f32 v{vTn}, s{sC}, v2
        """)
    p("s_waitcnt lgkmcnt(0)")
    bar('c')
    stamp(p, o, 3)
    for s in range(8):
        p(f"ds_read_b128 {rg(vKf+4*s,4)}, v{vKA+s}")
    p(f"s_mov_b32 s{sRK}, {S_[1]}")
    k_addrs(sRK)
    p("s_waitcnt lgkmcnt(0)")
    bar('c')
    for s in range(8):
        c = '0' if s == 0 else rg(vS[0], 16)
        p(f"{MF} {rg(vS[0],16)}, {rg(vKf+4*s,4)}, {rg(vQ+4*s,4)}, {c}")
    for s in range(8):
        p(f"ds_read_b128 {rg(vKf+4*s,4)}, v{vKA+s}")
    p(f"""
    s_mov_b32 s{sRV}, {S_[2]}
    s_mov_b32 s{sRK}, {S_[3]}
    s_mov_b32 s{sCnt}, 0
    """)
    v_addrs(sRV)
    k_addrs(sRK)
    tmax(vS[0])

    def alpha(tag, cur, do_qk):
        S, Sn = vS[cur], vS[1 - cur]
        p("s_waitcnt lgkmcnt(0)")
        p("s_barrier")
        p(f"""
        v_cmp_gt_f32 vcc, v{vTn}, v{vThr}
        s_cbranch_vccnz K1_RS{tag}
        """)
        p.label(f"K1_BK{tag}")
        reads = [(a, ks, h) for a in range(4) for ks in range(2) for h in range(2)]
        for j in range(8):
            if do_qk:
                c = '0' if j == 0 else rg(Sn, 16)
                p(f"{MF} {rg(Sn,16)}, {rg(vKf+4*j,4)}, {rg(vQ+4*j,4)}, {c}")
            for (a, ks, h) in reads[2*j:2*j+2]:
                f = vVf + (a * 2 + ks) * 4 + 2 * h
                p(f"ds_read_b64_tr_b16 {rg(f,2)}, v{vVA+a} offset:{ks*4096+h*2048}")
            p(f"v_fma_f32 v{S+2*j}, v{S+2*j}, s{sC}, -v{vM}")
            p(f"v_fma_f32 v{S+2*j+1}, v{S+2*j+1}, s{sC}, -v{vM}")
            p(f"v_exp_f32 v{S+2*j}, v{S+2*j}")
            p(f"v_exp_f32 v{S+2*j+1}, v{S+2*j+1}")
            if j >= 1:
                k = j - 1
                p(f"v_cvt_pk_bf16_f32 v{vP+k}, v{S+2*k}, v{S+2*k+1}")
                p(f"v_add_f32 v{vL0}, v{vL0}, v{S+2*k}")
                p(f"v_add_f32 v{vL1}, v{vL1}, v{S+2*k+1}")
        p(f"v_cvt_pk_bf16_f32 v{vP+7}, v{S+14}, v{S+15}")
        p(f"v_add_f32 v{vL0}, v{vL0}, v{S+14}")
        p(f"v_add_f32 v{vL1}, v{vL1}, v{S+15}")

    def beta(tag, cur, read_k, do_tmax, barrier=True):
        Sn = vS[1 - cur]
        p("s_waitcnt lgkmcnt(0)")
        if barrier: p("s_barrier")
        n = 0
        for a in range(4):
            for ks in range(2):
                f = vVf + (a * 2 + ks) * 4
                p(f"{MF} {rg(vO+16*a,16)}, {rg(f,4)}, {rg(vP+4*ks,4)}, {rg(vO+16*a,16)}")
                if read_k:
                    p(f"ds_read_b128 {rg(vKf+4*n,4)}, v{vKA+n}")
                if n == 0:
                    adv2(sRV); adv2(sRK)
                if n == 1 and do_tmax:
                    tmax(Sn)
                if n == 3: v_addrs(sRV)
                n += 1
        k_addrs(sRK)

    def rescale(tag):
        p.label(f"K1_RS{tag}")
        p(f"""
        v_max_f32 v3, v{vTn}, v{vM}
        v_sub_f32 v4, v{vM}, v3
        v_exp_f32 v4, v4
        v_mov_b32 v{vM}, v3
        v_add_f32 v{vThr}, 0x41000000, v3
        """)
        p(f"v_mul_f32 v{vL0}, v{vL0}, v4")
        p(f"v_mul_f32 v{vL1}, v{vL1}, v4")
        for i in range(64):
            p(f"v_mul_f32 v{vO+i}, v{vO+i}, v4")
        p(f"s_branch K1_BK{tag}")

    p.label("K1_LOOP")
    alpha('L0', 0, True)
    beta('L0', 0, True, True)
    alpha('L1', 1, True)
    beta('L1', 1, True, True)
    p(f"""
    s_add_u32 s{sCnt}, s{sCnt}, 1
    s_cmp_lt_u32 s{sCnt}, 7
    s_cbranch_scc1 K1_LOOP
    """)
    nbar['c'] += 28
    stamp(p, o, 4)
    alpha('A', 0, True); nbar['c'] += 1
    beta('A', 0, False, True, barrier=False)
    alpha('B', 1, False); nbar['c'] += 1
    p("s_waitcnt lgkmcnt(0)")
    for a in (2, 3, 0, 1):
        for ks in range(2):
            f = vVf + (a * 2 + ks) * 4
            p(f"{MF} {rg(vO+16*a,16)}, {rg(f,4)}, {rg(vP+4*ks,4)}, {rg(vO+16*a,16)}")
    stamp(p, o, 5)
    vS0 = vS[0]
    p(f"""
    v_add_f32 v{vL0}, v{vL0}, v{vL1}
    v_mov_b32 v{vL1}, v{vL0}
    s_nop 1
    v_permlane32_swap_b32 v{vL0}, v{vL1}
    v_add_f32 v{vThr}, v{vL0}, v{vL1}
    v_and_b32 v7, 31, v{vL}
    v_lshlrev_b32 v7, 3, v7
    s_lshl_b32 s{sT0}, s{sWave}, 8
    s_add_u32 s{sT0}, s{sT0}, {STAT}
    s_xor_b32 s{sT1}, s{sWave}, 2
    s_lshl_b32 s{sT1}, s{sT1}, 8
    s_add_u32 s{sT1}, s{sT1}, {STAT}
    v_add_u32 v2, s{sT0}, v7
    v_add_u32 v7, s{sT1}, v7
    v_lshlrev_b32 v3, 4, v{vL}
    s_xor_b32 s{sT1}, s{sWave}, 2
    s_lshl_b32 s{sT1}, s{sT1}, 13
    s_add_u32 s{sT1}, s{sT1}, {EX}
    s_lshl_b32 s{sT0}, s{sWave}, 13
    s_add_u32 s{sT0}, s{sT0}, {EX}
    v_add_u32 v4, s{sT1}, v3
    v_add_u32 v5, s{sT0}, v3
    s_mov_b32 s{rO}, s{sWs}
    s_mov_b32 s{rO+1}, s{sWs+1}
    s_mov_b32 s{rO+2}, {WS_SIZE}
    s_mov_b32 s{rO+3}, 0x20000
    """)
    wo_srd()
    bar('c')
    stamp(p, o, 'e1')
    p(f"ds_write_b64 v2, v[{vM}:{vM+1}]")
    for a in (2, 3):
        for g in range(4):
            p(f"ds_write_b128 v4, {rg(vO+16*a+4*g,4)} offset:{(a-2)*4096+g*1024}")
    p("s_waitcnt lgkmcnt(0)")
    stamp(p, o, 'e2')
    bar('c')
    stamp(p, o, 'e3')
    p(f"ds_read_b64 v[{vS0}:{vS0+1}], v7")
    for a in range(2):
        for g in range(4):
            p(f"ds_read_b128 {rg(vO+32+16*a+4*g,4)}, v5 offset:{a*4096+g*1024}")
    p(f"""
    v_mov_b32 v6, {NONL}
    ds_read_b64 v[8:9], v6
    s_waitcnt lgkmcnt(9)
    v_max_f32 v2, v{vM}, v{vS0}
    v_sub_f32 v3, v{vM}, v2
    v_sub_f32 v4, v{vS0}, v2
    v_exp_f32 v3, v3
    v_exp_f32 v4, v4
    v_mul_f32 v5, v3, v{vThr}
    v_fmac_f32 v5, v4, v{vS0+1}
    v_rcp_f32 v6, v5
    v_mul_f32 v3, v3, v6
    v_mul_f32 v4, v4, v6
    """)
    for i in range(32):
        p(f"v_mul_f32 v{vO+i}, v{vO+i}, v3")
    for a in range(2):
        p(f"s_waitcnt lgkmcnt({5-4*a})")
        for i in range(16):
            p(f"v_fmac_f32 v{vO+16*a+i}, v{vO+32+16*a+i}, v4")
    if o.e3:
        bar('c')
    order = [0, 2, 1, 3]
    for a in range(2):
        for idx, g in enumerate(order):
            p(f"v_cvt_pk_bf16_f32 v{vKf+8*a+2*idx}, v{vO+16*a+4*g}, v{vO+16*a+4*g+1}")
            p(f"v_cvt_pk_bf16_f32 v{vKf+8*a+2*idx+1}, v{vO+16*a+4*g+2}, v{vO+16*a+4*g+3}")
    stamp(p, o, 'e4')
    p(f"""
    v_and_b32 v2, 15, v{vL}
    v_lshrrev_b32 v3, 5, v{vL}
    v_lshl_add_u32 v2, v3, 4, v2
    v_lshlrev_b32 v2, 4, v2
    v_bfe_u32 v3, v{vL}, 4, 1
    v_lshl_add_u32 v2, v3, 12, v2
    s_lshl_b32 s{sT0}, s{sWg}, 14
    s_lshl_b32 s{sT1}, s{sQh}, 13
    s_add_u32 s{sT0}, s{sT0}, s{sT1}
    s_lshl_b32 s{sT1}, s{sKh}, 11
    s_add_u32 s{sT0}, s{sT0}, s{sT1}
    """)
    for a in range(2):
        p(f"buffer_store_dwordx4 {rg(vKf+8*a,4)}, v2, s[{rO}:{rO+3}], s{sT0} offen offset:{a*1024} sc1")
        p(f"buffer_store_dwordx4 {rg(vKf+8*a+4,4)}, v2, s[{rO}:{rO+3}], s{sT0} offen offset:{a*1024+512} sc1")
    assert nbar['c'] == nbar['l'], nbar
    print('barriers', nbar, file=sys.stderr)
    p.label("K1_TAIL")
    if o.prio: p("s_setprio 0")
    tail(p, o, locals())
    for tag in ('L0', 'L1', 'A', 'B'):
        rescale(tag)
    p.label("K1_END")
    p("s_endpgm")
    return p

def tail(p, o, L):
    g = lambda n: L[n]
    sWave, sB, sXc, sJj, sWg, sT0, sT1, sT2 = g('sWave'), g('sB'), g('sXc'), g('sJj'), g('sWg'), g('sT0'), g('sT1'), g('sT2')
    rO, rW, rX, sN, sTag, sOut, sWs = g('rO'), g('rW'), g('rX'), g('sN'), g('sTag'), g('sOut'), g('sWs')
    vL, vOff, wo_addr, NEARLY, NONL, wo_voffs = g('vL'), g('vOff'), g('wo_addr'), g('NEARLY'), g('NONL'), g('wo_voffs')
    sQt, sKh2 = 40, 41
    vAcc, vB, vF, vLA, vAd = 28, 64, 96, 19, 20
    sFast = 52
    p(f"""
    s_cmp_lt_u32 s{sWave}, 4
    s_cbranch_scc0 T_E4L
    s_waitcnt vmcnt(0) lgkmcnt(0)
    s_branch T_E4
    """)
    p.label("T_E4L")
    p("s_waitcnt lgkmcnt(0)")
    p.label("T_E4")
    p(f"""
    v_readfirstlane_b32 s{sN}, v8
    v_readfirstlane_b32 s{sN+1}, v9
    s_barrier
    """)
    if o.stamps: stamp(p, o, 6)
    def b_loads():
        p(f"""
        s_and_b32 s{sT0}, s{sWg}, 0xfc
        s_lshl_b32 s{sT1}, s{sKh2}, 1
        s_add_u32 s{sT0}, s{sT0}, s{sT1}
        s_lshl_b32 s{sT0}, s{sT0}, 14
        s_lshl_b32 s{sT1}, s{sQt}, 12
        s_add_u32 s{sT0}, s{sT0}, s{sT1}
        s_add_u32 s{sT1}, s{sT0}, 16384
        """)
        for kk in range(8):
            p(f"buffer_load_dwordx4 {rg(vB+4*kk,4)}, v5, s[{rO}:{rO+3}], s{sT0 if kk < 4 else sT1} offen offset:{(kk&3)*1024} sc1")
    p(f"""
    s_and_b32 s{sQt}, s{sWave}, 3
    s_lshr_b32 s{sKh2}, s{sWave}, 2
    v_lshlrev_b32 v5, 4, v{vL}
    v_mov_b32 v6, {NONL+8}
    ds_read_b32 v12, v6
    s_cmp_eq_u32 s{sWave}, 7
    s_cbranch_scc0 T_F0
    v_mov_b32 v9, s{sN}
    s_lshl_b32 s{sT0}, s{sWg}, 7
    s_add_u32 s{sT0}, s{sT0}, {WS_FLAG}
    v_mov_b32 v3, 0
    v_cmp_eq_u32 vcc, 0, v{vL}
    s_and_saveexec_b64 s[58:59], vcc
    buffer_store_dword v9, v3, s[{rO}:{rO+3}], s{sT0} offen sc1
    s_mov_b64 exec, s[58:59]
    """)
    p.label("T_F0")
    p(f"""
    s_waitcnt lgkmcnt(0)
    v_readfirstlane_b32 s{sFast}, v12
    s_cmp_eq_u32 s{sFast}, 0
    s_cbranch_scc1 T_SLOW
    """)
    b_loads()
    p.label("T_SLOW")
    p(f"""
    s_cmp_eq_u32 s{sWave}, 7
    s_cbranch_scc0 T_NOFLAG
    s_cmp_eq_u32 s{sFast}, 0
    s_cbranch_scc0 T_SETUP
    s_and_b32 s{sT0}, s{sWg}, 0xfc
    s_lshl_b32 s{sT0}, s{sT0}, 7
    s_add_u32 s{sT0}, s{sT0}, {WS_FLAG}
    v_and_b32 v8, 3, v{vL}
    v_lshlrev_b32 v8, 7, v8
    s_mov_b32 s{sT1}, 0
    buffer_load_dword v10, v8, s[{rO}:{rO+3}], s{sT0} offen sc1
    buffer_load_dword v11, v8, s[{rO}:{rO+3}], s{sT0} offen sc1
    """)
    p("s_branch T_SETUP")
    p.label("T_NOFLAG")
    p.label("T_SETUP")
    if not o.e3:
        p("s_barrier")
        nlate = 16 - NEARLY
        p(f"""
        s_cmp_lt_u32 s{sWave}, {min(nlate, 4)}
        s_cbranch_scc0 T_NOLATE
        """)
        for rep in range((nlate + 3) // 4):
            if rep > 0:
                p(f"s_cmp_lt_u32 s{sWave}, {nlate - 4*rep}")
                p("s_cbranch_scc0 T_NOLATE")
            p(f"s_add_u32 s{sT2}, s{sWave}, {NEARLY + 4*rep}")
            p(f"""
            s_mul_i32 s{sT1}, s{sT2}, 9216
            s_add_u32 s{sT0}, s{sT1}, 49152
            s_sub_u32 s{sT1}, s{sT1}, {12*9216}
            s_cmp_lt_u32 s{sT2}, 12
            s_cselect_b32 s{sT1}, s{sT0}, s{sT1}
            s_mul_i32 s{sT0}, s{sT2}, 36864
            """)
            for i in range(9):
                if i % 4 == 0:
                    p(f"s_add_u32 m0, s{sT1}, {(i//4)*4096}")
                p(f"buffer_load_dwordx4 v{vOff+i}, s[{rW}:{rW+3}], s{sT0} offen offset:{(i%4)*1024} lds")
    p.label("T_NOLATE")
    p(f"""
    v_lshrrev_b32 v2, 4, v{vL}
    v_and_b32 v3, 15, v{vL}
    v_lshrrev_b32 v4, 2, v3
    v_and_b32 v6, 3, v3
    v_lshl_add_u32 v2, v2, 2, v4
    v_mul_u32_u24 v2, 288, v2
    v_lshl_add_u32 v{vLA}, v6, 3, v2
    s_and_b32 s{sTag}, s{sN}, 0xfff
    s_lshr_b32 s{sTag+1}, s{sN}, 12
    s_and_b32 s{sTag+1}, s{sTag+1}, 0xfff
    s_lshr_b32 s{sTag+2}, s{sN}, 24
    s_lshl_b32 s{sT2}, s{sN+1}, 8
    s_or_b32 s{sTag+2}, s{sTag+2}, s{sT2}
    s_and_b32 s{sTag+2}, s{sTag+2}, 0xfff
    s_lshr_b32 s{sTag+3}, s{sN+1}, 4
    s_and_b32 s{sTag+3}, s{sTag+3}, 0xfff
    v_mov_b32 v7, 0xfffff000
    """)
    vTagHi = 22
    if o.pk:
        p(f"""
        s_lshl_b32 s{sTag}, s{sN}, 16
        s_and_b32 s{sTag+1}, s{sN}, 0xffff0000
        s_lshl_b32 s{sT2}, s{sN+1}, 16
        s_xor_b32 s{sTag+2}, s{sTag}, s{sT2}
        s_xor_b32 s{sTag+2}, s{sTag+2}, 0x5a5a0000
        s_xor_b32 s{sTag+3}, s{sTag+1}, s{sT2}
        s_xor_b32 s{sTag+3}, s{sTag+3}, 0xa5c30000
        v_and_b32 v3, 3, v{vL}
        v_mov_b32 v{vTagHi}, s{sTag}
        v_mov_b32 v4, s{sTag+1}
        v_cmp_eq_u32 vcc, 1, v3
        v_cndmask_b32 v{vTagHi}, v{vTagHi}, v4, vcc
        v_mov_b32 v4, s{sTag+2}
        v_cmp_eq_u32 vcc, 2, v3
        v_cndmask_b32 v{vTagHi}, v{vTagHi}, v4, vcc
        v_mov_b32 v4, s{sTag+3}
        v_cmp_eq_u32 vcc, 3, v3
        v_cndmask_b32 v{vTagHi}, v{vTagHi}, v4, vcc
        """)
    for i in range(36):
        p(f"v_mov_b32 v{vAcc+i}, 0")
    p(f"""
    s_cmp_eq_u32 s{sWave}, 7
    s_cbranch_scc0 T_NOPOLL
    s_cmp_eq_u32 s{sFast}, 0
    s_cbranch_scc0 T_NOPOLL
    s_and_b32 s{sT0}, s{sWg}, 0xfc
    s_lshl_b32 s{sT0}, s{sT0}, 7
    s_add_u32 s{sT0}, s{sT0}, {WS_FLAG}
    s_mov_b32 s{sT1}, 0
    """)
    p.label("T_POLL1")
    p(f"""
    s_waitcnt vmcnt(1)
    v_cmp_ne_u32 vcc, v10, v9
    s_cbranch_vccz T_NOPOLL
    buffer_load_dword v10, v8, s[{rO}:{rO+3}], s{sT0} offen sc1
    s_add_u32 s{sT1}, s{sT1}, 1
    s_waitcnt vmcnt(1)
    v_cmp_ne_u32 vcc, v11, v9
    s_cbranch_vccz T_NOPOLL
    buffer_load_dword v11, v8, s[{rO}:{rO+3}], s{sT0} offen sc1
    s_cmp_lt_u32 s{sT1}, {SPIN}
    s_cbranch_scc1 T_POLL1
    """)
    p.label("T_NOPOLL")
    p(f"""
    s_waitcnt vmcnt(0)
    s_barrier
    """)
    if o.stamps: stamp(p, o, 7)
    p(f"s_cmp_eq_u32 s{sFast}, 0")
    p("s_cbranch_scc0 T_BDONE")
    b_loads()
    p.label("T_BDONE")
    if o.gopt: gemm_opt(p, vAcc, vB, vF, vAd, vLA, sKh2, sT2, wo_addr)
    else: gen9.gemm_body(p, vAcc, vB, vF, vAd, vLA, sKh2, sT2, wo_addr, [0, 1, 2, 3, 4], [5, 6, 7, 8], True)
    if o.stamps: stamp(p, o, 8)
    p(f"""
    s_barrier
    s_mul_i32 s{sT0}, s{sQt}, 9216
    v_add_u32 v2, s{sT0}, v5
    s_cmp_eq_u32 s{sKh2}, 0
    s_cbranch_scc0 T_H1
    """)
    for nt in range(5, 9):
        p(f"ds_write_b128 v2, {rg(vAcc+4*nt,4)} offset:{nt*1024}")
    p("s_branch T_H2")
    p.label("T_H1")
    for nt in range(0, 5):
        p(f"ds_write_b128 v2, {rg(vAcc+4*nt,4)} offset:{nt*1024}")
    p.label("T_H2")
    p(f"""
    s_lshl_b32 s{sT0}, s{sXc}, 3
    s_add_u32 s{sT0}, s{sT0}, s{sB}
    s_lshl_b32 s{sT0}, s{sT0}, 2
    s_add_u32 s{sT0}, s{sT0}, s{sJj}
    s_lshl_b32 s{sT0}, s{sT0}, 2
    s_add_u32 s{sT0}, s{sT0}, s{sQt}
    """)
    if o.pk:
        p(f"""
        s_lshl_b32 s{sT0}, s{sT0}, 1
        s_add_u32 s{sT0}, s{sT0}, s{sKh2}
        s_mul_i32 s{sT0}, s{sT0}, 3072
        """)
    else:
        p(f"s_mul_i32 s{sT0}, s{sT0}, 9216")
    p(f"""
    s_add_u32 s{sT0}, s{sT0}, {WS_PART}
    s_waitcnt lgkmcnt(0)
    s_barrier
    s_cmp_eq_u32 s{sKh2}, 0
    s_cbranch_scc0 T_H3
    """)
    def fin(nts):
        for nt in nts:
            p(f"ds_read_b128 {rg(vF+4*nt,4)}, v2 offset:{nt*1024}")
        for idx, nt in enumerate(nts):
            p(f"s_waitcnt lgkmcnt({len(nts)-1-idx})")
            for e in range(4):
                p(f"v_add_f32 v{vAcc+4*nt+e}, v{vAcc+4*nt+e}, v{vF+4*nt+e}")
            if not o.pk:
                for e in range(4):
                    p(f"v_and_or_b32 v{vAcc+4*nt+e}, v{vAcc+4*nt+e}, v7, s{sTag+e}")
                p(f"s_add_u32 s{sT1}, s{sT0}, {(nt//4)*4096}")
                p(f"buffer_store_dwordx4 {rg(vAcc+4*nt,4)}, v5, s[{rO}:{rO+3}], s{sT1} offen offset:{(nt%4)*1024} sc1")
        if o.pk:
            V = [vAcc + 4 * nt + e for nt in nts for e in range(4)]
            vG = 140
            for gi in range(3):
                vals = V[7 * gi: 7 * gi + 7]
                vals += [None] * (7 - len(vals))
                for d in range(3):
                    a, b = vals[2 * d], vals[2 * d + 1]
                    dst = vG + 4 * gi + d
                    if a is None: p(f"v_mov_b32 v{dst}, 0")
                    else: p(f"v_cvt_pk_bf16_f32 v{dst}, v{a}, {'v%d' % b if b is not None else '0'}")
                dst = vG + 4 * gi + 3
                if vals[6] is None:
                    p(f"v_mov_b32 v{dst}, v{vTagHi}")
                else:
                    p(f"v_cvt_pk_bf16_f32 v{dst}, v{vals[6]}, 0")
                    p(f"v_or_b32 v{dst}, v{dst}, v{vTagHi}")
                p(f"buffer_store_dwordx4 {rg(vG+4*gi,4)}, v5, s[{rO}:{rO+3}], s{sT0} offen offset:{gi*1024} sc1")
    fin(list(range(0, 5)))
    p("s_branch T_H4")
    p.label("T_H3")
    fin(list(range(5, 9)))
    p.label("T_H4")
    if o.stamps: stamp(p, o, 9)
    vX = 100
    if o.pk:
        vA = 140
        p(f"""
        s_cmp_ge_u32 s{sWave}, 3
        s_cbranch_scc1 T_DONE
        s_lshl_b32 s{sT0}, s{sB}, 2
        s_add_u32 s{sT0}, s{sT0}, s{sJj}
        s_lshl_b32 s{sT0}, s{sT0}, 3
        s_add_u32 s{sT0}, s{sT0}, s{sXc}
        s_mul_i32 s{sT0}, s{sT0}, 3072
        s_lshl_b32 s{sT1}, s{sWave}, 10
        s_add_u32 s{sT0}, s{sT0}, s{sT1}
        s_add_u32 s{sT0}, s{sT0}, {WS_PART}
        s_mov_b32 s{rX}, s{sOut}
        s_mov_b32 s{rX+1}, s{sOut+1}
        s_mov_b32 s{rX+2}, {512*576*2}
        s_mov_b32 s{rX+3}, 0x20000
        v_lshlrev_b32 v3, 4, v{vL}
        s_lshr_b32 s{sT1}, s{sXc}, 1
        s_lshl_b32 s{sT1}, s{sT1}, 4
        s_lshl_b32 s{sT2}, s{sB}, 6
        s_add_u32 s{sT1}, s{sT1}, s{sT2}
        v_and_b32 v4, 15, v{vL}
        v_add_u32 v4, s{sT1}, v4
        s_movk_i32 s{sT1}, 1152
        v_mul_u32_u24 v4, s{sT1}, v4
        v_lshrrev_b32 v6, 4, v{vL}
        v_lshl_add_u32 v4, v6, 3, v4
        s_mul_i32 s{sT1}, s{sJj}, 288
        s_and_b32 s{sT2}, s{sXc}, 1
        s_mul_i32 s{sT2}, s{sT2}, 160
        s_add_u32 s{sT1}, s{sT1}, s{sT2}
        v_add_u32 v4, s{sT1}, v4
        s_mov_b32 s{sT2}, 0
        s_mov_b64 s[56:57], exec
        v_mul_u32_u24 v6, {32*8*3}, v{vL}
        v_lshlrev_b32 v6, 10, v6
        v_add_u32 v6, 12, v6
        v_mov_b32 v9, s{sTag}
        s_mov_b64 exec, 0xff
        buffer_load_dword v10, v6, s[{rO}:{rO+3}], s{sT0} offen sc1
        buffer_load_dword v11, v6, s[{rO}:{rO+3}], s{sT0} offen sc1
        """)
        p.label("T_PP")
        p(f"""
        s_waitcnt vmcnt(1)
        v_xor_b32 v8, v10, v9
        v_lshrrev_b32 v8, 16, v8
        v_cmp_ne_u32 vcc, 0, v8
        s_cbranch_vccz T_PPD
        buffer_load_dword v10, v6, s[{rO}:{rO+3}], s{sT0} offen sc1
        s_add_u32 s{sT2}, s{sT2}, 1
        s_waitcnt vmcnt(1)
        v_xor_b32 v8, v11, v9
        v_lshrrev_b32 v8, 16, v8
        v_cmp_ne_u32 vcc, 0, v8
        s_cbranch_vccz T_PPD
        buffer_load_dword v11, v6, s[{rO}:{rO+3}], s{sT0} offen sc1
        s_cmp_lt_u32 s{sT2}, {SPIN}
        s_cbranch_scc1 T_PP
        """)
        p.label("T_PPD")
        p(f"""
        s_mov_b64 exec, s[56:57]
        s_mov_b32 s{sT2}, 0
        """)
        p.label("T_POLL2")
        p(f"s_mov_b32 s{sT1}, s{sT0}")
        for s_ in range(8):
            p(f"buffer_load_dwordx4 {rg(vX+4*s_,4)}, v3, s[{rO}:{rO+3}], s{sT1} offen sc1")
            if s_ < 7: p(f"s_add_u32 s{sT1}, s{sT1}, {32*8*3072}")
        p(f"""
        s_add_u32 s{sT2}, s{sT2}, 1
        v_mov_b32 v6, 0
        """)
        for s_ in range(8):
            p(f"s_waitcnt vmcnt({7-s_})")
            p(f"v_xor_b32 v8, v{vX+4*s_+3}, v{vTagHi}")
            p(f"v_or_b32 v6, v6, v8")
        p(f"""
        v_lshrrev_b32 v6, 16, v6
        v_cmp_ne_u32 vcc, 0, v6
        s_cmp_lt_u32 s{sT2}, {SPIN}
        s_cbranch_scc0 T_SUM
        s_cbranch_vccnz T_POLL2
        """)
        p.label("T_SUM")
        p("v_mov_b32 v7, 0xffff0000")
        for s_ in range(8):
            for j in range(7):
                src = vX + 4 * s_ + j // 2
                if s_ == 0:
                    if j % 2 == 0: p(f"v_lshlrev_b32 v{vA+j}, 16, v{src}")
                    else: p(f"v_and_b32 v{vA+j}, v7, v{src}")
                else:
                    if j % 2 == 0: p(f"v_lshlrev_b32 v8, 16, v{src}")
                    else: p(f"v_and_b32 v8, v7, v{src}")
                    p(f"v_add_f32 v{vA+j}, v{vA+j}, v8")
        SCO = ' sc1' if o.outsc else ''
        if o.wide:
            p(f"""
            v_and_b32 v12, 15, v{vL}
            v_mul_u32_u24 v12, 176, v12
            v_lshrrev_b32 v13, 4, v{vL}
            v_lshl_add_u32 v12, v13, 3, v12
            v_add_u32 v12, 40960, v12
            """)
            def st(width, reg, off):
                if not o.wide:
                    op = {8: 'buffer_store_dwordx2', 4: 'buffer_store_dword', 2: 'buffer_store_short'}[width]
                    r = rg(reg, 2) if width == 8 else f"v{reg}"
                    p(f"{op} {r}, v4, s[{rX}:{rX+3}], 0 offen offset:{off}{SCO}")
                else:
                    op = {8: 'ds_write_b64', 4: 'ds_write_b32', 2: 'ds_write_b16'}[width]
                    r = rg(reg, 2) if width == 8 else f"v{reg}"
                    p(f"{op} v12, {r} offset:{off}")
        else:
            def st(width, reg, off):
                op = {8: 'buffer_store_dwordx2', 4: 'buffer_store_dword', 2: 'buffer_store_short'}[width]
                r = rg(reg, 2) if width == 8 else f"v{reg}"
                p(f"{op} {r}, v4, s[{rX}:{rX+3}], 0 offen offset:{off}{SCO}")
        FIN = 'T_OW' if o.wide else 'T_DONE'
        p(f"""
        s_cmp_eq_u32 s{sWave}, 1
        s_cbranch_scc1 T_O1
        s_cmp_eq_u32 s{sWave}, 2
        s_cbranch_scc1 T_O2
        v_cvt_pk_bf16_f32 v8, v{vA}, v{vA+1}
        v_cvt_pk_bf16_f32 v9, v{vA+2}, v{vA+3}
        v_cvt_pk_bf16_f32 v10, v{vA+4}, v{vA+5}
        v_cvt_pk_bf16_f32 v11, v{vA+6}, v{vA+6}
        """)
        st(8, 8, 0); st(4, 10, 32); st(2, 11, 36)
        p(f"s_branch {FIN}")
        p.label("T_O1")
        p(f"""
        v_cvt_pk_bf16_f32 v11, v{vA}, v{vA}
        v_cvt_pk_bf16_f32 v8, v{vA+1}, v{vA+2}
        v_cvt_pk_bf16_f32 v9, v{vA+3}, v{vA+4}
        v_cvt_pk_bf16_f32 v10, v{vA+5}, v{vA+6}
        """)
        st(2, 11, 38); st(8, 8, 64); st(4, 10, 96)
        p(f"s_branch {FIN}")
        p.label("T_O2")
        p(f"""
        v_cvt_pk_bf16_f32 v10, v{vA}, v{vA+1}
        v_cvt_pk_bf16_f32 v8, v{vA+2}, v{vA+3}
        v_cvt_pk_bf16_f32 v9, v{vA+4}, v{vA+5}
        """)
        st(4, 10, 100)
        if o.wide:
            st(8, 8, 128)
            p.label("T_OW")
            p(f"""
            s_waitcnt lgkmcnt(0)
            s_barrier
            s_and_b32 s{sT0}, s{sXc}, 1
            s_cmp_eq_u32 s{sT0}, 0
            s_cselect_b32 s{sT1}, 10, 8
            s_mov_b32 s{sT2}, 8192
            s_cselect_b32 s{sT2}, 6554, s{sT2}
            v_mul_u32_u24 v12, s{sT2}, v0
            v_lshrrev_b32 v12, 16, v12
            v_mul_u32_u24 v13, s{sT1}, v12
            v_sub_u32 v13, v0, v13
            v_cmp_gt_u32 vcc, 16, v12
            s_and_saveexec_b64 s[58:59], vcc
            s_cbranch_execz T_OWX
            v_mul_u32_u24 v14, 176, v12
            v_lshl_add_u32 v14, v13, 4, v14
            ds_read_b128 v[8:11], v14 offset:40960
            s_lshr_b32 s{sT1}, s{sXc}, 1
            s_lshl_b32 s{sT1}, s{sT1}, 4
            s_lshl_b32 s{sT2}, s{sB}, 6
            s_add_u32 s{sT1}, s{sT1}, s{sT2}
            v_add_u32 v12, s{sT1}, v12
            s_movk_i32 s{sT1}, 1152
            v_mul_u32_u24 v12, s{sT1}, v12
            v_lshl_add_u32 v12, v13, 4, v12
            s_mul_i32 s{sT1}, s{sJj}, 288
            s_mul_i32 s{sT0}, s{sT0}, 160
            s_add_u32 s{sT1}, s{sT1}, s{sT0}
            s_waitcnt lgkmcnt(0)
            buffer_store_dwordx4 v[8:11], v12, s[{rX}:{rX+3}], s{sT1} offen{SCO}
            """)
            p.label("T_OWX")
            p("s_mov_b64 exec, s[58:59]")
        else:
            p(f"""
            s_and_b32 s{sT0}, s{sXc}, 1
            s_cmp_eq_u32 s{sT0}, 0
            s_cbranch_scc0 T_DONE
            """)
            st(8, 8, 128)
    else:
        p(f"""
        s_cmp_ge_u32 s{sWave}, 5
        s_cbranch_scc1 T_DONE
        v_cmp_gt_u32 vcc, 288, v0
        s_and_saveexec_b64 s[58:59], vcc
        s_mul_i32 s{sT0}, s{sXc}, 288
        v_add_u32 v2, s{sT0}, v0
        v_lshlrev_b32 v3, 4, v2
        s_lshl_b32 s{sT0}, s{sB}, 2
        s_add_u32 s{sT0}, s{sT0}, s{sJj}
        s_mul_i32 s{sT0}, s{sT0}, 36864
        s_add_u32 s{sT0}, s{sT0}, {WS_PART}
        s_mov_b32 s{rX}, s{sOut}
        s_mov_b32 s{rX+1}, s{sOut+1}
        s_mov_b32 s{rX+2}, {512*576*2}
        s_mov_b32 s{rX+3}, 0x20000
        v_lshrrev_b32 v4, 6, v2
        v_mul_u32_u24 v5, 57, v4
        v_lshrrev_b32 v5, 9, v5
        v_mul_u32_u24 v6, 9, v5
        v_sub_u32 v6, v4, v6
        v_and_b32 v4, 15, v2
        v_lshl_add_u32 v4, v5, 4, v4
        s_lshl_b32 s{sT1}, s{sB}, 6
        v_add_u32 v4, s{sT1}, v4
        s_movk_i32 s{sT1}, 1152
        v_mul_u32_u24 v4, s{sT1}, v4
        v_lshlrev_b32 v6, 5, v6
        v_add_u32 v4, v4, v6
        v_bfe_u32 v6, v2, 4, 2
        v_lshl_add_u32 v4, v6, 3, v4
        s_mul_i32 s{sT1}, s{sJj}, 288
        v_add_u32 v4, s{sT1}, v4
        s_mov_b32 s{sT2}, 0
        """)
        if o.prepoll == 1:
                p(f"""
                s_mov_b64 s[56:57], exec
                v_readfirstlane_b32 s{sT1}, v3
                v_mul_u32_u24 v6, {32*36864 // 1024}, v{vL}
                v_lshlrev_b32 v6, 10, v6
                v_add_u32 v6, s{sT1}, v6
                v_mov_b32 v9, s{sTag}
                s_mov_b64 exec, 0xff
                buffer_load_dword v10, v6, s[{rO}:{rO+3}], s{sT0} offen sc1
                buffer_load_dword v11, v6, s[{rO}:{rO+3}], s{sT0} offen sc1
                """)
                p.label("T_PP")
                p(f"""
                s_waitcnt vmcnt(1)
                v_xor_b32 v8, v10, v9
                v_and_b32 v8, 0xfff, v8
                v_cmp_ne_u32 vcc, 0, v8
                s_cbranch_vccz T_PPD
                buffer_load_dword v10, v6, s[{rO}:{rO+3}], s{sT0} offen sc1
                s_add_u32 s{sT2}, s{sT2}, 1
                s_waitcnt vmcnt(1)
                v_xor_b32 v8, v11, v9
                v_and_b32 v8, 0xfff, v8
                v_cmp_ne_u32 vcc, 0, v8
                s_cbranch_vccz T_PPD
                buffer_load_dword v11, v6, s[{rO}:{rO+3}], s{sT0} offen sc1
                s_cmp_lt_u32 s{sT2}, {SPIN}
                s_cbranch_scc1 T_PP
                """)
                p.label("T_PPD")
                p(f"""
                s_mov_b64 exec, s[56:57]
                s_mov_b32 s{sT2}, 0
                """)
        elif o.prepoll == 2:
            p(f"""
            s_cmp_eq_u32 s{sWave}, 0
            s_cbranch_scc0 T_PPD
            s_mov_b64 s[56:57], exec
            s_mul_i32 s{sT1}, s{sXc}, {288*16}
            v_and_b32 v6, 7, v{vL}
            v_mul_u32_u24 v6, {32*36864 // 1024}, v6
            v_lshlrev_b32 v6, 10, v6
            v_add_u32 v6, s{sT1}, v6
            v_lshrrev_b32 v8, 3, v{vL}
            v_mul_u32_u24 v8, {287*16}, v8
            v_add_u32 v6, v6, v8
            v_mov_b32 v9, s{sTag}
            s_mov_b64 exec, 0xffff
            buffer_load_dword v10, v6, s[{rO}:{rO+3}], s{sT0} offen sc1
            """)
            p.label("T_PP")
            p(f"""
            s_waitcnt vmcnt(0)
            v_xor_b32 v8, v10, v9
            v_and_b32 v8, 0xfff, v8
            v_cmp_ne_u32 vcc, 0, v8
            s_cbranch_vccz T_PPE
            buffer_load_dword v10, v6, s[{rO}:{rO+3}], s{sT0} offen sc1
            s_add_u32 s{sT2}, s{sT2}, 1
            s_cmp_lt_u32 s{sT2}, {SPIN}
            s_cbranch_scc1 T_PP
            """)
            p.label("T_PPE")
            p(f"""
            s_mov_b64 exec, s[56:57]
            s_mov_b32 s{sT2}, 0
            """)
            p.label("T_PPD")
            p("s_barrier")
        p.label("T_POLL2")
        p(f"s_mov_b32 s{sT1}, s{sT0}")
        for s in range(8):
            p(f"buffer_load_dwordx4 {rg(vX+4*s,4)}, v3, s[{rO}:{rO+3}], s{sT1} offen sc1")
            if s < 7: p(f"s_add_u32 s{sT1}, s{sT1}, {32*36864}")
        p(f"""
        s_add_u32 s{sT2}, s{sT2}, 1
        v_mov_b32 v6, 0
        """)
        for s in range(8):
            p(f"s_waitcnt vmcnt({7-s})")
            for e in range(0, 4, 2):
                p(f"v_xor_b32 v8, s{sTag+e}, v{vX+4*s+e}")
                p(f"v_xor_b32 v9, s{sTag+e+1}, v{vX+4*s+e+1}")
                p(f"v_or3_b32 v6, v6, v8, v9")
        p(f"""
        v_and_b32 v6, 0xfff, v6
        v_cmp_ne_u32 vcc, 0, v6
        s_cmp_lt_u32 s{sT2}, {SPIN}
        s_cbranch_scc0 T_SUM
        s_cbranch_vccnz T_POLL2
        """)
        p.label("T_SUM")
        for s in range(8):
            for e in range(4):
                p(f"v_and_b32 v{vX+4*s+e}, v7, v{vX+4*s+e}")
        for s in range(1, 8):
            for e in range(4):
                p(f"v_add_f32 v{vX+e}, v{vX+e}, v{vX+4*s+e}")
        p(f"""
        v_cvt_pk_bf16_f32 v8, v{vX}, v{vX+1}
        v_cvt_pk_bf16_f32 v9, v{vX+2}, v{vX+3}
        buffer_store_dwordx2 v[8:9], v4, s[{rX}:{rX+3}], 0 offen{' sc1' if o.outsc else ''}
        s_mov_b64 exec, s[58:59]
        """)
    p.label("T_DONE")
    if o.stamps:
        p("s_waitcnt vmcnt(0)")
        p("s_memrealtime s[90:91]" if o.stamps != 2 else "s_memtime s[90:91]")
        p("s_waitcnt lgkmcnt(0)")
        gen_flush_final(p, o, sWs)
    p("s_branch K1_END")

def gemm_opt(p, vAcc, vB, vF, vAd, vLA, sKh2, sT, wo_addr):
    HA, HB = [0, 1, 2, 3, 4], [5, 6, 7, 8]
    for half in range(2):
        c0, c1 = wo_addr(4 * half), wo_addr(8 + 4 * half)
        for kk in range(4):
            assert wo_addr(4 * half + kk) == c0 + kk * 9216 and wo_addr(8 + 4 * half + kk) == c1 + kk * 9216
        p(f"""
        s_mov_b32 s{sT}, {c1}
        s_cmp_eq_u32 s{sKh2}, 0
        s_cselect_b32 s{sT}, {c0}, s{sT}
        v_add_u32 v{vAd + half}, s{sT}, v{vLA}
        """)
    def reads(kk, half):
        ad = vAd + (kk // 4); off = (kk % 4) * 9216
        for nt in half:
            f = vF + 4 * nt
            p(f"ds_read_b64_tr_b16 {rg(f,2)}, v{ad} offset:{off+nt*32}")
            p(f"ds_read_b64_tr_b16 {rg(f+2,2)}, v{ad} offset:{off+4608+nt*32}")
    def mfmas(kk, half, wait):
        p(wait)
        for nt in half:
            f = vF + 4 * nt
            p(f"{MF16} {rg(vAcc+4*nt,4)}, {rg(f,4)}, {rg(vB+4*kk,4)}, {rg(vAcc+4*nt,4)}")
    reads(0, HA)
    for kk in range(8):
        reads(kk, HB)
        mfmas(kk, HA, f"s_waitcnt vmcnt({7-kk}) lgkmcnt({2*len(HB)})")
        if kk < 7:
            reads(kk + 1, HA)
            mfmas(kk, HB, f"s_waitcnt lgkmcnt({2*len(HA)})")
        else:
            mfmas(kk, HB, "s_waitcnt lgkmcnt(0)")

def emit(o):
    name = 'standalone__gqa_block_cached__near_ridge_kernel'
    p = gen_main(o)
    out = [HDR, "; @launch grid=(256,1,1) block=(512,1,1) lds=163840",
           '.amdgcn_target "amdgcn-amd-amdhsa--gfx950"', '.text']
    n = p.fix_hazards()
    errs = p.lint_waits()
    for e in errs[:20]:
        print(f"LINT: {e}", file=sys.stderr)
    nv, ns = p.max_regs()
    print(f"{name}: {len(p.ins)} instrs, vgpr {nv}, sgpr {ns}, nops inserted {n}", file=sys.stderr)
    out.append(f".globl {name}\n.p2align 8\n.type {name},@function\n{name}:")
    out.append(p.text())
    out.append(kd(name, max(nv, 8), max(ns, 16)))
    return '\n'.join(out) + '\n'

if __name__ == '__main__':
    ap = argparse.ArgumentParser()
    ap.add_argument('-o', default='standalone__gqa_block_cached__near_ridge.s')
    for k, d in OPTS.items():
        ap.add_argument('--' + k, type=int, default=d)
    a = ap.parse_args()
    o = Opt()
    for k in OPTS:
        setattr(o, k, getattr(a, k))
    open(a.o, 'w').write(emit(o))
```
